```python
import torch

def _softmax(x, axis=-1):
    return torch.softmax(x, dim=axis)
def _gelu(x):
    return torch.nn.functional.gelu(x, approximate="tanh")
def _silu(x):
    return torch.nn.functional.silu(x)
def _sigmoid(x):
    return torch.sigmoid(x)
def _layernorm(x, axis=-1, eps=1e-5):
    m = x.mean(dim=axis, keepdim=True)
    v = x.var(dim=axis, keepdim=True, unbiased=False)
    return (x - m) / torch.sqrt(v + eps)
def _scatter_add(tgt, idx, src, axis=0):
    return tgt.clone().index_add_(axis, idx, src)
def _segment_sum(src, seg, n):
    out = torch.zeros((n,) + src.shape[1:], dtype=src.dtype)
    return out.index_add_(0, seg, src)
def _pad(x, pw):
    flat = tuple(v for pair in reversed(pw) for v in pair)
    return torch.nn.functional.pad(x, flat)

kernel_name = 'interleave_layers__sliding_block_cached__mixer_channel_mlp__decode'

def setup_inputs():

    _w = (lambda a: (lambda t: t.to(torch.bfloat16) if t.is_floating_point() else t)(torch.as_tensor(a)))
    def _A_setup():
        B, Sq, D = 4, 1, 512
        Hq, Hkv, Sk, Dh = 32, 8, 8192, 128
        assert Hq % Hkv == 0, (Hq, Hkv)
        return {
            "x": _w((lambda *s: torch.randn(*s, dtype=torch.bfloat16) * 0.05)(B, Sq, D)),
            "k_cache": _w((lambda *s: torch.randn(*s, dtype=torch.bfloat16) * 1.6)(B, Hkv, Sk, Dh)),
            "v_cache": _w((lambda *s: torch.randn(*s, dtype=torch.bfloat16) * 1.6)(B, Hkv, Sk, Dh)),
            "wq": _w((lambda *s: torch.randn(*s, dtype=torch.bfloat16) * 1.6)(D, Hq * Dh) * (D ** -0.5)),
            "wo": _w((lambda *s: torch.randn(*s, dtype=torch.bfloat16) * 1.6)(Hq * Dh, D) * ((Hq * Dh) ** -0.5)),
        }
    _A_in = _A_setup()

    def _B_setup():
        B, S, D, F = 4, 1, 512, 1792
        return {
            "x": _w((lambda *s: torch.randn(*s, dtype=torch.bfloat16) * 0.05)(B, S, D)),
            "w1": _w((lambda *s: torch.randn(*s, dtype=torch.bfloat16) * 3.2)(D, F) * (D ** -0.5)),
            "b1": _w((lambda *s: torch.randn(*s, dtype=torch.bfloat16) * 1.6)(F)),
            "w2": _w((lambda *s: torch.randn(*s, dtype=torch.bfloat16) * 0.2)(F, D) * (F ** -0.5)),
            "b2": _w((lambda *s: torch.randn(*s, dtype=torch.bfloat16) * 0.2)(D)),
        }
    _B_in = _B_setup()

    return {
        "A_x": _A_in["x"],
        "A_k_cache": _A_in["k_cache"],
        "A_v_cache": _A_in["v_cache"],
        "A_wq": _A_in["wq"],
        "A_wo": _A_in["wo"],
        "B_x": _B_in["x"],
        "B_w1": _B_in["w1"],
        "B_b1": _B_in["b1"],
        "B_w2": _B_in["w2"],
        "B_b2": _B_in["b2"],
    }

def reference(A_x, A_k_cache, A_v_cache, A_wq, A_wo, B_x, B_w1, B_b1, B_w2, B_b2):
    def _A_ref(x, k_cache, v_cache, wq, wo):
        B, Sq, D = x.shape
        Hq, Dh = 32, 128
        Hkv, Sk = k_cache.shape[1], k_cache.shape[2]
        W = min(4096, max(256, Sk // 4))
        rep = Hq // Hkv
        q = (lambda x, *d: x.permute(*d))((x @ wq).reshape(B, Sq, Hq, Dh), 0, 2, 1, 3)
        k = (lambda x, n, axis: torch.repeat_interleave(x, n, dim=axis))(k_cache[:, :, Sk - W:, :], rep, axis=1)
        v = (lambda x, n, axis: torch.repeat_interleave(x, n, dim=axis))(v_cache[:, :, Sk - W:, :], rep, axis=1)
        scores = torch.einsum("bhqd,bhkd->bhqk", q, k) * (Dh ** -0.5)
        p = _softmax(scores, axis=-1)
        o = torch.einsum("bhqk,bhkd->bhqd", p, v)
        return (lambda x, *d: x.permute(*d))(o, 0, 2, 1, 3).reshape(B, Sq, Hq * Dh) @ wo

    def _B_ref(x, w1, b1, w2, b2):
        y = _layernorm(x, axis=-1)
        h = _gelu(torch.einsum("bsd,df->bsf", y, w1) + b1)
        return torch.einsum("bsf,fd->bsd", h, w2) + b2

    x = A_x
    x = x + _A_ref(_layernorm(x, axis=-1), A_k_cache, A_v_cache, A_wq, A_wo)
    x = x + _B_ref(_layernorm(x, axis=-1), B_w1, B_b1, B_w2, B_b2)
    x = x + _A_ref(_layernorm(x, axis=-1), A_k_cache, A_v_cache, A_wq, A_wo)
    x = x + _B_ref(_layernorm(x, axis=-1), B_w1, B_b1, B_w2, B_b2)
    return x
```

```python
import re

TRANS = ("v_exp_f32", "v_log_f32", "v_rcp_f32", "v_rsq_f32", "v_sqrt_f32", "v_sin_f32", "v_cos_f32")


def _regs(tok):
    tok = tok.strip()
    tok = tok.lstrip("-")
    m = re.fullmatch(r"abs\((.*)\)", tok)
    if m:
        tok = m.group(1)
    m = re.fullmatch(r"\|(.*)\|", tok)
    if m:
        tok = m.group(1)
    m = re.fullmatch(r"([vsa])(\d+)", tok)
    if m:
        return {(m.group(1), int(m.group(2)))}
    m = re.fullmatch(r"([vsa])\[(\d+):(\d+)\]", tok)
    if m:
        return {(m.group(1), i) for i in range(int(m.group(2)), int(m.group(3)) + 1)}
    if tok in ("vcc", "vcc_lo", "vcc_hi"):
        return {("x", "vcc")}
    if tok in ("exec", "exec_lo", "exec_hi"):
        return {("x", "exec")}
    if tok == "m0":
        return {("x", "m0")}
    return set()


class Ins:
    def __init__(self, text):
        self.text = text
        t = text.split(";")[0].strip()
        self.label = None
        if t.endswith(":"):
            self.label = t[:-1]
            self.op = None
            return
        parts = t.split(None, 1)
        self.op = parts[0]
        rest = parts[1] if len(parts) > 1 else ""
        ops, cur, depth = [], "", 0
        for c in rest:
            if c in "[(":
                depth += 1
            if c in "])":
                depth -= 1
            if c == "," and depth == 0:
                ops.append(cur.strip())
                cur = ""
            else:
                cur += c
        if cur.strip():
            ops.append(cur.strip())
        self.mods = ""
        if ops:
            sp = ops[-1].split(None, 1)
            if len(sp) > 1 and not ops[-1].startswith("hwreg"):
                ops[-1] = sp[0]
                self.mods = sp[1]
        self.ops = ops
        op = self.op
        self.is_mfma = op.startswith("v_mfma")
        self.is_valu = op.startswith("v_") and not self.is_mfma
        self.is_trans = any(op.startswith(x) for x in TRANS)
        self.is_ds = op.startswith("ds_")
        self.is_vmem = op.startswith("global_") or op.startswith("buffer_")
        self.is_salu = op.startswith("s_")
        self.is_dpp = "_dpp" in op or "quad_perm" in self.mods or "row_" in self.mods
        self.is_permlane = op.startswith("v_permlane")
        self.is_branch = op.startswith("s_cbranch") or op == "s_branch"
        R = [_regs(o) for o in ops]
        w, r = set(), set()
        self.srcc = set()
        self.srcab = set()
        self.store_data = set()
        if self.is_mfma:
            w = R[0]
            self.srcab = R[1] | R[2]
            self.srcc = R[3]
            r = self.srcab | self.srcc
        elif self.is_permlane:
            w = R[0] | R[1]
            r = R[0] | R[1]
        elif op.startswith("v_cmp"):
            w = set(R[0])
            if op.startswith("v_cmpx"):
                w |= {("x", "exec")}
            for x in R[1:]:
                r |= x
        elif op.startswith(("v_add_co", "v_sub_co", "v_addc_co", "v_subb_co", "v_subrev_co")):
            w = R[0] | R[1]
            for x in R[2:]:
                r |= x
        elif self.is_valu:
            w = set(R[0])
            for x in R[1:]:
                r |= x
            if op.startswith(("v_fmac", "v_dot2c")) or self.is_dpp or op.startswith("v_writelane"):
                r |= R[0]
            if op.startswith("v_cndmask") and len(ops) == 3:
                r |= {("x", "vcc")}
        elif self.is_ds:
            if op.startswith(("ds_read", "ds_bpermute", "ds_permute", "ds_swizzle")):
                w = set(R[0])
                for x in R[1:]:
                    r |= x
                if "d16" in op:
                    r |= R[0]
            else:
                for x in R:
                    r |= x
        elif self.is_vmem:
            if "_load_lds" in op or " lds" in (" " + self.mods):
                for x in R:
                    r |= x
                r |= {("x", "m0")}
                self.is_ldsdma = True
            elif "_load" in op:
                w = set(R[0])
                for x in R[1:]:
                    r |= x
            elif "atomic" in op:
                if "sc0" in self.mods:
                    w = set(R[0])
                    for x in R[1:]:
                        r |= x
                else:
                    for x in R:
                        r |= x
            else:
                for x in R:
                    r |= x
                if op.endswith(("x3", "x4")):
                    self.store_data = R[1] if op.startswith("global_") else R[0]
        elif self.is_salu:
            if op.startswith(("s_cmp", "s_bitcmp", "s_waitcnt", "s_nop", "s_barrier", "s_sleep", "s_endpgm", "s_setprio", "s_cbranch", "s_branch")):
                for x in R:
                    r |= x
            else:
                if R:
                    w = set(R[0])
                for x in R[1:]:
                    r |= x
                if "saveexec" in op:
                    w |= {("x", "exec")}
                    r |= {("x", "exec")}
        self.w, self.r = w, r

    def states(self):
        if self.op == "s_nop":
            return int(self.ops[0], 0) + 1
        return 1


def mfma_passes(op):
    if "16x16x32" in op or "16x16x16" in op:
        return 4
    if "32x32x16" in op or "32x32x8" in op:
        return 8
    raise ValueError(op)


def required(p, c):
    n = 0
    vs = lambda s: {x for x in s if x[0] in "va"}
    sg = lambda s: {x for x in s if x[0] == "s" or x == ("x", "vcc")}
    if p.is_valu:
        pw = vs(p.w)
        if c.is_mfma and pw & c.r:
            n = max(n, 2)
        if c.is_valu and c.is_dpp and pw & c.r:
            n = max(n, 2)
        if c.is_permlane and pw & c.r:
            n = max(n, 2)
        if c.op.startswith(("v_readlane", "v_readfirstlane")) and pw & c.r:
            n = max(n, 1)
        if p.is_trans and (c.is_valu or c.is_mfma) and not c.is_trans and pw & c.r:
            n = max(n, 1)
        if p.is_trans and (c.is_ds or c.is_vmem) and pw & c.r:
            n = max(n, 1)
        ps = sg(p.w)
        if ps:
            if c.is_vmem and ps & c.r:
                n = max(n, 5)
            if (c.is_valu or c.is_mfma) and ps & c.r:
                n = max(n, 4 if c.op.startswith(("v_readlane", "v_writelane")) else 2)
            if c.is_salu and ps & c.r:
                n = max(n, 1)
            if c.op.startswith("s_cbranch_vcc") and ("x", "vcc") in ps:
                n = max(n, 1)
        if ("x", "exec") in p.w:
            if c.is_valu or c.is_mfma:
                n = max(n, 5)
    if p.is_mfma:
        ps = mfma_passes(p.op)
        idx = {2: 0, 4: 1, 8: 2, 16: 3}[ps]
        if c.is_mfma:
            if p.w & c.srcab:
                n = max(n, (5, 8, 12, 20)[idx])
            if p.w & c.srcc:
                if p.w == c.srcc and mfma_passes(c.op) == ps:
                    n = max(n, (2, 0, 0, 0)[idx])
                else:
                    n = max(n, (4, 6, 10, 18)[idx])
            if p.w & c.w and not (p.w & c.srcc):
                n = max(n, (5, 8, 12, 20)[idx])
        elif (c.is_valu or c.is_ds or c.is_vmem) and (p.w & (c.r | c.w)):
            n = max(n, (5, 8, 12, 20)[idx])
        if c.is_valu and p.srcc & c.w:
            n = max(n, (1, 3, 7, 15)[idx])
    if p.is_vmem and p.store_data:
        if p.store_data & c.w:
            n = max(n, 2)
    if p.is_salu and ("x", "m0") in p.w and ("x", "m0") in c.r and c.is_vmem:
        n = max(n, 1)
    return n


class Asm:
    def __init__(self):
        self.ins = []

    def __call__(self, text):
        for line in text.strip().split("\n"):
            line = line.strip()
            if not line or line.startswith(";"):
                continue
            self.ins.append(Ins(line))

    def label(self, name):
        self.ins.append(Ins(name + ":"))

    def fix_hazards(self):
        changed = True
        while changed:
            changed = False
            ins = self.ins
            labels = {x.label: i for i, x in enumerate(ins) if x.label}
            srcs = {}
            for i, x in enumerate(ins):
                if x.op and x.is_branch:
                    srcs.setdefault(labels[x.ops[0]], []).append(i)

            def need(ci):
                c = ins[ci]
                worst = 0
                stack = [(ci - 1, 0)]
                seen = set()
                while stack:
                    i, dist = stack.pop()
                    while i >= 0 and dist < 21:
                        if (i, dist) in seen:
                            break
                        seen.add((i, dist))
                        x = ins[i]
                        if x.label:
                            for sidx in srcs.get(i, []):
                                stack.append((sidx, dist))
                            j = i - 1
                            while j >= 0 and ins[j].label:
                                break
                            if i - 1 >= 0 and ins[i - 1].op in ("s_branch", "s_endpgm"):
                                break
                            i -= 1
                            continue
                        rq = required(x, c)
                        if rq - dist > worst:
                            worst = rq - dist
                        dist += x.states()
                        i -= 1
                return worst

            for ci, c in enumerate(ins):
                if c.label:
                    continue
                n = need(ci)
                if n > 0:
                    nops = []
                    while n > 0:
                        k = min(n, 16)
                        nops.append(Ins("s_nop %d" % (k - 1)))
                        n -= k
                    self.ins = ins[:ci] + nops + ins[ci:]
                    changed = True
                    break

    def text(self):
        out = []
        for x in self.ins:
            out.append(x.text if x.label else "    " + x.text)
        return "\n".join(out)
```

```python
import sys, math, struct, os
from asmlib import Asm

NAME = "interleave_layers__sliding_block_cached__mixer_channel_mlp__decode"

P = dict(
    D_O=0, D_W1=12, D_W2=0, D_X=12, D_A=0,
    NT="nt",
)
for a in sys.argv[2:]:
    k, v = a.split("=")
    P[k] = int(v) if v.lstrip("-").isdigit() else v


def f32(x):
    return "0x%08x" % struct.unpack("<I", struct.pack("<f", x))[0]


LSTR = 0x200000
E1, E1S, E2S, E4S, E4R, E5, E2, E3, E4 = 0x0, 0x50000, 0x58000, 0x5A000, 0x60000, 0x70000, 0x80000, 0x100000, 0x140000
SENT = 0x7F817F81
LW_Q, LW_O, LW_2, LW_1 = 0, 16384, 32768, 61440
XOP = 68608
QOP = XOP + 5 * 272
OOP = QOP + 4 * 272
X1OP = OOP + 4 * 272
HOP = X1OP + 5 * 80
ML = HOP + 448
AP = (ML + 256 + 1023) // 1024 * 1024
LDS_TOTAL = AP + 16384
assert XOP % 16 == 0 and QOP % 16 == 0 and OOP % 16 == 0 and X1OP % 16 == 0 and HOP % 16 == 0 and ML % 16 == 0

sWave, sJ, sS, sHi, sLo, sR1, sC1, sL, sBud = "s3", "s4", "s5", "s6", "s7", "s8", "s9", "s10", "s11"
sT0, sT1, sT2, sT3 = "s12", "s13", "s14", "s15"
pX, pK, pV, pWQ, pWO, pW1, pB1, pW2, pB2, pOUT, pDBG, pWS = (
    "s[16:17]", "s[18:19]", "s[20:21]", "s[22:23]", "s[24:25]", "s[28:29]", "s[30:31]", "s[32:33]", "s[34:35]",
    "s[36:37]", "s[38:39]", "s[40:41]")
pWL = "s[42:43]"
sFast = "s44"
sU = "s45"
mB0, mB1 = "s[46:47]", "s[48:49]"
mQ = ["s[50:51]", "s[52:53]", "s[54:55]", "s[56:57]"]
sPermLo, sPermHi = "s58", "s59"
sC = "s60"
pT = "s[62:63]"
pT2 = "s[64:65]"
sXcc = "s66"
sK0, sK1, sK2 = "s67", "s68", "s69"
mT = "s[70:71]"

A = Asm()
NT = (" " + P["NT"]) if P["NT"] else ""


def v(n, cnt=1):
    return "v%d" % n if cnt == 1 else "v[%d:%d]" % (n, n + cnt - 1)


def smov64(pair, val):
    lo = int(pair[2:].split(":")[0])
    A("s_mov_b32 s%d, 0x%08x" % (lo, val & 0xFFFFFFFF))
    A("s_mov_b32 s%d, 0x%08x" % (lo + 1, val >> 32))


def set_exec(val):
    if val == -1:
        A("s_mov_b64 exec, -1")
    else:
        A("s_mov_b32 exec_lo, 0x%08x" % (val & 0xFFFFFFFF))
        A("s_mov_b32 exec_hi, 0x%08x" % (val >> 32))


def padd(dst, src, soff):
    d = int(dst[2:].split(":")[0]); s = int(src[2:].split(":")[0])
    A("s_add_u32 s%d, s%d, %s" % (d, s, soff))
    A("s_addc_u32 s%d, s%d, 0" % (d + 1, s + 1))


DPP = " row_mask:0xf bank_mask:0xf"
X1 = "quad_perm:[1,0,3,2]" + DPP
X2 = "quad_perm:[2,3,0,1]" + DPP
HM = "row_half_mirror" + DPP
RM = "row_mirror" + DPP

_lab = [0]


def newlabel(p="L"):
    _lab[0] += 1
    return "%s_%d" % (p, _lab[0])


def sleep(n):
    while n > 0:
        k = min(n, 127)
        A("s_sleep %d" % k)
        n -= k


def quad_treduce(a, t, out):
    A("v_cndmask_b32 %s, %s, %s, %s" % (v(t[0]), v(a[0]), v(a[1]), mB0))
    A("v_cndmask_b32 %s, %s, %s, %s" % (v(t[1]), v(a[1]), v(a[0]), mB0))
    A("v_cndmask_b32 %s, %s, %s, %s" % (v(t[2]), v(a[2]), v(a[3]), mB0))
    A("v_cndmask_b32 %s, %s, %s, %s" % (v(t[3]), v(a[3]), v(a[2]), mB0))
    A("v_add_f32_dpp %s, %s, %s %s" % (v(t[0]), v(t[1]), v(t[0]), X1))
    A("v_add_f32_dpp %s, %s, %s %s" % (v(t[2]), v(t[3]), v(t[2]), X1))
    A("v_cndmask_b32 %s, %s, %s, %s" % (v(out), v(t[0]), v(t[2]), mB1))
    A("v_cndmask_b32 %s, %s, %s, %s" % (v(t[1]), v(t[2]), v(t[0]), mB1))
    A("v_add_f32_dpp %s, %s, %s %s" % (v(out), v(t[1]), v(out), X2))


def poll(loads, check_pairs, pre=None):
    top, done = newlabel("POLL"), newlabel("PDONE")
    A.label(top)
    for l in loads:
        A(l)
    A("s_waitcnt vmcnt(0)")
    if pre:
        pre()
    first = True
    for (a, b) in check_pairs:
        if first:
            A("v_cmp_u_f32 vcc, %s, %s" % (v(a), v(b)))
            first = False
        else:
            A("v_cmp_u_f32 %s, %s, %s" % (mT, v(a), v(b)))
            A("s_or_b64 vcc, vcc, %s" % mT)
    A("s_cbranch_vccz %s" % done)
    A("s_sub_u32 %s, %s, 1" % (sBud, sBud))
    A("s_cbranch_scc0 %s" % top)
    A("s_mov_b32 %s, 0" % sBud)
    A.label(done)


def store_intra(insn):
    ls, le = newlabel("SAFE"), newlabel("SEND")
    A("s_cmp_eq_u32 %s, 0" % sFast)
    A("s_cbranch_scc1 %s" % ls)
    for i in insn:
        A(i)
    A("s_branch %s" % le)
    A.label(ls)
    for i in insn:
        A(i + (" sc1" if i.startswith("global_store") else ""))
    A.label(le)


def if_layer0():
    lab = newlabel("NOTL0")
    A("s_cmp_lg_u32 %s, 0" % sL)
    A("s_cbranch_scc1 %s" % lab)
    return lab


A("s_cmp_ge_u32 s2, 256")
A("s_cbranch_scc1 L_END")
A("s_load_dwordx16 s[16:31], s[0:1], 0")
A("s_load_dwordx8 s[32:39], s[0:1], 64")
A("s_load_dwordx2 s[40:41], s[0:1], 96")
A("v_lshrrev_b32 v1, 6, v0")
A("v_and_b32 v0, 63, v0")
A("v_readfirstlane_b32 %s, v1" % sWave)
A("s_and_b32 %s, s2, 7" % sJ)
A("s_lshr_b32 %s, s2, 3" % sS)
A("s_lshr_b32 %s, s2, 6" % sHi)
A("s_and_b32 %s, %s, 7" % (sLo, sS))
A("s_lshr_b32 %s, s2, 4" % sR1)
A("s_and_b32 %s, %s, 1" % (sC1, sS))
A("s_mov_b32 %s, 0" % sL)
A("s_mov_b32 %s, 400000" % sBud)
smov64(mB0, 0xAAAAAAAAAAAAAAAA)
smov64(mB1, 0xCCCCCCCCCCCCCCCC)
A("v_and_b32 v1, 15, v0")
A("v_lshrrev_b32 v2, 4, v0")
A("v_lshlrev_b32 v3, 4, v0")
A("s_cmp_ge_u32 %s, 8" % sWave)
A("s_cbranch_scc1 L_S")

KR, VR, VF, QR, SR = 16, 48, 80, 112, 128
GS = 48
(gOg, gOml, gOlds, gW1g, gW1x, gW1lds, gW2g, gW2s, gW2lds, gXg, gXr, gXlds, gB1, gB2, gCs1, gQrd, gApw, gMlw, gOut) = range(148, 167)

A("s_lshl_b32 %s, %s, 3" % (sT0, sHi))
A("s_add_u32 %s, %s, %s" % (sT0, sT0, sJ))
A("s_lshl_b32 %s, %s, 21" % (sT0, sT0))
A("s_lshl_b32 %s, %s, 16" % (sT1, sLo))
A("s_add_u32 %s, %s, %s" % (sT0, sT0, sT1))
A("s_lshl_b32 %s, %s, 13" % (sT1, sWave))
A("s_add_u32 %s, %s, %s" % (sT0, sT0, sT1))
A("s_add_u32 %s, %s, %d" % (sT0, sT0, 6144 * 256 + 4096))
A("v_and_b32 v4, 3, v1")
A("v_lshlrev_b32 v4, 10, v4")
A("v_lshrrev_b32 v5, 2, v1")
A("v_lshl_add_u32 v4, v5, 8, v4")
A("v_lshl_add_u32 v4, v2, 4, v4")
A("s_and_b32 %s, %s, 1" % (sT2, sWave))
A("s_lshl_b32 %s, %s, 6" % (sT2, sT2))
A("s_lshl_b32 %s, %s, 7" % (sT3, sHi))
A("s_add_u32 %s, %s, %s" % (sT2, sT2, sT3))
A("v_add_u32 v5, %s, v0" % sT2)
A("v_lshlrev_b32 v5, 1, v5")
A("v_lshrrev_b32 v6, 3, v0")
A("v_and_b32 v7, 3, v0")
A("v_lshl_add_u32 v6, v6, 2, v7")
A("s_min_u32 %s, %s, 6" % (sT3, sWave))
A("s_lshl_b32 %s, %s, 5" % (sT3, sT3))
A("v_add_u32 v6, %s, v6" % sT3)
A("s_mul_i32 %s, %s, 224" % (sK0, sJ))
A("v_add_u32 v7, %s, v6" % sK0)
A("v_lshlrev_b32 v7, 1, v7")
A("s_waitcnt lgkmcnt(0)")
padd(pT, pK, sT0)
padd(pT2, pV, sT0)
A("global_load_ushort %s, v5, %s" % (v(gB2), pB2))
A("global_load_ushort %s, v7, %s" % (v(gB1), pB1))
for tau in range(2):
    for t in range(4):
        A("global_load_dwordx4 %s, v4, %s offset:%d%s" % (v(KR + 4 * (4 * tau + t), 4), pT, tau * 4096 - 4096 + 64 * t, NT))
for jj in range(8):
    A("global_load_dwordx4 %s, v3, %s offset:%d%s" % (v(VR + 4 * jj, 4), pT2, (jj - 4) * 1024, NT))
A("v_lshrrev_b32 v8, 3, v0")
A("v_lshlrev_b32 v8, 10, v8")
A("v_and_b32 v9, 7, v0")
A("v_lshl_add_u32 v8, v9, 4, v8")
A("s_lshl_b32 %s, %s, 19" % (sT0, sJ))
A("s_lshl_b32 %s, %s, 17" % (sT1, sHi))
A("s_add_u32 %s, %s, %s" % (sT0, sT0, sT1))
A("s_lshl_b32 %s, %s, 14" % (sT1, sWave))
A("s_add_u32 %s, %s, %s" % (sT0, sT0, sT1))
A("s_lshl_b32 %s, %s, 7" % (sK1, sLo))
A("s_add_u32 %s, %s, %s" % (sT0, sT0, sK1))
padd(pT, pWO, sT0)
A("s_lshl_b32 %s, %s, 11" % (sT1, sWave))
A("s_add_u32 m0, %s, %d" % (sT1, LW_O))
A("global_load_lds_dwordx4 v8, %s%s" % (pT, NT))
padd(pT, pT, 8192)
A("s_add_u32 m0, %s, %d" % (sT1, LW_O + 1024))
A("global_load_lds_dwordx4 v8, %s%s" % (pT, NT))
A("s_mul_i32 %s, %s, %d" % (sT0, sJ, 224 * 1024))
A("s_add_u32 %s, %s, %s" % (sT0, sT0, sK1))
for k in range(4):
    if k < 3:
        A("s_add_u32 %s, %s, %d" % (sT1, sWave, 8 * k))
    else:
        A("s_add_u32 %s, %s, 24" % (sT1, sWave))
        A("s_add_u32 %s, %s, 16" % (sK2, sWave))
        A("s_cmp_lt_u32 %s, 4" % sWave)
        A("s_cselect_b32 %s, %s, %s" % (sT1, sT1, sK2))
    A("s_lshl_b32 %s, %s, 13" % (sK2, sT1))
    A("s_add_u32 %s, %s, %s" % (sK2, sK2, sT0))
    padd(pT, pW2, sK2)
    A("s_lshl_b32 %s, %s, 10" % (sK2, sT1))
    A("s_add_u32 m0, %s, %d" % (sK2, LW_2))
    A("global_load_lds_dwordx4 v8, %s%s" % (pT, NT))
N_AFTER_K, N_AFTER_V = 8 + 2 + 4, 2 + 4

for q in range(4):
    smov64(mQ[q], (0x000F000F000F000F << (4 * q)))
A("s_mov_b32 %s, 0x05040100" % sPermLo)
A("s_mov_b32 %s, 0x07060302" % sPermHi)
A("s_mov_b32 %s, %s" % (sC, f32(128 ** -0.5 * math.log2(math.e))))
A("s_mov_b32 s42, s40")
A("s_mov_b32 s43, s41")
A("v_and_b32 v9, 3, v0")
A("v_lshrrev_b32 v10, 2, v0")
A("s_lshr_b32 %s, %s, 1" % (sK0, sWave))
A("s_and_b32 %s, %s, 1" % (sK1, sWave))
A("s_lshl_b32 %s, %s, 2" % (sT0, sJ))
A("s_add_u32 %s, %s, %s" % (sT0, sT0, sHi))
A("s_lshl_b32 %s, %s, 2" % (sT0, sT0))
A("s_add_u32 %s, %s, %s" % (sT0, sT0, sK0))
A("s_lshl_b32 %s, %s, 12" % (sT1, sT0))
A("s_lshl_b32 %s, %s, 8" % (sK2, sK1))
A("s_add_u32 %s, %s, %s" % (sT1, sT1, sK2))
A("s_add_u32 %s, %s, %d" % (sT1, sT1, E2))
A("v_lshlrev_b32 %s, 10, v9" % v(gOg))
A("v_lshl_add_u32 %s, v10, 4, %s" % (v(gOg), v(gOg)))
A("v_add_u32 %s, %s, %s" % (v(gOg), sT1, v(gOg)))
A("s_lshl_b32 %s, %s, 6" % (sT1, sT0))
A("s_add_u32 %s, %s, %d" % (sT1, sT1, E2S))
A("v_lshlrev_b32 %s, 4, v9" % v(gOml))
A("v_add_u32 %s, %s, %s" % (v(gOml), sT1, v(gOml)))
A("v_lshrrev_b32 v11, 2, v10")
A("v_and_b32 v12, 3, v10")
A("v_lshlrev_b32 v11, 5, v11")
A("v_lshl_add_u32 v11, v9, 3, v11")
A("v_add_u32 v11, v11, v12")
A("v_lshlrev_b32 v11, 1, v11")
A("s_mul_i32 %s, %s, 272" % (sT1, sK0))
A("s_lshl_b32 %s, %s, 3" % (sK2, sK1))
A("s_add_u32 %s, %s, %s" % (sT1, sT1, sK2))
A("s_add_u32 %s, %s, %d" % (sT1, sT1, OOP))
A("v_add_u32 %s, %s, v11" % (v(gOlds), sT1))
A("s_lshl_b32 %s, %s, 14" % (sT1, sR1))
A("s_lshl_b32 %s, %s, 6" % (sK2, sWave))
A("s_add_u32 %s, %s, %s" % (sT1, sT1, sK2))
A("s_add_u32 %s, %s, %d" % (sT1, sT1, E3))
A("v_lshlrev_b32 %s, 10, v1" % v(gW1g))
A("v_lshl_add_u32 %s, v2, 4, %s" % (v(gW1g), v(gW1g)))
A("v_add_u32 %s, %s, %s" % (v(gW1g), sT1, v(gW1g)))
A("v_lshl_add_u32 v11, v2, 2, v9")
A("v_lshlrev_b32 v11, 1, v11")
A("s_lshr_b32 %s, %s, 2" % (sT0, sWave))
A("s_lshl_b32 %s, %s, 5" % (sT0, sT0))
A("s_and_b32 %s, %s, 3" % (sT1, sWave))
A("s_mul_i32 %s, %s, 80" % (sK2, sT1))
A("s_add_u32 %s, %s, %s" % (sK2, sK2, sT0))
A("s_add_u32 %s, %s, %d" % (sK2, sK2, X1OP))
A("v_add_u32 %s, %s, v11" % (v(gW1lds), sK2))
A("s_mul_i32 %s, %s, 272" % (sK2, sT1))
A("s_add_u32 %s, %s, %s" % (sK2, sK2, sT0))
A("s_and_b32 %s, %s, 3" % (sT1, sR1))
A("s_lshl_b32 %s, %s, 6" % (sT1, sT1))
A("s_add_u32 %s, %s, %s" % (sK2, sK2, sT1))
A("s_add_u32 %s, %s, %d" % (sK2, sK2, XOP))
A("v_add_u32 %s, %s, v11" % (v(gW1x), sK2))
A("s_mul_i32 %s, %s, 5" % (sT0, sJ))
A("s_add_u32 %s, %s, %s" % (sT0, sT0, sHi))
A("s_mul_i32 %s, %s, %d" % (sT0, sT0, 16 * 896))
A("s_lshl_b32 %s, %s, 2" % (sT1, sT3))
A("s_add_u32 %s, %s, %s" % (sT0, sT0, sT1))
A("s_add_u32 %s, %s, %d" % (sT0, sT0, E4))
A("v_and_b32 v11, 7, v0")
A("v_mul_u32_u24 %s, %d, v11" % (v(gW2g), 2 * 896))
A("v_lshrrev_b32 v12, 3, v0")
A("v_lshl_add_u32 %s, v12, 4, %s" % (v(gW2g), v(gW2g)))
A("v_add_u32 %s, %s, %s" % (v(gW2g), sT0, v(gW2g)))
A("s_lshl_b32 %s, %s, 1" % (sT0, sJ))
A("s_add_u32 %s, %s, %s" % (sT0, sT0, sC1))
A("s_lshl_b32 %s, %s, 2" % (sK2, sT0))
A("s_add_u32 %s, %s, %s" % (sT1, sK2, sHi))
A("s_lshl_b32 %s, %s, 7" % (sT1, sT1))
A("s_add_u32 %s, %s, %d" % (sT1, sT1, E4S))
A("v_lshlrev_b32 %s, 4, v11" % v(gW2s))
A("v_add_u32 %s, %s, %s" % (v(gW2s), sT1, v(gW2s)))
A("v_lshlrev_b32 %s, 1, v6" % v(gW2lds))
A("v_add_u32 %s, %d, %s" % (v(gW2lds), HOP, v(gW2lds)))
A("s_lshl_b32 %s, %s, 3" % (sT0, sK0))
A("s_lshl_b32 %s, %s, 1" % (sT1, sHi))
A("s_add_u32 %s, %s, %s" % (sT0, sT0, sT1))
A("s_add_u32 %s, %s, %s" % (sT0, sT0, sK1))
A("s_lshl_b32 %s, %s, 11" % (sT0, sT0))
A("s_add_u32 %s, %s, %d" % (sT0, sT0, E5))
A("v_lshlrev_b32 %s, 9, v9" % v(gXg))
A("v_lshl_add_u32 %s, v10, 4, %s" % (v(gXg), v(gXg)))
A("v_add_u32 %s, %s, %s" % (v(gXg), sT0, v(gXg)))
A("s_add_u32 %s, %s, %s" % (sT0, sK2, sK0))
A("s_lshl_b32 %s, %s, 10" % (sT0, sT0))
A("s_add_u32 %s, %s, %d" % (sT0, sT0, E4R))
A("v_add_u32 %s, %s, v5" % (v(gXr), sT0))
A("s_lshl_b32 %s, %s, 10" % (sT0, sK0))
A("v_add_u32 %s, %s, v5" % (v(gOut), sT0))
A("s_mul_i32 %s, %s, 272" % (sT0, sK0))
A("s_lshl_b32 %s, %s, 7" % (sT1, sK1))
A("s_add_u32 %s, %s, %s" % (sT0, sT0, sT1))
A("s_add_u32 %s, %s, %d" % (sT0, sT0, XOP))
A("v_lshlrev_b32 %s, 1, v0" % v(gXlds))
A("v_add_u32 %s, %s, %s" % (v(gXlds), sT0, v(gXlds)))
A("v_mul_u32_u24 %s, 272, v9" % v(gQrd))
A("v_lshl_add_u32 %s, v2, 4, %s" % (v(gQrd), v(gQrd)))
A("v_add_u32 %s, %d, %s" % (v(gQrd), QOP, v(gQrd)))
A("s_lshl_b32 %s, %s, 11" % (sT0, sWave))
A("s_add_u32 %s, %s, %d" % (sT0, sT0, AP))
A("v_add_u32 %s, %s, v3" % (v(gApw), sT0))
A("s_lshl_b32 %s, %s, 3" % (sT0, sWave))
A("s_add_u32 %s, %s, %d" % (sT0, sT0, ML))
A("v_lshlrev_b32 %s, 6, v9" % v(gMlw))
A("v_add_u32 %s, %s, %s" % (v(gMlw), sT0, v(gMlw)))

A.label("G_LOOP")
A("s_barrier")
A("s_barrier")
for t in range(4):
    A("ds_read_b128 %s, %s offset:%d" % (v(QR + 4 * t, 4), v(gQrd), 64 * t))
A("s_waitcnt vmcnt(%d)" % N_AFTER_K)
S0, S1 = SR, SR + 4
for t in range(4):
    A("s_waitcnt lgkmcnt(%d)" % (3 - t))
    for tau in range(2):
        d = v(SR + 4 * tau, 4)
        A("v_mfma_f32_16x16x32_bf16 %s, %s, %s, %s" % (d, v(KR + 4 * (4 * tau + t), 4), v(QR + 4 * t, 4), "0" if t == 0 else d))
aM, aT, aL, aMc = 136, 137, 138, 139
PR = 140
PM = QR
A("v_max3_f32 %s, %s, %s, %s" % (v(aM), v(S0), v(S0 + 1), v(S0 + 2)))
A("v_max3_f32 %s, %s, %s, %s" % (v(aT), v(S1), v(S1 + 1), v(S1 + 2)))
A("v_max3_f32 %s, %s, %s, %s" % (v(aM), v(aM), v(S0 + 3), v(S1 + 3)))
A("v_max_f32 %s, %s, %s" % (v(aM), v(aM), v(aT)))
A("v_mov_b32 %s, %s" % (v(aT), v(aM)))
A("v_permlane16_swap_b32 %s, %s" % (v(aM), v(aT)))
A("v_max_f32 %s, %s, %s" % (v(aM), v(aM), v(aT)))
A("v_mov_b32 %s, %s" % (v(aT), v(aM)))
A("v_permlane32_swap_b32 %s, %s" % (v(aM), v(aT)))
A("v_max_f32 %s, %s, %s" % (v(aM), v(aM), v(aT)))
A("v_mul_f32 %s, %s, %s" % (v(aMc), sC, v(aM)))
for i in range(8):
    A("v_fma_f32 %s, %s, %s, -%s" % (v(SR + i), v(SR + i), sC, v(aMc)))
for i in range(8):
    A("v_exp_f32 %s, %s" % (v(SR + i), v(SR + i)))
for p in range(4):
    A("v_cvt_pk_bf16_f32 %s, %s, %s" % (v(PR + p), v(SR + 2 * p), v(SR + 2 * p + 1)))
for q in range(4):
    for p in range(4):
        A("v_cndmask_b32 %s, 0, %s, %s" % (v(PM + 4 * q + p), v(PR + p), mQ[q]))
lab = if_layer0()
A("s_waitcnt vmcnt(%d)" % N_AFTER_V)
for i in range(8):
    for p in range(4):
        A("v_perm_b32 %s, %s, %s, %s" % (v(VF + 4 * i + p), v(VR + 4 * (2 * p + 1) + (i >> 1)), v(VR + 4 * (2 * p) + (i >> 1)),
                                         sPermHi if (i & 1) else sPermLo))
A.label(lab)
D0, D1 = 140, 144
for q in range(4):
    for a in range(2):
        d = v(D0 + 4 * a, 4)
        A("v_mfma_f32_16x16x32_bf16 %s, %s, %s, %s" % (d, v(VF + 4 * (4 * a + q), 4), v(PM + 4 * q, 4), "0" if q == 0 else d))
A("v_add_f32 %s, %s, %s" % (v(S0), v(S0), v(S0 + 1)))
A("v_add_f32 %s, %s, %s" % (v(S0 + 2), v(S0 + 2), v(S0 + 3)))
A("v_add_f32 %s, %s, %s" % (v(S1), v(S1), v(S1 + 1)))
A("v_add_f32 %s, %s, %s" % (v(S1 + 2), v(S1 + 2), v(S1 + 3)))
A("v_add_f32 %s, %s, %s" % (v(S0), v(S0), v(S0 + 2)))
A("v_add_f32 %s, %s, %s" % (v(S1), v(S1), v(S1 + 2)))
A("v_add_f32 %s, %s, %s" % (v(aL), v(S0), v(S1)))
A("v_mov_b32 %s, %s" % (v(aT), v(aL)))
A("v_permlane16_swap_b32 %s, %s" % (v(aL), v(aT)))
A("v_add_f32 %s, %s, %s" % (v(aL), v(aL), v(aT)))
A("v_mov_b32 %s, %s" % (v(aT), v(aL)))
A("v_permlane32_swap_b32 %s, %s" % (v(aL), v(aT)))
A("v_add_f32 %s, %s, %s" % (v(aT), v(aL), v(aT)))
A("v_mov_b32 %s, %s" % (v(aM), v(aMc)))
A("ds_write_b64 %s, %s" % (v(gMlw), v(aM, 2)))
A("ds_write_b128 %s, %s" % (v(gApw), v(D0, 4)))
A("ds_write_b128 %s, %s offset:1024" % (v(gApw), v(D1, 4)))
A("s_waitcnt lgkmcnt(0)")
A("s_barrier")

a0, b0, c0 = GS, GS + 4, GS + 8
tt = [GS + 12, GS + 13, GS + 14, GS + 15]
r0, r1_, r2, r3 = GS + 16, GS + 17, GS + 18, GS + 19


def w2_reduce(out):
    for e in range(4):
        A("v_add_f32 %s, %s, %s" % (v(a0 + e), v(a0 + e), v(b0 + e)))
    quad_treduce([a0, a0 + 1, a0 + 2, a0 + 3], tt, out)
    A("v_add_f32_dpp %s, %s, %s %s" % (v(tt[0]), v(out), v(out), "row_ror:4" + DPP))


lab = if_layer0()
A("s_sub_u32 %s, 4, %s" % (sT0, sHi))
A("s_mul_i32 %s, %s, %d" % (sT0, sT0, 16 * 896))
A("v_add_u32 %s, %s, %s" % (v(r3), sT0, v(gW2g)))
poll(["global_load_dwordx4 %s, %s, %s sc1" % (v(a0, 4), v(r3), pWL),
      "global_load_dwordx4 %s, %s, %s offset:896 sc1" % (v(b0, 4), v(r3), pWL)],
     [(a0 + e, b0 + e) for e in range(4)])
for e in range(4):
    A("v_add_f32 %s, %s, %s" % (v(a0 + e), v(a0 + e), v(b0 + e)))
HMQ = None
quad_treduce([a0, a0 + 1, a0 + 2, a0 + 3], tt, gCs1)
A("v_mov_b32_dpp %s, %s quad_perm:[3,2,1,0]%s" % (v(tt[0]), v(gCs1), DPP))
A("v_add_f32_dpp %s, %s, %s %s" % (v(gCs1), v(tt[0]), v(gCs1), HM))
A("v_lshlrev_b32 %s, 16, %s" % (v(gB1), v(gB1)))
A("v_lshlrev_b32 %s, 16, %s" % (v(gB2), v(gB2)))
A.label(lab)

sleep(P["D_O"])
poll(["global_load_dwordx4 %s, %s, %s sc1" % (v(c0, 4), v(gOml), pWL),
      "global_load_dwordx4 %s, %s, %s sc1" % (v(a0, 4), v(gOg), pWL),
      "global_load_dwordx4 %s, %s, %s offset:512 sc1" % (v(b0, 4), v(gOg), pWL)],
     [(a0 + e, b0 + e) for e in range(4)] + [(c0, c0 + 1), (c0 + 2, c0 + 3)])
A("ds_read_u16 %s, %s" % (v(r3), v(gW1x)))
A("v_max_f32 %s, %s, %s" % (v(r0), v(c0), v(c0 + 2)))
A("v_max_f32_dpp %s, %s, %s %s" % (v(r0), v(r0), v(r0), X1))
A("v_max_f32_dpp %s, %s, %s %s" % (v(r0), v(r0), v(r0), X2))
A("v_sub_f32 %s, %s, %s" % (v(c0), v(c0), v(r0)))
A("v_sub_f32 %s, %s, %s" % (v(c0 + 2), v(c0 + 2), v(r0)))
A("v_exp_f32 %s, %s" % (v(c0), v(c0)))
A("v_exp_f32 %s, %s" % (v(c0 + 2), v(c0 + 2)))
A("v_mul_f32 %s, %s, %s" % (v(r1_), v(c0), v(c0 + 1)))
A("v_fmac_f32 %s, %s, %s" % (v(r1_), v(c0 + 2), v(c0 + 3)))
for e in range(4):
    A("v_mul_f32 %s, %s, %s" % (v(a0 + e), v(c0), v(a0 + e)))
A("v_add_f32_dpp %s, %s, %s %s" % (v(r1_), v(r1_), v(r1_), X1))
for e in range(4):
    A("v_fmac_f32 %s, %s, %s" % (v(a0 + e), v(c0 + 2), v(b0 + e)))
A("v_add_f32_dpp %s, %s, %s %s" % (v(r1_), v(r1_), v(r1_), X2))
quad_treduce([a0, a0 + 1, a0 + 2, a0 + 3], tt, r0)
A("v_rcp_f32 %s, %s" % (v(r1_), v(r1_)))
A("v_mul_f32 %s, %s, %s" % (v(r0), v(r0), v(r1_)))
A("v_cvt_pk_bf16_f32 %s, %s, %s" % (v(r0), v(r0), v(r0)))
A("ds_write_b16 %s, %s" % (v(gOlds), v(r0)))
A("s_waitcnt lgkmcnt(0)")
A("s_barrier")

A("v_lshlrev_b32 %s, 16, %s" % (v(r3), v(r3)))
sleep(P["D_W1"])
poll(["global_load_dwordx4 %s, %s, %s sc1" % (v(a0, 4), v(gW1g), pWL),
      "global_load_dwordx4 %s, %s, %s offset:512 sc1" % (v(b0, 4), v(gW1g), pWL)],
     [(a0 + e, b0 + e) for e in range(4)])
for e in range(4):
    A("v_add_f32 %s, %s, %s" % (v(a0 + e), v(a0 + e), v(b0 + e)))
quad_treduce([a0, a0 + 1, a0 + 2, a0 + 3], tt, r0)
A("v_add_f32_dpp %s, %s, %s row_ror:4%s" % (v(r0), v(r0), v(r0), DPP))
A("v_add_f32_dpp %s, %s, %s row_ror:8%s" % (v(r0), v(r0), v(r0), DPP))
A("v_add_f32 %s, %s, %s" % (v(r0), v(r0), v(r3)))
A("v_cvt_pk_bf16_f32 %s, %s, %s" % (v(r0), v(r0), v(r0)))
A("ds_write_b16 %s, %s" % (v(gW1lds), v(r0)))
A("s_waitcnt lgkmcnt(0)")
A("s_barrier")

A("s_cmp_eq_u32 %s, 7" % sWave)
A("s_cbranch_scc1 G_W2_SKIP")
sleep(P["D_W2"])
poll(["global_load_dwordx4 %s, %s, %s sc1" % (v(c0, 4), v(gW2s), pWL),
      "global_load_dwordx4 %s, %s, %s sc1" % (v(a0, 4), v(gW2g), pWL),
      "global_load_dwordx4 %s, %s, %s offset:896 sc1" % (v(b0, 4), v(gW2g), pWL)],
     [(a0 + e, b0 + e) for e in range(4)] + [(c0, c0 + 1), (c0 + 2, c0 + 3)])
A("v_add_f32 %s, %s, %s" % (v(c0), v(c0), v(c0 + 2)))
A("v_add_f32 %s, %s, %s" % (v(c0 + 1), v(c0 + 1), v(c0 + 3)))
for e in range(4):
    A("v_add_f32 %s, %s, %s" % (v(a0 + e), v(a0 + e), v(b0 + e)))
for m in (X1, X2, HM):
    A("v_add_f32_dpp %s, %s, %s %s" % (v(c0), v(c0), v(c0), m))
    A("v_add_f32_dpp %s, %s, %s %s" % (v(c0 + 1), v(c0 + 1), v(c0 + 1), m))
    A("s_nop 0")
quad_treduce([a0, a0 + 1, a0 + 2, a0 + 3], tt, r0)
A("v_mul_f32 %s, %s, %s" % (v(c0), f32(1 / 512), v(c0)))
A("v_mul_f32 %s, %s, %s" % (v(c0 + 1), f32(1 / 512), v(c0 + 1)))
A("v_mov_b32_dpp %s, %s quad_perm:[3,2,1,0]%s" % (v(tt[0]), v(r0), DPP))
A("v_fma_f32 %s, -%s, %s, %s" % (v(c0 + 1), v(c0), v(c0), v(c0 + 1)))
A("v_max_f32 %s, 0, %s" % (v(c0 + 1), v(c0 + 1)))
A("v_add_f32_dpp %s, %s, %s %s" % (v(r0), v(tt[0]), v(r0), HM))
A("v_add_f32 %s, %s, %s" % (v(c0 + 2), f32(1e-5), v(c0 + 1)))
A("v_rcp_f32 %s, %s" % (v(c0 + 3), v(c0 + 2)))
A("v_fma_f32 %s, -%s, %s, %s" % (v(r0), v(c0), v(gCs1), v(r0)))
A("v_mul_f32 %s, %s, %s" % (v(c0 + 3), v(c0 + 1), v(c0 + 3)))
A("v_add_f32 %s, %s, %s" % (v(c0 + 3), f32(1e-5), v(c0 + 3)))
A("v_mul_f32 %s, %s, %s" % (v(c0 + 2), v(c0 + 2), v(c0 + 3)))
A("v_rsq_f32 %s, %s" % (v(c0 + 2), v(c0 + 2)))
A("v_fma_f32 %s, %s, %s, %s" % (v(r0), v(r0), v(c0 + 2), v(gB1)))
k0 = -2 * math.log2(math.e) * math.sqrt(2 / math.pi)
A("v_mul_f32 %s, %s, %s" % (v(r1_), v(r0), v(r0)))
A("v_mov_b32 %s, %s" % (v(r2), f32(k0)))
A("v_fmac_f32 %s, %s, %s" % (v(r2), f32(k0 * 0.044715), v(r1_)))
A("v_mul_f32 %s, %s, %s" % (v(r2), v(r2), v(r0)))
A("v_exp_f32 %s, %s" % (v(r2), v(r2)))
A("v_add_f32 %s, 1.0, %s" % (v(r2), v(r2)))
A("v_rcp_f32 %s, %s" % (v(r2), v(r2)))
A("v_mul_f32 %s, %s, %s" % (v(r0), v(r0), v(r2)))
A("v_cvt_pk_bf16_f32 %s, %s, %s" % (v(r0), v(r0), v(r0)))
A("ds_write_b16 %s, %s" % (v(gW2lds), v(r0)))
A("s_waitcnt lgkmcnt(0)")
A.label("G_W2_SKIP")
A("s_barrier")

A("s_cmp_eq_u32 %s, 0" % sL)
A("s_cbranch_scc1 G_X_GO")
A("s_cmp_lg_u32 %s, 0" % sLo)
A("s_cbranch_scc1 L_END")
A("s_cmp_lg_u32 %s, %s" % (sWave, sJ))
A("s_cbranch_scc1 L_END")
A.label("G_X_GO")
sleep(P["D_X"])


def xpre():
    A("v_lshlrev_b32 %s, 16, %s" % (v(c0), v(c0)))


poll(["global_load_ushort %s, %s, %s sc1" % (v(c0), v(gXr), pWL),
      "global_load_dwordx4 %s, %s, %s sc1" % (v(a0, 4), v(gXg), pWL),
      "global_load_dwordx4 %s, %s, %s offset:256 sc1" % (v(b0, 4), v(gXg), pWL)],
     [(a0 + e, b0 + e) for e in range(4)] + [(c0, c0)], pre=xpre)
for e in range(4):
    A("v_add_f32 %s, %s, %s" % (v(a0 + e), v(a0 + e), v(b0 + e)))
A("v_add_f32 %s, %s, %s" % (v(c0), v(c0), v(gB2)))
quad_treduce([a0, a0 + 1, a0 + 2, a0 + 3], tt, r0)
A("v_add_f32 %s, %s, %s" % (v(r0), v(r0), v(c0)))
A("v_cvt_pk_bf16_f32 %s, %s, %s" % (v(r0), v(r0), v(r0)))
A("s_cmp_lg_u32 %s, 0" % sL)
A("s_cbranch_scc1 G_FINAL")
A("ds_write_b16 %s, %s" % (v(gXlds), v(r0)))
A("s_mov_b32 %s, 1" % sL)
padd(pWL, pWL, LSTR)
A("s_waitcnt lgkmcnt(0)")
A("s_branch G_LOOP")
A.label("G_FINAL")
A("global_store_short %s, %s, %s" % (v(gOut), v(r0), pOUT))
A("s_endpgm")

WQ, WO, W1R, W2R, XR, DR, SS = 16, 32, 48, 56, 84, 112, 120
(sXrd, sOrd, sX1rd, sHrd, sE1w, sE1sw, sAg, sAst, sQw, sCq0, sCq1, sCrd, sMlrd, sE2w, sE3w, sE4w, sE4sw, sE4rw, sE5w, sTr) = range(148, 168)
A.label("L_S")
A("s_sub_u32 %s, %s, 8" % (sU, sWave))
A("s_getreg_b32 %s, hwreg(HW_REG_XCC_ID)" % sXcc)
A("s_and_b32 %s, %s, 7" % (sXcc, sXcc))
A("v_mov_b32 v4, 0x%08x" % SENT)
A("v_mov_b32 v5, 0x%08x" % SENT)
A("v_mov_b32 v6, 0x%08x" % SENT)
A("v_mov_b32 v7, 0x%08x" % SENT)
A("s_lshl_b32 %s, s2, 14" % sT0)
A("s_lshl_b32 %s, %s, 12" % (sT1, sU))
A("s_add_u32 %s, %s, %s" % (sT0, sT0, sT1))
A("v_add_u32 v8, %s, v3" % sT0)
A("v_lshrrev_b32 v9, 3, v0")
A("v_lshlrev_b32 v9, 13, v9")
A("v_and_b32 v10, 7, v0")
A("v_lshl_add_u32 v9, v10, 4, v9")
A("s_lshl_b32 %s, %s, 20" % (sT0, sHi))
A("s_lshl_b32 %s, %s, 18" % (sT1, sU))
A("s_add_u32 %s, %s, %s" % (sT0, sT0, sT1))
A("s_lshl_b32 %s, %s, 10" % (sT1, sJ))
A("s_add_u32 %s, %s, %s" % (sT0, sT0, sT1))
A("s_lshl_b32 %s, %s, 7" % (sT1, sLo))
A("s_add_u32 %s, %s, %s" % (sT0, sT0, sT1))
A("s_lshl_b32 %s, %s, 10" % (sT2, sU))
A("s_lshl_b32 %s, %s, 8" % (sT3, sHi))
A("s_add_u32 %s, %s, %s" % (sT2, sT2, sT3))
A("v_lshlrev_b32 v11, 2, v0")
A("v_add_u32 v12, %s, v11" % sT2)
A("s_waitcnt lgkmcnt(0)")
A("global_load_dword v13, v12, %s" % pX)
padd(pT, pWQ, sT0)
A("s_lshl_b32 %s, %s, 12" % (sT1, sU))
for i in range(4):
    A("s_add_u32 m0, %s, %d" % (sT1, LW_Q + 1024 * i))
    A("global_load_lds_dwordx4 v9, %s%s" % (pT, NT))
    if i < 3:
        padd(pT, pT, 8 * 8192)
A("s_mul_i32 %s, %s, %d" % (sT0, sR1, 32 * 3584))
A("s_mul_i32 %s, %s, 448" % (sT1, sJ))
A("s_add_u32 %s, %s, %s" % (sT0, sT0, sT1))
A("s_mul_i32 %s, %s, 224" % (sT1, sC1))
A("s_add_u32 %s, %s, %s" % (sT0, sT0, sT1))
padd(pT, pW1, sT0)
for k in range(2):
    A("s_lshl_b32 %s, %s, 1" % (sT1, sU))
    if k:
        A("s_add_u32 %s, %s, 1" % (sT1, sT1))
        A("s_min_u32 %s, %s, 6" % (sT1, sT1))
    A("s_lshl_b32 %s, %s, 6" % (sT0, sT1))
    A("v_add_u32 v14, %s, v0" % sT0)
    A("v_mul_u32_u24 v15, 4682, v14")
    A("v_lshrrev_b32 v15, 16, v15")
    A("v_mul_u32_u24 v10, 14, v15")
    A("v_sub_u32 v14, v14, v10")
    A("v_mul_u32_u24 v15, 3584, v15")
    A("v_lshl_add_u32 v14, v14, 4, v15")
    A("s_lshl_b32 %s, %s, 10" % (sT0, sT1))
    A("s_add_u32 m0, %s, %d" % (sT0, LW_1))
    A("global_load_lds_dwordx4 v14, %s%s" % (pT, NT))
for n in range(448):
    assert (n * 4682) >> 16 == n // 14
for i in range(4):
    A("global_store_dwordx4 v8, v[4:7], %s offset:%d sc1" % (pWS, 1024 * i))
A("s_mov_b32 s42, s40")
A("s_mov_b32 s43, s41")
A("s_mov_b32 %s, 0" % sFast)
A("v_mov_b32 v14, 0x3f803f80")
A("v_add_u32 v15, %d, v11" % (XOP + 4 * 272))
A("ds_write_b32 v15, v14")
A("v_and_b32 v15, 63, v11")
A("v_add_u32 v15, %d, v15" % (X1OP + 4 * 80))
A("ds_write_b32 v15, v14")
A("v_min_u32 v4, 4, v1")
A("v_and_b32 v5, 3, v1")
A("v_lshlrev_b32 v6, 4, v2")
A("v_mul_u32_u24 %s, 272, v4" % v(sXrd))
A("v_add3_u32 %s, %s, v6, %s" % (v(sXrd), v(sXrd), "0"))
A("v_add_u32 %s, %d, %s" % (v(sXrd), XOP, v(sXrd)))
A("v_mul_u32_u24 %s, 272, v5" % v(sOrd))
A("v_add_u32 %s, %s, v6" % (v(sOrd), v(sOrd)))
A("v_add_u32 %s, %d, %s" % (v(sOrd), OOP, v(sOrd)))
A("v_mul_u32_u24 %s, 80, v4" % v(sX1rd))
A("v_add_u32 %s, %s, v6" % (v(sX1rd), v(sX1rd)))
A("v_add_u32 %s, %d, %s" % (v(sX1rd), X1OP, v(sX1rd)))
A("v_add_u32 %s, %d, v6" % (v(sHrd), HOP))
A("s_mul_i32 %s, %s, %d" % (sT0, sJ, 5 * 4 * 2048))
A("s_lshl_b32 %s, %s, 11" % (sT1, sHi))
A("s_add_u32 %s, %s, %s" % (sT0, sT0, sT1))
A("s_lshl_b32 %s, %s, 8" % (sT1, sLo))
A("s_add_u32 %s, %s, %s" % (sT0, sT0, sT1))
A("s_lshl_b32 %s, %s, 6" % (sK0, sU))
A("s_add_u32 %s, %s, %s" % (sT0, sT0, sK0))
A("v_lshlrev_b32 %s, 13, v4" % v(sE1w))
A("v_add3_u32 %s, %s, v6, %s" % (v(sE1w), v(sE1w), sT0))
A("s_lshl_b32 %s, %s, 3" % (sT0, sJ))
A("s_add_u32 %s, %s, %s" % (sT0, sT0, sLo))
A("s_lshl_b32 %s, %s, 9" % (sK1, sT0))
A("s_lshl_b32 %s, %s, 5" % (sT1, sHi))
A("s_add_u32 %s, %s, %s" % (sT0, sK1, sT1))
A("s_lshl_b32 %s, %s, 3" % (sT1, sU))
A("s_add_u32 %s, %s, %s" % (sT0, sT0, sT1))
A("s_add_u32 %s, %s, %d" % (sT0, sT0, E1S + 4))
A("v_lshlrev_b32 v7, 2, v2")
A("v_lshlrev_b32 v10, 7, v5")
A("v_sub_u32 v10, v10, v7")
A("v_add_u32 %s, %s, v10" % (v(sE1sw), sT0))
A("s_lshl_b32 %s, %s, 1" % (sT0, sJ))
A("s_add_u32 %s, %s, %s" % (sK2, sT0, sC1))
A("s_lshl_b32 %s, %s, 9" % (sT0, sK2))
A("s_lshl_b32 %s, %s, 3" % (sT1, sR1))
A("s_add_u32 %s, %s, %s" % (sT0, sT0, sT1))
A("s_add_u32 %s, %s, %d" % (sT0, sT0, E4S + 4))
A("v_add_u32 %s, %s, v10" % (v(sE4sw), sT0))
A("s_lshl_b32 %s, %s, 12" % (sT0, sK2))
A("s_lshl_b32 %s, %s, 6" % (sT1, sR1))
A("s_add_u32 %s, %s, %s" % (sT0, sT0, sT1))
A("s_add_u32 %s, %s, %d" % (sT0, sT0, E4R))
A("v_lshlrev_b32 %s, 10, v5" % v(sE4rw))
A("v_add3_u32 %s, %s, v6, %s" % (v(sE4rw), v(sE4rw), sT0))
A("s_mul_i32 %s, %s, 5" % (sT0, sJ))
A("s_add_u32 %s, %s, %s" % (sT0, sT0, sHi))
A("s_lshl_b32 %s, %s, 13" % (sT0, sT0))
A("s_lshl_b32 %s, %s, 9" % (sT1, sU))
A("s_add_u32 %s, %s, %s" % (sT0, sT0, sT1))
A("v_and_b32 v10, 1, v0")
A("v_lshrrev_b32 v14, 1, v0")
A("v_lshlrev_b32 %s, 12, v10" % v(sAg))
A("v_lshl_add_u32 %s, v14, 4, %s" % (v(sAg), v(sAg)))
A("v_add_u32 %s, %s, %s" % (v(sAg), sT0, v(sAg)))
A("s_lshl_b32 %s, %s, 7" % (sT1, sHi))
A("s_add_u32 %s, %s, %s" % (sT0, sK1, sT1))
A("s_add_u32 %s, %s, %d" % (sT0, sT0, E1S))
A("v_lshlrev_b32 %s, 3, v1" % v(sAst))
A("v_add_u32 %s, %s, %s" % (v(sAst), sT0, v(sAst)))
A("s_mul_i32 %s, %s, 272" % (sT0, sU))
A("s_add_u32 %s, %s, %d" % (sT1, sT0, QOP))
A("v_add_u32 %s, %s, v11" % (v(sQw), sT1))
A("s_add_u32 %s, %s, %d" % (sT1, sT0, XOP))
A("v_add_u32 v15, %s, v11" % sT1)
A("v_lshrrev_b32 v4, 5, v0")
A("v_lshlrev_b32 %s, 13, v4" % v(sCrd))
A("v_bfe_u32 v7, v0, 4, 1")
A("v_lshl_add_u32 %s, v7, 10, %s" % (v(sCrd), v(sCrd)))
A("v_bfe_u32 v7, v0, 2, 2")
A("v_lshl_add_u32 %s, v7, 8, %s" % (v(sCrd), v(sCrd)))
A("v_and_b32 v7, 3, v0")
A("v_lshl_add_u32 %s, v7, 6, %s" % (v(sCrd), v(sCrd)))
A("s_lshl_b32 %s, %s, 4" % (sT0, sU))
A("s_add_u32 %s, %s, %d" % (sT0, sT0, AP))
A("v_add_u32 %s, %s, %s" % (v(sCrd), sT0, v(sCrd)))
A("s_add_u32 %s, %s, %d" % (sT0, sK0, ML))
A("v_lshlrev_b32 %s, 5, v4" % v(sMlrd))
A("v_add_u32 %s, %s, %s" % (v(sMlrd), sT0, v(sMlrd)))
A("s_lshl_b32 %s, %s, 2" % (sT0, sJ))
A("s_add_u32 %s, %s, %s" % (sT0, sT0, sU))
A("s_lshl_b32 %s, %s, 5" % (sT0, sT0))
A("s_add_u32 %s, %s, %s" % (sT0, sT0, sS))
A("s_lshl_b32 %s, %s, 9" % (sT1, sT0))
A("s_add_u32 %s, %s, %d" % (sT1, sT1, E2))
A("v_and_b32 v7, 31, v0")
A("v_lshlrev_b32 %s, 4, v7" % v(sE2w))
A("v_lshl_add_u32 %s, v4, 3, %s" % (v(sE2w), v(sE2w)))
A("v_add_u32 %s, %s, %s" % (v(sE2w), sT1, v(sE2w)))
A("s_lshl_b32 %s, %s, 3" % (sT1, sT0))
A("s_add_u32 %s, %s, %d" % (sC, sT1, E2S))
A("s_lshl_b32 %s, %s, 1" % (sT0, sLo))
A("s_lshr_b32 %s, %s, 1" % (sT1, sU))
A("s_add_u32 %s, %s, %s" % (sT0, sT0, sT1))
A("s_lshl_b32 %s, %s, 14" % (sT0, sT0))
A("s_lshl_b32 %s, %s, 2" % (sT1, sJ))
A("s_add_u32 %s, %s, %s" % (sT1, sT1, sHi))
A("s_lshl_b32 %s, %s, 9" % (sT1, sT1))
A("s_add_u32 %s, %s, %s" % (sT0, sT0, sT1))
A("s_and_b32 %s, %s, 1" % (sT1, sU))
A("s_lshl_b32 %s, %s, 8" % (sT1, sT1))
A("s_add_u32 %s, %s, %s" % (sT0, sT0, sT1))
A("s_add_u32 %s, %s, %d" % (sT0, sT0, E3))
A("v_lshlrev_b32 %s, 6, v5" % v(sE3w))
A("v_add3_u32 %s, %s, v6, %s" % (v(sE3w), v(sE3w), sT0))
A("s_mul_i32 %s, %s, %d" % (sT0, sJ, 5 * 16 * 896))
A("s_mul_i32 %s, %s, 896" % (sT1, sR1))
A("s_add_u32 %s, %s, %s" % (sT0, sT0, sT1))
A("s_mul_i32 %s, %s, 448" % (sT1, sC1))
A("s_add_u32 %s, %s, %s" % (sT0, sT0, sT1))
A("s_lshl_b32 %s, %s, 7" % (sT1, sU))
A("s_add_u32 %s, %s, %s" % (sT0, sT0, sT1))
A("s_add_u32 %s, %s, %d" % (sT0, sT0, E4))
A("v_min_u32 v7, 4, v1")
A("v_mul_u32_u24 %s, %d, v7" % (v(sE4w), 16 * 896))
A("v_add3_u32 %s, %s, v6, %s" % (v(sE4w), v(sE4w), sT0))
A("s_lshl_b32 %s, s2, 8" % sT0)
A("s_add_u32 %s, %s, %s" % (sT0, sT0, sK0))
A("s_add_u32 %s, %s, %d" % (sT0, sT0, E5))
A("v_add_u32 %s, %s, v6" % (v(sE5w), sT0))
A("v_lshrrev_b32 v7, 2, v1")
A("v_lshl_add_u32 v7, v2, 3, v7")
A("v_lshlrev_b32 %s, 7, v7" % v(sTr))
A("v_lshl_add_u32 %s, v5, 3, %s" % (v(sTr), v(sTr)))
A("s_lshl_b32 %s, %s, 5" % (sT0, sU))
A("v_add_u32 %s, %s, %s" % (v(sTr), sT0, v(sTr)))
A("v_mul_u32_u24 v9, 224, v7")
A("v_lshl_add_u32 v9, v5, 3, v9")
A("v_add_u32 v9, %s, v9" % sK0)
A("s_waitcnt vmcnt(6)")
A("s_waitcnt vmcnt(0)")
A("ds_write_b32 v15, v13")
A("s_waitcnt lgkmcnt(0)")

A.label("S_LOOP")
A("s_barrier")
lab = if_layer0()
A("s_cmp_lg_u32 %s, 0" % sU)
A("s_cbranch_scc1 S_NOARR")
A("s_mul_i32 %s, %s, 6" % (sT0, sXcc))
A("s_mov_b32 %s, 1" % sT2)
A("s_mov_b32 %s, 0" % sT3)
A("s_lshl_b64 s[14:15], s[14:15], %s" % sT0)
A("s_or_b32 %s, %s, 0x01000000" % (sT3, sT3))
A("v_mov_b32 v4, %s" % sT2)
A("v_mov_b32 v5, %s" % sT3)
A("s_lshl_b32 %s, %s, 5" % (sT0, sJ))
A("v_mov_b32 v6, %s" % sT0)
set_exec(1)
A("global_atomic_add_x2 v6, v[4:5], %s" % pDBG)
set_exec(-1)
A.label("S_NOARR")
for t in range(4):
    for hh in range(2):
        A("ds_read_b64_tr_b16 %s, %s offset:%d" % (v(WQ + 4 * t + 2 * hh, 2), v(sTr), LW_Q + (32 * t + 4 * hh) * 128))
for tl in range(2):
    for hh in range(2):
        A("ds_read_b64_tr_b16 %s, v9 offset:%d" % (v(W1R + 4 * tl + 2 * hh, 2), LW_1 + 4 * hh * 224 + 32 * tl))
A.label(lab)
for t in range(4):
    A("ds_read_b128 %s, %s offset:%d" % (v(XR + 4 * t, 4), v(sXrd), 64 * t))
A("s_lshl_b32 %s, %s, 6" % (sT0, sU))
A("v_add_u32 %s, %s, %s" % (v(SS), sT0, v(sXrd)))
A("ds_read_b128 %s, %s" % (v(XR + 16, 4), v(SS)))
for t in range(4):
    A("s_waitcnt lgkmcnt(%d)" % (4 - t))
    A("v_mfma_f32_16x16x32_bf16 %s, %s, %s, %s" % (v(DR, 4), v(WQ + 4 * t, 4), v(XR + 4 * t, 4), "0" if t == 0 else v(DR, 4)))
A("s_waitcnt lgkmcnt(0)")
A("v_mfma_f32_16x16x32_bf16 %s, %s, %s, 0" % (v(DR + 4, 4), v(XR + 16, 4), v(XR + 16, 4)))
lab = if_layer0()
A("v_lshlrev_b32 v4, 5, v0")
A("v_and_b32 v4, 0xe0, v4")
A.label("S_GB")
A("global_load_dwordx2 v[6:7], v4, %s sc1" % pDBG)
A("s_waitcnt vmcnt(0)")
A("v_lshrrev_b32 v5, 24, v7")
A("v_cmp_ne_u32 vcc, 32, v5")
A("s_cbranch_vccz S_GB_DONE")
A("s_sleep 8")
A("s_sub_u32 %s, %s, 1" % (sBud, sBud))
A("s_cbranch_scc0 S_GB")
A("s_mov_b32 %s, 0" % sBud)
A.label("S_GB_DONE")
A("v_readlane_b32 %s, v6, %s" % (sT2, sJ))
A("v_readlane_b32 %s, v7, %s" % (sT3, sJ))
A("s_mul_i32 %s, %s, 6" % (sT0, sXcc))
A("s_lshr_b64 s[14:15], s[14:15], %s" % sT0)
A("s_and_b32 %s, %s, 63" % (sT2, sT2))
A("s_cmp_eq_u32 %s, 32" % sT2)
A("s_cselect_b32 %s, 1, 0" % sFast)
if P.get("FORCE_SAFE"):
    A("s_mov_b32 %s, 0" % sFast)
A.label(lab)
smov_needed = True
A("v_cndmask_b32 %s, %s, %s, %s" % (v(SS), v(DR + 4), v(DR + 5), mB0))
A("v_cndmask_b32 %s, %s, %s, %s" % (v(SS + 1), v(DR + 6), v(DR + 7), mB0))
A("v_cndmask_b32 %s, %s, %s, %s" % (v(SS), v(SS), v(SS + 1), mB1))
smov64(mT, 0xFFFFFFFFFFFF0000)
A("v_cndmask_b32 %s, %s, %s, %s" % (v(SS), v(SS), v(DR + 4), mT))
store_intra(["s_mov_b32 exec_lo, 0x001f001f", "s_mov_b32 exec_hi, 0x001f001f",
             "global_store_dwordx4 %s, %s, %s" % (v(sE1w), v(DR, 4), pWL),
             "s_mov_b32 exec_lo, 0x000f000f", "s_mov_b32 exec_hi, 0",
             "global_store_dword %s, %s, %s" % (v(sE1sw), v(SS), pWL),
             "s_mov_b64 exec, -1"])
lab = if_layer0()
A("ds_read_b128 %s, %s" % (v(XR, 4), v(sX1rd)))
A("s_waitcnt lgkmcnt(0)")
A("v_mfma_f32_16x16x32_bf16 %s, %s, %s, 0" % (v(DR, 4), v(W1R, 4), v(XR, 4)))
A("v_mfma_f32_16x16x32_bf16 %s, %s, %s, 0" % (v(DR + 4, 4), v(W1R + 4, 4), v(XR, 4)))
A("s_cmp_eq_u32 %s, 3" % sU)
A("s_cselect_b32 %s, 0, 0x00100010" % sT0)
store_intra(["s_mov_b32 exec_lo, 0x00100010", "s_mov_b32 exec_hi, 0x00100010",
             "global_store_dwordx4 %s, %s, %s" % (v(sE4w), v(DR, 4), pWL),
             "s_mov_b32 exec_lo, %s" % sT0, "s_mov_b32 exec_hi, %s" % sT0,
             "global_store_dwordx4 %s, %s, %s offset:64" % (v(sE4w), v(DR + 4, 4), pWL),
             "s_mov_b64 exec, -1"])
ga, gb, gc = SS, SS + 4, SS + 8
A("s_sub_u32 %s, 4, %s" % (sT0, sHi))
A("s_lshl_b32 %s, %s, 13" % (sT0, sT0))
A("v_add_u32 %s, %s, %s" % (v(gc), sT0, v(sAg)))
poll(["global_load_dwordx4 %s, %s, %s sc1" % (v(ga, 4), v(gc), pWL),
      "global_load_dwordx4 %s, %s, %s offset:2048 sc1" % (v(gb, 4), v(gc), pWL)],
     [(ga + e, gb + e) for e in range(4)])


def pair_treduce(o0, o1):
    A("v_cndmask_b32 %s, %s, %s, %s" % (v(o0), v(ga), v(ga + 2), mB0))
    A("v_cndmask_b32 %s, %s, %s, %s" % (v(o1), v(ga + 1), v(ga + 3), mB0))
    A("v_cndmask_b32 %s, %s, %s, %s" % (v(gb), v(ga + 2), v(ga), mB0))
    A("v_cndmask_b32 %s, %s, %s, %s" % (v(gb + 1), v(ga + 3), v(ga + 1), mB0))
    A("v_add_f32_dpp %s, %s, %s %s" % (v(o0), v(gb), v(o0), X1))
    A("v_add_f32_dpp %s, %s, %s %s" % (v(o1), v(gb + 1), v(o1), X1))


for e in range(4):
    A("v_add_f32 %s, %s, %s" % (v(ga + e), v(ga + e), v(gb + e)))
pair_treduce(sCq0, sCq1)
A.label(lab)
sleep(P["D_A"])
poll(["global_load_dwordx2 %s, %s, %s sc1" % (v(gc, 2), v(sAst), pWL),
      "global_load_dwordx4 %s, %s, %s sc1" % (v(ga, 4), v(sAg), pWL),
      "global_load_dwordx4 %s, %s, %s offset:2048 sc1" % (v(gb, 4), v(sAg), pWL)],
     [(ga + e, gb + e) for e in range(4)] + [(gc, gc + 1)])
for i, m in enumerate((X1, X2, HM, RM)):
    A("v_add_f32_dpp %s, %s, %s %s" % (v(gc), v(gc), v(gc), m))
    A("v_add_f32_dpp %s, %s, %s %s" % (v(gc + 1), v(gc + 1), v(gc + 1), m))
    A("v_add_f32 %s, %s, %s" % (v(ga + i), v(ga + i), v(gb + i)))
q0, q1 = gc + 2, gc + 3
pair_treduce(q0, q1)
A("v_mul_f32 %s, %s, %s" % (v(gc), f32(1 / 512), v(gc)))
A("v_mul_f32 %s, %s, %s" % (v(gc + 1), f32(1 / 512), v(gc + 1)))
A("v_fma_f32 %s, -%s, %s, %s" % (v(gc + 1), v(gc), v(gc), v(gc + 1)))
A("v_max_f32 %s, 0, %s" % (v(gc + 1), v(gc + 1)))
A("v_add_f32 %s, %s, %s" % (v(gc + 1), f32(1e-5), v(gc + 1)))
A("v_rsq_f32 %s, %s" % (v(gc + 1), v(gc + 1)))
A("v_fma_f32 %s, -%s, %s, %s" % (v(q0), v(gc), v(sCq0), v(q0)))
A("v_fma_f32 %s, -%s, %s, %s" % (v(q1), v(gc), v(sCq1), v(q1)))
A("v_mul_f32 %s, %s, %s" % (v(q0), v(q0), v(gc + 1)))
A("v_mul_f32 %s, %s, %s" % (v(q1), v(q1), v(gc + 1)))
A("v_cvt_pk_bf16_f32 %s, %s, %s" % (v(q0), v(q0), v(q1)))
A("ds_write_b32 %s, %s" % (v(sQw), v(q0)))
A("s_waitcnt lgkmcnt(0)")
A("s_barrier")
A("s_barrier")
cm = XR
ca = XR + 8
A("ds_read_b128 %s, %s" % (v(cm, 4), v(sMlrd)))
A("ds_read_b128 %s, %s offset:16" % (v(cm + 4, 4), v(sMlrd)))
for k in range(4):
    A("ds_read_b128 %s, %s offset:%d" % (v(ca + 4 * k, 4), v(sCrd), 2048 * k))
cM, cL, cT = SS, SS + 1, SS + 2
A("s_waitcnt lgkmcnt(4)")
A("v_max3_f32 %s, %s, %s, %s" % (v(cM), v(cm), v(cm + 2), v(cm + 4)))
A("v_max_f32 %s, %s, %s" % (v(cM), v(cM), v(cm + 6)))
A("v_mov_b32 %s, %s" % (v(cT), v(cM)))
A("v_permlane32_swap_b32 %s, %s" % (v(cM), v(cT)))
A("v_max_f32 %s, %s, %s" % (v(cM), v(cM), v(cT)))
for k in range(4):
    A("v_sub_f32 %s, %s, %s" % (v(cm + 2 * k), v(cm + 2 * k), v(cM)))
for k in range(4):
    A("v_exp_f32 %s, %s" % (v(cm + 2 * k), v(cm + 2 * k)))
A("s_waitcnt lgkmcnt(0)")
for e in range(4):
    A("v_mul_f32 %s, %s, %s" % (v(DR + e), v(cm), v(ca + e)))
A("v_mul_f32 %s, %s, %s" % (v(cL), v(cm), v(cm + 1)))
for k in range(1, 4):
    for e in range(4):
        A("v_fmac_f32 %s, %s, %s" % (v(DR + e), v(cm + 2 * k), v(ca + 4 * k + e)))
    A("v_fmac_f32 %s, %s, %s" % (v(cL), v(cm + 2 * k), v(cm + 2 * k + 1)))
A("v_mov_b32 %s, %s" % (v(cT), v(cL)))
A("v_permlane32_swap_b32 %s, %s" % (v(DR), v(DR + 2)))
A("v_permlane32_swap_b32 %s, %s" % (v(DR + 1), v(DR + 3)))
A("v_permlane32_swap_b32 %s, %s" % (v(cL), v(cT)))
A("v_add_f32 %s, %s, %s" % (v(DR), v(DR), v(DR + 2)))
A("v_add_f32 %s, %s, %s" % (v(DR + 1), v(DR + 1), v(DR + 3)))
A("v_add_f32 %s, %s, %s" % (v(cL), v(cL), v(cT)))
A("v_mov_b32 %s, %s" % (v(cT), sC))
store_intra(["global_store_dwordx2 %s, %s, %s" % (v(sE2w), v(DR, 2), pWL),
             "s_mov_b64 exec, 1",
             "global_store_dwordx2 %s, %s, %s" % (v(cT), v(cM, 2), pWL),
             "s_mov_b64 exec, -1"])
A("s_barrier")
for t in range(4):
    A("ds_read_b128 %s, %s offset:%d" % (v(XR + 4 * t, 4), v(sOrd), 64 * t))
lab = if_layer0()
for t in range(4):
    for hh in range(2):
        A("ds_read_b64_tr_b16 %s, %s offset:%d" % (v(WO + 4 * t + 2 * hh, 2), v(sTr), LW_O + (32 * t + 4 * hh) * 128))
A("s_waitcnt lgkmcnt(0)")
A.label(lab)
for t in range(4):
    A("s_waitcnt lgkmcnt(%d)" % (3 - t))
    A("v_mfma_f32_16x16x32_bf16 %s, %s, %s, %s" % (v(DR, 4), v(WO + 4 * t, 4), v(XR + 4 * t, 4), "0" if t == 0 else v(DR, 4)))
set_exec(0x000F000F000F000F)
A("global_store_dwordx4 %s, %s, %s sc1" % (v(sE3w), v(DR, 4), pWL))
set_exec(-1)
lab = if_layer0()
for t in range(7):
    for hh in range(2):
        A("ds_read_b64_tr_b16 %s, %s offset:%d" % (v(W2R + 4 * t + 2 * hh, 2), v(sTr), LW_2 + (32 * t + 4 * hh) * 128))
A("s_waitcnt lgkmcnt(0)")
A.label(lab)
A("s_barrier")
A("ds_read_b128 %s, %s" % (v(XR, 4), v(sX1rd)))
A("s_cmp_eq_u32 %s, 3" % sU)
A("s_cbranch_scc1 S_W1_W3")
A("s_waitcnt lgkmcnt(0)")
A("v_mfma_f32_16x16x32_bf16 %s, %s, %s, 0" % (v(DR, 4), v(W1R, 4), v(XR, 4)))
A("v_mfma_f32_16x16x32_bf16 %s, %s, %s, 0" % (v(DR + 4, 4), v(W1R + 4, 4), v(XR, 4)))
store_intra(["s_mov_b32 exec_lo, 0x000f000f", "s_mov_b32 exec_hi, 0x000f000f",
             "global_store_dwordx4 %s, %s, %s" % (v(sE4w), v(DR, 4), pWL),
             "global_store_dwordx4 %s, %s, %s offset:64" % (v(sE4w), v(DR + 4, 4), pWL),
             "s_mov_b64 exec, -1"])
A("s_branch S_W1_DONE")
A.label("S_W1_W3")
A("s_waitcnt lgkmcnt(0)")
A("v_mfma_f32_16x16x32_bf16 %s, %s, %s, 0" % (v(DR + 4, 4), v(XR, 4), v(XR, 4)))
A("v_mfma_f32_16x16x32_bf16 %s, %s, %s, 0" % (v(DR, 4), v(W1R, 4), v(XR, 4)))
smov64(mT, 0xFFFFFFFFFFFF0000)
A("v_cndmask_b32 %s, %s, %s, %s" % (v(SS), v(DR + 4), v(DR + 5), mB0))
A("v_cndmask_b32 %s, %s, %s, %s" % (v(SS + 1), v(DR + 6), v(DR + 7), mB0))
A("v_cndmask_b32 %s, %s, %s, %s" % (v(SS), v(SS), v(SS + 1), mB1))
A("v_cndmask_b32 %s, %s, %s, %s" % (v(SS), v(SS), v(DR + 4), mT))
store_intra(["s_mov_b32 exec_lo, 0x000f000f", "s_mov_b32 exec_hi, 0x000f000f",
             "global_store_dwordx4 %s, %s, %s" % (v(sE4w), v(DR, 4), pWL),
             "global_store_dwordx4 %s, %s, %s" % (v(sE4rw), v(XR, 4), pWL),
             "s_mov_b32 exec_hi, 0",
             "global_store_dword %s, %s, %s" % (v(sE4sw), v(SS), pWL),
             "s_mov_b64 exec, -1"])
A.label("S_W1_DONE")
A("s_barrier")
for t in range(7):
    A("ds_read_b128 %s, %s offset:%d" % (v(XR + 4 * t, 4), v(sHrd), 64 * t))
for t in range(7):
    A("s_waitcnt lgkmcnt(%d)" % (6 - t))
    A("v_mfma_f32_16x16x32_bf16 %s, %s, %s, %s" % (v(DR, 4), v(W2R + 4 * t, 4), v(XR + 4 * t, 4), "0" if t == 0 else v(DR, 4)))
set_exec(0x0001000100010001)
A("global_store_dwordx4 %s, %s, %s sc1" % (v(sE5w), v(DR, 4), pWL))
set_exec(-1)
A("s_cmp_lg_u32 %s, 0" % sL)
A("s_cbranch_scc1 L_END")
A("s_mov_b32 %s, 1" % sL)
padd(pWL, pWL, LSTR)
A("s_branch S_LOOP")
A.label("L_END")
A("s_endpgm")

A.fix_hazards()

hdr = open("cdna_kernels/%s.s.ref" % NAME).read().split("; Override launch")[0]
out = hdr + """; @launch grid=(256,1,1) block=(768,1,1) lds=%d
.amdgcn_target "amdgcn-amd-amdhsa--gfx950"
.text
.globl %s_kernel
.p2align 8
.type %s_kernel,@function
%s_kernel:
%s
.section .rodata,"a"
.p2align 6
.amdhsa_kernel %s_kernel
  .amdhsa_next_free_vgpr 168
  .amdhsa_next_free_sgpr 80
  .amdhsa_accum_offset 168
  .amdhsa_group_segment_fixed_size 0
  .amdhsa_kernarg_size 104
  .amdhsa_user_sgpr_count 2
  .amdhsa_user_sgpr_kernarg_segment_ptr 1
  .amdhsa_system_sgpr_workgroup_id_x 1
.end_amdhsa_kernel
""" % (LDS_TOTAL, NAME, NAME, NAME, A.text(), NAME)
open(sys.argv[1], "w").write(out)
print("wrote", sys.argv[1], "instructions:", sum(1 for x in A.ins if not x.label), "LDS", LDS_TOTAL)
```

```python
import sys, math, struct, os
from asmlib import Asm

NAME = "interleave_layers__sliding_block_cached__mixer_channel_mlp__decode"

P = dict(B0POS=3, W=64, D_O=0, D_W1=12, D_W2=0, D_X=12, D_A=0, NT="nt", STAMP=0, FORCE_SAFE=0, PREF=1)
for a in sys.argv[2:]:
    k, v_ = a.split("=")
    P[k] = int(v_) if v_.lstrip("-").isdigit() else v_


def f32(x):
    return "0x%08x" % struct.unpack("<I", struct.pack("<f", x))[0]


LSTR = 0x200000
JSTR = 196608
E1, E1S, E4C = 0, 40960, 45056
E2, E4, E4R, E2S, E4S = 65536, 131072, 188416, 192512, 193536
E3, E5 = 0x180000, 0x1C0000
SENT = 0x7F817F81
LW_Q, LW_O, LW_2, LW_1 = 0, 16384, 32768, 61440
XOP = 68608
QOP = XOP + 5 * 272
OOP = QOP + 4 * 272
X1OP = OOP + 4 * 272
HOP = X1OP + 5 * 80
ML = HOP + 448
FLG = ML + 256
AP = (FLG + 16 + 1023) // 1024 * 1024
LDS_TOTAL = AP + 16384
assert all(x % 16 == 0 for x in (XOP, QOP, OOP, X1OP, HOP, ML))

sWave, sJ, sS, sHi, sLo, sR1, sC1, sL, sBud = "s3", "s4", "s5", "s6", "s7", "s8", "s9", "s10", "s11"
sT0, sT1, sT2, sT3 = "s12", "s13", "s14", "s15"
pX, pK, pV, pWQ, pWO, pW1, pB1, pW2, pB2, pOUT, pDBG, pWS = (
    "s[16:17]", "s[18:19]", "s[20:21]", "s[22:23]", "s[24:25]", "s[28:29]", "s[30:31]", "s[32:33]", "s[34:35]",
    "s[36:37]", "s[38:39]", "s[40:41]")
pWL = "s[42:43]"
sFast = "s44"
sU = "s45"
mQ = ["s[50:51]", "s[52:53]", "s[54:55]", "s[56:57]"]
sPermLo, sPermHi = "s58", "s59"
sC = "s60"
pT = "s[62:63]"
pT2 = "s[64:65]"
sXcc = "s66"
sK0, sK1, sK2 = "s67", "s68", "s69"
mT = "s[70:71]"
pWJ = "s[72:73]"
pPC = "s[46:47]"

A = Asm()
NT = (" " + P["NT"]) if P["NT"] else ""
STAMP = P["STAMP"]


def v(n, cnt=1):
    return "v%d" % n if cnt == 1 else "v[%d:%d]" % (n, n + cnt - 1)


def smov64(pair, val):
    lo = int(pair[2:].split(":")[0])
    A("s_mov_b32 s%d, 0x%08x" % (lo, val & 0xFFFFFFFF))
    A("s_mov_b32 s%d, 0x%08x" % (lo + 1, val >> 32))


def exec_lines(val):
    if val == -1:
        return ["s_mov_b64 exec, -1"]
    if 0 <= val <= 64:
        return ["s_mov_b64 exec, %d" % val]
    return ["s_mov_b32 exec_lo, 0x%08x" % (val & 0xFFFFFFFF), "s_mov_b32 exec_hi, 0x%08x" % (val >> 32)]


def set_exec(val):
    for l in exec_lines(val):
        A(l)


def padd(dst, src, soff):
    d = int(dst[2:].split(":")[0]); s = int(src[2:].split(":")[0])
    A("s_add_u32 s%d, s%d, %s" % (d, s, soff))
    A("s_addc_u32 s%d, s%d, 0" % (d + 1, s + 1))


def sexpr(dst, terms, const=0, tmp=sT3):
    first = True
    for (r, m) in terms:
        t = dst if first else tmp
        if m == 1:
            if first:
                A("s_mov_b32 %s, %s" % (dst, r))
            else:
                A("s_add_u32 %s, %s, %s" % (dst, dst, r))
            first = False
            continue
        if m & (m - 1) == 0:
            A("s_lshl_b32 %s, %s, %d" % (t, r, m.bit_length() - 1))
        else:
            A("s_mul_i32 %s, %s, %d" % (t, r, m))
        if not first:
            A("s_add_u32 %s, %s, %s" % (dst, dst, t))
        first = False
    if first:
        A("s_mov_b32 %s, %d" % (dst, const))
    elif const:
        A("s_add_u32 %s, %s, %d" % (dst, dst, const))


def vexpr(dst, terms, sreg=None, const=0):
    first = True
    for (r, m) in terms:
        if first:
            if m == 1:
                A("v_mov_b32 %s, %s" % (v(dst), v(r)))
            elif m & (m - 1) == 0:
                A("v_lshlrev_b32 %s, %d, %s" % (v(dst), m.bit_length() - 1, v(r)))
            else:
                A("v_mul_u32_u24 %s, %d, %s" % (v(dst), m, v(r)))
            first = False
        else:
            assert m & (m - 1) == 0, "non power of two term must come first"
            A("v_lshl_add_u32 %s, %s, %d, %s" % (v(dst), v(r), m.bit_length() - 1, v(dst)))
    if sreg:
        A("v_add_u32 %s, %s, %s" % (v(dst), sreg, v(dst)))
    if const:
        A("v_add_u32 %s, %d, %s" % (v(dst), const, v(dst)))


DPP = " row_mask:0xf bank_mask:0xf"
X1 = "quad_perm:[1,0,3,2]" + DPP
X2 = "quad_perm:[2,3,0,1]" + DPP
HM = "row_half_mirror" + DPP
RM = "row_mirror" + DPP
_lab = [0]


def newlabel(p="L"):
    _lab[0] += 1
    return "%s_%d" % (p, _lab[0])


def sleep(n):
    while n > 0:
        k = min(n, 127)
        A("s_sleep %d" % k)
        n -= k


def g_treduce(a):
    A("v_permlane16_swap_b32 %s, %s" % (v(a), v(a + 1)))
    A("v_permlane16_swap_b32 %s, %s" % (v(a + 2), v(a + 3)))
    A("v_add_f32 %s, %s, %s" % (v(a), v(a), v(a + 1)))
    A("v_add_f32 %s, %s, %s" % (v(a + 2), v(a + 2), v(a + 3)))
    A("v_permlane32_swap_b32 %s, %s" % (v(a), v(a + 2)))
    A("v_add_f32 %s, %s, %s" % (v(a), v(a), v(a + 2)))


def g_allreduce(op, r, t):
    for sw in ("v_permlane16_swap_b32", "v_permlane32_swap_b32"):
        A("v_mov_b32 %s, %s" % (v(t), v(r)))
        A("%s %s, %s" % (sw, v(r), v(t)))
        A("%s %s, %s, %s" % (op, v(r), v(r), v(t)))


def budget_loop(top):
    A("s_sub_u32 %s, %s, 1" % (sBud, sBud))
    A("s_cbranch_scc0 %s" % top)
    A("s_mov_b32 %s, 0" % sBud)


def poll(loads, check_pairs, pre=None):
    top, done = newlabel("POLL"), newlabel("PDONE")
    A.label(top)
    for l in loads:
        A(l)
    A("s_waitcnt vmcnt(0)")
    if pre:
        pre()
    first = True
    for (a, b) in check_pairs:
        if first:
            A("v_cmp_u_f32 vcc, %s, %s" % (v(a), v(b)))
            first = False
        else:
            A("v_cmp_u_f32 %s, %s, %s" % (mT, v(a), v(b)))
            A("s_or_b64 vcc, vcc, %s" % mT)
    A("s_cbranch_vccz %s" % done)
    budget_loop(top)
    A.label(done)


def store_intra(insn):
    ls, le = newlabel("SAFE"), newlabel("SEND")
    A("s_cmp_eq_u32 %s, 0" % sFast)
    A("s_cbranch_scc1 %s" % ls)
    for i in insn:
        A(i)
    A("s_branch %s" % le)
    A.label(ls)
    for i in insn:
        A(i + (" sc1" if i.startswith("global_store") else ""))
    A.label(le)


_st = {"G": 0, "S": 0}


def stamp(kind, idx=None):
    if not STAMP:
        return
    if idx is None:
        n = _st[kind]; _st[kind] += 1
    else:
        n = idx
    A("s_waitcnt lgkmcnt(0)")
    A("s_memrealtime s[74:75]")
    A("s_lshl_b32 s76, %s, 4" % sL)
    A("s_add_u32 m0, s76, %d" % n)
    A("s_waitcnt lgkmcnt(0)")
    A("v_writelane_b32 v15, s74, m0")


def stamp_init():
    if STAMP:
        A("v_mov_b32 v15, 0")
        A("v_writelane_b32 v15, s78, 15")


def stamp_dump():
    if not STAMP:
        return
    A("s_mul_i32 s76, s2, 12")
    A("s_add_u32 s76, s76, %s" % sWave)
    A("s_lshl_b32 s76, s76, 8")
    A("s_add_u32 s76, s76, 0x800000")
    A("v_lshlrev_b32 v13, 2, v0")
    A("v_add_u32 v13, s76, v13")
    A("global_store_dword v13, v15, %s" % pWS)


def if_layer0():
    lab = newlabel("NOTL0")
    A("s_cmp_lg_u32 %s, 0" % sL)
    A("s_cbranch_scc1 %s" % lab)
    return lab


def ssync(k):
    top = newlabel("SSY")
    A("v_mov_b32 v5, %d" % (FLG + 4 + 4 * k))
    A("v_mov_b32 v6, 1")
    set_exec(1)
    A("ds_add_u32 v5, v6")
    set_exec(-1)
    A.label(top)
    A("ds_read_b32 v6, v5")
    A("s_waitcnt lgkmcnt(0)")
    A("v_readfirstlane_b32 %s, v6" % sT0)
    A("s_cmp_eq_u32 %s, 4" % sT0)
    done = newlabel("SSD")
    A("s_cbranch_scc1 %s" % done)
    budget_loop(top)
    A.label(done)


MFMA = "v_mfma_f32_16x16x32_bf16"
A("s_getpc_b64 %s" % pPC)
A("s_cmp_ge_u32 s2, 256")
A("s_cbranch_scc1 L_END")
if STAMP:
    A("s_memrealtime s[78:79]")
A("s_load_dwordx16 s[16:31], s[0:1], 0")
A("s_load_dwordx8 s[32:39], s[0:1], 64")
A("s_load_dwordx2 s[40:41], s[0:1], 96")
if P["PREF"]:
    A("v_lshlrev_b32 v3, 4, v0")
    A("global_load_dwordx4 v[140:143], v3, %s offset:-4" % pPC)
A("v_lshrrev_b32 v1, 6, v0")
A("v_and_b32 v0, 63, v0")
A("v_readfirstlane_b32 %s, v1" % sWave)
A("s_and_b32 %s, s2, 7" % sJ)
A("s_lshr_b32 %s, s2, 3" % sS)
A("s_lshr_b32 %s, s2, 6" % sHi)
A("s_and_b32 %s, %s, 7" % (sLo, sS))
A("s_lshr_b32 %s, s2, 4" % sR1)
A("s_and_b32 %s, %s, 1" % (sC1, sS))
A("s_mov_b32 %s, 0" % sL)
A("s_mov_b32 %s, 400000" % sBud)
A("v_and_b32 v1, 15, v0")
A("v_lshrrev_b32 v2, 4, v0")
A("v_lshlrev_b32 v3, 4, v0")
A("s_mov_b32 %s, %s" % (sU, sWave))
A("s_sub_u32 %s, %s, 4" % (sWave, sWave))
A("s_cbranch_scc0 L_G")

WQ, WO, W1R, W2R, XR, DR, SS = 16, 32, 48, 56, 84, 112, 120
(sXa, sXb, sOrd, sX1a, sX1b, sHrd, sE1w, sE1sw, sAg, sAst, sQw, sCq0, sCq1, sCrd, sMlrd, sE2w, sE3w, sE4w, sE4sw, sE4rw, sE5w,
 sTr, sClr, sTr1) = range(144, 168)
SN = 8
sClr0 = 139
A("s_add_u32 %s, %s, 8" % (sWave, sU))
A("v_mov_b32 v4, %d" % FLG)
A("v_mov_b32 v6, 0")
A("v_mov_b32 v7, 0")
A("ds_write_b64 v4, v[6:7]")
A("ds_write_b64 v4, v[6:7] offset:8")
for i in range(4):
    A("v_mov_b32 %s, 0x%08x" % (v(SN + i), SENT))
sexpr(sT0, [(sS, 6144), (sU, 1536)])
A("v_add_u32 %s, %s, v3" % (v(sClr), sT0))
A("s_and_b32 %s, %s, 1" % (sK0, sU))
A("s_lshr_b32 %s, %s, 1" % (sK1, sU))
sexpr(sT0, [(sS, 2048)])
sexpr(sT1, [(sS, 4096), (sK1, 2048)], 65536)
A("s_cmp_eq_u32 %s, 0" % sU)
A("s_cselect_b32 %s, %s, %s" % (sT0, sT0, sT1))
A("v_add_u32 %s, %s, v3" % (v(sClr0), sT0))
sexpr(sT0, [("s2", 1280)], E3)
A("v_add_u32 v5, %s, v3" % sT0)
A("s_mul_i32 %s, %s, %d" % (sT0, sJ, JSTR))
A("v_lshrrev_b32 v13, 3, v0")
A("v_and_b32 v14, 7, v0")
vexpr(SS, [(13, 8192), (14, 16)])
sexpr(sT1, [(sHi, 128 * 8192), (sU, 32 * 8192), (sJ, 1024), (sLo, 128)])
sexpr(sT2, [(sU, 1024), (sHi, 256)])
vexpr(SS + 1, [(0, 4)], sT2)
A("s_waitcnt lgkmcnt(0)")
padd(pWJ, pWS, sT0)
padd(pT, pWQ, sT1)
A("s_cmp_eq_u32 %s, 3" % sU)
A("s_cbranch_scc1 S_CLR3")
A("global_store_dwordx4 %s, %s, %s" % (v(sClr0), v(SN, 4), pWJ))
A("global_store_dwordx4 %s, %s, %s offset:1024" % (v(sClr0), v(SN, 4), pWJ))
A("s_branch S_CLRD")
A.label("S_CLR3")
padd(pT2, pWS, LSTR)
A("global_store_dwordx4 v5, %s, %s sc1" % (v(SN, 4), pWS))
A("global_store_dwordx4 v5, %s, %s sc1" % (v(SN, 4), pT2))
set_exec(0xFFFF)
A("global_store_dwordx4 v5, %s, %s offset:1024 sc1" % (v(SN, 4), pWS))
A("global_store_dwordx4 v5, %s, %s offset:1024 sc1" % (v(SN, 4), pT2))
set_exec(-1)
A.label("S_CLRD")
A("global_load_dword %s, %s, %s" % (v(SS + 2), v(SS + 1), pX))
A("s_lshl_b32 %s, %s, 12" % (sT1, sU))
for i in range(4):
    A("s_add_u32 m0, %s, %d" % (sT1, LW_Q + 1024 * i))
    A("global_load_lds_dwordx4 %s, %s%s" % (v(SS), pT, NT))
    if i < 3:
        padd(pT, pT, 8 * 8192)
sexpr(sT0, [(sR1, 32 * 3584), (sJ, 448), (sC1, 224)])
padd(pT, pW1, sT0)
for k in range(2):
    A("s_lshl_b32 %s, %s, 1" % (sT1, sU))
    if k:
        A("s_add_u32 %s, %s, 1" % (sT1, sT1))
        A("s_min_u32 %s, %s, 6" % (sT1, sT1))
    A("s_lshl_b32 %s, %s, 6" % (sT0, sT1))
    A("v_add_u32 v12, %s, v0" % sT0)
    A("v_mul_u32_u24 v13, 4682, v12")
    A("v_lshrrev_b32 v13, 16, v13")
    A("v_mul_u32_u24 v14, 14, v13")
    A("v_sub_u32 v12, v12, v14")
    A("v_mul_u32_u24 v13, 3584, v13")
    A("v_lshl_add_u32 v12, v12, 4, v13")
    A("s_lshl_b32 %s, %s, 10" % (sT0, sT1))
    A("s_add_u32 m0, %s, %d" % (sT0, LW_1))
    A("global_load_lds_dwordx4 v12, %s%s" % (pT, NT))
for n in range(448):
    assert (n * 4682) >> 16 == n // 14
A("s_waitcnt lgkmcnt(0)")
A("s_barrier")
stamp_init()
stamp("S", 9)
A("s_getreg_b32 %s, hwreg(HW_REG_XCC_ID)" % sXcc)
A("s_and_b32 %s, %s, 7" % (sXcc, sXcc))
A("s_lshl_b32 %s, %s, 5" % (sT1, sJ))
A("v_mov_b32 v4, %s" % sT1)
A("s_cmp_lg_u32 %s, 0" % sU)
A("s_cbranch_scc1 S_NOARR")
A("s_mul_i32 %s, %s, 6" % (sT0, sXcc))
A("s_mov_b32 %s, 1" % sT2)
A("s_mov_b32 %s, 0" % sT3)
A("s_lshl_b64 s[14:15], s[14:15], %s" % sT0)
A("s_or_b32 %s, %s, 0x01000000" % (sT3, sT3))
A("v_mov_b32 v6, %s" % sT2)
A("v_mov_b32 v7, %s" % sT3)
A("s_waitcnt vmcnt(7)")
stamp("S", 10)
set_exec(1)
A("global_atomic_add_x2 v4, v[6:7], %s" % pDBG)
set_exec(-1)
A.label("S_NOARR")
A("s_mov_b32 s42, s40")
A("s_mov_b32 s43, s41")
A("s_mov_b32 %s, 0" % sFast)
A("v_mov_b32 v12, 0x3f803f80")
vexpr(13, [(0, 4)], None, XOP + 4 * 272)
A("ds_write_b32 v13, v12")
vexpr(13, [(1, 4)], None, X1OP + 4 * 80)
A("ds_write_b32 v13, v12")
A("v_lshrrev_b32 v12, 2, v1")
A("v_min_u32 v13, 4, v1")
A("v_and_b32 v14, 3, v1")
vexpr(sXa, [(12, 272), (2, 16)], None, XOP)
sexpr(sT0, [(sU, 64)], XOP)
vexpr(sXb, [(13, 272), (2, 16)], sT0)
vexpr(sOrd, [(12, 272), (2, 16)], None, OOP)
vexpr(sX1a, [(12, 80), (2, 16)], None, X1OP)
vexpr(sX1b, [(13, 80), (2, 16)], None, X1OP)
vexpr(sHrd, [(2, 16)], None, HOP)
sexpr(sT0, [(sHi, 2048), (sLo, 256), (sU, 64)], E1)
vexpr(sE1w, [(2, 8192), (1, 4)], sT0)
vexpr(SS + 3, [(2, 128)])
A("v_lshlrev_b32 %s, 2, v12" % v(SS + 4))
A("v_sub_u32 %s, %s, %s" % (v(SS + 3), v(SS + 3), v(SS + 4)))
sexpr(sT0, [(sLo, 512), (sHi, 32), (sU, 8)], E1S + 4)
A("v_add_u32 %s, %s, %s" % (v(sE1sw), sT0, v(SS + 3)))
sexpr(sT0, [(sR1, 8)], E4S + 4)
A("v_add_u32 %s, %s, %s" % (v(sE4sw), sT0, v(SS + 3)))
sexpr(sT0, [(sR1, 64)], E4R)
vexpr(sE4rw, [(14, 1024), (2, 16)], sT0)
A("v_and_b32 %s, 31, v0" % v(SS + 3))
A("v_lshrrev_b32 %s, 5, v0" % v(SS + 4))
sexpr(sT0, [(sHi, 8192), (sU, 512)], E1)
vexpr(sAg, [(SS + 4, 4096), (SS + 3, 16)], sT0)
sexpr(sT0, [(sLo, 512), (sHi, 128)], E1S)
vexpr(sAst, [(1, 8)], sT0)
sexpr(sT0, [(sU, 272)], QOP)
vexpr(sQw, [(SS + 3, 8), (SS + 4, 4)], sT0)
sexpr(sT0, [(sU, 272)], XOP)
vexpr(SS + 1, [(0, 4)], sT0)
A("v_bfe_u32 %s, v0, 4, 1" % v(SS + 5))
A("v_bfe_u32 %s, v0, 2, 2" % v(SS + 6))
A("v_and_b32 %s, 3, v0" % v(SS + 7))
sexpr(sT0, [(sU, 16)], AP)
vexpr(sCrd, [(SS + 4, 8192), (SS + 5, 1024), (SS + 6, 256), (SS + 7, 64)], sT0)
sexpr(sT0, [(sU, 64)], ML)
vexpr(sMlrd, [(SS + 4, 32)], sT0)
sexpr(sT0, [(sU, 32 * 512), (sS, 512)], E2)
vexpr(sE2w, [(0, 8)], sT0)
sexpr(sC, [(sU, 256), (sS, 8)], E2S)
sexpr(sT0, [(sLo, 32768), (sK1, 16384), (sJ, 2048), (sHi, 512), (sK0, 256)], E3)
vexpr(sE3w, [(0, 4)], sT0)
sexpr(sT0, [(sR1, 896), (sC1, 448), (sU, 128)], E4)
vexpr(sE4w, [(2, 16 * 896), (1, 4)], sT0)
sexpr(sT0, [("s2", 256), (sU, 64)], E5)
vexpr(sE5w, [(1, 4)], sT0)
A("v_lshl_add_u32 %s, v2, 3, v12" % v(SS + 3))
sexpr(sT0, [(sU, 32)])
vexpr(sTr, [(SS + 3, 128), (14, 8)], sT0)
sexpr(sT0, [(sU, 64)])
vexpr(sTr1, [(SS + 3, 224), (14, 8)], sT0)
stamp("S", 11)
A("s_waitcnt vmcnt(0)")
stamp("S", 12)
A("ds_write_b32 %s, %s" % (v(SS + 1), v(SS + 2)))
A("s_waitcnt lgkmcnt(0)")

if P.get("QLATE"):
    A("s_barrier")
lab = "S_GBX"
A("v_mov_b32 v5, %d" % FLG)
A("s_cmp_lg_u32 %s, 0" % sU)
A("s_cbranch_scc1 S_GB_SKIP")
A.label("S_GB")
A("global_load_dwordx2 v[6:7], v4, %s sc1" % pDBG)
A("s_waitcnt vmcnt(0)")
A("v_readfirstlane_b32 %s, v6" % sT2)
A("v_readfirstlane_b32 %s, v7" % sT3)
A("s_lshr_b32 %s, %s, 24" % (sT0, sT3))
A("s_cmp_eq_u32 %s, 32" % sT0)
A("s_cbranch_scc1 S_GB_DONE")
A("s_sleep 8")
budget_loop("S_GB")
A.label("S_GB_DONE")
stamp("S", 13)
A("s_mul_i32 %s, %s, 6" % (sT0, sXcc))
A("s_lshr_b64 s[14:15], s[14:15], %s" % sT0)
A("s_and_b32 %s, %s, 63" % (sT2, sT2))
A("s_cmp_eq_u32 %s, 32" % sT2)
A("s_cselect_b32 %s, 1, 0" % sT0)
if P["FORCE_SAFE"]:
    A("s_mov_b32 %s, 0" % sT0)
A("v_mov_b32 v6, %s" % sT0)
A("ds_write_b32 v5, v6")
A("s_waitcnt lgkmcnt(0)")
A.label("S_GB_SKIP")
ssync(0)
A("s_cmp_lg_u32 %s, 1" % sU)
A("s_cbranch_scc1 S_NOARR2")
A("v_mov_b32 v5, 1")
set_exec(1)
A("global_atomic_add v4, v5, %s offset:8" % pDBG)
set_exec(-1)
A.label("S_NOARR2")
A("v_mov_b32 v5, %d" % FLG)
A("ds_read_b32 v6, v5")
A("s_waitcnt lgkmcnt(0)")
A("v_readfirstlane_b32 %s, v6" % sFast)
A("s_cmp_lg_u32 %s, 0" % sFast)
A("s_cbranch_scc1 %s" % lab)
A("global_store_dwordx4 %s, %s, %s sc1" % (v(sClr0), v(SN, 4), pWJ))
A("global_store_dwordx4 %s, %s, %s offset:1024 sc1" % (v(sClr0), v(SN, 4), pWJ))
A("v_mov_b32 v5, 1")
A("s_waitcnt vmcnt(0)")
set_exec(1)
A("global_atomic_add v4, v5, %s offset:16" % pDBG)
set_exec(-1)
A.label("S_GB2")
A("global_load_dword v6, v4, %s offset:16 sc1" % pDBG)
A("s_waitcnt vmcnt(0)")
A("v_readfirstlane_b32 %s, v6" % sT0)
A("s_cmp_eq_u32 %s, 0x80" % sT0)
A("s_cbranch_scc1 %s" % lab)
A("s_sleep 8")
budget_loop("S_GB2")
A.label(lab)
A("s_branch S_ENTRY")
A.label("S_LOOP")
A("s_barrier")
A.label("S_ENTRY")
stamp("S")
for t in range(4):
    A("ds_read_b128 %s, %s offset:%d" % (v(XR + 4 * t, 4), v(sXa), 64 * t))
A("ds_read_b128 %s, %s" % (v(XR + 16, 4), v(sXb)))
A("s_lshl_b32 %s, %s, 6" % (sT0, sU))
A("v_add_u32 %s, %s, %s" % (v(SS), sT0, v(sXa)))
A("ds_read_b128 %s, %s" % (v(XR + 20, 4), v(SS)))
lab = if_layer0()
for t in range(4):
    for hh in range(2):
        A("ds_read_b64_tr_b16 %s, %s offset:%d" % (v(WQ + 4 * t + 2 * hh, 2), v(sTr), LW_Q + (32 * t + 4 * hh) * 128))
for tl in range(2):
    for hh in range(2):
        A("ds_read_b64_tr_b16 %s, %s offset:%d" % (v(W1R + 4 * tl + 2 * hh, 2), v(sTr1), LW_1 + 4 * hh * 224 + 32 * tl))
A("s_waitcnt lgkmcnt(0)")
A.label(lab)
for t in range(4):
    A("s_waitcnt lgkmcnt(%d)" % (5 - t))
    A("%s %s, %s, %s, %s" % (MFMA, v(DR, 4), v(XR + 4 * t, 4), v(WQ + 4 * t, 4), "0" if t == 0 else v(DR, 4)))
A("s_waitcnt lgkmcnt(0)")
A("%s %s, %s, %s, 0" % (MFMA, v(DR + 4, 4), v(XR + 20, 4), v(XR + 16, 4)))
stamp("S")
STM = 0x0018001400120011
store_intra(["global_store_dword %s, %s, %s" % (v(sE1w), v(DR), pWJ)] + exec_lines(STM) +
            ["global_store_dword %s, %s, %s" % (v(sE1sw), v(DR + 4), pWJ), "s_mov_b64 exec, -1"])
ga, gb, gc = SS, SS + 4, SS + 8


def half_treduce():
    A("v_permlane32_swap_b32 %s, %s" % (v(ga), v(ga + 2)))
    A("v_permlane32_swap_b32 %s, %s" % (v(ga + 1), v(ga + 3)))
    A("v_add_f32 %s, %s, %s" % (v(ga), v(ga), v(ga + 2)))
    A("v_add_f32 %s, %s, %s" % (v(ga + 1), v(ga + 1), v(ga + 3)))


lab = if_layer0()
for i in range(4):
    A("v_mov_b32 %s, 0x3f803f80" % v(XR + i))
for t in range(4):
    A("%s %s, %s, %s, %s" % (MFMA, v(DR, 4), v(XR, 4), v(WQ + 4 * t, 4), "0" if t == 0 else v(DR, 4)))
A("%s %s, %s, %s, 0" % (MFMA, v(DR + 4, 4), v(XR, 4), v(W1R, 4)))
A("%s %s, %s, %s, 0" % (MFMA, v(XR + 4, 4), v(XR, 4), v(W1R + 4, 4)))
A("v_add_u32 %s, %d, %s" % (v(gc), 4 * 8192, v(sE1w)))
A("v_add_u32 %s, %d, %s" % (v(gc + 1), (E4C - E4) & 0xFFFFFFFF, v(sE4w)))
A("s_cmp_eq_u32 %s, 3" % sU)
A("s_cselect_b32 %s, 0, 0xffff" % sT0)
store_intra(exec_lines(0xFFFF) +
            ["global_store_dword %s, %s, %s" % (v(gc), v(DR), pWJ),
             "global_store_dword %s, %s, %s" % (v(gc + 1), v(DR + 4), pWJ),
             "s_mov_b32 exec_lo, %s" % sT0,
             "global_store_dword %s, %s, %s offset:64" % (v(gc + 1), v(XR + 4), pWJ),
             "s_mov_b64 exec, -1"])
A("s_sub_u32 %s, 4, %s" % (sT0, sHi))
A("s_lshl_b32 %s, %s, 13" % (sT0, sT0))
A("v_add_u32 %s, %s, %s" % (v(gc + 2), sT0, v(sAg)))
AG = ["global_load_dwordx2 %s, %s, %s sc1" % (v(gc, 2), v(sAst), pWJ),
      "global_load_dwordx4 %s, %s, %s sc1" % (v(ga, 4), v(sAg), pWJ),
      "global_load_dwordx4 %s, %s, %s offset:2048 sc1" % (v(gb, 4), v(sAg), pWJ)]
AGC = [(ga + e, gb + e) for e in range(4)] + [(gc, gc + 1)]
poll(AG + ["global_load_dwordx4 %s, %s, %s sc1" % (v(XR, 4), v(gc + 2), pWJ),
           "global_load_dwordx4 %s, %s, %s offset:2048 sc1" % (v(XR + 4, 4), v(gc + 2), pWJ)],
     AGC + [(XR + e, XR + 4 + e) for e in range(4)])
for e in range(4):
    A("v_add_f32 %s, %s, %s" % (v(XR + e), v(XR + e), v(XR + 4 + e)))
A("v_permlane32_swap_b32 %s, %s" % (v(XR), v(XR + 2)))
A("v_permlane32_swap_b32 %s, %s" % (v(XR + 1), v(XR + 3)))
A("v_add_f32 %s, %s, %s" % (v(sCq0), v(XR), v(XR + 2)))
A("v_add_f32 %s, %s, %s" % (v(sCq1), v(XR + 1), v(XR + 3)))
A("s_branch S_AG_DONE")
A.label(lab)
sleep(P["D_A"])
poll(AG, AGC)
A.label("S_AG_DONE")
stamp("S")
for i, m in enumerate((X1, X2, HM, RM)):
    A("v_add_f32_dpp %s, %s, %s %s" % (v(gc), v(gc), v(gc), m))
    A("v_add_f32_dpp %s, %s, %s %s" % (v(gc + 1), v(gc + 1), v(gc + 1), m))
    A("v_add_f32 %s, %s, %s" % (v(ga + i), v(ga + i), v(gb + i)))
A("v_mul_f32 %s, %s, %s" % (v(gc), f32(1 / 512), v(gc)))
A("v_mul_f32 %s, %s, %s" % (v(gc + 1), f32(1 / 512), v(gc + 1)))
half_treduce()
A("v_fma_f32 %s, -%s, %s, %s" % (v(gc + 1), v(gc), v(gc), v(gc + 1)))
A("v_max_f32 %s, 0, %s" % (v(gc + 1), v(gc + 1)))
A("v_add_f32 %s, %s, %s" % (v(gc + 1), f32(1e-5), v(gc + 1)))
A("v_rsq_f32 %s, %s" % (v(gc + 1), v(gc + 1)))
A("v_fma_f32 %s, -%s, %s, %s" % (v(ga), v(gc), v(sCq0), v(ga)))
A("v_fma_f32 %s, -%s, %s, %s" % (v(ga + 1), v(gc), v(sCq1), v(ga + 1)))
A("v_mul_f32 %s, %s, %s" % (v(ga), v(ga), v(gc + 1)))
A("v_mul_f32 %s, %s, %s" % (v(ga + 1), v(ga + 1), v(gc + 1)))
A("v_cvt_pk_bf16_f32 %s, %s, %s" % (v(ga), v(ga), v(ga + 1)))
A("ds_write_b32 %s, %s" % (v(sQw), v(ga)))
A("s_waitcnt lgkmcnt(0)")
A("s_barrier")
lab = if_layer0()
padd(pT, pWJ, LSTR)
store_intra(["global_store_dwordx4 %s, %s, %s" % (v(sClr), v(SN, 4), pT),
             "s_mov_b32 exec_hi, 0",
             "global_store_dwordx4 %s, %s, %s offset:1024" % (v(sClr), v(SN, 4), pT),
             "s_mov_b64 exec, -1"])
A("s_waitcnt vmcnt(0)")
A("s_cmp_lg_u32 %s, 0" % sU)
A("s_cbranch_scc1 %s" % lab)
A("v_lshlrev_b32 v4, 5, v0")
A("v_and_b32 v4, 0xe0, v4")
A.label("S_GB3")
A("global_load_dword v7, v4, %s offset:8 sc1" % pDBG)
A("s_waitcnt vmcnt(0)")
A("v_cmp_ne_u32 vcc, 32, v7")
A("s_cbranch_vccz %s" % lab)
A("s_sleep 8")
budget_loop("S_GB3")
A.label(lab)
A("s_barrier")
stamp("S")
cm = XR
ca = XR + 8
A("ds_read_b128 %s, %s" % (v(cm, 4), v(sMlrd)))
A("ds_read_b128 %s, %s offset:16" % (v(cm + 4, 4), v(sMlrd)))
for k in range(4):
    A("ds_read_b128 %s, %s offset:%d" % (v(ca + 4 * k, 4), v(sCrd), 2048 * k))
cM, cL, cT, cAd = SS, SS + 1, SS + 2, SS + 3
A("v_mov_b32 %s, %s" % (v(cAd), sC))
A("s_waitcnt lgkmcnt(4)")
A("v_max3_f32 %s, %s, %s, %s" % (v(cM), v(cm), v(cm + 2), v(cm + 4)))
A("v_max_f32 %s, %s, %s" % (v(cM), v(cM), v(cm + 6)))
A("v_mov_b32 %s, %s" % (v(cT), v(cM)))
A("v_permlane32_swap_b32 %s, %s" % (v(cM), v(cT)))
A("v_max_f32 %s, %s, %s" % (v(cM), v(cM), v(cT)))
for k in range(4):
    A("v_sub_f32 %s, %s, %s" % (v(cm + 2 * k), v(cm + 2 * k), v(cM)))
for k in range(4):
    A("v_exp_f32 %s, %s" % (v(cm + 2 * k), v(cm + 2 * k)))
A("s_waitcnt lgkmcnt(0)")
for e in range(4):
    A("v_mul_f32 %s, %s, %s" % (v(DR + e), v(cm), v(ca + e)))
A("v_mul_f32 %s, %s, %s" % (v(cL), v(cm), v(cm + 1)))
for k in range(1, 4):
    for e in range(4):
        A("v_fmac_f32 %s, %s, %s" % (v(DR + e), v(cm + 2 * k), v(ca + 4 * k + e)))
    A("v_fmac_f32 %s, %s, %s" % (v(cL), v(cm + 2 * k), v(cm + 2 * k + 1)))
A("v_mov_b32 %s, %s" % (v(cT), v(cL)))
A("v_permlane32_swap_b32 %s, %s" % (v(DR), v(DR + 2)))
A("v_permlane32_swap_b32 %s, %s" % (v(DR + 1), v(DR + 3)))
A("v_permlane32_swap_b32 %s, %s" % (v(cL), v(cT)))
A("v_add_f32 %s, %s, %s" % (v(DR), v(DR), v(DR + 2)))
A("v_add_f32 %s, %s, %s" % (v(DR + 1), v(DR + 1), v(DR + 3)))
A("v_add_f32 %s, %s, %s" % (v(cL), v(cL), v(cT)))
store_intra(["global_store_dwordx2 %s, %s, %s" % (v(sE2w), v(DR, 2), pWJ),
             "s_mov_b64 exec, 1",
             "global_store_dwordx2 %s, %s, %s" % (v(cAd), v(cM, 2), pWJ),
             "s_mov_b64 exec, -1"])
stamp("S")
A("s_barrier")
stamp("S")
for t in range(4):
    A("ds_read_b128 %s, %s offset:%d" % (v(XR + 4 * t, 4), v(sOrd), 64 * t))
lab = if_layer0()
for t in range(4):
    for hh in range(2):
        A("ds_read_b64_tr_b16 %s, %s offset:%d" % (v(WO + 4 * t + 2 * hh, 2), v(sTr), LW_O + (32 * t + 4 * hh) * 128))
A("s_waitcnt lgkmcnt(0)")
A.label(lab)
for t in range(4):
    A("s_waitcnt lgkmcnt(%d)" % (3 - t))
    A("%s %s, %s, %s, %s" % (MFMA, v(DR, 4), v(XR + 4 * t, 4), v(WO + 4 * t, 4), "0" if t == 0 else v(DR, 4)))
A("global_store_dword %s, %s, %s sc1" % (v(sE3w), v(DR), pWL))
lab = if_layer0()
for t in range(7):
    for hh in range(2):
        A("ds_read_b64_tr_b16 %s, %s offset:%d" % (v(W2R + 4 * t + 2 * hh, 2), v(sTr), LW_2 + (32 * t + 4 * hh) * 128))
A("s_waitcnt lgkmcnt(0)")
A.label(lab)
A("s_barrier")
stamp("S")
A("ds_read_b128 %s, %s" % (v(XR, 4), v(sX1a)))
A("s_cmp_eq_u32 %s, 3" % sU)
A("s_cbranch_scc1 S_W1_W3")
A("s_waitcnt lgkmcnt(0)")
A("%s %s, %s, %s, 0" % (MFMA, v(DR, 4), v(XR, 4), v(W1R, 4)))
A("%s %s, %s, %s, 0" % (MFMA, v(DR + 4, 4), v(XR, 4), v(W1R + 4, 4)))
store_intra(["global_store_dword %s, %s, %s" % (v(sE4w), v(DR), pWJ),
             "global_store_dword %s, %s, %s offset:64" % (v(sE4w), v(DR + 4), pWJ)])
A("s_branch S_W1_DONE")
A.label("S_W1_W3")
A("ds_read_b128 %s, %s" % (v(XR + 4, 4), v(sX1b)))
A("s_waitcnt lgkmcnt(1)")
A("%s %s, %s, %s, 0" % (MFMA, v(DR, 4), v(XR, 4), v(W1R, 4)))
A("s_waitcnt lgkmcnt(0)")
A("%s %s, %s, %s, 0" % (MFMA, v(DR + 4, 4), v(XR, 4), v(XR + 4, 4)))
store_intra(["global_store_dword %s, %s, %s" % (v(sE4w), v(DR), pWJ)] + exec_lines(STM) +
            ["global_store_dword %s, %s, %s" % (v(sE4sw), v(DR + 4), pWJ)] + exec_lines(0x000F000F000F000F) +
            ["global_store_dwordx4 %s, %s, %s" % (v(sE4rw), v(XR + 4, 4), pWJ), "s_mov_b64 exec, -1"])
A.label("S_W1_DONE")
A("s_barrier")
stamp("S")
for t in range(7):
    A("ds_read_b128 %s, %s offset:%d" % (v(XR + 4 * t, 4), v(sHrd), 64 * t))
for t in range(7):
    A("s_waitcnt lgkmcnt(%d)" % (6 - t))
    A("%s %s, %s, %s, %s" % (MFMA, v(DR, 4), v(XR + 4 * t, 4), v(W2R + 4 * t, 4), "0" if t == 0 else v(DR, 4)))
set_exec(0xFFFF)
A("global_store_dword %s, %s, %s sc1" % (v(sE5w), v(DR), pWL))
set_exec(-1)
stamp("S")
A("s_cmp_lg_u32 %s, 0" % sL)
A("s_cbranch_scc1 L_EXIT")
A("s_mov_b32 %s, 1" % sL)
padd(pWL, pWL, LSTR)
padd(pWJ, pWJ, LSTR)
A("s_branch S_LOOP")

KR, VR, VF, QR, SR = 16, 48, 80, 112, 128
GS = 48
(gOg, gOml, gOlds, gW1g, gW1x, gW1lds, gW2g, gW2s, gW2lds, gXg, gXr, gXlds, gB1, gB2, gCs1, gQrd, gApw, gMlw, gOut) = range(148, 167)
_gn = [1 if P["PREF"] else 0]


def gload(t):
    if P.get("NODMA") and "lds" in t:
        t = "global_load_dword v140, v3, %s" % pB1 if False else "s_nop 0"
        A(t)
        return
    if _gn[0] >= P["W"]:
        A("s_waitcnt vmcnt(%d)" % (P["W"] - 1))
    A(t)
    _gn[0] += 1


A.label("L_G")
sexpr(sT0, [(sHi, 8 << 21), (sJ, 1 << 21), (sLo, 1 << 16), (sWave, 1 << 13)], 6144 * 256 + 4096)
A("v_and_b32 v8, 3, v1")
A("v_lshrrev_b32 v9, 2, v1")
vexpr(10, [(8, 1024), (9, 256), (2, 16)])
A("s_waitcnt lgkmcnt(0)")
stamp_init()
stamp("G", 10)
padd(pT, pK, sT0)
padd(pT2, pV, sT0)
for tau in range(2):
    for t in range(4):
        if 4 * tau + t == P["B0POS"]:
            A("s_barrier")
        gload("global_load_dwordx4 %s, v10, %s offset:%d%s" % (v(KR + 4 * (4 * tau + t), 4), pT, tau * 4096 - 4096 + 64 * t, NT))
stamp("G", 11)
for jj in range(8):
    gload("global_load_dwordx4 %s, v3, %s offset:%d%s" % (v(VR + 4 * jj, 4), pT2, (jj - 4) * 1024, NT))
stamp("G", 12)
A("v_lshrrev_b32 v11, 3, v0")
A("v_and_b32 v12, 7, v0")
vexpr(10, [(11, 1024), (12, 16)])
sexpr(sT0, [(sJ, 512 * 1024), (sHi, 128 * 1024), (sWave, 16 * 1024), (sLo, 128)])
padd(pT, pWO, sT0)
A("s_lshl_b32 %s, %s, 11" % (sT1, sWave))
A("s_add_u32 m0, %s, %d" % (sT1, LW_O))
gload("global_load_lds_dwordx4 v10, %s%s" % (pT, NT))
padd(pT, pT, 8192)
A("s_add_u32 m0, %s, %d" % (sT1, LW_O + 1024))
gload("global_load_lds_dwordx4 v10, %s%s" % (pT, NT))
sexpr(sT0, [(sJ, 224 * 1024), (sLo, 128)])
for k in range(4):
    if k < 3:
        A("s_add_u32 %s, %s, %d" % (sT1, sWave, 8 * k))
    else:
        A("s_add_u32 %s, %s, 24" % (sT1, sWave))
        A("s_add_u32 %s, %s, 16" % (sK2, sWave))
        A("s_cmp_lt_u32 %s, 4" % sWave)
        A("s_cselect_b32 %s, %s, %s" % (sT1, sT1, sK2))
    A("s_lshl_b32 %s, %s, 13" % (sK2, sT1))
    A("s_add_u32 %s, %s, %s" % (sK2, sK2, sT0))
    padd(pT, pW2, sK2)
    A("s_lshl_b32 %s, %s, 10" % (sK2, sT1))
    A("s_add_u32 m0, %s, %d" % (sK2, LW_2))
    gload("global_load_lds_dwordx4 v10, %s%s" % (pT, NT))
stamp("G", 13)
A("s_lshr_b32 %s, %s, 1" % (sK0, sWave))
A("s_and_b32 %s, %s, 1" % (sK1, sWave))
A("s_min_u32 %s, %s, 6" % (sK2, sWave))
vexpr(13, [(1, 4), (2, 1)])
sexpr(sT0, [(sHi, 256), (sK1, 128)])
vexpr(14, [(13, 2)], sT0)
gload("global_load_ushort %s, v14, %s" % (v(gB2), pB2))
vexpr(10, [(12, 4), (2, 1)])
sexpr(sT0, [(sK2, 64)])
vexpr(10, [(10, 2)], sT0)
sexpr(sT0, [(sJ, 448)])
A("v_add_u32 v4, %s, v10" % sT0)
gload("global_load_ushort %s, v4, %s" % (v(gB1), pB1))
N_AFTER_K, N_AFTER_V = 8 + 6 + 2, 6 + 2

for q in range(4):
    smov64(mQ[q], (0x000F000F000F000F << (4 * q)))
A("s_mov_b32 %s, 0x05040100" % sPermLo)
A("s_mov_b32 %s, 0x07060302" % sPermHi)
A("s_mov_b32 %s, %s" % (sC, f32(128 ** -0.5 * math.log2(math.e))))
A("s_mov_b32 s42, s40")
A("s_mov_b32 s43, s41")
A("s_mul_i32 %s, %s, %d" % (sT0, sJ, JSTR))
padd(pWJ, pWS, sT0)
A("v_add_u32 %s, %d, v10" % (v(gW2lds), HOP))
sexpr(sT0, [(sHi, 16384), (sK0, 4096), (sK1, 256)], E2)
vexpr(gOg, [(2, 1024), (1, 16)], sT0)
sexpr(sT0, [(sHi, 256), (sK0, 64)], E2S)
vexpr(gOml, [(2, 16)], sT0)
A("v_lshrrev_b32 v4, 1, v2")
A("v_lshl_add_u32 v4, v1, 1, v4")
A("v_bfe_u32 v5, v4, 4, 1")
A("v_bfe_u32 v6, v4, 2, 2")
A("v_and_b32 v7, 3, v4")
A("v_and_b32 v4, 1, v2")
sexpr(sT0, [(sK0, 272), (sK1, 32)], OOP)
vexpr(gOlds, [(6, 64), (4, 16), (5, 8), (7, 2)], sT0)
A("v_lshrrev_b32 v4, 2, v0")
A("v_and_b32 v5, 3, v0")
sexpr(sT0, [(sR1, 16384), (sWave, 64)], E3)
vexpr(gW1g, [(4, 1024), (5, 16)], sT0)
A("s_lshr_b32 %s, %s, 2" % (sT1, sWave))
A("s_and_b32 %s, %s, 3" % (sT2, sWave))
vexpr(6, [(5, 8), (2, 2)])
sexpr(sT0, [(sT2, 80), (sT1, 32)], X1OP)
A("v_add_u32 %s, %s, v6" % (v(gW1lds), sT0))
sexpr(sT0, [(sT2, 272), (sT1, 32)], XOP)
A("s_and_b32 %s, %s, 3" % (sT1, sR1))
A("s_lshl_b32 %s, %s, 6" % (sT1, sT1))
A("s_add_u32 %s, %s, %s" % (sT0, sT0, sT1))
A("v_add_u32 %s, %s, v6" % (v(gW1x), sT0))
sexpr(sT0, [(sHi, 16 * 896), (sK2, 128)], E4)
vexpr(gW2g, [(11, 2 * 896), (12, 16)], sT0)
sexpr(sT0, [(sHi, 128)], E4S)
vexpr(gW2s, [(1, 8)], sT0)
sexpr(sT0, [(sK0, 16384), (sHi, 4096), (sK1, 2048)], E5)
vexpr(gXg, [(2, 512), (1, 16)], sT0)
sexpr(sT0, [(sK0, 1024)], E4R)
A("v_add_u32 %s, %s, v14" % (v(gXr), sT0))
sexpr(sT0, [(sK0, 1024)])
A("v_add_u32 %s, %s, v14" % (v(gOut), sT0))
sexpr(sT0, [(sK0, 272), (sK1, 128)], XOP)
vexpr(gXlds, [(13, 2)], sT0)
vexpr(gQrd, [(8, 272), (2, 16)], None, QOP)
sexpr(sT0, [(sWave, 2048)], AP)
A("v_add_u32 %s, %s, v3" % (v(gApw), sT0))
sexpr(sT0, [(sWave, 8)], ML)
vexpr(gMlw, [(8, 64)], sT0)
stamp("G", 9)
if P.get("KVWAIT"):
    A("s_waitcnt vmcnt(%d)" % N_AFTER_K)
    stamp("G", 7)
    A("s_waitcnt vmcnt(%d)" % N_AFTER_V)
    stamp("G", 8)
    A("s_waitcnt vmcnt(0)")
    stamp("G", 14)
if P.get("QLATE"):
    A("s_barrier")
A("s_branch G_ENTRY")

A.label("G_LOOP")
A("s_barrier")
A.label("G_ENTRY")
A("s_barrier")
stamp("G")
for t in range(4):
    A("ds_read_b128 %s, %s offset:%d" % (v(QR + 4 * t, 4), v(gQrd), 64 * t))
A("s_waitcnt vmcnt(%d)" % N_AFTER_K)
stamp("G")
S0, S1 = SR, SR + 4
for t in range(4):
    A("s_waitcnt lgkmcnt(%d)" % (3 - t))
    for tau in range(2):
        d = v(SR + 4 * tau, 4)
        A("%s %s, %s, %s, %s" % (MFMA, d, v(KR + 4 * (4 * tau + t), 4), v(QR + 4 * t, 4), "0" if t == 0 else d))
aM, aT, aL, aMc = 136, 137, 138, 139
PR = 140
PM = QR
A("v_max3_f32 %s, %s, %s, %s" % (v(aM), v(S0), v(S0 + 1), v(S0 + 2)))
A("v_max3_f32 %s, %s, %s, %s" % (v(aT), v(S1), v(S1 + 1), v(S1 + 2)))
A("v_max3_f32 %s, %s, %s, %s" % (v(aM), v(aM), v(S0 + 3), v(S1 + 3)))
A("v_max_f32 %s, %s, %s" % (v(aM), v(aM), v(aT)))
g_allreduce("v_max_f32", aM, aT)
A("v_mul_f32 %s, %s, %s" % (v(aMc), sC, v(aM)))
for i in range(8):
    A("v_fma_f32 %s, %s, %s, -%s" % (v(SR + i), v(SR + i), sC, v(aMc)))
for i in range(8):
    A("v_exp_f32 %s, %s" % (v(SR + i), v(SR + i)))
for p in range(4):
    A("v_cvt_pk_bf16_f32 %s, %s, %s" % (v(PR + p), v(SR + 2 * p), v(SR + 2 * p + 1)))
for q in range(4):
    for p in range(4):
        A("v_cndmask_b32 %s, 0, %s, %s" % (v(PM + 4 * q + p), v(PR + p), mQ[q]))
lab = if_layer0()
A("s_waitcnt vmcnt(%d)" % N_AFTER_V)
stamp("G")
for i in range(8):
    for p in range(4):
        A("v_perm_b32 %s, %s, %s, %s" % (v(VF + 4 * i + p), v(VR + 4 * (2 * p + 1) + (i >> 1)), v(VR + 4 * (2 * p) + (i >> 1)),
                                         sPermHi if (i & 1) else sPermLo))
A.label(lab)
D0 = 140
for q in range(4):
    for a in range(2):
        d = v(D0 + 4 * a, 4)
        A("%s %s, %s, %s, %s" % (MFMA, d, v(VF + 4 * (4 * a + q), 4), v(PM + 4 * q, 4), "0" if q == 0 else d))
A("v_add_f32 %s, %s, %s" % (v(S0), v(S0), v(S0 + 1)))
A("v_add_f32 %s, %s, %s" % (v(S0 + 2), v(S0 + 2), v(S0 + 3)))
A("v_add_f32 %s, %s, %s" % (v(S1), v(S1), v(S1 + 1)))
A("v_add_f32 %s, %s, %s" % (v(S1 + 2), v(S1 + 2), v(S1 + 3)))
A("v_add_f32 %s, %s, %s" % (v(S0), v(S0), v(S0 + 2)))
A("v_add_f32 %s, %s, %s" % (v(S1), v(S1), v(S1 + 2)))
A("v_add_f32 %s, %s, %s" % (v(aT), v(S0), v(S1)))
g_allreduce("v_add_f32", aT, aL)
A("v_mov_b32 %s, %s" % (v(aM), v(aMc)))
A("ds_write_b64 %s, %s" % (v(gMlw), v(aM, 2)))
A("ds_write_b128 %s, %s" % (v(gApw), v(D0, 4)))
A("ds_write_b128 %s, %s offset:1024" % (v(gApw), v(D0 + 4, 4)))
A("s_waitcnt lgkmcnt(0)")
A("s_barrier")

a0, b0, c0 = GS, GS + 4, GS + 8
r0, r1_, r2, r3 = GS + 12, GS + 13, GS + 14, GS + 15


def add_ab():
    for e in range(4):
        A("v_add_f32 %s, %s, %s" % (v(a0 + e), v(a0 + e), v(b0 + e)))


lab = if_layer0()
A("s_mul_i32 %s, %s, %d" % (sT0, sHi, 16 * 896))
A("s_add_u32 %s, %s, %d" % (sT0, sT0, E4 - E4C))
A("v_subrev_u32 %s, %s, %s" % (v(r3), sT0, v(gW2g)))
poll(["global_load_dwordx4 %s, %s, %s sc1" % (v(a0, 4), v(r3), pWJ),
      "global_load_dwordx4 %s, %s, %s offset:896 sc1" % (v(b0, 4), v(r3), pWJ)],
     [(a0 + e, b0 + e) for e in range(4)])
add_ab()
g_treduce(a0)
A("v_add_f32_dpp %s, %s, %s row_ror:8%s" % (v(gCs1), v(a0), v(a0), DPP))
A("v_lshlrev_b32 %s, 16, %s" % (v(gB1), v(gB1)))
A("v_lshlrev_b32 %s, 16, %s" % (v(gB2), v(gB2)))
A.label(lab)

sleep(P["D_O"])
poll(["global_load_dwordx4 %s, %s, %s sc1" % (v(c0, 4), v(gOml), pWJ),
      "global_load_dwordx4 %s, %s, %s sc1" % (v(a0, 4), v(gOg), pWJ),
      "global_load_dwordx4 %s, %s, %s offset:512 sc1" % (v(b0, 4), v(gOg), pWJ)],
     [(a0 + e, b0 + e) for e in range(4)] + [(c0, c0 + 1), (c0 + 2, c0 + 3)])
stamp("G")
A("ds_read_u16 %s, %s" % (v(r3), v(gW1x)))
A("v_max_f32 %s, %s, %s" % (v(r0), v(c0), v(c0 + 2)))
g_allreduce("v_max_f32", r0, r1_)
A("v_sub_f32 %s, %s, %s" % (v(c0), v(c0), v(r0)))
A("v_sub_f32 %s, %s, %s" % (v(c0 + 2), v(c0 + 2), v(r0)))
A("v_exp_f32 %s, %s" % (v(c0), v(c0)))
A("v_exp_f32 %s, %s" % (v(c0 + 2), v(c0 + 2)))
A("v_mul_f32 %s, %s, %s" % (v(r1_), v(c0), v(c0 + 1)))
A("v_fmac_f32 %s, %s, %s" % (v(r1_), v(c0 + 2), v(c0 + 3)))
for e in range(4):
    A("v_mul_f32 %s, %s, %s" % (v(a0 + e), v(c0), v(a0 + e)))
for e in range(4):
    A("v_fmac_f32 %s, %s, %s" % (v(a0 + e), v(c0 + 2), v(b0 + e)))
g_allreduce("v_add_f32", r1_, r2)
g_treduce(a0)
A("v_rcp_f32 %s, %s" % (v(r1_), v(r1_)))
A("v_mul_f32 %s, %s, %s" % (v(r0), v(a0), v(r1_)))
A("v_cvt_pk_bf16_f32 %s, %s, %s" % (v(r0), v(r0), v(r0)))
A("ds_write_b16 %s, %s" % (v(gOlds), v(r0)))
A("s_waitcnt lgkmcnt(0)")
A("s_barrier")

A("v_lshlrev_b32 %s, 16, %s" % (v(r3), v(r3)))
sleep(P["D_W1"])
poll(["global_load_dwordx4 %s, %s, %s sc1" % (v(a0, 4), v(gW1g), pWL),
      "global_load_dwordx4 %s, %s, %s offset:512 sc1" % (v(b0, 4), v(gW1g), pWL)],
     [(a0 + e, b0 + e) for e in range(4)])
stamp("G")
add_ab()
g_treduce(a0)
A("v_add_f32_dpp %s, %s, %s row_ror:4%s" % (v(a0), v(a0), v(a0), DPP))
A("v_add_f32_dpp %s, %s, %s row_ror:8%s" % (v(a0), v(a0), v(a0), DPP))
A("v_add_f32 %s, %s, %s" % (v(r0), v(a0), v(r3)))
A("v_cvt_pk_bf16_f32 %s, %s, %s" % (v(r0), v(r0), v(r0)))
A("ds_write_b16 %s, %s" % (v(gW1lds), v(r0)))
A("s_waitcnt lgkmcnt(0)")
A("s_barrier")

A("s_cmp_eq_u32 %s, 7" % sWave)
A("s_cbranch_scc1 G_W2_SKIP")
sleep(P["D_W2"])
poll(["global_load_dwordx2 %s, %s, %s sc1" % (v(c0, 2), v(gW2s), pWJ),
      "global_load_dwordx4 %s, %s, %s sc1" % (v(a0, 4), v(gW2g), pWJ),
      "global_load_dwordx4 %s, %s, %s offset:896 sc1" % (v(b0, 4), v(gW2g), pWJ)],
     [(a0 + e, b0 + e) for e in range(4)] + [(c0, c0 + 1)])
stamp("G")
for i, m in enumerate((X1, X2, HM, RM)):
    A("v_add_f32_dpp %s, %s, %s %s" % (v(c0), v(c0), v(c0), m))
    A("v_add_f32_dpp %s, %s, %s %s" % (v(c0 + 1), v(c0 + 1), v(c0 + 1), m))
    A("v_add_f32 %s, %s, %s" % (v(a0 + i), v(a0 + i), v(b0 + i)))
A("v_mul_f32 %s, %s, %s" % (v(c0), f32(1 / 512), v(c0)))
A("v_mul_f32 %s, %s, %s" % (v(c0 + 1), f32(1 / 512), v(c0 + 1)))
g_treduce(a0)
A("v_fma_f32 %s, -%s, %s, %s" % (v(c0 + 1), v(c0), v(c0), v(c0 + 1)))
A("v_max_f32 %s, 0, %s" % (v(c0 + 1), v(c0 + 1)))
A("v_add_f32_dpp %s, %s, %s row_ror:8%s" % (v(r0), v(a0), v(a0), DPP))
A("v_add_f32 %s, %s, %s" % (v(c0 + 2), f32(1e-5), v(c0 + 1)))
A("v_rcp_f32 %s, %s" % (v(c0 + 3), v(c0 + 2)))
A("v_fma_f32 %s, -%s, %s, %s" % (v(r0), v(c0), v(gCs1), v(r0)))
A("v_mul_f32 %s, %s, %s" % (v(c0 + 3), v(c0 + 1), v(c0 + 3)))
A("v_add_f32 %s, %s, %s" % (v(c0 + 3), f32(1e-5), v(c0 + 3)))
A("v_mul_f32 %s, %s, %s" % (v(c0 + 2), v(c0 + 2), v(c0 + 3)))
A("v_rsq_f32 %s, %s" % (v(c0 + 2), v(c0 + 2)))
A("v_fma_f32 %s, %s, %s, %s" % (v(r0), v(r0), v(c0 + 2), v(gB1)))
k0 = -2 * math.log2(math.e) * math.sqrt(2 / math.pi)
A("v_mul_f32 %s, %s, %s" % (v(r1_), v(r0), v(r0)))
A("v_mov_b32 %s, %s" % (v(r2), f32(k0)))
A("v_fmac_f32 %s, %s, %s" % (v(r2), f32(k0 * 0.044715), v(r1_)))
A("v_mul_f32 %s, %s, %s" % (v(r2), v(r2), v(r0)))
A("v_exp_f32 %s, %s" % (v(r2), v(r2)))
A("v_add_f32 %s, 1.0, %s" % (v(r2), v(r2)))
A("v_rcp_f32 %s, %s" % (v(r2), v(r2)))
A("v_mul_f32 %s, %s, %s" % (v(r0), v(r0), v(r2)))
A("v_cvt_pk_bf16_f32 %s, %s, %s" % (v(r0), v(r0), v(r0)))
A("ds_write_b16 %s, %s" % (v(gW2lds), v(r0)))
A("s_waitcnt lgkmcnt(0)")
A.label("G_W2_SKIP")
A("s_barrier")

A("s_cmp_eq_u32 %s, 0" % sL)
A("s_cbranch_scc1 G_X_GO")
A("s_cmp_lg_u32 %s, 0" % sLo)
A("s_cbranch_scc1 L_EXIT")
A("s_cmp_lg_u32 %s, %s" % (sWave, sJ))
A("s_cbranch_scc1 L_EXIT")
A.label("G_X_GO")
sleep(P["D_X"])


def xpre():
    A("v_lshlrev_b32 %s, 16, %s" % (v(c0), v(c0)))


poll(["global_load_ushort %s, %s, %s sc1" % (v(c0), v(gXr), pWJ),
      "global_load_dwordx4 %s, %s, %s sc1" % (v(a0, 4), v(gXg), pWL),
      "global_load_dwordx4 %s, %s, %s offset:256 sc1" % (v(b0, 4), v(gXg), pWL)],
     [(a0 + e, b0 + e) for e in range(4)] + [(c0, c0)], pre=xpre)
stamp("G")
add_ab()
A("v_add_f32 %s, %s, %s" % (v(c0), v(c0), v(gB2)))
g_treduce(a0)
A("v_add_f32 %s, %s, %s" % (v(r0), v(a0), v(c0)))
A("v_cvt_pk_bf16_f32 %s, %s, %s" % (v(r0), v(r0), v(r0)))
A("s_cmp_lg_u32 %s, 0" % sL)
A("s_cbranch_scc1 G_FINAL")
A("ds_write_b16 %s, %s" % (v(gXlds), v(r0)))
A("s_mov_b32 %s, 1" % sL)
padd(pWL, pWL, LSTR)
padd(pWJ, pWJ, LSTR)
A("s_waitcnt lgkmcnt(0)")
A("s_branch G_LOOP")
A.label("G_FINAL")
A("global_store_short %s, %s, %s" % (v(gOut), v(r0), pOUT))
A.label("L_EXIT")
stamp_dump()
A.label("L_END")
A("s_endpgm")

A.fix_hazards()

hdr = open("cdna_kernels/%s.s.ref" % NAME).read().split("; Override launch")[0]
out = hdr + """; @launch grid=(256,1,1) block=(768,1,1) lds=%d
.amdgcn_target "amdgcn-amd-amdhsa--gfx950"
.text
.globl %s_kernel
.p2align 8
.type %s_kernel,@function
%s_kernel:
%s
    ; pad the code section so that the 12 KB code prefetch stays inside it
    .fill ((12288 + 256 - (. - %s_kernel)) / 4), 4, 0xbf810000
.section .rodata,"a"
.p2align 6
.amdhsa_kernel %s_kernel
  .amdhsa_next_free_vgpr 168
  .amdhsa_next_free_sgpr 96
  .amdhsa_accum_offset 168
  .amdhsa_group_segment_fixed_size 0
  .amdhsa_kernarg_size 104
  .amdhsa_user_sgpr_count 2
  .amdhsa_user_sgpr_kernarg_segment_ptr 1
  .amdhsa_system_sgpr_workgroup_id_x 1
.end_amdhsa_kernel
""" % (LDS_TOTAL, NAME, NAME, NAME, A.text(), NAME, NAME)
open(sys.argv[1], "w").write(out)
print("wrote", sys.argv[1], "instructions:", sum(1 for x in A.ins if not x.label), "LDS", LDS_TOTAL)
```

```python
import sys, math, struct, os
from asmlib import Asm

NAME = "interleave_layers__sliding_block_cached__mixer_channel_mlp__decode"

P = dict(B0POS=3, W=64, D_O=0, D_W1=12, D_W2=0, D_X=12, D_A=0, NT="nt", STAMP=0, FORCE_SAFE=0, PREF=1)
for a in sys.argv[2:]:
    k, v_ = a.split("=")
    P[k] = int(v_) if v_.lstrip("-").isdigit() else v_


def f32(x):
    return "0x%08x" % struct.unpack("<I", struct.pack("<f", x))[0]


LSTR = 0x200000
JSTR = 196608
E1, E1S, E4C = 0, 40960, 45056
E2, E4, E4R, E2S, E4S = 65536, 131072, 188416, 192512, 193536
E3, E5 = 0x180000, 0x1C0000
SENT = 0x7F817F81
LW_Q, LW_O, LW_2, LW_1 = 0, 16384, 32768, 61440
XOP = 68608
QOP = XOP + 5 * 272
OOP = QOP + 4 * 272
X1OP = OOP + 4 * 272
HOP = X1OP + 5 * 80
ML = HOP + 448
FLG = ML + 256
AP = (FLG + 16 + 1023) // 1024 * 1024
LDS_TOTAL = AP + 16384
assert all(x % 16 == 0 for x in (XOP, QOP, OOP, X1OP, HOP, ML))

sWave, sJ, sS, sHi, sLo, sR1, sC1, sL, sBud = "s3", "s4", "s5", "s6", "s7", "s8", "s9", "s10", "s11"
sT0, sT1, sT2, sT3 = "s12", "s13", "s14", "s15"
pX, pK, pV, pWQ, pWO, pW1, pB1, pW2, pB2, pOUT, pDBG, pWS = (
    "s[16:17]", "s[18:19]", "s[20:21]", "s[22:23]", "s[24:25]", "s[28:29]", "s[30:31]", "s[32:33]", "s[34:35]",
    "s[36:37]", "s[38:39]", "s[40:41]")
pWL = "s[42:43]"
sFast = "s44"
sU = "s45"
mQ = ["s[50:51]", "s[52:53]", "s[54:55]", "s[56:57]"]
sPermLo, sPermHi = "s58", "s59"
sC = "s60"
pT = "s[62:63]"
pT2 = "s[64:65]"
sXcc = "s66"
sK0, sK1, sK2 = "s67", "s68", "s69"
mT = "s[70:71]"
pWJ = "s[72:73]"
pPC = "s[46:47]"

A = Asm()
NT = (" " + P["NT"]) if P["NT"] else ""
STAMP = P["STAMP"]


def v(n, cnt=1):
    return "v%d" % n if cnt == 1 else "v[%d:%d]" % (n, n + cnt - 1)


def smov64(pair, val):
    lo = int(pair[2:].split(":")[0])
    A("s_mov_b32 s%d, 0x%08x" % (lo, val & 0xFFFFFFFF))
    A("s_mov_b32 s%d, 0x%08x" % (lo + 1, val >> 32))


def exec_lines(val):
    if val == -1:
        return ["s_mov_b64 exec, -1"]
    if 0 <= val <= 64:
        return ["s_mov_b64 exec, %d" % val]
    return ["s_mov_b32 exec_lo, 0x%08x" % (val & 0xFFFFFFFF), "s_mov_b32 exec_hi, 0x%08x" % (val >> 32)]


def set_exec(val):
    for l in exec_lines(val):
        A(l)


def padd(dst, src, soff):
    d = int(dst[2:].split(":")[0]); s = int(src[2:].split(":")[0])
    A("s_add_u32 s%d, s%d, %s" % (d, s, soff))
    A("s_addc_u32 s%d, s%d, 0" % (d + 1, s + 1))


def sexpr(dst, terms, const=0, tmp=sT3):
    first = True
    for (r, m) in terms:
        t = dst if first else tmp
        if m == 1:
            if first:
                A("s_mov_b32 %s, %s" % (dst, r))
            else:
                A("s_add_u32 %s, %s, %s" % (dst, dst, r))
            first = False
            continue
        if m & (m - 1) == 0:
            A("s_lshl_b32 %s, %s, %d" % (t, r, m.bit_length() - 1))
        else:
            A("s_mul_i32 %s, %s, %d" % (t, r, m))
        if not first:
            A("s_add_u32 %s, %s, %s" % (dst, dst, t))
        first = False
    if first:
        A("s_mov_b32 %s, %d" % (dst, const))
    elif const:
        A("s_add_u32 %s, %s, %d" % (dst, dst, const))


def vexpr(dst, terms, sreg=None, const=0):
    first = True
    for (r, m) in terms:
        if first:
            if m == 1:
                A("v_mov_b32 %s, %s" % (v(dst), v(r)))
            elif m & (m - 1) == 0:
                A("v_lshlrev_b32 %s, %d, %s" % (v(dst), m.bit_length() - 1, v(r)))
            else:
                A("v_mul_u32_u24 %s, %d, %s" % (v(dst), m, v(r)))
            first = False
        else:
            assert m & (m - 1) == 0, "non power of two term must come first"
            A("v_lshl_add_u32 %s, %s, %d, %s" % (v(dst), v(r), m.bit_length() - 1, v(dst)))
    if sreg:
        A("v_add_u32 %s, %s, %s" % (v(dst), sreg, v(dst)))
    if const:
        A("v_add_u32 %s, %d, %s" % (v(dst), const, v(dst)))


DPP = " row_mask:0xf bank_mask:0xf"
X1 = "quad_perm:[1,0,3,2]" + DPP
X2 = "quad_perm:[2,3,0,1]" + DPP
HM = "row_half_mirror" + DPP
RM = "row_mirror" + DPP
_lab = [0]


def newlabel(p="L"):
    _lab[0] += 1
    return "%s_%d" % (p, _lab[0])


def sleep(n):
    while n > 0:
        k = min(n, 127)
        A("s_sleep %d" % k)
        n -= k


def g_treduce(a):
    A("v_permlane16_swap_b32 %s, %s" % (v(a), v(a + 1)))
    A("v_permlane16_swap_b32 %s, %s" % (v(a + 2), v(a + 3)))
    A("v_add_f32 %s, %s, %s" % (v(a), v(a), v(a + 1)))
    A("v_add_f32 %s, %s, %s" % (v(a + 2), v(a + 2), v(a + 3)))
    A("v_permlane32_swap_b32 %s, %s" % (v(a), v(a + 2)))
    A("v_add_f32 %s, %s, %s" % (v(a), v(a), v(a + 2)))


def g_allreduce(op, r, t):
    for sw in ("v_permlane16_swap_b32", "v_permlane32_swap_b32"):
        A("v_mov_b32 %s, %s" % (v(t), v(r)))
        A("%s %s, %s" % (sw, v(r), v(t)))
        A("%s %s, %s, %s" % (op, v(r), v(r), v(t)))


def budget_loop(top):
    A("s_sub_u32 %s, %s, 1" % (sBud, sBud))
    A("s_cbranch_scc0 %s" % top)
    A("s_mov_b32 %s, 0" % sBud)


def poll(loads, check_pairs, pre=None):
    top, done = newlabel("POLL"), newlabel("PDONE")
    A.label(top)
    for l in loads:
        A(l)
    A("s_waitcnt vmcnt(0)")
    if pre:
        pre()
    first = True
    for (a, b) in check_pairs:
        if first:
            A("v_cmp_u_f32 vcc, %s, %s" % (v(a), v(b)))
            first = False
        else:
            A("v_cmp_u_f32 %s, %s, %s" % (mT, v(a), v(b)))
            A("s_or_b64 vcc, vcc, %s" % mT)
    A("s_cbranch_vccz %s" % done)
    budget_loop(top)
    A.label(done)


def store_intra(insn):
    ls, le = newlabel("SAFE"), newlabel("SEND")
    A("s_cmp_eq_u32 %s, 0" % sFast)
    A("s_cbranch_scc1 %s" % ls)
    for i in insn:
        A(i)
    A("s_branch %s" % le)
    A.label(ls)
    for i in insn:
        A(i + (" sc1" if i.startswith("global_store") else ""))
    A.label(le)


_st = {"G": 0, "S": 0}


def stamp(kind, idx=None):
    if not STAMP:
        return
    if idx is None:
        n = _st[kind]; _st[kind] += 1
    else:
        n = idx
    A("s_waitcnt lgkmcnt(0)")
    A("s_memrealtime s[74:75]")
    A("s_lshl_b32 s76, %s, 4" % sL)
    A("s_add_u32 m0, s76, %d" % n)
    A("s_waitcnt lgkmcnt(0)")
    A("v_writelane_b32 v15, s74, m0")


def stamp_init():
    if STAMP:
        A("v_mov_b32 v15, 0")
        A("v_writelane_b32 v15, s78, 15")


def stamp_dump():
    if not STAMP:
        return
    A("s_mul_i32 s76, s2, 12")
    A("s_add_u32 s76, s76, %s" % sWave)
    A("s_lshl_b32 s76, s76, 8")
    A("s_add_u32 s76, s76, 0x800000")
    A("v_lshlrev_b32 v13, 2, v0")
    A("v_add_u32 v13, s76, v13")
    A("global_store_dword v13, v15, %s" % pWS)


def if_layer0():
    lab = newlabel("NOTL0")
    A("s_cmp_lg_u32 %s, 0" % sL)
    A("s_cbranch_scc1 %s" % lab)
    return lab


def ssync(k):
    top = newlabel("SSY")
    A("v_mov_b32 v5, %d" % (FLG + 4 + 4 * k))
    A("v_mov_b32 v6, 1")
    set_exec(1)
    A("ds_add_u32 v5, v6")
    set_exec(-1)
    A.label(top)
    A("ds_read_b32 v6, v5")
    A("s_waitcnt lgkmcnt(0)")
    A("v_readfirstlane_b32 %s, v6" % sT0)
    A("s_cmp_eq_u32 %s, 4" % sT0)
    done = newlabel("SSD")
    A("s_cbranch_scc1 %s" % done)
    budget_loop(top)
    A.label(done)


MFMA = "v_mfma_f32_16x16x32_bf16"
A("s_getpc_b64 %s" % pPC)
A("s_cmp_ge_u32 s2, 256")
A("s_cbranch_scc1 L_END")
if STAMP:
    A("s_memrealtime s[78:79]")
A("s_load_dwordx16 s[16:31], s[0:1], 0")
A("s_load_dwordx8 s[32:39], s[0:1], 64")
A("s_load_dwordx2 s[40:41], s[0:1], 96")
if P["PREF"]:
    A("v_lshlrev_b32 v3, 4, v0")
    A("global_load_dwordx4 v[140:143], v3, %s offset:-4" % pPC)
A("v_lshrrev_b32 v1, 6, v0")
A("v_and_b32 v0, 63, v0")
A("v_readfirstlane_b32 %s, v1" % sWave)
A("s_and_b32 %s, s2, 7" % sJ)
A("s_lshr_b32 %s, s2, 3" % sS)
A("s_lshr_b32 %s, s2, 6" % sHi)
A("s_and_b32 %s, %s, 7" % (sLo, sS))
A("s_lshr_b32 %s, s2, 4" % sR1)
A("s_and_b32 %s, %s, 1" % (sC1, sS))
A("s_mov_b32 %s, 0" % sL)
A("s_mov_b32 %s, 400000" % sBud)
A("v_and_b32 v1, 15, v0")
A("v_lshrrev_b32 v2, 4, v0")
A("v_lshlrev_b32 v3, 4, v0")
A("s_mov_b32 %s, %s" % (sU, sWave))
A("s_sub_u32 %s, %s, 4" % (sWave, sWave))
A("s_cbranch_scc0 L_G")

WQ, WO, W1R, W2R, XR, DR, SS = 16, 32, 48, 56, 84, 112, 120
(sXa, sXb, sOrd, sX1a, sX1b, sHrd, sE1w, sE1sw, sAg, sAst, sQw, sCq0, sCq1, sCrd, sMlrd, sE2w, sE3w, sE4w, sE4sw, sE4rw, sE5w,
 sTr, sClr, sTr1) = range(144, 168)
SN = 8
sClr0 = 139
A("s_add_u32 %s, %s, 8" % (sWave, sU))
A("v_mov_b32 v4, %d" % FLG)
A("v_mov_b32 v6, 0")
A("v_mov_b32 v7, 0")
A("ds_write_b64 v4, v[6:7]")
A("ds_write_b64 v4, v[6:7] offset:8")
for i in range(4):
    A("v_mov_b32 %s, 0x%08x" % (v(SN + i), SENT))
sexpr(sT0, [(sS, 6144), (sU, 1536)])
A("v_add_u32 %s, %s, v3" % (v(sClr), sT0))
A("s_and_b32 %s, %s, 1" % (sK0, sU))
A("s_lshr_b32 %s, %s, 1" % (sK1, sU))
sexpr(sT0, [(sS, 2048)])
sexpr(sT1, [(sS, 4096), (sK1, 2048)], 65536)
A("s_cmp_eq_u32 %s, 0" % sU)
A("s_cselect_b32 %s, %s, %s" % (sT0, sT0, sT1))
A("v_add_u32 %s, %s, v3" % (v(sClr0), sT0))
sexpr(sT0, [("s2", 1280)], E3)
A("v_add_u32 v5, %s, v3" % sT0)
A("s_mul_i32 %s, %s, %d" % (sT0, sJ, JSTR))
A("v_lshrrev_b32 v13, 3, v0")
A("v_and_b32 v14, 7, v0")
vexpr(SS, [(13, 8192), (14, 16)])
sexpr(sT1, [(sHi, 128 * 8192), (sU, 32 * 8192), (sJ, 1024), (sLo, 128)])
sexpr(sT2, [(sU, 1024), (sHi, 256)])
vexpr(SS + 1, [(0, 4)], sT2)
A("s_waitcnt lgkmcnt(0)")
padd(pWJ, pWS, sT0)
padd(pT, pWQ, sT1)
A("s_cmp_eq_u32 %s, 3" % sU)
A("s_cbranch_scc1 S_CLR3")
A("global_store_dwordx4 %s, %s, %s" % (v(sClr0), v(SN, 4), pWJ))
A("global_store_dwordx4 %s, %s, %s offset:1024" % (v(sClr0), v(SN, 4), pWJ))
A("s_branch S_CLRD")
A.label("S_CLR3")
padd(pT2, pWS, LSTR)
A("global_store_dwordx4 v5, %s, %s sc1" % (v(SN, 4), pWS))
A("global_store_dwordx4 v5, %s, %s sc1" % (v(SN, 4), pT2))
set_exec(0xFFFF)
A("global_store_dwordx4 v5, %s, %s offset:1024 sc1" % (v(SN, 4), pWS))
A("global_store_dwordx4 v5, %s, %s offset:1024 sc1" % (v(SN, 4), pT2))
set_exec(-1)
A.label("S_CLRD")
A("global_load_dword %s, %s, %s" % (v(SS + 2), v(SS + 1), pX))
A("s_lshl_b32 %s, %s, 12" % (sT1, sU))
for i in range(4):
    A("s_add_u32 m0, %s, %d" % (sT1, LW_Q + 1024 * i))
    A("global_load_lds_dwordx4 %s, %s%s" % (v(SS), pT, NT))
    if i < 3:
        padd(pT, pT, 8 * 8192)
sexpr(sT0, [(sR1, 32 * 3584), (sJ, 448), (sC1, 224)])
padd(pT, pW1, sT0)
for k in range(2):
    A("s_lshl_b32 %s, %s, 1" % (sT1, sU))
    if k:
        A("s_add_u32 %s, %s, 1" % (sT1, sT1))
        A("s_min_u32 %s, %s, 6" % (sT1, sT1))
    A("s_lshl_b32 %s, %s, 6" % (sT0, sT1))
    A("v_add_u32 v12, %s, v0" % sT0)
    A("v_mul_u32_u24 v13, 4682, v12")
    A("v_lshrrev_b32 v13, 16, v13")
    A("v_mul_u32_u24 v14, 14, v13")
    A("v_sub_u32 v12, v12, v14")
    A("v_mul_u32_u24 v13, 3584, v13")
    A("v_lshl_add_u32 v12, v12, 4, v13")
    A("s_lshl_b32 %s, %s, 10" % (sT0, sT1))
    A("s_add_u32 m0, %s, %d" % (sT0, LW_1))
    A("global_load_lds_dwordx4 v12, %s%s" % (pT, NT))
for n in range(448):
    assert (n * 4682) >> 16 == n // 14
A("s_waitcnt lgkmcnt(0)")
A("s_barrier")
stamp_init()
stamp("S", 9)
A("s_getreg_b32 %s, hwreg(HW_REG_XCC_ID)" % sXcc)
A("s_and_b32 %s, %s, 7" % (sXcc, sXcc))
A("s_lshl_b32 %s, %s, 5" % (sT1, sJ))
A("v_mov_b32 v4, %s" % sT1)
A("s_cmp_lg_u32 %s, 0" % sU)
A("s_cbranch_scc1 S_NOARR")
A("s_mul_i32 %s, %s, 6" % (sT0, sXcc))
A("s_mov_b32 %s, 1" % sT2)
A("s_mov_b32 %s, 0" % sT3)
A("s_lshl_b64 s[14:15], s[14:15], %s" % sT0)
A("s_or_b32 %s, %s, 0x01000000" % (sT3, sT3))
A("v_mov_b32 v6, %s" % sT2)
A("v_mov_b32 v7, %s" % sT3)
A("s_waitcnt vmcnt(7)")
stamp("S", 10)
set_exec(1)
A("global_atomic_add_x2 v4, v[6:7], %s" % pDBG)
set_exec(-1)
A.label("S_NOARR")
A("s_mov_b32 s42, s40")
A("s_mov_b32 s43, s41")
A("s_mov_b32 %s, 0" % sFast)
A("v_mov_b32 v12, 0x3f803f80")
vexpr(13, [(0, 4)], None, XOP + 4 * 272)
A("ds_write_b32 v13, v12")
vexpr(13, [(1, 4)], None, X1OP + 4 * 80)
A("ds_write_b32 v13, v12")
A("v_lshrrev_b32 v12, 2, v1")
A("v_min_u32 v13, 4, v1")
A("v_and_b32 v14, 3, v1")
vexpr(sXa, [(12, 272), (2, 16)], None, XOP)
sexpr(sT0, [(sU, 64)], XOP)
vexpr(sXb, [(13, 272), (2, 16)], sT0)
vexpr(sOrd, [(12, 272), (2, 16)], None, OOP)
vexpr(sX1a, [(12, 80), (2, 16)], None, X1OP)
vexpr(sX1b, [(13, 80), (2, 16)], None, X1OP)
vexpr(sHrd, [(2, 16)], None, HOP)
sexpr(sT0, [(sHi, 2048), (sLo, 256), (sU, 64)], E1)
vexpr(sE1w, [(2, 8192), (1, 4)], sT0)
vexpr(SS + 3, [(2, 128)])
A("v_lshlrev_b32 %s, 2, v12" % v(SS + 4))
A("v_sub_u32 %s, %s, %s" % (v(SS + 3), v(SS + 3), v(SS + 4)))
sexpr(sT0, [(sLo, 512), (sHi, 32), (sU, 8)], E1S + 4)
A("v_add_u32 %s, %s, %s" % (v(sE1sw), sT0, v(SS + 3)))
sexpr(sT0, [(sR1, 8)], E4S + 4)
A("v_add_u32 %s, %s, %s" % (v(sE4sw), sT0, v(SS + 3)))
sexpr(sT0, [(sR1, 64)], E4R)
vexpr(sE4rw, [(14, 1024), (2, 16)], sT0)
A("v_and_b32 %s, 31, v0" % v(SS + 3))
A("v_lshrrev_b32 %s, 5, v0" % v(SS + 4))
sexpr(sT0, [(sHi, 8192), (sU, 512)], E1)
vexpr(sAg, [(SS + 4, 4096), (SS + 3, 16)], sT0)
sexpr(sT0, [(sLo, 512), (sHi, 128)], E1S)
vexpr(sAst, [(1, 8)], sT0)
sexpr(sT0, [(sU, 272)], QOP)
vexpr(sQw, [(SS + 3, 8), (SS + 4, 4)], sT0)
sexpr(sT0, [(sU, 272)], XOP)
vexpr(SS + 1, [(0, 4)], sT0)
A("v_bfe_u32 %s, v0, 4, 1" % v(SS + 5))
A("v_bfe_u32 %s, v0, 2, 2" % v(SS + 6))
A("v_and_b32 %s, 3, v0" % v(SS + 7))
sexpr(sT0, [(sU, 16)], AP)
vexpr(sCrd, [(SS + 4, 8192), (SS + 5, 1024), (SS + 6, 256), (SS + 7, 64)], sT0)
sexpr(sT0, [(sU, 64)], ML)
vexpr(sMlrd, [(SS + 4, 32)], sT0)
sexpr(sT0, [(sU, 32 * 512), (sS, 512)], E2)
vexpr(sE2w, [(0, 8)], sT0)
sexpr(sC, [(sU, 256), (sS, 8)], E2S)
sexpr(sT0, [(sLo, 32768), (sK1, 16384), (sJ, 2048), (sHi, 512), (sK0, 256)], E3)
vexpr(sE3w, [(0, 4)], sT0)
sexpr(sT0, [(sR1, 896), (sC1, 448), (sU, 128)], E4)
vexpr(sE4w, [(2, 16 * 896), (1, 4)], sT0)
sexpr(sT0, [("s2", 256), (sU, 64)], E5)
vexpr(sE5w, [(1, 4)], sT0)
A("v_lshl_add_u32 %s, v2, 3, v12" % v(SS + 3))
sexpr(sT0, [(sU, 32)])
vexpr(sTr, [(SS + 3, 128), (14, 8)], sT0)
sexpr(sT0, [(sU, 64)])
vexpr(sTr1, [(SS + 3, 224), (14, 8)], sT0)
stamp("S", 11)
A("s_waitcnt vmcnt(0)")
stamp("S", 12)
A("ds_write_b32 %s, %s" % (v(SS + 1), v(SS + 2)))
A("s_waitcnt lgkmcnt(0)")

if P.get("QLATE"):
    A("s_barrier")
lab = "S_GBX"
A("v_mov_b32 v5, %d" % FLG)
A("s_cmp_lg_u32 %s, 0" % sU)
A("s_cbranch_scc1 S_GB_SKIP")
A.label("S_GB")
A("global_load_dwordx2 v[6:7], v4, %s sc1" % pDBG)
A("s_waitcnt vmcnt(0)")
A("v_readfirstlane_b32 %s, v6" % sT2)
A("v_readfirstlane_b32 %s, v7" % sT3)
A("s_lshr_b32 %s, %s, 24" % (sT0, sT3))
A("s_cmp_eq_u32 %s, 32" % sT0)
A("s_cbranch_scc1 S_GB_DONE")
A("s_sleep %d" % P.get("PSL", 8))
budget_loop("S_GB")
A.label("S_GB_DONE")
stamp("S", 13)
A("s_mul_i32 %s, %s, 6" % (sT0, sXcc))
A("s_lshr_b64 s[14:15], s[14:15], %s" % sT0)
A("s_and_b32 %s, %s, 63" % (sT2, sT2))
A("s_cmp_eq_u32 %s, 32" % sT2)
A("s_cselect_b32 %s, 1, 0" % sT0)
if P["FORCE_SAFE"]:
    A("s_mov_b32 %s, 0" % sT0)
A("v_mov_b32 v6, %s" % sT0)
A("ds_write_b32 v5, v6")
A("s_waitcnt lgkmcnt(0)")
A.label("S_GB_SKIP")
ssync(0)
A("s_cmp_lg_u32 %s, 1" % sU)
A("s_cbranch_scc1 S_NOARR2")
A("v_mov_b32 v5, 1")
set_exec(1)
A("global_atomic_add v4, v5, %s offset:8" % pDBG)
set_exec(-1)
A.label("S_NOARR2")
A("v_mov_b32 v5, %d" % FLG)
A("ds_read_b32 v6, v5")
A("s_waitcnt lgkmcnt(0)")
A("v_readfirstlane_b32 %s, v6" % sFast)
A("s_cmp_lg_u32 %s, 0" % sFast)
A("s_cbranch_scc1 %s" % lab)
A("global_store_dwordx4 %s, %s, %s sc1" % (v(sClr0), v(SN, 4), pWJ))
A("global_store_dwordx4 %s, %s, %s offset:1024 sc1" % (v(sClr0), v(SN, 4), pWJ))
A("v_mov_b32 v5, 1")
A("s_waitcnt vmcnt(0)")
set_exec(1)
A("global_atomic_add v4, v5, %s offset:16" % pDBG)
set_exec(-1)
A.label("S_GB2")
A("global_load_dword v6, v4, %s offset:16 sc1" % pDBG)
A("s_waitcnt vmcnt(0)")
A("v_readfirstlane_b32 %s, v6" % sT0)
A("s_cmp_eq_u32 %s, 0x80" % sT0)
A("s_cbranch_scc1 %s" % lab)
A("s_sleep %d" % P.get("PSL", 8))
budget_loop("S_GB2")
A.label(lab)
A("s_branch S_ENTRY")
A.label("S_LOOP")
A("s_barrier")
A.label("S_ENTRY")
stamp("S")
for t in range(4):
    A("ds_read_b128 %s, %s offset:%d" % (v(XR + 4 * t, 4), v(sXa), 64 * t))
A("ds_read_b128 %s, %s" % (v(XR + 16, 4), v(sXb)))
A("s_lshl_b32 %s, %s, 6" % (sT0, sU))
A("v_add_u32 %s, %s, %s" % (v(SS), sT0, v(sXa)))
A("ds_read_b128 %s, %s" % (v(XR + 20, 4), v(SS)))
lab = if_layer0()
for t in range(4):
    for hh in range(2):
        A("ds_read_b64_tr_b16 %s, %s offset:%d" % (v(WQ + 4 * t + 2 * hh, 2), v(sTr), LW_Q + (32 * t + 4 * hh) * 128))
for tl in range(2):
    for hh in range(2):
        A("ds_read_b64_tr_b16 %s, %s offset:%d" % (v(W1R + 4 * tl + 2 * hh, 2), v(sTr1), LW_1 + 4 * hh * 224 + 32 * tl))
A("s_waitcnt lgkmcnt(0)")
A.label(lab)
for t in range(4):
    A("s_waitcnt lgkmcnt(%d)" % (5 - t))
    A("%s %s, %s, %s, %s" % (MFMA, v(DR, 4), v(XR + 4 * t, 4), v(WQ + 4 * t, 4), "0" if t == 0 else v(DR, 4)))
A("s_waitcnt lgkmcnt(0)")
A("%s %s, %s, %s, 0" % (MFMA, v(DR + 4, 4), v(XR + 20, 4), v(XR + 16, 4)))
stamp("S")
STM = 0x0018001400120011
store_intra(["global_store_dword %s, %s, %s" % (v(sE1w), v(DR), pWJ)] + exec_lines(STM) +
            ["global_store_dword %s, %s, %s" % (v(sE1sw), v(DR + 4), pWJ), "s_mov_b64 exec, -1"])
ga, gb, gc = SS, SS + 4, SS + 8


def half_treduce():
    A("v_permlane32_swap_b32 %s, %s" % (v(ga), v(ga + 2)))
    A("v_permlane32_swap_b32 %s, %s" % (v(ga + 1), v(ga + 3)))
    A("v_add_f32 %s, %s, %s" % (v(ga), v(ga), v(ga + 2)))
    A("v_add_f32 %s, %s, %s" % (v(ga + 1), v(ga + 1), v(ga + 3)))


lab = if_layer0()
for i in range(4):
    A("v_mov_b32 %s, 0x3f803f80" % v(XR + i))
for t in range(4):
    A("%s %s, %s, %s, %s" % (MFMA, v(DR, 4), v(XR, 4), v(WQ + 4 * t, 4), "0" if t == 0 else v(DR, 4)))
A("%s %s, %s, %s, 0" % (MFMA, v(DR + 4, 4), v(XR, 4), v(W1R, 4)))
A("%s %s, %s, %s, 0" % (MFMA, v(XR + 4, 4), v(XR, 4), v(W1R + 4, 4)))
A("v_add_u32 %s, %d, %s" % (v(gc), 4 * 8192, v(sE1w)))
A("v_add_u32 %s, %d, %s" % (v(gc + 1), (E4C - E4) & 0xFFFFFFFF, v(sE4w)))
A("s_cmp_eq_u32 %s, 3" % sU)
A("s_cselect_b32 %s, 0, 0xffff" % sT0)
store_intra(exec_lines(0xFFFF) +
            ["global_store_dword %s, %s, %s" % (v(gc), v(DR), pWJ),
             "global_store_dword %s, %s, %s" % (v(gc + 1), v(DR + 4), pWJ),
             "s_mov_b32 exec_lo, %s" % sT0,
             "global_store_dword %s, %s, %s offset:64" % (v(gc + 1), v(XR + 4), pWJ),
             "s_mov_b64 exec, -1"])
A("s_sub_u32 %s, 4, %s" % (sT0, sHi))
A("s_lshl_b32 %s, %s, 13" % (sT0, sT0))
A("v_add_u32 %s, %s, %s" % (v(gc + 2), sT0, v(sAg)))
AG = ["global_load_dwordx2 %s, %s, %s sc1" % (v(gc, 2), v(sAst), pWJ),
      "global_load_dwordx4 %s, %s, %s sc1" % (v(ga, 4), v(sAg), pWJ),
      "global_load_dwordx4 %s, %s, %s offset:2048 sc1" % (v(gb, 4), v(sAg), pWJ)]
AGC = [(ga + e, gb + e) for e in range(4)] + [(gc, gc + 1)]
poll(AG + ["global_load_dwordx4 %s, %s, %s sc1" % (v(XR, 4), v(gc + 2), pWJ),
           "global_load_dwordx4 %s, %s, %s offset:2048 sc1" % (v(XR + 4, 4), v(gc + 2), pWJ)],
     AGC + [(XR + e, XR + 4 + e) for e in range(4)])
for e in range(4):
    A("v_add_f32 %s, %s, %s" % (v(XR + e), v(XR + e), v(XR + 4 + e)))
A("v_permlane32_swap_b32 %s, %s" % (v(XR), v(XR + 2)))
A("v_permlane32_swap_b32 %s, %s" % (v(XR + 1), v(XR + 3)))
A("v_add_f32 %s, %s, %s" % (v(sCq0), v(XR), v(XR + 2)))
A("v_add_f32 %s, %s, %s" % (v(sCq1), v(XR + 1), v(XR + 3)))
A("s_branch S_AG_DONE")
A.label(lab)
sleep(P["D_A"])
poll(AG, AGC)
A.label("S_AG_DONE")
stamp("S")
for i, m in enumerate((X1, X2, HM, RM)):
    A("v_add_f32_dpp %s, %s, %s %s" % (v(gc), v(gc), v(gc), m))
    A("v_add_f32_dpp %s, %s, %s %s" % (v(gc + 1), v(gc + 1), v(gc + 1), m))
    A("v_add_f32 %s, %s, %s" % (v(ga + i), v(ga + i), v(gb + i)))
A("v_mul_f32 %s, %s, %s" % (v(gc), f32(1 / 512), v(gc)))
A("v_mul_f32 %s, %s, %s" % (v(gc + 1), f32(1 / 512), v(gc + 1)))
half_treduce()
A("v_fma_f32 %s, -%s, %s, %s" % (v(gc + 1), v(gc), v(gc), v(gc + 1)))
A("v_max_f32 %s, 0, %s" % (v(gc + 1), v(gc + 1)))
A("v_add_f32 %s, %s, %s" % (v(gc + 1), f32(1e-5), v(gc + 1)))
A("v_rsq_f32 %s, %s" % (v(gc + 1), v(gc + 1)))
A("v_fma_f32 %s, -%s, %s, %s" % (v(ga), v(gc), v(sCq0), v(ga)))
A("v_fma_f32 %s, -%s, %s, %s" % (v(ga + 1), v(gc), v(sCq1), v(ga + 1)))
A("v_mul_f32 %s, %s, %s" % (v(ga), v(ga), v(gc + 1)))
A("v_mul_f32 %s, %s, %s" % (v(ga + 1), v(ga + 1), v(gc + 1)))
A("v_cvt_pk_bf16_f32 %s, %s, %s" % (v(ga), v(ga), v(ga + 1)))
A("ds_write_b32 %s, %s" % (v(sQw), v(ga)))
A("s_waitcnt lgkmcnt(0)")
A("s_barrier")
lab = if_layer0()
padd(pT, pWJ, LSTR)
store_intra(["global_store_dwordx4 %s, %s, %s" % (v(sClr), v(SN, 4), pT),
             "s_mov_b32 exec_hi, 0",
             "global_store_dwordx4 %s, %s, %s offset:1024" % (v(sClr), v(SN, 4), pT),
             "s_mov_b64 exec, -1"])
A("s_waitcnt vmcnt(0)")
A("s_cmp_lg_u32 %s, 0" % sU)
A("s_cbranch_scc1 %s" % lab)
A("v_lshlrev_b32 v4, 5, v0")
A("v_and_b32 v4, 0xe0, v4")
A.label("S_GB3")
A("global_load_dword v7, v4, %s offset:8 sc1" % pDBG)
A("s_waitcnt vmcnt(0)")
A("v_cmp_ne_u32 vcc, 32, v7")
A("s_cbranch_vccz %s" % lab)
A("s_sleep %d" % P.get("PSL", 8))
budget_loop("S_GB3")
A.label(lab)
A("s_barrier")
stamp("S")
cm = XR
ca = XR + 8
A("ds_read_b128 %s, %s" % (v(cm, 4), v(sMlrd)))
A("ds_read_b128 %s, %s offset:16" % (v(cm + 4, 4), v(sMlrd)))
for k in range(4):
    A("ds_read_b128 %s, %s offset:%d" % (v(ca + 4 * k, 4), v(sCrd), 2048 * k))
cM, cL, cT, cAd = SS, SS + 1, SS + 2, SS + 3
A("v_mov_b32 %s, %s" % (v(cAd), sC))
A("s_waitcnt lgkmcnt(4)")
A("v_max3_f32 %s, %s, %s, %s" % (v(cM), v(cm), v(cm + 2), v(cm + 4)))
A("v_max_f32 %s, %s, %s" % (v(cM), v(cM), v(cm + 6)))
A("v_mov_b32 %s, %s" % (v(cT), v(cM)))
A("v_permlane32_swap_b32 %s, %s" % (v(cM), v(cT)))
A("v_max_f32 %s, %s, %s" % (v(cM), v(cM), v(cT)))
for k in range(4):
    A("v_sub_f32 %s, %s, %s" % (v(cm + 2 * k), v(cm + 2 * k), v(cM)))
for k in range(4):
    A("v_exp_f32 %s, %s" % (v(cm + 2 * k), v(cm + 2 * k)))
A("s_waitcnt lgkmcnt(0)")
for e in range(4):
    A("v_mul_f32 %s, %s, %s" % (v(DR + e), v(cm), v(ca + e)))
A("v_mul_f32 %s, %s, %s" % (v(cL), v(cm), v(cm + 1)))
for k in range(1, 4):
    for e in range(4):
        A("v_fmac_f32 %s, %s, %s" % (v(DR + e), v(cm + 2 * k), v(ca + 4 * k + e)))
    A("v_fmac_f32 %s, %s, %s" % (v(cL), v(cm + 2 * k), v(cm + 2 * k + 1)))
A("v_mov_b32 %s, %s" % (v(cT), v(cL)))
A("v_permlane32_swap_b32 %s, %s" % (v(DR), v(DR + 2)))
A("v_permlane32_swap_b32 %s, %s" % (v(DR + 1), v(DR + 3)))
A("v_permlane32_swap_b32 %s, %s" % (v(cL), v(cT)))
A("v_add_f32 %s, %s, %s" % (v(DR), v(DR), v(DR + 2)))
A("v_add_f32 %s, %s, %s" % (v(DR + 1), v(DR + 1), v(DR + 3)))
A("v_add_f32 %s, %s, %s" % (v(cL), v(cL), v(cT)))
store_intra(["global_store_dwordx2 %s, %s, %s" % (v(sE2w), v(DR, 2), pWJ),
             "s_mov_b64 exec, 1",
             "global_store_dwordx2 %s, %s, %s" % (v(cAd), v(cM, 2), pWJ),
             "s_mov_b64 exec, -1"])
stamp("S")
A("s_barrier")
stamp("S")
for t in range(4):
    A("ds_read_b128 %s, %s offset:%d" % (v(XR + 4 * t, 4), v(sOrd), 64 * t))
lab = if_layer0()
for t in range(4):
    for hh in range(2):
        A("ds_read_b64_tr_b16 %s, %s offset:%d" % (v(WO + 4 * t + 2 * hh, 2), v(sTr), LW_O + (32 * t + 4 * hh) * 128))
A("s_waitcnt lgkmcnt(0)")
A.label(lab)
for t in range(4):
    A("s_waitcnt lgkmcnt(%d)" % (3 - t))
    A("%s %s, %s, %s, %s" % (MFMA, v(DR, 4), v(XR + 4 * t, 4), v(WO + 4 * t, 4), "0" if t == 0 else v(DR, 4)))
A("global_store_dword %s, %s, %s sc1" % (v(sE3w), v(DR), pWL))
lab = if_layer0()
for t in range(7):
    for hh in range(2):
        A("ds_read_b64_tr_b16 %s, %s offset:%d" % (v(W2R + 4 * t + 2 * hh, 2), v(sTr), LW_2 + (32 * t + 4 * hh) * 128))
A("s_waitcnt lgkmcnt(0)")
A.label(lab)
A("s_barrier")
stamp("S")
A("ds_read_b128 %s, %s" % (v(XR, 4), v(sX1a)))
A("s_cmp_eq_u32 %s, 3" % sU)
A("s_cbranch_scc1 S_W1_W3")
A("s_waitcnt lgkmcnt(0)")
A("%s %s, %s, %s, 0" % (MFMA, v(DR, 4), v(XR, 4), v(W1R, 4)))
A("%s %s, %s, %s, 0" % (MFMA, v(DR + 4, 4), v(XR, 4), v(W1R + 4, 4)))
store_intra(["global_store_dword %s, %s, %s" % (v(sE4w), v(DR), pWJ),
             "global_store_dword %s, %s, %s offset:64" % (v(sE4w), v(DR + 4), pWJ)])
A("s_branch S_W1_DONE")
A.label("S_W1_W3")
A("ds_read_b128 %s, %s" % (v(XR + 4, 4), v(sX1b)))
A("s_waitcnt lgkmcnt(1)")
A("%s %s, %s, %s, 0" % (MFMA, v(DR, 4), v(XR, 4), v(W1R, 4)))
A("s_waitcnt lgkmcnt(0)")
A("%s %s, %s, %s, 0" % (MFMA, v(DR + 4, 4), v(XR, 4), v(XR + 4, 4)))
store_intra(["global_store_dword %s, %s, %s" % (v(sE4w), v(DR), pWJ)] + exec_lines(STM) +
            ["global_store_dword %s, %s, %s" % (v(sE4sw), v(DR + 4), pWJ)] + exec_lines(0x000F000F000F000F) +
            ["global_store_dwordx4 %s, %s, %s" % (v(sE4rw), v(XR + 4, 4), pWJ), "s_mov_b64 exec, -1"])
A.label("S_W1_DONE")
A("s_barrier")
stamp("S")
for t in range(7):
    A("ds_read_b128 %s, %s offset:%d" % (v(XR + 4 * t, 4), v(sHrd), 64 * t))
for t in range(7):
    A("s_waitcnt lgkmcnt(%d)" % (6 - t))
    A("%s %s, %s, %s, %s" % (MFMA, v(DR, 4), v(XR + 4 * t, 4), v(W2R + 4 * t, 4), "0" if t == 0 else v(DR, 4)))
set_exec(0xFFFF)
A("global_store_dword %s, %s, %s sc1" % (v(sE5w), v(DR), pWL))
set_exec(-1)
stamp("S")
A("s_cmp_lg_u32 %s, 0" % sL)
A("s_cbranch_scc1 L_EXIT")
A("s_mov_b32 %s, 1" % sL)
padd(pWL, pWL, LSTR)
padd(pWJ, pWJ, LSTR)
A("s_branch S_LOOP")

KR, VR, VF, QR, SR = 16, 48, 80, 112, 128
GS = 48
(gOg, gOml, gOlds, gW1g, gW1x, gW1lds, gW2g, gW2s, gW2lds, gXg, gXr, gXlds, gB1, gB2, gCs1, gQrd, gApw, gMlw, gOut) = range(148, 167)
_gn = [1 if P["PREF"] else 0]


def gload(t):
    if P.get("NODMA") and "lds" in t:
        t = "global_load_dword v140, v3, %s" % pB1 if False else "s_nop 0"
        A(t)
        return
    if _gn[0] >= P["W"]:
        A("s_waitcnt vmcnt(%d)" % (P["W"] - 1))
    A(t)
    _gn[0] += 1


A.label("L_G")
sexpr(sT0, [(sHi, 8 << 21), (sJ, 1 << 21), (sLo, 1 << 16), (sWave, 1 << 13)], 6144 * 256 + 4096)
A("v_and_b32 v8, 3, v1")
A("v_lshrrev_b32 v9, 2, v1")
vexpr(10, [(8, 1024), (9, 256), (2, 16)])
A("s_waitcnt lgkmcnt(0)")
stamp_init()
stamp("G", 10)
padd(pT, pK, sT0)
padd(pT2, pV, sT0)
for tau in range(2):
    for t in range(4):
        if 4 * tau + t == P["B0POS"]:
            A("s_barrier")
        gload("global_load_dwordx4 %s, v10, %s offset:%d%s" % (v(KR + 4 * (4 * tau + t), 4), pT, tau * 4096 - 4096 + 64 * t, NT))
stamp("G", 11)
for jj in range(8):
    gload("global_load_dwordx4 %s, v3, %s offset:%d%s" % (v(VR + 4 * jj, 4), pT2, (jj - 4) * 1024, NT))
stamp("G", 12)
A("v_lshrrev_b32 v11, 3, v0")
A("v_and_b32 v12, 7, v0")
vexpr(10, [(11, 1024), (12, 16)])
sexpr(sT0, [(sJ, 512 * 1024), (sHi, 128 * 1024), (sWave, 16 * 1024), (sLo, 128)])
padd(pT, pWO, sT0)
A("s_lshl_b32 %s, %s, 11" % (sT1, sWave))
A("s_add_u32 m0, %s, %d" % (sT1, LW_O))
gload("global_load_lds_dwordx4 v10, %s%s" % (pT, NT))
padd(pT, pT, 8192)
A("s_add_u32 m0, %s, %d" % (sT1, LW_O + 1024))
gload("global_load_lds_dwordx4 v10, %s%s" % (pT, NT))
sexpr(sT0, [(sJ, 224 * 1024), (sLo, 128)])
for k in range(4):
    if k < 3:
        A("s_add_u32 %s, %s, %d" % (sT1, sWave, 8 * k))
    else:
        A("s_add_u32 %s, %s, 24" % (sT1, sWave))
        A("s_add_u32 %s, %s, 16" % (sK2, sWave))
        A("s_cmp_lt_u32 %s, 4" % sWave)
        A("s_cselect_b32 %s, %s, %s" % (sT1, sT1, sK2))
    A("s_lshl_b32 %s, %s, 13" % (sK2, sT1))
    A("s_add_u32 %s, %s, %s" % (sK2, sK2, sT0))
    padd(pT, pW2, sK2)
    A("s_lshl_b32 %s, %s, 10" % (sK2, sT1))
    A("s_add_u32 m0, %s, %d" % (sK2, LW_2))
    gload("global_load_lds_dwordx4 v10, %s%s" % (pT, NT))
stamp("G", 13)
A("s_lshr_b32 %s, %s, 1" % (sK0, sWave))
A("s_and_b32 %s, %s, 1" % (sK1, sWave))
A("s_min_u32 %s, %s, 6" % (sK2, sWave))
vexpr(13, [(1, 4), (2, 1)])
sexpr(sT0, [(sHi, 256), (sK1, 128)])
vexpr(14, [(13, 2)], sT0)
gload("global_load_ushort %s, v14, %s" % (v(gB2), pB2))
vexpr(10, [(12, 4), (2, 1)])
sexpr(sT0, [(sK2, 64)])
vexpr(10, [(10, 2)], sT0)
sexpr(sT0, [(sJ, 448)])
A("v_add_u32 v4, %s, v10" % sT0)
gload("global_load_ushort %s, v4, %s" % (v(gB1), pB1))
N_AFTER_K, N_AFTER_V = 8 + 6 + 2, 6 + 2

for q in range(4):
    smov64(mQ[q], (0x000F000F000F000F << (4 * q)))
A("s_mov_b32 %s, 0x05040100" % sPermLo)
A("s_mov_b32 %s, 0x07060302" % sPermHi)
A("s_mov_b32 %s, %s" % (sC, f32(128 ** -0.5 * math.log2(math.e))))
A("s_mov_b32 s42, s40")
A("s_mov_b32 s43, s41")
A("s_mul_i32 %s, %s, %d" % (sT0, sJ, JSTR))
padd(pWJ, pWS, sT0)
A("v_add_u32 %s, %d, v10" % (v(gW2lds), HOP))
sexpr(sT0, [(sHi, 16384), (sK0, 4096), (sK1, 256)], E2)
vexpr(gOg, [(2, 1024), (1, 16)], sT0)
sexpr(sT0, [(sHi, 256), (sK0, 64)], E2S)
vexpr(gOml, [(2, 16)], sT0)
A("v_lshrrev_b32 v4, 1, v2")
A("v_lshl_add_u32 v4, v1, 1, v4")
A("v_bfe_u32 v5, v4, 4, 1")
A("v_bfe_u32 v6, v4, 2, 2")
A("v_and_b32 v7, 3, v4")
A("v_and_b32 v4, 1, v2")
sexpr(sT0, [(sK0, 272), (sK1, 32)], OOP)
vexpr(gOlds, [(6, 64), (4, 16), (5, 8), (7, 2)], sT0)
A("v_lshrrev_b32 v4, 2, v0")
A("v_and_b32 v5, 3, v0")
sexpr(sT0, [(sR1, 16384), (sWave, 64)], E3)
vexpr(gW1g, [(4, 1024), (5, 16)], sT0)
A("s_lshr_b32 %s, %s, 2" % (sT1, sWave))
A("s_and_b32 %s, %s, 3" % (sT2, sWave))
vexpr(6, [(5, 8), (2, 2)])
sexpr(sT0, [(sT2, 80), (sT1, 32)], X1OP)
A("v_add_u32 %s, %s, v6" % (v(gW1lds), sT0))
sexpr(sT0, [(sT2, 272), (sT1, 32)], XOP)
A("s_and_b32 %s, %s, 3" % (sT1, sR1))
A("s_lshl_b32 %s, %s, 6" % (sT1, sT1))
A("s_add_u32 %s, %s, %s" % (sT0, sT0, sT1))
A("v_add_u32 %s, %s, v6" % (v(gW1x), sT0))
sexpr(sT0, [(sHi, 16 * 896), (sK2, 128)], E4)
vexpr(gW2g, [(11, 2 * 896), (12, 16)], sT0)
sexpr(sT0, [(sHi, 128)], E4S)
vexpr(gW2s, [(1, 8)], sT0)
sexpr(sT0, [(sK0, 16384), (sHi, 4096), (sK1, 2048)], E5)
vexpr(gXg, [(2, 512), (1, 16)], sT0)
sexpr(sT0, [(sK0, 1024)], E4R)
A("v_add_u32 %s, %s, v14" % (v(gXr), sT0))
sexpr(sT0, [(sK0, 1024)])
A("v_add_u32 %s, %s, v14" % (v(gOut), sT0))
sexpr(sT0, [(sK0, 272), (sK1, 128)], XOP)
vexpr(gXlds, [(13, 2)], sT0)
vexpr(gQrd, [(8, 272), (2, 16)], None, QOP)
sexpr(sT0, [(sWave, 2048)], AP)
A("v_add_u32 %s, %s, v3" % (v(gApw), sT0))
sexpr(sT0, [(sWave, 8)], ML)
vexpr(gMlw, [(8, 64)], sT0)
stamp("G", 9)
if P.get("KVWAIT"):
    A("s_waitcnt vmcnt(%d)" % N_AFTER_K)
    stamp("G", 7)
    A("s_waitcnt vmcnt(%d)" % N_AFTER_V)
    stamp("G", 8)
    A("s_waitcnt vmcnt(0)")
    stamp("G", 14)
if P.get("QLATE"):
    A("s_barrier")
A("s_branch G_ENTRY")

A.label("G_LOOP")
A("s_barrier")
A.label("G_ENTRY")
A("s_barrier")
stamp("G")
for t in range(4):
    A("ds_read_b128 %s, %s offset:%d" % (v(QR + 4 * t, 4), v(gQrd), 64 * t))
A("s_waitcnt vmcnt(%d)" % N_AFTER_K)
stamp("G")
S0, S1 = SR, SR + 4
for t in range(4):
    A("s_waitcnt lgkmcnt(%d)" % (3 - t))
    for tau in range(2):
        d = v(SR + 4 * tau, 4)
        A("%s %s, %s, %s, %s" % (MFMA, d, v(KR + 4 * (4 * tau + t), 4), v(QR + 4 * t, 4), "0" if t == 0 else d))
aM, aT, aL, aMc = 136, 137, 138, 139
PR = 140
PM = QR
A("v_max3_f32 %s, %s, %s, %s" % (v(aM), v(S0), v(S0 + 1), v(S0 + 2)))
A("v_max3_f32 %s, %s, %s, %s" % (v(aT), v(S1), v(S1 + 1), v(S1 + 2)))
A("v_max3_f32 %s, %s, %s, %s" % (v(aM), v(aM), v(S0 + 3), v(S1 + 3)))
A("v_max_f32 %s, %s, %s" % (v(aM), v(aM), v(aT)))
g_allreduce("v_max_f32", aM, aT)
A("v_mul_f32 %s, %s, %s" % (v(aMc), sC, v(aM)))
for i in range(8):
    A("v_fma_f32 %s, %s, %s, -%s" % (v(SR + i), v(SR + i), sC, v(aMc)))
for i in range(8):
    A("v_exp_f32 %s, %s" % (v(SR + i), v(SR + i)))
for p in range(4):
    A("v_cvt_pk_bf16_f32 %s, %s, %s" % (v(PR + p), v(SR + 2 * p), v(SR + 2 * p + 1)))
for q in range(4):
    for p in range(4):
        A("v_cndmask_b32 %s, 0, %s, %s" % (v(PM + 4 * q + p), v(PR + p), mQ[q]))
lab = if_layer0()
A("s_waitcnt vmcnt(%d)" % N_AFTER_V)
stamp("G")
for i in range(8):
    for p in range(4):
        A("v_perm_b32 %s, %s, %s, %s" % (v(VF + 4 * i + p), v(VR + 4 * (2 * p + 1) + (i >> 1)), v(VR + 4 * (2 * p) + (i >> 1)),
                                         sPermHi if (i & 1) else sPermLo))
A.label(lab)
D0 = 140
for q in range(4):
    for a in range(2):
        d = v(D0 + 4 * a, 4)
        A("%s %s, %s, %s, %s" % (MFMA, d, v(VF + 4 * (4 * a + q), 4), v(PM + 4 * q, 4), "0" if q == 0 else d))
A("v_add_f32 %s, %s, %s" % (v(S0), v(S0), v(S0 + 1)))
A("v_add_f32 %s, %s, %s" % (v(S0 + 2), v(S0 + 2), v(S0 + 3)))
A("v_add_f32 %s, %s, %s" % (v(S1), v(S1), v(S1 + 1)))
A("v_add_f32 %s, %s, %s" % (v(S1 + 2), v(S1 + 2), v(S1 + 3)))
A("v_add_f32 %s, %s, %s" % (v(S0), v(S0), v(S0 + 2)))
A("v_add_f32 %s, %s, %s" % (v(S1), v(S1), v(S1 + 2)))
A("v_add_f32 %s, %s, %s" % (v(aT), v(S0), v(S1)))
g_allreduce("v_add_f32", aT, aL)
A("v_mov_b32 %s, %s" % (v(aM), v(aMc)))
A("ds_write_b64 %s, %s" % (v(gMlw), v(aM, 2)))
A("ds_write_b128 %s, %s" % (v(gApw), v(D0, 4)))
A("ds_write_b128 %s, %s offset:1024" % (v(gApw), v(D0 + 4, 4)))
A("s_waitcnt lgkmcnt(0)")
A("s_barrier")

a0, b0, c0 = GS, GS + 4, GS + 8
r0, r1_, r2, r3 = GS + 12, GS + 13, GS + 14, GS + 15


def add_ab():
    for e in range(4):
        A("v_add_f32 %s, %s, %s" % (v(a0 + e), v(a0 + e), v(b0 + e)))


lab = if_layer0()
A("s_mul_i32 %s, %s, %d" % (sT0, sHi, 16 * 896))
A("s_add_u32 %s, %s, %d" % (sT0, sT0, E4 - E4C))
A("v_subrev_u32 %s, %s, %s" % (v(r3), sT0, v(gW2g)))
poll(["global_load_dwordx4 %s, %s, %s sc1" % (v(a0, 4), v(r3), pWJ),
      "global_load_dwordx4 %s, %s, %s offset:896 sc1" % (v(b0, 4), v(r3), pWJ)],
     [(a0 + e, b0 + e) for e in range(4)])
add_ab()
g_treduce(a0)
A("v_add_f32_dpp %s, %s, %s row_ror:8%s" % (v(gCs1), v(a0), v(a0), DPP))
A("v_lshlrev_b32 %s, 16, %s" % (v(gB1), v(gB1)))
A("v_lshlrev_b32 %s, 16, %s" % (v(gB2), v(gB2)))
A.label(lab)

sleep(P["D_O"])
poll(["global_load_dwordx4 %s, %s, %s sc1" % (v(c0, 4), v(gOml), pWJ),
      "global_load_dwordx4 %s, %s, %s sc1" % (v(a0, 4), v(gOg), pWJ),
      "global_load_dwordx4 %s, %s, %s offset:512 sc1" % (v(b0, 4), v(gOg), pWJ)],
     [(a0 + e, b0 + e) for e in range(4)] + [(c0, c0 + 1), (c0 + 2, c0 + 3)])
stamp("G")
A("ds_read_u16 %s, %s" % (v(r3), v(gW1x)))
A("v_max_f32 %s, %s, %s" % (v(r0), v(c0), v(c0 + 2)))
g_allreduce("v_max_f32", r0, r1_)
A("v_sub_f32 %s, %s, %s" % (v(c0), v(c0), v(r0)))
A("v_sub_f32 %s, %s, %s" % (v(c0 + 2), v(c0 + 2), v(r0)))
A("v_exp_f32 %s, %s" % (v(c0), v(c0)))
A("v_exp_f32 %s, %s" % (v(c0 + 2), v(c0 + 2)))
A("v_mul_f32 %s, %s, %s" % (v(r1_), v(c0), v(c0 + 1)))
A("v_fmac_f32 %s, %s, %s" % (v(r1_), v(c0 + 2), v(c0 + 3)))
for e in range(4):
    A("v_mul_f32 %s, %s, %s" % (v(a0 + e), v(c0), v(a0 + e)))
for e in range(4):
    A("v_fmac_f32 %s, %s, %s" % (v(a0 + e), v(c0 + 2), v(b0 + e)))
g_allreduce("v_add_f32", r1_, r2)
g_treduce(a0)
A("v_rcp_f32 %s, %s" % (v(r1_), v(r1_)))
A("v_mul_f32 %s, %s, %s" % (v(r0), v(a0), v(r1_)))
A("v_cvt_pk_bf16_f32 %s, %s, %s" % (v(r0), v(r0), v(r0)))
A("ds_write_b16 %s, %s" % (v(gOlds), v(r0)))
A("s_waitcnt lgkmcnt(0)")
A("s_barrier")

A("v_lshlrev_b32 %s, 16, %s" % (v(r3), v(r3)))
sleep(P["D_W1"])
poll(["global_load_dwordx4 %s, %s, %s sc1" % (v(a0, 4), v(gW1g), pWL),
      "global_load_dwordx4 %s, %s, %s offset:512 sc1" % (v(b0, 4), v(gW1g), pWL)],
     [(a0 + e, b0 + e) for e in range(4)])
stamp("G")
add_ab()
g_treduce(a0)
A("v_add_f32_dpp %s, %s, %s row_ror:4%s" % (v(a0), v(a0), v(a0), DPP))
A("v_add_f32_dpp %s, %s, %s row_ror:8%s" % (v(a0), v(a0), v(a0), DPP))
A("v_add_f32 %s, %s, %s" % (v(r0), v(a0), v(r3)))
A("v_cvt_pk_bf16_f32 %s, %s, %s" % (v(r0), v(r0), v(r0)))
A("ds_write_b16 %s, %s" % (v(gW1lds), v(r0)))
A("s_waitcnt lgkmcnt(0)")
A("s_barrier")

A("s_cmp_eq_u32 %s, 7" % sWave)
A("s_cbranch_scc1 G_W2_SKIP")
sleep(P["D_W2"])
poll(["global_load_dwordx2 %s, %s, %s sc1" % (v(c0, 2), v(gW2s), pWJ),
      "global_load_dwordx4 %s, %s, %s sc1" % (v(a0, 4), v(gW2g), pWJ),
      "global_load_dwordx4 %s, %s, %s offset:896 sc1" % (v(b0, 4), v(gW2g), pWJ)],
     [(a0 + e, b0 + e) for e in range(4)] + [(c0, c0 + 1)])
stamp("G")
for i, m in enumerate((X1, X2, HM, RM)):
    A("v_add_f32_dpp %s, %s, %s %s" % (v(c0), v(c0), v(c0), m))
    A("v_add_f32_dpp %s, %s, %s %s" % (v(c0 + 1), v(c0 + 1), v(c0 + 1), m))
    A("v_add_f32 %s, %s, %s" % (v(a0 + i), v(a0 + i), v(b0 + i)))
A("v_mul_f32 %s, %s, %s" % (v(c0), f32(1 / 512), v(c0)))
A("v_mul_f32 %s, %s, %s" % (v(c0 + 1), f32(1 / 512), v(c0 + 1)))
g_treduce(a0)
A("v_fma_f32 %s, -%s, %s, %s" % (v(c0 + 1), v(c0), v(c0), v(c0 + 1)))
A("v_max_f32 %s, 0, %s" % (v(c0 + 1), v(c0 + 1)))
A("v_add_f32_dpp %s, %s, %s row_ror:8%s" % (v(r0), v(a0), v(a0), DPP))
A("v_add_f32 %s, %s, %s" % (v(c0 + 2), f32(1e-5), v(c0 + 1)))
A("v_rcp_f32 %s, %s" % (v(c0 + 3), v(c0 + 2)))
A("v_fma_f32 %s, -%s, %s, %s" % (v(r0), v(c0), v(gCs1), v(r0)))
A("v_mul_f32 %s, %s, %s" % (v(c0 + 3), v(c0 + 1), v(c0 + 3)))
A("v_add_f32 %s, %s, %s" % (v(c0 + 3), f32(1e-5), v(c0 + 3)))
A("v_mul_f32 %s, %s, %s" % (v(c0 + 2), v(c0 + 2), v(c0 + 3)))
A("v_rsq_f32 %s, %s" % (v(c0 + 2), v(c0 + 2)))
A("v_fma_f32 %s, %s, %s, %s" % (v(r0), v(r0), v(c0 + 2), v(gB1)))
k0 = -2 * math.log2(math.e) * math.sqrt(2 / math.pi)
A("v_mul_f32 %s, %s, %s" % (v(r1_), v(r0), v(r0)))
A("v_mov_b32 %s, %s" % (v(r2), f32(k0)))
A("v_fmac_f32 %s, %s, %s" % (v(r2), f32(k0 * 0.044715), v(r1_)))
A("v_mul_f32 %s, %s, %s" % (v(r2), v(r2), v(r0)))
A("v_exp_f32 %s, %s" % (v(r2), v(r2)))
A("v_add_f32 %s, 1.0, %s" % (v(r2), v(r2)))
A("v_rcp_f32 %s, %s" % (v(r2), v(r2)))
A("v_mul_f32 %s, %s, %s" % (v(r0), v(r0), v(r2)))
A("v_cvt_pk_bf16_f32 %s, %s, %s" % (v(r0), v(r0), v(r0)))
A("ds_write_b16 %s, %s" % (v(gW2lds), v(r0)))
A("s_waitcnt lgkmcnt(0)")
A.label("G_W2_SKIP")
A("s_barrier")

A("s_cmp_eq_u32 %s, 0" % sL)
A("s_cbranch_scc1 G_X_GO")
A("s_cmp_lg_u32 %s, 0" % sLo)
A("s_cbranch_scc1 L_EXIT")
A("s_cmp_lg_u32 %s, %s" % (sWave, sJ))
A("s_cbranch_scc1 L_EXIT")
A.label("G_X_GO")
sleep(P["D_X"])


def xpre():
    A("v_lshlrev_b32 %s, 16, %s" % (v(c0), v(c0)))


poll(["global_load_ushort %s, %s, %s sc1" % (v(c0), v(gXr), pWJ),
      "global_load_dwordx4 %s, %s, %s sc1" % (v(a0, 4), v(gXg), pWL),
      "global_load_dwordx4 %s, %s, %s offset:256 sc1" % (v(b0, 4), v(gXg), pWL)],
     [(a0 + e, b0 + e) for e in range(4)] + [(c0, c0)], pre=xpre)
stamp("G")
add_ab()
A("v_add_f32 %s, %s, %s" % (v(c0), v(c0), v(gB2)))
g_treduce(a0)
A("v_add_f32 %s, %s, %s" % (v(r0), v(a0), v(c0)))
A("v_cvt_pk_bf16_f32 %s, %s, %s" % (v(r0), v(r0), v(r0)))
A("s_cmp_lg_u32 %s, 0" % sL)
A("s_cbranch_scc1 G_FINAL")
A("ds_write_b16 %s, %s" % (v(gXlds), v(r0)))
A("s_mov_b32 %s, 1" % sL)
padd(pWL, pWL, LSTR)
padd(pWJ, pWJ, LSTR)
A("s_waitcnt lgkmcnt(0)")
A("s_branch G_LOOP")
A.label("G_FINAL")
sleep(P.get("ENDSLEEP", 0))
A("global_store_short %s, %s, %s" % (v(gOut), v(r0), pOUT))
A.label("L_EXIT")
stamp_dump()
A.label("L_END")
A("s_endpgm")

A.fix_hazards()

hdr = open("cdna_kernels/%s.s.ref" % NAME).read().split("; Override launch")[0]
out = hdr + """; @launch grid=(256,1,1) block=(768,1,1) lds=%d
.amdgcn_target "amdgcn-amd-amdhsa--gfx950"
.text
.globl %s_kernel
.p2align 8
.type %s_kernel,@function
%s_kernel:
%s
    ; pad the code section so that the 12 KB code prefetch stays inside it
    .fill ((12288 + 256 - (. - %s_kernel)) / 4), 4, 0xbf810000
.section .rodata,"a"
.p2align 6
.amdhsa_kernel %s_kernel
  .amdhsa_next_free_vgpr 168
  .amdhsa_next_free_sgpr 96
  .amdhsa_accum_offset 168
  .amdhsa_group_segment_fixed_size 0
  .amdhsa_kernarg_size 104
  .amdhsa_user_sgpr_count 2
  .amdhsa_user_sgpr_kernarg_segment_ptr 1
  .amdhsa_system_sgpr_workgroup_id_x 1
.end_amdhsa_kernel
""" % (LDS_TOTAL, NAME, NAME, NAME, A.text(), NAME, NAME)
open(sys.argv[1], "w").write(out)
print("wrote", sys.argv[1], "instructions:", sum(1 for x in A.ins if not x.label), "LDS", LDS_TOTAL)
```

```python
import sys, math, struct, os
from asmlib import Asm

NAME = "interleave_layers__sliding_block_cached__mixer_channel_mlp__decode"

P = dict(B0POS=3, W=64, D_O=0, D_W1=12, D_W2=0, D_X=12, D_A=0, NT="nt", STAMP=0, FORCE_SAFE=0, PREF=1)
for a in sys.argv[2:]:
    k, v_ = a.split("=")
    P[k] = int(v_) if v_.lstrip("-").isdigit() else v_


def f32(x):
    return "0x%08x" % struct.unpack("<I", struct.pack("<f", x))[0]


LSTR = 0x200000
JSTR = 196608
E1, E1S, E4C = 0, 40960, 45056
E2, E4, E4R, E2S, E4S = 65536, 131072, 188416, 192512, 193536
E3, E5 = 0x180000, 0x1C0000
SENT = 0x7F817F81
LW_Q, LW_O, LW_2, LW_1 = 0, 16384, 32768, 61440
XOP = 68608
QOP = XOP + 5 * 272
OOP = QOP + 4 * 272
X1OP = OOP + 4 * 272
HOP = X1OP + 5 * 80
ML = HOP + 448
FLG = ML + 256
AP = (FLG + 16 + 1023) // 1024 * 1024
LDS_TOTAL = AP + 16384
assert all(x % 16 == 0 for x in (XOP, QOP, OOP, X1OP, HOP, ML))

sWave, sJ, sS, sHi, sLo, sR1, sC1, sL, sBud = "s3", "s4", "s5", "s6", "s7", "s8", "s9", "s10", "s11"
sT0, sT1, sT2, sT3 = "s12", "s13", "s14", "s15"
pX, pK, pV, pWQ, pWO, pW1, pB1, pW2, pB2, pOUT, pDBG, pWS = (
    "s[16:17]", "s[18:19]", "s[20:21]", "s[22:23]", "s[24:25]", "s[28:29]", "s[30:31]", "s[32:33]", "s[34:35]",
    "s[36:37]", "s[38:39]", "s[40:41]")
pWL = "s[42:43]"
sFast = "s44"
sU = "s45"
mQ = ["s[50:51]", "s[52:53]", "s[54:55]", "s[56:57]"]
sPermLo, sPermHi = "s58", "s59"
sC = "s60"
pT = "s[62:63]"
pT2 = "s[64:65]"
sXcc = "s66"
sK0, sK1, sK2 = "s67", "s68", "s69"
mT = "s[70:71]"
pWJ = "s[72:73]"
pPC = "s[46:47]"

A = Asm()
NT = (" " + P["NT"]) if P["NT"] else ""
STAMP = P["STAMP"]


def v(n, cnt=1):
    return "v%d" % n if cnt == 1 else "v[%d:%d]" % (n, n + cnt - 1)


def smov64(pair, val):
    lo = int(pair[2:].split(":")[0])
    A("s_mov_b32 s%d, 0x%08x" % (lo, val & 0xFFFFFFFF))
    A("s_mov_b32 s%d, 0x%08x" % (lo + 1, val >> 32))


def exec_lines(val):
    if val == -1:
        return ["s_mov_b64 exec, -1"]
    if 0 <= val <= 64:
        return ["s_mov_b64 exec, %d" % val]
    return ["s_mov_b32 exec_lo, 0x%08x" % (val & 0xFFFFFFFF), "s_mov_b32 exec_hi, 0x%08x" % (val >> 32)]


def set_exec(val):
    for l in exec_lines(val):
        A(l)


def padd(dst, src, soff):
    d = int(dst[2:].split(":")[0]); s = int(src[2:].split(":")[0])
    A("s_add_u32 s%d, s%d, %s" % (d, s, soff))
    A("s_addc_u32 s%d, s%d, 0" % (d + 1, s + 1))


def sexpr(dst, terms, const=0, tmp=sT3):
    first = True
    for (r, m) in terms:
        t = dst if first else tmp
        if m == 1:
            if first:
                A("s_mov_b32 %s, %s" % (dst, r))
            else:
                A("s_add_u32 %s, %s, %s" % (dst, dst, r))
            first = False
            continue
        if m & (m - 1) == 0:
            A("s_lshl_b32 %s, %s, %d" % (t, r, m.bit_length() - 1))
        else:
            A("s_mul_i32 %s, %s, %d" % (t, r, m))
        if not first:
            A("s_add_u32 %s, %s, %s" % (dst, dst, t))
        first = False
    if first:
        A("s_mov_b32 %s, %d" % (dst, const))
    elif const:
        A("s_add_u32 %s, %s, %d" % (dst, dst, const))


def vexpr(dst, terms, sreg=None, const=0):
    first = True
    for (r, m) in terms:
        if first:
            if m == 1:
                A("v_mov_b32 %s, %s" % (v(dst), v(r)))
            elif m & (m - 1) == 0:
                A("v_lshlrev_b32 %s, %d, %s" % (v(dst), m.bit_length() - 1, v(r)))
            else:
                A("v_mul_u32_u24 %s, %d, %s" % (v(dst), m, v(r)))
            first = False
        else:
            assert m & (m - 1) == 0, "non power of two term must come first"
            A("v_lshl_add_u32 %s, %s, %d, %s" % (v(dst), v(r), m.bit_length() - 1, v(dst)))
    if sreg:
        A("v_add_u32 %s, %s, %s" % (v(dst), sreg, v(dst)))
    if const:
        A("v_add_u32 %s, %d, %s" % (v(dst), const, v(dst)))


DPP = " row_mask:0xf bank_mask:0xf"
X1 = "quad_perm:[1,0,3,2]" + DPP
X2 = "quad_perm:[2,3,0,1]" + DPP
HM = "row_half_mirror" + DPP
RM = "row_mirror" + DPP
_lab = [0]


def newlabel(p="L"):
    _lab[0] += 1
    return "%s_%d" % (p, _lab[0])


def sleep(n):
    while n > 0:
        k = min(n, 127)
        A("s_sleep %d" % k)
        n -= k


def g_treduce(a):
    A("v_permlane16_swap_b32 %s, %s" % (v(a), v(a + 1)))
    A("v_permlane16_swap_b32 %s, %s" % (v(a + 2), v(a + 3)))
    A("v_add_f32 %s, %s, %s" % (v(a), v(a), v(a + 1)))
    A("v_add_f32 %s, %s, %s" % (v(a + 2), v(a + 2), v(a + 3)))
    A("v_permlane32_swap_b32 %s, %s" % (v(a), v(a + 2)))
    A("v_add_f32 %s, %s, %s" % (v(a), v(a), v(a + 2)))


def g_allreduce(op, r, t):
    for sw in ("v_permlane16_swap_b32", "v_permlane32_swap_b32"):
        A("v_mov_b32 %s, %s" % (v(t), v(r)))
        A("%s %s, %s" % (sw, v(r), v(t)))
        A("%s %s, %s, %s" % (op, v(r), v(r), v(t)))


def budget_loop(top):
    A("s_sub_u32 %s, %s, 1" % (sBud, sBud))
    A("s_cbranch_scc0 %s" % top)
    A("s_mov_b32 %s, 0" % sBud)


def poll(loads, check_pairs, pre=None):
    top, done = newlabel("POLL"), newlabel("PDONE")
    A.label(top)
    for l in loads:
        A(l)
    A("s_waitcnt vmcnt(0)")
    if pre:
        pre()
    first = True
    for (a, b) in check_pairs:
        if first:
            A("v_cmp_u_f32 vcc, %s, %s" % (v(a), v(b)))
            first = False
        else:
            A("v_cmp_u_f32 %s, %s, %s" % (mT, v(a), v(b)))
            A("s_or_b64 vcc, vcc, %s" % mT)
    A("s_cbranch_vccz %s" % done)
    budget_loop(top)
    A.label(done)


def store_intra(insn):
    ls, le = newlabel("SAFE"), newlabel("SEND")
    A("s_cmp_eq_u32 %s, 0" % sFast)
    A("s_cbranch_scc1 %s" % ls)
    for i in insn:
        A(i)
    A("s_branch %s" % le)
    A.label(ls)
    for i in insn:
        A(i + (" sc1" if i.startswith("global_store") else ""))
    A.label(le)


_st = {"G": 0, "S": 0}


def stamp(kind, idx=None):
    if idx is None:
        n = _st[kind]; _st[kind] += 1
    else:
        n = idx
    if "ECHO" in P and kind == "G" and P["ECHO"] % 100 == n:
        lab = newlabel("ECHO")
        A("s_cmp_lg_u32 %s, %d" % (sL, P["ECHO"] // 100))
        A("s_cbranch_scc1 %s" % lab)
        A("s_waitcnt lgkmcnt(0)")
        A("s_memrealtime s[80:81]")
        A("s_waitcnt lgkmcnt(0)")
        A.label(lab)
    if not STAMP:
        return
    A("s_waitcnt lgkmcnt(0)")
    A("s_memrealtime s[74:75]")
    A("s_lshl_b32 s76, %s, 4" % sL)
    A("s_add_u32 m0, s76, %d" % n)
    A("s_waitcnt lgkmcnt(0)")
    A("v_writelane_b32 v15, s74, m0")


def stamp_init():
    if STAMP:
        A("v_mov_b32 v15, 0")
        A("v_writelane_b32 v15, s78, 15")


def stamp_dump():
    if not STAMP:
        return
    A("s_mul_i32 s76, s2, 12")
    A("s_add_u32 s76, s76, %s" % sWave)
    A("s_lshl_b32 s76, s76, 8")
    A("s_add_u32 s76, s76, 0x800000")
    A("v_lshlrev_b32 v13, 2, v0")
    A("v_add_u32 v13, s76, v13")
    A("global_store_dword v13, v15, %s" % pWS)


def if_layer0():
    lab = newlabel("NOTL0")
    A("s_cmp_lg_u32 %s, 0" % sL)
    A("s_cbranch_scc1 %s" % lab)
    return lab


def ssync(k):
    top = newlabel("SSY")
    A("v_mov_b32 v5, %d" % (FLG + 4 + 4 * k))
    A("v_mov_b32 v6, 1")
    set_exec(1)
    A("ds_add_u32 v5, v6")
    set_exec(-1)
    A.label(top)
    A("ds_read_b32 v6, v5")
    A("s_waitcnt lgkmcnt(0)")
    A("v_readfirstlane_b32 %s, v6" % sT0)
    A("s_cmp_eq_u32 %s, 4" % sT0)
    done = newlabel("SSD")
    A("s_cbranch_scc1 %s" % done)
    budget_loop(top)
    A.label(done)


MFMA = "v_mfma_f32_16x16x32_bf16"
A("s_getpc_b64 %s" % pPC)
A("s_cmp_ge_u32 s2, 256")
A("s_cbranch_scc1 L_END")
if STAMP or "ECHO" in P:
    A("s_memrealtime s[78:79]")
A("s_load_dwordx16 s[16:31], s[0:1], 0")
A("s_load_dwordx8 s[32:39], s[0:1], 64")
A("s_load_dwordx2 s[40:41], s[0:1], 96")
if P["PREF"]:
    A("v_lshlrev_b32 v3, 4, v0")
    A("global_load_dwordx4 v[140:143], v3, %s offset:-4" % pPC)
A("v_lshrrev_b32 v1, 6, v0")
A("v_and_b32 v0, 63, v0")
A("v_readfirstlane_b32 %s, v1" % sWave)
A("s_and_b32 %s, s2, 7" % sJ)
A("s_lshr_b32 %s, s2, 3" % sS)
A("s_lshr_b32 %s, s2, 6" % sHi)
A("s_and_b32 %s, %s, 7" % (sLo, sS))
A("s_lshr_b32 %s, s2, 4" % sR1)
A("s_and_b32 %s, %s, 1" % (sC1, sS))
A("s_mov_b32 %s, 0" % sL)
A("s_mov_b32 %s, 400000" % sBud)
A("v_and_b32 v1, 15, v0")
A("v_lshrrev_b32 v2, 4, v0")
A("v_lshlrev_b32 v3, 4, v0")
A("s_mov_b32 %s, %s" % (sU, sWave))
A("s_sub_u32 %s, %s, 4" % (sWave, sWave))
A("s_cbranch_scc0 L_G")

WQ, WO, W1R, W2R, XR, DR, SS = 16, 32, 48, 56, 84, 112, 120
(sXa, sXb, sOrd, sX1a, sX1b, sHrd, sE1w, sE1sw, sAg, sAst, sQw, sCq0, sCq1, sCrd, sMlrd, sE2w, sE3w, sE4w, sE4sw, sE4rw, sE5w,
 sTr, sClr, sTr1) = range(144, 168)
SN = 8
sClr0 = 139
A("s_add_u32 %s, %s, 8" % (sWave, sU))
A("v_mov_b32 v4, %d" % FLG)
A("v_mov_b32 v6, 0")
A("v_mov_b32 v7, 0")
A("ds_write_b64 v4, v[6:7]")
A("ds_write_b64 v4, v[6:7] offset:8")
for i in range(4):
    A("v_mov_b32 %s, 0x%08x" % (v(SN + i), SENT))
sexpr(sT0, [(sS, 6144), (sU, 1536)])
A("v_add_u32 %s, %s, v3" % (v(sClr), sT0))
A("s_and_b32 %s, %s, 1" % (sK0, sU))
A("s_lshr_b32 %s, %s, 1" % (sK1, sU))
sexpr(sT0, [(sS, 2048)])
sexpr(sT1, [(sS, 4096), (sK1, 2048)], 65536)
A("s_cmp_eq_u32 %s, 0" % sU)
A("s_cselect_b32 %s, %s, %s" % (sT0, sT0, sT1))
A("v_add_u32 %s, %s, v3" % (v(sClr0), sT0))
sexpr(sT0, [("s2", 1280)], E3)
A("v_add_u32 v5, %s, v3" % sT0)
A("s_mul_i32 %s, %s, %d" % (sT0, sJ, JSTR))
A("v_lshrrev_b32 v13, 3, v0")
A("v_and_b32 v14, 7, v0")
vexpr(SS, [(13, 8192), (14, 16)])
sexpr(sT1, [(sHi, 128 * 8192), (sU, 32 * 8192), (sJ, 1024), (sLo, 128)])
sexpr(sT2, [(sU, 1024), (sHi, 256)])
vexpr(SS + 1, [(0, 4)], sT2)
A("s_waitcnt lgkmcnt(0)")
padd(pWJ, pWS, sT0)
padd(pT, pWQ, sT1)
A("s_cmp_eq_u32 %s, 3" % sU)
A("s_cbranch_scc1 S_CLR3")
A("global_store_dwordx4 %s, %s, %s" % (v(sClr0), v(SN, 4), pWJ))
A("global_store_dwordx4 %s, %s, %s offset:1024" % (v(sClr0), v(SN, 4), pWJ))
A("s_branch S_CLRD")
A.label("S_CLR3")
padd(pT2, pWS, LSTR)
A("global_store_dwordx4 v5, %s, %s sc1" % (v(SN, 4), pWS))
A("global_store_dwordx4 v5, %s, %s sc1" % (v(SN, 4), pT2))
set_exec(0xFFFF)
A("global_store_dwordx4 v5, %s, %s offset:1024 sc1" % (v(SN, 4), pWS))
A("global_store_dwordx4 v5, %s, %s offset:1024 sc1" % (v(SN, 4), pT2))
set_exec(-1)
A.label("S_CLRD")
A("global_load_dword %s, %s, %s" % (v(SS + 2), v(SS + 1), pX))
A("s_lshl_b32 %s, %s, 12" % (sT1, sU))
for i in range(4):
    A("s_add_u32 m0, %s, %d" % (sT1, LW_Q + 1024 * i))
    A("global_load_lds_dwordx4 %s, %s%s" % (v(SS), pT, NT))
    if i < 3:
        padd(pT, pT, 8 * 8192)
sexpr(sT0, [(sR1, 32 * 3584), (sJ, 448), (sC1, 224)])
padd(pT, pW1, sT0)
for k in range(2):
    A("s_lshl_b32 %s, %s, 1" % (sT1, sU))
    if k:
        A("s_add_u32 %s, %s, 1" % (sT1, sT1))
        A("s_min_u32 %s, %s, 6" % (sT1, sT1))
    A("s_lshl_b32 %s, %s, 6" % (sT0, sT1))
    A("v_add_u32 v12, %s, v0" % sT0)
    A("v_mul_u32_u24 v13, 4682, v12")
    A("v_lshrrev_b32 v13, 16, v13")
    A("v_mul_u32_u24 v14, 14, v13")
    A("v_sub_u32 v12, v12, v14")
    A("v_mul_u32_u24 v13, 3584, v13")
    A("v_lshl_add_u32 v12, v12, 4, v13")
    A("s_lshl_b32 %s, %s, 10" % (sT0, sT1))
    A("s_add_u32 m0, %s, %d" % (sT0, LW_1))
    A("global_load_lds_dwordx4 v12, %s%s" % (pT, NT))
for n in range(448):
    assert (n * 4682) >> 16 == n // 14
A("s_waitcnt lgkmcnt(0)")
A("s_barrier")
stamp_init()
stamp("S", 9)
A("s_getreg_b32 %s, hwreg(HW_REG_XCC_ID)" % sXcc)
A("s_and_b32 %s, %s, 7" % (sXcc, sXcc))
A("s_lshl_b32 %s, %s, 5" % (sT1, sJ))
A("v_mov_b32 v4, %s" % sT1)
A("s_cmp_lg_u32 %s, 0" % sU)
A("s_cbranch_scc1 S_NOARR")
A("s_mul_i32 %s, %s, 6" % (sT0, sXcc))
A("s_mov_b32 %s, 1" % sT2)
A("s_mov_b32 %s, 0" % sT3)
A("s_lshl_b64 s[14:15], s[14:15], %s" % sT0)
A("s_or_b32 %s, %s, 0x01000000" % (sT3, sT3))
A("v_mov_b32 v6, %s" % sT2)
A("v_mov_b32 v7, %s" % sT3)
A("s_waitcnt vmcnt(7)")
stamp("S", 10)
set_exec(1)
A("global_atomic_add_x2 v4, v[6:7], %s" % pDBG)
set_exec(-1)
A.label("S_NOARR")
A("s_mov_b32 s42, s40")
A("s_mov_b32 s43, s41")
A("s_mov_b32 %s, 0" % sFast)
A("v_mov_b32 v12, 0x3f803f80")
vexpr(13, [(0, 4)], None, XOP + 4 * 272)
A("ds_write_b32 v13, v12")
vexpr(13, [(1, 4)], None, X1OP + 4 * 80)
A("ds_write_b32 v13, v12")
A("v_lshrrev_b32 v12, 2, v1")
A("v_min_u32 v13, 4, v1")
A("v_and_b32 v14, 3, v1")
vexpr(sXa, [(12, 272), (2, 16)], None, XOP)
sexpr(sT0, [(sU, 64)], XOP)
vexpr(sXb, [(13, 272), (2, 16)], sT0)
vexpr(sOrd, [(12, 272), (2, 16)], None, OOP)
vexpr(sX1a, [(12, 80), (2, 16)], None, X1OP)
vexpr(sX1b, [(13, 80), (2, 16)], None, X1OP)
vexpr(sHrd, [(2, 16)], None, HOP)
sexpr(sT0, [(sHi, 2048), (sLo, 256), (sU, 64)], E1)
vexpr(sE1w, [(2, 8192), (1, 4)], sT0)
vexpr(SS + 3, [(2, 128)])
A("v_lshlrev_b32 %s, 2, v12" % v(SS + 4))
A("v_sub_u32 %s, %s, %s" % (v(SS + 3), v(SS + 3), v(SS + 4)))
sexpr(sT0, [(sLo, 512), (sHi, 32), (sU, 8)], E1S + 4)
A("v_add_u32 %s, %s, %s" % (v(sE1sw), sT0, v(SS + 3)))
sexpr(sT0, [(sR1, 8)], E4S + 4)
A("v_add_u32 %s, %s, %s" % (v(sE4sw), sT0, v(SS + 3)))
sexpr(sT0, [(sR1, 64)], E4R)
vexpr(sE4rw, [(14, 1024), (2, 16)], sT0)
A("v_and_b32 %s, 31, v0" % v(SS + 3))
A("v_lshrrev_b32 %s, 5, v0" % v(SS + 4))
sexpr(sT0, [(sHi, 8192), (sU, 512)], E1)
vexpr(sAg, [(SS + 4, 4096), (SS + 3, 16)], sT0)
sexpr(sT0, [(sLo, 512), (sHi, 128)], E1S)
vexpr(sAst, [(1, 8)], sT0)
sexpr(sT0, [(sU, 272)], QOP)
vexpr(sQw, [(SS + 3, 8), (SS + 4, 4)], sT0)
sexpr(sT0, [(sU, 272)], XOP)
vexpr(SS + 1, [(0, 4)], sT0)
A("v_bfe_u32 %s, v0, 4, 1" % v(SS + 5))
A("v_bfe_u32 %s, v0, 2, 2" % v(SS + 6))
A("v_and_b32 %s, 3, v0" % v(SS + 7))
sexpr(sT0, [(sU, 16)], AP)
vexpr(sCrd, [(SS + 4, 8192), (SS + 5, 1024), (SS + 6, 256), (SS + 7, 64)], sT0)
sexpr(sT0, [(sU, 64)], ML)
vexpr(sMlrd, [(SS + 4, 32)], sT0)
sexpr(sT0, [(sU, 32 * 512), (sS, 512)], E2)
vexpr(sE2w, [(0, 8)], sT0)
sexpr(sC, [(sU, 256), (sS, 8)], E2S)
sexpr(sT0, [(sLo, 32768), (sK1, 16384), (sJ, 2048), (sHi, 512), (sK0, 256)], E3)
vexpr(sE3w, [(0, 4)], sT0)
sexpr(sT0, [(sR1, 896), (sC1, 448), (sU, 128)], E4)
vexpr(sE4w, [(2, 16 * 896), (1, 4)], sT0)
sexpr(sT0, [("s2", 256), (sU, 64)], E5)
vexpr(sE5w, [(1, 4)], sT0)
A("v_lshl_add_u32 %s, v2, 3, v12" % v(SS + 3))
sexpr(sT0, [(sU, 32)])
vexpr(sTr, [(SS + 3, 128), (14, 8)], sT0)
sexpr(sT0, [(sU, 64)])
vexpr(sTr1, [(SS + 3, 224), (14, 8)], sT0)
stamp("S", 11)
A("s_waitcnt vmcnt(0)")
stamp("S", 12)
A("ds_write_b32 %s, %s" % (v(SS + 1), v(SS + 2)))
A("s_waitcnt lgkmcnt(0)")

if P.get("QLATE"):
    A("s_barrier")
lab = "S_GBX"
A("v_mov_b32 v5, %d" % FLG)
A("s_cmp_lg_u32 %s, 0" % sU)
A("s_cbranch_scc1 S_GB_SKIP")
A.label("S_GB")
A("global_load_dwordx2 v[6:7], v4, %s sc1" % pDBG)
A("s_waitcnt vmcnt(0)")
A("v_readfirstlane_b32 %s, v6" % sT2)
A("v_readfirstlane_b32 %s, v7" % sT3)
A("s_lshr_b32 %s, %s, 24" % (sT0, sT3))
A("s_cmp_eq_u32 %s, 32" % sT0)
A("s_cbranch_scc1 S_GB_DONE")
A("s_sleep %d" % P.get("PSL", 8))
budget_loop("S_GB")
A.label("S_GB_DONE")
stamp("S", 13)
A("s_mul_i32 %s, %s, 6" % (sT0, sXcc))
A("s_lshr_b64 s[14:15], s[14:15], %s" % sT0)
A("s_and_b32 %s, %s, 63" % (sT2, sT2))
A("s_cmp_eq_u32 %s, 32" % sT2)
A("s_cselect_b32 %s, 1, 0" % sT0)
if P["FORCE_SAFE"]:
    A("s_mov_b32 %s, 0" % sT0)
A("v_mov_b32 v6, %s" % sT0)
A("ds_write_b32 v5, v6")
A("s_waitcnt lgkmcnt(0)")
A.label("S_GB_SKIP")
ssync(0)
A("s_cmp_lg_u32 %s, 1" % sU)
A("s_cbranch_scc1 S_NOARR2")
A("v_mov_b32 v5, 1")
set_exec(1)
A("global_atomic_add v4, v5, %s offset:8" % pDBG)
set_exec(-1)
A.label("S_NOARR2")
A("v_mov_b32 v5, %d" % FLG)
A("ds_read_b32 v6, v5")
A("s_waitcnt lgkmcnt(0)")
A("v_readfirstlane_b32 %s, v6" % sFast)
A("s_cmp_lg_u32 %s, 0" % sFast)
A("s_cbranch_scc1 %s" % lab)
A("global_store_dwordx4 %s, %s, %s sc1" % (v(sClr0), v(SN, 4), pWJ))
A("global_store_dwordx4 %s, %s, %s offset:1024 sc1" % (v(sClr0), v(SN, 4), pWJ))
A("v_mov_b32 v5, 1")
A("s_waitcnt vmcnt(0)")
set_exec(1)
A("global_atomic_add v4, v5, %s offset:16" % pDBG)
set_exec(-1)
A.label("S_GB2")
A("global_load_dword v6, v4, %s offset:16 sc1" % pDBG)
A("s_waitcnt vmcnt(0)")
A("v_readfirstlane_b32 %s, v6" % sT0)
A("s_cmp_eq_u32 %s, 0x80" % sT0)
A("s_cbranch_scc1 %s" % lab)
A("s_sleep %d" % P.get("PSL", 8))
budget_loop("S_GB2")
A.label(lab)
A("s_branch S_ENTRY")
A.label("S_LOOP")
A("s_barrier")
A.label("S_ENTRY")
stamp("S")
for t in range(4):
    A("ds_read_b128 %s, %s offset:%d" % (v(XR + 4 * t, 4), v(sXa), 64 * t))
A("ds_read_b128 %s, %s" % (v(XR + 16, 4), v(sXb)))
A("s_lshl_b32 %s, %s, 6" % (sT0, sU))
A("v_add_u32 %s, %s, %s" % (v(SS), sT0, v(sXa)))
A("ds_read_b128 %s, %s" % (v(XR + 20, 4), v(SS)))
lab = if_layer0()
for t in range(4):
    for hh in range(2):
        A("ds_read_b64_tr_b16 %s, %s offset:%d" % (v(WQ + 4 * t + 2 * hh, 2), v(sTr), LW_Q + (32 * t + 4 * hh) * 128))
for tl in range(2):
    for hh in range(2):
        A("ds_read_b64_tr_b16 %s, %s offset:%d" % (v(W1R + 4 * tl + 2 * hh, 2), v(sTr1), LW_1 + 4 * hh * 224 + 32 * tl))
A("s_waitcnt lgkmcnt(0)")
A.label(lab)
for t in range(4):
    A("s_waitcnt lgkmcnt(%d)" % (5 - t))
    A("%s %s, %s, %s, %s" % (MFMA, v(DR, 4), v(XR + 4 * t, 4), v(WQ + 4 * t, 4), "0" if t == 0 else v(DR, 4)))
A("s_waitcnt lgkmcnt(0)")
A("%s %s, %s, %s, 0" % (MFMA, v(DR + 4, 4), v(XR + 20, 4), v(XR + 16, 4)))
stamp("S")
STM = 0x0018001400120011
store_intra(["global_store_dword %s, %s, %s" % (v(sE1w), v(DR), pWJ)] + exec_lines(STM) +
            ["global_store_dword %s, %s, %s" % (v(sE1sw), v(DR + 4), pWJ), "s_mov_b64 exec, -1"])
ga, gb, gc = SS, SS + 4, SS + 8


def half_treduce():
    A("v_permlane32_swap_b32 %s, %s" % (v(ga), v(ga + 2)))
    A("v_permlane32_swap_b32 %s, %s" % (v(ga + 1), v(ga + 3)))
    A("v_add_f32 %s, %s, %s" % (v(ga), v(ga), v(ga + 2)))
    A("v_add_f32 %s, %s, %s" % (v(ga + 1), v(ga + 1), v(ga + 3)))


lab = if_layer0()
for i in range(4):
    A("v_mov_b32 %s, 0x3f803f80" % v(XR + i))
for t in range(4):
    A("%s %s, %s, %s, %s" % (MFMA, v(DR, 4), v(XR, 4), v(WQ + 4 * t, 4), "0" if t == 0 else v(DR, 4)))
A("%s %s, %s, %s, 0" % (MFMA, v(DR + 4, 4), v(XR, 4), v(W1R, 4)))
A("%s %s, %s, %s, 0" % (MFMA, v(XR + 4, 4), v(XR, 4), v(W1R + 4, 4)))
A("v_add_u32 %s, %d, %s" % (v(gc), 4 * 8192, v(sE1w)))
A("v_add_u32 %s, %d, %s" % (v(gc + 1), (E4C - E4) & 0xFFFFFFFF, v(sE4w)))
A("s_cmp_eq_u32 %s, 3" % sU)
A("s_cselect_b32 %s, 0, 0xffff" % sT0)
store_intra(exec_lines(0xFFFF) +
            ["global_store_dword %s, %s, %s" % (v(gc), v(DR), pWJ),
             "global_store_dword %s, %s, %s" % (v(gc + 1), v(DR + 4), pWJ),
             "s_mov_b32 exec_lo, %s" % sT0,
             "global_store_dword %s, %s, %s offset:64" % (v(gc + 1), v(XR + 4), pWJ),
             "s_mov_b64 exec, -1"])
A("s_sub_u32 %s, 4, %s" % (sT0, sHi))
A("s_lshl_b32 %s, %s, 13" % (sT0, sT0))
A("v_add_u32 %s, %s, %s" % (v(gc + 2), sT0, v(sAg)))
AG = ["global_load_dwordx2 %s, %s, %s sc1" % (v(gc, 2), v(sAst), pWJ),
      "global_load_dwordx4 %s, %s, %s sc1" % (v(ga, 4), v(sAg), pWJ),
      "global_load_dwordx4 %s, %s, %s offset:2048 sc1" % (v(gb, 4), v(sAg), pWJ)]
AGC = [(ga + e, gb + e) for e in range(4)] + [(gc, gc + 1)]
poll(AG + ["global_load_dwordx4 %s, %s, %s sc1" % (v(XR, 4), v(gc + 2), pWJ),
           "global_load_dwordx4 %s, %s, %s offset:2048 sc1" % (v(XR + 4, 4), v(gc + 2), pWJ)],
     AGC + [(XR + e, XR + 4 + e) for e in range(4)])
for e in range(4):
    A("v_add_f32 %s, %s, %s" % (v(XR + e), v(XR + e), v(XR + 4 + e)))
A("v_permlane32_swap_b32 %s, %s" % (v(XR), v(XR + 2)))
A("v_permlane32_swap_b32 %s, %s" % (v(XR + 1), v(XR + 3)))
A("v_add_f32 %s, %s, %s" % (v(sCq0), v(XR), v(XR + 2)))
A("v_add_f32 %s, %s, %s" % (v(sCq1), v(XR + 1), v(XR + 3)))
A("s_branch S_AG_DONE")
A.label(lab)
sleep(P["D_A"])
poll(AG, AGC)
A.label("S_AG_DONE")
stamp("S")
for i, m in enumerate((X1, X2, HM, RM)):
    A("v_add_f32_dpp %s, %s, %s %s" % (v(gc), v(gc), v(gc), m))
    A("v_add_f32_dpp %s, %s, %s %s" % (v(gc + 1), v(gc + 1), v(gc + 1), m))
    A("v_add_f32 %s, %s, %s" % (v(ga + i), v(ga + i), v(gb + i)))
A("v_mul_f32 %s, %s, %s" % (v(gc), f32(1 / 512), v(gc)))
A("v_mul_f32 %s, %s, %s" % (v(gc + 1), f32(1 / 512), v(gc + 1)))
half_treduce()
A("v_fma_f32 %s, -%s, %s, %s" % (v(gc + 1), v(gc), v(gc), v(gc + 1)))
A("v_max_f32 %s, 0, %s" % (v(gc + 1), v(gc + 1)))
A("v_add_f32 %s, %s, %s" % (v(gc + 1), f32(1e-5), v(gc + 1)))
A("v_rsq_f32 %s, %s" % (v(gc + 1), v(gc + 1)))
A("v_fma_f32 %s, -%s, %s, %s" % (v(ga), v(gc), v(sCq0), v(ga)))
A("v_fma_f32 %s, -%s, %s, %s" % (v(ga + 1), v(gc), v(sCq1), v(ga + 1)))
A("v_mul_f32 %s, %s, %s" % (v(ga), v(ga), v(gc + 1)))
A("v_mul_f32 %s, %s, %s" % (v(ga + 1), v(ga + 1), v(gc + 1)))
A("v_cvt_pk_bf16_f32 %s, %s, %s" % (v(ga), v(ga), v(ga + 1)))
A("ds_write_b32 %s, %s" % (v(sQw), v(ga)))
A("s_waitcnt lgkmcnt(0)")
A("s_barrier")
lab = if_layer0()
padd(pT, pWJ, LSTR)
store_intra(["global_store_dwordx4 %s, %s, %s" % (v(sClr), v(SN, 4), pT),
             "s_mov_b32 exec_hi, 0",
             "global_store_dwordx4 %s, %s, %s offset:1024" % (v(sClr), v(SN, 4), pT),
             "s_mov_b64 exec, -1"])
A("s_waitcnt vmcnt(0)")
A("s_cmp_lg_u32 %s, 0" % sU)
A("s_cbranch_scc1 %s" % lab)
A("v_lshlrev_b32 v4, 5, v0")
A("v_and_b32 v4, 0xe0, v4")
A.label("S_GB3")
A("global_load_dword v7, v4, %s offset:8 sc1" % pDBG)
A("s_waitcnt vmcnt(0)")
A("v_cmp_ne_u32 vcc, 32, v7")
A("s_cbranch_vccz %s" % lab)
A("s_sleep %d" % P.get("PSL", 8))
budget_loop("S_GB3")
A.label(lab)
A("s_barrier")
stamp("S")
cm = XR
ca = XR + 8
A("ds_read_b128 %s, %s" % (v(cm, 4), v(sMlrd)))
A("ds_read_b128 %s, %s offset:16" % (v(cm + 4, 4), v(sMlrd)))
for k in range(4):
    A("ds_read_b128 %s, %s offset:%d" % (v(ca + 4 * k, 4), v(sCrd), 2048 * k))
cM, cL, cT, cAd = SS, SS + 1, SS + 2, SS + 3
A("v_mov_b32 %s, %s" % (v(cAd), sC))
A("s_waitcnt lgkmcnt(4)")
A("v_max3_f32 %s, %s, %s, %s" % (v(cM), v(cm), v(cm + 2), v(cm + 4)))
A("v_max_f32 %s, %s, %s" % (v(cM), v(cM), v(cm + 6)))
A("v_mov_b32 %s, %s" % (v(cT), v(cM)))
A("v_permlane32_swap_b32 %s, %s" % (v(cM), v(cT)))
A("v_max_f32 %s, %s, %s" % (v(cM), v(cM), v(cT)))
for k in range(4):
    A("v_sub_f32 %s, %s, %s" % (v(cm + 2 * k), v(cm + 2 * k), v(cM)))
for k in range(4):
    A("v_exp_f32 %s, %s" % (v(cm + 2 * k), v(cm + 2 * k)))
A("s_waitcnt lgkmcnt(0)")
for e in range(4):
    A("v_mul_f32 %s, %s, %s" % (v(DR + e), v(cm), v(ca + e)))
A("v_mul_f32 %s, %s, %s" % (v(cL), v(cm), v(cm + 1)))
for k in range(1, 4):
    for e in range(4):
        A("v_fmac_f32 %s, %s, %s" % (v(DR + e), v(cm + 2 * k), v(ca + 4 * k + e)))
    A("v_fmac_f32 %s, %s, %s" % (v(cL), v(cm + 2 * k), v(cm + 2 * k + 1)))
A("v_mov_b32 %s, %s" % (v(cT), v(cL)))
A("v_permlane32_swap_b32 %s, %s" % (v(DR), v(DR + 2)))
A("v_permlane32_swap_b32 %s, %s" % (v(DR + 1), v(DR + 3)))
A("v_permlane32_swap_b32 %s, %s" % (v(cL), v(cT)))
A("v_add_f32 %s, %s, %s" % (v(DR), v(DR), v(DR + 2)))
A("v_add_f32 %s, %s, %s" % (v(DR + 1), v(DR + 1), v(DR + 3)))
A("v_add_f32 %s, %s, %s" % (v(cL), v(cL), v(cT)))
store_intra(["global_store_dwordx2 %s, %s, %s" % (v(sE2w), v(DR, 2), pWJ),
             "s_mov_b64 exec, 1",
             "global_store_dwordx2 %s, %s, %s" % (v(cAd), v(cM, 2), pWJ),
             "s_mov_b64 exec, -1"])
stamp("S")
A("s_barrier")
stamp("S")
for t in range(4):
    A("ds_read_b128 %s, %s offset:%d" % (v(XR + 4 * t, 4), v(sOrd), 64 * t))
lab = if_layer0()
for t in range(4):
    for hh in range(2):
        A("ds_read_b64_tr_b16 %s, %s offset:%d" % (v(WO + 4 * t + 2 * hh, 2), v(sTr), LW_O + (32 * t + 4 * hh) * 128))
A("s_waitcnt lgkmcnt(0)")
A.label(lab)
for t in range(4):
    A("s_waitcnt lgkmcnt(%d)" % (3 - t))
    A("%s %s, %s, %s, %s" % (MFMA, v(DR, 4), v(XR + 4 * t, 4), v(WO + 4 * t, 4), "0" if t == 0 else v(DR, 4)))
A("global_store_dword %s, %s, %s sc1" % (v(sE3w), v(DR), pWL))
lab = if_layer0()
for t in range(7):
    for hh in range(2):
        A("ds_read_b64_tr_b16 %s, %s offset:%d" % (v(W2R + 4 * t + 2 * hh, 2), v(sTr), LW_2 + (32 * t + 4 * hh) * 128))
A("s_waitcnt lgkmcnt(0)")
A.label(lab)
A("s_barrier")
stamp("S")
A("ds_read_b128 %s, %s" % (v(XR, 4), v(sX1a)))
A("s_cmp_eq_u32 %s, 3" % sU)
A("s_cbranch_scc1 S_W1_W3")
A("s_waitcnt lgkmcnt(0)")
A("%s %s, %s, %s, 0" % (MFMA, v(DR, 4), v(XR, 4), v(W1R, 4)))
A("%s %s, %s, %s, 0" % (MFMA, v(DR + 4, 4), v(XR, 4), v(W1R + 4, 4)))
store_intra(["global_store_dword %s, %s, %s" % (v(sE4w), v(DR), pWJ),
             "global_store_dword %s, %s, %s offset:64" % (v(sE4w), v(DR + 4), pWJ)])
A("s_branch S_W1_DONE")
A.label("S_W1_W3")
A("ds_read_b128 %s, %s" % (v(XR + 4, 4), v(sX1b)))
A("s_waitcnt lgkmcnt(1)")
A("%s %s, %s, %s, 0" % (MFMA, v(DR, 4), v(XR, 4), v(W1R, 4)))
A("s_waitcnt lgkmcnt(0)")
A("%s %s, %s, %s, 0" % (MFMA, v(DR + 4, 4), v(XR, 4), v(XR + 4, 4)))
store_intra(["global_store_dword %s, %s, %s" % (v(sE4w), v(DR), pWJ)] + exec_lines(STM) +
            ["global_store_dword %s, %s, %s" % (v(sE4sw), v(DR + 4), pWJ)] + exec_lines(0x000F000F000F000F) +
            ["global_store_dwordx4 %s, %s, %s" % (v(sE4rw), v(XR + 4, 4), pWJ), "s_mov_b64 exec, -1"])
A.label("S_W1_DONE")
A("s_barrier")
stamp("S")
for t in range(7):
    A("ds_read_b128 %s, %s offset:%d" % (v(XR + 4 * t, 4), v(sHrd), 64 * t))
for t in range(7):
    A("s_waitcnt lgkmcnt(%d)" % (6 - t))
    A("%s %s, %s, %s, %s" % (MFMA, v(DR, 4), v(XR + 4 * t, 4), v(W2R + 4 * t, 4), "0" if t == 0 else v(DR, 4)))
set_exec(0xFFFF)
A("global_store_dword %s, %s, %s sc1" % (v(sE5w), v(DR), pWL))
set_exec(-1)
stamp("S")
A("s_cmp_lg_u32 %s, 0" % sL)
A("s_cbranch_scc1 L_EXIT")
A("s_mov_b32 %s, 1" % sL)
padd(pWL, pWL, LSTR)
padd(pWJ, pWJ, LSTR)
A("s_branch S_LOOP")

KR, VR, VF, QR, SR = 16, 48, 80, 112, 128
GS = 48
(gOg, gOml, gOlds, gW1g, gW1x, gW1lds, gW2g, gW2s, gW2lds, gXg, gXr, gXlds, gB1, gB2, gCs1, gQrd, gApw, gMlw, gOut) = range(148, 167)
_gn = [1 if P["PREF"] else 0]


def gload(t):
    if P.get("NODMA") and "lds" in t:
        t = "global_load_dword v140, v3, %s" % pB1 if False else "s_nop 0"
        A(t)
        return
    if _gn[0] >= P["W"]:
        A("s_waitcnt vmcnt(%d)" % (P["W"] - 1))
    A(t)
    _gn[0] += 1


A.label("L_G")
sexpr(sT0, [(sHi, 8 << 21), (sJ, 1 << 21), (sLo, 1 << 16), (sWave, 1 << 13)], 6144 * 256 + 4096)
A("v_and_b32 v8, 3, v1")
A("v_lshrrev_b32 v9, 2, v1")
vexpr(10, [(8, 1024), (9, 256), (2, 16)])
A("s_waitcnt lgkmcnt(0)")
stamp_init()
stamp("G", 10)
padd(pT, pK, sT0)
padd(pT2, pV, sT0)
for tau in range(2):
    for t in range(4):
        if 4 * tau + t == P["B0POS"]:
            A("s_barrier")
        gload("global_load_dwordx4 %s, v10, %s offset:%d%s" % (v(KR + 4 * (4 * tau + t), 4), pT, tau * 4096 - 4096 + 64 * t, NT))
stamp("G", 11)
for jj in range(8):
    gload("global_load_dwordx4 %s, v3, %s offset:%d%s" % (v(VR + 4 * jj, 4), pT2, (jj - 4) * 1024, NT))
stamp("G", 12)
A("v_lshrrev_b32 v11, 3, v0")
A("v_and_b32 v12, 7, v0")
vexpr(10, [(11, 1024), (12, 16)])
sexpr(sT0, [(sJ, 512 * 1024), (sHi, 128 * 1024), (sWave, 16 * 1024), (sLo, 128)])
padd(pT, pWO, sT0)
A("s_lshl_b32 %s, %s, 11" % (sT1, sWave))
A("s_add_u32 m0, %s, %d" % (sT1, LW_O))
gload("global_load_lds_dwordx4 v10, %s%s" % (pT, NT))
padd(pT, pT, 8192)
A("s_add_u32 m0, %s, %d" % (sT1, LW_O + 1024))
gload("global_load_lds_dwordx4 v10, %s%s" % (pT, NT))
sexpr(sT0, [(sJ, 224 * 1024), (sLo, 128)])
for k in range(4):
    if k < 3:
        A("s_add_u32 %s, %s, %d" % (sT1, sWave, 8 * k))
    else:
        A("s_add_u32 %s, %s, 24" % (sT1, sWave))
        A("s_add_u32 %s, %s, 16" % (sK2, sWave))
        A("s_cmp_lt_u32 %s, 4" % sWave)
        A("s_cselect_b32 %s, %s, %s" % (sT1, sT1, sK2))
    A("s_lshl_b32 %s, %s, 13" % (sK2, sT1))
    A("s_add_u32 %s, %s, %s" % (sK2, sK2, sT0))
    padd(pT, pW2, sK2)
    A("s_lshl_b32 %s, %s, 10" % (sK2, sT1))
    A("s_add_u32 m0, %s, %d" % (sK2, LW_2))
    gload("global_load_lds_dwordx4 v10, %s%s" % (pT, NT))
stamp("G", 13)
A("s_lshr_b32 %s, %s, 1" % (sK0, sWave))
A("s_and_b32 %s, %s, 1" % (sK1, sWave))
A("s_min_u32 %s, %s, 6" % (sK2, sWave))
vexpr(13, [(1, 4), (2, 1)])
sexpr(sT0, [(sHi, 256), (sK1, 128)])
vexpr(14, [(13, 2)], sT0)
gload("global_load_ushort %s, v14, %s" % (v(gB2), pB2))
vexpr(10, [(12, 4), (2, 1)])
sexpr(sT0, [(sK2, 64)])
vexpr(10, [(10, 2)], sT0)
sexpr(sT0, [(sJ, 448)])
A("v_add_u32 v4, %s, v10" % sT0)
gload("global_load_ushort %s, v4, %s" % (v(gB1), pB1))
N_AFTER_K, N_AFTER_V = 8 + 6 + 2, 6 + 2

for q in range(4):
    smov64(mQ[q], (0x000F000F000F000F << (4 * q)))
A("s_mov_b32 %s, 0x05040100" % sPermLo)
A("s_mov_b32 %s, 0x07060302" % sPermHi)
A("s_mov_b32 %s, %s" % (sC, f32(128 ** -0.5 * math.log2(math.e))))
A("s_mov_b32 s42, s40")
A("s_mov_b32 s43, s41")
A("s_mul_i32 %s, %s, %d" % (sT0, sJ, JSTR))
padd(pWJ, pWS, sT0)
A("v_add_u32 %s, %d, v10" % (v(gW2lds), HOP))
sexpr(sT0, [(sHi, 16384), (sK0, 4096), (sK1, 256)], E2)
vexpr(gOg, [(2, 1024), (1, 16)], sT0)
sexpr(sT0, [(sHi, 256), (sK0, 64)], E2S)
vexpr(gOml, [(2, 16)], sT0)
A("v_lshrrev_b32 v4, 1, v2")
A("v_lshl_add_u32 v4, v1, 1, v4")
A("v_bfe_u32 v5, v4, 4, 1")
A("v_bfe_u32 v6, v4, 2, 2")
A("v_and_b32 v7, 3, v4")
A("v_and_b32 v4, 1, v2")
sexpr(sT0, [(sK0, 272), (sK1, 32)], OOP)
vexpr(gOlds, [(6, 64), (4, 16), (5, 8), (7, 2)], sT0)
A("v_lshrrev_b32 v4, 2, v0")
A("v_and_b32 v5, 3, v0")
sexpr(sT0, [(sR1, 16384), (sWave, 64)], E3)
vexpr(gW1g, [(4, 1024), (5, 16)], sT0)
A("s_lshr_b32 %s, %s, 2" % (sT1, sWave))
A("s_and_b32 %s, %s, 3" % (sT2, sWave))
vexpr(6, [(5, 8), (2, 2)])
sexpr(sT0, [(sT2, 80), (sT1, 32)], X1OP)
A("v_add_u32 %s, %s, v6" % (v(gW1lds), sT0))
sexpr(sT0, [(sT2, 272), (sT1, 32)], XOP)
A("s_and_b32 %s, %s, 3" % (sT1, sR1))
A("s_lshl_b32 %s, %s, 6" % (sT1, sT1))
A("s_add_u32 %s, %s, %s" % (sT0, sT0, sT1))
A("v_add_u32 %s, %s, v6" % (v(gW1x), sT0))
sexpr(sT0, [(sHi, 16 * 896), (sK2, 128)], E4)
vexpr(gW2g, [(11, 2 * 896), (12, 16)], sT0)
sexpr(sT0, [(sHi, 128)], E4S)
vexpr(gW2s, [(1, 8)], sT0)
sexpr(sT0, [(sK0, 16384), (sHi, 4096), (sK1, 2048)], E5)
vexpr(gXg, [(2, 512), (1, 16)], sT0)
sexpr(sT0, [(sK0, 1024)], E4R)
A("v_add_u32 %s, %s, v14" % (v(gXr), sT0))
sexpr(sT0, [(sK0, 1024)])
A("v_add_u32 %s, %s, v14" % (v(gOut), sT0))
sexpr(sT0, [(sK0, 272), (sK1, 128)], XOP)
vexpr(gXlds, [(13, 2)], sT0)
vexpr(gQrd, [(8, 272), (2, 16)], None, QOP)
sexpr(sT0, [(sWave, 2048)], AP)
A("v_add_u32 %s, %s, v3" % (v(gApw), sT0))
sexpr(sT0, [(sWave, 8)], ML)
vexpr(gMlw, [(8, 64)], sT0)
stamp("G", 9)
if P.get("KVWAIT"):
    A("s_waitcnt vmcnt(%d)" % N_AFTER_K)
    stamp("G", 7)
    A("s_waitcnt vmcnt(%d)" % N_AFTER_V)
    stamp("G", 8)
    A("s_waitcnt vmcnt(0)")
    stamp("G", 14)
if P.get("QLATE"):
    A("s_barrier")
A("s_branch G_ENTRY")

A.label("G_LOOP")
A("s_barrier")
A.label("G_ENTRY")
A("s_barrier")
stamp("G")
for t in range(4):
    A("ds_read_b128 %s, %s offset:%d" % (v(QR + 4 * t, 4), v(gQrd), 64 * t))
A("s_waitcnt vmcnt(%d)" % N_AFTER_K)
stamp("G")
S0, S1 = SR, SR + 4
for t in range(4):
    A("s_waitcnt lgkmcnt(%d)" % (3 - t))
    for tau in range(2):
        d = v(SR + 4 * tau, 4)
        A("%s %s, %s, %s, %s" % (MFMA, d, v(KR + 4 * (4 * tau + t), 4), v(QR + 4 * t, 4), "0" if t == 0 else d))
aM, aT, aL, aMc = 136, 137, 138, 139
PR = 140
PM = QR
A("v_max3_f32 %s, %s, %s, %s" % (v(aM), v(S0), v(S0 + 1), v(S0 + 2)))
A("v_max3_f32 %s, %s, %s, %s" % (v(aT), v(S1), v(S1 + 1), v(S1 + 2)))
A("v_max3_f32 %s, %s, %s, %s" % (v(aM), v(aM), v(S0 + 3), v(S1 + 3)))
A("v_max_f32 %s, %s, %s" % (v(aM), v(aM), v(aT)))
g_allreduce("v_max_f32", aM, aT)
A("v_mul_f32 %s, %s, %s" % (v(aMc), sC, v(aM)))
for i in range(8):
    A("v_fma_f32 %s, %s, %s, -%s" % (v(SR + i), v(SR + i), sC, v(aMc)))
for i in range(8):
    A("v_exp_f32 %s, %s" % (v(SR + i), v(SR + i)))
for p in range(4):
    A("v_cvt_pk_bf16_f32 %s, %s, %s" % (v(PR + p), v(SR + 2 * p), v(SR + 2 * p + 1)))
for q in range(4):
    for p in range(4):
        A("v_cndmask_b32 %s, 0, %s, %s" % (v(PM + 4 * q + p), v(PR + p), mQ[q]))
lab = if_layer0()
A("s_waitcnt vmcnt(%d)" % N_AFTER_V)
stamp("G")
for i in range(8):
    for p in range(4):
        A("v_perm_b32 %s, %s, %s, %s" % (v(VF + 4 * i + p), v(VR + 4 * (2 * p + 1) + (i >> 1)), v(VR + 4 * (2 * p) + (i >> 1)),
                                         sPermHi if (i & 1) else sPermLo))
A.label(lab)
D0 = 140
for q in range(4):
    for a in range(2):
        d = v(D0 + 4 * a, 4)
        A("%s %s, %s, %s, %s" % (MFMA, d, v(VF + 4 * (4 * a + q), 4), v(PM + 4 * q, 4), "0" if q == 0 else d))
A("v_add_f32 %s, %s, %s" % (v(S0), v(S0), v(S0 + 1)))
A("v_add_f32 %s, %s, %s" % (v(S0 + 2), v(S0 + 2), v(S0 + 3)))
A("v_add_f32 %s, %s, %s" % (v(S1), v(S1), v(S1 + 1)))
A("v_add_f32 %s, %s, %s" % (v(S1 + 2), v(S1 + 2), v(S1 + 3)))
A("v_add_f32 %s, %s, %s" % (v(S0), v(S0), v(S0 + 2)))
A("v_add_f32 %s, %s, %s" % (v(S1), v(S1), v(S1 + 2)))
A("v_add_f32 %s, %s, %s" % (v(aT), v(S0), v(S1)))
g_allreduce("v_add_f32", aT, aL)
A("v_mov_b32 %s, %s" % (v(aM), v(aMc)))
A("ds_write_b64 %s, %s" % (v(gMlw), v(aM, 2)))
A("ds_write_b128 %s, %s" % (v(gApw), v(D0, 4)))
A("ds_write_b128 %s, %s offset:1024" % (v(gApw), v(D0 + 4, 4)))
A("s_waitcnt lgkmcnt(0)")
A("s_barrier")

a0, b0, c0 = GS, GS + 4, GS + 8
r0, r1_, r2, r3 = GS + 12, GS + 13, GS + 14, GS + 15


def add_ab():
    for e in range(4):
        A("v_add_f32 %s, %s, %s" % (v(a0 + e), v(a0 + e), v(b0 + e)))


lab = if_layer0()
A("s_mul_i32 %s, %s, %d" % (sT0, sHi, 16 * 896))
A("s_add_u32 %s, %s, %d" % (sT0, sT0, E4 - E4C))
A("v_subrev_u32 %s, %s, %s" % (v(r3), sT0, v(gW2g)))
poll(["global_load_dwordx4 %s, %s, %s sc1" % (v(a0, 4), v(r3), pWJ),
      "global_load_dwordx4 %s, %s, %s offset:896 sc1" % (v(b0, 4), v(r3), pWJ)],
     [(a0 + e, b0 + e) for e in range(4)])
add_ab()
g_treduce(a0)
A("v_add_f32_dpp %s, %s, %s row_ror:8%s" % (v(gCs1), v(a0), v(a0), DPP))
A("v_lshlrev_b32 %s, 16, %s" % (v(gB1), v(gB1)))
A("v_lshlrev_b32 %s, 16, %s" % (v(gB2), v(gB2)))
A.label(lab)

sleep(P["D_O"])
poll(["global_load_dwordx4 %s, %s, %s sc1" % (v(c0, 4), v(gOml), pWJ),
      "global_load_dwordx4 %s, %s, %s sc1" % (v(a0, 4), v(gOg), pWJ),
      "global_load_dwordx4 %s, %s, %s offset:512 sc1" % (v(b0, 4), v(gOg), pWJ)],
     [(a0 + e, b0 + e) for e in range(4)] + [(c0, c0 + 1), (c0 + 2, c0 + 3)])
stamp("G")
A("ds_read_u16 %s, %s" % (v(r3), v(gW1x)))
A("v_max_f32 %s, %s, %s" % (v(r0), v(c0), v(c0 + 2)))
g_allreduce("v_max_f32", r0, r1_)
A("v_sub_f32 %s, %s, %s" % (v(c0), v(c0), v(r0)))
A("v_sub_f32 %s, %s, %s" % (v(c0 + 2), v(c0 + 2), v(r0)))
A("v_exp_f32 %s, %s" % (v(c0), v(c0)))
A("v_exp_f32 %s, %s" % (v(c0 + 2), v(c0 + 2)))
A("v_mul_f32 %s, %s, %s" % (v(r1_), v(c0), v(c0 + 1)))
A("v_fmac_f32 %s, %s, %s" % (v(r1_), v(c0 + 2), v(c0 + 3)))
for e in range(4):
    A("v_mul_f32 %s, %s, %s" % (v(a0 + e), v(c0), v(a0 + e)))
for e in range(4):
    A("v_fmac_f32 %s, %s, %s" % (v(a0 + e), v(c0 + 2), v(b0 + e)))
g_allreduce("v_add_f32", r1_, r2)
g_treduce(a0)
A("v_rcp_f32 %s, %s" % (v(r1_), v(r1_)))
A("v_mul_f32 %s, %s, %s" % (v(r0), v(a0), v(r1_)))
A("v_cvt_pk_bf16_f32 %s, %s, %s" % (v(r0), v(r0), v(r0)))
A("ds_write_b16 %s, %s" % (v(gOlds), v(r0)))
A("s_waitcnt lgkmcnt(0)")
A("s_barrier")

A("v_lshlrev_b32 %s, 16, %s" % (v(r3), v(r3)))
sleep(P["D_W1"])
poll(["global_load_dwordx4 %s, %s, %s sc1" % (v(a0, 4), v(gW1g), pWL),
      "global_load_dwordx4 %s, %s, %s offset:512 sc1" % (v(b0, 4), v(gW1g), pWL)],
     [(a0 + e, b0 + e) for e in range(4)])
stamp("G")
add_ab()
g_treduce(a0)
A("v_add_f32_dpp %s, %s, %s row_ror:4%s" % (v(a0), v(a0), v(a0), DPP))
A("v_add_f32_dpp %s, %s, %s row_ror:8%s" % (v(a0), v(a0), v(a0), DPP))
A("v_add_f32 %s, %s, %s" % (v(r0), v(a0), v(r3)))
A("v_cvt_pk_bf16_f32 %s, %s, %s" % (v(r0), v(r0), v(r0)))
A("ds_write_b16 %s, %s" % (v(gW1lds), v(r0)))
A("s_waitcnt lgkmcnt(0)")
A("s_barrier")

A("s_cmp_eq_u32 %s, 7" % sWave)
A("s_cbranch_scc1 G_W2_SKIP")
sleep(P["D_W2"])
poll(["global_load_dwordx2 %s, %s, %s sc1" % (v(c0, 2), v(gW2s), pWJ),
      "global_load_dwordx4 %s, %s, %s sc1" % (v(a0, 4), v(gW2g), pWJ),
      "global_load_dwordx4 %s, %s, %s offset:896 sc1" % (v(b0, 4), v(gW2g), pWJ)],
     [(a0 + e, b0 + e) for e in range(4)] + [(c0, c0 + 1)])
stamp("G")
for i, m in enumerate((X1, X2, HM, RM)):
    A("v_add_f32_dpp %s, %s, %s %s" % (v(c0), v(c0), v(c0), m))
    A("v_add_f32_dpp %s, %s, %s %s" % (v(c0 + 1), v(c0 + 1), v(c0 + 1), m))
    A("v_add_f32 %s, %s, %s" % (v(a0 + i), v(a0 + i), v(b0 + i)))
A("v_mul_f32 %s, %s, %s" % (v(c0), f32(1 / 512), v(c0)))
A("v_mul_f32 %s, %s, %s" % (v(c0 + 1), f32(1 / 512), v(c0 + 1)))
g_treduce(a0)
A("v_fma_f32 %s, -%s, %s, %s" % (v(c0 + 1), v(c0), v(c0), v(c0 + 1)))
A("v_max_f32 %s, 0, %s" % (v(c0 + 1), v(c0 + 1)))
A("v_add_f32_dpp %s, %s, %s row_ror:8%s" % (v(r0), v(a0), v(a0), DPP))
A("v_add_f32 %s, %s, %s" % (v(c0 + 2), f32(1e-5), v(c0 + 1)))
A("v_rcp_f32 %s, %s" % (v(c0 + 3), v(c0 + 2)))
A("v_fma_f32 %s, -%s, %s, %s" % (v(r0), v(c0), v(gCs1), v(r0)))
A("v_mul_f32 %s, %s, %s" % (v(c0 + 3), v(c0 + 1), v(c0 + 3)))
A("v_add_f32 %s, %s, %s" % (v(c0 + 3), f32(1e-5), v(c0 + 3)))
A("v_mul_f32 %s, %s, %s" % (v(c0 + 2), v(c0 + 2), v(c0 + 3)))
A("v_rsq_f32 %s, %s" % (v(c0 + 2), v(c0 + 2)))
A("v_fma_f32 %s, %s, %s, %s" % (v(r0), v(r0), v(c0 + 2), v(gB1)))
k0 = -2 * math.log2(math.e) * math.sqrt(2 / math.pi)
A("v_mul_f32 %s, %s, %s" % (v(r1_), v(r0), v(r0)))
A("v_mov_b32 %s, %s" % (v(r2), f32(k0)))
A("v_fmac_f32 %s, %s, %s" % (v(r2), f32(k0 * 0.044715), v(r1_)))
A("v_mul_f32 %s, %s, %s" % (v(r2), v(r2), v(r0)))
A("v_exp_f32 %s, %s" % (v(r2), v(r2)))
A("v_add_f32 %s, 1.0, %s" % (v(r2), v(r2)))
A("v_rcp_f32 %s, %s" % (v(r2), v(r2)))
A("v_mul_f32 %s, %s, %s" % (v(r0), v(r0), v(r2)))
A("v_cvt_pk_bf16_f32 %s, %s, %s" % (v(r0), v(r0), v(r0)))
A("ds_write_b16 %s, %s" % (v(gW2lds), v(r0)))
A("s_waitcnt lgkmcnt(0)")
A.label("G_W2_SKIP")
A("s_barrier")

A("s_cmp_eq_u32 %s, 0" % sL)
A("s_cbranch_scc1 G_X_GO")
A("s_cmp_lg_u32 %s, 0" % sLo)
A("s_cbranch_scc1 L_EXIT")
A("s_cmp_lg_u32 %s, %s" % (sWave, sJ))
A("s_cbranch_scc1 L_EXIT")
A.label("G_X_GO")
sleep(P["D_X"])


def xpre():
    A("v_lshlrev_b32 %s, 16, %s" % (v(c0), v(c0)))


poll(["global_load_ushort %s, %s, %s sc1" % (v(c0), v(gXr), pWJ),
      "global_load_dwordx4 %s, %s, %s sc1" % (v(a0, 4), v(gXg), pWL),
      "global_load_dwordx4 %s, %s, %s offset:256 sc1" % (v(b0, 4), v(gXg), pWL)],
     [(a0 + e, b0 + e) for e in range(4)] + [(c0, c0)], pre=xpre)
stamp("G")
add_ab()
A("v_add_f32 %s, %s, %s" % (v(c0), v(c0), v(gB2)))
g_treduce(a0)
A("v_add_f32 %s, %s, %s" % (v(r0), v(a0), v(c0)))
A("v_cvt_pk_bf16_f32 %s, %s, %s" % (v(r0), v(r0), v(r0)))
A("s_cmp_lg_u32 %s, 0" % sL)
A("s_cbranch_scc1 G_FINAL")
A("ds_write_b16 %s, %s" % (v(gXlds), v(r0)))
A("s_mov_b32 %s, 1" % sL)
padd(pWL, pWL, LSTR)
padd(pWJ, pWJ, LSTR)
A("s_waitcnt lgkmcnt(0)")
A("s_branch G_LOOP")
A.label("G_FINAL")
sleep(P.get("ENDSLEEP", 0))
if "ECHO" in P:
    A("s_memrealtime s[82:83]")
    A("s_sub_u32 s80, s80, s78")
    A("s_waitcnt lgkmcnt(0)")
    A("s_add_u32 s80, s80, s82")
    A.label("ECHO_SPIN")
    A("s_memrealtime s[82:83]")
    A("s_waitcnt lgkmcnt(0)")
    A("s_cmp_lt_u32 s82, s80")
    A("s_cbranch_scc1 ECHO_SPIN")
A("global_store_short %s, %s, %s" % (v(gOut), v(r0), pOUT))
A.label("L_EXIT")
stamp_dump()
A.label("L_END")
A("s_endpgm")

A.fix_hazards()

hdr = open("cdna_kernels/%s.s.ref" % NAME).read().split("; Override launch")[0]
out = hdr + """; @launch grid=(256,1,1) block=(768,1,1) lds=%d
.amdgcn_target "amdgcn-amd-amdhsa--gfx950"
.text
.globl %s_kernel
.p2align 8
.type %s_kernel,@function
%s_kernel:
%s
    ; pad the code section so that the 12 KB code prefetch stays inside it
    .fill ((12288 + 256 - (. - %s_kernel)) / 4), 4, 0xbf810000
.section .rodata,"a"
.p2align 6
.amdhsa_kernel %s_kernel
  .amdhsa_next_free_vgpr 168
  .amdhsa_next_free_sgpr 96
  .amdhsa_accum_offset 168
  .amdhsa_group_segment_fixed_size 0
  .amdhsa_kernarg_size 104
  .amdhsa_user_sgpr_count 2
  .amdhsa_user_sgpr_kernarg_segment_ptr 1
  .amdhsa_system_sgpr_workgroup_id_x 1
.end_amdhsa_kernel
""" % (LDS_TOTAL, NAME, NAME, NAME, A.text(), NAME, NAME)
open(sys.argv[1], "w").write(out)
print("wrote", sys.argv[1], "instructions:", sum(1 for x in A.ins if not x.label), "LDS", LDS_TOTAL)
```

```python
import sys, math, struct, os
from asmlib import Asm

NAME = "interleave_layers__sliding_block_cached__mixer_channel_mlp__decode"

P = dict(B0POS=0, W=64, NV1=8, D_A0=60, NSL=6, D_O=0, D_W1=12, D_W2=0, D_X=12, D_A=0, NT="nt", STAMP=0, FORCE_SAFE=0, PREF=1)
for a in sys.argv[2:]:
    k, v_ = a.split("=")
    P[k] = int(v_) if v_.lstrip("-").isdigit() else v_


def f32(x):
    return "0x%08x" % struct.unpack("<I", struct.pack("<f", x))[0]


LSTR = 0x200000
JSTR = 196608
E1, E1S, E4C = 0, 40960, 45056
E1T = 0x200000 * 2
REC = 0x1D8000
E2, E4, E4R, E2S, E4S = 65536, 131072, 188416, 192512, 193536
E3, E5 = 0x180000, 0x1C0000
SENT = 0x7F817F81
LW_Q, LW_O, LW_2, LW_1 = 0, 16384, 32768, 61440
XOP = 68608
QOP = XOP + 5 * 272
OOP = QOP + 4 * 272
X1OP = OOP + 4 * 272
HOP = X1OP + 5 * 80
ML = HOP + 448
FLG = ML + 256
ST0 = FLG + 16
NONCE = ST0 + 32
AP = (NONCE + 16 + 1023) // 1024 * 1024
LDS_TOTAL = AP + 16384
assert all(x % 16 == 0 for x in (XOP, QOP, OOP, X1OP, HOP, ML))

sWave, sJ, sS, sHi, sLo, sR1, sC1, sL, sBud = "s3", "s4", "s5", "s6", "s7", "s8", "s9", "s10", "s11"
sT0, sT1, sT2, sT3 = "s12", "s13", "s14", "s15"
pX, pK, pV, pWQ, pWO, pW1, pB1, pW2, pB2, pOUT, pDBG, pWS = (
    "s[16:17]", "s[18:19]", "s[20:21]", "s[22:23]", "s[24:25]", "s[28:29]", "s[30:31]", "s[32:33]", "s[34:35]",
    "s[36:37]", "s[38:39]", "s[40:41]")
pWL = "s[42:43]"
sFast = "s44"
sU = "s45"
mQ = ["s[50:51]", "s[52:53]", "s[54:55]", "s[56:57]"]
sPermLo, sPermHi = "s58", "s59"
sC = "s60"
pT = "s[62:63]"
pT2 = "s[64:65]"
sXcc = "s66"
sK0, sK1, sK2 = "s67", "s68", "s69"
mT = "s[70:71]"
pWJ = "s[72:73]"
pPC = "s[46:47]"
pN = "s[48:49]"

A = Asm()
NT = (" " + P["NT"]) if P["NT"] else ""
STAMP = P["STAMP"]


def v(n, cnt=1):
    return "v%d" % n if cnt == 1 else "v[%d:%d]" % (n, n + cnt - 1)


def smov64(pair, val):
    lo = int(pair[2:].split(":")[0])
    A("s_mov_b32 s%d, 0x%08x" % (lo, val & 0xFFFFFFFF))
    A("s_mov_b32 s%d, 0x%08x" % (lo + 1, val >> 32))


def exec_lines(val):
    if val == -1:
        return ["s_mov_b64 exec, -1"]
    if 0 <= val <= 64:
        return ["s_mov_b64 exec, %d" % val]
    return ["s_mov_b32 exec_lo, 0x%08x" % (val & 0xFFFFFFFF), "s_mov_b32 exec_hi, 0x%08x" % (val >> 32)]


def set_exec(val):
    for l in exec_lines(val):
        A(l)


def padd(dst, src, soff):
    d = int(dst[2:].split(":")[0]); s = int(src[2:].split(":")[0])
    A("s_add_u32 s%d, s%d, %s" % (d, s, soff))
    A("s_addc_u32 s%d, s%d, 0" % (d + 1, s + 1))


def sexpr(dst, terms, const=0, tmp=sT3):
    first = True
    for (r, m) in terms:
        t = dst if first else tmp
        if m == 1:
            if first:
                A("s_mov_b32 %s, %s" % (dst, r))
            else:
                A("s_add_u32 %s, %s, %s" % (dst, dst, r))
            first = False
            continue
        if m & (m - 1) == 0:
            A("s_lshl_b32 %s, %s, %d" % (t, r, m.bit_length() - 1))
        else:
            A("s_mul_i32 %s, %s, %d" % (t, r, m))
        if not first:
            A("s_add_u32 %s, %s, %s" % (dst, dst, t))
        first = False
    if first:
        A("s_mov_b32 %s, %d" % (dst, const))
    elif const:
        A("s_add_u32 %s, %s, %d" % (dst, dst, const))


def vexpr(dst, terms, sreg=None, const=0):
    first = True
    for (r, m) in terms:
        if first:
            if m == 1:
                A("v_mov_b32 %s, %s" % (v(dst), v(r)))
            elif m & (m - 1) == 0:
                A("v_lshlrev_b32 %s, %d, %s" % (v(dst), m.bit_length() - 1, v(r)))
            else:
                A("v_mul_u32_u24 %s, %d, %s" % (v(dst), m, v(r)))
            first = False
        else:
            assert m & (m - 1) == 0, "non power of two term must come first"
            A("v_lshl_add_u32 %s, %s, %d, %s" % (v(dst), v(r), m.bit_length() - 1, v(dst)))
    if sreg:
        A("v_add_u32 %s, %s, %s" % (v(dst), sreg, v(dst)))
    if const:
        A("v_add_u32 %s, %d, %s" % (v(dst), const, v(dst)))


DPP = " row_mask:0xf bank_mask:0xf"
X1 = "quad_perm:[1,0,3,2]" + DPP
X2 = "quad_perm:[2,3,0,1]" + DPP
HM = "row_half_mirror" + DPP
RM = "row_mirror" + DPP
_lab = [0]


def newlabel(p="L"):
    _lab[0] += 1
    return "%s_%d" % (p, _lab[0])


def sleep(n):
    while n > 0:
        k = min(n, 127)
        A("s_sleep %d" % k)
        n -= k


def g_treduce(a):
    A("v_permlane16_swap_b32 %s, %s" % (v(a), v(a + 1)))
    A("v_permlane16_swap_b32 %s, %s" % (v(a + 2), v(a + 3)))
    A("v_add_f32 %s, %s, %s" % (v(a), v(a), v(a + 1)))
    A("v_add_f32 %s, %s, %s" % (v(a + 2), v(a + 2), v(a + 3)))
    A("v_permlane32_swap_b32 %s, %s" % (v(a), v(a + 2)))
    A("v_add_f32 %s, %s, %s" % (v(a), v(a), v(a + 2)))


def g_allreduce(op, r, t):
    for sw in ("v_permlane16_swap_b32", "v_permlane32_swap_b32"):
        A("v_mov_b32 %s, %s" % (v(t), v(r)))
        A("%s %s, %s" % (sw, v(r), v(t)))
        A("%s %s, %s, %s" % (op, v(r), v(r), v(t)))


def budget_loop(top):
    A("s_sub_u32 %s, %s, 1" % (sBud, sBud))
    A("s_cbranch_scc0 %s" % top)
    A("s_mov_b32 %s, 0" % sBud)


def poll(loads, check_pairs, pre=None, nap=0):
    top, done = newlabel("POLL"), newlabel("PDONE")
    A.label(top)
    for l in loads:
        A(l)
    A("s_waitcnt vmcnt(0)")
    if pre:
        pre()
    first = True
    for (a, b) in check_pairs:
        if first:
            A("v_cmp_u_f32 vcc, %s, %s" % (v(a), v(b)))
            first = False
        else:
            A("v_cmp_u_f32 %s, %s, %s" % (mT, v(a), v(b)))
            A("s_or_b64 vcc, vcc, %s" % mT)
    A("s_cbranch_vccz %s" % done)
    sleep(nap)
    budget_loop(top)
    A.label(done)


def store_intra(insn):
    ls, le = newlabel("SAFE"), newlabel("SEND")
    A("s_cmp_eq_u32 %s, 0" % sFast)
    A("s_cbranch_scc1 %s" % ls)
    for i in insn:
        A(i)
    A("s_branch %s" % le)
    A.label(ls)
    for i in insn:
        A(i + (" sc1" if i.startswith("global_store") else ""))
    A.label(le)


_st = {"G": 0, "S": 0}


def stamp(kind, idx=None):
    if idx is None:
        n = _st[kind]; _st[kind] += 1
    else:
        n = idx
    if "ECHO" in P and kind == "G" and P["ECHO"] % 100 == n:
        lab = newlabel("ECHO")
        A("s_cmp_lg_u32 %s, %d" % (sL, P["ECHO"] // 100))
        A("s_cbranch_scc1 %s" % lab)
        A("s_waitcnt lgkmcnt(0)")
        A("s_memrealtime s[80:81]")
        A("s_waitcnt lgkmcnt(0)")
        A.label(lab)
    if not STAMP:
        return
    if STAMP == 2 and not (kind == "G" and n in (2, 6)):
        return
    A("s_waitcnt lgkmcnt(0)")
    A("s_memrealtime s[74:75]")
    A("s_lshl_b32 s76, %s, 4" % sL)
    A("s_add_u32 m0, s76, %d" % n)
    A("s_waitcnt lgkmcnt(0)")
    A("v_writelane_b32 v15, s74, m0")


def stamp_init():
    if STAMP:
        A("v_mov_b32 v15, 0")
        A("v_writelane_b32 v15, s78, 15")


def stamp_dump():
    if not STAMP:
        return
    A("s_mul_i32 s76, s2, 12")
    A("s_add_u32 s76, s76, %s" % sWave)
    A("s_lshl_b32 s76, s76, 8")
    A("s_add_u32 s76, s76, 0x800000")
    A("v_lshlrev_b32 v13, 2, v0")
    A("v_add_u32 v13, s76, v13")
    A("global_store_dword v13, v15, %s" % pWS)


def if_layer0():
    lab = newlabel("NOTL0")
    A("s_cmp_lg_u32 %s, 0" % sL)
    A("s_cbranch_scc1 %s" % lab)
    return lab


def ssync(k):
    top = newlabel("SSY")
    A("v_mov_b32 v5, %d" % (FLG + 4 + 4 * k))
    A("v_mov_b32 v6, 1")
    set_exec(1)
    A("ds_add_u32 v5, v6")
    set_exec(-1)
    A.label(top)
    A("ds_read_b32 v6, v5")
    A("s_waitcnt lgkmcnt(0)")
    A("v_readfirstlane_b32 %s, v6" % sT0)
    A("s_cmp_eq_u32 %s, 4" % sT0)
    done = newlabel("SSD")
    A("s_cbranch_scc1 %s" % done)
    budget_loop(top)
    A.label(done)


MFMA = "v_mfma_f32_16x16x32_bf16"
A("s_getpc_b64 %s" % pPC)
A("s_cmp_ge_u32 s2, 256")
A("s_cbranch_scc1 L_END")
if STAMP or "ECHO" in P:
    A("s_memrealtime s[78:79]")
A("s_load_dwordx16 s[16:31], s[0:1], 0")
A("s_load_dwordx8 s[32:39], s[0:1], 64")
A("s_load_dwordx2 s[40:41], s[0:1], 96")
if P["PREF"]:
    A("v_lshlrev_b32 v3, 4, v0")
    A("global_load_dwordx4 v[140:143], v3, %s offset:-4" % pPC)
A("v_lshrrev_b32 v1, 6, v0")
A("v_and_b32 v0, 63, v0")
A("v_readfirstlane_b32 %s, v1" % sWave)
A("s_and_b32 %s, s2, 7" % sJ)
A("s_lshr_b32 %s, s2, 3" % sS)
A("s_lshr_b32 %s, s2, 6" % sHi)
A("s_and_b32 %s, %s, 7" % (sLo, sS))
A("s_lshr_b32 %s, s2, 4" % sR1)
A("s_and_b32 %s, %s, 1" % (sC1, sS))
A("s_mov_b32 %s, 0" % sL)
A("s_mov_b32 %s, 400000" % sBud)
A("v_and_b32 v1, 15, v0")
A("v_lshrrev_b32 v2, 4, v0")
A("v_lshlrev_b32 v3, 4, v0")
A("s_mov_b32 %s, %s" % (sU, sWave))
A("s_sub_u32 %s, %s, 4" % (sWave, sWave))
A("s_cbranch_scc0 L_G")

WQ, WO, W1R, W2R, XR, DR, SS = 16, 32, 48, 56, 84, 112, 120
(sXa, sXb, sOrd, sX1a, sX1b, sHrd, sE1w, sE1sw, sAg, sAst, sQw, sCq0, sCq1, sCrd, sMlrd, sE2w, sE3w, sE4w, sE4sw, sE4rw, sE5w,
 sTr, sClr, sTr1) = range(144, 168)
SN = 8
sCsP = 139
sDma = 138
X0 = 132
ga, gb, gc = SS, SS + 4, SS + 8
STM = 0x0018001400120011
A("s_add_u32 %s, %s, 8" % (sWave, sU))
A("v_mov_b32 v4, %d" % FLG)
A("v_mov_b32 v6, 0")
A("v_mov_b32 v7, 0")
A("ds_write_b64 v4, v[6:7]")
A("ds_write_b64 v4, v[6:7] offset:8")
for i in range(4):
    A("v_mov_b32 %s, 0x%08x" % (v(SN + i), SENT))
A("s_and_b32 %s, %s, 1" % (sK0, sU))
A("s_lshr_b32 %s, %s, 1" % (sK1, sU))
sexpr(sT0, [(sS, 5120), (sU, 1280)], 32768)
A("v_add_u32 v7, %s, v3" % sT0)
sexpr(sT0, [("s2", 1280), (sK0, LSTR), (sK1, 640)], E3)
A("v_add_u32 v12, %s, v3" % sT0)
A("s_mul_i32 %s, %s, %d" % (sT0, sJ, JSTR))
A("v_lshrrev_b32 v13, 3, v0")
A("v_and_b32 v14, 7, v0")
vexpr(SS, [(13, 8192), (14, 16)])
sexpr(sT1, [(sHi, 128 * 8192), (sU, 32 * 8192), (sJ, 1024), (sLo, 128)])
sexpr(sT2, [(sU, 1024)])
A("v_add_u32 %s, %s, v3" % (v(SS + 1), sT2))
A("s_waitcnt lgkmcnt(0)")
padd(pWJ, pWS, sT0)
padd(pT, pWQ, sT1)
A("v_mov_b32 v4, 0")
A("s_or_b32 %s, s2, %s" % (sT0, sU))
A("s_cbranch_scc1 S_NONONCE")
A("s_memrealtime %s" % pN)
A("s_waitcnt lgkmcnt(0)")
A("s_or_b32 s48, s48, 1")
A("v_mov_b32 %s, s49" % v(SS + 3))
A("v_mov_b32 %s, s48" % v(SS + 2))
set_exec(1)
A("global_store_dwordx2 v4, %s, %s sc1" % (v(SS + 2, 2), pDBG))
set_exec(-1)
A.label("S_NONONCE")
def nonce_fetch():
    A("s_cmp_lg_u32 %s, 3" % sU)
    A("s_cbranch_scc1 S_NP_SKIP")
    A("v_mov_b32 v4, 0")
    sleep(P.get("D_N", 0))
    A.label("S_NP")
    A("global_load_dwordx2 v[6:7], v4, %s sc1" % pDBG)
    A("s_waitcnt vmcnt(0)")
    A("v_cmp_eq_u32 vcc, 0, v6")
    A("s_cbranch_vccz S_NP_DONE")
    A("s_sleep %d" % P.get("NSL", 2))
    budget_loop("S_NP")
    A.label("S_NP_DONE")
    A("v_mov_b32 v5, %d" % NONCE)
    A("ds_write_b64 v5, v[6:7]")
    A("s_waitcnt lgkmcnt(0)")
    if P.get("NLATE"):
        stamp("S", 10)
    A.label("S_NP_SKIP")


if not P.get("NLATE"):
    A("v_mov_b32 %s, v7" % v(SS + 4))
    nonce_fetch()
    A("v_mov_b32 v7, %s" % v(SS + 4))
A("global_load_dwordx4 %s, %s, %s%s" % (v(X0, 4), v(SS + 1), pX, NT))
A("s_lshl_b32 %s, %s, 12" % (sT1, sU))
for i in range(4):
    A("s_add_u32 m0, %s, %d" % (sT1, LW_Q + 1024 * i))
    A("global_load_lds_dwordx4 %s, %s%s" % (v(SS), pT, NT))
    if i < 3:
        padd(pT, pT, 8 * 8192)
if P.get("NOCLR"):
    set_exec(1)
A("global_store_dwordx4 v7, %s, %s sc1" % (v(SN, 4), pWJ))
set_exec(1 if P.get("NOCLR") else 0xFFFF)
A("global_store_dwordx4 v7, %s, %s offset:1024 sc1" % (v(SN, 4), pWJ))
set_exec(1 if P.get("NOCLR") else 0xFFFFFFFFFF)
A("global_store_dwordx4 v12, %s, %s sc1" % (v(SN, 4), pWS))
set_exec(-1)
A("s_barrier")
stamp_init()
stamp("S", 9)
if P.get("NLATE"):
    nonce_fetch()
A("s_getreg_b32 %s, hwreg(HW_REG_XCC_ID)" % sXcc)
A("s_and_b32 %s, %s, 7" % (sXcc, sXcc))
A("s_mov_b32 s42, s40")
A("s_mov_b32 s43, s41")
A("s_mov_b32 %s, 0" % sFast)
sexpr(sT0, [(sS, 6144), (sU, 1536)])
A("v_add_u32 %s, %s, v3" % (v(sClr), sT0))
A("v_mov_b32 v12, 0x3f803f80")
vexpr(13, [(0, 4)], None, XOP + 4 * 272)
A("ds_write_b32 v13, v12")
vexpr(13, [(1, 4)], None, X1OP + 4 * 80)
A("ds_write_b32 v13, v12")
A("v_lshrrev_b32 v12, 2, v1")
A("v_min_u32 v13, 4, v1")
A("v_and_b32 v14, 3, v1")
vexpr(sXa, [(12, 272), (2, 16)], None, XOP)
sexpr(sT0, [(sU, 64)], XOP)
vexpr(sXb, [(13, 272), (2, 16)], sT0)
vexpr(sOrd, [(12, 272), (2, 16)], None, OOP)
vexpr(sX1a, [(12, 80), (2, 16)], None, X1OP)
vexpr(sX1b, [(13, 80), (2, 16)], None, X1OP)
vexpr(sHrd, [(2, 16)], None, HOP)
sexpr(sT0, [(sHi, 2048), (sLo, 256), (sU, 64)], E1)
vexpr(sE1w, [(2, 8192), (1, 4)], sT0)
vexpr(SS + 3, [(2, 128)])
A("v_lshlrev_b32 %s, 2, v12" % v(SS + 4))
A("v_sub_u32 %s, %s, %s" % (v(SS + 3), v(SS + 3), v(SS + 4)))
sexpr(sT0, [(sLo, 512), (sHi, 32), (sU, 8)], E1S + 4)
A("v_add_u32 %s, %s, %s" % (v(sE1sw), sT0, v(SS + 3)))
sexpr(sT0, [(sR1, 8)], E4S + 4)
A("v_add_u32 %s, %s, %s" % (v(sE4sw), sT0, v(SS + 3)))
sexpr(sT0, [(sR1, 64)], E4R)
vexpr(sE4rw, [(14, 1024), (2, 16)], sT0)
A("v_and_b32 %s, 31, v0" % v(SS + 3))
A("v_lshrrev_b32 %s, 5, v0" % v(SS + 4))
sexpr(sT0, [(sHi, 8192), (sU, 512)], E1)
vexpr(sAg, [(SS + 4, 4096), (SS + 3, 16)], sT0)
sexpr(sT0, [(sLo, 512), (sHi, 128)], E1S)
vexpr(sAst, [(1, 8)], sT0)
sexpr(sT0, [(sU, 272)], QOP)
vexpr(sQw, [(SS + 3, 8), (SS + 4, 4)], sT0)
A("v_bfe_u32 %s, v0, 4, 1" % v(SS + 5))
A("v_bfe_u32 %s, v0, 2, 2" % v(SS + 6))
A("v_and_b32 %s, 3, v0" % v(SS + 7))
sexpr(sT0, [(sU, 16)], AP)
vexpr(sCrd, [(SS + 4, 8192), (SS + 5, 1024), (SS + 6, 256), (SS + 7, 64)], sT0)
sexpr(sT0, [(sU, 64)], ML)
vexpr(sMlrd, [(SS + 4, 32)], sT0)
sexpr(sT0, [(sU, 32 * 512), (sS, 512)], E2)
vexpr(sE2w, [(0, 8)], sT0)
sexpr(sC, [(sU, 256), (sS, 8)], E2S)
sexpr(sT0, [(sLo, 32768), (sK1, 16384), (sJ, 2048), (sHi, 512), (sK0, 256)], E3)
vexpr(sE3w, [(0, 4)], sT0)
sexpr(sT0, [(sR1, 896), (sC1, 448), (sU, 128)], E4)
vexpr(sE4w, [(2, 16 * 896), (1, 4)], sT0)
sexpr(sT0, [("s2", 256), (sU, 64)], E5)
vexpr(sE5w, [(1, 4)], sT0)
A("v_lshl_add_u32 %s, v2, 3, v12" % v(SS + 3))
sexpr(sT0, [(sU, 32)])
vexpr(sTr, [(SS + 3, 128), (14, 8)], sT0)
sexpr(sT0, [(sU, 64)])
vexpr(sTr1, [(SS + 3, 224), (14, 8)], sT0)
stamp("S", 11)
A("s_waitcnt vmcnt(0)")
stamp("S", 12)
sexpr(sT0, [(sU, 272)], XOP)
vexpr(4, [(1, 16)], sT0)
A("s_lshl_b32 %s, %s, 4" % (sT0, sHi))
A("s_mov_b32 %s, 0xffff" % sT2)
A("s_mov_b32 %s, 0" % sT3)
A("s_lshl_b64 exec, s[14:15], %s" % sT0)
A("ds_write_b128 v4, %s" % v(X0, 4))
set_exec(-1)
for i in range(4):
    A("v_lshlrev_b32 %s, 16, %s" % (v(SS + 2 * i), v(X0 + i)))
    A("v_and_b32 %s, 0xffff0000, %s" % (v(SS + 2 * i + 1), v(X0 + i)))
A("v_add_f32 v4, %s, %s" % (v(SS), v(SS + 1)))
A("v_mul_f32 v5, %s, %s" % (v(SS), v(SS)))
A("v_fmac_f32 v5, %s, %s" % (v(SS + 1), v(SS + 1)))
for i in range(2, 8):
    A("v_add_f32 v4, v4, %s" % v(SS + i))
    A("v_fmac_f32 v5, %s, %s" % (v(SS + i), v(SS + i)))
for m in (X1, X2, HM, RM):
    A("v_add_f32_dpp v4, v4, v4 %s" % m)
    A("v_add_f32_dpp v5, v5, v5 %s" % m)
g_allreduce("v_add_f32", 4, 6)
g_allreduce("v_add_f32", 5, 6)
A("v_mul_f32 v4, %s, v4" % f32(1 / 512))
A("v_mul_f32 v5, %s, v5" % f32(1 / 512))
A("v_fma_f32 v5, -v4, v4, v5")
A("v_max_f32 v5, 0, v5")
A("v_add_f32 v5, %s, v5" % f32(1e-5))
A("v_rsq_f32 v5, v5")
sexpr(sT0, [(sU, 8)], ST0)
A("v_mov_b32 v6, %s" % sT0)
A("ds_write_b64 v6, v[4:5]")
A("s_waitcnt lgkmcnt(0)")
ssync(0)
stamp("S", 0)
for t in range(4):
    A("ds_read_b128 %s, %s offset:%d" % (v(XR + 4 * t, 4), v(sXa), 64 * t))
for t in range(4):
    for hh in range(2):
        A("ds_read_b64_tr_b16 %s, %s offset:%d" % (v(WQ + 4 * t + 2 * hh, 2), v(sTr), LW_Q + (32 * t + 4 * hh) * 128))
vexpr(4, [(2, 8)], None, ST0)
A("ds_read_b64 v[6:7], v4")
A("v_mov_b32 v4, %d" % NONCE)
A("ds_read_b64 v[12:13], v4")
for i in range(4):
    A("v_mov_b32 %s, 0x3f803f80" % v(XR + 16 + i))
A("s_waitcnt lgkmcnt(0)")
for t in range(4):
    A("%s %s, %s, %s, %s" % (MFMA, v(DR, 4), v(XR + 4 * t, 4), v(WQ + 4 * t, 4), "0" if t == 0 else v(DR, 4)))
    A("%s %s, %s, %s, %s" % (MFMA, v(DR + 4, 4), v(XR + 16, 4), v(WQ + 4 * t, 4), "0" if t == 0 else v(DR + 4, 4)))
A("v_fma_f32 %s, -v6, %s, %s" % (v(DR), v(DR + 4), v(DR)))
A("v_mul_f32 %s, %s, v7" % (v(DR), v(DR)))
A("v_mov_b32 %s, %s" % (v(sCsP), v(DR + 4)))
A("v_mov_b32 %s, v12" % v(DR + 1))
sexpr(sT0, [(sJ, 65536), (sHi, 4096), (sLo, 512), (sU, 128)], E1T)
vexpr(4, [(2, 16384), (1, 8)], sT0)
stamp("S", 1)
A("global_store_dwordx2 v4, %s, %s sc1" % (v(DR, 2), pWS))
A("v_readfirstlane_b32 s48, v12")
A("v_readfirstlane_b32 s49, v13")
A("s_cmp_lg_u32 %s, 1" % sU)
A("s_cbranch_scc1 S_NOREC")
sexpr(sT0, [(sJ, 32 * 128), (sS, 128)], REC)
A("v_mov_b32 v4, %s" % sT0)
A("v_mov_b32 v14, %s" % sXcc)
set_exec(1)
A("global_store_dwordx3 v4, v[12:14], %s sc1" % pWS)
set_exec(-1)
A.label("S_NOREC")


def half_treduce(r):
    A("v_permlane32_swap_b32 %s, %s" % (v(r), v(r + 2)))
    A("v_permlane32_swap_b32 %s, %s" % (v(r + 1), v(r + 3)))
    A("v_add_f32 %s, %s, %s" % (v(r), v(r), v(r + 2)))
    A("v_add_f32 %s, %s, %s" % (v(r + 1), v(r + 1), v(r + 3)))


AG = ["global_load_dwordx4 %s, %s, %s sc1" % (v(ga, 4), v(sAg), pWJ),
      "global_load_dwordx4 %s, %s, %s offset:2048 sc1" % (v(gb, 4), v(sAg), pWJ)]
AGC = [(ga + e, gb + e) for e in range(4)]
sexpr(sT0, [(sJ, 65536), (sHi, 16384), (sU, 1024)], E1T + 4096)
A("v_add_u32 v4, %s, v3" % sT0)
A("v_add_u32 v5, 8192, v4")
sexpr(sT0, [(sU, 64 * 128)], REC)
vexpr(6, [(0, 128)], sT0)
sleep(P.get("D_A0", 20))
TQ = XR
A.label("S_AG0")
A("global_load_dwordx4 %s, v4, %s offset:-4096 sc1" % (v(TQ, 4), pWS))
A("global_load_dwordx4 %s, v4, %s sc1" % (v(TQ + 4, 4), pWS))
A("global_load_dwordx4 %s, v5, %s offset:-4096 sc1" % (v(TQ + 8, 4), pWS))
A("global_load_dwordx4 %s, v5, %s sc1" % (v(TQ + 12, 4), pWS))
A("s_waitcnt vmcnt(0)")
for i in range(8):
    A("v_xor_b32 %s, s48, %s" % (v(TQ + 2 * i + 1), v(TQ + 2 * i + 1)))
A("v_or3_b32 v7, %s, %s, %s" % (v(TQ + 1), v(TQ + 3), v(TQ + 5)))
A("v_or3_b32 v7, v7, %s, %s" % (v(TQ + 7), v(TQ + 9)))
A("v_or3_b32 v7, v7, %s, %s" % (v(TQ + 11), v(TQ + 13)))
A("v_or_b32 v7, v7, %s" % v(TQ + 15))
A("v_cmp_ne_u32 vcc, 0, v7")
A("s_cbranch_vccz S_AG0_DONE")
sleep(P.get("NAPQ", 8))
budget_loop("S_AG0")
A.label("S_AG0_DONE")
A("global_load_dwordx3 v[12:14], v6, %s sc1" % pWS)
A("v_mov_b32 v4, %d" % (FLG + 12))
A("v_mov_b32 v5, 1")
A("ds_write_b32 v4, v5")
stamp("S", 2)
for c in range(2):
    A("v_add_f32 %s, %s, %s" % (v(TQ + 2 * c), v(TQ + 2 * c), v(TQ + 4 + 2 * c)))
    A("v_add_f32 %s, %s, %s" % (v(TQ + 8 + 2 * c), v(TQ + 8 + 2 * c), v(TQ + 12 + 2 * c)))
    A("v_add_f32 %s, %s, %s" % (v(TQ + 2 * c), v(TQ + 2 * c), v(TQ + 8 + 2 * c)))
A("v_cvt_pk_bf16_f32 %s, %s, %s" % (v(ga), v(TQ), v(TQ + 2)))
sexpr(sT0, [(sU, 272)], QOP)
vexpr(4, [(0, 4)], sT0)
A("ds_write_b32 v4, %s" % v(ga))
A("s_waitcnt lgkmcnt(0)")
A("s_barrier")
A("v_lshrrev_b32 v4, 3, v0")
A("v_and_b32 v5, 7, v0")
vexpr(sDma, [(4, 1024), (5, 16)])
sexpr(sT0, [(sJ, 512 * 1024), (sHi, 128 * 1024), (sU, 32 * 1024), (sLo, 128)])
padd(pT, pWO, sT0)
sexpr(sT1, [(sU, 4096)], LW_O)
for k in range(4):
    A("s_add_u32 m0, %s, %d" % (sT1, 1024 * k))
    A("global_load_lds_dwordx4 %s, %s%s" % (v(sDma), pT, NT))
    if k < 3:
        padd(pT, pT, 8192)
sexpr(sT0, [(sR1, 32 * 3584), (sJ, 448), (sC1, 224)])
padd(pT, pW1, sT0)
for k in range(2):
    A("s_lshl_b32 %s, %s, 1" % (sT1, sU))
    if k:
        A("s_add_u32 %s, %s, 1" % (sT1, sT1))
        A("s_min_u32 %s, %s, 6" % (sT1, sT1))
    A("s_lshl_b32 %s, %s, 6" % (sT0, sT1))
    A("v_add_u32 v4, %s, v0" % sT0)
    A("v_mul_u32_u24 v5, 4682, v4")
    A("v_lshrrev_b32 v5, 16, v5")
    A("v_mul_u32_u24 v7, 14, v5")
    A("v_sub_u32 v4, v4, v7")
    A("v_mul_u32_u24 v5, 3584, v5")
    A("v_lshl_add_u32 v4, v4, 4, v5")
    A("s_lshl_b32 %s, %s, 10" % (sT0, sT1))
    A("s_add_u32 m0, %s, %d" % (sT0, LW_1))
    A("global_load_lds_dwordx4 v4, %s%s" % (pT, NT))
for n in range(448):
    assert (n * 4682) >> 16 == n // 14
A("s_waitcnt vmcnt(6)")
A("s_branch S_RP_CHK")
A.label("S_RP")
A("global_load_dwordx3 v[12:14], v6, %s sc1" % pWS)
A("s_waitcnt vmcnt(0)")
A.label("S_RP_CHK")
A("v_cmp_ne_u64 vcc, %s, v[12:13]" % pN)
A("s_cbranch_vccz S_RP_DONE")
A("s_sleep %d" % P.get("PSL", 8))
budget_loop("S_RP")
A("v_mov_b32 v14, -1")
A.label("S_RP_DONE")
A("s_lshr_b32 %s, %s, 1" % (sT0, sJ))
A("s_cmp_lg_u32 %s, %s" % (sT0, sU))
A("s_cbranch_scc1 S_REC_SKIP")
A("v_cmp_ne_u32 vcc, %s, v14" % sXcc)
A("s_bitcmp1_b32 %s, 0" % sJ)
A("s_cselect_b32 %s, vcc_hi, vcc_lo" % sT0)
A("s_cmp_eq_u32 %s, 0" % sT0)
A("s_cselect_b32 %s, 1, 0" % sT0)
if P["FORCE_SAFE"]:
    A("s_mov_b32 %s, 0" % sT0)
A("v_mov_b32 v5, %d" % FLG)
A("v_mov_b32 v7, %s" % sT0)
A("ds_write_b32 v5, v7")
A.label("S_REC_SKIP")
stamp("S", 14)
A("s_waitcnt lgkmcnt(0)")

W2BLK = r'''sexpr(sT0, [(sJ, 224 * 1024), (sLo, 128), (sU, 7 * 8192)])
padd(pT, pW2, sT0)
sexpr(sT1, [(sU, 7 * 1024)], LW_2)
for k in range(7):
    A("s_add_u32 m0, %s, %d" % (sT1, 1024 * k))
    A("global_load_lds_dwordx4 %s, %s%s" % (v(sDma), pT, NT))
    if k < 6:
        padd(pT, pT, 8192)
'''
TRBLK = r'''lab = if_layer0()
for t in range(7):
    for hh in range(2):
        A("ds_read_b64_tr_b16 %s, %s offset:%d" % (v(W2R + 4 * t + 2 * hh, 2), v(sTr), LW_2 + (32 * t + 4 * hh) * 128))
A("s_waitcnt lgkmcnt(0)")
A.label(lab)
'''
A.label("S_LOOP")
A("s_barrier")
stamp("S", 3)
cm = XR
ca = XR + 8
A("v_mov_b32 v5, %d" % FLG)
A("ds_read_b32 v6, v5")
A("ds_read_b128 %s, %s" % (v(cm, 4), v(sMlrd)))
A("ds_read_b128 %s, %s offset:16" % (v(cm + 4, 4), v(sMlrd)))
for k in range(4):
    A("ds_read_b128 %s, %s offset:%d" % (v(ca + 4 * k, 4), v(sCrd), 2048 * k))
cM, cL, cT, cAd = SS, SS + 1, SS + 2, SS + 3
A("v_mov_b32 %s, %s" % (v(cAd), sC))
A("s_waitcnt lgkmcnt(4)")
A("v_readfirstlane_b32 %s, v6" % sFast)
A("v_max3_f32 %s, %s, %s, %s" % (v(cM), v(cm), v(cm + 2), v(cm + 4)))
A("v_max_f32 %s, %s, %s" % (v(cM), v(cM), v(cm + 6)))
A("v_mov_b32 %s, %s" % (v(cT), v(cM)))
A("v_permlane32_swap_b32 %s, %s" % (v(cM), v(cT)))
A("v_max_f32 %s, %s, %s" % (v(cM), v(cM), v(cT)))
for k in range(4):
    A("v_sub_f32 %s, %s, %s" % (v(cm + 2 * k), v(cm + 2 * k), v(cM)))
for k in range(4):
    A("v_exp_f32 %s, %s" % (v(cm + 2 * k), v(cm + 2 * k)))
A("s_waitcnt lgkmcnt(0)")
for e in range(4):
    A("v_mul_f32 %s, %s, %s" % (v(DR + e), v(cm), v(ca + e)))
A("v_mul_f32 %s, %s, %s" % (v(cL), v(cm), v(cm + 1)))
for k in range(1, 4):
    for e in range(4):
        A("v_fmac_f32 %s, %s, %s" % (v(DR + e), v(cm + 2 * k), v(ca + 4 * k + e)))
    A("v_fmac_f32 %s, %s, %s" % (v(cL), v(cm + 2 * k), v(cm + 2 * k + 1)))
A("v_mov_b32 %s, %s" % (v(cT), v(cL)))
A("v_permlane32_swap_b32 %s, %s" % (v(DR), v(DR + 2)))
A("v_permlane32_swap_b32 %s, %s" % (v(DR + 1), v(DR + 3)))
A("v_permlane32_swap_b32 %s, %s" % (v(cL), v(cT)))
A("v_add_f32 %s, %s, %s" % (v(DR), v(DR), v(DR + 2)))
A("v_add_f32 %s, %s, %s" % (v(DR + 1), v(DR + 1), v(DR + 3)))
A("v_add_f32 %s, %s, %s" % (v(cL), v(cL), v(cT)))
store_intra(["global_store_dwordx2 %s, %s, %s" % (v(sE2w), v(DR, 2), pWJ),
             "s_mov_b64 exec, 1",
             "global_store_dwordx2 %s, %s, %s" % (v(cAd), v(cM, 2), pWJ),
             "s_mov_b64 exec, -1"])
stamp("S", 4)
lab = if_layer0()
A("v_add_u32 %s, %d, %s" % (v(gc), 4 * 8192, v(sE1w)))
padd(pT, pWJ, LSTR)
store_intra(exec_lines(0xFFFF) +
            ["global_store_dword %s, %s, %s" % (v(gc), v(sCsP), pWJ),
             "s_mov_b64 exec, -1",
             "global_store_dwordx4 %s, %s, %s" % (v(sClr), v(SN, 4), pT),
             "s_mov_b32 exec_hi, 0",
             "global_store_dwordx4 %s, %s, %s offset:1024" % (v(sClr), v(SN, 4), pT),
             "s_mov_b64 exec, -1"])
if not P.get("W2LATE", 0):
    exec(W2BLK)
    A("s_waitcnt vmcnt(7)")
else:
    A("s_waitcnt vmcnt(0)")
A.label(lab)
A("s_barrier")
stamp("S", 5)
for t in range(4):
    A("ds_read_b128 %s, %s offset:%d" % (v(XR + 4 * t, 4), v(sOrd), 64 * t))
lab = if_layer0()
for t in range(4):
    for hh in range(2):
        A("ds_read_b64_tr_b16 %s, %s offset:%d" % (v(WO + 4 * t + 2 * hh, 2), v(sTr), LW_O + (32 * t + 4 * hh) * 128))
A("s_waitcnt lgkmcnt(0)")
A.label(lab)
for t in range(4):
    A("s_waitcnt lgkmcnt(%d)" % (3 - t))
    A("%s %s, %s, %s, %s" % (MFMA, v(DR, 4), v(XR + 4 * t, 4), v(WO + 4 * t, 4), "0" if t == 0 else v(DR, 4)))
A("global_store_dword %s, %s, %s sc1" % (v(sE3w), v(DR), pWL))
if P.get("SIG", 1):
    A("s_barrier")
lab = if_layer0()
for tl in range(2):
    for hh in range(2):
        A("ds_read_b64_tr_b16 %s, %s offset:%d" % (v(W1R + 4 * tl + 2 * hh, 2), v(sTr1), LW_1 + 4 * hh * 224 + 32 * tl))
for i in range(4):
    A("v_mov_b32 %s, 0x3f803f80" % v(XR + i))
A("v_add_u32 %s, %d, %s" % (v(gc + 1), (E4C - E4) & 0xFFFFFFFF, v(sE4w)))
A("s_waitcnt lgkmcnt(0)")
A("%s %s, %s, %s, 0" % (MFMA, v(DR + 4, 4), v(XR, 4), v(W1R, 4)))
A("%s %s, %s, %s, 0" % (MFMA, v(XR + 4, 4), v(XR, 4), v(W1R + 4, 4)))
A("s_cmp_eq_u32 %s, 3" % sU)
A("s_cselect_b32 %s, 0, 0xffff" % sT0)
store_intra(exec_lines(0xFFFF) +
            ["global_store_dword %s, %s, %s" % (v(gc + 1), v(DR + 4), pWJ),
             "s_mov_b32 exec_lo, %s" % sT0,
             "global_store_dword %s, %s, %s offset:64" % (v(gc + 1), v(XR + 4), pWJ),
             "s_mov_b64 exec, -1"])
A("s_sub_u32 %s, 4, %s" % (sT0, sHi))
A("s_lshl_b32 %s, %s, 13" % (sT0, sT0))
A("v_add_u32 %s, %s, %s" % (v(gc), sT0, v(sAg)))
poll(["global_load_dwordx4 %s, %s, %s sc1" % (v(ga, 4), v(gc), pWJ),
      "global_load_dwordx4 %s, %s, %s offset:2048 sc1" % (v(gb, 4), v(gc), pWJ)], AGC, nap=4)
for e in range(4):
    A("v_add_f32 %s, %s, %s" % (v(ga + e), v(ga + e), v(gb + e)))
half_treduce(ga)
A("v_mov_b32 %s, %s" % (v(sCq0), v(ga)))
A("v_mov_b32 %s, %s" % (v(sCq1), v(ga + 1)))
if P.get("W2LATE", 0):
    exec(W2BLK)
A.label(lab)
A("s_barrier")
stamp("S", 6)
A("ds_read_b128 %s, %s" % (v(XR, 4), v(sX1a)))
A("s_cmp_eq_u32 %s, 3" % sU)
A("s_cbranch_scc1 S_W1_W3")
A("s_waitcnt lgkmcnt(0)")
A("%s %s, %s, %s, 0" % (MFMA, v(DR, 4), v(XR, 4), v(W1R, 4)))
A("%s %s, %s, %s, 0" % (MFMA, v(DR + 4, 4), v(XR, 4), v(W1R + 4, 4)))
store_intra(["global_store_dword %s, %s, %s" % (v(sE4w), v(DR), pWJ),
             "global_store_dword %s, %s, %s offset:64" % (v(sE4w), v(DR + 4), pWJ)])
A("s_branch S_W1_DONE")
A.label("S_W1_W3")
A("ds_read_b128 %s, %s" % (v(XR + 4, 4), v(sX1b)))
A("s_waitcnt lgkmcnt(1)")
A("%s %s, %s, %s, 0" % (MFMA, v(DR, 4), v(XR, 4), v(W1R, 4)))
A("s_waitcnt lgkmcnt(0)")
A("%s %s, %s, %s, 0" % (MFMA, v(DR + 4, 4), v(XR, 4), v(XR + 4, 4)))
store_intra(["global_store_dword %s, %s, %s" % (v(sE4w), v(DR), pWJ)] + exec_lines(STM) +
            ["global_store_dword %s, %s, %s" % (v(sE4sw), v(DR + 4), pWJ)] + exec_lines(0x000F000F000F000F) +
            ["global_store_dwordx4 %s, %s, %s" % (v(sE4rw), v(XR + 4, 4), pWJ), "s_mov_b64 exec, -1"])
A.label("S_W1_DONE")
if P.get("W2LATE", 0):
    A("s_waitcnt vmcnt(0)")
else:
    exec(TRBLK)
A("s_barrier")
stamp("S", 7)
if P.get("W2LATE", 0):
    exec(TRBLK)
for t in range(7):
    A("ds_read_b128 %s, %s offset:%d" % (v(XR + 4 * t, 4), v(sHrd), 64 * t))
for t in range(7):
    A("s_waitcnt lgkmcnt(%d)" % (6 - t))
    A("%s %s, %s, %s, %s" % (MFMA, v(DR, 4), v(XR + 4 * t, 4), v(W2R + 4 * t, 4), "0" if t == 0 else v(DR, 4)))
set_exec(0xFFFF)
A("global_store_dword %s, %s, %s sc1" % (v(sE5w), v(DR), pWL))
set_exec(-1)
if P.get("SIG", 1):
    A("s_barrier")
stamp("S", 8)
A("s_cmp_lg_u32 %s, 0" % sL)
A("s_cbranch_scc1 L_EXIT")
A("s_mov_b32 %s, 1" % sL)
padd(pWL, pWL, LSTR)
padd(pWJ, pWJ, LSTR)
A("s_lshl_b32 %s, %s, 6" % (sT0, sU))
A("v_add_u32 %s, %s, %s" % (v(SS), sT0, v(sXa)))
A("s_barrier")
stamp("S", 0)
for t in range(4):
    A("ds_read_b128 %s, %s offset:%d" % (v(XR + 4 * t, 4), v(sXa), 64 * t))
A("ds_read_b128 %s, %s" % (v(XR + 16, 4), v(sXb)))
A("ds_read_b128 %s, %s" % (v(XR + 20, 4), v(SS)))
for t in range(4):
    A("s_waitcnt lgkmcnt(%d)" % (5 - t))
    A("%s %s, %s, %s, %s" % (MFMA, v(DR, 4), v(XR + 4 * t, 4), v(WQ + 4 * t, 4), "0" if t == 0 else v(DR, 4)))
A("s_waitcnt lgkmcnt(0)")
A("%s %s, %s, %s, 0" % (MFMA, v(DR + 4, 4), v(XR + 20, 4), v(XR + 16, 4)))
stamp("S", 1)
store_intra(["global_store_dword %s, %s, %s" % (v(sE1w), v(DR), pWJ)] + exec_lines(STM) +
            ["global_store_dword %s, %s, %s" % (v(sE1sw), v(DR + 4), pWJ), "s_mov_b64 exec, -1"])
sleep(P["D_A"])
poll(["global_load_dwordx2 %s, %s, %s sc1" % (v(gc, 2), v(sAst), pWJ)] + AG, AGC + [(gc, gc + 1)])
stamp("S", 2)
for i, m in enumerate((X1, X2, HM, RM)):
    A("v_add_f32_dpp %s, %s, %s %s" % (v(gc), v(gc), v(gc), m))
    A("v_add_f32_dpp %s, %s, %s %s" % (v(gc + 1), v(gc + 1), v(gc + 1), m))
    A("v_add_f32 %s, %s, %s" % (v(ga + i), v(ga + i), v(gb + i)))
A("v_mul_f32 %s, %s, %s" % (v(gc), f32(1 / 512), v(gc)))
A("v_mul_f32 %s, %s, %s" % (v(gc + 1), f32(1 / 512), v(gc + 1)))
half_treduce(ga)
A("v_fma_f32 %s, -%s, %s, %s" % (v(gc + 1), v(gc), v(gc), v(gc + 1)))
A("v_max_f32 %s, 0, %s" % (v(gc + 1), v(gc + 1)))
A("v_add_f32 %s, %s, %s" % (v(gc + 1), f32(1e-5), v(gc + 1)))
A("v_rsq_f32 %s, %s" % (v(gc + 1), v(gc + 1)))
A("v_fma_f32 %s, -%s, %s, %s" % (v(ga), v(gc), v(sCq0), v(ga)))
A("v_fma_f32 %s, -%s, %s, %s" % (v(ga + 1), v(gc), v(sCq1), v(ga + 1)))
A("v_mul_f32 %s, %s, %s" % (v(ga), v(ga), v(gc + 1)))
A("v_mul_f32 %s, %s, %s" % (v(ga + 1), v(ga + 1), v(gc + 1)))
A("v_cvt_pk_bf16_f32 %s, %s, %s" % (v(ga), v(ga), v(ga + 1)))
A("ds_write_b32 %s, %s" % (v(sQw), v(ga)))
A("s_waitcnt lgkmcnt(0)")
A("s_barrier")
A("s_branch S_LOOP")

KR, VR, VF, QR, SR = 16, 48, 80, 112, 128
GS = 48
(gOg, gOml, gOlds, gW1g, gW1x, gW1lds, gW2g, gW2s, gW2lds, gXg, gXr, gXlds, gB1, gB2, gCs1, gQrd, gApw, gMlw, gOut, gDma) = range(148, 168)
_gn = [1 if P["PREF"] else 0]


def gload(t):
    if P.get("NODMA") and "lds" in t:
        t = "global_load_dword v140, v3, %s" % pB1 if False else "s_nop 0"
        A(t)
        return
    if _gn[0] >= P["W"]:
        if P.get("ADAPT"):
            lab = newlabel("THR")
            A("ds_read_b32 v5, v4")
            A("s_waitcnt lgkmcnt(0)")
            A("v_readfirstlane_b32 %s, v5" % sT1)
            A("s_cmp_lg_u32 %s, 0" % sT1)
            A("s_cbranch_scc1 %s" % lab)
            A("s_waitcnt vmcnt(%d)" % (P["W"] - 1))
            A.label(lab)
        else:
            A("s_waitcnt vmcnt(%d)" % (P["W"] - 1))
    A(t)
    _gn[0] += 1


GADDR = r'''A("v_lshrrev_b32 v11, 3, v0")        # l>>3
A("v_and_b32 v12, 7, v0")            # l&7
vexpr(gDma, [(11, 1024), (12, 16)])
# bias elements
A("s_lshr_b32 %s, %s, 1" % (sK0, sWave))     # b = w>>1
A("s_and_b32 %s, %s, 1" % (sK1, sWave))      # w&1
A("s_min_u32 %s, %s, 6" % (sK2, sWave))      # w' for the W2 gather
vexpr(13, [(1, 4), (2, 1)])                  # X col local = 4 l16 + g
sexpr(sT0, [(sHi, 256), (sK1, 128)])
vexpr(14, [(13, 2)], sT0)                    # col*2 within a 512-col bf16 row
gload("global_load_ushort %s, v14, %s%s" % (v(gB2), pB2, NT))
vexpr(10, [(12, 4), (2, 1)])                 # 4 (l&7) + g
sexpr(sT0, [(sK2, 64)])
vexpr(10, [(10, 2)], sT0)                    # f*2 (local)
sexpr(sT0, [(sJ, 448)])
A("v_add_u32 v6, %s, v10" % sT0)
gload("global_load_ushort %s, v6, %s%s" % (v(gB1), pB1, NT))
N_AFTER_K, N_AFTER_V = 8, 0

for q in range(4):
    smov64(mQ[q], (0x000F000F000F000F << (4 * q)))
A("s_mov_b32 %s, 0x05040100" % sPermLo)
A("s_mov_b32 %s, 0x07060302" % sPermHi)
A("s_mov_b32 %s, %s" % (sC, f32(128 ** -0.5 * math.log2(math.e))))
A("s_mov_b32 s42, s40")
A("s_mov_b32 s43, s41")
A("s_mul_i32 %s, %s, %d" % (sT0, sJ, JSTR))
padd(pWJ, pWS, sT0)
A("v_add_u32 %s, %d, v10" % (v(gW2lds), HOP))
# O gather: E2 + ((ro*4+b)*8 + 2g)*512 + (16 (w&1) + l16)*16
sexpr(sT0, [(sHi, 16384), (sK0, 4096), (sK1, 256)], E2)
vexpr(gOg, [(2, 1024), (1, 16)], sT0)
sexpr(sT0, [(sHi, 256), (sK0, 64)], E2S)
vexpr(gOml, [(2, 16)], sT0)
# O lds: U = 16 h + l16 (h = w&1); lp = 2U + (g>>1); ups = lp&31 = (2 l16 + (g>>1)) ; e = 2 h + (g&1)
#   ups = 16 a + 4 g' + qq ; d = 32 g' + 8 e + 4 a + qq
A("v_lshrrev_b32 v4, 1, v2")
A("v_lshl_add_u32 v4, v1, 1, v4")            # ups
A("v_bfe_u32 v5, v4, 4, 1")                  # a
A("v_bfe_u32 v6, v4, 2, 2")                  # g'
A("v_and_b32 v7, 3, v4")                     # qq
A("v_and_b32 v4, 1, v2")                     # g&1
sexpr(sT0, [(sK0, 272), (sK1, 32)], OOP)
vexpr(gOlds, [(6, 64), (4, 16), (5, 8), (7, 2)], sT0)
# W1 gather: E3 + r1*16384 + (2 pp)*512 + (4 w + (l&3))*16 ; pp = l>>2
A("v_lshrrev_b32 v4, 2, v0")
A("v_and_b32 v5, 3, v0")
sexpr(sT0, [(sR1, 16384), (sWave, 64)], E3)
vexpr(gW1g, [(4, 1024), (5, 16)], sT0)
# rho = 16 tile + 4 (l&3) + g ; tile = w>>2, b = w&3
A("s_lshr_b32 %s, %s, 2" % (sT1, sWave))
A("s_and_b32 %s, %s, 3" % (sT2, sWave))
vexpr(6, [(5, 8), (2, 2)])
sexpr(sT0, [(sT2, 80), (sT1, 32)], X1OP)
A("v_add_u32 %s, %s, v6" % (v(gW1lds), sT0))
sexpr(sT0, [(sT2, 272), (sT1, 32)], XOP)
A("s_and_b32 %s, %s, 3" % (sT1, sR1))
A("s_lshl_b32 %s, %s, 6" % (sT1, sT1))
A("s_add_u32 %s, %s, %s" % (sT0, sT0, sT1))
A("v_add_u32 %s, %s, v6" % (v(gW1x), sT0))
# W2 gather: E4 + (b*16 + 2 pp8)*896 + (8 w' + (l&7))*16 ; pp8 = l>>3
sexpr(sT0, [(sHi, 16 * 896), (sK2, 128)], E4)
vexpr(gW2g, [(11, 2 * 896), (12, 16)], sT0)
# W2 stats: E4S + (c1*4 + b)*128 + l16*8  (16 entries, row all-reduce)
sexpr(sT0, [(sHi, 128)], E4S)
vexpr(gW2s, [(1, 8)], sT0)
# X gather: E5 + ((b*8 + 2 rq + (w&1))*8 + 2g)*256 + l16*16
sexpr(sT0, [(sK0, 16384), (sHi, 4096), (sK1, 2048)], E5)
vexpr(gXg, [(2, 512), (1, 16)], sT0)
sexpr(sT0, [(sK0, 1024)], E4R)
A("v_add_u32 %s, %s, v14" % (v(gXr), sT0))
sexpr(sT0, [(sK0, 1024)])
A("v_add_u32 %s, %s, v14" % (v(gOut), sT0))
sexpr(sT0, [(sK0, 272), (sK1, 128)], XOP)
vexpr(gXlds, [(13, 2)], sT0)
vexpr(gQrd, [(8, 272), (2, 16)], None, QOP)
sexpr(sT0, [(sWave, 2048)], AP)
A("v_add_u32 %s, %s, v3" % (v(gApw), sT0))
sexpr(sT0, [(sWave, 8)], ML)
vexpr(gMlw, [(8, 64)], sT0)
'''
NV1 = 8
A.label("L_G")
ISTR, WSTR = ((65536, 8192) if P.get("KMODE", 5) == 5 else (8192, 65536))
sexpr(sT0, [(sHi, 8 << 21), (sJ, 1 << 21), (sLo, 1024), (sWave, WSTR)], 6144 * 256)
A("v_and_b32 v8, 3, v1")
A("v_lshrrev_b32 v9, 2, v1")
vexpr(10, [(8, ISTR), (9, 256), (2, 16)])
A("v_mov_b32 v4, %d" % (FLG + 12))
A("s_waitcnt lgkmcnt(0)")
stamp_init()
stamp("G", 10)
padd(pT, pK, sT0)
padd(pT2, pV, sT0)
for tau in range(2):
    for t in range(4):
        if 4 * tau + t == P["B0POS"]:
            A("s_barrier")
        gload("global_load_dwordx4 %s, v10, %s offset:%d%s" % (v(KR + 4 * (4 * tau + t), 4), pT, 64 * t, NT))
    if tau == 0:
        padd(pT, pT, 4 * ISTR)
        A("v_mov_b32 %s, v10" % v(SR))
        exec(GADDR)
        A("v_mov_b32 v10, %s" % v(SR))
stamp("G", 11)
NV1 = 8
for jj in range(8):
    gload("global_load_dwordx4 %s, v3, %s%s" % (v(VR + 4 * jj, 4), pT2, NT))
    if jj < 7:
        padd(pT2, pT2, ISTR)
stamp("G", 9)
if P.get("KVWAIT"):
    A("s_waitcnt vmcnt(0)")
    stamp("G", 14)
if P.get("QLATE"):
    A("s_barrier")
A("s_branch G_ENTRY")

A.label("G_LOOP")
A("s_barrier")
A.label("G_ENTRY")
A("s_barrier")
stamp("G")
if NV1 < 8:
    lab = if_layer0()
    for jj in range(NV1, 8):
        A("global_load_dwordx4 %s, v3, %s offset:%d%s" % (v(VR + 4 * jj, 4), pT2, (jj - 4) * 1024, NT))
    A.label(lab)
for t in range(4):
    A("ds_read_b128 %s, %s offset:%d" % (v(QR + 4 * t, 4), v(gQrd), 64 * t))
A("s_waitcnt vmcnt(%d)" % N_AFTER_K)
stamp("G")
S0, S1 = SR, SR + 4
for t in range(4):
    A("s_waitcnt lgkmcnt(%d)" % (3 - t))
    for tau in range(2):
        d = v(SR + 4 * tau, 4)
        A("%s %s, %s, %s, %s" % (MFMA, d, v(KR + 4 * (4 * tau + t), 4), v(QR + 4 * t, 4), "0" if t == 0 else d))
aM, aT, aL, aMc = 136, 137, 138, 139
PR = 140
PM = QR
A("v_max3_f32 %s, %s, %s, %s" % (v(aM), v(S0), v(S0 + 1), v(S0 + 2)))
A("v_max3_f32 %s, %s, %s, %s" % (v(aT), v(S1), v(S1 + 1), v(S1 + 2)))
A("v_max3_f32 %s, %s, %s, %s" % (v(aM), v(aM), v(S0 + 3), v(S1 + 3)))
A("v_max_f32 %s, %s, %s" % (v(aM), v(aM), v(aT)))
g_allreduce("v_max_f32", aM, aT)
A("v_mul_f32 %s, %s, %s" % (v(aMc), sC, v(aM)))
for i in range(8):
    A("v_fma_f32 %s, %s, %s, -%s" % (v(SR + i), v(SR + i), sC, v(aMc)))
for i in range(8):
    A("v_exp_f32 %s, %s" % (v(SR + i), v(SR + i)))
for p in range(4):
    A("v_cvt_pk_bf16_f32 %s, %s, %s" % (v(PR + p), v(SR + 2 * p), v(SR + 2 * p + 1)))
for q in range(4):
    for p in range(4):
        A("v_cndmask_b32 %s, 0, %s, %s" % (v(PM + 4 * q + p), v(PR + p), mQ[q]))
lab = if_layer0()
A("s_waitcnt vmcnt(%d)" % N_AFTER_V)
stamp("G")
for i in range(8):
    for p in range(4):
        A("v_perm_b32 %s, %s, %s, %s" % (v(VF + 4 * i + p), v(VR + 4 * (2 * p + 1) + (i >> 1)), v(VR + 4 * (2 * p) + (i >> 1)),
                                         sPermHi if (i & 1) else sPermLo))
A.label(lab)
D0 = 140
for q in range(4):
    for a in range(2):
        d = v(D0 + 4 * a, 4)
        A("%s %s, %s, %s, %s" % (MFMA, d, v(VF + 4 * (4 * a + q), 4), v(PM + 4 * q, 4), "0" if q == 0 else d))
A("v_add_f32 %s, %s, %s" % (v(S0), v(S0), v(S0 + 1)))
A("v_add_f32 %s, %s, %s" % (v(S0 + 2), v(S0 + 2), v(S0 + 3)))
A("v_add_f32 %s, %s, %s" % (v(S1), v(S1), v(S1 + 1)))
A("v_add_f32 %s, %s, %s" % (v(S1 + 2), v(S1 + 2), v(S1 + 3)))
A("v_add_f32 %s, %s, %s" % (v(S0), v(S0), v(S0 + 2)))
A("v_add_f32 %s, %s, %s" % (v(S1), v(S1), v(S1 + 2)))
A("v_add_f32 %s, %s, %s" % (v(aT), v(S0), v(S1)))
g_allreduce("v_add_f32", aT, aL)
A("v_mov_b32 %s, %s" % (v(aM), v(aMc)))
A("ds_write_b64 %s, %s" % (v(gMlw), v(aM, 2)))
A("ds_write_b128 %s, %s" % (v(gApw), v(D0, 4)))
A("ds_write_b128 %s, %s offset:1024" % (v(gApw), v(D0 + 4, 4)))
A("s_waitcnt lgkmcnt(0)")
A("s_barrier")

a0, b0, c0 = GS, GS + 4, GS + 8
r0, r1_, r2, r3 = GS + 12, GS + 13, GS + 14, GS + 15


def add_ab():
    for e in range(4):
        A("v_add_f32 %s, %s, %s" % (v(a0 + e), v(a0 + e), v(b0 + e)))


sleep(P["D_O"])
poll(["global_load_dwordx4 %s, %s, %s sc1" % (v(c0, 4), v(gOml), pWJ),
      "global_load_dwordx4 %s, %s, %s sc1" % (v(a0, 4), v(gOg), pWJ),
      "global_load_dwordx4 %s, %s, %s offset:512 sc1" % (v(b0, 4), v(gOg), pWJ)],
     [(a0 + e, b0 + e) for e in range(4)] + [(c0, c0 + 1), (c0 + 2, c0 + 3)])
stamp("G")
A("ds_read_u16 %s, %s" % (v(r3), v(gW1x)))
A("v_max_f32 %s, %s, %s" % (v(r0), v(c0), v(c0 + 2)))
g_allreduce("v_max_f32", r0, r1_)
A("v_sub_f32 %s, %s, %s" % (v(c0), v(c0), v(r0)))
A("v_sub_f32 %s, %s, %s" % (v(c0 + 2), v(c0 + 2), v(r0)))
A("v_exp_f32 %s, %s" % (v(c0), v(c0)))
A("v_exp_f32 %s, %s" % (v(c0 + 2), v(c0 + 2)))
A("v_mul_f32 %s, %s, %s" % (v(r1_), v(c0), v(c0 + 1)))
A("v_fmac_f32 %s, %s, %s" % (v(r1_), v(c0 + 2), v(c0 + 3)))
for e in range(4):
    A("v_mul_f32 %s, %s, %s" % (v(a0 + e), v(c0), v(a0 + e)))
for e in range(4):
    A("v_fmac_f32 %s, %s, %s" % (v(a0 + e), v(c0 + 2), v(b0 + e)))
g_allreduce("v_add_f32", r1_, r2)
g_treduce(a0)
A("v_rcp_f32 %s, %s" % (v(r1_), v(r1_)))
A("v_mul_f32 %s, %s, %s" % (v(r0), v(a0), v(r1_)))
A("v_cvt_pk_bf16_f32 %s, %s, %s" % (v(r0), v(r0), v(r0)))
A("ds_write_b16 %s, %s" % (v(gOlds), v(r0)))
A("s_waitcnt lgkmcnt(0)")
A("s_barrier")

A("v_lshlrev_b32 %s, 16, %s" % (v(r3), v(r3)))
if P.get("SIG", 1):
    A("s_barrier")
sleep(P["D_W1"])
poll(["global_load_dwordx4 %s, %s, %s sc1" % (v(a0, 4), v(gW1g), pWL),
      "global_load_dwordx4 %s, %s, %s offset:512 sc1" % (v(b0, 4), v(gW1g), pWL)],
     [(a0 + e, b0 + e) for e in range(4)])
stamp("G")
add_ab()
g_treduce(a0)
A("v_add_f32_dpp %s, %s, %s row_ror:4%s" % (v(a0), v(a0), v(a0), DPP))
A("v_add_f32_dpp %s, %s, %s row_ror:8%s" % (v(a0), v(a0), v(a0), DPP))
A("v_add_f32 %s, %s, %s" % (v(r0), v(a0), v(r3)))
A("v_cvt_pk_bf16_f32 %s, %s, %s" % (v(r0), v(r0), v(r0)))
A("ds_write_b16 %s, %s" % (v(gW1lds), v(r0)))
A("s_waitcnt lgkmcnt(0)")
A("s_barrier")

lab = if_layer0()
A("s_mul_i32 %s, %s, %d" % (sT0, sHi, 16 * 896))
A("s_add_u32 %s, %s, %d" % (sT0, sT0, E4 - E4C))
A("v_subrev_u32 %s, %s, %s" % (v(r3), sT0, v(gW2g)))
poll(["global_load_dwordx4 %s, %s, %s sc1" % (v(a0, 4), v(r3), pWJ),
      "global_load_dwordx4 %s, %s, %s offset:896 sc1" % (v(b0, 4), v(r3), pWJ)],
     [(a0 + e, b0 + e) for e in range(4)])
add_ab()
g_treduce(a0)
A("v_add_f32_dpp %s, %s, %s row_ror:8%s" % (v(gCs1), v(a0), v(a0), DPP))
A("v_lshlrev_b32 %s, 16, %s" % (v(gB1), v(gB1)))
A("v_lshlrev_b32 %s, 16, %s" % (v(gB2), v(gB2)))
A.label(lab)

A("s_cmp_eq_u32 %s, 7" % sWave)
A("s_cbranch_scc1 G_W2_SKIP")
sleep(P["D_W2"])
poll(["global_load_dwordx2 %s, %s, %s sc1" % (v(c0, 2), v(gW2s), pWJ),
      "global_load_dwordx4 %s, %s, %s sc1" % (v(a0, 4), v(gW2g), pWJ),
      "global_load_dwordx4 %s, %s, %s offset:896 sc1" % (v(b0, 4), v(gW2g), pWJ)],
     [(a0 + e, b0 + e) for e in range(4)] + [(c0, c0 + 1)])
stamp("G")
for i, m in enumerate((X1, X2, HM, RM)):
    A("v_add_f32_dpp %s, %s, %s %s" % (v(c0), v(c0), v(c0), m))
    A("v_add_f32_dpp %s, %s, %s %s" % (v(c0 + 1), v(c0 + 1), v(c0 + 1), m))
    A("v_add_f32 %s, %s, %s" % (v(a0 + i), v(a0 + i), v(b0 + i)))
A("v_mul_f32 %s, %s, %s" % (v(c0), f32(1 / 512), v(c0)))
A("v_mul_f32 %s, %s, %s" % (v(c0 + 1), f32(1 / 512), v(c0 + 1)))
g_treduce(a0)
A("v_fma_f32 %s, -%s, %s, %s" % (v(c0 + 1), v(c0), v(c0), v(c0 + 1)))
A("v_max_f32 %s, 0, %s" % (v(c0 + 1), v(c0 + 1)))
A("v_add_f32_dpp %s, %s, %s row_ror:8%s" % (v(r0), v(a0), v(a0), DPP))
A("v_add_f32 %s, %s, %s" % (v(c0 + 2), f32(1e-5), v(c0 + 1)))
A("v_rcp_f32 %s, %s" % (v(c0 + 3), v(c0 + 2)))
A("v_fma_f32 %s, -%s, %s, %s" % (v(r0), v(c0), v(gCs1), v(r0)))
A("v_mul_f32 %s, %s, %s" % (v(c0 + 3), v(c0 + 1), v(c0 + 3)))
A("v_add_f32 %s, %s, %s" % (v(c0 + 3), f32(1e-5), v(c0 + 3)))
A("v_mul_f32 %s, %s, %s" % (v(c0 + 2), v(c0 + 2), v(c0 + 3)))
A("v_rsq_f32 %s, %s" % (v(c0 + 2), v(c0 + 2)))
A("v_fma_f32 %s, %s, %s, %s" % (v(r0), v(r0), v(c0 + 2), v(gB1)))
k0 = -2 * math.log2(math.e) * math.sqrt(2 / math.pi)
A("v_mul_f32 %s, %s, %s" % (v(r1_), v(r0), v(r0)))
A("v_mov_b32 %s, %s" % (v(r2), f32(k0)))
A("v_fmac_f32 %s, %s, %s" % (v(r2), f32(k0 * 0.044715), v(r1_)))
A("v_mul_f32 %s, %s, %s" % (v(r2), v(r2), v(r0)))
A("v_exp_f32 %s, %s" % (v(r2), v(r2)))
A("v_add_f32 %s, 1.0, %s" % (v(r2), v(r2)))
A("v_rcp_f32 %s, %s" % (v(r2), v(r2)))
A("v_mul_f32 %s, %s, %s" % (v(r0), v(r0), v(r2)))
A("v_cvt_pk_bf16_f32 %s, %s, %s" % (v(r0), v(r0), v(r0)))
A("ds_write_b16 %s, %s" % (v(gW2lds), v(r0)))
A("s_waitcnt lgkmcnt(0)")
A.label("G_W2_SKIP")
A("s_barrier")

if P.get("SIG", 1):
    A("s_barrier")
A("s_cmp_eq_u32 %s, 0" % sL)
A("s_cbranch_scc1 G_X_GO")
A("s_cmp_lg_u32 %s, 0" % sLo)
A("s_cbranch_scc1 L_EXIT")
A("s_cmp_lg_u32 %s, %s" % (sWave, sJ))
A("s_cbranch_scc1 L_EXIT")
A.label("G_X_GO")
sleep(P["D_X"])


def xpre():
    A("v_lshlrev_b32 %s, 16, %s" % (v(c0), v(c0)))


poll(["global_load_ushort %s, %s, %s sc1" % (v(c0), v(gXr), pWJ),
      "global_load_dwordx4 %s, %s, %s sc1" % (v(a0, 4), v(gXg), pWL),
      "global_load_dwordx4 %s, %s, %s offset:256 sc1" % (v(b0, 4), v(gXg), pWL)],
     [(a0 + e, b0 + e) for e in range(4)] + [(c0, c0)], pre=xpre)
stamp("G")
add_ab()
A("v_add_f32 %s, %s, %s" % (v(c0), v(c0), v(gB2)))
g_treduce(a0)
A("v_add_f32 %s, %s, %s" % (v(r0), v(a0), v(c0)))
A("v_cvt_pk_bf16_f32 %s, %s, %s" % (v(r0), v(r0), v(r0)))
A("s_cmp_lg_u32 %s, 0" % sL)
A("s_cbranch_scc1 G_FINAL")
A("ds_write_b16 %s, %s" % (v(gXlds), v(r0)))
A("s_mov_b32 %s, 1" % sL)
padd(pWL, pWL, LSTR)
padd(pWJ, pWJ, LSTR)
A("s_waitcnt lgkmcnt(0)")
A("s_branch G_LOOP")
A.label("G_FINAL")
sleep(P.get("ENDSLEEP", 0))
if "ECHO" in P:
    A("s_memrealtime s[82:83]")
    A("s_sub_u32 s80, s80, s78")
    A("s_waitcnt lgkmcnt(0)")
    A("s_add_u32 s80, s80, s82")
    A.label("ECHO_SPIN")
    A("s_memrealtime s[82:83]")
    A("s_waitcnt lgkmcnt(0)")
    A("s_cmp_lt_u32 s82, s80")
    A("s_cbranch_scc1 ECHO_SPIN")
A("global_store_short %s, %s, %s" % (v(gOut), v(r0), pOUT))
A.label("L_EXIT")
stamp_dump()
A.label("L_END")
A("s_endpgm")

A.fix_hazards()

hdr = open("cdna_kernels/%s.s.ref" % NAME).read().split("; Override launch")[0]
out = hdr + """; @launch grid=(256,1,1) block=(768,1,1) lds=%d
.amdgcn_target "amdgcn-amd-amdhsa--gfx950"
.text
.globl %s_kernel
.p2align 8
.type %s_kernel,@function
%s_kernel:
%s
    ; pad the code section so that the 12 KB code prefetch stays inside it
    .fill ((12288 + 256 - (. - %s_kernel)) / 4), 4, 0xbf810000
.section .rodata,"a"
.p2align 6
.amdhsa_kernel %s_kernel
  .amdhsa_next_free_vgpr 168
  .amdhsa_next_free_sgpr 96
  .amdhsa_accum_offset 168
  .amdhsa_group_segment_fixed_size 0
  .amdhsa_kernarg_size 104
  .amdhsa_user_sgpr_count 2
  .amdhsa_user_sgpr_kernarg_segment_ptr 1
  .amdhsa_system_sgpr_workgroup_id_x 1
.end_amdhsa_kernel
""" % (LDS_TOTAL, NAME, NAME, NAME, A.text(), NAME, NAME)
open(sys.argv[1], "w").write(out)
print("wrote", sys.argv[1], "instructions:", sum(1 for x in A.ins if not x.label), "LDS", LDS_TOTAL)
```

```python
import sys, math, struct, os
from asmlib import Asm

NAME = "interleave_layers__sliding_block_cached__mixer_channel_mlp__decode"

P = dict(B0POS=2, W=64, NV1=8, D_A0=60, NSL=6, D_O=0, D_W1=8, D_W2=0, D_X=8, D_A=0, NT="nt", STAMP=0, FORCE_SAFE=0, PREF=1)
for a in sys.argv[2:]:
    k, v_ = a.split("=")
    P[k] = int(v_) if v_.lstrip("-").isdigit() else v_


def f32(x):
    return "0x%08x" % struct.unpack("<I", struct.pack("<f", x))[0]


LSTR = 0x200000
JSTR = 196608
E1, E1S, E4C = 0, 40960, 45056
E1T = 0x200000 * 2
REC = 0x1D8000
E2, E4, E4R, E2S, E4S = 65536, 131072, 188416, 192512, 193536
E3, E5 = 0x180000, 0x1C0000
SENT = 0x7F817F81
LW_Q, LW_O, LW_2, LW_1 = 0, 16384, 32768, 61440
XOP = 68608
QOP = XOP + 5 * 272
OOP = QOP + 4 * 272
X1OP = OOP + 4 * 272
HOP = X1OP + 5 * 80
ML = HOP + 448
FLG = ML + 256
ST0 = FLG + 16
NONCE = ST0 + 32
AP = (NONCE + 16 + 1023) // 1024 * 1024
LDS_TOTAL = AP + 16384
assert all(x % 16 == 0 for x in (XOP, QOP, OOP, X1OP, HOP, ML))

sWave, sJ, sS, sHi, sLo, sR1, sC1, sL, sBud = "s3", "s4", "s5", "s6", "s7", "s8", "s9", "s10", "s11"
sT0, sT1, sT2, sT3 = "s12", "s13", "s14", "s15"
pX, pK, pV, pWQ, pWO, pW1, pB1, pW2, pB2, pOUT, pDBG, pWS = (
    "s[16:17]", "s[18:19]", "s[20:21]", "s[22:23]", "s[24:25]", "s[28:29]", "s[30:31]", "s[32:33]", "s[34:35]",
    "s[36:37]", "s[38:39]", "s[40:41]")
pWL = "s[42:43]"
sFast = "s44"
sU = "s45"
mQ = ["s[50:51]", "s[52:53]", "s[54:55]", "s[56:57]"]
sPermLo, sPermHi = "s58", "s59"
sC = "s60"
pT = "s[62:63]"
pT2 = "s[64:65]"
sXcc = "s66"
sK0, sK1, sK2 = "s67", "s68", "s69"
mT = "s[70:71]"
pWJ = "s[72:73]"
pPC = "s[46:47]"
pN = "s[48:49]"

A = Asm()
NT = (" " + P["NT"]) if P["NT"] else ""
STAMP = P["STAMP"]


def v(n, cnt=1):
    return "v%d" % n if cnt == 1 else "v[%d:%d]" % (n, n + cnt - 1)


def smov64(pair, val):
    lo = int(pair[2:].split(":")[0])
    A("s_mov_b32 s%d, 0x%08x" % (lo, val & 0xFFFFFFFF))
    A("s_mov_b32 s%d, 0x%08x" % (lo + 1, val >> 32))


def exec_lines(val):
    if val == -1:
        return ["s_mov_b64 exec, -1"]
    if 0 <= val <= 64:
        return ["s_mov_b64 exec, %d" % val]
    return ["s_mov_b32 exec_lo, 0x%08x" % (val & 0xFFFFFFFF), "s_mov_b32 exec_hi, 0x%08x" % (val >> 32)]


def set_exec(val):
    for l in exec_lines(val):
        A(l)


def padd(dst, src, soff):
    d = int(dst[2:].split(":")[0]); s = int(src[2:].split(":")[0])
    A("s_add_u32 s%d, s%d, %s" % (d, s, soff))
    A("s_addc_u32 s%d, s%d, 0" % (d + 1, s + 1))


def sexpr(dst, terms, const=0, tmp=sT3):
    first = True
    for (r, m) in terms:
        t = dst if first else tmp
        if m == 1:
            if first:
                A("s_mov_b32 %s, %s" % (dst, r))
            else:
                A("s_add_u32 %s, %s, %s" % (dst, dst, r))
            first = False
            continue
        if m & (m - 1) == 0:
            A("s_lshl_b32 %s, %s, %d" % (t, r, m.bit_length() - 1))
        else:
            A("s_mul_i32 %s, %s, %d" % (t, r, m))
        if not first:
            A("s_add_u32 %s, %s, %s" % (dst, dst, t))
        first = False
    if first:
        A("s_mov_b32 %s, %d" % (dst, const))
    elif const:
        A("s_add_u32 %s, %s, %d" % (dst, dst, const))


def vexpr(dst, terms, sreg=None, const=0):
    first = True
    for (r, m) in terms:
        if first:
            if m == 1:
                A("v_mov_b32 %s, %s" % (v(dst), v(r)))
            elif m & (m - 1) == 0:
                A("v_lshlrev_b32 %s, %d, %s" % (v(dst), m.bit_length() - 1, v(r)))
            else:
                A("v_mul_u32_u24 %s, %d, %s" % (v(dst), m, v(r)))
            first = False
        else:
            assert m & (m - 1) == 0, "non power of two term must come first"
            A("v_lshl_add_u32 %s, %s, %d, %s" % (v(dst), v(r), m.bit_length() - 1, v(dst)))
    if sreg:
        A("v_add_u32 %s, %s, %s" % (v(dst), sreg, v(dst)))
    if const:
        A("v_add_u32 %s, %d, %s" % (v(dst), const, v(dst)))


DPP = " row_mask:0xf bank_mask:0xf"
X1 = "quad_perm:[1,0,3,2]" + DPP
X2 = "quad_perm:[2,3,0,1]" + DPP
HM = "row_half_mirror" + DPP
RM = "row_mirror" + DPP
_lab = [0]


def newlabel(p="L"):
    _lab[0] += 1
    return "%s_%d" % (p, _lab[0])


def sleep(n):
    while n > 0:
        k = min(n, 127)
        A("s_sleep %d" % k)
        n -= k


def g_treduce(a):
    A("v_permlane16_swap_b32 %s, %s" % (v(a), v(a + 1)))
    A("v_permlane16_swap_b32 %s, %s" % (v(a + 2), v(a + 3)))
    A("v_add_f32 %s, %s, %s" % (v(a), v(a), v(a + 1)))
    A("v_add_f32 %s, %s, %s" % (v(a + 2), v(a + 2), v(a + 3)))
    A("v_permlane32_swap_b32 %s, %s" % (v(a), v(a + 2)))
    A("v_add_f32 %s, %s, %s" % (v(a), v(a), v(a + 2)))


def g_allreduce(op, r, t):
    for sw in ("v_permlane16_swap_b32", "v_permlane32_swap_b32"):
        A("v_mov_b32 %s, %s" % (v(t), v(r)))
        A("%s %s, %s" % (sw, v(r), v(t)))
        A("%s %s, %s, %s" % (op, v(r), v(r), v(t)))


def budget_loop(top):
    A("s_sub_u32 %s, %s, 1" % (sBud, sBud))
    A("s_cbranch_scc0 %s" % top)
    A("s_mov_b32 %s, 0" % sBud)


def poll(loads, check_pairs, pre=None, nap=0):
    top, done = newlabel("POLL"), newlabel("PDONE")
    A.label(top)
    for l in loads:
        A(l)
    A("s_waitcnt vmcnt(0)")
    if pre:
        pre()
    first = True
    for (a, b) in check_pairs:
        if first:
            A("v_cmp_u_f32 vcc, %s, %s" % (v(a), v(b)))
            first = False
        else:
            A("v_cmp_u_f32 %s, %s, %s" % (mT, v(a), v(b)))
            A("s_or_b64 vcc, vcc, %s" % mT)
    A("s_cbranch_vccz %s" % done)
    sleep(nap)
    budget_loop(top)
    A.label(done)


def store_intra(insn):
    ls, le = newlabel("SAFE"), newlabel("SEND")
    A("s_cmp_eq_u32 %s, 0" % sFast)
    A("s_cbranch_scc1 %s" % ls)
    for i in insn:
        A(i)
    A("s_branch %s" % le)
    A.label(ls)
    for i in insn:
        A(i + (" sc1" if i.startswith("global_store") else ""))
    A.label(le)


_st = {"G": 0, "S": 0}


def stamp(kind, idx=None):
    if idx is None:
        n = _st[kind]; _st[kind] += 1
    else:
        n = idx
    if "ECHO" in P and kind == "G" and P["ECHO"] % 100 == n:
        lab = newlabel("ECHO")
        A("s_cmp_lg_u32 %s, %d" % (sL, P["ECHO"] // 100))
        A("s_cbranch_scc1 %s" % lab)
        A("s_waitcnt lgkmcnt(0)")
        A("s_memrealtime s[80:81]")
        A("s_waitcnt lgkmcnt(0)")
        A.label(lab)
    if not STAMP:
        return
    if STAMP == 2 and not (kind == "G" and n in (2, 6)):
        return
    A("s_waitcnt lgkmcnt(0)")
    A("s_memrealtime s[74:75]")
    A("s_lshl_b32 s76, %s, 4" % sL)
    A("s_add_u32 m0, s76, %d" % n)
    A("s_waitcnt lgkmcnt(0)")
    A("v_writelane_b32 v15, s74, m0")


def stamp_init():
    if STAMP:
        A("v_mov_b32 v15, 0")
        A("v_writelane_b32 v15, s78, 15")


def stamp_dump():
    if not STAMP:
        return
    A("s_mul_i32 s76, s2, 12")
    A("s_add_u32 s76, s76, %s" % sWave)
    A("s_lshl_b32 s76, s76, 8")
    A("s_add_u32 s76, s76, 0x800000")
    A("v_lshlrev_b32 v13, 2, v0")
    A("v_add_u32 v13, s76, v13")
    A("global_store_dword v13, v15, %s" % pWS)


def if_layer0():
    lab = newlabel("NOTL0")
    A("s_cmp_lg_u32 %s, 0" % sL)
    A("s_cbranch_scc1 %s" % lab)
    return lab


def ssync(k):
    top = newlabel("SSY")
    A("v_mov_b32 v5, %d" % (FLG + 4 + 4 * k))
    A("v_mov_b32 v6, 1")
    set_exec(1)
    A("ds_add_u32 v5, v6")
    set_exec(-1)
    A.label(top)
    A("ds_read_b32 v6, v5")
    A("s_waitcnt lgkmcnt(0)")
    A("v_readfirstlane_b32 %s, v6" % sT0)
    A("s_cmp_eq_u32 %s, 4" % sT0)
    done = newlabel("SSD")
    A("s_cbranch_scc1 %s" % done)
    budget_loop(top)
    A.label(done)


MFMA = "v_mfma_f32_16x16x32_bf16"
A("s_getpc_b64 %s" % pPC)
A("s_cmp_ge_u32 s2, 256")
A("s_cbranch_scc1 L_END")
if STAMP or "ECHO" in P:
    A("s_memrealtime s[78:79]")
A("s_load_dwordx16 s[16:31], s[0:1], 0")
A("s_load_dwordx8 s[32:39], s[0:1], 64")
A("s_load_dwordx2 s[40:41], s[0:1], 96")
if P["PREF"]:
    A("v_lshlrev_b32 v3, 4, v0")
    A("global_load_dwordx4 v[140:143], v3, %s offset:-4" % pPC)
A("v_lshrrev_b32 v1, 6, v0")
A("v_and_b32 v0, 63, v0")
A("v_readfirstlane_b32 %s, v1" % sWave)
A("s_and_b32 %s, s2, 7" % sJ)
A("s_lshr_b32 %s, s2, 3" % sS)
A("s_lshr_b32 %s, s2, 6" % sHi)
A("s_and_b32 %s, %s, 7" % (sLo, sS))
A("s_lshr_b32 %s, s2, 4" % sR1)
A("s_and_b32 %s, %s, 1" % (sC1, sS))
A("s_mov_b32 %s, 0" % sL)
A("s_mov_b32 %s, 400000" % sBud)
A("v_and_b32 v1, 15, v0")
A("v_lshrrev_b32 v2, 4, v0")
A("v_lshlrev_b32 v3, 4, v0")
A("s_mov_b32 %s, %s" % (sU, sWave))
A("s_sub_u32 %s, %s, 4" % (sWave, sWave))
A("s_cbranch_scc0 L_G")

WQ, WO, W1R, W2R, XR, DR, SS = 16, 32, 48, 56, 84, 112, 120
(sXa, sXb, sOrd, sX1a, sX1b, sHrd, sE1w, sE1sw, sAg, sAst, sQw, sCq0, sCq1, sCrd, sMlrd, sE2w, sE3w, sE4w, sE4sw, sE4rw, sE5w,
 sTr, sClr, sTr1) = range(144, 168)
SN = 8
sCsP = 139
sDma = 138
X0 = 132
ga, gb, gc = SS, SS + 4, SS + 8
STM = 0x0018001400120011
A("s_add_u32 %s, %s, 8" % (sWave, sU))
A("v_mov_b32 v4, %d" % FLG)
A("v_mov_b32 v6, 0")
A("v_mov_b32 v7, 0")
A("ds_write_b64 v4, v[6:7]")
A("ds_write_b64 v4, v[6:7] offset:8")
for i in range(4):
    A("v_mov_b32 %s, 0x%08x" % (v(SN + i), SENT))
A("s_and_b32 %s, %s, 1" % (sK0, sU))
A("s_lshr_b32 %s, %s, 1" % (sK1, sU))
sexpr(sT0, [(sS, 5120), (sU, 1280)], 32768)
A("v_add_u32 v7, %s, v3" % sT0)
sexpr(sT0, [("s2", 1280), (sK0, LSTR), (sK1, 640)], E3)
A("v_add_u32 v12, %s, v3" % sT0)
A("s_mul_i32 %s, %s, %d" % (sT0, sJ, JSTR))
A("v_lshrrev_b32 v13, 3, v0")
A("v_and_b32 v14, 7, v0")
vexpr(SS, [(13, 8192), (14, 16)])
sexpr(sT1, [(sHi, 128 * 8192), (sU, 32 * 8192), (sJ, 1024), (sLo, 128)])
sexpr(sT2, [(sU, 1024)])
A("v_add_u32 %s, %s, v3" % (v(SS + 1), sT2))
A("s_waitcnt lgkmcnt(0)")
padd(pWJ, pWS, sT0)
padd(pT, pWQ, sT1)
A("v_mov_b32 v4, 0")
A("s_or_b32 %s, s2, %s" % (sT0, sU))
A("s_cbranch_scc1 S_NONONCE")
A("s_memrealtime %s" % pN)
A("s_waitcnt lgkmcnt(0)")
A("s_or_b32 s48, s48, 1")
A("v_mov_b32 %s, s49" % v(SS + 3))
A("v_mov_b32 %s, s48" % v(SS + 2))
set_exec(1)
A("global_store_dwordx2 v4, %s, %s sc1" % (v(SS + 2, 2), pDBG))
set_exec(-1)
A.label("S_NONONCE")
def nonce_fetch():
    A("s_cmp_lg_u32 %s, 3" % sU)
    A("s_cbranch_scc1 S_NP_SKIP")
    A("v_mov_b32 v4, 0")
    sleep(P.get("D_N", 0))
    A.label("S_NP")
    A("global_load_dwordx2 v[6:7], v4, %s sc1" % pDBG)
    A("s_waitcnt vmcnt(0)")
    A("v_cmp_eq_u32 vcc, 0, v6")
    A("s_cbranch_vccz S_NP_DONE")
    A("s_sleep %d" % P.get("NSL", 2))
    budget_loop("S_NP")
    A.label("S_NP_DONE")
    A("v_mov_b32 v5, %d" % NONCE)
    A("ds_write_b64 v5, v[6:7]")
    A("s_waitcnt lgkmcnt(0)")
    if P.get("NLATE"):
        stamp("S", 10)
    A.label("S_NP_SKIP")


if not P.get("NLATE"):
    A("v_mov_b32 %s, v7" % v(SS + 4))
    nonce_fetch()
    A("v_mov_b32 v7, %s" % v(SS + 4))
A("global_load_dwordx4 %s, %s, %s%s" % (v(X0, 4), v(SS + 1), pX, NT))
A("s_lshl_b32 %s, %s, 12" % (sT1, sU))
for i in range(4):
    A("s_add_u32 m0, %s, %d" % (sT1, LW_Q + 1024 * i))
    A("global_load_lds_dwordx4 %s, %s%s" % (v(SS), pT, NT))
    if i < 3:
        padd(pT, pT, 8 * 8192)
if P.get("NOCLR"):
    set_exec(1)
A("global_store_dwordx4 v7, %s, %s sc1" % (v(SN, 4), pWJ))
set_exec(1 if P.get("NOCLR") else 0xFFFF)
A("global_store_dwordx4 v7, %s, %s offset:1024 sc1" % (v(SN, 4), pWJ))
set_exec(1 if P.get("NOCLR") else 0xFFFFFFFFFF)
A("global_store_dwordx4 v12, %s, %s sc1" % (v(SN, 4), pWS))
set_exec(-1)
A("s_barrier")
stamp_init()
stamp("S", 9)
if P.get("NLATE"):
    nonce_fetch()
A("s_getreg_b32 %s, hwreg(HW_REG_XCC_ID)" % sXcc)
A("s_and_b32 %s, %s, 7" % (sXcc, sXcc))
A("s_mov_b32 s42, s40")
A("s_mov_b32 s43, s41")
A("s_mov_b32 %s, 0" % sFast)
sexpr(sT0, [(sS, 6144), (sU, 1536)])
A("v_add_u32 %s, %s, v3" % (v(sClr), sT0))
A("v_mov_b32 v12, 0x3f803f80")
vexpr(13, [(0, 4)], None, XOP + 4 * 272)
A("ds_write_b32 v13, v12")
vexpr(13, [(1, 4)], None, X1OP + 4 * 80)
A("ds_write_b32 v13, v12")
A("v_lshrrev_b32 v12, 2, v1")
A("v_min_u32 v13, 4, v1")
A("v_and_b32 v14, 3, v1")
vexpr(sXa, [(12, 272), (2, 16)], None, XOP)
sexpr(sT0, [(sU, 64)], XOP)
vexpr(sXb, [(13, 272), (2, 16)], sT0)
vexpr(sOrd, [(12, 272), (2, 16)], None, OOP)
vexpr(sX1a, [(12, 80), (2, 16)], None, X1OP)
vexpr(sX1b, [(13, 80), (2, 16)], None, X1OP)
vexpr(sHrd, [(2, 16)], None, HOP)
sexpr(sT0, [(sHi, 2048), (sLo, 256), (sU, 64)], E1)
vexpr(sE1w, [(2, 8192), (1, 4)], sT0)
vexpr(SS + 3, [(2, 128)])
A("v_lshlrev_b32 %s, 2, v12" % v(SS + 4))
A("v_sub_u32 %s, %s, %s" % (v(SS + 3), v(SS + 3), v(SS + 4)))
sexpr(sT0, [(sLo, 512), (sHi, 32), (sU, 8)], E1S + 4)
A("v_add_u32 %s, %s, %s" % (v(sE1sw), sT0, v(SS + 3)))
sexpr(sT0, [(sR1, 8)], E4S + 4)
A("v_add_u32 %s, %s, %s" % (v(sE4sw), sT0, v(SS + 3)))
sexpr(sT0, [(sR1, 64)], E4R)
vexpr(sE4rw, [(14, 1024), (2, 16)], sT0)
A("v_and_b32 %s, 31, v0" % v(SS + 3))
A("v_lshrrev_b32 %s, 5, v0" % v(SS + 4))
sexpr(sT0, [(sHi, 8192), (sU, 512)], E1)
vexpr(sAg, [(SS + 4, 4096), (SS + 3, 16)], sT0)
sexpr(sT0, [(sLo, 512), (sHi, 128)], E1S)
vexpr(sAst, [(1, 8)], sT0)
sexpr(sT0, [(sU, 272)], QOP)
vexpr(sQw, [(SS + 3, 8), (SS + 4, 4)], sT0)
A("v_bfe_u32 %s, v0, 4, 1" % v(SS + 5))
A("v_bfe_u32 %s, v0, 2, 2" % v(SS + 6))
A("v_and_b32 %s, 3, v0" % v(SS + 7))
sexpr(sT0, [(sU, 16)], AP)
vexpr(sCrd, [(SS + 4, 8192), (SS + 5, 1024), (SS + 6, 256), (SS + 7, 64)], sT0)
sexpr(sT0, [(sU, 64)], ML)
vexpr(sMlrd, [(SS + 4, 32)], sT0)
sexpr(sT0, [(sU, 32 * 512), (sS, 512)], E2)
vexpr(sE2w, [(0, 8)], sT0)
sexpr(sC, [(sU, 256), (sS, 8)], E2S)
sexpr(sT0, [(sLo, 32768), (sK1, 16384), (sJ, 2048), (sHi, 512), (sK0, 256)], E3)
vexpr(sE3w, [(0, 4)], sT0)
sexpr(sT0, [(sR1, 896), (sC1, 448), (sU, 128)], E4)
vexpr(sE4w, [(2, 16 * 896), (1, 4)], sT0)
sexpr(sT0, [("s2", 256), (sU, 64)], E5)
vexpr(sE5w, [(1, 4)], sT0)
A("v_lshl_add_u32 %s, v2, 3, v12" % v(SS + 3))
sexpr(sT0, [(sU, 32)])
vexpr(sTr, [(SS + 3, 128), (14, 8)], sT0)
sexpr(sT0, [(sU, 64)])
vexpr(sTr1, [(SS + 3, 224), (14, 8)], sT0)
stamp("S", 11)
A("s_waitcnt vmcnt(0)")
stamp("S", 12)
sexpr(sT0, [(sU, 272)], XOP)
vexpr(4, [(1, 16)], sT0)
A("s_lshl_b32 %s, %s, 4" % (sT0, sHi))
A("s_mov_b32 %s, 0xffff" % sT2)
A("s_mov_b32 %s, 0" % sT3)
A("s_lshl_b64 exec, s[14:15], %s" % sT0)
A("ds_write_b128 v4, %s" % v(X0, 4))
set_exec(-1)
for i in range(4):
    A("v_lshlrev_b32 %s, 16, %s" % (v(SS + 2 * i), v(X0 + i)))
    A("v_and_b32 %s, 0xffff0000, %s" % (v(SS + 2 * i + 1), v(X0 + i)))
A("v_add_f32 v4, %s, %s" % (v(SS), v(SS + 1)))
A("v_mul_f32 v5, %s, %s" % (v(SS), v(SS)))
A("v_fmac_f32 v5, %s, %s" % (v(SS + 1), v(SS + 1)))
for i in range(2, 8):
    A("v_add_f32 v4, v4, %s" % v(SS + i))
    A("v_fmac_f32 v5, %s, %s" % (v(SS + i), v(SS + i)))
for m in (X1, X2, HM, RM):
    A("v_add_f32_dpp v4, v4, v4 %s" % m)
    A("v_add_f32_dpp v5, v5, v5 %s" % m)
g_allreduce("v_add_f32", 4, 6)
g_allreduce("v_add_f32", 5, 6)
A("v_mul_f32 v4, %s, v4" % f32(1 / 512))
A("v_mul_f32 v5, %s, v5" % f32(1 / 512))
A("v_fma_f32 v5, -v4, v4, v5")
A("v_max_f32 v5, 0, v5")
A("v_add_f32 v5, %s, v5" % f32(1e-5))
A("v_rsq_f32 v5, v5")
sexpr(sT0, [(sU, 8)], ST0)
A("v_mov_b32 v6, %s" % sT0)
A("ds_write_b64 v6, v[4:5]")
A("s_waitcnt lgkmcnt(0)")
ssync(0)
stamp("S", 0)
for t in range(4):
    A("ds_read_b128 %s, %s offset:%d" % (v(XR + 4 * t, 4), v(sXa), 64 * t))
for t in range(4):
    for hh in range(2):
        A("ds_read_b64_tr_b16 %s, %s offset:%d" % (v(WQ + 4 * t + 2 * hh, 2), v(sTr), LW_Q + (32 * t + 4 * hh) * 128))
vexpr(4, [(2, 8)], None, ST0)
A("ds_read_b64 v[6:7], v4")
A("v_mov_b32 v4, %d" % NONCE)
A("ds_read_b64 v[12:13], v4")
for i in range(4):
    A("v_mov_b32 %s, 0x3f803f80" % v(XR + 16 + i))
A("s_waitcnt lgkmcnt(0)")
for t in range(4):
    A("%s %s, %s, %s, %s" % (MFMA, v(DR, 4), v(XR + 4 * t, 4), v(WQ + 4 * t, 4), "0" if t == 0 else v(DR, 4)))
    A("%s %s, %s, %s, %s" % (MFMA, v(DR + 4, 4), v(XR + 16, 4), v(WQ + 4 * t, 4), "0" if t == 0 else v(DR + 4, 4)))
A("v_fma_f32 %s, -v6, %s, %s" % (v(DR), v(DR + 4), v(DR)))
A("v_mul_f32 %s, %s, v7" % (v(DR), v(DR)))
A("v_mov_b32 %s, %s" % (v(sCsP), v(DR + 4)))
A("v_mov_b32 %s, v12" % v(DR + 1))
sexpr(sT0, [(sJ, 65536), (sHi, 4096), (sLo, 512), (sU, 128)], E1T)
vexpr(4, [(2, 16384), (1, 8)], sT0)
stamp("S", 1)
A("global_store_dwordx2 v4, %s, %s sc1" % (v(DR, 2), pWS))
A("v_readfirstlane_b32 s48, v12")
A("v_readfirstlane_b32 s49, v13")
A("s_cmp_lg_u32 %s, 1" % sU)
A("s_cbranch_scc1 S_NOREC")
sexpr(sT0, [(sJ, 32 * 128), (sS, 128)], REC)
A("v_mov_b32 v4, %s" % sT0)
A("v_mov_b32 v14, %s" % sXcc)
set_exec(1)
A("global_store_dwordx3 v4, v[12:14], %s sc1" % pWS)
set_exec(-1)
A.label("S_NOREC")


def wt_slice(base):
    A("global_store_dwordx4 %s, %s, %s sc1" % (v(sClr), v(SN, 4), base))
    A("s_mov_b32 exec_hi, 0")
    A("global_store_dwordx4 %s, %s, %s offset:1024 sc1" % (v(sClr), v(SN, 4), base))
    A("s_mov_b64 exec, -1")


def half_treduce(r):
    A("v_permlane32_swap_b32 %s, %s" % (v(r), v(r + 2)))
    A("v_permlane32_swap_b32 %s, %s" % (v(r + 1), v(r + 3)))
    A("v_add_f32 %s, %s, %s" % (v(r), v(r), v(r + 2)))
    A("v_add_f32 %s, %s, %s" % (v(r + 1), v(r + 1), v(r + 3)))


AG = ["global_load_dwordx4 %s, %s, %s sc1" % (v(ga, 4), v(sAg), pWJ),
      "global_load_dwordx4 %s, %s, %s offset:2048 sc1" % (v(gb, 4), v(sAg), pWJ)]
AGC = [(ga + e, gb + e) for e in range(4)]
sexpr(sT0, [(sJ, 65536), (sHi, 16384), (sU, 1024)], E1T + 4096)
A("v_add_u32 v4, %s, v3" % sT0)
A("v_add_u32 v5, 8192, v4")
sexpr(sT0, [(sU, 64 * 128)], REC)
vexpr(6, [(0, 128)], sT0)
sleep(P.get("D_A0", 20))
TQ = XR
A.label("S_AG0")
A("global_load_dwordx4 %s, v4, %s offset:-4096 sc1" % (v(TQ, 4), pWS))
A("global_load_dwordx4 %s, v4, %s sc1" % (v(TQ + 4, 4), pWS))
A("global_load_dwordx4 %s, v5, %s offset:-4096 sc1" % (v(TQ + 8, 4), pWS))
A("global_load_dwordx4 %s, v5, %s sc1" % (v(TQ + 12, 4), pWS))
A("s_waitcnt vmcnt(0)")
for i in range(8):
    A("v_xor_b32 %s, s48, %s" % (v(TQ + 2 * i + 1), v(TQ + 2 * i + 1)))
A("v_or3_b32 v7, %s, %s, %s" % (v(TQ + 1), v(TQ + 3), v(TQ + 5)))
A("v_or3_b32 v7, v7, %s, %s" % (v(TQ + 7), v(TQ + 9)))
A("v_or3_b32 v7, v7, %s, %s" % (v(TQ + 11), v(TQ + 13)))
A("v_or_b32 v7, v7, %s" % v(TQ + 15))
A("v_cmp_ne_u32 vcc, 0, v7")
A("s_cbranch_vccz S_AG0_DONE")
sleep(P.get("NAPQ", 8))
budget_loop("S_AG0")
A.label("S_AG0_DONE")
A("global_load_dwordx3 v[12:14], v6, %s sc1" % pWS)
A("v_mov_b32 v4, %d" % (FLG + 12))
A("v_mov_b32 v5, 1")
A("ds_write_b32 v4, v5")
stamp("S", 2)
for c in range(2):
    A("v_add_f32 %s, %s, %s" % (v(TQ + 2 * c), v(TQ + 2 * c), v(TQ + 4 + 2 * c)))
    A("v_add_f32 %s, %s, %s" % (v(TQ + 8 + 2 * c), v(TQ + 8 + 2 * c), v(TQ + 12 + 2 * c)))
    A("v_add_f32 %s, %s, %s" % (v(TQ + 2 * c), v(TQ + 2 * c), v(TQ + 8 + 2 * c)))
A("v_cvt_pk_bf16_f32 %s, %s, %s" % (v(ga), v(TQ), v(TQ + 2)))
sexpr(sT0, [(sU, 272)], QOP)
vexpr(4, [(0, 4)], sT0)
A("ds_write_b32 v4, %s" % v(ga))
A("s_waitcnt lgkmcnt(0)")
A("s_barrier")
A("v_lshrrev_b32 v4, 3, v0")
A("v_and_b32 v5, 7, v0")
vexpr(sDma, [(4, 1024), (5, 16)])
sexpr(sT0, [(sJ, 512 * 1024), (sHi, 128 * 1024), (sU, 32 * 1024), (sLo, 128)])
padd(pT, pWO, sT0)
sexpr(sT1, [(sU, 4096)], LW_O)
for k in range(4):
    A("s_add_u32 m0, %s, %d" % (sT1, 1024 * k))
    A("global_load_lds_dwordx4 %s, %s%s" % (v(sDma), pT, NT))
    if k < 3:
        padd(pT, pT, 8192)
sexpr(sT0, [(sR1, 32 * 3584), (sJ, 448), (sC1, 224)])
padd(pT, pW1, sT0)
for k in range(2):
    A("s_lshl_b32 %s, %s, 1" % (sT1, sU))
    if k:
        A("s_add_u32 %s, %s, 1" % (sT1, sT1))
        A("s_min_u32 %s, %s, 6" % (sT1, sT1))
    A("s_lshl_b32 %s, %s, 6" % (sT0, sT1))
    A("v_add_u32 v4, %s, v0" % sT0)
    A("v_mul_u32_u24 v5, 4682, v4")
    A("v_lshrrev_b32 v5, 16, v5")
    A("v_mul_u32_u24 v7, 14, v5")
    A("v_sub_u32 v4, v4, v7")
    A("v_mul_u32_u24 v5, 3584, v5")
    A("v_lshl_add_u32 v4, v4, 4, v5")
    A("s_lshl_b32 %s, %s, 10" % (sT0, sT1))
    A("s_add_u32 m0, %s, %d" % (sT0, LW_1))
    A("global_load_lds_dwordx4 v4, %s%s" % (pT, NT))
for n in range(448):
    assert (n * 4682) >> 16 == n // 14
A("s_waitcnt vmcnt(6)")
A("s_branch S_RP_CHK")
A.label("S_RP")
A("global_load_dwordx3 v[12:14], v6, %s sc1" % pWS)
A("s_waitcnt vmcnt(0)")
A.label("S_RP_CHK")
A("v_cmp_ne_u64 vcc, %s, v[12:13]" % pN)
A("s_cbranch_vccz S_RP_DONE")
A("s_sleep %d" % P.get("PSL", 8))
budget_loop("S_RP")
A("v_mov_b32 v14, -1")
A.label("S_RP_DONE")
A("s_lshr_b32 %s, %s, 1" % (sT0, sJ))
A("s_cmp_lg_u32 %s, %s" % (sT0, sU))
A("s_cbranch_scc1 S_REC_SKIP")
A("v_cmp_ne_u32 vcc, %s, v14" % sXcc)
A("s_bitcmp1_b32 %s, 0" % sJ)
A("s_cselect_b32 %s, vcc_hi, vcc_lo" % sT0)
A("s_cmp_eq_u32 %s, 0" % sT0)
A("s_cselect_b32 %s, 1, 0" % sT0)
if P["FORCE_SAFE"]:
    A("s_mov_b32 %s, 0" % sT0)
A("v_mov_b32 v5, %d" % FLG)
A("v_mov_b32 v7, %s" % sT0)
A("ds_write_b32 v5, v7")
A.label("S_REC_SKIP")
stamp("S", 14)
A("s_waitcnt lgkmcnt(0)")

W2BLK = r'''sexpr(sT0, [(sJ, 224 * 1024), (sLo, 128), (sU, 7 * 8192)])
padd(pT, pW2, sT0)
sexpr(sT1, [(sU, 7 * 1024)], LW_2)
for k in range(7):
    A("s_add_u32 m0, %s, %d" % (sT1, 1024 * k))
    A("global_load_lds_dwordx4 %s, %s%s" % (v(sDma), pT, NT))
    if k < 6:
        padd(pT, pT, 8192)
'''
TRBLK = r'''lab = if_layer0()
for t in range(7):
    for hh in range(2):
        A("ds_read_b64_tr_b16 %s, %s offset:%d" % (v(W2R + 4 * t + 2 * hh, 2), v(sTr), LW_2 + (32 * t + 4 * hh) * 128))
A("s_waitcnt lgkmcnt(0)")
A.label(lab)
'''
A.label("S_LOOP")
A("s_barrier")
stamp("S", 3)
cm = XR
ca = XR + 8
A("v_mov_b32 v5, %d" % FLG)
A("ds_read_b32 v6, v5")
A("ds_read_b128 %s, %s" % (v(cm, 4), v(sMlrd)))
A("ds_read_b128 %s, %s offset:16" % (v(cm + 4, 4), v(sMlrd)))
for k in range(4):
    A("ds_read_b128 %s, %s offset:%d" % (v(ca + 4 * k, 4), v(sCrd), 2048 * k))
cM, cL, cT, cAd = SS, SS + 1, SS + 2, SS + 3
A("v_mov_b32 %s, %s" % (v(cAd), sC))
A("s_waitcnt lgkmcnt(4)")
A("v_readfirstlane_b32 %s, v6" % sFast)
A("v_max3_f32 %s, %s, %s, %s" % (v(cM), v(cm), v(cm + 2), v(cm + 4)))
A("v_max_f32 %s, %s, %s" % (v(cM), v(cM), v(cm + 6)))
A("v_mov_b32 %s, %s" % (v(cT), v(cM)))
A("v_permlane32_swap_b32 %s, %s" % (v(cM), v(cT)))
A("v_max_f32 %s, %s, %s" % (v(cM), v(cM), v(cT)))
for k in range(4):
    A("v_sub_f32 %s, %s, %s" % (v(cm + 2 * k), v(cm + 2 * k), v(cM)))
for k in range(4):
    A("v_exp_f32 %s, %s" % (v(cm + 2 * k), v(cm + 2 * k)))
A("s_waitcnt lgkmcnt(0)")
for e in range(4):
    A("v_mul_f32 %s, %s, %s" % (v(DR + e), v(cm), v(ca + e)))
A("v_mul_f32 %s, %s, %s" % (v(cL), v(cm), v(cm + 1)))
for k in range(1, 4):
    for e in range(4):
        A("v_fmac_f32 %s, %s, %s" % (v(DR + e), v(cm + 2 * k), v(ca + 4 * k + e)))
    A("v_fmac_f32 %s, %s, %s" % (v(cL), v(cm + 2 * k), v(cm + 2 * k + 1)))
A("v_mov_b32 %s, %s" % (v(cT), v(cL)))
A("v_permlane32_swap_b32 %s, %s" % (v(DR), v(DR + 2)))
A("v_permlane32_swap_b32 %s, %s" % (v(DR + 1), v(DR + 3)))
A("v_permlane32_swap_b32 %s, %s" % (v(cL), v(cT)))
A("v_add_f32 %s, %s, %s" % (v(DR), v(DR), v(DR + 2)))
A("v_add_f32 %s, %s, %s" % (v(DR + 1), v(DR + 1), v(DR + 3)))
A("v_add_f32 %s, %s, %s" % (v(cL), v(cL), v(cT)))
store_intra(["global_store_dwordx2 %s, %s, %s" % (v(sE2w), v(DR, 2), pWJ),
             "s_mov_b64 exec, 1",
             "global_store_dwordx2 %s, %s, %s" % (v(cAd), v(cM, 2), pWJ),
             "s_mov_b64 exec, -1"])
stamp("S", 4)
lab = if_layer0()
A("v_add_u32 %s, %d, %s" % (v(gc), 4 * 8192, v(sE1w)))
padd(pT, pWJ, LSTR)
store_intra(exec_lines(0xFFFF) +
            ["global_store_dword %s, %s, %s" % (v(gc), v(sCsP), pWJ),
             "s_mov_b64 exec, -1",
             ] + ([] if P.get("CLEAN", 0) >= 1 else [
             "global_store_dwordx4 %s, %s, %s" % (v(sClr), v(SN, 4), pT),
             "s_mov_b32 exec_hi, 0",
             "global_store_dwordx4 %s, %s, %s offset:1024" % (v(sClr), v(SN, 4), pT),
             "s_mov_b64 exec, -1"]))
if P.get("CLEAN", 0) >= 1:
    wt_slice(pT)
if not P.get("W2LATE", 0):
    exec(W2BLK)
    A("s_waitcnt vmcnt(7)")
else:
    A("s_waitcnt vmcnt(0)")
A.label(lab)
A("s_barrier")
stamp("S", 5)
for t in range(4):
    A("ds_read_b128 %s, %s offset:%d" % (v(XR + 4 * t, 4), v(sOrd), 64 * t))
lab = if_layer0()
for t in range(4):
    for hh in range(2):
        A("ds_read_b64_tr_b16 %s, %s offset:%d" % (v(WO + 4 * t + 2 * hh, 2), v(sTr), LW_O + (32 * t + 4 * hh) * 128))
A("s_waitcnt lgkmcnt(0)")
A.label(lab)
for t in range(4):
    A("s_waitcnt lgkmcnt(%d)" % (3 - t))
    A("%s %s, %s, %s, %s" % (MFMA, v(DR, 4), v(XR + 4 * t, 4), v(WO + 4 * t, 4), "0" if t == 0 else v(DR, 4)))
A("global_store_dword %s, %s, %s sc1" % (v(sE3w), v(DR), pWL))
if P.get("SIG", 1):
    A("s_barrier")
lab = if_layer0()
for tl in range(2):
    for hh in range(2):
        A("ds_read_b64_tr_b16 %s, %s offset:%d" % (v(W1R + 4 * tl + 2 * hh, 2), v(sTr1), LW_1 + 4 * hh * 224 + 32 * tl))
for i in range(4):
    A("v_mov_b32 %s, 0x3f803f80" % v(XR + i))
A("v_add_u32 %s, %d, %s" % (v(gc + 1), (E4C - E4) & 0xFFFFFFFF, v(sE4w)))
A("s_waitcnt lgkmcnt(0)")
A("%s %s, %s, %s, 0" % (MFMA, v(DR + 4, 4), v(XR, 4), v(W1R, 4)))
A("%s %s, %s, %s, 0" % (MFMA, v(XR + 4, 4), v(XR, 4), v(W1R + 4, 4)))
A("s_cmp_eq_u32 %s, 3" % sU)
A("s_cselect_b32 %s, 0, 0xffff" % sT0)
store_intra(exec_lines(0xFFFF) +
            ["global_store_dword %s, %s, %s" % (v(gc + 1), v(DR + 4), pWJ),
             "s_mov_b32 exec_lo, %s" % sT0,
             "global_store_dword %s, %s, %s offset:64" % (v(gc + 1), v(XR + 4), pWJ),
             "s_mov_b64 exec, -1"])
A("s_sub_u32 %s, 4, %s" % (sT0, sHi))
A("s_lshl_b32 %s, %s, 13" % (sT0, sT0))
A("v_add_u32 %s, %s, %s" % (v(gc), sT0, v(sAg)))
poll(["global_load_dwordx4 %s, %s, %s sc1" % (v(ga, 4), v(gc), pWJ),
      "global_load_dwordx4 %s, %s, %s offset:2048 sc1" % (v(gb, 4), v(gc), pWJ)], AGC, nap=4)
for e in range(4):
    A("v_add_f32 %s, %s, %s" % (v(ga + e), v(ga + e), v(gb + e)))
half_treduce(ga)
A("v_mov_b32 %s, %s" % (v(sCq0), v(ga)))
A("v_mov_b32 %s, %s" % (v(sCq1), v(ga + 1)))
if P.get("W2LATE", 0):
    exec(W2BLK)
A.label(lab)
A("s_barrier")
stamp("S", 6)
A("ds_read_b128 %s, %s" % (v(XR, 4), v(sX1a)))
A("s_cmp_eq_u32 %s, 3" % sU)
A("s_cbranch_scc1 S_W1_W3")
A("s_waitcnt lgkmcnt(0)")
A("%s %s, %s, %s, 0" % (MFMA, v(DR, 4), v(XR, 4), v(W1R, 4)))
A("%s %s, %s, %s, 0" % (MFMA, v(DR + 4, 4), v(XR, 4), v(W1R + 4, 4)))
store_intra(["global_store_dword %s, %s, %s" % (v(sE4w), v(DR), pWJ),
             "global_store_dword %s, %s, %s offset:64" % (v(sE4w), v(DR + 4), pWJ)])
A("s_branch S_W1_DONE")
A.label("S_W1_W3")
A("ds_read_b128 %s, %s" % (v(XR + 4, 4), v(sX1b)))
A("s_waitcnt lgkmcnt(1)")
A("%s %s, %s, %s, 0" % (MFMA, v(DR, 4), v(XR, 4), v(W1R, 4)))
A("s_waitcnt lgkmcnt(0)")
A("%s %s, %s, %s, 0" % (MFMA, v(DR + 4, 4), v(XR, 4), v(XR + 4, 4)))
store_intra(["global_store_dword %s, %s, %s" % (v(sE4w), v(DR), pWJ)] + exec_lines(STM) +
            ["global_store_dword %s, %s, %s" % (v(sE4sw), v(DR + 4), pWJ)] + exec_lines(0x000F000F000F000F) +
            ["global_store_dwordx4 %s, %s, %s" % (v(sE4rw), v(XR + 4, 4), pWJ), "s_mov_b64 exec, -1"])
A.label("S_W1_DONE")
KEEP = 136
if P.get("CLEAN", 0) >= 4:
    A("v_mov_b32 %s, %s" % (v(KEEP), v(DR)))
    A("v_mov_b32 %s, %s" % (v(KEEP + 1), v(DR + 4)))
if P.get("W2LATE", 0):
    A("s_waitcnt vmcnt(0)")
else:
    exec(TRBLK)
A("s_barrier")
stamp("S", 7)
if P.get("W2LATE", 0):
    exec(TRBLK)
for t in range(7):
    A("ds_read_b128 %s, %s offset:%d" % (v(XR + 4 * t, 4), v(sHrd), 64 * t))
for t in range(7):
    A("s_waitcnt lgkmcnt(%d)" % (6 - t))
    A("%s %s, %s, %s, %s" % (MFMA, v(DR, 4), v(XR + 4 * t, 4), v(W2R + 4 * t, 4), "0" if t == 0 else v(DR, 4)))
set_exec(0xFFFF)
A("global_store_dword %s, %s, %s sc1" % (v(sE5w), v(DR), pWL))
set_exec(-1)
if P.get("SIG", 1):
    A("s_barrier")
stamp("S", 8)
A("s_cmp_lg_u32 %s, 0" % sL)
A("s_cbranch_scc1 %s" % ("S_FIN" if P.get("CLEAN", 0) >= 3 else "L_EXIT"))
A("s_mov_b32 %s, 1" % sL)
padd(pWL, pWL, LSTR)
padd(pWJ, pWJ, LSTR)
A("s_lshl_b32 %s, %s, 6" % (sT0, sU))
A("v_add_u32 %s, %s, %s" % (v(SS), sT0, v(sXa)))
A("s_barrier")
stamp("S", 0)
for t in range(4):
    A("ds_read_b128 %s, %s offset:%d" % (v(XR + 4 * t, 4), v(sXa), 64 * t))
A("ds_read_b128 %s, %s" % (v(XR + 16, 4), v(sXb)))
A("ds_read_b128 %s, %s" % (v(XR + 20, 4), v(SS)))
for t in range(4):
    A("s_waitcnt lgkmcnt(%d)" % (5 - t))
    A("%s %s, %s, %s, %s" % (MFMA, v(DR, 4), v(XR + 4 * t, 4), v(WQ + 4 * t, 4), "0" if t == 0 else v(DR, 4)))
A("s_waitcnt lgkmcnt(0)")
A("%s %s, %s, %s, 0" % (MFMA, v(DR + 4, 4), v(XR + 20, 4), v(XR + 16, 4)))
stamp("S", 1)
store_intra(["global_store_dword %s, %s, %s" % (v(sE1w), v(DR), pWJ)] + exec_lines(STM) +
            ["global_store_dword %s, %s, %s" % (v(sE1sw), v(DR + 4), pWJ), "s_mov_b64 exec, -1"])
sleep(P["D_A"])
poll(["global_load_dwordx2 %s, %s, %s sc1" % (v(gc, 2), v(sAst), pWJ)] + AG, AGC + [(gc, gc + 1)])
stamp("S", 2)
for i, m in enumerate((X1, X2, HM, RM)):
    A("v_add_f32_dpp %s, %s, %s %s" % (v(gc), v(gc), v(gc), m))
    A("v_add_f32_dpp %s, %s, %s %s" % (v(gc + 1), v(gc + 1), v(gc + 1), m))
    A("v_add_f32 %s, %s, %s" % (v(ga + i), v(ga + i), v(gb + i)))
A("v_mul_f32 %s, %s, %s" % (v(gc), f32(1 / 512), v(gc)))
A("v_mul_f32 %s, %s, %s" % (v(gc + 1), f32(1 / 512), v(gc + 1)))
half_treduce(ga)
A("v_fma_f32 %s, -%s, %s, %s" % (v(gc + 1), v(gc), v(gc), v(gc + 1)))
A("v_max_f32 %s, 0, %s" % (v(gc + 1), v(gc + 1)))
A("v_add_f32 %s, %s, %s" % (v(gc + 1), f32(1e-5), v(gc + 1)))
A("v_rsq_f32 %s, %s" % (v(gc + 1), v(gc + 1)))
A("v_fma_f32 %s, -%s, %s, %s" % (v(ga), v(gc), v(sCq0), v(ga)))
A("v_fma_f32 %s, -%s, %s, %s" % (v(ga + 1), v(gc), v(sCq1), v(ga + 1)))
A("v_mul_f32 %s, %s, %s" % (v(ga), v(ga), v(gc + 1)))
A("v_mul_f32 %s, %s, %s" % (v(ga + 1), v(ga + 1), v(gc + 1)))
A("v_cvt_pk_bf16_f32 %s, %s, %s" % (v(ga), v(ga), v(ga + 1)))
A("ds_write_b32 %s, %s" % (v(sQw), v(ga)))
A("s_waitcnt lgkmcnt(0)")
A("s_barrier")
if P.get("CLEAN", 0) >= 2:
    A("s_sub_u32 s62, s72, %d" % LSTR)
    A("s_subb_u32 s63, s73, 0")
    wt_slice(pT)
A("s_branch S_LOOP")
if P.get("CLEAN", 0) >= 3:
    A.label("S_FIN")
    sexpr(sT0, [(sS, 4096), (sU, 1024)])
    A("v_add_u32 v4, %s, v3" % sT0)
    A("global_store_dwordx4 v4, %s, %s sc1" % (v(SN, 4), pWJ))
    if P.get("CLEAN", 0) >= 4:
        A("global_store_dword %s, %s, %s sc1" % (v(sE4w), v(KEEP), pWJ))
        A("s_cmp_eq_u32 %s, 3" % sU)
        A("s_cbranch_scc1 L_EXIT")
        A("global_store_dword %s, %s, %s offset:64 sc1" % (v(sE4w), v(KEEP + 1), pWJ))
    A("s_branch L_EXIT")

KR, VR, VF, QR, SR = 16, 48, 80, 112, 128
GS = 48
(gOg, gOml, gOlds, gW1g, gW1x, gW1lds, gW2g, gW2s, gW2lds, gXg, gXr, gXlds, gB1, gB2, gCs1, gQrd, gApw, gMlw, gOut, gDma) = range(148, 168)
_gn = [1 if P["PREF"] else 0]


def gload(t):
    if P.get("NODMA") and "lds" in t:
        t = "global_load_dword v140, v3, %s" % pB1 if False else "s_nop 0"
        A(t)
        return
    if _gn[0] >= P["W"]:
        if P.get("ADAPT"):
            lab = newlabel("THR")
            A("ds_read_b32 v5, v4")
            A("s_waitcnt lgkmcnt(0)")
            A("v_readfirstlane_b32 %s, v5" % sT1)
            A("s_cmp_lg_u32 %s, 0" % sT1)
            A("s_cbranch_scc1 %s" % lab)
            A("s_waitcnt vmcnt(%d)" % (P["W"] - 1))
            A.label(lab)
        else:
            A("s_waitcnt vmcnt(%d)" % (P["W"] - 1))
    A(t)
    _gn[0] += 1


GADDR = r'''A("v_lshrrev_b32 v11, 3, v0")        # l>>3
A("v_and_b32 v12, 7, v0")            # l&7
vexpr(gDma, [(11, 1024), (12, 16)])
# bias elements
A("s_lshr_b32 %s, %s, 1" % (sK0, sWave))     # b = w>>1
A("s_and_b32 %s, %s, 1" % (sK1, sWave))      # w&1
A("s_min_u32 %s, %s, 6" % (sK2, sWave))      # w' for the W2 gather
vexpr(13, [(1, 4), (2, 1)])                  # X col local = 4 l16 + g
sexpr(sT0, [(sHi, 256), (sK1, 128)])
vexpr(14, [(13, 2)], sT0)                    # col*2 within a 512-col bf16 row
gload("global_load_ushort %s, v14, %s%s" % (v(gB2), pB2, NT))
vexpr(10, [(12, 4), (2, 1)])                 # 4 (l&7) + g
sexpr(sT0, [(sK2, 64)])
vexpr(10, [(10, 2)], sT0)                    # f*2 (local)
sexpr(sT0, [(sJ, 448)])
A("v_add_u32 v6, %s, v10" % sT0)
gload("global_load_ushort %s, v6, %s%s" % (v(gB1), pB1, NT))
N_AFTER_K, N_AFTER_V = 8, 0

for q in range(4):
    smov64(mQ[q], (0x000F000F000F000F << (4 * q)))
A("s_mov_b32 %s, 0x05040100" % sPermLo)
A("s_mov_b32 %s, 0x07060302" % sPermHi)
A("s_mov_b32 %s, %s" % (sC, f32(128 ** -0.5 * math.log2(math.e))))
A("s_mov_b32 s42, s40")
A("s_mov_b32 s43, s41")
A("s_mul_i32 %s, %s, %d" % (sT0, sJ, JSTR))
padd(pWJ, pWS, sT0)
A("v_add_u32 %s, %d, v10" % (v(gW2lds), HOP))
# O gather: E2 + ((ro*4+b)*8 + 2g)*512 + (16 (w&1) + l16)*16
sexpr(sT0, [(sHi, 16384), (sK0, 4096), (sK1, 256)], E2)
vexpr(gOg, [(2, 1024), (1, 16)], sT0)
sexpr(sT0, [(sHi, 256), (sK0, 64)], E2S)
vexpr(gOml, [(2, 16)], sT0)
# O lds: U = 16 h + l16 (h = w&1); lp = 2U + (g>>1); ups = lp&31 = (2 l16 + (g>>1)) ; e = 2 h + (g&1)
#   ups = 16 a + 4 g' + qq ; d = 32 g' + 8 e + 4 a + qq
A("v_lshrrev_b32 v4, 1, v2")
A("v_lshl_add_u32 v4, v1, 1, v4")            # ups
A("v_bfe_u32 v5, v4, 4, 1")                  # a
A("v_bfe_u32 v6, v4, 2, 2")                  # g'
A("v_and_b32 v7, 3, v4")                     # qq
A("v_and_b32 v4, 1, v2")                     # g&1
sexpr(sT0, [(sK0, 272), (sK1, 32)], OOP)
vexpr(gOlds, [(6, 64), (4, 16), (5, 8), (7, 2)], sT0)
# W1 gather: E3 + r1*16384 + (2 pp)*512 + (4 w + (l&3))*16 ; pp = l>>2
A("v_lshrrev_b32 v4, 2, v0")
A("v_and_b32 v5, 3, v0")
sexpr(sT0, [(sR1, 16384), (sWave, 64)], E3)
vexpr(gW1g, [(4, 1024), (5, 16)], sT0)
# rho = 16 tile + 4 (l&3) + g ; tile = w>>2, b = w&3
A("s_lshr_b32 %s, %s, 2" % (sT1, sWave))
A("s_and_b32 %s, %s, 3" % (sT2, sWave))
vexpr(6, [(5, 8), (2, 2)])
sexpr(sT0, [(sT2, 80), (sT1, 32)], X1OP)
A("v_add_u32 %s, %s, v6" % (v(gW1lds), sT0))
sexpr(sT0, [(sT2, 272), (sT1, 32)], XOP)
A("s_and_b32 %s, %s, 3" % (sT1, sR1))
A("s_lshl_b32 %s, %s, 6" % (sT1, sT1))
A("s_add_u32 %s, %s, %s" % (sT0, sT0, sT1))
A("v_add_u32 %s, %s, v6" % (v(gW1x), sT0))
# W2 gather: E4 + (b*16 + 2 pp8)*896 + (8 w' + (l&7))*16 ; pp8 = l>>3
sexpr(sT0, [(sHi, 16 * 896), (sK2, 128)], E4)
vexpr(gW2g, [(11, 2 * 896), (12, 16)], sT0)
# W2 stats: E4S + (c1*4 + b)*128 + l16*8  (16 entries, row all-reduce)
sexpr(sT0, [(sHi, 128)], E4S)
vexpr(gW2s, [(1, 8)], sT0)
# X gather: E5 + ((b*8 + 2 rq + (w&1))*8 + 2g)*256 + l16*16
sexpr(sT0, [(sK0, 16384), (sHi, 4096), (sK1, 2048)], E5)
vexpr(gXg, [(2, 512), (1, 16)], sT0)
sexpr(sT0, [(sK0, 1024)], E4R)
A("v_add_u32 %s, %s, v14" % (v(gXr), sT0))
sexpr(sT0, [(sK0, 1024)])
A("v_add_u32 %s, %s, v14" % (v(gOut), sT0))
sexpr(sT0, [(sK0, 272), (sK1, 128)], XOP)
vexpr(gXlds, [(13, 2)], sT0)
vexpr(gQrd, [(8, 272), (2, 16)], None, QOP)
sexpr(sT0, [(sWave, 2048)], AP)
A("v_add_u32 %s, %s, v3" % (v(gApw), sT0))
sexpr(sT0, [(sWave, 8)], ML)
vexpr(gMlw, [(8, 64)], sT0)
'''
NV1 = 8
A.label("L_G")
ISTR, WSTR = ((65536, 8192) if P.get("KMODE", 5) == 5 else (8192, 65536))
sexpr(sT0, [(sHi, 8 << 21), (sJ, 1 << 21), (sLo, 1024), (sWave, WSTR)], 6144 * 256)
A("v_and_b32 v8, 3, v1")
A("v_lshrrev_b32 v9, 2, v1")
vexpr(10, [(8, ISTR), (9, 256), (2, 16)])
A("v_mov_b32 v4, %d" % (FLG + 12))
A("s_waitcnt lgkmcnt(0)")
stamp_init()
stamp("G", 10)
padd(pT, pK, sT0)
padd(pT2, pV, sT0)
for tau in range(2):
    for t in range(4):
        if 4 * tau + t == P["B0POS"]:
            A("s_barrier")
        gload("global_load_dwordx4 %s, v10, %s offset:%d%s" % (v(KR + 4 * (4 * tau + t), 4), pT, 64 * t, NT))
    if tau == 0:
        padd(pT, pT, 4 * ISTR)
        A("v_mov_b32 %s, v10" % v(SR))
        exec(GADDR)
        A("v_mov_b32 v10, %s" % v(SR))
stamp("G", 11)
NV1 = 8
for jj in range(8):
    gload("global_load_dwordx4 %s, v3, %s%s" % (v(VR + 4 * jj, 4), pT2, NT))
    if jj < 7:
        padd(pT2, pT2, ISTR)
stamp("G", 9)
if P.get("KVWAIT"):
    A("s_waitcnt vmcnt(0)")
    stamp("G", 14)
if P.get("QLATE"):
    A("s_barrier")
A("s_branch G_ENTRY")

A.label("G_LOOP")
A("s_barrier")
A.label("G_ENTRY")
A("s_barrier")
stamp("G")
if NV1 < 8:
    lab = if_layer0()
    for jj in range(NV1, 8):
        A("global_load_dwordx4 %s, v3, %s offset:%d%s" % (v(VR + 4 * jj, 4), pT2, (jj - 4) * 1024, NT))
    A.label(lab)
for t in range(4):
    A("ds_read_b128 %s, %s offset:%d" % (v(QR + 4 * t, 4), v(gQrd), 64 * t))
A("s_waitcnt vmcnt(%d)" % N_AFTER_K)
stamp("G")
S0, S1 = SR, SR + 4
for t in range(4):
    A("s_waitcnt lgkmcnt(%d)" % (3 - t))
    for tau in range(2):
        d = v(SR + 4 * tau, 4)
        A("%s %s, %s, %s, %s" % (MFMA, d, v(KR + 4 * (4 * tau + t), 4), v(QR + 4 * t, 4), "0" if t == 0 else d))
aM, aT, aL, aMc = 136, 137, 138, 139
PR = 140
PM = QR
A("v_max3_f32 %s, %s, %s, %s" % (v(aM), v(S0), v(S0 + 1), v(S0 + 2)))
A("v_max3_f32 %s, %s, %s, %s" % (v(aT), v(S1), v(S1 + 1), v(S1 + 2)))
A("v_max3_f32 %s, %s, %s, %s" % (v(aM), v(aM), v(S0 + 3), v(S1 + 3)))
A("v_max_f32 %s, %s, %s" % (v(aM), v(aM), v(aT)))
g_allreduce("v_max_f32", aM, aT)
A("v_mul_f32 %s, %s, %s" % (v(aMc), sC, v(aM)))
for i in range(8):
    A("v_fma_f32 %s, %s, %s, -%s" % (v(SR + i), v(SR + i), sC, v(aMc)))
for i in range(8):
    A("v_exp_f32 %s, %s" % (v(SR + i), v(SR + i)))
for p in range(4):
    A("v_cvt_pk_bf16_f32 %s, %s, %s" % (v(PR + p), v(SR + 2 * p), v(SR + 2 * p + 1)))
for q in range(4):
    for p in range(4):
        A("v_cndmask_b32 %s, 0, %s, %s" % (v(PM + 4 * q + p), v(PR + p), mQ[q]))
lab = if_layer0()
A("s_waitcnt vmcnt(%d)" % N_AFTER_V)
stamp("G")
for i in range(8):
    for p in range(4):
        A("v_perm_b32 %s, %s, %s, %s" % (v(VF + 4 * i + p), v(VR + 4 * (2 * p + 1) + (i >> 1)), v(VR + 4 * (2 * p) + (i >> 1)),
                                         sPermHi if (i & 1) else sPermLo))
A.label(lab)
D0 = 140
for q in range(4):
    for a in range(2):
        d = v(D0 + 4 * a, 4)
        A("%s %s, %s, %s, %s" % (MFMA, d, v(VF + 4 * (4 * a + q), 4), v(PM + 4 * q, 4), "0" if q == 0 else d))
A("v_add_f32 %s, %s, %s" % (v(S0), v(S0), v(S0 + 1)))
A("v_add_f32 %s, %s, %s" % (v(S0 + 2), v(S0 + 2), v(S0 + 3)))
A("v_add_f32 %s, %s, %s" % (v(S1), v(S1), v(S1 + 1)))
A("v_add_f32 %s, %s, %s" % (v(S1 + 2), v(S1 + 2), v(S1 + 3)))
A("v_add_f32 %s, %s, %s" % (v(S0), v(S0), v(S0 + 2)))
A("v_add_f32 %s, %s, %s" % (v(S1), v(S1), v(S1 + 2)))
A("v_add_f32 %s, %s, %s" % (v(aT), v(S0), v(S1)))
g_allreduce("v_add_f32", aT, aL)
A("v_mov_b32 %s, %s" % (v(aM), v(aMc)))
A("ds_write_b64 %s, %s" % (v(gMlw), v(aM, 2)))
A("ds_write_b128 %s, %s" % (v(gApw), v(D0, 4)))
A("ds_write_b128 %s, %s offset:1024" % (v(gApw), v(D0 + 4, 4)))
A("s_waitcnt lgkmcnt(0)")
A("s_barrier")

a0, b0, c0 = GS, GS + 4, GS + 8
r0, r1_, r2, r3 = GS + 12, GS + 13, GS + 14, GS + 15


def add_ab():
    for e in range(4):
        A("v_add_f32 %s, %s, %s" % (v(a0 + e), v(a0 + e), v(b0 + e)))


sleep(P["D_O"])
poll(["global_load_dwordx4 %s, %s, %s sc1" % (v(c0, 4), v(gOml), pWJ),
      "global_load_dwordx4 %s, %s, %s sc1" % (v(a0, 4), v(gOg), pWJ),
      "global_load_dwordx4 %s, %s, %s offset:512 sc1" % (v(b0, 4), v(gOg), pWJ)],
     [(a0 + e, b0 + e) for e in range(4)] + [(c0, c0 + 1), (c0 + 2, c0 + 3)])
stamp("G")
A("ds_read_u16 %s, %s" % (v(r3), v(gW1x)))
A("v_max_f32 %s, %s, %s" % (v(r0), v(c0), v(c0 + 2)))
g_allreduce("v_max_f32", r0, r1_)
A("v_sub_f32 %s, %s, %s" % (v(c0), v(c0), v(r0)))
A("v_sub_f32 %s, %s, %s" % (v(c0 + 2), v(c0 + 2), v(r0)))
A("v_exp_f32 %s, %s" % (v(c0), v(c0)))
A("v_exp_f32 %s, %s" % (v(c0 + 2), v(c0 + 2)))
A("v_mul_f32 %s, %s, %s" % (v(r1_), v(c0), v(c0 + 1)))
A("v_fmac_f32 %s, %s, %s" % (v(r1_), v(c0 + 2), v(c0 + 3)))
for e in range(4):
    A("v_mul_f32 %s, %s, %s" % (v(a0 + e), v(c0), v(a0 + e)))
for e in range(4):
    A("v_fmac_f32 %s, %s, %s" % (v(a0 + e), v(c0 + 2), v(b0 + e)))
g_allreduce("v_add_f32", r1_, r2)
g_treduce(a0)
A("v_rcp_f32 %s, %s" % (v(r1_), v(r1_)))
A("v_mul_f32 %s, %s, %s" % (v(r0), v(a0), v(r1_)))
A("v_cvt_pk_bf16_f32 %s, %s, %s" % (v(r0), v(r0), v(r0)))
A("ds_write_b16 %s, %s" % (v(gOlds), v(r0)))
A("s_waitcnt lgkmcnt(0)")
A("s_barrier")

A("v_lshlrev_b32 %s, 16, %s" % (v(r3), v(r3)))
if P.get("SIG", 1):
    A("s_barrier")
sleep(P["D_W1"])
poll(["global_load_dwordx4 %s, %s, %s sc1" % (v(a0, 4), v(gW1g), pWL),
      "global_load_dwordx4 %s, %s, %s offset:512 sc1" % (v(b0, 4), v(gW1g), pWL)],
     [(a0 + e, b0 + e) for e in range(4)])
stamp("G")
add_ab()
g_treduce(a0)
A("v_add_f32_dpp %s, %s, %s row_ror:4%s" % (v(a0), v(a0), v(a0), DPP))
A("v_add_f32_dpp %s, %s, %s row_ror:8%s" % (v(a0), v(a0), v(a0), DPP))
A("v_add_f32 %s, %s, %s" % (v(r0), v(a0), v(r3)))
A("v_cvt_pk_bf16_f32 %s, %s, %s" % (v(r0), v(r0), v(r0)))
A("ds_write_b16 %s, %s" % (v(gW1lds), v(r0)))
A("s_waitcnt lgkmcnt(0)")
A("s_barrier")

lab = if_layer0()
A("s_mul_i32 %s, %s, %d" % (sT0, sHi, 16 * 896))
A("s_add_u32 %s, %s, %d" % (sT0, sT0, E4 - E4C))
A("v_subrev_u32 %s, %s, %s" % (v(r3), sT0, v(gW2g)))
poll(["global_load_dwordx4 %s, %s, %s sc1" % (v(a0, 4), v(r3), pWJ),
      "global_load_dwordx4 %s, %s, %s offset:896 sc1" % (v(b0, 4), v(r3), pWJ)],
     [(a0 + e, b0 + e) for e in range(4)])
add_ab()
g_treduce(a0)
A("v_add_f32_dpp %s, %s, %s row_ror:8%s" % (v(gCs1), v(a0), v(a0), DPP))
A("v_lshlrev_b32 %s, 16, %s" % (v(gB1), v(gB1)))
A("v_lshlrev_b32 %s, 16, %s" % (v(gB2), v(gB2)))
A.label(lab)

A("s_cmp_eq_u32 %s, 7" % sWave)
A("s_cbranch_scc1 G_W2_SKIP")
sleep(P["D_W2"])
poll(["global_load_dwordx2 %s, %s, %s sc1" % (v(c0, 2), v(gW2s), pWJ),
      "global_load_dwordx4 %s, %s, %s sc1" % (v(a0, 4), v(gW2g), pWJ),
      "global_load_dwordx4 %s, %s, %s offset:896 sc1" % (v(b0, 4), v(gW2g), pWJ)],
     [(a0 + e, b0 + e) for e in range(4)] + [(c0, c0 + 1)])
stamp("G")
for i, m in enumerate((X1, X2, HM, RM)):
    A("v_add_f32_dpp %s, %s, %s %s" % (v(c0), v(c0), v(c0), m))
    A("v_add_f32_dpp %s, %s, %s %s" % (v(c0 + 1), v(c0 + 1), v(c0 + 1), m))
    A("v_add_f32 %s, %s, %s" % (v(a0 + i), v(a0 + i), v(b0 + i)))
A("v_mul_f32 %s, %s, %s" % (v(c0), f32(1 / 512), v(c0)))
A("v_mul_f32 %s, %s, %s" % (v(c0 + 1), f32(1 / 512), v(c0 + 1)))
g_treduce(a0)
A("v_fma_f32 %s, -%s, %s, %s" % (v(c0 + 1), v(c0), v(c0), v(c0 + 1)))
A("v_max_f32 %s, 0, %s" % (v(c0 + 1), v(c0 + 1)))
A("v_add_f32_dpp %s, %s, %s row_ror:8%s" % (v(r0), v(a0), v(a0), DPP))
A("v_add_f32 %s, %s, %s" % (v(c0 + 2), f32(1e-5), v(c0 + 1)))
A("v_rcp_f32 %s, %s" % (v(c0 + 3), v(c0 + 2)))
A("v_fma_f32 %s, -%s, %s, %s" % (v(r0), v(c0), v(gCs1), v(r0)))
A("v_mul_f32 %s, %s, %s" % (v(c0 + 3), v(c0 + 1), v(c0 + 3)))
A("v_add_f32 %s, %s, %s" % (v(c0 + 3), f32(1e-5), v(c0 + 3)))
A("v_mul_f32 %s, %s, %s" % (v(c0 + 2), v(c0 + 2), v(c0 + 3)))
A("v_rsq_f32 %s, %s" % (v(c0 + 2), v(c0 + 2)))
A("v_fma_f32 %s, %s, %s, %s" % (v(r0), v(r0), v(c0 + 2), v(gB1)))
k0 = -2 * math.log2(math.e) * math.sqrt(2 / math.pi)
A("v_mul_f32 %s, %s, %s" % (v(r1_), v(r0), v(r0)))
A("v_mov_b32 %s, %s" % (v(r2), f32(k0)))
A("v_fmac_f32 %s, %s, %s" % (v(r2), f32(k0 * 0.044715), v(r1_)))
A("v_mul_f32 %s, %s, %s" % (v(r2), v(r2), v(r0)))
A("v_exp_f32 %s, %s" % (v(r2), v(r2)))
A("v_add_f32 %s, 1.0, %s" % (v(r2), v(r2)))
A("v_rcp_f32 %s, %s" % (v(r2), v(r2)))
A("v_mul_f32 %s, %s, %s" % (v(r0), v(r0), v(r2)))
A("v_cvt_pk_bf16_f32 %s, %s, %s" % (v(r0), v(r0), v(r0)))
A("ds_write_b16 %s, %s" % (v(gW2lds), v(r0)))
A("s_waitcnt lgkmcnt(0)")
A.label("G_W2_SKIP")
A("s_barrier")

if P.get("SIG", 1):
    A("s_barrier")
A("s_cmp_eq_u32 %s, 0" % sL)
A("s_cbranch_scc1 G_X_GO")
A("s_cmp_lg_u32 %s, 0" % sLo)
A("s_cbranch_scc1 L_EXIT")
A("s_cmp_lg_u32 %s, %s" % (sWave, sJ))
A("s_cbranch_scc1 L_EXIT")
A.label("G_X_GO")
sleep(P["D_X"])


def xpre():
    A("v_lshlrev_b32 %s, 16, %s" % (v(c0), v(c0)))


poll(["global_load_ushort %s, %s, %s sc1" % (v(c0), v(gXr), pWJ),
      "global_load_dwordx4 %s, %s, %s sc1" % (v(a0, 4), v(gXg), pWL),
      "global_load_dwordx4 %s, %s, %s offset:256 sc1" % (v(b0, 4), v(gXg), pWL)],
     [(a0 + e, b0 + e) for e in range(4)] + [(c0, c0)], pre=xpre)
stamp("G")
add_ab()
A("v_add_f32 %s, %s, %s" % (v(c0), v(c0), v(gB2)))
g_treduce(a0)
A("v_add_f32 %s, %s, %s" % (v(r0), v(a0), v(c0)))
A("v_cvt_pk_bf16_f32 %s, %s, %s" % (v(r0), v(r0), v(r0)))
A("s_cmp_lg_u32 %s, 0" % sL)
A("s_cbranch_scc1 G_FINAL")
A("ds_write_b16 %s, %s" % (v(gXlds), v(r0)))
A("s_mov_b32 %s, 1" % sL)
padd(pWL, pWL, LSTR)
padd(pWJ, pWJ, LSTR)
A("s_waitcnt lgkmcnt(0)")
A("s_branch G_LOOP")
A.label("G_FINAL")
sleep(P.get("ENDSLEEP", 0))
if "ECHO" in P:
    A("s_memrealtime s[82:83]")
    A("s_sub_u32 s80, s80, s78")
    A("s_waitcnt lgkmcnt(0)")
    A("s_add_u32 s80, s80, s82")
    A.label("ECHO_SPIN")
    A("s_memrealtime s[82:83]")
    A("s_waitcnt lgkmcnt(0)")
    A("s_cmp_lt_u32 s82, s80")
    A("s_cbranch_scc1 ECHO_SPIN")
A("global_store_short %s, %s, %s" % (v(gOut), v(r0), pOUT))
A.label("L_EXIT")
stamp_dump()
A.label("L_END")
A("s_endpgm")

A.fix_hazards()

hdr = open("cdna_kernels/%s.s.ref" % NAME).read().split("; Override launch")[0]
out = hdr + """; @launch grid=(256,1,1) block=(768,1,1) lds=%d
.amdgcn_target "amdgcn-amd-amdhsa--gfx950"
.text
.globl %s_kernel
.p2align 8
.type %s_kernel,@function
%s_kernel:
%s
    ; pad the code section so that the 12 KB code prefetch stays inside it
    .fill ((12288 + 256 - (. - %s_kernel)) / 4), 4, 0xbf810000
.section .rodata,"a"
.p2align 6
.amdhsa_kernel %s_kernel
  .amdhsa_next_free_vgpr 168
  .amdhsa_next_free_sgpr 96
  .amdhsa_accum_offset 168
  .amdhsa_group_segment_fixed_size 0
  .amdhsa_kernarg_size 104
  .amdhsa_user_sgpr_count 2
  .amdhsa_user_sgpr_kernarg_segment_ptr 1
  .amdhsa_system_sgpr_workgroup_id_x 1
.end_amdhsa_kernel
""" % (LDS_TOTAL, NAME, NAME, NAME, A.text(), NAME, NAME)
open(sys.argv[1], "w").write(out)
print("wrote", sys.argv[1], "instructions:", sum(1 for x in A.ins if not x.label), "LDS", LDS_TOTAL)
```

```python
import sys, math, struct, os
from asmlib import Asm

NAME = "interleave_layers__sliding_block_cached__mixer_channel_mlp__decode"

P = dict(B0POS=2, W=64, NV1=8, D_A0=60, NSL=6, D_O=0, D_W1=10, D_W2=0, D_X=9, D_A=0, NT="nt", STAMP=0, FORCE_SAFE=0, PREF=1)
for a in sys.argv[2:]:
    k, v_ = a.split("=")
    P[k] = int(v_) if v_.lstrip("-").isdigit() else v_


def f32(x):
    return "0x%08x" % struct.unpack("<I", struct.pack("<f", x))[0]


LSTR = 0x200000
JSTR = 196608
E1, E1S, E4C = 0, 40960, 45056
E1T = 0x200000 * 2
REC = 0x1D8000
E2, E4, E4R, E2S, E4S = 65536, 131072, 188416, 192512, 193536
E3, E5 = 0x180000, 0x1C0000
SENT = 0x7F817F81
LW_Q, LW_O, LW_2, LW_1 = 0, 16384, 32768, 61440
XOP = 68608
QOP = XOP + 5 * 272
OOP = QOP + 4 * 272
X1OP = OOP + 4 * 272
HOP = X1OP + 5 * 80
ML = HOP + 448
FLG = ML + 256
ST0 = FLG + 16
NONCE = ST0 + 32
AP = (NONCE + 16 + 1023) // 1024 * 1024
LDS_TOTAL = AP + 16384
assert all(x % 16 == 0 for x in (XOP, QOP, OOP, X1OP, HOP, ML))

sWave, sJ, sS, sHi, sLo, sR1, sC1, sL, sBud = "s3", "s4", "s5", "s6", "s7", "s8", "s9", "s10", "s11"
sT0, sT1, sT2, sT3 = "s12", "s13", "s14", "s15"
pX, pK, pV, pWQ, pWO, pW1, pB1, pW2, pB2, pOUT, pDBG, pWS = (
    "s[16:17]", "s[18:19]", "s[20:21]", "s[22:23]", "s[24:25]", "s[28:29]", "s[30:31]", "s[32:33]", "s[34:35]",
    "s[36:37]", "s[38:39]", "s[40:41]")
pWL = "s[42:43]"
sFast = "s44"
sU = "s45"
mQ = ["s[50:51]", "s[52:53]", "s[54:55]", "s[56:57]"]
sPermLo, sPermHi = "s58", "s59"
sC = "s60"
pT = "s[62:63]"
pT2 = "s[64:65]"
sXcc = "s66"
sK0, sK1, sK2 = "s67", "s68", "s69"
mT = "s[70:71]"
pWJ = "s[72:73]"
pPC = "s[46:47]"
pN = "s[48:49]"

A = Asm()
NT = (" " + P["NT"]) if P["NT"] else ""
STAMP = P["STAMP"]


def v(n, cnt=1):
    return "v%d" % n if cnt == 1 else "v[%d:%d]" % (n, n + cnt - 1)


def smov64(pair, val):
    lo = int(pair[2:].split(":")[0])
    A("s_mov_b32 s%d, 0x%08x" % (lo, val & 0xFFFFFFFF))
    A("s_mov_b32 s%d, 0x%08x" % (lo + 1, val >> 32))


def exec_lines(val):
    if val == -1:
        return ["s_mov_b64 exec, -1"]
    if 0 <= val <= 64:
        return ["s_mov_b64 exec, %d" % val]
    return ["s_mov_b32 exec_lo, 0x%08x" % (val & 0xFFFFFFFF), "s_mov_b32 exec_hi, 0x%08x" % (val >> 32)]


def set_exec(val):
    for l in exec_lines(val):
        A(l)


def padd(dst, src, soff):
    d = int(dst[2:].split(":")[0]); s = int(src[2:].split(":")[0])
    A("s_add_u32 s%d, s%d, %s" % (d, s, soff))
    A("s_addc_u32 s%d, s%d, 0" % (d + 1, s + 1))


def sexpr(dst, terms, const=0, tmp=sT3):
    first = True
    for (r, m) in terms:
        t = dst if first else tmp
        if m == 1:
            if first:
                A("s_mov_b32 %s, %s" % (dst, r))
            else:
                A("s_add_u32 %s, %s, %s" % (dst, dst, r))
            first = False
            continue
        if m & (m - 1) == 0:
            A("s_lshl_b32 %s, %s, %d" % (t, r, m.bit_length() - 1))
        else:
            A("s_mul_i32 %s, %s, %d" % (t, r, m))
        if not first:
            A("s_add_u32 %s, %s, %s" % (dst, dst, t))
        first = False
    if first:
        A("s_mov_b32 %s, %d" % (dst, const))
    elif const:
        A("s_add_u32 %s, %s, %d" % (dst, dst, const))


def vexpr(dst, terms, sreg=None, const=0):
    first = True
    for (r, m) in terms:
        if first:
            if m == 1:
                A("v_mov_b32 %s, %s" % (v(dst), v(r)))
            elif m & (m - 1) == 0:
                A("v_lshlrev_b32 %s, %d, %s" % (v(dst), m.bit_length() - 1, v(r)))
            else:
                A("v_mul_u32_u24 %s, %d, %s" % (v(dst), m, v(r)))
            first = False
        else:
            assert m & (m - 1) == 0, "non power of two term must come first"
            A("v_lshl_add_u32 %s, %s, %d, %s" % (v(dst), v(r), m.bit_length() - 1, v(dst)))
    if sreg:
        A("v_add_u32 %s, %s, %s" % (v(dst), sreg, v(dst)))
    if const:
        A("v_add_u32 %s, %d, %s" % (v(dst), const, v(dst)))


DPP = " row_mask:0xf bank_mask:0xf"
X1 = "quad_perm:[1,0,3,2]" + DPP
X2 = "quad_perm:[2,3,0,1]" + DPP
HM = "row_half_mirror" + DPP
RM = "row_mirror" + DPP
_lab = [0]


def newlabel(p="L"):
    _lab[0] += 1
    return "%s_%d" % (p, _lab[0])


def sleep(n):
    while n > 0:
        k = min(n, 127)
        A("s_sleep %d" % k)
        n -= k


def g_treduce(a):
    A("v_permlane16_swap_b32 %s, %s" % (v(a), v(a + 1)))
    A("v_permlane16_swap_b32 %s, %s" % (v(a + 2), v(a + 3)))
    A("v_add_f32 %s, %s, %s" % (v(a), v(a), v(a + 1)))
    A("v_add_f32 %s, %s, %s" % (v(a + 2), v(a + 2), v(a + 3)))
    A("v_permlane32_swap_b32 %s, %s" % (v(a), v(a + 2)))
    A("v_add_f32 %s, %s, %s" % (v(a), v(a), v(a + 2)))


def g_allreduce(op, r, t):
    for sw in ("v_permlane16_swap_b32", "v_permlane32_swap_b32"):
        A("v_mov_b32 %s, %s" % (v(t), v(r)))
        A("%s %s, %s" % (sw, v(r), v(t)))
        A("%s %s, %s, %s" % (op, v(r), v(r), v(t)))


def budget_loop(top):
    A("s_sub_u32 %s, %s, 1" % (sBud, sBud))
    A("s_cbranch_scc0 %s" % top)
    A("s_mov_b32 %s, 0" % sBud)


def poll(loads, check_pairs, pre=None, nap=0):
    top, done = newlabel("POLL"), newlabel("PDONE")
    A.label(top)
    for l in loads:
        A(l)
    A("s_waitcnt vmcnt(0)")
    if pre:
        pre()
    first = True
    for (a, b) in check_pairs:
        if first:
            A("v_cmp_u_f32 vcc, %s, %s" % (v(a), v(b)))
            first = False
        else:
            A("v_cmp_u_f32 %s, %s, %s" % (mT, v(a), v(b)))
            A("s_or_b64 vcc, vcc, %s" % mT)
    A("s_cbranch_vccz %s" % done)
    sleep(nap)
    budget_loop(top)
    A.label(done)


def half(loads):
    import re
    if P.get("HALF") == 1:
        m = re.search(r"v\[(\d+):(\d+)\]", loads[1])
        for r_ in range(int(m.group(1)), int(m.group(2)) + 1):
            A("v_mov_b32 v%d, 0" % r_)
        return loads[:1]
    if P.get("HALF") == 2:
        out = []
        for l in loads:
            m = re.search(r"v\[(\d+):(\d+)\]", l)
            lo = int(m.group(1))
            A("v_mov_b32 v%d, 0" % (lo + 2)); A("v_mov_b32 v%d, 0" % (lo + 3))
            out.append(l.replace("dwordx4", "dwordx2").replace(m.group(0), "v[%d:%d]" % (lo, lo + 1)))
        return out
    return loads


def canary(load, pairs, mask, nap=0):
    set_exec(mask)
    poll([load], pairs, nap=nap)
    set_exec(-1)


def bulk(loads, mid, post, res):
    top, again, done = newlabel("BK"), newlabel("BKA"), newlabel("BKD")
    loads = half(loads)
    for l in loads:
        A(l)
    if mid:
        mid()
    A.label(top)
    A("s_waitcnt vmcnt(0)")
    post()
    A("v_cmp_u_f32 vcc, %s, %s" % (v(res[0]), v(res[-1])))
    A("s_cbranch_vccz %s" % done)
    for l in loads:
        A(l)
    budget_loop(top)
    A("s_waitcnt vmcnt(0)")
    A.label(done)


def round1(small, mask, loads, mid, post, res):
    top, done = newlabel("RD"), newlabel("RDD")
    loads = half(loads)
    A.label(top)
    set_exec(mask)
    A(small)
    set_exec(-1)
    for l in loads:
        A(l)
    A("s_waitcnt vmcnt(%d)" % len(loads))
    mid()
    A("s_waitcnt vmcnt(0)")
    post()
    A("v_cmp_u_f32 vcc, %s, %s" % (v(res[0]), v(res[-1])))
    A("s_cbranch_vccz %s" % done)
    budget_loop(top)
    A.label(done)


def pipe_poll(issue, n_small, n_bulk, mid, post, res, sets, gap):
    n = n_small + n_bulk
    k = len(sets)
    top, done = newlabel("PP"), newlabel("PPD")
    for i in range(k - 1):
        issue(sets[i])
        sleep(gap)
    A.label(top)
    for i in range(k):
        issue(sets[(i + k - 1) % k])
        if n_small:
            A("s_waitcnt vmcnt(%d)" % ((k - 1) * n + n_bulk))
            mid(sets[i])
        A("s_waitcnt vmcnt(%d)" % ((k - 1) * n))
        post(sets[i])
        A("v_cmp_u_f32 vcc, %s, %s" % (v(res[0]), v(res[-1])))
        A("s_cbranch_vccz %s" % done)
    budget_loop(top)
    A.label(done)


OOL = []


def interleave(c1, c2):
    out, i2 = [], 0
    for k, x in enumerate(c1):
        out.append(x)
        want = (k + 1) * len(c2) // max(1, len(c1) - 4)
        while i2 < min(want, len(c2)):
            out.append(c2[i2]); i2 += 1
    return out + c2[i2:]


class Cap:
    def __enter__(self):
        self.n = len(A.ins); return self

    def __exit__(self, *a):
        self.lines = [x.text for x in A.ins[self.n:]]
        del A.ins[self.n:]


def fast_poll_full(issue, mid, post, fin, res, a):
    top, again, done = newlabel("FP"), newlabel("FPR"), newlabel("FPD")
    A.label(top)
    issue(a)
    A("s_waitcnt vmcnt(0)")
    with Cap() as c2:
        post(a)
    if mid:
        with Cap() as c1:
            mid(a)
        for l in interleave(c1.lines, c2.lines):
            A(l)
    else:
        for l in c2.lines:
            A(l)
    if fin:
        fin(a)
    A("v_cmp_u_f32 vcc, %s, %s" % (v(res[0]), v(res[-1])))
    A("s_cbranch_vccnz %s" % again)
    A.label(done)
    OOL.append([again + ":", "s_sub_u32 %s, %s, 1" % (sBud, sBud), "s_cbranch_scc0 %s" % top,
                "s_mov_b32 %s, 0" % sBud, "s_branch %s" % done])


def fast_poll(issue, mid, post, fin, res, a):
    if not P.get("MPOLL", 1):
        return fast_poll_full(issue, mid, post, fin, res, a)
    with Cap() as ci:
        issue(a)
    loads = [l for l in ci.lines if l.startswith("global_load")]
    small = len(loads) == 3
    chk, again, done = newlabel("MPC"), newlabel("MPR"), newlabel("MPD")
    if small:
        n = 4 if "dwordx4" in loads[0] else 2
        for e in range(n):
            A("v_mov_b32 %s, 0" % v(a + 8 + e))
    for l in ci.lines:
        A(l)
    A.label(chk)
    A("s_waitcnt vmcnt(0)")
    t = a + 20
    A("v_add_f32 %s, %s, %s" % (v(t), v(a), v(a + 1)))
    A("v_add_f32 %s, %s, %s" % (v(t + 1), v(a + 2), v(a + 3)))
    A("v_add_f32 %s, %s, %s" % (v(t + 2), v(a + 4), v(a + 5)))
    A("v_add_f32 %s, %s, %s" % (v(t + 3), v(a + 6), v(a + 7)))
    if small:
        A("v_add_f32 %s, %s, %s" % (v(t), v(t), v(a + 8)))
        A("v_add_f32 %s, %s, %s" % (v(t + 1), v(t + 1), v(a + 9)))
        if n == 4:
            A("v_add_f32 %s, %s, %s" % (v(t + 2), v(t + 2), v(a + 10)))
            A("v_add_f32 %s, %s, %s" % (v(t + 3), v(t + 3), v(a + 11)))
    A("v_add_f32 %s, %s, %s" % (v(t), v(t), v(t + 1)))
    A("v_add_f32 %s, %s, %s" % (v(t + 2), v(t + 2), v(t + 3)))
    A("v_cmp_u_f32 vcc, %s, %s" % (v(t), v(t + 2)))
    A("s_cbranch_vccnz %s" % again)
    A.label(done)
    with Cap() as c2:
        post(a)
    if mid:
        with Cap() as c1:
            mid(a)
        for l in interleave(c1.lines, c2.lines):
            A(l)
    else:
        for l in c2.lines:
            A(l)
    if fin:
        fin(a)
    blk = [again + ":"]
    if small:
        em = [l for l in ci.lines if l.startswith("s_mov") and "-1" not in l]
        blk += em + ["s_and_b64 exec, exec, vcc", loads[0]]
    blk += ["s_mov_b64 exec, vcc"] + loads[-2:] + ["s_mov_b64 exec, -1",
            "s_sub_u32 %s, %s, 1" % (sBud, sBud), "s_cbranch_scc0 %s" % chk,
            "s_mov_b32 %s, 0" % sBud, "s_waitcnt vmcnt(0)", "s_branch %s" % done]
    OOL.append(blk)


def store_intra(insn):
    ls, le = newlabel("SAFE"), newlabel("SEND")
    A("s_cmp_eq_u32 %s, 0" % sFast)
    A("s_cbranch_scc1 %s" % ls)
    for i in insn:
        A(i)
    A.label(le)
    OOL.append([ls + ":"] + [i + (" sc1" if i.startswith("global_store") else "") for i in insn] + ["s_branch %s" % le])


_st = {"G": 0, "S": 0}


def stamp(kind, idx=None):
    if idx is None:
        n = _st[kind]; _st[kind] += 1
    else:
        n = idx
    if "ECHO" in P and kind == "G" and P["ECHO"] % 100 == n:
        lab = newlabel("ECHO")
        A("s_cmp_lg_u32 %s, %d" % (sL, P["ECHO"] // 100))
        A("s_cbranch_scc1 %s" % lab)
        A("s_waitcnt lgkmcnt(0)")
        A("s_memrealtime s[80:81]")
        A("s_waitcnt lgkmcnt(0)")
        A.label(lab)
    if not STAMP:
        return
    if STAMP == 2 and not (kind == "G" and n in (2, 6)):
        return
    if STAMP == 4:
        return
    if STAMP == 3:
        A("s_lshl_b32 s76, %s, 4" % sL)
        A("s_add_u32 m0, s76, %d" % n)
        A("s_nop 0")
        A("v_writelane_b32 v15, %s, m0" % sBud)
        return
    A("s_waitcnt lgkmcnt(0)")
    A("s_memrealtime s[74:75]")
    A("s_lshl_b32 s76, %s, 4" % sL)
    A("s_add_u32 m0, s76, %d" % n)
    A("s_waitcnt lgkmcnt(0)")
    A("v_writelane_b32 v15, s74, m0")


def cyc(k):
    if STAMP == 4:
        A("s_memtime s[%d:%d]" % (80 + 2 * k, 81 + 2 * k))


def cyc_dump(n):
    if STAMP == 4:
        A("s_waitcnt lgkmcnt(0)")
        for k in range(n):
            A("v_writelane_b32 v15, s%d, %d" % (80 + 2 * k, 32 + k))


def stamp_init():
    if STAMP:
        A("v_mov_b32 v15, 0")
        A("v_writelane_b32 v15, s78, 15")


def stamp_dump():
    if not STAMP:
        return
    A("s_mul_i32 s76, s2, 12")
    A("s_add_u32 s76, s76, %s" % sWave)
    A("s_lshl_b32 s76, s76, 8")
    A("s_add_u32 s76, s76, 0x800000")
    A("v_lshlrev_b32 v13, 2, v0")
    A("v_add_u32 v13, s76, v13")
    A("global_store_dword v13, v15, %s" % pWS)


def if_layer0():
    lab = newlabel("NOTL0")
    A("s_cmp_lg_u32 %s, 0" % sL)
    A("s_cbranch_scc1 %s" % lab)
    return lab


def ssync(k):
    top = newlabel("SSY")
    A("v_mov_b32 v5, %d" % (FLG + 4 + 4 * k))
    A("v_mov_b32 v6, 1")
    set_exec(1)
    A("ds_add_u32 v5, v6")
    set_exec(-1)
    A.label(top)
    A("ds_read_b32 v6, v5")
    A("s_waitcnt lgkmcnt(0)")
    A("v_readfirstlane_b32 %s, v6" % sT0)
    A("s_cmp_eq_u32 %s, 4" % sT0)
    done = newlabel("SSD")
    A("s_cbranch_scc1 %s" % done)
    budget_loop(top)
    A.label(done)


MFMA = "v_mfma_f32_16x16x32_bf16"
A("s_getpc_b64 %s" % pPC)
A("s_cmp_ge_u32 s2, 256")
A("s_cbranch_scc1 L_END")
if STAMP or "ECHO" in P:
    A("s_memrealtime s[78:79]")
A("s_load_dwordx16 s[16:31], s[0:1], 0")
A("s_load_dwordx8 s[32:39], s[0:1], 64")
A("s_load_dwordx2 s[40:41], s[0:1], 96")
if P["PREF"]:
    A("v_lshlrev_b32 v3, 4, v0")
    A("global_load_dwordx4 v[140:143], v3, %s offset:-4" % pPC)
A("v_lshrrev_b32 v1, 6, v0")
A("v_and_b32 v0, 63, v0")
A("v_readfirstlane_b32 %s, v1" % sWave)
A("s_and_b32 %s, s2, 7" % sJ)
A("s_lshr_b32 %s, s2, 3" % sS)
A("s_lshr_b32 %s, s2, 6" % sHi)
A("s_and_b32 %s, %s, 7" % (sLo, sS))
A("s_lshr_b32 %s, s2, 4" % sR1)
A("s_and_b32 %s, %s, 1" % (sC1, sS))
A("s_mov_b32 %s, 0" % sL)
A("s_mov_b32 %s, 400000" % sBud)
A("v_and_b32 v1, 15, v0")
A("v_lshrrev_b32 v2, 4, v0")
A("v_lshlrev_b32 v3, 4, v0")
A("s_mov_b32 %s, %s" % (sU, sWave))
A("s_sub_u32 %s, %s, 4" % (sWave, sWave))
A("s_cbranch_scc0 L_G")

WQ, WO, W1R, W2R, XR, DR, SS = 16, 32, 48, 56, 84, 112, 120
(sXa, sXb, sOrd, sX1a, sX1b, sHrd, sE1w, sE1sw, sAg, sAst, sQw, sCq0, sCq1, sCrd, sMlrd, sE2w, sE3w, sE4w, sE4sw, sE4rw, sE5w,
 sTr, sClr, sTr1) = range(144, 168)
SN = 8
sCsP = 139
sDma = 138
X0 = 132
ga, gb, gc = SS, SS + 4, SS + 8
STM = 0x0018001400120011
A("s_add_u32 %s, %s, 8" % (sWave, sU))
A("v_mov_b32 v4, %d" % FLG)
A("v_mov_b32 v6, 0")
A("v_mov_b32 v7, 0")
A("ds_write_b64 v4, v[6:7]")
A("ds_write_b64 v4, v[6:7] offset:8")
for i in range(4):
    A("v_mov_b32 %s, 0x%08x" % (v(SN + i), SENT))
A("s_and_b32 %s, %s, 1" % (sK0, sU))
A("s_lshr_b32 %s, %s, 1" % (sK1, sU))
sexpr(sT0, [(sS, 5120), (sU, 1280)], 32768)
A("v_add_u32 v7, %s, v3" % sT0)
sexpr(sT0, [("s2", 1280), (sK0, LSTR), (sK1, 640)], E3)
A("v_add_u32 v12, %s, v3" % sT0)
A("s_mul_i32 %s, %s, %d" % (sT0, sJ, JSTR))
A("v_lshrrev_b32 v13, 3, v0")
A("v_and_b32 v14, 7, v0")
vexpr(SS, [(13, 8192), (14, 16)])
sexpr(sT1, [(sHi, 128 * 8192), (sU, 32 * 8192), (sJ, 1024), (sLo, 128)])
sexpr(sT2, [(sU, 1024)])
A("v_add_u32 %s, %s, v3" % (v(SS + 1), sT2))
A("s_waitcnt lgkmcnt(0)")
padd(pWJ, pWS, sT0)
padd(pT, pWQ, sT1)
A("v_mov_b32 v4, 0")
A("s_or_b32 %s, s2, %s" % (sT0, sU))
A("s_cbranch_scc1 S_NONONCE")
A("s_memrealtime %s" % pN)
A("s_waitcnt lgkmcnt(0)")
A("s_or_b32 s48, s48, 1")
A("v_mov_b32 %s, s49" % v(SS + 3))
A("v_mov_b32 %s, s48" % v(SS + 2))
set_exec(1)
A("global_store_dwordx2 v4, %s, %s sc1" % (v(SS + 2, 2), pDBG))
set_exec(-1)
A.label("S_NONONCE")
def nonce_fetch():
    A("s_cmp_lg_u32 %s, 3" % sU)
    A("s_cbranch_scc1 S_NP_SKIP")
    A("v_mov_b32 v4, 0")
    sleep(P.get("D_N", 0))
    A.label("S_NP")
    A("global_load_dwordx2 v[6:7], v4, %s sc1" % pDBG)
    A("s_waitcnt vmcnt(0)")
    A("v_cmp_eq_u32 vcc, 0, v6")
    A("s_cbranch_vccz S_NP_DONE")
    A("s_sleep %d" % P.get("NSL", 2))
    budget_loop("S_NP")
    A.label("S_NP_DONE")
    A("v_mov_b32 v5, %d" % NONCE)
    A("ds_write_b64 v5, v[6:7]")
    A("s_waitcnt lgkmcnt(0)")
    if P.get("NLATE"):
        stamp("S", 10)
    A.label("S_NP_SKIP")


if not P.get("NLATE"):
    A("v_mov_b32 %s, v7" % v(SS + 4))
    nonce_fetch()
    A("v_mov_b32 v7, %s" % v(SS + 4))
A("global_load_dwordx4 %s, %s, %s%s" % (v(X0, 4), v(SS + 1), pX, NT))
A("s_lshl_b32 %s, %s, 12" % (sT1, sU))
for i in range(4):
    A("s_add_u32 m0, %s, %d" % (sT1, LW_Q + 1024 * i))
    A("global_load_lds_dwordx4 %s, %s%s" % (v(SS), pT, NT))
    if i < 3:
        padd(pT, pT, 8 * 8192)
if P.get("NOCLR"):
    set_exec(1)
A("global_store_dwordx4 v7, %s, %s sc1" % (v(SN, 4), pWJ))
set_exec(1 if P.get("NOCLR") else 0xFFFF)
A("global_store_dwordx4 v7, %s, %s offset:1024 sc1" % (v(SN, 4), pWJ))
set_exec(1 if P.get("NOCLR") else 0xFFFFFFFFFF)
A("global_store_dwordx4 v12, %s, %s sc1" % (v(SN, 4), pWS))
set_exec(-1)
A("s_barrier")
stamp_init()
stamp("S", 9)
if P.get("NLATE"):
    nonce_fetch()
A("s_getreg_b32 %s, hwreg(HW_REG_XCC_ID)" % sXcc)
A("s_and_b32 %s, %s, 7" % (sXcc, sXcc))
A("s_mov_b32 s42, s40")
A("s_mov_b32 s43, s41")
A("s_mov_b32 %s, 0" % sFast)
sexpr(sT0, [(sS, 6144), (sU, 1536)])
A("v_add_u32 %s, %s, v3" % (v(sClr), sT0))
A("v_mov_b32 v12, 0x3f803f80")
vexpr(13, [(0, 4)], None, XOP + 4 * 272)
A("ds_write_b32 v13, v12")
vexpr(13, [(1, 4)], None, X1OP + 4 * 80)
A("ds_write_b32 v13, v12")
A("v_lshrrev_b32 v12, 2, v1")
A("v_min_u32 v13, 4, v1")
A("v_and_b32 v14, 3, v1")
vexpr(sXa, [(12, 272), (2, 16)], None, XOP)
sexpr(sT0, [(sU, 64)], XOP)
vexpr(sXb, [(13, 272), (2, 16)], sT0)
vexpr(sOrd, [(14 if P.get("WIDE", 0) else 12, 272), (2, 16)], None, OOP)
vexpr(sX1a, [(12, 80), (2, 16)], None, X1OP)
vexpr(sX1b, [(13, 80), (2, 16)], None, X1OP)
vexpr(sHrd, [(2, 16)], None, HOP)
sexpr(sT0, [(sHi, 2048), (sLo, 256), (sU, 64)], E1)
vexpr(sE1w, [(2, 8192), (1, 4)], sT0)
vexpr(SS + 3, [(2, 128)])
A("v_lshlrev_b32 %s, 2, v12" % v(SS + 4))
A("v_sub_u32 %s, %s, %s" % (v(SS + 3), v(SS + 3), v(SS + 4)))
sexpr(sT0, [(sLo, 512), (sHi, 32), (sU, 8)], E1S + 4)
A("v_add_u32 %s, %s, %s" % (v(sE1sw), sT0, v(SS + 3)))
sexpr(sT0, [(sR1, 8)], E4S + 4)
A("v_add_u32 %s, %s, %s" % (v(sE4sw), sT0, v(SS + 3)))
sexpr(sT0, [(sR1, 64)], E4R)
vexpr(sE4rw, [(14, 1024), (2, 16)], sT0)
A("v_and_b32 %s, 31, v0" % v(SS + 3))
A("v_lshrrev_b32 %s, 5, v0" % v(SS + 4))
sexpr(sT0, [(sHi, 8192), (sU, 512)], E1)
vexpr(sAg, [(SS + 4, 4096), (SS + 3, 16)], sT0)
sexpr(sT0, [(sLo, 512), (sHi, 128)], E1S)
vexpr(sAst, [(1, 8)], sT0)
sexpr(sT0, [(sU, 272)], QOP)
vexpr(sQw, [(SS + 3, 8), (SS + 4, 4)], sT0)
A("v_bfe_u32 %s, v0, 4, 1" % v(SS + 5))
A("v_bfe_u32 %s, v0, 2, 2" % v(SS + 6))
A("v_and_b32 %s, 3, v0" % v(SS + 7))
sexpr(sT0, [(sU, 16)], AP)
vexpr(sCrd, [(SS + 4, 8192), (SS + 5, 1024), (SS + 6, 256), (SS + 7, 64)], sT0)
sexpr(sT0, [(sU, 64)], ML)
vexpr(sMlrd, [(SS + 4, 32)], sT0)
sexpr(sT0, [(sU, 32 * 512), (sS, 512)], E2)
vexpr(sE2w, [(0, 8)], sT0)
sexpr(sC, [(sU, 256), (sS, 8)], E2S)
if P.get("E3L", 1):
    sexpr(sT0, [(sLo, 32768), (sK1, 16384), (sJ, 256), (sHi, 64), (sK0, 8192)], E3)
    vexpr(sE3w, [(2, 2048), (1, 4)], sT0)
else:
    sexpr(sT0, [(sLo, 32768), (sK1, 16384), (sJ, 2048), (sHi, 512), (sK0, 256)], E3)
    vexpr(sE3w, [(0, 4)], sT0)
sexpr(sT0, [(sR1, 896), (sC1, 448), (sU, 128)], E4)
vexpr(sE4w, [(2, 16 * 896), (1, 4)], sT0)
sexpr(sT0, [("s2", 256), (sU, 64)], E5)
if P.get("WIDE", 0):
    vexpr(sE5w, [(2, 16)], sT0)
else:
    vexpr(sE5w, [(1, 4)], sT0)
A("v_lshl_add_u32 %s, v2, 3, v12" % v(SS + 3))
sexpr(sT0, [(sU, 32)])
vexpr(sTr, [(SS + 3, 128), (14, 8)], sT0)
sexpr(sT0, [(sU, 64)])
vexpr(sTr1, [(SS + 3, 224), (14, 8)], sT0)
stamp("S", 11)
A("s_waitcnt vmcnt(0)")
stamp("S", 12)
sexpr(sT0, [(sU, 272)], XOP)
vexpr(4, [(1, 16)], sT0)
A("s_lshl_b32 %s, %s, 4" % (sT0, sHi))
A("s_mov_b32 %s, 0xffff" % sT2)
A("s_mov_b32 %s, 0" % sT3)
A("s_lshl_b64 exec, s[14:15], %s" % sT0)
A("ds_write_b128 v4, %s" % v(X0, 4))
set_exec(-1)
for i in range(4):
    A("v_lshlrev_b32 %s, 16, %s" % (v(SS + 2 * i), v(X0 + i)))
    A("v_and_b32 %s, 0xffff0000, %s" % (v(SS + 2 * i + 1), v(X0 + i)))
A("v_add_f32 v4, %s, %s" % (v(SS), v(SS + 1)))
A("v_mul_f32 v5, %s, %s" % (v(SS), v(SS)))
A("v_fmac_f32 v5, %s, %s" % (v(SS + 1), v(SS + 1)))
for i in range(2, 8):
    A("v_add_f32 v4, v4, %s" % v(SS + i))
    A("v_fmac_f32 v5, %s, %s" % (v(SS + i), v(SS + i)))
for m in (X1, X2, HM, RM):
    A("v_add_f32_dpp v4, v4, v4 %s" % m)
    A("v_add_f32_dpp v5, v5, v5 %s" % m)
g_allreduce("v_add_f32", 4, 6)
g_allreduce("v_add_f32", 5, 6)
A("v_mul_f32 v4, %s, v4" % f32(1 / 512))
A("v_mul_f32 v5, %s, v5" % f32(1 / 512))
A("v_fma_f32 v5, -v4, v4, v5")
A("v_max_f32 v5, 0, v5")
A("v_add_f32 v5, %s, v5" % f32(1e-5))
A("v_rsq_f32 v5, v5")
sexpr(sT0, [(sU, 8)], ST0)
A("v_mov_b32 v6, %s" % sT0)
A("ds_write_b64 v6, v[4:5]")
A("s_waitcnt lgkmcnt(0)")
ssync(0)
stamp("S", 0)
for t in range(4):
    A("ds_read_b128 %s, %s offset:%d" % (v(XR + 4 * t, 4), v(sXa), 64 * t))
for t in range(4):
    for hh in range(2):
        A("ds_read_b64_tr_b16 %s, %s offset:%d" % (v(WQ + 4 * t + 2 * hh, 2), v(sTr), LW_Q + (32 * t + 4 * hh) * 128))
vexpr(4, [(2, 8)], None, ST0)
A("ds_read_b64 v[6:7], v4")
A("v_mov_b32 v4, %d" % NONCE)
A("ds_read_b64 v[12:13], v4")
for i in range(4):
    A("v_mov_b32 %s, 0x3f803f80" % v(XR + 16 + i))
A("s_waitcnt lgkmcnt(0)")
for t in range(4):
    A("%s %s, %s, %s, %s" % (MFMA, v(DR, 4), v(XR + 4 * t, 4), v(WQ + 4 * t, 4), "0" if t == 0 else v(DR, 4)))
    A("%s %s, %s, %s, %s" % (MFMA, v(DR + 4, 4), v(XR + 16, 4), v(WQ + 4 * t, 4), "0" if t == 0 else v(DR + 4, 4)))
A("v_fma_f32 %s, -v6, %s, %s" % (v(DR), v(DR + 4), v(DR)))
A("v_mul_f32 %s, %s, v7" % (v(DR), v(DR)))
A("v_mov_b32 %s, %s" % (v(sCsP), v(DR + 4)))
A("v_mov_b32 %s, v12" % v(DR + 1))
sexpr(sT0, [(sJ, 65536), (sHi, 4096), (sLo, 512), (sU, 128)], E1T)
vexpr(4, [(2, 16384), (1, 8)], sT0)
stamp("S", 1)
A("global_store_dwordx2 v4, %s, %s sc1" % (v(DR, 2), pWS))
A("v_readfirstlane_b32 s48, v12")
A("v_readfirstlane_b32 s49, v13")
A("s_cmp_lg_u32 %s, 1" % sU)
A("s_cbranch_scc1 S_NOREC")
RS = P.get("RS", 16)
sexpr(sT0, [(sJ, 32 * RS), (sS, RS)], REC)
A("v_mov_b32 v4, %s" % sT0)
A("v_mov_b32 v14, %s" % sXcc)
set_exec(1)
A("global_store_dwordx3 v4, v[12:14], %s sc1" % pWS)
set_exec(-1)
A.label("S_NOREC")


W2BLK = r'''sexpr(sT0, [(sJ, 224 * 1024), (sLo, 128), (sU, 7 * 8192)])
padd(pT, pW2, sT0)
sexpr(sT1, [(sU, 7 * 1024)], LW_2)
for k in range(7):
    A("s_add_u32 m0, %s, %d" % (sT1, 1024 * k))
    A("global_load_lds_dwordx4 %s, %s%s" % (v(sDma), pT, NT))
    if k < 6:
        padd(pT, pT, 8192)
'''


def wt_slice(base):
    A("global_store_dwordx4 %s, %s, %s sc1" % (v(sClr), v(SN, 4), base))
    A("s_mov_b32 exec_hi, 0")
    A("global_store_dwordx4 %s, %s, %s offset:1024 sc1" % (v(sClr), v(SN, 4), base))
    A("s_mov_b64 exec, -1")


def half_treduce(r):
    A("v_permlane32_swap_b32 %s, %s" % (v(r), v(r + 2)))
    A("v_permlane32_swap_b32 %s, %s" % (v(r + 1), v(r + 3)))
    A("v_add_f32 %s, %s, %s" % (v(r), v(r), v(r + 2)))
    A("v_add_f32 %s, %s, %s" % (v(r + 1), v(r + 1), v(r + 3)))


AG = ["global_load_dwordx4 %s, %s, %s sc1" % (v(ga, 4), v(sAg), pWJ),
      "global_load_dwordx4 %s, %s, %s offset:2048 sc1" % (v(gb, 4), v(sAg), pWJ)]
AGC = [(ga + e, gb + e) for e in range(4)]
sexpr(sT0, [(sJ, 65536), (sHi, 16384), (sU, 1024)], E1T + 4096)
A("v_add_u32 v4, %s, v3" % sT0)
A("v_add_u32 v5, 8192, v4")
sexpr(sT0, [(sU, 64 * RS)], REC)
vexpr(6, [(0, RS)], sT0)
sleep(P.get("D_A0", 20))
TQ = XR
A.label("S_AG0")
A("global_load_dwordx4 %s, v4, %s offset:-4096 sc1" % (v(TQ, 4), pWS))
A("global_load_dwordx4 %s, v4, %s sc1" % (v(TQ + 4, 4), pWS))
A("global_load_dwordx4 %s, v5, %s offset:-4096 sc1" % (v(TQ + 8, 4), pWS))
A("global_load_dwordx4 %s, v5, %s sc1" % (v(TQ + 12, 4), pWS))
A("s_waitcnt vmcnt(0)")
for i in range(8):
    A("v_xor_b32 %s, s48, %s" % (v(TQ + 2 * i + 1), v(TQ + 2 * i + 1)))
A("v_or3_b32 v7, %s, %s, %s" % (v(TQ + 1), v(TQ + 3), v(TQ + 5)))
A("v_or3_b32 v7, v7, %s, %s" % (v(TQ + 7), v(TQ + 9)))
A("v_or3_b32 v7, v7, %s, %s" % (v(TQ + 11), v(TQ + 13)))
A("v_or_b32 v7, v7, %s" % v(TQ + 15))
A("v_cmp_ne_u32 vcc, 0, v7")
A("s_cbranch_vccz S_AG0_DONE")
sleep(P.get("NAPQ", 8))
budget_loop("S_AG0")
A.label("S_AG0_DONE")
A("global_load_dwordx3 v[12:14], v6, %s sc1" % pWS)
A("v_mov_b32 v4, %d" % (FLG + 12))
A("v_mov_b32 v5, 1")
A("ds_write_b32 v4, v5")
stamp("S", 2)
for c in range(2):
    A("v_add_f32 %s, %s, %s" % (v(TQ + 2 * c), v(TQ + 2 * c), v(TQ + 4 + 2 * c)))
    A("v_add_f32 %s, %s, %s" % (v(TQ + 8 + 2 * c), v(TQ + 8 + 2 * c), v(TQ + 12 + 2 * c)))
    A("v_add_f32 %s, %s, %s" % (v(TQ + 2 * c), v(TQ + 2 * c), v(TQ + 8 + 2 * c)))
A("v_cvt_pk_bf16_f32 %s, %s, %s" % (v(ga), v(TQ), v(TQ + 2)))
sexpr(sT0, [(sU, 272)], QOP)
vexpr(4, [(0, 4)], sT0)
A("ds_write_b32 v4, %s" % v(ga))
A("s_waitcnt lgkmcnt(0)")
A("s_barrier")
A("v_lshrrev_b32 v4, 3, v0")
A("v_and_b32 v5, 7, v0")
vexpr(sDma, [(4, 1024), (5, 16)])
sexpr(sT0, [(sJ, 512 * 1024), (sHi, 128 * 1024), (sU, 32 * 1024), (sLo, 128)])
padd(pT, pWO, sT0)
sexpr(sT1, [(sU, 4096)], LW_O)
for k in range(4):
    A("s_add_u32 m0, %s, %d" % (sT1, 1024 * k))
    A("global_load_lds_dwordx4 %s, %s%s" % (v(sDma), pT, NT))
    if k < 3:
        padd(pT, pT, 8192)
sexpr(sT0, [(sR1, 32 * 3584), (sJ, 448), (sC1, 224)])
padd(pT, pW1, sT0)
for k in range(2):
    A("s_lshl_b32 %s, %s, 1" % (sT1, sU))
    if k:
        A("s_add_u32 %s, %s, 1" % (sT1, sT1))
        A("s_min_u32 %s, %s, 6" % (sT1, sT1))
    A("s_lshl_b32 %s, %s, 6" % (sT0, sT1))
    A("v_add_u32 v4, %s, v0" % sT0)
    A("v_mul_u32_u24 v5, 4682, v4")
    A("v_lshrrev_b32 v5, 16, v5")
    A("v_mul_u32_u24 v7, 14, v5")
    A("v_sub_u32 v4, v4, v7")
    A("v_mul_u32_u24 v5, 3584, v5")
    A("v_lshl_add_u32 v4, v4, 4, v5")
    A("s_lshl_b32 %s, %s, 10" % (sT0, sT1))
    A("s_add_u32 m0, %s, %d" % (sT0, LW_1))
    A("global_load_lds_dwordx4 v4, %s%s" % (pT, NT))
for n in range(448):
    assert (n * 4682) >> 16 == n // 14
if P.get("W2E", 1):
    exec(W2BLK)
A("s_waitcnt vmcnt(%d)" % (13 if P.get("W2E", 1) else 6))
A("s_branch S_RP_CHK")
A.label("S_RP")
A("global_load_dwordx3 v[12:14], v6, %s sc1" % pWS)
A("s_waitcnt vmcnt(0)")
A.label("S_RP_CHK")
A("v_cmp_ne_u64 vcc, %s, v[12:13]" % pN)
A("s_cbranch_vccz S_RP_DONE")
A("s_sleep %d" % P.get("PSL", 8))
budget_loop("S_RP")
A("v_mov_b32 v14, -1")
A.label("S_RP_DONE")
A("s_lshr_b32 %s, %s, 1" % (sT0, sJ))
A("s_cmp_lg_u32 %s, %s" % (sT0, sU))
A("s_cbranch_scc1 S_REC_SKIP")
A("v_cmp_ne_u32 vcc, %s, v14" % sXcc)
A("s_bitcmp1_b32 %s, 0" % sJ)
A("s_cselect_b32 %s, vcc_hi, vcc_lo" % sT0)
A("s_cmp_eq_u32 %s, 0" % sT0)
A("s_cselect_b32 %s, 1, 0" % sT0)
if P["FORCE_SAFE"]:
    A("s_mov_b32 %s, 0" % sT0)
A("v_mov_b32 v5, %d" % FLG)
A("v_mov_b32 v7, %s" % sT0)
A("ds_write_b32 v5, v7")
A.label("S_REC_SKIP")
stamp("S", 14)
if P.get("PTOUCH", 1):
    sexpr(sT0, [(sS, 5120), (sU, 1280)], 32768)
    A("v_add_u32 v7, %s, v3" % sT0)
    A("global_load_dwordx4 v[140:143], v7, %s sc1" % pWJ)
    set_exec(0xFFFF)
    A("global_load_dwordx4 v[140:143], v7, %s offset:1024 sc1" % pWJ)
    set_exec(-1)
A("s_waitcnt lgkmcnt(0)")

TRBLK = r'''lab = if_layer0()
for t in range(7):
    for hh in range(2):
        A("ds_read_b64_tr_b16 %s, %s offset:%d" % (v(W2R + 4 * t + 2 * hh, 2), v(sTr), LW_2 + (32 * t + 4 * hh) * 128))
A("s_waitcnt lgkmcnt(0)")
A.label(lab)
'''
A.label("S_LOOP")
A("s_barrier")
stamp("S", 3)
cm = XR
ca = XR + 8
A("v_mov_b32 v5, %d" % FLG)
A("ds_read_b32 v6, v5")
A("ds_read_b128 %s, %s" % (v(cm, 4), v(sMlrd)))
A("ds_read_b128 %s, %s offset:16" % (v(cm + 4, 4), v(sMlrd)))
for k in range(4):
    A("ds_read_b128 %s, %s offset:%d" % (v(ca + 4 * k, 4), v(sCrd), 2048 * k))
cM, cL, cT, cAd = SS, SS + 1, SS + 2, SS + 3
A("v_mov_b32 %s, %s" % (v(cAd), sC))
A("s_waitcnt lgkmcnt(4)")
A("v_readfirstlane_b32 %s, v6" % sFast)
A("v_max3_f32 %s, %s, %s, %s" % (v(cM), v(cm), v(cm + 2), v(cm + 4)))
A("v_max_f32 %s, %s, %s" % (v(cM), v(cM), v(cm + 6)))
A("v_mov_b32 %s, %s" % (v(cT), v(cM)))
A("v_permlane32_swap_b32 %s, %s" % (v(cM), v(cT)))
A("v_max_f32 %s, %s, %s" % (v(cM), v(cM), v(cT)))
for k in range(4):
    A("v_sub_f32 %s, %s, %s" % (v(cm + 2 * k), v(cm + 2 * k), v(cM)))
for k in range(4):
    A("v_exp_f32 %s, %s" % (v(cm + 2 * k), v(cm + 2 * k)))
A("s_waitcnt lgkmcnt(0)")
for e in range(4):
    A("v_mul_f32 %s, %s, %s" % (v(DR + e), v(cm), v(ca + e)))
A("v_mul_f32 %s, %s, %s" % (v(cL), v(cm), v(cm + 1)))
for k in range(1, 4):
    for e in range(4):
        A("v_fmac_f32 %s, %s, %s" % (v(DR + e), v(cm + 2 * k), v(ca + 4 * k + e)))
    A("v_fmac_f32 %s, %s, %s" % (v(cL), v(cm + 2 * k), v(cm + 2 * k + 1)))
A("v_mov_b32 %s, %s" % (v(cT), v(cL)))
A("v_permlane32_swap_b32 %s, %s" % (v(DR), v(DR + 2)))
A("v_permlane32_swap_b32 %s, %s" % (v(DR + 1), v(DR + 3)))
A("v_permlane32_swap_b32 %s, %s" % (v(cL), v(cT)))
A("v_add_f32 %s, %s, %s" % (v(DR), v(DR), v(DR + 2)))
A("v_add_f32 %s, %s, %s" % (v(DR + 1), v(DR + 1), v(DR + 3)))
A("v_add_f32 %s, %s, %s" % (v(cL), v(cL), v(cT)))
store_intra(["global_store_dwordx2 %s, %s, %s" % (v(sE2w), v(DR, 2), pWJ),
             "s_mov_b64 exec, 1",
             "global_store_dwordx2 %s, %s, %s" % (v(cAd), v(cM, 2), pWJ),
             "s_mov_b64 exec, -1"])
if P.get("SIGI", 1):
    A("s_barrier")
stamp("S", 4)
lab = if_layer0()
A("v_add_u32 %s, %d, %s" % (v(gc), 4 * 8192, v(sE1w)))
padd(pT, pWJ, LSTR)
store_intra(exec_lines(0xFFFF) +
            ["global_store_dword %s, %s, %s" % (v(gc), v(sCsP), pWJ),
             "s_mov_b64 exec, -1",
             ] + ([] if P.get("CLEAN", 0) >= 1 else [
             "global_store_dwordx4 %s, %s, %s" % (v(sClr), v(SN, 4), pT),
             "s_mov_b32 exec_hi, 0",
             "global_store_dwordx4 %s, %s, %s offset:1024" % (v(sClr), v(SN, 4), pT),
             "s_mov_b64 exec, -1"]))
if P.get("CLEAN", 0) >= 1:
    wt_slice(pT)
if not P.get("W2LATE", 0) and not P.get("W2E", 1):
    exec(W2BLK)
    A("s_waitcnt vmcnt(7)")
else:
    A("s_waitcnt vmcnt(0)")
A.label(lab)
A("s_barrier")
stamp("S", 5)
for t in range(4):
    A("ds_read_b128 %s, %s offset:%d" % (v(XR + 4 * t, 4), v(sOrd), 64 * t))
lab = if_layer0()
for t in range(4):
    for hh in range(2):
        A("ds_read_b64_tr_b16 %s, %s offset:%d" % (v(WO + 4 * t + 2 * hh, 2), v(sTr), LW_O + (32 * t + 4 * hh) * 128))
A("s_waitcnt lgkmcnt(0)")
A.label(lab)
for t in range(4):
    A("s_waitcnt lgkmcnt(%d)" % (3 - t))
    ab = (v(WO + 4 * t, 4), v(XR + 4 * t, 4)) if P.get("WIDE", 0) else (v(XR + 4 * t, 4), v(WO + 4 * t, 4))
    A("%s %s, %s, %s, %s" % (MFMA, v(DR, 4), ab[0], ab[1], "0" if t == 0 else v(DR, 4)))
if P.get("WIDE", 0):
    set_exec(0x000F000F000F000F)
    A("global_store_dwordx4 %s, %s, %s sc1" % (v(sE3w), v(DR, 4), pWL))
    set_exec(-1)
else:
    A("global_store_dword %s, %s, %s sc1" % (v(sE3w), v(DR), pWL))
if P.get("SIG", 1):
    A("s_barrier")
lab = if_layer0()
for tl in range(2):
    for hh in range(2):
        A("ds_read_b64_tr_b16 %s, %s offset:%d" % (v(W1R + 4 * tl + 2 * hh, 2), v(sTr1), LW_1 + 4 * hh * 224 + 32 * tl))
for i in range(4):
    A("v_mov_b32 %s, 0x3f803f80" % v(XR + i))
A("v_add_u32 %s, %d, %s" % (v(gc + 1), (E4C - E4) & 0xFFFFFFFF, v(sE4w)))
A("s_waitcnt lgkmcnt(0)")
A("%s %s, %s, %s, 0" % (MFMA, v(DR + 4, 4), v(XR, 4), v(W1R, 4)))
A("%s %s, %s, %s, 0" % (MFMA, v(XR + 4, 4), v(XR, 4), v(W1R + 4, 4)))
A("s_cmp_eq_u32 %s, 3" % sU)
A("s_cselect_b32 %s, 0, 0xffff" % sT0)
store_intra(exec_lines(0xFFFF) +
            ["global_store_dword %s, %s, %s" % (v(gc + 1), v(DR + 4), pWJ),
             "s_mov_b32 exec_lo, %s" % sT0,
             "global_store_dword %s, %s, %s offset:64" % (v(gc + 1), v(XR + 4), pWJ),
             "s_mov_b64 exec, -1"])
A("s_sub_u32 %s, 4, %s" % (sT0, sHi))
A("s_lshl_b32 %s, %s, 13" % (sT0, sT0))
A("v_add_u32 %s, %s, %s" % (v(gc), sT0, v(sAg)))
poll(["global_load_dwordx4 %s, %s, %s sc1" % (v(ga, 4), v(gc), pWJ),
      "global_load_dwordx4 %s, %s, %s offset:2048 sc1" % (v(gb, 4), v(gc), pWJ)], AGC, nap=4)
for e in range(4):
    A("v_add_f32 %s, %s, %s" % (v(ga + e), v(ga + e), v(gb + e)))
half_treduce(ga)
A("v_mov_b32 %s, %s" % (v(sCq0), v(ga)))
A("v_mov_b32 %s, %s" % (v(sCq1), v(ga + 1)))
if P.get("W2LATE", 0):
    exec(W2BLK)
A.label(lab)
A("s_barrier")
stamp("S", 6)
A("ds_read_b128 %s, %s" % (v(XR, 4), v(sX1a)))
A("s_cmp_eq_u32 %s, 3" % sU)
A("s_cbranch_scc1 S_W1_W3")
A("s_waitcnt lgkmcnt(0)")
A("%s %s, %s, %s, 0" % (MFMA, v(DR, 4), v(XR, 4), v(W1R, 4)))
A("%s %s, %s, %s, 0" % (MFMA, v(DR + 4, 4), v(XR, 4), v(W1R + 4, 4)))
store_intra(["global_store_dword %s, %s, %s" % (v(sE4w), v(DR), pWJ),
             "global_store_dword %s, %s, %s offset:64" % (v(sE4w), v(DR + 4), pWJ)])
A("s_branch S_W1_DONE")
A.label("S_W1_W3")
A("ds_read_b128 %s, %s" % (v(XR + 4, 4), v(sX1b)))
A("s_waitcnt lgkmcnt(1)")
A("%s %s, %s, %s, 0" % (MFMA, v(DR, 4), v(XR, 4), v(W1R, 4)))
A("s_waitcnt lgkmcnt(0)")
A("%s %s, %s, %s, 0" % (MFMA, v(DR + 4, 4), v(XR, 4), v(XR + 4, 4)))
store_intra(["global_store_dword %s, %s, %s" % (v(sE4w), v(DR), pWJ)] + exec_lines(STM) +
            ["global_store_dword %s, %s, %s" % (v(sE4sw), v(DR + 4), pWJ)] + exec_lines(0x000F000F000F000F) +
            ["global_store_dwordx4 %s, %s, %s" % (v(sE4rw), v(XR + 4, 4), pWJ), "s_mov_b64 exec, -1"])
A.label("S_W1_DONE")
if P.get("SIGI", 1):
    A("s_barrier")
KEEP = 136
if P.get("CLEAN", 0) >= 4:
    A("v_mov_b32 %s, %s" % (v(KEEP), v(DR)))
    A("v_mov_b32 %s, %s" % (v(KEEP + 1), v(DR + 4)))
if P.get("W2LATE", 0):
    A("s_waitcnt vmcnt(0)")
else:
    exec(TRBLK)
A("s_barrier")
stamp("S", 7)
if P.get("W2LATE", 0):
    exec(TRBLK)
for t in range(7):
    A("ds_read_b128 %s, %s offset:%d" % (v(XR + 4 * t, 4), v(sHrd), 64 * t))
for t in range(7):
    A("s_waitcnt lgkmcnt(%d)" % (6 - t))
    ab = (v(W2R + 4 * t, 4), v(XR + 4 * t, 4)) if P.get("WIDE", 0) else (v(XR + 4 * t, 4), v(W2R + 4 * t, 4))
    A("%s %s, %s, %s, %s" % (MFMA, v(DR, 4), ab[0], ab[1], "0" if t == 0 else v(DR, 4)))
if P.get("WIDE", 0):
    set_exec(0x0001000100010001)
    A("global_store_dwordx4 %s, %s, %s sc1" % (v(sE5w), v(DR, 4), pWL))
else:
    set_exec(0xFFFF)
    A("global_store_dword %s, %s, %s sc1" % (v(sE5w), v(DR), pWL))
set_exec(-1)
if P.get("SIG", 1):
    A("s_barrier")
stamp("S", 8)
A("s_cmp_lg_u32 %s, 0" % sL)
A("s_cbranch_scc1 %s" % ("S_FIN" if P.get("CLEAN", 0) >= 3 else "L_EXIT"))
A("s_mov_b32 %s, 1" % sL)
padd(pWL, pWL, LSTR)
padd(pWJ, pWJ, LSTR)
A("s_lshl_b32 %s, %s, 6" % (sT0, sU))
A("v_add_u32 %s, %s, %s" % (v(SS), sT0, v(sXa)))
A("s_barrier")
stamp("S", 0)
for t in range(4):
    A("ds_read_b128 %s, %s offset:%d" % (v(XR + 4 * t, 4), v(sXa), 64 * t))
A("ds_read_b128 %s, %s" % (v(XR + 16, 4), v(sXb)))
A("ds_read_b128 %s, %s" % (v(XR + 20, 4), v(SS)))
for t in range(4):
    A("s_waitcnt lgkmcnt(%d)" % (5 - t))
    A("%s %s, %s, %s, %s" % (MFMA, v(DR, 4), v(XR + 4 * t, 4), v(WQ + 4 * t, 4), "0" if t == 0 else v(DR, 4)))
A("s_waitcnt lgkmcnt(0)")
A("%s %s, %s, %s, 0" % (MFMA, v(DR + 4, 4), v(XR + 20, 4), v(XR + 16, 4)))
stamp("S", 1)
store_intra(["global_store_dword %s, %s, %s" % (v(sE1w), v(DR), pWJ)] + exec_lines(STM) +
            ["global_store_dword %s, %s, %s" % (v(sE1sw), v(DR + 4), pWJ), "s_mov_b64 exec, -1"])
sleep(P["D_A"])
SSETS = [SS, XR, XR + 12][:P.get("NSETS", 2)]
q0_, q1_, q2_, q3_ = 4, 5, 6, 7


def a_issue(a):
    set_exec(0xFFFF)
    A("global_load_dwordx2 %s, %s, %s sc1" % (v(a + 8, 2), v(sAst), pWJ))
    set_exec(-1)
    A("global_load_dwordx4 %s, %s, %s sc1" % (v(a, 4), v(sAg), pWJ))
    A("global_load_dwordx4 %s, %s, %s offset:2048 sc1" % (v(a + 4, 4), v(sAg), pWJ))


def a_mid(a):
    c = a + 8
    for m in (X1, X2, HM, RM):
        A("v_add_f32_dpp %s, %s, %s %s" % (v(c), v(c), v(c), m))
        A("v_add_f32_dpp %s, %s, %s %s" % (v(c + 1), v(c + 1), v(c + 1), m))
    A("v_mul_f32 %s, %s, %s" % (v(c), f32(1 / 512), v(c)))
    A("v_mul_f32 %s, %s, %s" % (v(c + 1), f32(1 / 512), v(c + 1)))
    A("v_fma_f32 %s, -%s, %s, %s" % (v(c + 1), v(c), v(c), v(c + 1)))
    A("v_fmac_f32 %s, 0, %s" % (v(c), v(c + 1)))
    A("v_max_f32 %s, 0, %s" % (v(c + 1), v(c + 1)))
    A("v_add_f32 %s, %s, %s" % (v(c + 1), f32(1e-5), v(c + 1)))
    A("v_rsq_f32 %s, %s" % (v(c + 1), v(c + 1)))
    A("v_mul_f32 %s, %s, %s" % (v(c), v(c), v(c + 1)))
    A("v_readfirstlane_b32 %s, %s" % (sT0, v(c + 1)))
    A("v_readfirstlane_b32 %s, %s" % (sT1, v(c)))
    A("v_mul_f32 %s, %s, %s" % (v(q2_), sT1, v(sCq0)))
    A("v_mul_f32 %s, %s, %s" % (v(q3_), sT1, v(sCq1)))


def a_post(a):
    for e in range(4):
        A("v_add_f32 %s, %s, %s" % (v(a + e), v(a + e), v(a + 4 + e)))
    half_treduce(a)


def a_fin(a):
    A("v_fma_f32 %s, %s, %s, -%s" % (v(q0_), v(a), sT0, v(q2_)))
    A("v_fma_f32 %s, %s, %s, -%s" % (v(q1_), v(a + 1), sT0, v(q3_)))


fast_poll(a_issue, a_mid, a_post, a_fin, [q0_, q1_], SS)
stamp("S", 2)
A("v_cvt_pk_bf16_f32 %s, %s, %s" % (v(q0_), v(q0_), v(q1_)))
A("ds_write_b32 %s, %s" % (v(sQw), v(q0_)))
A("s_waitcnt lgkmcnt(0)")
A("s_barrier")
A("s_waitcnt vmcnt(0)")
if P.get("CLEAN", 0) >= 2:
    A("s_sub_u32 s62, s72, %d" % LSTR)
    A("s_subb_u32 s63, s73, 0")
    wt_slice(pT)
A("s_branch S_LOOP")
if P.get("CLEAN", 0) >= 3:
    A.label("S_FIN")
    sexpr(sT0, [(sS, 4096), (sU, 1024)])
    A("v_add_u32 v4, %s, v3" % sT0)
    A("global_store_dwordx4 v4, %s, %s sc1" % (v(SN, 4), pWJ))
    if P.get("CLEAN", 0) >= 4:
        A("global_store_dword %s, %s, %s sc1" % (v(sE4w), v(KEEP), pWJ))
        A("s_cmp_eq_u32 %s, 3" % sU)
        A("s_cbranch_scc1 L_EXIT")
        A("global_store_dword %s, %s, %s offset:64 sc1" % (v(sE4w), v(KEEP + 1), pWJ))
    A("s_branch L_EXIT")

KR, VR, VF, QR, SR = 16, 48, 80, 112, 128
GS = 48
(gOg, gOml, gOlds, gW1g, gW1x, gW1lds, gW2g, gW2s, gW2lds, gXg, gXr, gXlds, gB1, gB2, gCs1, gQrd, gApw, gMlw, gOut, gDma) = range(148, 168)
_gn = [1 if P["PREF"] else 0]


def gload(t):
    if P.get("NODMA") and "lds" in t:
        t = "global_load_dword v140, v3, %s" % pB1 if False else "s_nop 0"
        A(t)
        return
    if _gn[0] >= P["W"]:
        if P.get("ADAPT"):
            lab = newlabel("THR")
            A("ds_read_b32 v130, v129")
            A("s_waitcnt lgkmcnt(0)")
            A("v_readfirstlane_b32 %s, v130" % sT1)
            A("s_cmp_lg_u32 %s, 0" % sT1)
            A("s_cbranch_scc1 %s" % lab)
            A("s_waitcnt vmcnt(%d)" % (P["W"] - 1))
            A.label(lab)
        else:
            A("s_waitcnt vmcnt(%d)" % (P["W"] - 1))
    A(t)
    _gn[0] += 1


GADDR = r'''A("v_lshrrev_b32 v11, 3, v0")        # l>>3
A("v_and_b32 v12, 7, v0")            # l&7
vexpr(gDma, [(11, 1024), (12, 16)])
# bias elements
A("s_lshr_b32 %s, %s, 1" % (sK0, sWave))     # b = w>>1
A("s_and_b32 %s, %s, 1" % (sK1, sWave))      # w&1
A("s_min_u32 %s, %s, 6" % (sK2, sWave))      # w' for the W2 gather
vexpr(13, [(1, 4), (2, 1)])                  # X col local = 4 l16 + g
sexpr(sT0, [(sHi, 256), (sK1, 128)])
vexpr(14, [(13, 2)], sT0)                    # col*2 within a 512-col bf16 row
gload("global_load_ushort %s, v14, %s%s" % (v(gB2), pB2, NT))
vexpr(10, [(12, 4), (2, 1)])                 # 4 (l&7) + g
sexpr(sT0, [(sK2, 64)])
vexpr(10, [(10, 2)], sT0)                    # f*2 (local)
sexpr(sT0, [(sJ, 448)])
A("v_add_u32 v6, %s, v10" % sT0)
gload("global_load_ushort %s, v6, %s%s" % (v(gB1), pB1, NT))
N_AFTER_K, N_AFTER_V = 8, 0

for q in range(4):
    smov64(mQ[q], (0x000F000F000F000F << (4 * q)))
A("s_mov_b32 %s, 0x05040100" % sPermLo)
A("s_mov_b32 %s, 0x07060302" % sPermHi)
A("s_mov_b32 %s, %s" % (sC, f32(128 ** -0.5 * math.log2(math.e))))
A("s_mov_b32 s42, s40")
A("s_mov_b32 s43, s41")
A("s_mul_i32 %s, %s, %d" % (sT0, sJ, JSTR))
padd(pWJ, pWS, sT0)
A("v_add_u32 %s, %d, v10" % (v(gW2lds), HOP))
# O gather: E2 + ((ro*4+b)*8 + 2g)*512 + (16 (w&1) + l16)*16
sexpr(sT0, [(sHi, 16384), (sK0, 4096), (sK1, 256)], E2)
vexpr(gOg, [(2, 1024), (1, 16)], sT0)
sexpr(sT0, [(sHi, 256), (sK0, 64)], E2S)
vexpr(gOml, [(2, 16)], sT0)
# O lds: U = 16 h + l16 (h = w&1); lp = 2U + (g>>1); ups = lp&31 = (2 l16 + (g>>1)) ; e = 2 h + (g&1)
#   ups = 16 a + 4 g' + qq ; d = 32 g' + 8 e + 4 a + qq
A("v_lshrrev_b32 v4, 1, v2")
A("v_lshl_add_u32 v4, v1, 1, v4")            # ups
A("v_bfe_u32 v5, v4, 4, 1")                  # a
A("v_bfe_u32 v6, v4, 2, 2")                  # g'
A("v_and_b32 v7, 3, v4")                     # qq
A("v_and_b32 v4, 1, v2")                     # g&1
sexpr(sT0, [(sK0, 272), (sK1, 32)], OOP)
vexpr(gOlds, [(6, 64), (4, 16), (5, 8), (7, 2)], sT0)
# W1 gather: E3 + r1*16384 + (2 pp)*512 + (4 w + (l&3))*16 ; pp = l>>2
A("v_lshrrev_b32 v4, 2, v0")
A("v_and_b32 v5, 3, v0")
if P.get("E3L", 1):
    sexpr(sT0, [(sR1, 16384), (sWave, 2048)], E3)
    A("v_add_u32 %s, %s, v3" % (v(gW1g), sT0))
else:
    sexpr(sT0, [(sR1, 16384), (sWave, 64)], E3)
    vexpr(gW1g, [(4, 1024), (5, 16)], sT0)
# rho = 16 tile + 4 (l&3) + g ; tile = w>>2, b = w&3
A("s_lshr_b32 %s, %s, 2" % (sT1, sWave))
A("s_and_b32 %s, %s, 3" % (sT2, sWave))
vexpr(6, [(5, 8), (2, 2)])
sexpr(sT0, [(sT2, 80), (sT1, 32)], X1OP)
A("v_add_u32 %s, %s, v6" % (v(gW1lds), sT0))
sexpr(sT0, [(sT2, 272), (sT1, 32)], XOP)
A("s_and_b32 %s, %s, 3" % (sT1, sR1))
A("s_lshl_b32 %s, %s, 6" % (sT1, sT1))
A("s_add_u32 %s, %s, %s" % (sT0, sT0, sT1))
A("v_add_u32 %s, %s, v6" % (v(gW1x), sT0))
# W2 gather: E4 + (b*16 + 2 pp8)*896 + (8 w' + (l&7))*16 ; pp8 = l>>3
sexpr(sT0, [(sHi, 16 * 896), (sK2, 128)], E4)
vexpr(gW2g, [(11, 2 * 896), (12, 16)], sT0)
# W2 stats: E4S + (c1*4 + b)*128 + l16*8  (16 entries, row all-reduce)
sexpr(sT0, [(sHi, 128)], E4S)
vexpr(gW2s, [(1, 8)], sT0)
# X gather: E5 + ((b*8 + 2 rq + (w&1))*8 + 2g)*256 + l16*16
sexpr(sT0, [(sK0, 16384), (sHi, 4096), (sK1, 2048)], E5)
vexpr(gXg, [(2, 512), (1, 16)], sT0)
sexpr(sT0, [(sK0, 1024)], E4R)
A("v_add_u32 %s, %s, v14" % (v(gXr), sT0))
sexpr(sT0, [(sK0, 1024)])
A("v_add_u32 %s, %s, v14" % (v(gOut), sT0))
sexpr(sT0, [(sK0, 272), (sK1, 128)], XOP)
vexpr(gXlds, [(13, 2)], sT0)
vexpr(gQrd, [(8, 272), (2, 16)], None, QOP)
sexpr(sT0, [(sWave, 2048)], AP)
A("v_add_u32 %s, %s, v3" % (v(gApw), sT0))
sexpr(sT0, [(sWave, 8)], ML)
vexpr(gMlw, [(8, 64)], sT0)
'''
NV1 = 8
A.label("L_G")
ISTR, WSTR = ((65536, 8192) if P.get("KMODE", 5) == 5 else (8192, 65536))
sexpr(sT0, [(sHi, 8 << 21), (sJ, 1 << 21), (sLo, 1024), (sWave, WSTR)], 6144 * 256)
A("v_and_b32 v8, 3, v1")
A("v_lshrrev_b32 v9, 2, v1")
vexpr(10, [(8, ISTR), (9, 256), (2, 16)])
A("v_mov_b32 v129, %d" % (FLG + 12))
A("s_waitcnt lgkmcnt(0)")
stamp_init()
stamp("G", 10)
padd(pT, pK, sT0)
padd(pT2, pV, sT0)
for tau in range(2):
    for t in range(4):
        if 4 * tau + t == P["B0POS"]:
            A("s_barrier")
        gload("global_load_dwordx4 %s, v10, %s offset:%d%s" % (v(KR + 4 * (4 * tau + t), 4), pT, 64 * t, NT))
    if tau == 0:
        padd(pT, pT, 4 * ISTR)
        A("v_mov_b32 %s, v10" % v(SR))
        exec(GADDR)
        A("v_mov_b32 v10, %s" % v(SR))
stamp("G", 11)
NV1 = 8
for jj in range(8):
    gload("global_load_dwordx4 %s, v3, %s%s" % (v(VR + 4 * jj, 4), pT2, NT))
    if jj < 7:
        padd(pT2, pT2, ISTR)
for q in range(4):
    A("v_cndmask_b32 v%d, 0, -1, %s" % (144 + q, mQ[q]))
stamp("G", 9)
if P.get("KVWAIT"):
    A("s_waitcnt vmcnt(0)")
    stamp("G", 14)
if P.get("QLATE"):
    A("s_barrier")
if P.get("PRIO", 0):
    A("s_cmp_ge_u32 %s, 4" % sWave)
    A("s_cbranch_scc1 G_ENTRY")
    A("s_setprio %d" % P["PRIO"])
A.label("G_ENTRY")
A("s_barrier")
cyc(0)
stamp("G")
if NV1 < 8:
    lab = if_layer0()
    for jj in range(NV1, 8):
        A("global_load_dwordx4 %s, v3, %s offset:%d%s" % (v(VR + 4 * jj, 4), pT2, (jj - 4) * 1024, NT))
    A.label(lab)
for t in range(4):
    A("ds_read_b128 %s, %s offset:%d" % (v(QR + 4 * t, 4), v(gQrd), 64 * t))
A("s_waitcnt vmcnt(%d)" % N_AFTER_K)
stamp("G")
S0, S1 = SR, SR + 4
if STAMP == 4:
    A("s_waitcnt lgkmcnt(0)")
    cyc(1)
for t in range(4):
    A("s_waitcnt lgkmcnt(%d)" % ((3 - t) if STAMP != 4 else 15))
    for tau in range(2):
        d = v(SR + 4 * tau, 4)
        A("%s %s, %s, %s, %s" % (MFMA, d, v(KR + 4 * (4 * tau + t), 4), v(QR + 4 * t, 4), "0" if t == 0 else d))
aM, aT, aMc = 136, 137, 138
PR = 140
PM = QR
A("v_max3_f32 %s, %s, %s, %s" % (v(aM), v(S0), v(S0 + 1), v(S0 + 2)))
A("v_max3_f32 %s, %s, %s, %s" % (v(aT), v(S1), v(S1 + 1), v(S1 + 2)))
A("v_max3_f32 %s, %s, %s, %s" % (v(aM), v(aM), v(S0 + 3), v(S1 + 3)))
A("v_max_f32 %s, %s, %s" % (v(aM), v(aM), v(aT)))
cyc(2)
g_allreduce("v_max_f32", aM, aT)
A("v_mul_f32 %s, %s, %s" % (v(aMc), sC, v(aM)))
for q in range(4):
    A("s_mov_b64 exec, %s" % mQ[q])
    A("v_fma_f32 %s, %s, %s, -%s" % (v(PR), v(SR + 2 * q), sC, v(aMc)))
    A("v_fma_f32 %s, %s, %s, -%s" % (v(PR + 1), v(SR + 2 * q + 1), sC, v(aMc)))
A("s_mov_b64 exec, -1")
A("v_exp_f32 %s, %s" % (v(PR), v(PR)))
A("v_exp_f32 %s, %s" % (v(PR + 1), v(PR + 1)))
A("v_cvt_pk_bf16_f32 %s, %s, %s" % (v(PR), v(PR), v(PR + 1)))
cyc(3)
lab0, lab1 = newlabel("VT"), newlabel("VTD")
A("s_cmp_eq_u32 %s, 0" % sL)
A("s_cbranch_scc1 %s" % lab0)
A.label(lab1)
with Cap() as vt:
    A("s_waitcnt vmcnt(%d)" % N_AFTER_V)
    stamp("G")
    for i in (0, 4, 1, 5, 2, 6, 3, 7):
        for p in range(4):
            A("v_perm_b32 %s, %s, %s, %s" % (v(VF + 4 * i + p), v(VR + 4 * (2 * p + 1) + (i >> 1)), v(VR + 4 * (2 * p) + (i >> 1)),
                                             sPermHi if (i & 1) else sPermLo))
OOL.append([lab0 + ":"] + vt.lines + ["v_mov_b32 v%d, 0x3f803f80" % (GS + 28 + i) for i in range(4)] + ["s_branch %s" % lab1])
D0 = 4
DL = 128
MK = 144
ONES = GS + 28


def pm(q, p):
    rot = (4 * (q - p)) % 16
    if rot == 0:
        A("v_and_b32 %s, %s, %s" % (v(PM + 4 * q + p), v(PR), v(MK + q)))
    else:
        A("v_and_b32_dpp %s, %s, %s row_ror:%d%s" % (v(PM + 4 * q + p), v(PR), v(MK + q), rot, DPP))


for p in range(4):
    pm(0, p)
pm(1, 0); pm(1, 1)
A("%s %s, %s, %s, 0" % (MFMA, v(DL, 4), v(ONES, 4), v(PM, 4)))
for q in range(4):
    for a in range(2):
        d = v(D0 + 4 * a, 4)
        A("%s %s, %s, %s, %s" % (MFMA, d, v(VF + 4 * (4 * a + q), 4), v(PM + 4 * q, 4), "0" if q == 0 else d))
        nxt = 4 * q + 2 * a + 6
        for k in (nxt, nxt + 1):
            if k < 16:
                pm(k >> 2, k & 3)
A("v_mov_b32 %s, %s" % (v(aMc + 1), v(DL)))
cyc(4)
A("s_mov_b64 exec, %s" % mQ[0])
A("ds_write_b64 %s, %s" % (v(gMlw), v(aMc, 2)))
A("s_mov_b64 exec, -1")
A("ds_write_b128 %s, %s" % (v(gApw), v(D0, 4)))
A("ds_write_b128 %s, %s offset:1024" % (v(gApw), v(D0 + 4, 4)))
A("s_waitcnt lgkmcnt(0)")
cyc(5)
A("s_barrier")
cyc(6)
cyc_dump(7)

a0, b0, c0 = GS, GS + 4, GS + 8
r0, r1_, r2, r3 = GS + 12, GS + 13, GS + 14, GS + 15


def add_ab():
    for e in range(4):
        A("v_add_f32 %s, %s, %s" % (v(a0 + e), v(a0 + e), v(b0 + e)))


BC = "row_newbcast:0" + DPP
NS_ = P.get("NSETS", 2)
GSETS = [GS, GS + 16, 112][:NS_]
GAP = P.get("GAP", 3)


def add_ab2(a):
    for e in range(4):
        A("v_add_f32 %s, %s, %s" % (v(a + e), v(a + e), v(a + 4 + e)))


def g_treduce_to(a, out):
    A("v_permlane16_swap_b32 %s, %s" % (v(a), v(a + 1)))
    A("v_permlane16_swap_b32 %s, %s" % (v(a + 2), v(a + 3)))
    A("v_add_f32 %s, %s, %s" % (v(a), v(a), v(a + 1)))
    A("v_add_f32 %s, %s, %s" % (v(a + 2), v(a + 2), v(a + 3)))
    A("v_permlane32_swap_b32 %s, %s" % (v(a), v(a + 2)))
    A("v_add_f32 %s, %s, %s" % (v(out), v(a), v(a + 2)))


A("ds_read_u16 %s, %s" % (v(r3), v(gW1x)))
A("s_barrier")
sleep(P.get("DI_O", 0))
stamp("G", 7)


def o_issue(a):
    set_exec(0x0001000100010001)
    A("global_load_dwordx4 %s, %s, %s sc1" % (v(a + 8, 4), v(gOml), pWJ))
    set_exec(-1)
    A("global_load_dwordx4 %s, %s, %s sc1" % (v(a, 4), v(gOg), pWJ))
    A("global_load_dwordx4 %s, %s, %s offset:512 sc1" % (v(a + 4, 4), v(gOg), pWJ))


def o_all(a):
    c = a + 8
    A("v_max_f32 %s, %s, %s" % (v(r0), v(c), v(c + 2)))
    for e in (0, 2, 1, 3):
        A("v_mov_b32_dpp %s, %s %s" % (v(c + e), v(c + e), BC))
    A("v_mov_b32_dpp %s, %s %s" % (v(r0), v(r0), BC))
    g_allreduce("v_max_f32", r0, r1_)
    A("v_sub_f32 %s, %s, %s" % (v(c), v(c), v(r0)))
    A("v_sub_f32 %s, %s, %s" % (v(c + 2), v(c + 2), v(r0)))
    A("v_exp_f32 %s, %s" % (v(c), v(c)))
    A("v_exp_f32 %s, %s" % (v(c + 2), v(c + 2)))
    with Cap() as c1:
        A("v_mul_f32 %s, %s, %s" % (v(r1_), v(c), v(c + 1)))
        A("v_fmac_f32 %s, %s, %s" % (v(r1_), v(c + 2), v(c + 3)))
        g_allreduce("v_add_f32", r1_, r2)
        A("v_rcp_f32 %s, %s" % (v(r1_), v(r1_)))
    with Cap() as c2:
        for e in range(4):
            A("v_mul_f32 %s, %s, %s" % (v(a + e), v(c), v(a + e)))
        for e in range(4):
            A("v_fmac_f32 %s, %s, %s" % (v(a + e), v(c + 2), v(a + 4 + e)))
        g_treduce_to(a, r0)
    for l in interleave(c2.lines, c1.lines):
        A(l)
    A("v_mul_f32 %s, %s, %s" % (v(r0), v(r0), v(r1_)))


fast_poll(o_issue, None, o_all, None, [r0], GS)
stamp("G")
A("v_cvt_pk_bf16_f32 %s, %s, %s" % (v(r0), v(r0), v(r0)))
A("ds_write_b16 %s, %s" % (v(gOlds), v(r0)))
A("s_waitcnt lgkmcnt(0)")
A("s_barrier")

A("v_lshlrev_b32 %s, 16, %s" % (v(r3), v(r3)))
A("s_barrier")
sleep(P["D_W1"])
stamp("G", 8)


def w1_issue(a):
    A("global_load_dwordx4 %s, %s, %s sc1" % (v(a, 4), v(gW1g), pWL))
    A("global_load_dwordx4 %s, %s, %s offset:%d sc1" % (v(a + 4, 4), v(gW1g), pWL, 1024 if P.get("E3L", 1) else 512))


def w1_post(a):
    add_ab2(a)
    g_treduce_to(a, r0)
    A("v_add_f32_dpp %s, %s, %s row_ror:4%s" % (v(r0), v(r0), v(r0), DPP))
    A("v_add_f32_dpp %s, %s, %s row_ror:8%s" % (v(r0), v(r0), v(r0), DPP))


fast_poll(w1_issue, None, w1_post, None, [r0], GS)
stamp("G")
A("v_add_f32 %s, %s, %s" % (v(r0), v(r0), v(r3)))
A("v_cvt_pk_bf16_f32 %s, %s, %s" % (v(r0), v(r0), v(r0)))
A("ds_write_b16 %s, %s" % (v(gW1lds), v(r0)))
A("s_waitcnt lgkmcnt(0)")
A("s_barrier")

lab = if_layer0()
A("s_mul_i32 %s, %s, %d" % (sT0, sHi, 16 * 896))
A("s_add_u32 %s, %s, %d" % (sT0, sT0, E4 - E4C))
A("v_subrev_u32 %s, %s, %s" % (v(r3), sT0, v(gW2g)))
poll(["global_load_dwordx4 %s, %s, %s sc1" % (v(a0, 4), v(r3), pWJ),
      "global_load_dwordx4 %s, %s, %s offset:896 sc1" % (v(b0, 4), v(r3), pWJ)],
     [(a0 + e, b0 + e) for e in range(4)])
add_ab()
g_treduce(a0)
A("v_add_f32_dpp %s, %s, %s row_ror:8%s" % (v(gCs1), v(a0), v(a0), DPP))
A("v_lshlrev_b32 %s, 16, %s" % (v(gB1), v(gB1)))
A("v_lshlrev_b32 %s, 16, %s" % (v(gB2), v(gB2)))
A.label(lab)
k0 = -2 * math.log2(math.e) * math.sqrt(2 / math.pi)
A("v_mov_b32 %s, %s" % (v(r2), f32(k0)))
A("s_barrier")
A("s_cmp_eq_u32 %s, 7" % sWave)
A("s_cbranch_scc1 G_W2_SKIP")
sleep(P.get("DI_W2", 0))
stamp("G", 12)


def w2_issue(a):
    set_exec(0xFFFF)
    A("global_load_dwordx2 %s, %s, %s sc1" % (v(a + 8, 2), v(gW2s), pWJ))
    set_exec(-1)
    A("global_load_dwordx4 %s, %s, %s sc1" % (v(a, 4), v(gW2g), pWJ))
    A("global_load_dwordx4 %s, %s, %s offset:896 sc1" % (v(a + 4, 4), v(gW2g), pWJ))


def w2_mid(a):
    c = a + 8
    for m in (X1, X2, HM, RM):
        A("v_add_f32_dpp %s, %s, %s %s" % (v(c), v(c), v(c), m))
        A("v_add_f32_dpp %s, %s, %s %s" % (v(c + 1), v(c + 1), v(c + 1), m))
    A("v_mul_f32 %s, %s, %s" % (v(c), f32(1 / 512), v(c)))
    A("v_mul_f32 %s, %s, %s" % (v(c + 1), f32(1 / 512), v(c + 1)))
    A("v_fma_f32 %s, -%s, %s, %s" % (v(c + 1), v(c), v(c), v(c + 1)))
    A("v_fmac_f32 %s, 0, %s" % (v(c), v(c + 1)))
    A("v_max_f32 %s, 0, %s" % (v(c + 1), v(c + 1)))
    A("v_add_f32 %s, %s, %s" % (v(c + 2), f32(1e-5), v(c + 1)))
    A("v_rcp_f32 %s, %s" % (v(c + 3), v(c + 2)))
    A("v_mul_f32 %s, %s, %s" % (v(c + 3), v(c + 1), v(c + 3)))
    A("v_add_f32 %s, %s, %s" % (v(c + 3), f32(1e-5), v(c + 3)))
    A("v_mul_f32 %s, %s, %s" % (v(c + 2), v(c + 2), v(c + 3)))
    A("v_rsq_f32 %s, %s" % (v(c + 2), v(c + 2)))
    A("v_mul_f32 %s, %s, %s" % (v(c), v(c), v(c + 2)))
    A("v_readfirstlane_b32 %s, %s" % (sT0, v(c + 2)))
    A("v_readfirstlane_b32 %s, %s" % (sT1, v(c)))
    A("v_fma_f32 %s, -%s, %s, %s" % (v(r3), sT1, v(gCs1), v(gB1)))


def w2_post(a):
    add_ab2(a)
    g_treduce_to(a, r0)
    A("v_add_f32_dpp %s, %s, %s row_ror:8%s" % (v(r0), v(r0), v(r0), DPP))


fast_poll(w2_issue, w2_mid, w2_post, lambda a: A("v_fma_f32 %s, %s, %s, %s" % (v(r0), v(r0), sT0, v(r3))), [r0], GS)
stamp("G")
A("v_mul_f32 %s, %s, %s" % (v(r1_), v(r0), v(r0)))
A("v_fmac_f32 %s, %s, %s" % (v(r2), f32(k0 * 0.044715), v(r1_)))
A("v_mul_f32 %s, %s, %s" % (v(r2), v(r2), v(r0)))
A("v_exp_f32 %s, %s" % (v(r2), v(r2)))
A("v_add_f32 %s, 1.0, %s" % (v(r2), v(r2)))
A("v_rcp_f32 %s, %s" % (v(r2), v(r2)))
A("v_mul_f32 %s, %s, %s" % (v(r0), v(r0), v(r2)))
A("v_cvt_pk_bf16_f32 %s, %s, %s" % (v(r0), v(r0), v(r0)))
A("ds_write_b16 %s, %s" % (v(gW2lds), v(r0)))
A("s_waitcnt lgkmcnt(0)")
A.label("G_W2_SKIP")
A("s_barrier")

A("s_cmp_eq_u32 %s, 0" % sL)
A("s_cbranch_scc1 G_X_GO")
A("s_cmp_lg_u32 %s, 0" % sLo)
A("s_cbranch_scc1 L_EXIT")
A("s_cmp_lg_u32 %s, %s" % (sWave, sJ))
A("s_cbranch_scc1 L_EXIT")
A.label("G_X_GO")


def xpre():
    A("v_lshlrev_b32 %s, 16, %s" % (v(r3), v(r3)))


poll(["global_load_ushort %s, %s, %s sc1" % (v(r3), v(gXr), pWJ)], [(r3, r3)], pre=xpre)
A("v_add_f32 %s, %s, %s" % (v(r3), v(r3), v(gB2)))
A("s_barrier")
sleep(P["D_X"])
stamp("G", 13)


def x_issue(a):
    A("global_load_dwordx4 %s, %s, %s sc1" % (v(a, 4), v(gXg), pWL))
    A("global_load_dwordx4 %s, %s, %s offset:256 sc1" % (v(a + 4, 4), v(gXg), pWL))


def x_post(a):
    add_ab2(a)
    g_treduce_to(a, r0)


fast_poll(x_issue, None, x_post, None, [r0], GS)
stamp("G")
A("v_add_f32 %s, %s, %s" % (v(r0), v(r0), v(r3)))
A("v_cvt_pk_bf16_f32 %s, %s, %s" % (v(r0), v(r0), v(r0)))
A("s_cmp_lg_u32 %s, 0" % sL)
A("s_cbranch_scc1 G_FINAL")
A("ds_write_b16 %s, %s" % (v(gXlds), v(r0)))
A("s_mov_b32 %s, 1" % sL)
padd(pWL, pWL, LSTR)
padd(pWJ, pWJ, LSTR)
A("s_waitcnt lgkmcnt(0)")
A("s_barrier")
A("s_waitcnt vmcnt(0)")
A("s_branch G_ENTRY")
A.label("G_FINAL")
sleep(P.get("ENDSLEEP", 0))
if "ECHO" in P:
    A("s_memrealtime s[82:83]")
    A("s_sub_u32 s80, s80, s78")
    A("s_waitcnt lgkmcnt(0)")
    A("s_add_u32 s80, s80, s82")
    A.label("ECHO_SPIN")
    A("s_memrealtime s[82:83]")
    A("s_waitcnt lgkmcnt(0)")
    A("s_cmp_lt_u32 s82, s80")
    A("s_cbranch_scc1 ECHO_SPIN")
A("global_store_short %s, %s, %s" % (v(gOut), v(r0), pOUT))
A.label("L_EXIT")
stamp_dump()
A.label("L_END")
A("s_endpgm")
for blk in OOL:
    for l in blk:
        A(l)
A("s_endpgm")

A.fix_hazards()

hdr = open("cdna_kernels/%s.s.ref" % NAME).read().split("; Override launch")[0]
out = hdr + """; @launch grid=(256,1,1) block=(768,1,1) lds=%d
.amdgcn_target "amdgcn-amd-amdhsa--gfx950"
.text
.globl %s_kernel
.p2align 8
.type %s_kernel,@function
%s_kernel:
%s
    ; pad the code section so that the 12 KB code prefetch stays inside it
    .fill ((12288 + 256 - (. - %s_kernel)) / 4), 4, 0xbf810000
.section .rodata,"a"
.p2align 6
.amdhsa_kernel %s_kernel
  .amdhsa_next_free_vgpr 168
  .amdhsa_next_free_sgpr 96
  .amdhsa_accum_offset 168
  .amdhsa_group_segment_fixed_size 0
  .amdhsa_kernarg_size 104
  .amdhsa_user_sgpr_count 2
  .amdhsa_user_sgpr_kernarg_segment_ptr 1
  .amdhsa_system_sgpr_workgroup_id_x 1
.end_amdhsa_kernel
""" % (LDS_TOTAL, NAME, NAME, NAME, A.text(), NAME, NAME)
open(sys.argv[1], "w").write(out)
print("wrote", sys.argv[1], "instructions:", sum(1 for x in A.ins if not x.label), "LDS", LDS_TOTAL)
```

```python
import sys, math, struct, os
from asmlib import Asm

NAME = "interleave_layers__sliding_block_cached__mixer_channel_mlp__decode"

P = dict(B0POS=2, W=64, NV1=8, D_A0=60, NSL=6, D_O=0, D_W1=10, D_W2=0, D_X=9, D_A=0, NT="nt", STAMP=0, FORCE_SAFE=0, PREF=1)
for a in sys.argv[2:]:
    k, v_ = a.split("=")
    P[k] = int(v_) if v_.lstrip("-").isdigit() else v_


def f32(x):
    return "0x%08x" % struct.unpack("<I", struct.pack("<f", x))[0]


LSTR = 0x200000
JSTR = 196608
E1, E1S, E4C = 0, 40960, 45056
E1T = 0x200000 * 2
REC = 0x1D8000
E2, E4, E4R, E2S, E4S = 65536, 131072, 188416, 192512, 193536
E3, E5 = 0x180000, 0x1C0000
SENT = 0x7F817F81
LW_Q, LW_O, LW_2, LW_1 = 0, 16384, 32768, 61440
XOP = 68608
QOP = XOP + 5 * 272
OOP = QOP + 4 * 272
X1OP = OOP + 4 * 272
HOP = X1OP + 5 * 80
ML = HOP + 448
FLG = ML + 256
ST0 = FLG + 16
NONCE = ST0 + 32
AP = (NONCE + 16 + 1023) // 1024 * 1024
LDS_TOTAL = AP + 16384
assert all(x % 16 == 0 for x in (XOP, QOP, OOP, X1OP, HOP, ML))

sWave, sJ, sS, sHi, sLo, sR1, sC1, sL, sBud = "s3", "s4", "s5", "s6", "s7", "s8", "s9", "s10", "s11"
sT0, sT1, sT2, sT3 = "s12", "s13", "s14", "s15"
pX, pK, pV, pWQ, pWO, pW1, pB1, pW2, pB2, pOUT, pDBG, pWS = (
    "s[16:17]", "s[18:19]", "s[20:21]", "s[22:23]", "s[24:25]", "s[28:29]", "s[30:31]", "s[32:33]", "s[34:35]",
    "s[36:37]", "s[38:39]", "s[40:41]")
pWL = "s[42:43]"
sFast = "s44"
sU = "s45"
mQ = ["s[50:51]", "s[52:53]", "s[54:55]", "s[56:57]"]
sPermLo, sPermHi = "s58", "s59"
sC = "s60"
pT = "s[62:63]"
pT2 = "s[64:65]"
sXcc = "s66"
sK0, sK1, sK2 = "s67", "s68", "s69"
mT = "s[70:71]"
pWJ = "s[72:73]"
pPC = "s[46:47]"
pN = "s[48:49]"

A = Asm()
NT = (" " + P["NT"]) if P["NT"] else ""
STAMP = P["STAMP"]


def v(n, cnt=1):
    return "v%d" % n if cnt == 1 else "v[%d:%d]" % (n, n + cnt - 1)


def smov64(pair, val):
    lo = int(pair[2:].split(":")[0])
    A("s_mov_b32 s%d, 0x%08x" % (lo, val & 0xFFFFFFFF))
    A("s_mov_b32 s%d, 0x%08x" % (lo + 1, val >> 32))


def exec_lines(val):
    if val == -1:
        return ["s_mov_b64 exec, -1"]
    if 0 <= val <= 64:
        return ["s_mov_b64 exec, %d" % val]
    return ["s_mov_b32 exec_lo, 0x%08x" % (val & 0xFFFFFFFF), "s_mov_b32 exec_hi, 0x%08x" % (val >> 32)]


def set_exec(val):
    for l in exec_lines(val):
        A(l)


def padd(dst, src, soff):
    d = int(dst[2:].split(":")[0]); s = int(src[2:].split(":")[0])
    A("s_add_u32 s%d, s%d, %s" % (d, s, soff))
    A("s_addc_u32 s%d, s%d, 0" % (d + 1, s + 1))


def sexpr(dst, terms, const=0, tmp=sT3):
    first = True
    for (r, m) in terms:
        t = dst if first else tmp
        if m == 1:
            if first:
                A("s_mov_b32 %s, %s" % (dst, r))
            else:
                A("s_add_u32 %s, %s, %s" % (dst, dst, r))
            first = False
            continue
        if m & (m - 1) == 0:
            A("s_lshl_b32 %s, %s, %d" % (t, r, m.bit_length() - 1))
        else:
            A("s_mul_i32 %s, %s, %d" % (t, r, m))
        if not first:
            A("s_add_u32 %s, %s, %s" % (dst, dst, t))
        first = False
    if first:
        A("s_mov_b32 %s, %d" % (dst, const))
    elif const:
        A("s_add_u32 %s, %s, %d" % (dst, dst, const))


def vexpr(dst, terms, sreg=None, const=0):
    first = True
    for (r, m) in terms:
        if first:
            if m == 1:
                A("v_mov_b32 %s, %s" % (v(dst), v(r)))
            elif m & (m - 1) == 0:
                A("v_lshlrev_b32 %s, %d, %s" % (v(dst), m.bit_length() - 1, v(r)))
            else:
                A("v_mul_u32_u24 %s, %d, %s" % (v(dst), m, v(r)))
            first = False
        else:
            assert m & (m - 1) == 0, "non power of two term must come first"
            A("v_lshl_add_u32 %s, %s, %d, %s" % (v(dst), v(r), m.bit_length() - 1, v(dst)))
    if sreg:
        A("v_add_u32 %s, %s, %s" % (v(dst), sreg, v(dst)))
    if const:
        A("v_add_u32 %s, %d, %s" % (v(dst), const, v(dst)))


DPP = " row_mask:0xf bank_mask:0xf"
X1 = "quad_perm:[1,0,3,2]" + DPP
X2 = "quad_perm:[2,3,0,1]" + DPP
HM = "row_half_mirror" + DPP
RM = "row_mirror" + DPP
_lab = [0]


def newlabel(p="L"):
    _lab[0] += 1
    return "%s_%d" % (p, _lab[0])


def sleep(n):
    while n > 0:
        k = min(n, 127)
        A("s_sleep %d" % k)
        n -= k


def g_treduce(a):
    A("v_permlane16_swap_b32 %s, %s" % (v(a), v(a + 1)))
    A("v_permlane16_swap_b32 %s, %s" % (v(a + 2), v(a + 3)))
    A("v_add_f32 %s, %s, %s" % (v(a), v(a), v(a + 1)))
    A("v_add_f32 %s, %s, %s" % (v(a + 2), v(a + 2), v(a + 3)))
    A("v_permlane32_swap_b32 %s, %s" % (v(a), v(a + 2)))
    A("v_add_f32 %s, %s, %s" % (v(a), v(a), v(a + 2)))


def g_allreduce(op, r, t):
    for sw in ("v_permlane16_swap_b32", "v_permlane32_swap_b32"):
        A("v_mov_b32 %s, %s" % (v(t), v(r)))
        A("%s %s, %s" % (sw, v(r), v(t)))
        A("%s %s, %s, %s" % (op, v(r), v(r), v(t)))


def budget_loop(top):
    A("s_sub_u32 %s, %s, 1" % (sBud, sBud))
    A("s_cbranch_scc0 %s" % top)
    A("s_mov_b32 %s, 0" % sBud)


def poll(loads, check_pairs, pre=None, nap=0):
    top, done = newlabel("POLL"), newlabel("PDONE")
    A.label(top)
    for l in loads:
        A(l)
    A("s_waitcnt vmcnt(0)")
    if pre:
        pre()
    first = True
    for (a, b) in check_pairs:
        if first:
            A("v_cmp_u_f32 vcc, %s, %s" % (v(a), v(b)))
            first = False
        else:
            A("v_cmp_u_f32 %s, %s, %s" % (mT, v(a), v(b)))
            A("s_or_b64 vcc, vcc, %s" % mT)
    A("s_cbranch_vccz %s" % done)
    sleep(nap)
    budget_loop(top)
    A.label(done)


def half(loads):
    import re
    if P.get("HALF") == 1:
        m = re.search(r"v\[(\d+):(\d+)\]", loads[1])
        for r_ in range(int(m.group(1)), int(m.group(2)) + 1):
            A("v_mov_b32 v%d, 0" % r_)
        return loads[:1]
    if P.get("HALF") == 2:
        out = []
        for l in loads:
            m = re.search(r"v\[(\d+):(\d+)\]", l)
            lo = int(m.group(1))
            A("v_mov_b32 v%d, 0" % (lo + 2)); A("v_mov_b32 v%d, 0" % (lo + 3))
            out.append(l.replace("dwordx4", "dwordx2").replace(m.group(0), "v[%d:%d]" % (lo, lo + 1)))
        return out
    return loads


def canary(load, pairs, mask, nap=0):
    set_exec(mask)
    poll([load], pairs, nap=nap)
    set_exec(-1)


def bulk(loads, mid, post, res):
    top, again, done = newlabel("BK"), newlabel("BKA"), newlabel("BKD")
    loads = half(loads)
    for l in loads:
        A(l)
    if mid:
        mid()
    A.label(top)
    A("s_waitcnt vmcnt(0)")
    post()
    A("v_cmp_u_f32 vcc, %s, %s" % (v(res[0]), v(res[-1])))
    A("s_cbranch_vccz %s" % done)
    for l in loads:
        A(l)
    budget_loop(top)
    A("s_waitcnt vmcnt(0)")
    A.label(done)


def round1(small, mask, loads, mid, post, res):
    top, done = newlabel("RD"), newlabel("RDD")
    loads = half(loads)
    A.label(top)
    set_exec(mask)
    A(small)
    set_exec(-1)
    for l in loads:
        A(l)
    A("s_waitcnt vmcnt(%d)" % len(loads))
    mid()
    A("s_waitcnt vmcnt(0)")
    post()
    A("v_cmp_u_f32 vcc, %s, %s" % (v(res[0]), v(res[-1])))
    A("s_cbranch_vccz %s" % done)
    budget_loop(top)
    A.label(done)


def pipe_poll(issue, n_small, n_bulk, mid, post, res, sets, gap):
    n = n_small + n_bulk
    k = len(sets)
    top, done = newlabel("PP"), newlabel("PPD")
    for i in range(k - 1):
        issue(sets[i])
        sleep(gap)
    A.label(top)
    for i in range(k):
        issue(sets[(i + k - 1) % k])
        if n_small:
            A("s_waitcnt vmcnt(%d)" % ((k - 1) * n + n_bulk))
            mid(sets[i])
        A("s_waitcnt vmcnt(%d)" % ((k - 1) * n))
        post(sets[i])
        A("v_cmp_u_f32 vcc, %s, %s" % (v(res[0]), v(res[-1])))
        A("s_cbranch_vccz %s" % done)
    budget_loop(top)
    A.label(done)


OOL = []


def interleave(c1, c2):
    out, i2 = [], 0
    for k, x in enumerate(c1):
        out.append(x)
        want = (k + 1) * len(c2) // max(1, len(c1) - 4)
        while i2 < min(want, len(c2)):
            out.append(c2[i2]); i2 += 1
    return out + c2[i2:]


class Cap:
    def __enter__(self):
        self.n = len(A.ins); return self

    def __exit__(self, *a):
        self.lines = [x.text for x in A.ins[self.n:]]
        del A.ins[self.n:]


def fast_poll_full(issue, mid, post, fin, res, a):
    top, again, done = newlabel("FP"), newlabel("FPR"), newlabel("FPD")
    A.label(top)
    issue(a)
    A("s_waitcnt vmcnt(0)")
    with Cap() as c2:
        post(a)
    if mid:
        with Cap() as c1:
            mid(a)
        for l in interleave(c1.lines, c2.lines):
            A(l)
    else:
        for l in c2.lines:
            A(l)
    if fin:
        fin(a)
    A("v_cmp_u_f32 vcc, %s, %s" % (v(res[0]), v(res[-1])))
    A("s_cbranch_vccnz %s" % again)
    A.label(done)
    OOL.append([again + ":", "s_sub_u32 %s, %s, 1" % (sBud, sBud), "s_cbranch_scc0 %s" % top,
                "s_mov_b32 %s, 0" % sBud, "s_branch %s" % done])


def fast_poll(issue, mid, post, fin, res, a):
    if not P.get("MPOLL", 1):
        return fast_poll_full(issue, mid, post, fin, res, a)
    with Cap() as ci:
        issue(a)
    loads = [l for l in ci.lines if l.startswith("global_load")]
    small = len(loads) == 3
    chk, again, done = newlabel("MPC"), newlabel("MPR"), newlabel("MPD")
    if small:
        n = 4 if "dwordx4" in loads[0] else 2
        for e in range(n):
            A("v_mov_b32 %s, 0" % v(a + 8 + e))
    for l in ci.lines:
        A(l)
    A.label(chk)
    A("s_waitcnt vmcnt(0)")
    t = a + 20
    A("v_add_f32 %s, %s, %s" % (v(t), v(a), v(a + 1)))
    A("v_add_f32 %s, %s, %s" % (v(t + 1), v(a + 2), v(a + 3)))
    A("v_add_f32 %s, %s, %s" % (v(t + 2), v(a + 4), v(a + 5)))
    A("v_add_f32 %s, %s, %s" % (v(t + 3), v(a + 6), v(a + 7)))
    if small:
        A("v_add_f32 %s, %s, %s" % (v(t), v(t), v(a + 8)))
        A("v_add_f32 %s, %s, %s" % (v(t + 1), v(t + 1), v(a + 9)))
        if n == 4:
            A("v_add_f32 %s, %s, %s" % (v(t + 2), v(t + 2), v(a + 10)))
            A("v_add_f32 %s, %s, %s" % (v(t + 3), v(t + 3), v(a + 11)))
    A("v_add_f32 %s, %s, %s" % (v(t), v(t), v(t + 1)))
    A("v_add_f32 %s, %s, %s" % (v(t + 2), v(t + 2), v(t + 3)))
    A("v_cmp_u_f32 vcc, %s, %s" % (v(t), v(t + 2)))
    A("s_cbranch_vccnz %s" % again)
    A.label(done)
    with Cap() as c2:
        post(a)
    if mid:
        with Cap() as c1:
            mid(a)
        for l in interleave(c1.lines, c2.lines):
            A(l)
    else:
        for l in c2.lines:
            A(l)
    if fin:
        fin(a)
    blk = [again + ":"]
    if small:
        em = [l for l in ci.lines if l.startswith("s_mov") and "-1" not in l]
        blk += em + ["s_and_b64 exec, exec, vcc", loads[0]]
    blk += ["s_mov_b64 exec, vcc"] + loads[-2:] + ["s_mov_b64 exec, -1",
            "s_sub_u32 %s, %s, 1" % (sBud, sBud), "s_cbranch_scc0 %s" % chk,
            "s_mov_b32 %s, 0" % sBud, "s_waitcnt vmcnt(0)", "s_branch %s" % done]
    OOL.append(blk)


def store_intra(insn):
    ls, le = newlabel("SAFE"), newlabel("SEND")
    A("s_cmp_eq_u32 %s, 0" % sFast)
    A("s_cbranch_scc1 %s" % ls)
    for i in insn:
        A(i)
    A.label(le)
    OOL.append([ls + ":"] + [i + (" sc1" if i.startswith("global_store") else "") for i in insn] + ["s_branch %s" % le])


_st = {"G": 0, "S": 0}


def stamp(kind, idx=None):
    if idx is None:
        n = _st[kind]; _st[kind] += 1
    else:
        n = idx
    if "ECHO" in P and kind == "G" and P["ECHO"] % 100 == n:
        lab = newlabel("ECHO")
        A("s_cmp_lg_u32 %s, %d" % (sL, P["ECHO"] // 100))
        A("s_cbranch_scc1 %s" % lab)
        A("s_waitcnt lgkmcnt(0)")
        A("s_memrealtime s[80:81]")
        A("s_waitcnt lgkmcnt(0)")
        A.label(lab)
    if not STAMP:
        return
    if STAMP == 2 and not (kind == "G" and n in (2, 6)):
        return
    if STAMP == 4:
        return
    if STAMP == 3:
        A("s_lshl_b32 s76, %s, 4" % sL)
        A("s_add_u32 m0, s76, %d" % n)
        A("s_nop 0")
        A("v_writelane_b32 v15, %s, m0" % sBud)
        return
    A("s_waitcnt lgkmcnt(0)")
    A("s_memrealtime s[74:75]")
    A("s_lshl_b32 s76, %s, 4" % sL)
    A("s_add_u32 m0, s76, %d" % n)
    A("s_waitcnt lgkmcnt(0)")
    A("v_writelane_b32 v15, s74, m0")


def cyc(k):
    if STAMP == 4:
        A("s_memtime s[%d:%d]" % (80 + 2 * k, 81 + 2 * k))


def cyc_dump(n):
    if STAMP == 4:
        A("s_waitcnt lgkmcnt(0)")
        for k in range(n):
            A("v_writelane_b32 v15, s%d, %d" % (80 + 2 * k, 32 + k))


def stamp_init():
    if STAMP:
        A("v_mov_b32 v15, 0")
        A("v_writelane_b32 v15, s78, 15")


def stamp_dump():
    if not STAMP:
        return
    A("s_mul_i32 s76, s2, 12")
    A("s_add_u32 s76, s76, %s" % sWave)
    A("s_lshl_b32 s76, s76, 8")
    A("s_add_u32 s76, s76, 0x800000")
    A("v_lshlrev_b32 v13, 2, v0")
    A("v_add_u32 v13, s76, v13")
    A("global_store_dword v13, v15, %s" % pWS)


def if_layer0():
    lab = newlabel("NOTL0")
    A("s_cmp_lg_u32 %s, 0" % sL)
    A("s_cbranch_scc1 %s" % lab)
    return lab


def ssync(k):
    top = newlabel("SSY")
    A("v_mov_b32 v5, %d" % (FLG + 4 + 4 * k))
    A("v_mov_b32 v6, 1")
    set_exec(1)
    A("ds_add_u32 v5, v6")
    set_exec(-1)
    A.label(top)
    A("ds_read_b32 v6, v5")
    A("s_waitcnt lgkmcnt(0)")
    A("v_readfirstlane_b32 %s, v6" % sT0)
    A("s_cmp_eq_u32 %s, 4" % sT0)
    done = newlabel("SSD")
    A("s_cbranch_scc1 %s" % done)
    budget_loop(top)
    A.label(done)


MFMA = "v_mfma_f32_16x16x32_bf16"
A("s_getpc_b64 %s" % pPC)
A("s_cmp_ge_u32 s2, 256")
A("s_cbranch_scc1 L_END")
if STAMP or "ECHO" in P:
    A("s_memrealtime s[78:79]")
A("s_load_dwordx16 s[16:31], s[0:1], 0")
A("s_load_dwordx8 s[32:39], s[0:1], 64")
A("s_load_dwordx2 s[40:41], s[0:1], 96")
if P["PREF"]:
    A("v_lshlrev_b32 v3, 4, v0")
    A("global_load_dwordx4 v[140:143], v3, %s offset:-4" % pPC)
A("v_lshrrev_b32 v1, 6, v0")
A("v_and_b32 v0, 63, v0")
A("v_readfirstlane_b32 %s, v1" % sWave)
A("s_and_b32 %s, s2, 7" % sJ)
A("s_lshr_b32 %s, s2, 3" % sS)
A("s_lshr_b32 %s, s2, 6" % sHi)
A("s_and_b32 %s, %s, 7" % (sLo, sS))
A("s_lshr_b32 %s, s2, 4" % sR1)
A("s_and_b32 %s, %s, 1" % (sC1, sS))
A("s_mov_b32 %s, 0" % sL)
A("s_mov_b32 %s, 400000" % sBud)
A("v_and_b32 v1, 15, v0")
A("v_lshrrev_b32 v2, 4, v0")
A("v_lshlrev_b32 v3, 4, v0")
A("s_mov_b32 %s, %s" % (sU, sWave))
A("s_sub_u32 %s, %s, 4" % (sWave, sWave))
A("s_cbranch_scc0 L_G")

WQ, WO, W1R, W2R, XR, DR, SS = 16, 32, 48, 56, 84, 112, 120
(sXa, sXb, sOrd, sX1a, sX1b, sHrd, sE1w, sE1sw, sAg, sAst, sQw, sCq0, sCq1, sCrd, sMlrd, sE2w, sE3w, sE4w, sE4sw, sE4rw, sE5w,
 sTr, sClr, sTr1) = range(144, 168)
SN = 8
sCsP = 139
sDma = 138
X0 = 132
ga, gb, gc = SS, SS + 4, SS + 8
STM = 0x0018001400120011
A("s_add_u32 %s, %s, 8" % (sWave, sU))
A("v_mov_b32 v4, %d" % FLG)
A("v_mov_b32 v6, 0")
A("v_mov_b32 v7, 0")
A("ds_write_b64 v4, v[6:7]")
A("ds_write_b64 v4, v[6:7] offset:8")
for i in range(4):
    A("v_mov_b32 %s, 0x%08x" % (v(SN + i), SENT))
A("s_and_b32 %s, %s, 1" % (sK0, sU))
A("s_lshr_b32 %s, %s, 1" % (sK1, sU))
sexpr(sT0, [(sS, 5120), (sU, 1280)], 32768)
A("v_add_u32 v7, %s, v3" % sT0)
sexpr(sT0, [("s2", 1280), (sK0, LSTR), (sK1, 640)], E3)
A("v_add_u32 v12, %s, v3" % sT0)
A("s_mul_i32 %s, %s, %d" % (sT0, sJ, JSTR))
A("v_lshrrev_b32 v13, 3, v0")
A("v_and_b32 v14, 7, v0")
vexpr(SS, [(13, 8192), (14, 16)])
sexpr(sT1, [(sHi, 128 * 8192), (sU, 32 * 8192), (sJ, 1024), (sLo, 128)])
sexpr(sT2, [(sU, 1024)])
A("v_add_u32 %s, %s, v3" % (v(SS + 1), sT2))
A("s_waitcnt lgkmcnt(0)")
padd(pWJ, pWS, sT0)
padd(pT, pWQ, sT1)
A("v_mov_b32 v4, 0")
A("s_or_b32 %s, s2, %s" % (sT0, sU))
A("s_cbranch_scc1 S_NONONCE")
A("s_memrealtime %s" % pN)
A("s_waitcnt lgkmcnt(0)")
A("s_or_b32 s48, s48, 1")
A("v_mov_b32 %s, s49" % v(SS + 3))
A("v_mov_b32 %s, s48" % v(SS + 2))
set_exec(1)
A("global_store_dwordx2 v4, %s, %s sc1" % (v(SS + 2, 2), pDBG))
set_exec(-1)
A.label("S_NONONCE")
def nonce_fetch():
    A("s_cmp_lg_u32 %s, 3" % sU)
    A("s_cbranch_scc1 S_NP_SKIP")
    A("v_mov_b32 v4, 0")
    sleep(P.get("D_N", 0))
    A.label("S_NP")
    A("global_load_dwordx2 v[6:7], v4, %s sc1" % pDBG)
    A("s_waitcnt vmcnt(0)")
    A("v_cmp_eq_u32 vcc, 0, v6")
    A("s_cbranch_vccz S_NP_DONE")
    A("s_sleep %d" % P.get("NSL", 2))
    budget_loop("S_NP")
    A.label("S_NP_DONE")
    A("v_mov_b32 v5, %d" % NONCE)
    A("ds_write_b64 v5, v[6:7]")
    A("s_waitcnt lgkmcnt(0)")
    if P.get("NLATE"):
        stamp("S", 10)
    A.label("S_NP_SKIP")


if not P.get("NLATE"):
    A("v_mov_b32 %s, v7" % v(SS + 4))
    nonce_fetch()
    A("v_mov_b32 v7, %s" % v(SS + 4))
A("global_load_dwordx4 %s, %s, %s%s" % (v(X0, 4), v(SS + 1), pX, NT))
A("s_lshl_b32 %s, %s, 12" % (sT1, sU))
for i in range(4):
    A("s_add_u32 m0, %s, %d" % (sT1, LW_Q + 1024 * i))
    A("global_load_lds_dwordx4 %s, %s%s" % (v(SS), pT, NT))
    if i < 3:
        padd(pT, pT, 8 * 8192)
if P.get("NOCLR"):
    set_exec(1)
A("global_store_dwordx4 v7, %s, %s sc1" % (v(SN, 4), pWJ))
set_exec(1 if P.get("NOCLR") else 0xFFFF)
A("global_store_dwordx4 v7, %s, %s offset:1024 sc1" % (v(SN, 4), pWJ))
set_exec(1 if P.get("NOCLR") else 0xFFFFFFFFFF)
A("global_store_dwordx4 v12, %s, %s sc1" % (v(SN, 4), pWS))
set_exec(-1)
A("s_barrier")
stamp_init()
stamp("S", 9)
if P.get("NLATE"):
    nonce_fetch()
A("s_getreg_b32 %s, hwreg(HW_REG_XCC_ID)" % sXcc)
A("s_and_b32 %s, %s, 7" % (sXcc, sXcc))
A("s_mov_b32 s42, s40")
A("s_mov_b32 s43, s41")
A("s_mov_b32 %s, 0" % sFast)
sexpr(sT0, [(sS, 6144), (sU, 1536)])
A("v_add_u32 %s, %s, v3" % (v(sClr), sT0))
A("v_mov_b32 v12, 0x3f803f80")
vexpr(13, [(0, 4)], None, XOP + 4 * 272)
A("ds_write_b32 v13, v12")
vexpr(13, [(1, 4)], None, X1OP + 4 * 80)
A("ds_write_b32 v13, v12")
A("v_lshrrev_b32 v12, 2, v1")
A("v_min_u32 v13, 4, v1")
A("v_and_b32 v14, 3, v1")
vexpr(sXa, [(12, 272), (2, 16)], None, XOP)
sexpr(sT0, [(sU, 64)], XOP)
vexpr(sXb, [(13, 272), (2, 16)], sT0)
vexpr(sOrd, [(14 if P.get("WIDE", 0) else 12, 272), (2, 16)], None, OOP)
vexpr(sX1a, [(12, 80), (2, 16)], None, X1OP)
vexpr(sX1b, [(13, 80), (2, 16)], None, X1OP)
vexpr(sHrd, [(2, 16)], None, HOP)
sexpr(sT0, [(sHi, 2048), (sLo, 256), (sU, 64)], E1)
vexpr(sE1w, [(2, 8192), (1, 4)], sT0)
vexpr(SS + 3, [(2, 128)])
A("v_lshlrev_b32 %s, 2, v12" % v(SS + 4))
A("v_sub_u32 %s, %s, %s" % (v(SS + 3), v(SS + 3), v(SS + 4)))
sexpr(sT0, [(sLo, 512), (sHi, 32), (sU, 8)], E1S + 4)
A("v_add_u32 %s, %s, %s" % (v(sE1sw), sT0, v(SS + 3)))
sexpr(sT0, [(sR1, 8)], E4S + 4)
A("v_add_u32 %s, %s, %s" % (v(sE4sw), sT0, v(SS + 3)))
sexpr(sT0, [(sR1, 64)], E4R)
vexpr(sE4rw, [(14, 1024), (2, 16)], sT0)
A("v_and_b32 %s, 31, v0" % v(SS + 3))
A("v_lshrrev_b32 %s, 5, v0" % v(SS + 4))
sexpr(sT0, [(sHi, 8192), (sU, 512)], E1)
vexpr(sAg, [(SS + 4, 4096), (SS + 3, 16)], sT0)
sexpr(sT0, [(sLo, 512), (sHi, 128)], E1S)
vexpr(sAst, [(1, 8)], sT0)
sexpr(sT0, [(sU, 272)], QOP)
vexpr(sQw, [(SS + 3, 8), (SS + 4, 4)], sT0)
A("v_bfe_u32 %s, v0, 4, 1" % v(SS + 5))
A("v_bfe_u32 %s, v0, 2, 2" % v(SS + 6))
A("v_and_b32 %s, 3, v0" % v(SS + 7))
sexpr(sT0, [(sU, 16)], AP)
vexpr(sCrd, [(SS + 4, 8192), (SS + 5, 1024), (SS + 6, 256), (SS + 7, 64)], sT0)
sexpr(sT0, [(sU, 64)], ML)
vexpr(sMlrd, [(SS + 4, 32)], sT0)
sexpr(sT0, [(sU, 32 * 512), (sS, 512)], E2)
vexpr(sE2w, [(0, 8)], sT0)
sexpr(sC, [(sU, 256), (sS, 8)], E2S)
if P.get("E3L", 1):
    sexpr(sT0, [(sLo, 32768), (sK1, 16384), (sJ, 256), (sHi, 64), (sK0, 8192)], E3)
    vexpr(sE3w, [(2, 2048), (1, 4)], sT0)
else:
    sexpr(sT0, [(sLo, 32768), (sK1, 16384), (sJ, 2048), (sHi, 512), (sK0, 256)], E3)
    vexpr(sE3w, [(0, 4)], sT0)
sexpr(sT0, [(sR1, 896), (sC1, 448), (sU, 128)], E4)
vexpr(sE4w, [(2, 16 * 896), (1, 4)], sT0)
sexpr(sT0, [("s2", 256), (sU, 64)], E5)
if P.get("WIDE", 0):
    vexpr(sE5w, [(2, 16)], sT0)
else:
    vexpr(sE5w, [(1, 4)], sT0)
A("v_lshl_add_u32 %s, v2, 3, v12" % v(SS + 3))
sexpr(sT0, [(sU, 32)])
vexpr(sTr, [(SS + 3, 128), (14, 8)], sT0)
sexpr(sT0, [(sU, 64)])
vexpr(sTr1, [(SS + 3, 224), (14, 8)], sT0)
stamp("S", 11)
A("s_waitcnt vmcnt(0)")
stamp("S", 12)
sexpr(sT0, [(sU, 272)], XOP)
vexpr(4, [(1, 16)], sT0)
A("s_lshl_b32 %s, %s, 4" % (sT0, sHi))
A("s_mov_b32 %s, 0xffff" % sT2)
A("s_mov_b32 %s, 0" % sT3)
A("s_lshl_b64 exec, s[14:15], %s" % sT0)
A("ds_write_b128 v4, %s" % v(X0, 4))
set_exec(-1)
for i in range(4):
    A("v_lshlrev_b32 %s, 16, %s" % (v(SS + 2 * i), v(X0 + i)))
    A("v_and_b32 %s, 0xffff0000, %s" % (v(SS + 2 * i + 1), v(X0 + i)))
A("v_add_f32 v4, %s, %s" % (v(SS), v(SS + 1)))
A("v_mul_f32 v5, %s, %s" % (v(SS), v(SS)))
A("v_fmac_f32 v5, %s, %s" % (v(SS + 1), v(SS + 1)))
for i in range(2, 8):
    A("v_add_f32 v4, v4, %s" % v(SS + i))
    A("v_fmac_f32 v5, %s, %s" % (v(SS + i), v(SS + i)))
for m in (X1, X2, HM, RM):
    A("v_add_f32_dpp v4, v4, v4 %s" % m)
    A("v_add_f32_dpp v5, v5, v5 %s" % m)
g_allreduce("v_add_f32", 4, 6)
g_allreduce("v_add_f32", 5, 6)
A("v_mul_f32 v4, %s, v4" % f32(1 / 512))
A("v_mul_f32 v5, %s, v5" % f32(1 / 512))
A("v_fma_f32 v5, -v4, v4, v5")
A("v_max_f32 v5, 0, v5")
A("v_add_f32 v5, %s, v5" % f32(1e-5))
A("v_rsq_f32 v5, v5")
sexpr(sT0, [(sU, 8)], ST0)
A("v_mov_b32 v6, %s" % sT0)
A("ds_write_b64 v6, v[4:5]")
A("s_waitcnt lgkmcnt(0)")
ssync(0)
stamp("S", 0)
for t in range(4):
    A("ds_read_b128 %s, %s offset:%d" % (v(XR + 4 * t, 4), v(sXa), 64 * t))
for t in range(4):
    for hh in range(2):
        A("ds_read_b64_tr_b16 %s, %s offset:%d" % (v(WQ + 4 * t + 2 * hh, 2), v(sTr), LW_Q + (32 * t + 4 * hh) * 128))
vexpr(4, [(2, 8)], None, ST0)
A("ds_read_b64 v[6:7], v4")
A("v_mov_b32 v4, %d" % NONCE)
A("ds_read_b64 v[12:13], v4")
for i in range(4):
    A("v_mov_b32 %s, 0x3f803f80" % v(XR + 16 + i))
A("s_waitcnt lgkmcnt(0)")
for t in range(4):
    A("%s %s, %s, %s, %s" % (MFMA, v(DR, 4), v(XR + 4 * t, 4), v(WQ + 4 * t, 4), "0" if t == 0 else v(DR, 4)))
    A("%s %s, %s, %s, %s" % (MFMA, v(DR + 4, 4), v(XR + 16, 4), v(WQ + 4 * t, 4), "0" if t == 0 else v(DR + 4, 4)))
A("v_fma_f32 %s, -v6, %s, %s" % (v(DR), v(DR + 4), v(DR)))
A("v_mul_f32 %s, %s, v7" % (v(DR), v(DR)))
A("v_mov_b32 %s, %s" % (v(sCsP), v(DR + 4)))
A("v_mov_b32 %s, v12" % v(DR + 1))
sexpr(sT0, [(sJ, 65536), (sHi, 4096), (sLo, 512), (sU, 128)], E1T)
vexpr(4, [(2, 16384), (1, 8)], sT0)
stamp("S", 1)
A("global_store_dwordx2 v4, %s, %s sc1" % (v(DR, 2), pWS))
A("v_readfirstlane_b32 s48, v12")
A("v_readfirstlane_b32 s49, v13")
A("s_cmp_lg_u32 %s, 1" % sU)
A("s_cbranch_scc1 S_NOREC")
RS = P.get("RS", 16)
sexpr(sT0, [(sJ, 32 * RS), (sS, RS)], REC)
A("v_mov_b32 v4, %s" % sT0)
A("v_mov_b32 v14, %s" % sXcc)
set_exec(1)
A("global_store_dwordx3 v4, v[12:14], %s sc1" % pWS)
set_exec(-1)
A.label("S_NOREC")


W2BLK = r'''sexpr(sT0, [(sJ, 224 * 1024), (sLo, 128), (sU, 7 * 8192)])
padd(pT, pW2, sT0)
sexpr(sT1, [(sU, 7 * 1024)], LW_2)
for k in range(7):
    A("s_add_u32 m0, %s, %d" % (sT1, 1024 * k))
    A("global_load_lds_dwordx4 %s, %s%s" % (v(sDma), pT, NT))
    if k < 6:
        padd(pT, pT, 8192)
'''


def wt_slice(base):
    A("global_store_dwordx4 %s, %s, %s sc1" % (v(sClr), v(SN, 4), base))
    A("s_mov_b32 exec_hi, 0")
    A("global_store_dwordx4 %s, %s, %s offset:1024 sc1" % (v(sClr), v(SN, 4), base))
    A("s_mov_b64 exec, -1")


def half_treduce(r):
    A("v_permlane32_swap_b32 %s, %s" % (v(r), v(r + 2)))
    A("v_permlane32_swap_b32 %s, %s" % (v(r + 1), v(r + 3)))
    A("v_add_f32 %s, %s, %s" % (v(r), v(r), v(r + 2)))
    A("v_add_f32 %s, %s, %s" % (v(r + 1), v(r + 1), v(r + 3)))


AG = ["global_load_dwordx4 %s, %s, %s sc1" % (v(ga, 4), v(sAg), pWJ),
      "global_load_dwordx4 %s, %s, %s offset:2048 sc1" % (v(gb, 4), v(sAg), pWJ)]
AGC = [(ga + e, gb + e) for e in range(4)]
sexpr(sT0, [(sJ, 65536), (sHi, 16384), (sU, 1024)], E1T + 4096)
A("v_add_u32 v4, %s, v3" % sT0)
A("v_add_u32 v5, 8192, v4")
sexpr(sT0, [(sU, 64 * RS)], REC)
vexpr(6, [(0, RS)], sT0)
sleep(P.get("D_A0", 20))
TQ = XR
A.label("S_AG0")
A("global_load_dwordx4 %s, v4, %s offset:-4096 sc1" % (v(TQ, 4), pWS))
A("global_load_dwordx4 %s, v4, %s sc1" % (v(TQ + 4, 4), pWS))
A("global_load_dwordx4 %s, v5, %s offset:-4096 sc1" % (v(TQ + 8, 4), pWS))
A("global_load_dwordx4 %s, v5, %s sc1" % (v(TQ + 12, 4), pWS))
A("s_waitcnt vmcnt(0)")
for i in range(8):
    A("v_xor_b32 %s, s48, %s" % (v(TQ + 2 * i + 1), v(TQ + 2 * i + 1)))
A("v_or3_b32 v7, %s, %s, %s" % (v(TQ + 1), v(TQ + 3), v(TQ + 5)))
A("v_or3_b32 v7, v7, %s, %s" % (v(TQ + 7), v(TQ + 9)))
A("v_or3_b32 v7, v7, %s, %s" % (v(TQ + 11), v(TQ + 13)))
A("v_or_b32 v7, v7, %s" % v(TQ + 15))
A("v_cmp_ne_u32 vcc, 0, v7")
A("s_cbranch_vccz S_AG0_DONE")
sleep(P.get("NAPQ", 8))
budget_loop("S_AG0")
A.label("S_AG0_DONE")
A("global_load_dwordx3 v[12:14], v6, %s sc1" % pWS)
A("v_mov_b32 v4, %d" % (FLG + 12))
A("v_mov_b32 v5, 1")
A("ds_write_b32 v4, v5")
stamp("S", 2)
for c in range(2):
    A("v_add_f32 %s, %s, %s" % (v(TQ + 2 * c), v(TQ + 2 * c), v(TQ + 4 + 2 * c)))
    A("v_add_f32 %s, %s, %s" % (v(TQ + 8 + 2 * c), v(TQ + 8 + 2 * c), v(TQ + 12 + 2 * c)))
    A("v_add_f32 %s, %s, %s" % (v(TQ + 2 * c), v(TQ + 2 * c), v(TQ + 8 + 2 * c)))
A("v_cvt_pk_bf16_f32 %s, %s, %s" % (v(ga), v(TQ), v(TQ + 2)))
sexpr(sT0, [(sU, 272)], QOP)
vexpr(4, [(0, 4)], sT0)
A("ds_write_b32 v4, %s" % v(ga))
A("s_waitcnt lgkmcnt(0)")
A("s_barrier")
A("v_lshrrev_b32 v4, 3, v0")
A("v_and_b32 v5, 7, v0")
vexpr(sDma, [(4, 1024), (5, 16)])
sexpr(sT0, [(sJ, 512 * 1024), (sHi, 128 * 1024), (sU, 32 * 1024), (sLo, 128)])
padd(pT, pWO, sT0)
sexpr(sT1, [(sU, 4096)], LW_O)
for k in range(4):
    A("s_add_u32 m0, %s, %d" % (sT1, 1024 * k))
    A("global_load_lds_dwordx4 %s, %s%s" % (v(sDma), pT, NT))
    if k < 3:
        padd(pT, pT, 8192)
sexpr(sT0, [(sR1, 32 * 3584), (sJ, 448), (sC1, 224)])
padd(pT, pW1, sT0)
for k in range(2):
    A("s_lshl_b32 %s, %s, 1" % (sT1, sU))
    if k:
        A("s_add_u32 %s, %s, 1" % (sT1, sT1))
        A("s_min_u32 %s, %s, 6" % (sT1, sT1))
    A("s_lshl_b32 %s, %s, 6" % (sT0, sT1))
    A("v_add_u32 v4, %s, v0" % sT0)
    A("v_mul_u32_u24 v5, 4682, v4")
    A("v_lshrrev_b32 v5, 16, v5")
    A("v_mul_u32_u24 v7, 14, v5")
    A("v_sub_u32 v4, v4, v7")
    A("v_mul_u32_u24 v5, 3584, v5")
    A("v_lshl_add_u32 v4, v4, 4, v5")
    A("s_lshl_b32 %s, %s, 10" % (sT0, sT1))
    A("s_add_u32 m0, %s, %d" % (sT0, LW_1))
    A("global_load_lds_dwordx4 v4, %s%s" % (pT, NT))
for n in range(448):
    assert (n * 4682) >> 16 == n // 14
if P.get("W2E", 1):
    exec(W2BLK)
A("s_waitcnt vmcnt(%d)" % (13 if P.get("W2E", 1) else 6))
A("s_branch S_RP_CHK")
A.label("S_RP")
A("global_load_dwordx3 v[12:14], v6, %s sc1" % pWS)
A("s_waitcnt vmcnt(0)")
A.label("S_RP_CHK")
A("v_cmp_ne_u64 vcc, %s, v[12:13]" % pN)
A("s_cbranch_vccz S_RP_DONE")
A("s_sleep %d" % P.get("PSL", 8))
budget_loop("S_RP")
A("v_mov_b32 v14, -1")
A.label("S_RP_DONE")
A("s_lshr_b32 %s, %s, 1" % (sT0, sJ))
A("s_cmp_lg_u32 %s, %s" % (sT0, sU))
A("s_cbranch_scc1 S_REC_SKIP")
A("v_cmp_ne_u32 vcc, %s, v14" % sXcc)
A("s_bitcmp1_b32 %s, 0" % sJ)
A("s_cselect_b32 %s, vcc_hi, vcc_lo" % sT0)
A("s_cmp_eq_u32 %s, 0" % sT0)
A("s_cselect_b32 %s, 1, 0" % sT0)
if P["FORCE_SAFE"]:
    A("s_mov_b32 %s, 0" % sT0)
A("v_mov_b32 v5, %d" % FLG)
A("v_mov_b32 v7, %s" % sT0)
A("ds_write_b32 v5, v7")
A.label("S_REC_SKIP")
stamp("S", 14)
if P.get("PTOUCH", 1):
    sexpr(sT0, [(sS, 5120), (sU, 1280)], 32768)
    A("v_add_u32 v7, %s, v3" % sT0)
    A("global_load_dwordx4 v[140:143], v7, %s sc1" % pWJ)
    set_exec(0xFFFF)
    A("global_load_dwordx4 v[140:143], v7, %s offset:1024 sc1" % pWJ)
    set_exec(-1)
A("s_waitcnt lgkmcnt(0)")

TRBLK = r'''lab = if_layer0()
for t in range(7):
    for hh in range(2):
        A("ds_read_b64_tr_b16 %s, %s offset:%d" % (v(W2R + 4 * t + 2 * hh, 2), v(sTr), LW_2 + (32 * t + 4 * hh) * 128))
A("s_waitcnt lgkmcnt(0)")
A.label(lab)
'''
A.label("S_LOOP")
A("s_barrier")
stamp("S", 3)
cm = XR
ca = XR + 8
A("v_mov_b32 v5, %d" % FLG)
A("ds_read_b32 v6, v5")
A("ds_read_b128 %s, %s" % (v(cm, 4), v(sMlrd)))
A("ds_read_b128 %s, %s offset:16" % (v(cm + 4, 4), v(sMlrd)))
for k in range(4):
    A("ds_read_b128 %s, %s offset:%d" % (v(ca + 4 * k, 4), v(sCrd), 2048 * k))
cM, cL, cT, cAd = SS, SS + 1, SS + 2, SS + 3
A("v_mov_b32 %s, %s" % (v(cAd), sC))
A("s_waitcnt lgkmcnt(4)")
A("v_readfirstlane_b32 %s, v6" % sFast)
A("v_max3_f32 %s, %s, %s, %s" % (v(cM), v(cm), v(cm + 2), v(cm + 4)))
A("v_max_f32 %s, %s, %s" % (v(cM), v(cM), v(cm + 6)))
A("v_mov_b32 %s, %s" % (v(cT), v(cM)))
A("v_permlane32_swap_b32 %s, %s" % (v(cM), v(cT)))
A("v_max_f32 %s, %s, %s" % (v(cM), v(cM), v(cT)))
for k in range(4):
    A("v_sub_f32 %s, %s, %s" % (v(cm + 2 * k), v(cm + 2 * k), v(cM)))
for k in range(4):
    A("v_exp_f32 %s, %s" % (v(cm + 2 * k), v(cm + 2 * k)))
A("s_waitcnt lgkmcnt(0)")
for e in range(4):
    A("v_mul_f32 %s, %s, %s" % (v(DR + e), v(cm), v(ca + e)))
A("v_mul_f32 %s, %s, %s" % (v(cL), v(cm), v(cm + 1)))
for k in range(1, 4):
    for e in range(4):
        A("v_fmac_f32 %s, %s, %s" % (v(DR + e), v(cm + 2 * k), v(ca + 4 * k + e)))
    A("v_fmac_f32 %s, %s, %s" % (v(cL), v(cm + 2 * k), v(cm + 2 * k + 1)))
A("v_mov_b32 %s, %s" % (v(cT), v(cL)))
A("v_permlane32_swap_b32 %s, %s" % (v(DR), v(DR + 2)))
A("v_permlane32_swap_b32 %s, %s" % (v(DR + 1), v(DR + 3)))
A("v_permlane32_swap_b32 %s, %s" % (v(cL), v(cT)))
A("v_add_f32 %s, %s, %s" % (v(DR), v(DR), v(DR + 2)))
A("v_add_f32 %s, %s, %s" % (v(DR + 1), v(DR + 1), v(DR + 3)))
A("v_add_f32 %s, %s, %s" % (v(cL), v(cL), v(cT)))
store_intra(["global_store_dwordx2 %s, %s, %s" % (v(sE2w), v(DR, 2), pWJ),
             "s_mov_b64 exec, 1",
             "global_store_dwordx2 %s, %s, %s" % (v(cAd), v(cM, 2), pWJ),
             "s_mov_b64 exec, -1"])
if P.get("SIGI", 1):
    A("s_barrier")
stamp("S", 4)
lab = if_layer0()
A("v_add_u32 %s, %d, %s" % (v(gc), 4 * 8192, v(sE1w)))
padd(pT, pWJ, LSTR)
store_intra(exec_lines(0xFFFF) +
            ["global_store_dword %s, %s, %s" % (v(gc), v(sCsP), pWJ),
             "s_mov_b64 exec, -1",
             ] + ([] if P.get("CLEAN", 0) & 1 else [
             "global_store_dwordx4 %s, %s, %s" % (v(sClr), v(SN, 4), pT),
             "s_mov_b32 exec_hi, 0",
             "global_store_dwordx4 %s, %s, %s offset:1024" % (v(sClr), v(SN, 4), pT),
             "s_mov_b64 exec, -1"]))
if P.get("CLEAN", 0) & 1:
    wt_slice(pT)
if not P.get("W2LATE", 0) and not P.get("W2E", 1):
    exec(W2BLK)
    A("s_waitcnt vmcnt(7)")
else:
    A("s_waitcnt vmcnt(0)")
A.label(lab)
A("s_barrier")
stamp("S", 5)
for t in range(4):
    A("ds_read_b128 %s, %s offset:%d" % (v(XR + 4 * t, 4), v(sOrd), 64 * t))
lab = if_layer0()
for t in range(4):
    for hh in range(2):
        A("ds_read_b64_tr_b16 %s, %s offset:%d" % (v(WO + 4 * t + 2 * hh, 2), v(sTr), LW_O + (32 * t + 4 * hh) * 128))
A("s_waitcnt lgkmcnt(0)")
A.label(lab)
for t in range(4):
    A("s_waitcnt lgkmcnt(%d)" % (3 - t))
    ab = (v(WO + 4 * t, 4), v(XR + 4 * t, 4)) if P.get("WIDE", 0) else (v(XR + 4 * t, 4), v(WO + 4 * t, 4))
    A("%s %s, %s, %s, %s" % (MFMA, v(DR, 4), ab[0], ab[1], "0" if t == 0 else v(DR, 4)))
if P.get("WIDE", 0):
    set_exec(0x000F000F000F000F)
    A("global_store_dwordx4 %s, %s, %s sc1" % (v(sE3w), v(DR, 4), pWL))
    set_exec(-1)
else:
    A("global_store_dword %s, %s, %s sc1" % (v(sE3w), v(DR), pWL))
if P.get("SIG", 1):
    A("s_barrier")
lab = if_layer0()
for tl in range(2):
    for hh in range(2):
        A("ds_read_b64_tr_b16 %s, %s offset:%d" % (v(W1R + 4 * tl + 2 * hh, 2), v(sTr1), LW_1 + 4 * hh * 224 + 32 * tl))
for i in range(4):
    A("v_mov_b32 %s, 0x3f803f80" % v(XR + i))
A("v_add_u32 %s, %d, %s" % (v(gc + 1), (E4C - E4) & 0xFFFFFFFF, v(sE4w)))
A("s_waitcnt lgkmcnt(0)")
A("%s %s, %s, %s, 0" % (MFMA, v(DR + 4, 4), v(XR, 4), v(W1R, 4)))
A("%s %s, %s, %s, 0" % (MFMA, v(XR + 4, 4), v(XR, 4), v(W1R + 4, 4)))
A("s_cmp_eq_u32 %s, 3" % sU)
A("s_cselect_b32 %s, 0, 0xffff" % sT0)
store_intra(exec_lines(0xFFFF) +
            ["global_store_dword %s, %s, %s" % (v(gc + 1), v(DR + 4), pWJ),
             "s_mov_b32 exec_lo, %s" % sT0,
             "global_store_dword %s, %s, %s offset:64" % (v(gc + 1), v(XR + 4), pWJ),
             "s_mov_b64 exec, -1"])
A("s_sub_u32 %s, 4, %s" % (sT0, sHi))
A("s_lshl_b32 %s, %s, 13" % (sT0, sT0))
A("v_add_u32 %s, %s, %s" % (v(gc), sT0, v(sAg)))
poll(["global_load_dwordx4 %s, %s, %s sc1" % (v(ga, 4), v(gc), pWJ),
      "global_load_dwordx4 %s, %s, %s offset:2048 sc1" % (v(gb, 4), v(gc), pWJ)], AGC, nap=4)
for e in range(4):
    A("v_add_f32 %s, %s, %s" % (v(ga + e), v(ga + e), v(gb + e)))
half_treduce(ga)
A("v_mov_b32 %s, %s" % (v(sCq0), v(ga)))
A("v_mov_b32 %s, %s" % (v(sCq1), v(ga + 1)))
if P.get("W2LATE", 0):
    exec(W2BLK)
A.label(lab)
A("s_barrier")
stamp("S", 6)
A("ds_read_b128 %s, %s" % (v(XR, 4), v(sX1a)))
A("s_cmp_eq_u32 %s, 3" % sU)
A("s_cbranch_scc1 S_W1_W3")
A("s_waitcnt lgkmcnt(0)")
A("%s %s, %s, %s, 0" % (MFMA, v(DR, 4), v(XR, 4), v(W1R, 4)))
A("%s %s, %s, %s, 0" % (MFMA, v(DR + 4, 4), v(XR, 4), v(W1R + 4, 4)))
store_intra(["global_store_dword %s, %s, %s" % (v(sE4w), v(DR), pWJ),
             "global_store_dword %s, %s, %s offset:64" % (v(sE4w), v(DR + 4), pWJ)])
A("s_branch S_W1_DONE")
A.label("S_W1_W3")
A("ds_read_b128 %s, %s" % (v(XR + 4, 4), v(sX1b)))
A("s_waitcnt lgkmcnt(1)")
A("%s %s, %s, %s, 0" % (MFMA, v(DR, 4), v(XR, 4), v(W1R, 4)))
A("s_waitcnt lgkmcnt(0)")
A("%s %s, %s, %s, 0" % (MFMA, v(DR + 4, 4), v(XR, 4), v(XR + 4, 4)))
store_intra(["global_store_dword %s, %s, %s" % (v(sE4w), v(DR), pWJ)] + exec_lines(STM) +
            ["global_store_dword %s, %s, %s" % (v(sE4sw), v(DR + 4), pWJ)] + exec_lines(0x000F000F000F000F) +
            ["global_store_dwordx4 %s, %s, %s" % (v(sE4rw), v(XR + 4, 4), pWJ), "s_mov_b64 exec, -1"])
A.label("S_W1_DONE")
if P.get("SIGI", 1):
    A("s_barrier")
KEEP = 136
if P.get("CLEAN", 0) & 8:
    A("v_mov_b32 %s, %s" % (v(KEEP), v(DR)))
    A("v_mov_b32 %s, %s" % (v(KEEP + 1), v(DR + 4)))
if P.get("W2LATE", 0):
    A("s_waitcnt vmcnt(0)")
else:
    exec(TRBLK)
A("s_barrier")
stamp("S", 7)
if P.get("W2LATE", 0):
    exec(TRBLK)
for t in range(7):
    A("ds_read_b128 %s, %s offset:%d" % (v(XR + 4 * t, 4), v(sHrd), 64 * t))
for t in range(7):
    A("s_waitcnt lgkmcnt(%d)" % (6 - t))
    ab = (v(W2R + 4 * t, 4), v(XR + 4 * t, 4)) if P.get("WIDE", 0) else (v(XR + 4 * t, 4), v(W2R + 4 * t, 4))
    A("%s %s, %s, %s, %s" % (MFMA, v(DR, 4), ab[0], ab[1], "0" if t == 0 else v(DR, 4)))
if P.get("WIDE", 0):
    set_exec(0x0001000100010001)
    A("global_store_dwordx4 %s, %s, %s sc1" % (v(sE5w), v(DR, 4), pWL))
else:
    set_exec(0xFFFF)
    A("global_store_dword %s, %s, %s sc1" % (v(sE5w), v(DR), pWL))
set_exec(-1)
if P.get("SIG", 1):
    A("s_barrier")
stamp("S", 8)
A("s_cmp_lg_u32 %s, 0" % sL)
A("s_cbranch_scc1 %s" % ("S_FIN" if P.get("CLEAN", 0) & 4 else "L_EXIT"))
A("s_mov_b32 %s, 1" % sL)
padd(pWL, pWL, LSTR)
padd(pWJ, pWJ, LSTR)
A("s_lshl_b32 %s, %s, 6" % (sT0, sU))
A("v_add_u32 %s, %s, %s" % (v(SS), sT0, v(sXa)))
A("s_barrier")
stamp("S", 0)
for t in range(4):
    A("ds_read_b128 %s, %s offset:%d" % (v(XR + 4 * t, 4), v(sXa), 64 * t))
A("ds_read_b128 %s, %s" % (v(XR + 16, 4), v(sXb)))
A("ds_read_b128 %s, %s" % (v(XR + 20, 4), v(SS)))
for t in range(4):
    A("s_waitcnt lgkmcnt(%d)" % (5 - t))
    A("%s %s, %s, %s, %s" % (MFMA, v(DR, 4), v(XR + 4 * t, 4), v(WQ + 4 * t, 4), "0" if t == 0 else v(DR, 4)))
A("s_waitcnt lgkmcnt(0)")
A("%s %s, %s, %s, 0" % (MFMA, v(DR + 4, 4), v(XR + 20, 4), v(XR + 16, 4)))
stamp("S", 1)
store_intra(["global_store_dword %s, %s, %s" % (v(sE1w), v(DR), pWJ)] + exec_lines(STM) +
            ["global_store_dword %s, %s, %s" % (v(sE1sw), v(DR + 4), pWJ), "s_mov_b64 exec, -1"])
sleep(P["D_A"])
SSETS = [SS, XR, XR + 12][:P.get("NSETS", 2)]
q0_, q1_, q2_, q3_ = 4, 5, 6, 7


def a_issue(a):
    set_exec(0xFFFF)
    A("global_load_dwordx2 %s, %s, %s sc1" % (v(a + 8, 2), v(sAst), pWJ))
    set_exec(-1)
    A("global_load_dwordx4 %s, %s, %s sc1" % (v(a, 4), v(sAg), pWJ))
    A("global_load_dwordx4 %s, %s, %s offset:2048 sc1" % (v(a + 4, 4), v(sAg), pWJ))


def a_mid(a):
    c = a + 8
    for m in (X1, X2, HM, RM):
        A("v_add_f32_dpp %s, %s, %s %s" % (v(c), v(c), v(c), m))
        A("v_add_f32_dpp %s, %s, %s %s" % (v(c + 1), v(c + 1), v(c + 1), m))
    A("v_mul_f32 %s, %s, %s" % (v(c), f32(1 / 512), v(c)))
    A("v_mul_f32 %s, %s, %s" % (v(c + 1), f32(1 / 512), v(c + 1)))
    A("v_fma_f32 %s, -%s, %s, %s" % (v(c + 1), v(c), v(c), v(c + 1)))
    A("v_fmac_f32 %s, 0, %s" % (v(c), v(c + 1)))
    A("v_max_f32 %s, 0, %s" % (v(c + 1), v(c + 1)))
    A("v_add_f32 %s, %s, %s" % (v(c + 1), f32(1e-5), v(c + 1)))
    A("v_rsq_f32 %s, %s" % (v(c + 1), v(c + 1)))
    A("v_mul_f32 %s, %s, %s" % (v(c), v(c), v(c + 1)))
    A("v_readfirstlane_b32 %s, %s" % (sT0, v(c + 1)))
    A("v_readfirstlane_b32 %s, %s" % (sT1, v(c)))
    A("v_mul_f32 %s, %s, %s" % (v(q2_), sT1, v(sCq0)))
    A("v_mul_f32 %s, %s, %s" % (v(q3_), sT1, v(sCq1)))


def a_post(a):
    for e in range(4):
        A("v_add_f32 %s, %s, %s" % (v(a + e), v(a + e), v(a + 4 + e)))
    half_treduce(a)


def a_fin(a):
    A("v_fma_f32 %s, %s, %s, -%s" % (v(q0_), v(a), sT0, v(q2_)))
    A("v_fma_f32 %s, %s, %s, -%s" % (v(q1_), v(a + 1), sT0, v(q3_)))


fast_poll(a_issue, a_mid, a_post, a_fin, [q0_, q1_], SS)
stamp("S", 2)
A("v_cvt_pk_bf16_f32 %s, %s, %s" % (v(q0_), v(q0_), v(q1_)))
A("ds_write_b32 %s, %s" % (v(sQw), v(q0_)))
A("s_waitcnt lgkmcnt(0)")
A("s_barrier")
A("s_waitcnt vmcnt(0)")
if P.get("CLEAN", 0) & 2:
    A("s_sub_u32 s62, s72, %d" % LSTR)
    A("s_subb_u32 s63, s73, 0")
    wt_slice(pT)
A("s_branch S_LOOP")
if P.get("CLEAN", 0) & 4:
    A.label("S_FIN")
    sexpr(sT0, [(sS, 4096), (sU, 1024)])
    A("v_add_u32 v4, %s, v3" % sT0)
    A("global_store_dwordx4 v4, %s, %s sc1" % (v(SN, 4), pWJ))
    if P.get("CLEAN", 0) & 8:
        A("global_store_dword %s, %s, %s sc1" % (v(sE4w), v(KEEP), pWJ))
        A("s_cmp_eq_u32 %s, 3" % sU)
        A("s_cbranch_scc1 L_EXIT")
        A("global_store_dword %s, %s, %s offset:64 sc1" % (v(sE4w), v(KEEP + 1), pWJ))
    A("s_branch L_EXIT")

KR, VR, VF, QR, SR = 16, 48, 80, 112, 128
GS = 48
(gOg, gOml, gOlds, gW1g, gW1x, gW1lds, gW2g, gW2s, gW2lds, gXg, gXr, gXlds, gB1, gB2, gCs1, gQrd, gApw, gMlw, gOut, gDma) = range(148, 168)
_gn = [1 if P["PREF"] else 0]


def gload(t):
    if P.get("NODMA") and "lds" in t:
        t = "global_load_dword v140, v3, %s" % pB1 if False else "s_nop 0"
        A(t)
        return
    if _gn[0] >= P["W"]:
        if P.get("ADAPT"):
            lab = newlabel("THR")
            A("ds_read_b32 v130, v129")
            A("s_waitcnt lgkmcnt(0)")
            A("v_readfirstlane_b32 %s, v130" % sT1)
            A("s_cmp_lg_u32 %s, 0" % sT1)
            A("s_cbranch_scc1 %s" % lab)
            A("s_waitcnt vmcnt(%d)" % (P["W"] - 1))
            A.label(lab)
        else:
            A("s_waitcnt vmcnt(%d)" % (P["W"] - 1))
    A(t)
    _gn[0] += 1


GADDR = r'''A("v_lshrrev_b32 v11, 3, v0")        # l>>3
A("v_and_b32 v12, 7, v0")            # l&7
vexpr(gDma, [(11, 1024), (12, 16)])
# bias elements
A("s_lshr_b32 %s, %s, 1" % (sK0, sWave))     # b = w>>1
A("s_and_b32 %s, %s, 1" % (sK1, sWave))      # w&1
A("s_min_u32 %s, %s, 6" % (sK2, sWave))      # w' for the W2 gather
vexpr(13, [(1, 4), (2, 1)])                  # X col local = 4 l16 + g
sexpr(sT0, [(sHi, 256), (sK1, 128)])
vexpr(14, [(13, 2)], sT0)                    # col*2 within a 512-col bf16 row
gload("global_load_ushort %s, v14, %s%s" % (v(gB2), pB2, NT))
vexpr(10, [(12, 4), (2, 1)])                 # 4 (l&7) + g
sexpr(sT0, [(sK2, 64)])
vexpr(10, [(10, 2)], sT0)                    # f*2 (local)
sexpr(sT0, [(sJ, 448)])
A("v_add_u32 v6, %s, v10" % sT0)
gload("global_load_ushort %s, v6, %s%s" % (v(gB1), pB1, NT))
N_AFTER_K, N_AFTER_V = 8, 0

for q in range(4):
    smov64(mQ[q], (0x000F000F000F000F << (4 * q)))
A("s_mov_b32 %s, 0x05040100" % sPermLo)
A("s_mov_b32 %s, 0x07060302" % sPermHi)
A("s_mov_b32 %s, %s" % (sC, f32(128 ** -0.5 * math.log2(math.e))))
A("s_mov_b32 s42, s40")
A("s_mov_b32 s43, s41")
A("s_mul_i32 %s, %s, %d" % (sT0, sJ, JSTR))
padd(pWJ, pWS, sT0)
A("v_add_u32 %s, %d, v10" % (v(gW2lds), HOP))
# O gather: E2 + ((ro*4+b)*8 + 2g)*512 + (16 (w&1) + l16)*16
sexpr(sT0, [(sHi, 16384), (sK0, 4096), (sK1, 256)], E2)
vexpr(gOg, [(2, 1024), (1, 16)], sT0)
sexpr(sT0, [(sHi, 256), (sK0, 64)], E2S)
vexpr(gOml, [(2, 16)], sT0)
# O lds: U = 16 h + l16 (h = w&1); lp = 2U + (g>>1); ups = lp&31 = (2 l16 + (g>>1)) ; e = 2 h + (g&1)
#   ups = 16 a + 4 g' + qq ; d = 32 g' + 8 e + 4 a + qq
A("v_lshrrev_b32 v4, 1, v2")
A("v_lshl_add_u32 v4, v1, 1, v4")            # ups
A("v_bfe_u32 v5, v4, 4, 1")                  # a
A("v_bfe_u32 v6, v4, 2, 2")                  # g'
A("v_and_b32 v7, 3, v4")                     # qq
A("v_and_b32 v4, 1, v2")                     # g&1
sexpr(sT0, [(sK0, 272), (sK1, 32)], OOP)
vexpr(gOlds, [(6, 64), (4, 16), (5, 8), (7, 2)], sT0)
# W1 gather: E3 + r1*16384 + (2 pp)*512 + (4 w + (l&3))*16 ; pp = l>>2
A("v_lshrrev_b32 v4, 2, v0")
A("v_and_b32 v5, 3, v0")
if P.get("E3L", 1):
    sexpr(sT0, [(sR1, 16384), (sWave, 2048)], E3)
    A("v_add_u32 %s, %s, v3" % (v(gW1g), sT0))
else:
    sexpr(sT0, [(sR1, 16384), (sWave, 64)], E3)
    vexpr(gW1g, [(4, 1024), (5, 16)], sT0)
# rho = 16 tile + 4 (l&3) + g ; tile = w>>2, b = w&3
A("s_lshr_b32 %s, %s, 2" % (sT1, sWave))
A("s_and_b32 %s, %s, 3" % (sT2, sWave))
vexpr(6, [(5, 8), (2, 2)])
sexpr(sT0, [(sT2, 80), (sT1, 32)], X1OP)
A("v_add_u32 %s, %s, v6" % (v(gW1lds), sT0))
sexpr(sT0, [(sT2, 272), (sT1, 32)], XOP)
A("s_and_b32 %s, %s, 3" % (sT1, sR1))
A("s_lshl_b32 %s, %s, 6" % (sT1, sT1))
A("s_add_u32 %s, %s, %s" % (sT0, sT0, sT1))
A("v_add_u32 %s, %s, v6" % (v(gW1x), sT0))
# W2 gather: E4 + (b*16 + 2 pp8)*896 + (8 w' + (l&7))*16 ; pp8 = l>>3
sexpr(sT0, [(sHi, 16 * 896), (sK2, 128)], E4)
vexpr(gW2g, [(11, 2 * 896), (12, 16)], sT0)
# W2 stats: E4S + (c1*4 + b)*128 + l16*8  (16 entries, row all-reduce)
sexpr(sT0, [(sHi, 128)], E4S)
vexpr(gW2s, [(1, 8)], sT0)
# X gather: E5 + ((b*8 + 2 rq + (w&1))*8 + 2g)*256 + l16*16
sexpr(sT0, [(sK0, 16384), (sHi, 4096), (sK1, 2048)], E5)
vexpr(gXg, [(2, 512), (1, 16)], sT0)
sexpr(sT0, [(sK0, 1024)], E4R)
A("v_add_u32 %s, %s, v14" % (v(gXr), sT0))
sexpr(sT0, [(sK0, 1024)])
A("v_add_u32 %s, %s, v14" % (v(gOut), sT0))
sexpr(sT0, [(sK0, 272), (sK1, 128)], XOP)
vexpr(gXlds, [(13, 2)], sT0)
vexpr(gQrd, [(8, 272), (2, 16)], None, QOP)
sexpr(sT0, [(sWave, 2048)], AP)
A("v_add_u32 %s, %s, v3" % (v(gApw), sT0))
sexpr(sT0, [(sWave, 8)], ML)
vexpr(gMlw, [(8, 64)], sT0)
'''
NV1 = 8
A.label("L_G")
ISTR, WSTR = ((65536, 8192) if P.get("KMODE", 5) == 5 else (8192, 65536))
sexpr(sT0, [(sHi, 8 << 21), (sJ, 1 << 21), (sLo, 1024), (sWave, WSTR)], 6144 * 256)
A("v_and_b32 v8, 3, v1")
A("v_lshrrev_b32 v9, 2, v1")
vexpr(10, [(8, ISTR), (9, 256), (2, 16)])
A("v_mov_b32 v129, %d" % (FLG + 12))
A("s_waitcnt lgkmcnt(0)")
stamp_init()
stamp("G", 10)
padd(pT, pK, sT0)
padd(pT2, pV, sT0)
for tau in range(2):
    for t in range(4):
        if 4 * tau + t == P["B0POS"]:
            A("s_barrier")
        gload("global_load_dwordx4 %s, v10, %s offset:%d%s" % (v(KR + 4 * (4 * tau + t), 4), pT, 64 * t, NT))
    if tau == 0:
        padd(pT, pT, 4 * ISTR)
        A("v_mov_b32 %s, v10" % v(SR))
        exec(GADDR)
        A("v_mov_b32 v10, %s" % v(SR))
stamp("G", 11)
NV1 = 8
for jj in range(8):
    gload("global_load_dwordx4 %s, v3, %s%s" % (v(VR + 4 * jj, 4), pT2, NT))
    if jj < 7:
        padd(pT2, pT2, ISTR)
for q in range(4):
    A("v_cndmask_b32 v%d, 0, -1, %s" % (144 + q, mQ[q]))
stamp("G", 9)
if P.get("KVWAIT"):
    A("s_waitcnt vmcnt(0)")
    stamp("G", 14)
if P.get("QLATE"):
    A("s_barrier")
if P.get("PRIO", 0):
    A("s_cmp_ge_u32 %s, 4" % sWave)
    A("s_cbranch_scc1 G_ENTRY")
    A("s_setprio %d" % P["PRIO"])
A.label("G_ENTRY")
A("s_barrier")
cyc(0)
stamp("G")
if NV1 < 8:
    lab = if_layer0()
    for jj in range(NV1, 8):
        A("global_load_dwordx4 %s, v3, %s offset:%d%s" % (v(VR + 4 * jj, 4), pT2, (jj - 4) * 1024, NT))
    A.label(lab)
for t in range(4):
    A("ds_read_b128 %s, %s offset:%d" % (v(QR + 4 * t, 4), v(gQrd), 64 * t))
A("s_waitcnt vmcnt(%d)" % N_AFTER_K)
stamp("G")
S0, S1 = SR, SR + 4
if STAMP == 4:
    A("s_waitcnt lgkmcnt(0)")
    cyc(1)
for t in range(4):
    A("s_waitcnt lgkmcnt(%d)" % ((3 - t) if STAMP != 4 else 15))
    for tau in range(2):
        d = v(SR + 4 * tau, 4)
        A("%s %s, %s, %s, %s" % (MFMA, d, v(KR + 4 * (4 * tau + t), 4), v(QR + 4 * t, 4), "0" if t == 0 else d))
aM, aT, aMc = 136, 137, 138
PR = 140
PM = QR
A("v_max3_f32 %s, %s, %s, %s" % (v(aM), v(S0), v(S0 + 1), v(S0 + 2)))
A("v_max3_f32 %s, %s, %s, %s" % (v(aT), v(S1), v(S1 + 1), v(S1 + 2)))
A("v_max3_f32 %s, %s, %s, %s" % (v(aM), v(aM), v(S0 + 3), v(S1 + 3)))
A("v_max_f32 %s, %s, %s" % (v(aM), v(aM), v(aT)))
cyc(2)
g_allreduce("v_max_f32", aM, aT)
A("v_mul_f32 %s, %s, %s" % (v(aMc), sC, v(aM)))
for q in range(4):
    A("s_mov_b64 exec, %s" % mQ[q])
    A("v_fma_f32 %s, %s, %s, -%s" % (v(PR), v(SR + 2 * q), sC, v(aMc)))
    A("v_fma_f32 %s, %s, %s, -%s" % (v(PR + 1), v(SR + 2 * q + 1), sC, v(aMc)))
A("s_mov_b64 exec, -1")
A("v_exp_f32 %s, %s" % (v(PR), v(PR)))
A("v_exp_f32 %s, %s" % (v(PR + 1), v(PR + 1)))
A("v_cvt_pk_bf16_f32 %s, %s, %s" % (v(PR), v(PR), v(PR + 1)))
cyc(3)
lab0, lab1 = newlabel("VT"), newlabel("VTD")
A("s_cmp_eq_u32 %s, 0" % sL)
A("s_cbranch_scc1 %s" % lab0)
A.label(lab1)
with Cap() as vt:
    A("s_waitcnt vmcnt(%d)" % N_AFTER_V)
    stamp("G")
    for i in (0, 4, 1, 5, 2, 6, 3, 7):
        for p in range(4):
            A("v_perm_b32 %s, %s, %s, %s" % (v(VF + 4 * i + p), v(VR + 4 * (2 * p + 1) + (i >> 1)), v(VR + 4 * (2 * p) + (i >> 1)),
                                             sPermHi if (i & 1) else sPermLo))
OOL.append([lab0 + ":"] + vt.lines + ["v_mov_b32 v%d, 0x3f803f80" % (GS + 28 + i) for i in range(4)] + ["s_branch %s" % lab1])
D0 = 4
DL = 128
MK = 144
ONES = GS + 28


def pm(q, p):
    rot = (4 * (q - p)) % 16
    if rot == 0:
        A("v_and_b32 %s, %s, %s" % (v(PM + 4 * q + p), v(PR), v(MK + q)))
    else:
        A("v_and_b32_dpp %s, %s, %s row_ror:%d%s" % (v(PM + 4 * q + p), v(PR), v(MK + q), rot, DPP))


for p in range(4):
    pm(0, p)
pm(1, 0); pm(1, 1)
A("%s %s, %s, %s, 0" % (MFMA, v(DL, 4), v(ONES, 4), v(PM, 4)))
for q in range(4):
    for a in range(2):
        d = v(D0 + 4 * a, 4)
        A("%s %s, %s, %s, %s" % (MFMA, d, v(VF + 4 * (4 * a + q), 4), v(PM + 4 * q, 4), "0" if q == 0 else d))
        nxt = 4 * q + 2 * a + 6
        for k in (nxt, nxt + 1):
            if k < 16:
                pm(k >> 2, k & 3)
A("v_mov_b32 %s, %s" % (v(aMc + 1), v(DL)))
cyc(4)
A("s_mov_b64 exec, %s" % mQ[0])
A("ds_write_b64 %s, %s" % (v(gMlw), v(aMc, 2)))
A("s_mov_b64 exec, -1")
A("ds_write_b128 %s, %s" % (v(gApw), v(D0, 4)))
A("ds_write_b128 %s, %s offset:1024" % (v(gApw), v(D0 + 4, 4)))
A("s_waitcnt lgkmcnt(0)")
cyc(5)
A("s_barrier")
cyc(6)
cyc_dump(7)

a0, b0, c0 = GS, GS + 4, GS + 8
r0, r1_, r2, r3 = GS + 12, GS + 13, GS + 14, GS + 15


def add_ab():
    for e in range(4):
        A("v_add_f32 %s, %s, %s" % (v(a0 + e), v(a0 + e), v(b0 + e)))


BC = "row_newbcast:0" + DPP
NS_ = P.get("NSETS", 2)
GSETS = [GS, GS + 16, 112][:NS_]
GAP = P.get("GAP", 3)


def add_ab2(a):
    for e in range(4):
        A("v_add_f32 %s, %s, %s" % (v(a + e), v(a + e), v(a + 4 + e)))


def g_treduce_to(a, out):
    A("v_permlane16_swap_b32 %s, %s" % (v(a), v(a + 1)))
    A("v_permlane16_swap_b32 %s, %s" % (v(a + 2), v(a + 3)))
    A("v_add_f32 %s, %s, %s" % (v(a), v(a), v(a + 1)))
    A("v_add_f32 %s, %s, %s" % (v(a + 2), v(a + 2), v(a + 3)))
    A("v_permlane32_swap_b32 %s, %s" % (v(a), v(a + 2)))
    A("v_add_f32 %s, %s, %s" % (v(out), v(a), v(a + 2)))


A("ds_read_u16 %s, %s" % (v(r3), v(gW1x)))
A("s_barrier")
sleep(P.get("DI_O", 0))
stamp("G", 7)


def o_issue(a):
    set_exec(0x0001000100010001)
    A("global_load_dwordx4 %s, %s, %s sc1" % (v(a + 8, 4), v(gOml), pWJ))
    set_exec(-1)
    A("global_load_dwordx4 %s, %s, %s sc1" % (v(a, 4), v(gOg), pWJ))
    A("global_load_dwordx4 %s, %s, %s offset:512 sc1" % (v(a + 4, 4), v(gOg), pWJ))


def o_all(a):
    c = a + 8
    A("v_max_f32 %s, %s, %s" % (v(r0), v(c), v(c + 2)))
    for e in (0, 2, 1, 3):
        A("v_mov_b32_dpp %s, %s %s" % (v(c + e), v(c + e), BC))
    A("v_mov_b32_dpp %s, %s %s" % (v(r0), v(r0), BC))
    g_allreduce("v_max_f32", r0, r1_)
    A("v_sub_f32 %s, %s, %s" % (v(c), v(c), v(r0)))
    A("v_sub_f32 %s, %s, %s" % (v(c + 2), v(c + 2), v(r0)))
    A("v_exp_f32 %s, %s" % (v(c), v(c)))
    A("v_exp_f32 %s, %s" % (v(c + 2), v(c + 2)))
    with Cap() as c1:
        A("v_mul_f32 %s, %s, %s" % (v(r1_), v(c), v(c + 1)))
        A("v_fmac_f32 %s, %s, %s" % (v(r1_), v(c + 2), v(c + 3)))
        g_allreduce("v_add_f32", r1_, r2)
        A("v_rcp_f32 %s, %s" % (v(r1_), v(r1_)))
    with Cap() as c2:
        for e in range(4):
            A("v_mul_f32 %s, %s, %s" % (v(a + e), v(c), v(a + e)))
        for e in range(4):
            A("v_fmac_f32 %s, %s, %s" % (v(a + e), v(c + 2), v(a + 4 + e)))
        g_treduce_to(a, r0)
    for l in interleave(c2.lines, c1.lines):
        A(l)
    A("v_mul_f32 %s, %s, %s" % (v(r0), v(r0), v(r1_)))


fast_poll(o_issue, None, o_all, None, [r0], GS)
stamp("G")
A("v_cvt_pk_bf16_f32 %s, %s, %s" % (v(r0), v(r0), v(r0)))
A("ds_write_b16 %s, %s" % (v(gOlds), v(r0)))
A("s_waitcnt lgkmcnt(0)")
A("s_barrier")

A("v_lshlrev_b32 %s, 16, %s" % (v(r3), v(r3)))
A("s_barrier")
sleep(P["D_W1"])
stamp("G", 8)


def w1_issue(a):
    A("global_load_dwordx4 %s, %s, %s sc1" % (v(a, 4), v(gW1g), pWL))
    A("global_load_dwordx4 %s, %s, %s offset:%d sc1" % (v(a + 4, 4), v(gW1g), pWL, 1024 if P.get("E3L", 1) else 512))


def w1_post(a):
    add_ab2(a)
    g_treduce_to(a, r0)
    A("v_add_f32_dpp %s, %s, %s row_ror:4%s" % (v(r0), v(r0), v(r0), DPP))
    A("v_add_f32_dpp %s, %s, %s row_ror:8%s" % (v(r0), v(r0), v(r0), DPP))


fast_poll(w1_issue, None, w1_post, None, [r0], GS)
stamp("G")
A("v_add_f32 %s, %s, %s" % (v(r0), v(r0), v(r3)))
A("v_cvt_pk_bf16_f32 %s, %s, %s" % (v(r0), v(r0), v(r0)))
A("ds_write_b16 %s, %s" % (v(gW1lds), v(r0)))
A("s_waitcnt lgkmcnt(0)")
A("s_barrier")

lab = if_layer0()
A("s_mul_i32 %s, %s, %d" % (sT0, sHi, 16 * 896))
A("s_add_u32 %s, %s, %d" % (sT0, sT0, E4 - E4C))
A("v_subrev_u32 %s, %s, %s" % (v(r3), sT0, v(gW2g)))
poll(["global_load_dwordx4 %s, %s, %s sc1" % (v(a0, 4), v(r3), pWJ),
      "global_load_dwordx4 %s, %s, %s offset:896 sc1" % (v(b0, 4), v(r3), pWJ)],
     [(a0 + e, b0 + e) for e in range(4)])
add_ab()
g_treduce(a0)
A("v_add_f32_dpp %s, %s, %s row_ror:8%s" % (v(gCs1), v(a0), v(a0), DPP))
A("v_lshlrev_b32 %s, 16, %s" % (v(gB1), v(gB1)))
A("v_lshlrev_b32 %s, 16, %s" % (v(gB2), v(gB2)))
A.label(lab)
k0 = -2 * math.log2(math.e) * math.sqrt(2 / math.pi)
A("v_mov_b32 %s, %s" % (v(r2), f32(k0)))
A("s_barrier")
A("s_cmp_eq_u32 %s, 7" % sWave)
A("s_cbranch_scc1 G_W2_SKIP")
sleep(P.get("DI_W2", 0))
stamp("G", 12)


def w2_issue(a):
    set_exec(0xFFFF)
    A("global_load_dwordx2 %s, %s, %s sc1" % (v(a + 8, 2), v(gW2s), pWJ))
    set_exec(-1)
    A("global_load_dwordx4 %s, %s, %s sc1" % (v(a, 4), v(gW2g), pWJ))
    A("global_load_dwordx4 %s, %s, %s offset:896 sc1" % (v(a + 4, 4), v(gW2g), pWJ))


def w2_mid(a):
    c = a + 8
    for m in (X1, X2, HM, RM):
        A("v_add_f32_dpp %s, %s, %s %s" % (v(c), v(c), v(c), m))
        A("v_add_f32_dpp %s, %s, %s %s" % (v(c + 1), v(c + 1), v(c + 1), m))
    A("v_mul_f32 %s, %s, %s" % (v(c), f32(1 / 512), v(c)))
    A("v_mul_f32 %s, %s, %s" % (v(c + 1), f32(1 / 512), v(c + 1)))
    A("v_fma_f32 %s, -%s, %s, %s" % (v(c + 1), v(c), v(c), v(c + 1)))
    A("v_fmac_f32 %s, 0, %s" % (v(c), v(c + 1)))
    A("v_max_f32 %s, 0, %s" % (v(c + 1), v(c + 1)))
    A("v_add_f32 %s, %s, %s" % (v(c + 2), f32(1e-5), v(c + 1)))
    A("v_rcp_f32 %s, %s" % (v(c + 3), v(c + 2)))
    A("v_mul_f32 %s, %s, %s" % (v(c + 3), v(c + 1), v(c + 3)))
    A("v_add_f32 %s, %s, %s" % (v(c + 3), f32(1e-5), v(c + 3)))
    A("v_mul_f32 %s, %s, %s" % (v(c + 2), v(c + 2), v(c + 3)))
    A("v_rsq_f32 %s, %s" % (v(c + 2), v(c + 2)))
    A("v_mul_f32 %s, %s, %s" % (v(c), v(c), v(c + 2)))
    A("v_readfirstlane_b32 %s, %s" % (sT0, v(c + 2)))
    A("v_readfirstlane_b32 %s, %s" % (sT1, v(c)))
    A("v_fma_f32 %s, -%s, %s, %s" % (v(r3), sT1, v(gCs1), v(gB1)))


def w2_post(a):
    add_ab2(a)
    g_treduce_to(a, r0)
    A("v_add_f32_dpp %s, %s, %s row_ror:8%s" % (v(r0), v(r0), v(r0), DPP))


fast_poll(w2_issue, w2_mid, w2_post, lambda a: A("v_fma_f32 %s, %s, %s, %s" % (v(r0), v(r0), sT0, v(r3))), [r0], GS)
stamp("G")
A("v_mul_f32 %s, %s, %s" % (v(r1_), v(r0), v(r0)))
A("v_fmac_f32 %s, %s, %s" % (v(r2), f32(k0 * 0.044715), v(r1_)))
A("v_mul_f32 %s, %s, %s" % (v(r2), v(r2), v(r0)))
A("v_exp_f32 %s, %s" % (v(r2), v(r2)))
A("v_add_f32 %s, 1.0, %s" % (v(r2), v(r2)))
A("v_rcp_f32 %s, %s" % (v(r2), v(r2)))
A("v_mul_f32 %s, %s, %s" % (v(r0), v(r0), v(r2)))
A("v_cvt_pk_bf16_f32 %s, %s, %s" % (v(r0), v(r0), v(r0)))
A("ds_write_b16 %s, %s" % (v(gW2lds), v(r0)))
A("s_waitcnt lgkmcnt(0)")
A.label("G_W2_SKIP")
A("s_barrier")

A("s_cmp_eq_u32 %s, 0" % sL)
A("s_cbranch_scc1 G_X_GO")
A("s_cmp_lg_u32 %s, 0" % sLo)
A("s_cbranch_scc1 L_EXIT")
A("s_cmp_lg_u32 %s, %s" % (sWave, sJ))
A("s_cbranch_scc1 L_EXIT")
A.label("G_X_GO")


def xpre():
    A("v_lshlrev_b32 %s, 16, %s" % (v(r3), v(r3)))


poll(["global_load_ushort %s, %s, %s sc1" % (v(r3), v(gXr), pWJ)], [(r3, r3)], pre=xpre)
A("v_add_f32 %s, %s, %s" % (v(r3), v(r3), v(gB2)))
A("s_barrier")
sleep(P["D_X"])
stamp("G", 13)


def x_issue(a):
    A("global_load_dwordx4 %s, %s, %s sc1" % (v(a, 4), v(gXg), pWL))
    A("global_load_dwordx4 %s, %s, %s offset:256 sc1" % (v(a + 4, 4), v(gXg), pWL))


def x_post(a):
    add_ab2(a)
    g_treduce_to(a, r0)


fast_poll(x_issue, None, x_post, None, [r0], GS)
stamp("G")
A("v_add_f32 %s, %s, %s" % (v(r0), v(r0), v(r3)))
A("v_cvt_pk_bf16_f32 %s, %s, %s" % (v(r0), v(r0), v(r0)))
A("s_cmp_lg_u32 %s, 0" % sL)
A("s_cbranch_scc1 G_FINAL")
A("ds_write_b16 %s, %s" % (v(gXlds), v(r0)))
A("s_mov_b32 %s, 1" % sL)
padd(pWL, pWL, LSTR)
padd(pWJ, pWJ, LSTR)
A("s_waitcnt lgkmcnt(0)")
A("s_barrier")
A("s_waitcnt vmcnt(0)")
A("s_branch G_ENTRY")
A.label("G_FINAL")
sleep(P.get("ENDSLEEP", 0))
if "ECHO" in P:
    A("s_memrealtime s[82:83]")
    A("s_sub_u32 s80, s80, s78")
    A("s_waitcnt lgkmcnt(0)")
    A("s_add_u32 s80, s80, s82")
    A.label("ECHO_SPIN")
    A("s_memrealtime s[82:83]")
    A("s_waitcnt lgkmcnt(0)")
    A("s_cmp_lt_u32 s82, s80")
    A("s_cbranch_scc1 ECHO_SPIN")
A("global_store_short %s, %s, %s" % (v(gOut), v(r0), pOUT))
A.label("L_EXIT")
stamp_dump()
A.label("L_END")
A("s_endpgm")
for blk in OOL:
    for l in blk:
        A(l)
A("s_endpgm")

A.fix_hazards()

hdr = open("cdna_kernels/%s.s.ref" % NAME).read().split("; Override launch")[0]
out = hdr + """; @launch grid=(256,1,1) block=(768,1,1) lds=%d
.amdgcn_target "amdgcn-amd-amdhsa--gfx950"
.text
.globl %s_kernel
.p2align 8
.type %s_kernel,@function
%s_kernel:
%s
    ; pad the code section so that the 12 KB code prefetch stays inside it
    .fill ((12288 + 256 - (. - %s_kernel)) / 4), 4, 0xbf810000
.section .rodata,"a"
.p2align 6
.amdhsa_kernel %s_kernel
  .amdhsa_next_free_vgpr 168
  .amdhsa_next_free_sgpr 96
  .amdhsa_accum_offset 168
  .amdhsa_group_segment_fixed_size 0
  .amdhsa_kernarg_size 104
  .amdhsa_user_sgpr_count 2
  .amdhsa_user_sgpr_kernarg_segment_ptr 1
  .amdhsa_system_sgpr_workgroup_id_x 1
.end_amdhsa_kernel
""" % (LDS_TOTAL, NAME, NAME, NAME, A.text(), NAME, NAME)
open(sys.argv[1], "w").write(out)
print("wrote", sys.argv[1], "instructions:", sum(1 for x in A.ins if not x.label), "LDS", LDS_TOTAL)
```

```python
import sys, math, struct, os
from asmlib import Asm

NAME = "interleave_layers__sliding_block_cached__mixer_channel_mlp__decode"

P = dict(B0POS=2, W=64, NV1=8, D_A0=60, NSL=6, D_O=0, D_W1=10, D_W2=0, D_X=9, D_A=0, NT="nt", STAMP=0, FORCE_SAFE=0, PREF=1)
for a in sys.argv[2:]:
    k, v_ = a.split("=")
    P[k] = int(v_) if v_.lstrip("-").isdigit() else v_


def f32(x):
    return "0x%08x" % struct.unpack("<I", struct.pack("<f", x))[0]


LSTR = 0x200000
JSTR = 196608
E1, E1S, E4C = 0, 40960, 45056
E1T = 0x200000 * 2
REC = 0x1D8000
E2, E4, E4R, E2S, E4S = 65536, 131072, 188416, 192512, 193536
E3, E5 = 0x180000, 0x1C0000
SENT = 0x7F817F81
LW_Q, LW_O, LW_2, LW_1 = 0, 16384, 32768, 61440
XOP = 68608
QOP = XOP + 5 * 272
OOP = QOP + 4 * 272
X1OP = OOP + 4 * 272
HOP = X1OP + 5 * 80
ML = HOP + 448
FLG = ML + 256
ST0 = FLG + 16
NONCE = ST0 + 32
AP = (NONCE + 16 + 1023) // 1024 * 1024
LDS_TOTAL = AP + 16384
assert all(x % 16 == 0 for x in (XOP, QOP, OOP, X1OP, HOP, ML))

sWave, sJ, sS, sHi, sLo, sR1, sC1, sL, sBud = "s3", "s4", "s5", "s6", "s7", "s8", "s9", "s10", "s11"
sT0, sT1, sT2, sT3 = "s12", "s13", "s14", "s15"
pX, pK, pV, pWQ, pWO, pW1, pB1, pW2, pB2, pOUT, pDBG, pWS = (
    "s[16:17]", "s[18:19]", "s[20:21]", "s[22:23]", "s[24:25]", "s[28:29]", "s[30:31]", "s[32:33]", "s[34:35]",
    "s[36:37]", "s[38:39]", "s[40:41]")
pWL = "s[42:43]"
sFast = "s44"
sU = "s45"
mQ = ["s[50:51]", "s[52:53]", "s[54:55]", "s[56:57]"]
sPermLo, sPermHi = "s58", "s59"
sC = "s60"
pT = "s[62:63]"
pT2 = "s[64:65]"
sXcc = "s66"
sK0, sK1, sK2 = "s67", "s68", "s69"
mT = "s[70:71]"
pWJ = "s[72:73]"
pPC = "s[46:47]"
pN = "s[48:49]"

A = Asm()
NT = (" " + P["NT"]) if P["NT"] else ""
STAMP = P["STAMP"]


def v(n, cnt=1):
    return "v%d" % n if cnt == 1 else "v[%d:%d]" % (n, n + cnt - 1)


def smov64(pair, val):
    lo = int(pair[2:].split(":")[0])
    A("s_mov_b32 s%d, 0x%08x" % (lo, val & 0xFFFFFFFF))
    A("s_mov_b32 s%d, 0x%08x" % (lo + 1, val >> 32))


def exec_lines(val):
    if val == -1:
        return ["s_mov_b64 exec, -1"]
    if 0 <= val <= 64:
        return ["s_mov_b64 exec, %d" % val]
    return ["s_mov_b32 exec_lo, 0x%08x" % (val & 0xFFFFFFFF), "s_mov_b32 exec_hi, 0x%08x" % (val >> 32)]


def set_exec(val):
    for l in exec_lines(val):
        A(l)


def padd(dst, src, soff):
    d = int(dst[2:].split(":")[0]); s = int(src[2:].split(":")[0])
    A("s_add_u32 s%d, s%d, %s" % (d, s, soff))
    A("s_addc_u32 s%d, s%d, 0" % (d + 1, s + 1))


def sexpr(dst, terms, const=0, tmp=sT3):
    first = True
    for (r, m) in terms:
        t = dst if first else tmp
        if m == 1:
            if first:
                A("s_mov_b32 %s, %s" % (dst, r))
            else:
                A("s_add_u32 %s, %s, %s" % (dst, dst, r))
            first = False
            continue
        if m & (m - 1) == 0:
            A("s_lshl_b32 %s, %s, %d" % (t, r, m.bit_length() - 1))
        else:
            A("s_mul_i32 %s, %s, %d" % (t, r, m))
        if not first:
            A("s_add_u32 %s, %s, %s" % (dst, dst, t))
        first = False
    if first:
        A("s_mov_b32 %s, %d" % (dst, const))
    elif const:
        A("s_add_u32 %s, %s, %d" % (dst, dst, const))


def vexpr(dst, terms, sreg=None, const=0):
    first = True
    for (r, m) in terms:
        if first:
            if m == 1:
                A("v_mov_b32 %s, %s" % (v(dst), v(r)))
            elif m & (m - 1) == 0:
                A("v_lshlrev_b32 %s, %d, %s" % (v(dst), m.bit_length() - 1, v(r)))
            else:
                A("v_mul_u32_u24 %s, %d, %s" % (v(dst), m, v(r)))
            first = False
        else:
            assert m & (m - 1) == 0, "non power of two term must come first"
            A("v_lshl_add_u32 %s, %s, %d, %s" % (v(dst), v(r), m.bit_length() - 1, v(dst)))
    if sreg:
        A("v_add_u32 %s, %s, %s" % (v(dst), sreg, v(dst)))
    if const:
        A("v_add_u32 %s, %d, %s" % (v(dst), const, v(dst)))


DPP = " row_mask:0xf bank_mask:0xf"
X1 = "quad_perm:[1,0,3,2]" + DPP
X2 = "quad_perm:[2,3,0,1]" + DPP
HM = "row_half_mirror" + DPP
RM = "row_mirror" + DPP
_lab = [0]


def newlabel(p="L"):
    _lab[0] += 1
    return "%s_%d" % (p, _lab[0])


def sleep(n):
    while n > 0:
        k = min(n, 127)
        A("s_sleep %d" % k)
        n -= k


def g_treduce(a):
    A("v_permlane16_swap_b32 %s, %s" % (v(a), v(a + 1)))
    A("v_permlane16_swap_b32 %s, %s" % (v(a + 2), v(a + 3)))
    A("v_add_f32 %s, %s, %s" % (v(a), v(a), v(a + 1)))
    A("v_add_f32 %s, %s, %s" % (v(a + 2), v(a + 2), v(a + 3)))
    A("v_permlane32_swap_b32 %s, %s" % (v(a), v(a + 2)))
    A("v_add_f32 %s, %s, %s" % (v(a), v(a), v(a + 2)))


def g_allreduce(op, r, t):
    for sw in ("v_permlane16_swap_b32", "v_permlane32_swap_b32"):
        A("v_mov_b32 %s, %s" % (v(t), v(r)))
        A("%s %s, %s" % (sw, v(r), v(t)))
        A("%s %s, %s, %s" % (op, v(r), v(r), v(t)))


def budget_loop(top):
    A("s_sub_u32 %s, %s, 1" % (sBud, sBud))
    A("s_cbranch_scc0 %s" % top)
    A("s_mov_b32 %s, 0" % sBud)


def poll(loads, check_pairs, pre=None, nap=0):
    top, done = newlabel("POLL"), newlabel("PDONE")
    A.label(top)
    for l in loads:
        A(l)
    A("s_waitcnt vmcnt(0)")
    if pre:
        pre()
    first = True
    for (a, b) in check_pairs:
        if first:
            A("v_cmp_u_f32 vcc, %s, %s" % (v(a), v(b)))
            first = False
        else:
            A("v_cmp_u_f32 %s, %s, %s" % (mT, v(a), v(b)))
            A("s_or_b64 vcc, vcc, %s" % mT)
    A("s_cbranch_vccz %s" % done)
    sleep(nap)
    budget_loop(top)
    A.label(done)


def half(loads):
    import re
    if P.get("HALF") == 1:
        m = re.search(r"v\[(\d+):(\d+)\]", loads[1])
        for r_ in range(int(m.group(1)), int(m.group(2)) + 1):
            A("v_mov_b32 v%d, 0" % r_)
        return loads[:1]
    if P.get("HALF") == 2:
        out = []
        for l in loads:
            m = re.search(r"v\[(\d+):(\d+)\]", l)
            lo = int(m.group(1))
            A("v_mov_b32 v%d, 0" % (lo + 2)); A("v_mov_b32 v%d, 0" % (lo + 3))
            out.append(l.replace("dwordx4", "dwordx2").replace(m.group(0), "v[%d:%d]" % (lo, lo + 1)))
        return out
    return loads


def canary(load, pairs, mask, nap=0):
    set_exec(mask)
    poll([load], pairs, nap=nap)
    set_exec(-1)


def bulk(loads, mid, post, res):
    top, again, done = newlabel("BK"), newlabel("BKA"), newlabel("BKD")
    loads = half(loads)
    for l in loads:
        A(l)
    if mid:
        mid()
    A.label(top)
    A("s_waitcnt vmcnt(0)")
    post()
    A("v_cmp_u_f32 vcc, %s, %s" % (v(res[0]), v(res[-1])))
    A("s_cbranch_vccz %s" % done)
    for l in loads:
        A(l)
    budget_loop(top)
    A("s_waitcnt vmcnt(0)")
    A.label(done)


def round1(small, mask, loads, mid, post, res):
    top, done = newlabel("RD"), newlabel("RDD")
    loads = half(loads)
    A.label(top)
    set_exec(mask)
    A(small)
    set_exec(-1)
    for l in loads:
        A(l)
    A("s_waitcnt vmcnt(%d)" % len(loads))
    mid()
    A("s_waitcnt vmcnt(0)")
    post()
    A("v_cmp_u_f32 vcc, %s, %s" % (v(res[0]), v(res[-1])))
    A("s_cbranch_vccz %s" % done)
    budget_loop(top)
    A.label(done)


def pipe_poll(issue, n_small, n_bulk, mid, post, res, sets, gap):
    n = n_small + n_bulk
    k = len(sets)
    top, done = newlabel("PP"), newlabel("PPD")
    for i in range(k - 1):
        issue(sets[i])
        sleep(gap)
    A.label(top)
    for i in range(k):
        issue(sets[(i + k - 1) % k])
        if n_small:
            A("s_waitcnt vmcnt(%d)" % ((k - 1) * n + n_bulk))
            mid(sets[i])
        A("s_waitcnt vmcnt(%d)" % ((k - 1) * n))
        post(sets[i])
        A("v_cmp_u_f32 vcc, %s, %s" % (v(res[0]), v(res[-1])))
        A("s_cbranch_vccz %s" % done)
    budget_loop(top)
    A.label(done)


OOL = []


def interleave(c1, c2):
    out, i2 = [], 0
    for k, x in enumerate(c1):
        out.append(x)
        want = (k + 1) * len(c2) // max(1, len(c1) - 4)
        while i2 < min(want, len(c2)):
            out.append(c2[i2]); i2 += 1
    return out + c2[i2:]


class Cap:
    def __enter__(self):
        self.n = len(A.ins); return self

    def __exit__(self, *a):
        self.lines = [x.text for x in A.ins[self.n:]]
        del A.ins[self.n:]


def fast_poll_full(issue, mid, post, fin, res, a):
    top, again, done = newlabel("FP"), newlabel("FPR"), newlabel("FPD")
    A.label(top)
    issue(a)
    A("s_waitcnt vmcnt(0)")
    with Cap() as c2:
        post(a)
    if mid:
        with Cap() as c1:
            mid(a)
        for l in interleave(c1.lines, c2.lines):
            A(l)
    else:
        for l in c2.lines:
            A(l)
    if fin:
        fin(a)
    A("v_cmp_u_f32 vcc, %s, %s" % (v(res[0]), v(res[-1])))
    A("s_cbranch_vccnz %s" % again)
    A.label(done)
    OOL.append([again + ":", "s_sub_u32 %s, %s, 1" % (sBud, sBud), "s_cbranch_scc0 %s" % top,
                "s_mov_b32 %s, 0" % sBud, "s_branch %s" % done])


def fast_poll(issue, mid, post, fin, res, a):
    if not P.get("MPOLL", 1):
        return fast_poll_full(issue, mid, post, fin, res, a)
    with Cap() as ci:
        issue(a)
    loads = [l for l in ci.lines if l.startswith("global_load")]
    small = len(loads) == 3
    chk, again, done = newlabel("MPC"), newlabel("MPR"), newlabel("MPD")
    if small:
        n = 4 if "dwordx4" in loads[0] else 2
        for e in range(n):
            A("v_mov_b32 %s, 0" % v(a + 8 + e))
    for l in ci.lines:
        A(l)
    A.label(chk)
    A("s_waitcnt vmcnt(0)")
    t = a + 20
    A("v_add_f32 %s, %s, %s" % (v(t), v(a), v(a + 1)))
    A("v_add_f32 %s, %s, %s" % (v(t + 1), v(a + 2), v(a + 3)))
    A("v_add_f32 %s, %s, %s" % (v(t + 2), v(a + 4), v(a + 5)))
    A("v_add_f32 %s, %s, %s" % (v(t + 3), v(a + 6), v(a + 7)))
    if small:
        A("v_add_f32 %s, %s, %s" % (v(t), v(t), v(a + 8)))
        A("v_add_f32 %s, %s, %s" % (v(t + 1), v(t + 1), v(a + 9)))
        if n == 4:
            A("v_add_f32 %s, %s, %s" % (v(t + 2), v(t + 2), v(a + 10)))
            A("v_add_f32 %s, %s, %s" % (v(t + 3), v(t + 3), v(a + 11)))
    A("v_add_f32 %s, %s, %s" % (v(t), v(t), v(t + 1)))
    A("v_add_f32 %s, %s, %s" % (v(t + 2), v(t + 2), v(t + 3)))
    A("v_cmp_u_f32 vcc, %s, %s" % (v(t), v(t + 2)))
    A("s_cbranch_vccnz %s" % again)
    A.label(done)
    with Cap() as c2:
        post(a)
    if mid:
        with Cap() as c1:
            mid(a)
        for l in interleave(c1.lines, c2.lines):
            A(l)
    else:
        for l in c2.lines:
            A(l)
    if fin:
        fin(a)
    blk = [again + ":"]
    if small:
        em = [l for l in ci.lines if l.startswith("s_mov") and "-1" not in l]
        blk += em + ["s_and_b64 exec, exec, vcc", loads[0]]
    blk += ["s_mov_b64 exec, vcc"] + loads[-2:] + ["s_mov_b64 exec, -1",
            "s_sub_u32 %s, %s, 1" % (sBud, sBud), "s_cbranch_scc0 %s" % chk,
            "s_mov_b32 %s, 0" % sBud, "s_waitcnt vmcnt(0)", "s_branch %s" % done]
    OOL.append(blk)


def store_intra(insn):
    ls, le = newlabel("SAFE"), newlabel("SEND")
    A("s_cmp_eq_u32 %s, 0" % sFast)
    A("s_cbranch_scc1 %s" % ls)
    for i in insn:
        A(i)
    A.label(le)
    OOL.append([ls + ":"] + [i + (" sc1" if i.startswith("global_store") else "") for i in insn] + ["s_branch %s" % le])


_st = {"G": 0, "S": 0}


def stamp(kind, idx=None):
    if idx is None:
        n = _st[kind]; _st[kind] += 1
    else:
        n = idx
    if "ECHO" in P and kind == "G" and P["ECHO"] % 100 == n:
        lab = newlabel("ECHO")
        A("s_cmp_lg_u32 %s, %d" % (sL, P["ECHO"] // 100))
        A("s_cbranch_scc1 %s" % lab)
        A("s_waitcnt lgkmcnt(0)")
        A("s_memrealtime s[80:81]")
        A("s_waitcnt lgkmcnt(0)")
        A.label(lab)
    if not STAMP:
        return
    if STAMP == 2 and not (kind == "G" and n in (2, 6)):
        return
    if STAMP == 4:
        return
    if STAMP == 3:
        A("s_lshl_b32 s76, %s, 4" % sL)
        A("s_add_u32 m0, s76, %d" % n)
        A("s_nop 0")
        A("v_writelane_b32 v15, %s, m0" % sBud)
        return
    A("s_waitcnt lgkmcnt(0)")
    A("s_memrealtime s[74:75]")
    A("s_lshl_b32 s76, %s, 4" % sL)
    A("s_add_u32 m0, s76, %d" % n)
    A("s_waitcnt lgkmcnt(0)")
    A("v_writelane_b32 v15, s74, m0")


def cyc(k):
    if STAMP == 4:
        A("s_memtime s[%d:%d]" % (80 + 2 * k, 81 + 2 * k))


def cyc_dump(n):
    if STAMP == 4:
        A("s_waitcnt lgkmcnt(0)")
        for k in range(n):
            A("v_writelane_b32 v15, s%d, %d" % (80 + 2 * k, 32 + k))


def stamp_init():
    if STAMP:
        A("v_mov_b32 v15, 0")
        A("v_writelane_b32 v15, s78, 15")


def stamp_dump():
    if not STAMP:
        return
    A("s_mul_i32 s76, s2, 12")
    A("s_add_u32 s76, s76, %s" % sWave)
    A("s_lshl_b32 s76, s76, 8")
    A("s_add_u32 s76, s76, 0x800000")
    A("v_lshlrev_b32 v13, 2, v0")
    A("v_add_u32 v13, s76, v13")
    A("global_store_dword v13, v15, %s" % pWS)


def if_layer0():
    lab = newlabel("NOTL0")
    A("s_cmp_lg_u32 %s, 0" % sL)
    A("s_cbranch_scc1 %s" % lab)
    return lab


def ssync(k):
    top = newlabel("SSY")
    A("v_mov_b32 v5, %d" % (FLG + 4 + 4 * k))
    A("v_mov_b32 v6, 1")
    set_exec(1)
    A("ds_add_u32 v5, v6")
    set_exec(-1)
    A.label(top)
    A("ds_read_b32 v6, v5")
    A("s_waitcnt lgkmcnt(0)")
    A("v_readfirstlane_b32 %s, v6" % sT0)
    A("s_cmp_eq_u32 %s, 4" % sT0)
    done = newlabel("SSD")
    A("s_cbranch_scc1 %s" % done)
    budget_loop(top)
    A.label(done)


MFMA = "v_mfma_f32_16x16x32_bf16"
A("s_getpc_b64 %s" % pPC)
A("s_cmp_ge_u32 s2, 256")
A("s_cbranch_scc1 L_END")
if STAMP or "ECHO" in P:
    A("s_memrealtime s[78:79]")
A("s_load_dwordx16 s[16:31], s[0:1], 0")
A("s_load_dwordx8 s[32:39], s[0:1], 64")
A("s_load_dwordx2 s[40:41], s[0:1], 96")
if P["PREF"]:
    A("v_lshlrev_b32 v3, 4, v0")
    A("global_load_dwordx4 v[140:143], v3, %s offset:-4" % pPC)
A("v_lshrrev_b32 v1, 6, v0")
A("v_and_b32 v0, 63, v0")
A("v_readfirstlane_b32 %s, v1" % sWave)
A("s_and_b32 %s, s2, 7" % sJ)
A("s_lshr_b32 %s, s2, 3" % sS)
A("s_lshr_b32 %s, s2, 6" % sHi)
A("s_and_b32 %s, %s, 7" % (sLo, sS))
A("s_lshr_b32 %s, s2, 4" % sR1)
A("s_and_b32 %s, %s, 1" % (sC1, sS))
A("s_mov_b32 %s, 0" % sL)
A("s_mov_b32 %s, 400000" % sBud)
A("v_and_b32 v1, 15, v0")
A("v_lshrrev_b32 v2, 4, v0")
A("v_lshlrev_b32 v3, 4, v0")
A("s_mov_b32 %s, %s" % (sU, sWave))
A("s_sub_u32 %s, %s, 4" % (sWave, sWave))
A("s_cbranch_scc0 L_G")

WQ, WO, W1R, W2R, XR, DR, SS = 16, 32, 48, 56, 84, 112, 120
(sXa, sXb, sOrd, sX1a, sX1b, sHrd, sE1w, sE1sw, sAg, sAst, sQw, sCq0, sCq1, sCrd, sMlrd, sE2w, sE3w, sE4w, sE4sw, sE4rw, sE5w,
 sTr, sClr, sTr1) = range(144, 168)
SN = 8
sCsP = 139
sDma = 138
X0 = 132
ga, gb, gc = SS, SS + 4, SS + 8
STM = 0x0018001400120011
A("s_add_u32 %s, %s, 8" % (sWave, sU))
A("v_mov_b32 v4, %d" % FLG)
A("v_mov_b32 v6, 0")
A("v_mov_b32 v7, 0")
A("ds_write_b64 v4, v[6:7]")
A("ds_write_b64 v4, v[6:7] offset:8")
for i in range(4):
    A("v_mov_b32 %s, 0x%08x" % (v(SN + i), SENT))
A("s_and_b32 %s, %s, 1" % (sK0, sU))
A("s_lshr_b32 %s, %s, 1" % (sK1, sU))
sexpr(sT0, [(sS, 5120), (sU, 1280)], 32768)
A("v_add_u32 v7, %s, v3" % sT0)
sexpr(sT0, [("s2", 1280), (sK0, LSTR), (sK1, 640)], E3)
A("v_add_u32 v12, %s, v3" % sT0)
A("s_mul_i32 %s, %s, %d" % (sT0, sJ, JSTR))
A("v_lshrrev_b32 v13, 3, v0")
A("v_and_b32 v14, 7, v0")
vexpr(SS, [(13, 8192), (14, 16)])
sexpr(sT1, [(sHi, 128 * 8192), (sU, 32 * 8192), (sJ, 1024), (sLo, 128)])
sexpr(sT2, [(sU, 1024)])
A("v_add_u32 %s, %s, v3" % (v(SS + 1), sT2))
A("s_waitcnt lgkmcnt(0)")
padd(pWJ, pWS, sT0)
padd(pT, pWQ, sT1)
A("v_mov_b32 v4, 0")
A("s_or_b32 %s, s2, %s" % (sT0, sU))
A("s_cbranch_scc1 S_NONONCE")
A("s_memrealtime %s" % pN)
A("s_waitcnt lgkmcnt(0)")
A("s_or_b32 s48, s48, 1")
A("v_mov_b32 %s, s49" % v(SS + 3))
A("v_mov_b32 %s, s48" % v(SS + 2))
set_exec(1)
A("global_store_dwordx2 v4, %s, %s sc1" % (v(SS + 2, 2), pDBG))
set_exec(-1)
A.label("S_NONONCE")
def nonce_fetch():
    A("s_cmp_lg_u32 %s, 3" % sU)
    A("s_cbranch_scc1 S_NP_SKIP")
    A("v_mov_b32 v4, 0")
    sleep(P.get("D_N", 0))
    A.label("S_NP")
    A("global_load_dwordx2 v[6:7], v4, %s sc1" % pDBG)
    A("s_waitcnt vmcnt(0)")
    A("v_cmp_eq_u32 vcc, 0, v6")
    A("s_cbranch_vccz S_NP_DONE")
    A("s_sleep %d" % P.get("NSL", 2))
    budget_loop("S_NP")
    A.label("S_NP_DONE")
    A("v_mov_b32 v5, %d" % NONCE)
    A("ds_write_b64 v5, v[6:7]")
    A("s_waitcnt lgkmcnt(0)")
    if P.get("NLATE"):
        stamp("S", 10)
    A.label("S_NP_SKIP")


if not P.get("NLATE"):
    A("v_mov_b32 %s, v7" % v(SS + 4))
    nonce_fetch()
    A("v_mov_b32 v7, %s" % v(SS + 4))
A("global_load_dwordx4 %s, %s, %s%s" % (v(X0, 4), v(SS + 1), pX, NT))
A("s_lshl_b32 %s, %s, 12" % (sT1, sU))
for i in range(4):
    A("s_add_u32 m0, %s, %d" % (sT1, LW_Q + 1024 * i))
    A("global_load_lds_dwordx4 %s, %s%s" % (v(SS), pT, NT))
    if i < 3:
        padd(pT, pT, 8 * 8192)
if P.get("NOCLR"):
    set_exec(1)
A("global_store_dwordx4 v7, %s, %s sc1" % (v(SN, 4), pWJ))
set_exec(1 if P.get("NOCLR") else 0xFFFF)
A("global_store_dwordx4 v7, %s, %s offset:1024 sc1" % (v(SN, 4), pWJ))
set_exec(1 if P.get("NOCLR") else 0xFFFFFFFFFF)
A("global_store_dwordx4 v12, %s, %s sc1" % (v(SN, 4), pWS))
set_exec(-1)
A("s_barrier")
stamp_init()
stamp("S", 9)
if P.get("NLATE"):
    nonce_fetch()
A("s_getreg_b32 %s, hwreg(HW_REG_XCC_ID)" % sXcc)
A("s_and_b32 %s, %s, 7" % (sXcc, sXcc))
A("s_mov_b32 s42, s40")
A("s_mov_b32 s43, s41")
A("s_mov_b32 %s, 0" % sFast)
sexpr(sT0, [(sS, 6144), (sU, 1536)])
A("v_add_u32 %s, %s, v3" % (v(sClr), sT0))
A("v_mov_b32 v12, 0x3f803f80")
vexpr(13, [(0, 4)], None, XOP + 4 * 272)
A("ds_write_b32 v13, v12")
vexpr(13, [(1, 4)], None, X1OP + 4 * 80)
A("ds_write_b32 v13, v12")
A("v_lshrrev_b32 v12, 2, v1")
A("v_min_u32 v13, 4, v1")
A("v_and_b32 v14, 3, v1")
vexpr(sXa, [(12, 272), (2, 16)], None, XOP)
sexpr(sT0, [(sU, 64)], XOP)
vexpr(sXb, [(13, 272), (2, 16)], sT0)
vexpr(sOrd, [(14 if P.get("WIDE", 0) else 12, 272), (2, 16)], None, OOP)
vexpr(sX1a, [(12, 80), (2, 16)], None, X1OP)
vexpr(sX1b, [(13, 80), (2, 16)], None, X1OP)
vexpr(sHrd, [(2, 16)], None, HOP)
sexpr(sT0, [(sHi, 2048), (sLo, 256), (sU, 64)], E1)
vexpr(sE1w, [(2, 8192), (1, 4)], sT0)
vexpr(SS + 3, [(2, 128)])
A("v_lshlrev_b32 %s, 2, v12" % v(SS + 4))
A("v_sub_u32 %s, %s, %s" % (v(SS + 3), v(SS + 3), v(SS + 4)))
sexpr(sT0, [(sLo, 512), (sHi, 32), (sU, 8)], E1S + 4)
A("v_add_u32 %s, %s, %s" % (v(sE1sw), sT0, v(SS + 3)))
sexpr(sT0, [(sR1, 8)], E4S + 4)
A("v_add_u32 %s, %s, %s" % (v(sE4sw), sT0, v(SS + 3)))
sexpr(sT0, [(sR1, 64)], E4R)
vexpr(sE4rw, [(14, 1024), (2, 16)], sT0)
A("v_and_b32 %s, 31, v0" % v(SS + 3))
A("v_lshrrev_b32 %s, 5, v0" % v(SS + 4))
sexpr(sT0, [(sHi, 8192), (sU, 512)], E1)
vexpr(sAg, [(SS + 4, 4096), (SS + 3, 16)], sT0)
sexpr(sT0, [(sLo, 512), (sHi, 128)], E1S)
vexpr(sAst, [(1, 8)], sT0)
sexpr(sT0, [(sU, 272)], QOP)
vexpr(sQw, [(SS + 3, 8), (SS + 4, 4)], sT0)
A("v_bfe_u32 %s, v0, 4, 1" % v(SS + 5))
A("v_bfe_u32 %s, v0, 2, 2" % v(SS + 6))
A("v_and_b32 %s, 3, v0" % v(SS + 7))
sexpr(sT0, [(sU, 16)], AP)
vexpr(sCrd, [(SS + 4, 8192), (SS + 5, 1024), (SS + 6, 256), (SS + 7, 64)], sT0)
sexpr(sT0, [(sU, 64)], ML)
vexpr(sMlrd, [(SS + 4, 32)], sT0)
sexpr(sT0, [(sU, 32 * 512), (sS, 512)], E2)
vexpr(sE2w, [(0, 8)], sT0)
sexpr(sC, [(sU, 256), (sS, 8)], E2S)
if P.get("E3L", 1):
    sexpr(sT0, [(sLo, 32768), (sK1, 16384), (sJ, 256), (sHi, 64), (sK0, 8192)], E3)
    vexpr(sE3w, [(2, 2048), (1, 4)], sT0)
else:
    sexpr(sT0, [(sLo, 32768), (sK1, 16384), (sJ, 2048), (sHi, 512), (sK0, 256)], E3)
    vexpr(sE3w, [(0, 4)], sT0)
sexpr(sT0, [(sR1, 896), (sC1, 448), (sU, 128)], E4)
vexpr(sE4w, [(2, 16 * 896), (1, 4)], sT0)
sexpr(sT0, [("s2", 256), (sU, 64)], E5)
if P.get("WIDE", 0):
    vexpr(sE5w, [(2, 16)], sT0)
else:
    vexpr(sE5w, [(1, 4)], sT0)
A("v_lshl_add_u32 %s, v2, 3, v12" % v(SS + 3))
sexpr(sT0, [(sU, 32)])
vexpr(sTr, [(SS + 3, 128), (14, 8)], sT0)
sexpr(sT0, [(sU, 64)])
vexpr(sTr1, [(SS + 3, 224), (14, 8)], sT0)
stamp("S", 11)
A("s_waitcnt vmcnt(0)")
stamp("S", 12)
sexpr(sT0, [(sU, 272)], XOP)
vexpr(4, [(1, 16)], sT0)
A("s_lshl_b32 %s, %s, 4" % (sT0, sHi))
A("s_mov_b32 %s, 0xffff" % sT2)
A("s_mov_b32 %s, 0" % sT3)
A("s_lshl_b64 exec, s[14:15], %s" % sT0)
A("ds_write_b128 v4, %s" % v(X0, 4))
set_exec(-1)
for i in range(4):
    A("v_lshlrev_b32 %s, 16, %s" % (v(SS + 2 * i), v(X0 + i)))
    A("v_and_b32 %s, 0xffff0000, %s" % (v(SS + 2 * i + 1), v(X0 + i)))
A("v_add_f32 v4, %s, %s" % (v(SS), v(SS + 1)))
A("v_mul_f32 v5, %s, %s" % (v(SS), v(SS)))
A("v_fmac_f32 v5, %s, %s" % (v(SS + 1), v(SS + 1)))
for i in range(2, 8):
    A("v_add_f32 v4, v4, %s" % v(SS + i))
    A("v_fmac_f32 v5, %s, %s" % (v(SS + i), v(SS + i)))
for m in (X1, X2, HM, RM):
    A("v_add_f32_dpp v4, v4, v4 %s" % m)
    A("v_add_f32_dpp v5, v5, v5 %s" % m)
g_allreduce("v_add_f32", 4, 6)
g_allreduce("v_add_f32", 5, 6)
A("v_mul_f32 v4, %s, v4" % f32(1 / 512))
A("v_mul_f32 v5, %s, v5" % f32(1 / 512))
A("v_fma_f32 v5, -v4, v4, v5")
A("v_max_f32 v5, 0, v5")
A("v_add_f32 v5, %s, v5" % f32(1e-5))
A("v_rsq_f32 v5, v5")
sexpr(sT0, [(sU, 8)], ST0)
A("v_mov_b32 v6, %s" % sT0)
A("ds_write_b64 v6, v[4:5]")
A("s_waitcnt lgkmcnt(0)")
ssync(0)
stamp("S", 0)
for t in range(4):
    A("ds_read_b128 %s, %s offset:%d" % (v(XR + 4 * t, 4), v(sXa), 64 * t))
for t in range(4):
    for hh in range(2):
        A("ds_read_b64_tr_b16 %s, %s offset:%d" % (v(WQ + 4 * t + 2 * hh, 2), v(sTr), LW_Q + (32 * t + 4 * hh) * 128))
vexpr(4, [(2, 8)], None, ST0)
A("ds_read_b64 v[6:7], v4")
A("v_mov_b32 v4, %d" % NONCE)
A("ds_read_b64 v[12:13], v4")
for i in range(4):
    A("v_mov_b32 %s, 0x3f803f80" % v(XR + 16 + i))
A("s_waitcnt lgkmcnt(0)")
for t in range(4):
    A("%s %s, %s, %s, %s" % (MFMA, v(DR, 4), v(XR + 4 * t, 4), v(WQ + 4 * t, 4), "0" if t == 0 else v(DR, 4)))
    A("%s %s, %s, %s, %s" % (MFMA, v(DR + 4, 4), v(XR + 16, 4), v(WQ + 4 * t, 4), "0" if t == 0 else v(DR + 4, 4)))
A("v_fma_f32 %s, -v6, %s, %s" % (v(DR), v(DR + 4), v(DR)))
A("v_mul_f32 %s, %s, v7" % (v(DR), v(DR)))
A("v_mov_b32 %s, %s" % (v(sCsP), v(DR + 4)))
A("v_mov_b32 %s, v12" % v(DR + 1))
sexpr(sT0, [(sJ, 65536), (sHi, 4096), (sLo, 512), (sU, 128)], E1T)
vexpr(4, [(2, 16384), (1, 8)], sT0)
stamp("S", 1)
A("global_store_dwordx2 v4, %s, %s sc1" % (v(DR, 2), pWS))
A("v_readfirstlane_b32 s48, v12")
A("v_readfirstlane_b32 s49, v13")
A("s_cmp_lg_u32 %s, 1" % sU)
A("s_cbranch_scc1 S_NOREC")
RS = P.get("RS", 16)
sexpr(sT0, [(sJ, 32 * RS), (sS, RS)], REC)
A("v_mov_b32 v4, %s" % sT0)
A("v_mov_b32 v14, %s" % sXcc)
set_exec(1)
A("global_store_dwordx3 v4, v[12:14], %s sc1" % pWS)
set_exec(-1)
A.label("S_NOREC")


W2BLK = r'''sexpr(sT0, [(sJ, 224 * 1024), (sLo, 128), (sU, 7 * 8192)])
padd(pT, pW2, sT0)
sexpr(sT1, [(sU, 7 * 1024)], LW_2)
for k in range(7):
    A("s_add_u32 m0, %s, %d" % (sT1, 1024 * k))
    A("global_load_lds_dwordx4 %s, %s%s" % (v(sDma), pT, NT))
    if k < 6:
        padd(pT, pT, 8192)
'''


def PT1():
    padd(pT, pWJ, LSTR)
    A("global_load_dwordx4 v[140:143], %s, %s sc1" % (v(sClr), pT))
    A("s_mov_b32 exec_hi, 0")
    A("global_load_dwordx4 v[140:143], %s, %s offset:1024 sc1" % (v(sClr), pT))
    A("s_mov_b64 exec, -1")


def wt_slice(base):
    A("global_store_dwordx4 %s, %s, %s sc1" % (v(sClr), v(SN, 4), base))
    A("s_mov_b32 exec_hi, 0")
    A("global_store_dwordx4 %s, %s, %s offset:1024 sc1" % (v(sClr), v(SN, 4), base))
    A("s_mov_b64 exec, -1")


def half_treduce(r):
    A("v_permlane32_swap_b32 %s, %s" % (v(r), v(r + 2)))
    A("v_permlane32_swap_b32 %s, %s" % (v(r + 1), v(r + 3)))
    A("v_add_f32 %s, %s, %s" % (v(r), v(r), v(r + 2)))
    A("v_add_f32 %s, %s, %s" % (v(r + 1), v(r + 1), v(r + 3)))


AG = ["global_load_dwordx4 %s, %s, %s sc1" % (v(ga, 4), v(sAg), pWJ),
      "global_load_dwordx4 %s, %s, %s offset:2048 sc1" % (v(gb, 4), v(sAg), pWJ)]
AGC = [(ga + e, gb + e) for e in range(4)]
sexpr(sT0, [(sJ, 65536), (sHi, 16384), (sU, 1024)], E1T + 4096)
A("v_add_u32 v4, %s, v3" % sT0)
A("v_add_u32 v5, 8192, v4")
sexpr(sT0, [(sU, 64 * RS)], REC)
vexpr(6, [(0, RS)], sT0)
sleep(P.get("D_A0", 20))
TQ = XR
A.label("S_AG0")
A("global_load_dwordx4 %s, v4, %s offset:-4096 sc1" % (v(TQ, 4), pWS))
A("global_load_dwordx4 %s, v4, %s sc1" % (v(TQ + 4, 4), pWS))
A("global_load_dwordx4 %s, v5, %s offset:-4096 sc1" % (v(TQ + 8, 4), pWS))
A("global_load_dwordx4 %s, v5, %s sc1" % (v(TQ + 12, 4), pWS))
A("s_waitcnt vmcnt(0)")
for i in range(8):
    A("v_xor_b32 %s, s48, %s" % (v(TQ + 2 * i + 1), v(TQ + 2 * i + 1)))
A("v_or3_b32 v7, %s, %s, %s" % (v(TQ + 1), v(TQ + 3), v(TQ + 5)))
A("v_or3_b32 v7, v7, %s, %s" % (v(TQ + 7), v(TQ + 9)))
A("v_or3_b32 v7, v7, %s, %s" % (v(TQ + 11), v(TQ + 13)))
A("v_or_b32 v7, v7, %s" % v(TQ + 15))
A("v_cmp_ne_u32 vcc, 0, v7")
A("s_cbranch_vccz S_AG0_DONE")
sleep(P.get("NAPQ", 8))
budget_loop("S_AG0")
A.label("S_AG0_DONE")
A("global_load_dwordx3 v[12:14], v6, %s sc1" % pWS)
A("v_mov_b32 v4, %d" % (FLG + 12))
A("v_mov_b32 v5, 1")
A("ds_write_b32 v4, v5")
stamp("S", 2)
for c in range(2):
    A("v_add_f32 %s, %s, %s" % (v(TQ + 2 * c), v(TQ + 2 * c), v(TQ + 4 + 2 * c)))
    A("v_add_f32 %s, %s, %s" % (v(TQ + 8 + 2 * c), v(TQ + 8 + 2 * c), v(TQ + 12 + 2 * c)))
    A("v_add_f32 %s, %s, %s" % (v(TQ + 2 * c), v(TQ + 2 * c), v(TQ + 8 + 2 * c)))
A("v_cvt_pk_bf16_f32 %s, %s, %s" % (v(ga), v(TQ), v(TQ + 2)))
sexpr(sT0, [(sU, 272)], QOP)
vexpr(4, [(0, 4)], sT0)
A("ds_write_b32 v4, %s" % v(ga))
A("s_waitcnt lgkmcnt(0)")
A("s_barrier")
A("v_lshrrev_b32 v4, 3, v0")
A("v_and_b32 v5, 7, v0")
vexpr(sDma, [(4, 1024), (5, 16)])
sexpr(sT0, [(sJ, 512 * 1024), (sHi, 128 * 1024), (sU, 32 * 1024), (sLo, 128)])
padd(pT, pWO, sT0)
sexpr(sT1, [(sU, 4096)], LW_O)
for k in range(4):
    A("s_add_u32 m0, %s, %d" % (sT1, 1024 * k))
    A("global_load_lds_dwordx4 %s, %s%s" % (v(sDma), pT, NT))
    if k < 3:
        padd(pT, pT, 8192)
sexpr(sT0, [(sR1, 32 * 3584), (sJ, 448), (sC1, 224)])
padd(pT, pW1, sT0)
for k in range(2):
    A("s_lshl_b32 %s, %s, 1" % (sT1, sU))
    if k:
        A("s_add_u32 %s, %s, 1" % (sT1, sT1))
        A("s_min_u32 %s, %s, 6" % (sT1, sT1))
    A("s_lshl_b32 %s, %s, 6" % (sT0, sT1))
    A("v_add_u32 v4, %s, v0" % sT0)
    A("v_mul_u32_u24 v5, 4682, v4")
    A("v_lshrrev_b32 v5, 16, v5")
    A("v_mul_u32_u24 v7, 14, v5")
    A("v_sub_u32 v4, v4, v7")
    A("v_mul_u32_u24 v5, 3584, v5")
    A("v_lshl_add_u32 v4, v4, 4, v5")
    A("s_lshl_b32 %s, %s, 10" % (sT0, sT1))
    A("s_add_u32 m0, %s, %d" % (sT0, LW_1))
    A("global_load_lds_dwordx4 v4, %s%s" % (pT, NT))
for n in range(448):
    assert (n * 4682) >> 16 == n // 14
if P.get("W2E", 1):
    exec(W2BLK)
A("s_waitcnt vmcnt(%d)" % (13 if P.get("W2E", 1) else 6))
A("s_branch S_RP_CHK")
A.label("S_RP")
A("global_load_dwordx3 v[12:14], v6, %s sc1" % pWS)
A("s_waitcnt vmcnt(0)")
A.label("S_RP_CHK")
A("v_cmp_ne_u64 vcc, %s, v[12:13]" % pN)
A("s_cbranch_vccz S_RP_DONE")
A("s_sleep %d" % P.get("PSL", 8))
budget_loop("S_RP")
A("v_mov_b32 v14, -1")
A.label("S_RP_DONE")
A("s_lshr_b32 %s, %s, 1" % (sT0, sJ))
A("s_cmp_lg_u32 %s, %s" % (sT0, sU))
A("s_cbranch_scc1 S_REC_SKIP")
A("v_cmp_ne_u32 vcc, %s, v14" % sXcc)
A("s_bitcmp1_b32 %s, 0" % sJ)
A("s_cselect_b32 %s, vcc_hi, vcc_lo" % sT0)
A("s_cmp_eq_u32 %s, 0" % sT0)
A("s_cselect_b32 %s, 1, 0" % sT0)
if P["FORCE_SAFE"]:
    A("s_mov_b32 %s, 0" % sT0)
A("v_mov_b32 v5, %d" % FLG)
A("v_mov_b32 v7, %s" % sT0)
A("ds_write_b32 v5, v7")
A.label("S_REC_SKIP")
stamp("S", 14)
if P.get("PTOUCH", 1):
    sexpr(sT0, [(sS, 5120), (sU, 1280)], 32768)
    A("v_add_u32 v7, %s, v3" % sT0)
    A("global_load_dwordx4 v[140:143], v7, %s sc1" % pWJ)
    set_exec(0xFFFF)
    A("global_load_dwordx4 v[140:143], v7, %s offset:1024 sc1" % pWJ)
    set_exec(-1)
A("s_waitcnt lgkmcnt(0)")

TRBLK = r'''lab = if_layer0()
for t in range(7):
    for hh in range(2):
        A("ds_read_b64_tr_b16 %s, %s offset:%d" % (v(W2R + 4 * t + 2 * hh, 2), v(sTr), LW_2 + (32 * t + 4 * hh) * 128))
A("s_waitcnt lgkmcnt(0)")
A.label(lab)
'''
A.label("S_LOOP")
A("s_barrier")
stamp("S", 3)
cm = XR
ca = XR + 8
A("v_mov_b32 v5, %d" % FLG)
A("ds_read_b32 v6, v5")
A("ds_read_b128 %s, %s" % (v(cm, 4), v(sMlrd)))
A("ds_read_b128 %s, %s offset:16" % (v(cm + 4, 4), v(sMlrd)))
for k in range(4):
    A("ds_read_b128 %s, %s offset:%d" % (v(ca + 4 * k, 4), v(sCrd), 2048 * k))
cM, cL, cT, cAd = SS, SS + 1, SS + 2, SS + 3
A("v_mov_b32 %s, %s" % (v(cAd), sC))
A("s_waitcnt lgkmcnt(4)")
A("v_readfirstlane_b32 %s, v6" % sFast)
A("v_max3_f32 %s, %s, %s, %s" % (v(cM), v(cm), v(cm + 2), v(cm + 4)))
A("v_max_f32 %s, %s, %s" % (v(cM), v(cM), v(cm + 6)))
A("v_mov_b32 %s, %s" % (v(cT), v(cM)))
A("v_permlane32_swap_b32 %s, %s" % (v(cM), v(cT)))
A("v_max_f32 %s, %s, %s" % (v(cM), v(cM), v(cT)))
for k in range(4):
    A("v_sub_f32 %s, %s, %s" % (v(cm + 2 * k), v(cm + 2 * k), v(cM)))
for k in range(4):
    A("v_exp_f32 %s, %s" % (v(cm + 2 * k), v(cm + 2 * k)))
A("s_waitcnt lgkmcnt(0)")
for e in range(4):
    A("v_mul_f32 %s, %s, %s" % (v(DR + e), v(cm), v(ca + e)))
A("v_mul_f32 %s, %s, %s" % (v(cL), v(cm), v(cm + 1)))
for k in range(1, 4):
    for e in range(4):
        A("v_fmac_f32 %s, %s, %s" % (v(DR + e), v(cm + 2 * k), v(ca + 4 * k + e)))
    A("v_fmac_f32 %s, %s, %s" % (v(cL), v(cm + 2 * k), v(cm + 2 * k + 1)))
A("v_mov_b32 %s, %s" % (v(cT), v(cL)))
A("v_permlane32_swap_b32 %s, %s" % (v(DR), v(DR + 2)))
A("v_permlane32_swap_b32 %s, %s" % (v(DR + 1), v(DR + 3)))
A("v_permlane32_swap_b32 %s, %s" % (v(cL), v(cT)))
A("v_add_f32 %s, %s, %s" % (v(DR), v(DR), v(DR + 2)))
A("v_add_f32 %s, %s, %s" % (v(DR + 1), v(DR + 1), v(DR + 3)))
A("v_add_f32 %s, %s, %s" % (v(cL), v(cL), v(cT)))
store_intra(["global_store_dwordx2 %s, %s, %s" % (v(sE2w), v(DR, 2), pWJ),
             "s_mov_b64 exec, 1",
             "global_store_dwordx2 %s, %s, %s" % (v(cAd), v(cM, 2), pWJ),
             "s_mov_b64 exec, -1"])
if P.get("SIGI", 1):
    A("s_barrier")
stamp("S", 4)
lab = if_layer0()
A("v_add_u32 %s, %d, %s" % (v(gc), 4 * 8192, v(sE1w)))
padd(pT, pWJ, LSTR)
store_intra(exec_lines(0xFFFF) +
            ["global_store_dword %s, %s, %s" % (v(gc), v(sCsP), pWJ),
             "s_mov_b64 exec, -1",
             ] + ([] if P.get("CLEAN", 0) & 1 else [
             "global_store_dwordx4 %s, %s, %s" % (v(sClr), v(SN, 4), pT),
             "s_mov_b32 exec_hi, 0",
             "global_store_dwordx4 %s, %s, %s offset:1024" % (v(sClr), v(SN, 4), pT),
             "s_mov_b64 exec, -1"]))
if P.get("CLEAN", 0) & 1:
    wt_slice(pT)
if not P.get("W2LATE", 0) and not P.get("W2E", 1):
    exec(W2BLK)
    A("s_waitcnt vmcnt(7)")
else:
    A("s_waitcnt vmcnt(0)")
if P.get("PT1", 2) == 1:
    PT1()
A.label(lab)
A("s_barrier")
stamp("S", 5)
for t in range(4):
    A("ds_read_b128 %s, %s offset:%d" % (v(XR + 4 * t, 4), v(sOrd), 64 * t))
lab = if_layer0()
for t in range(4):
    for hh in range(2):
        A("ds_read_b64_tr_b16 %s, %s offset:%d" % (v(WO + 4 * t + 2 * hh, 2), v(sTr), LW_O + (32 * t + 4 * hh) * 128))
A("s_waitcnt lgkmcnt(0)")
A.label(lab)
for t in range(4):
    A("s_waitcnt lgkmcnt(%d)" % (3 - t))
    ab = (v(WO + 4 * t, 4), v(XR + 4 * t, 4)) if P.get("WIDE", 0) else (v(XR + 4 * t, 4), v(WO + 4 * t, 4))
    A("%s %s, %s, %s, %s" % (MFMA, v(DR, 4), ab[0], ab[1], "0" if t == 0 else v(DR, 4)))
if P.get("WIDE", 0):
    set_exec(0x000F000F000F000F)
    A("global_store_dwordx4 %s, %s, %s sc1" % (v(sE3w), v(DR, 4), pWL))
    set_exec(-1)
else:
    A("global_store_dword %s, %s, %s sc1" % (v(sE3w), v(DR), pWL))
if P.get("SIG", 1):
    A("s_barrier")
lab = if_layer0()
for tl in range(2):
    for hh in range(2):
        A("ds_read_b64_tr_b16 %s, %s offset:%d" % (v(W1R + 4 * tl + 2 * hh, 2), v(sTr1), LW_1 + 4 * hh * 224 + 32 * tl))
for i in range(4):
    A("v_mov_b32 %s, 0x3f803f80" % v(XR + i))
A("v_add_u32 %s, %d, %s" % (v(gc + 1), (E4C - E4) & 0xFFFFFFFF, v(sE4w)))
A("s_waitcnt lgkmcnt(0)")
A("%s %s, %s, %s, 0" % (MFMA, v(DR + 4, 4), v(XR, 4), v(W1R, 4)))
A("%s %s, %s, %s, 0" % (MFMA, v(XR + 4, 4), v(XR, 4), v(W1R + 4, 4)))
A("s_cmp_eq_u32 %s, 3" % sU)
A("s_cselect_b32 %s, 0, 0xffff" % sT0)
store_intra(exec_lines(0xFFFF) +
            ["global_store_dword %s, %s, %s" % (v(gc + 1), v(DR + 4), pWJ),
             "s_mov_b32 exec_lo, %s" % sT0,
             "global_store_dword %s, %s, %s offset:64" % (v(gc + 1), v(XR + 4), pWJ),
             "s_mov_b64 exec, -1"])
A("s_sub_u32 %s, 4, %s" % (sT0, sHi))
A("s_lshl_b32 %s, %s, 13" % (sT0, sT0))
A("v_add_u32 %s, %s, %s" % (v(gc), sT0, v(sAg)))
poll(["global_load_dwordx4 %s, %s, %s sc1" % (v(ga, 4), v(gc), pWJ),
      "global_load_dwordx4 %s, %s, %s offset:2048 sc1" % (v(gb, 4), v(gc), pWJ)], AGC, nap=4)
for e in range(4):
    A("v_add_f32 %s, %s, %s" % (v(ga + e), v(ga + e), v(gb + e)))
half_treduce(ga)
A("v_mov_b32 %s, %s" % (v(sCq0), v(ga)))
A("v_mov_b32 %s, %s" % (v(sCq1), v(ga + 1)))
if P.get("PT1", 2) == 2:
    PT1()
if P.get("W2LATE", 0):
    exec(W2BLK)
A.label(lab)
A("s_barrier")
stamp("S", 6)
A("ds_read_b128 %s, %s" % (v(XR, 4), v(sX1a)))
A("s_cmp_eq_u32 %s, 3" % sU)
A("s_cbranch_scc1 S_W1_W3")
A("s_waitcnt lgkmcnt(0)")
A("%s %s, %s, %s, 0" % (MFMA, v(DR, 4), v(XR, 4), v(W1R, 4)))
A("%s %s, %s, %s, 0" % (MFMA, v(DR + 4, 4), v(XR, 4), v(W1R + 4, 4)))
store_intra(["global_store_dword %s, %s, %s" % (v(sE4w), v(DR), pWJ),
             "global_store_dword %s, %s, %s offset:64" % (v(sE4w), v(DR + 4), pWJ)])
A("s_branch S_W1_DONE")
A.label("S_W1_W3")
A("ds_read_b128 %s, %s" % (v(XR + 4, 4), v(sX1b)))
A("s_waitcnt lgkmcnt(1)")
A("%s %s, %s, %s, 0" % (MFMA, v(DR, 4), v(XR, 4), v(W1R, 4)))
A("s_waitcnt lgkmcnt(0)")
A("%s %s, %s, %s, 0" % (MFMA, v(DR + 4, 4), v(XR, 4), v(XR + 4, 4)))
store_intra(["global_store_dword %s, %s, %s" % (v(sE4w), v(DR), pWJ)] + exec_lines(STM) +
            ["global_store_dword %s, %s, %s" % (v(sE4sw), v(DR + 4), pWJ)] + exec_lines(0x000F000F000F000F) +
            ["global_store_dwordx4 %s, %s, %s" % (v(sE4rw), v(XR + 4, 4), pWJ), "s_mov_b64 exec, -1"])
A.label("S_W1_DONE")
if P.get("SIGI", 1):
    A("s_barrier")
KEEP = 136
if P.get("CLEAN", 0) & 8:
    A("v_mov_b32 %s, %s" % (v(KEEP), v(DR)))
    A("v_mov_b32 %s, %s" % (v(KEEP + 1), v(DR + 4)))
if P.get("W2LATE", 0):
    A("s_waitcnt vmcnt(0)")
else:
    exec(TRBLK)
A("s_barrier")
stamp("S", 7)
if P.get("W2LATE", 0):
    exec(TRBLK)
for t in range(7):
    A("ds_read_b128 %s, %s offset:%d" % (v(XR + 4 * t, 4), v(sHrd), 64 * t))
for t in range(7):
    A("s_waitcnt lgkmcnt(%d)" % (6 - t))
    ab = (v(W2R + 4 * t, 4), v(XR + 4 * t, 4)) if P.get("WIDE", 0) else (v(XR + 4 * t, 4), v(W2R + 4 * t, 4))
    A("%s %s, %s, %s, %s" % (MFMA, v(DR, 4), ab[0], ab[1], "0" if t == 0 else v(DR, 4)))
if P.get("WIDE", 0):
    set_exec(0x0001000100010001)
    A("global_store_dwordx4 %s, %s, %s sc1" % (v(sE5w), v(DR, 4), pWL))
else:
    set_exec(0xFFFF)
    A("global_store_dword %s, %s, %s sc1" % (v(sE5w), v(DR), pWL))
set_exec(-1)
if P.get("SIG", 1):
    A("s_barrier")
stamp("S", 8)
A("s_cmp_lg_u32 %s, 0" % sL)
A("s_cbranch_scc1 %s" % ("S_FIN" if P.get("CLEAN", 0) & 4 else "L_EXIT"))
A("s_mov_b32 %s, 1" % sL)
padd(pWL, pWL, LSTR)
padd(pWJ, pWJ, LSTR)
A("s_lshl_b32 %s, %s, 6" % (sT0, sU))
A("v_add_u32 %s, %s, %s" % (v(SS), sT0, v(sXa)))
A("s_barrier")
stamp("S", 0)
for t in range(4):
    A("ds_read_b128 %s, %s offset:%d" % (v(XR + 4 * t, 4), v(sXa), 64 * t))
A("ds_read_b128 %s, %s" % (v(XR + 16, 4), v(sXb)))
A("ds_read_b128 %s, %s" % (v(XR + 20, 4), v(SS)))
for t in range(4):
    A("s_waitcnt lgkmcnt(%d)" % (5 - t))
    A("%s %s, %s, %s, %s" % (MFMA, v(DR, 4), v(XR + 4 * t, 4), v(WQ + 4 * t, 4), "0" if t == 0 else v(DR, 4)))
A("s_waitcnt lgkmcnt(0)")
A("%s %s, %s, %s, 0" % (MFMA, v(DR + 4, 4), v(XR + 20, 4), v(XR + 16, 4)))
stamp("S", 1)
store_intra(["global_store_dword %s, %s, %s" % (v(sE1w), v(DR), pWJ)] + exec_lines(STM) +
            ["global_store_dword %s, %s, %s" % (v(sE1sw), v(DR + 4), pWJ), "s_mov_b64 exec, -1"])
sleep(P["D_A"])
SSETS = [SS, XR, XR + 12][:P.get("NSETS", 2)]
q0_, q1_, q2_, q3_ = 4, 5, 6, 7


def a_issue(a):
    set_exec(0xFFFF)
    A("global_load_dwordx2 %s, %s, %s sc1" % (v(a + 8, 2), v(sAst), pWJ))
    set_exec(-1)
    A("global_load_dwordx4 %s, %s, %s sc1" % (v(a, 4), v(sAg), pWJ))
    A("global_load_dwordx4 %s, %s, %s offset:2048 sc1" % (v(a + 4, 4), v(sAg), pWJ))


def a_mid(a):
    c = a + 8
    for m in (X1, X2, HM, RM):
        A("v_add_f32_dpp %s, %s, %s %s" % (v(c), v(c), v(c), m))
        A("v_add_f32_dpp %s, %s, %s %s" % (v(c + 1), v(c + 1), v(c + 1), m))
    A("v_mul_f32 %s, %s, %s" % (v(c), f32(1 / 512), v(c)))
    A("v_mul_f32 %s, %s, %s" % (v(c + 1), f32(1 / 512), v(c + 1)))
    A("v_fma_f32 %s, -%s, %s, %s" % (v(c + 1), v(c), v(c), v(c + 1)))
    A("v_fmac_f32 %s, 0, %s" % (v(c), v(c + 1)))
    A("v_max_f32 %s, 0, %s" % (v(c + 1), v(c + 1)))
    A("v_add_f32 %s, %s, %s" % (v(c + 1), f32(1e-5), v(c + 1)))
    A("v_rsq_f32 %s, %s" % (v(c + 1), v(c + 1)))
    A("v_mul_f32 %s, %s, %s" % (v(c), v(c), v(c + 1)))
    A("v_readfirstlane_b32 %s, %s" % (sT0, v(c + 1)))
    A("v_readfirstlane_b32 %s, %s" % (sT1, v(c)))
    A("v_mul_f32 %s, %s, %s" % (v(q2_), sT1, v(sCq0)))
    A("v_mul_f32 %s, %s, %s" % (v(q3_), sT1, v(sCq1)))


def a_post(a):
    for e in range(4):
        A("v_add_f32 %s, %s, %s" % (v(a + e), v(a + e), v(a + 4 + e)))
    half_treduce(a)


def a_fin(a):
    A("v_fma_f32 %s, %s, %s, -%s" % (v(q0_), v(a), sT0, v(q2_)))
    A("v_fma_f32 %s, %s, %s, -%s" % (v(q1_), v(a + 1), sT0, v(q3_)))


fast_poll(a_issue, a_mid, a_post, a_fin, [q0_, q1_], SS)
stamp("S", 2)
A("v_cvt_pk_bf16_f32 %s, %s, %s" % (v(q0_), v(q0_), v(q1_)))
A("ds_write_b32 %s, %s" % (v(sQw), v(q0_)))
A("s_waitcnt lgkmcnt(0)")
A("s_barrier")
A("s_waitcnt vmcnt(0)")
if P.get("CLEAN", 0) & 2:
    A("s_sub_u32 s62, s72, %d" % LSTR)
    A("s_subb_u32 s63, s73, 0")
    wt_slice(pT)
A("s_branch S_LOOP")
if P.get("CLEAN", 0) & 4:
    A.label("S_FIN")
    sexpr(sT0, [(sS, 4096), (sU, 1024)])
    A("v_add_u32 v4, %s, v3" % sT0)
    A("global_store_dwordx4 v4, %s, %s sc1" % (v(SN, 4), pWJ))
    if P.get("CLEAN", 0) & 8:
        A("global_store_dword %s, %s, %s sc1" % (v(sE4w), v(KEEP), pWJ))
        A("s_cmp_eq_u32 %s, 3" % sU)
        A("s_cbranch_scc1 L_EXIT")
        A("global_store_dword %s, %s, %s offset:64 sc1" % (v(sE4w), v(KEEP + 1), pWJ))
    A("s_branch L_EXIT")

KR, VR, VF, QR, SR = 16, 48, 80, 112, 128
GS = 48
(gOg, gOml, gOlds, gW1g, gW1x, gW1lds, gW2g, gW2s, gW2lds, gXg, gXr, gXlds, gB1, gB2, gCs1, gQrd, gApw, gMlw, gOut, gDma) = range(148, 168)
_gn = [1 if P["PREF"] else 0]


def gload(t):
    if P.get("NODMA") and "lds" in t:
        t = "global_load_dword v140, v3, %s" % pB1 if False else "s_nop 0"
        A(t)
        return
    if _gn[0] >= P["W"]:
        if P.get("ADAPT"):
            lab = newlabel("THR")
            A("ds_read_b32 v130, v129")
            A("s_waitcnt lgkmcnt(0)")
            A("v_readfirstlane_b32 %s, v130" % sT1)
            A("s_cmp_lg_u32 %s, 0" % sT1)
            A("s_cbranch_scc1 %s" % lab)
            A("s_waitcnt vmcnt(%d)" % (P["W"] - 1))
            A.label(lab)
        else:
            A("s_waitcnt vmcnt(%d)" % (P["W"] - 1))
    A(t)
    _gn[0] += 1


GADDR = r'''A("v_lshrrev_b32 v11, 3, v0")        # l>>3
A("v_and_b32 v12, 7, v0")            # l&7
vexpr(gDma, [(11, 1024), (12, 16)])
# bias elements
A("s_lshr_b32 %s, %s, 1" % (sK0, sWave))     # b = w>>1
A("s_and_b32 %s, %s, 1" % (sK1, sWave))      # w&1
A("s_min_u32 %s, %s, 6" % (sK2, sWave))      # w' for the W2 gather
vexpr(13, [(1, 4), (2, 1)])                  # X col local = 4 l16 + g
sexpr(sT0, [(sHi, 256), (sK1, 128)])
vexpr(14, [(13, 2)], sT0)                    # col*2 within a 512-col bf16 row
gload("global_load_ushort %s, v14, %s%s" % (v(gB2), pB2, NT))
vexpr(10, [(12, 4), (2, 1)])                 # 4 (l&7) + g
sexpr(sT0, [(sK2, 64)])
vexpr(10, [(10, 2)], sT0)                    # f*2 (local)
sexpr(sT0, [(sJ, 448)])
A("v_add_u32 v6, %s, v10" % sT0)
gload("global_load_ushort %s, v6, %s%s" % (v(gB1), pB1, NT))
N_AFTER_K, N_AFTER_V = 8, 0

for q in range(4):
    smov64(mQ[q], (0x000F000F000F000F << (4 * q)))
A("s_mov_b32 %s, 0x05040100" % sPermLo)
A("s_mov_b32 %s, 0x07060302" % sPermHi)
A("s_mov_b32 %s, %s" % (sC, f32(128 ** -0.5 * math.log2(math.e))))
A("s_mov_b32 s42, s40")
A("s_mov_b32 s43, s41")
A("s_mul_i32 %s, %s, %d" % (sT0, sJ, JSTR))
padd(pWJ, pWS, sT0)
A("v_add_u32 %s, %d, v10" % (v(gW2lds), HOP))
# O gather: E2 + ((ro*4+b)*8 + 2g)*512 + (16 (w&1) + l16)*16
sexpr(sT0, [(sHi, 16384), (sK0, 4096), (sK1, 256)], E2)
vexpr(gOg, [(2, 1024), (1, 16)], sT0)
sexpr(sT0, [(sHi, 256), (sK0, 64)], E2S)
vexpr(gOml, [(2, 16)], sT0)
# O lds: U = 16 h + l16 (h = w&1); lp = 2U + (g>>1); ups = lp&31 = (2 l16 + (g>>1)) ; e = 2 h + (g&1)
#   ups = 16 a + 4 g' + qq ; d = 32 g' + 8 e + 4 a + qq
A("v_lshrrev_b32 v4, 1, v2")
A("v_lshl_add_u32 v4, v1, 1, v4")            # ups
A("v_bfe_u32 v5, v4, 4, 1")                  # a
A("v_bfe_u32 v6, v4, 2, 2")                  # g'
A("v_and_b32 v7, 3, v4")                     # qq
A("v_and_b32 v4, 1, v2")                     # g&1
sexpr(sT0, [(sK0, 272), (sK1, 32)], OOP)
vexpr(gOlds, [(6, 64), (4, 16), (5, 8), (7, 2)], sT0)
# W1 gather: E3 + r1*16384 + (2 pp)*512 + (4 w + (l&3))*16 ; pp = l>>2
A("v_lshrrev_b32 v4, 2, v0")
A("v_and_b32 v5, 3, v0")
if P.get("E3L", 1):
    sexpr(sT0, [(sR1, 16384), (sWave, 2048)], E3)
    A("v_add_u32 %s, %s, v3" % (v(gW1g), sT0))
else:
    sexpr(sT0, [(sR1, 16384), (sWave, 64)], E3)
    vexpr(gW1g, [(4, 1024), (5, 16)], sT0)
# rho = 16 tile + 4 (l&3) + g ; tile = w>>2, b = w&3
A("s_lshr_b32 %s, %s, 2" % (sT1, sWave))
A("s_and_b32 %s, %s, 3" % (sT2, sWave))
vexpr(6, [(5, 8), (2, 2)])
sexpr(sT0, [(sT2, 80), (sT1, 32)], X1OP)
A("v_add_u32 %s, %s, v6" % (v(gW1lds), sT0))
sexpr(sT0, [(sT2, 272), (sT1, 32)], XOP)
A("s_and_b32 %s, %s, 3" % (sT1, sR1))
A("s_lshl_b32 %s, %s, 6" % (sT1, sT1))
A("s_add_u32 %s, %s, %s" % (sT0, sT0, sT1))
A("v_add_u32 %s, %s, v6" % (v(gW1x), sT0))
# W2 gather: E4 + (b*16 + 2 pp8)*896 + (8 w' + (l&7))*16 ; pp8 = l>>3
sexpr(sT0, [(sHi, 16 * 896), (sK2, 128)], E4)
vexpr(gW2g, [(11, 2 * 896), (12, 16)], sT0)
# W2 stats: E4S + (c1*4 + b)*128 + l16*8  (16 entries, row all-reduce)
sexpr(sT0, [(sHi, 128)], E4S)
vexpr(gW2s, [(1, 8)], sT0)
# X gather: E5 + ((b*8 + 2 rq + (w&1))*8 + 2g)*256 + l16*16
sexpr(sT0, [(sK0, 16384), (sHi, 4096), (sK1, 2048)], E5)
vexpr(gXg, [(2, 512), (1, 16)], sT0)
sexpr(sT0, [(sK0, 1024)], E4R)
A("v_add_u32 %s, %s, v14" % (v(gXr), sT0))
sexpr(sT0, [(sK0, 1024)])
A("v_add_u32 %s, %s, v14" % (v(gOut), sT0))
sexpr(sT0, [(sK0, 272), (sK1, 128)], XOP)
vexpr(gXlds, [(13, 2)], sT0)
vexpr(gQrd, [(8, 272), (2, 16)], None, QOP)
sexpr(sT0, [(sWave, 2048)], AP)
A("v_add_u32 %s, %s, v3" % (v(gApw), sT0))
sexpr(sT0, [(sWave, 8)], ML)
vexpr(gMlw, [(8, 64)], sT0)
'''
NV1 = 8
A.label("L_G")
ISTR, WSTR = ((65536, 8192) if P.get("KMODE", 5) == 5 else (8192, 65536))
sexpr(sT0, [(sHi, 8 << 21), (sJ, 1 << 21), (sLo, 1024), (sWave, WSTR)], 6144 * 256)
A("v_and_b32 v8, 3, v1")
A("v_lshrrev_b32 v9, 2, v1")
vexpr(10, [(8, ISTR), (9, 256), (2, 16)])
A("v_mov_b32 v129, %d" % (FLG + 12))
A("s_waitcnt lgkmcnt(0)")
stamp_init()
stamp("G", 10)
padd(pT, pK, sT0)
padd(pT2, pV, sT0)
for tau in range(2):
    for t in range(4):
        if 4 * tau + t == P["B0POS"]:
            A("s_barrier")
        gload("global_load_dwordx4 %s, v10, %s offset:%d%s" % (v(KR + 4 * (4 * tau + t), 4), pT, 64 * t, NT))
    if tau == 0:
        padd(pT, pT, 4 * ISTR)
        A("v_mov_b32 %s, v10" % v(SR))
        exec(GADDR)
        A("v_mov_b32 v10, %s" % v(SR))
stamp("G", 11)
NV1 = 8
for jj in range(8):
    gload("global_load_dwordx4 %s, v3, %s%s" % (v(VR + 4 * jj, 4), pT2, NT))
    if jj < 7:
        padd(pT2, pT2, ISTR)
for q in range(4):
    A("v_cndmask_b32 v%d, 0, -1, %s" % (144 + q, mQ[q]))
stamp("G", 9)
if P.get("KVWAIT"):
    A("s_waitcnt vmcnt(0)")
    stamp("G", 14)
if P.get("QLATE"):
    A("s_barrier")
if P.get("PRIO", 0):
    A("s_cmp_ge_u32 %s, 4" % sWave)
    A("s_cbranch_scc1 G_ENTRY")
    A("s_setprio %d" % P["PRIO"])
A.label("G_ENTRY")
A("s_barrier")
cyc(0)
stamp("G")
if NV1 < 8:
    lab = if_layer0()
    for jj in range(NV1, 8):
        A("global_load_dwordx4 %s, v3, %s offset:%d%s" % (v(VR + 4 * jj, 4), pT2, (jj - 4) * 1024, NT))
    A.label(lab)
for t in range(4):
    A("ds_read_b128 %s, %s offset:%d" % (v(QR + 4 * t, 4), v(gQrd), 64 * t))
A("s_waitcnt vmcnt(%d)" % N_AFTER_K)
stamp("G")
S0, S1 = SR, SR + 4
if STAMP == 4:
    A("s_waitcnt lgkmcnt(0)")
    cyc(1)
for t in range(4):
    A("s_waitcnt lgkmcnt(%d)" % ((3 - t) if STAMP != 4 else 15))
    for tau in range(2):
        d = v(SR + 4 * tau, 4)
        A("%s %s, %s, %s, %s" % (MFMA, d, v(KR + 4 * (4 * tau + t), 4), v(QR + 4 * t, 4), "0" if t == 0 else d))
aM, aT, aMc = 136, 137, 138
PR = 140
PM = QR
A("v_max3_f32 %s, %s, %s, %s" % (v(aM), v(S0), v(S0 + 1), v(S0 + 2)))
A("v_max3_f32 %s, %s, %s, %s" % (v(aT), v(S1), v(S1 + 1), v(S1 + 2)))
A("v_max3_f32 %s, %s, %s, %s" % (v(aM), v(aM), v(S0 + 3), v(S1 + 3)))
A("v_max_f32 %s, %s, %s" % (v(aM), v(aM), v(aT)))
cyc(2)
g_allreduce("v_max_f32", aM, aT)
A("v_mul_f32 %s, %s, %s" % (v(aMc), sC, v(aM)))
for q in range(4):
    A("s_mov_b64 exec, %s" % mQ[q])
    A("v_fma_f32 %s, %s, %s, -%s" % (v(PR), v(SR + 2 * q), sC, v(aMc)))
    A("v_fma_f32 %s, %s, %s, -%s" % (v(PR + 1), v(SR + 2 * q + 1), sC, v(aMc)))
A("s_mov_b64 exec, -1")
A("v_exp_f32 %s, %s" % (v(PR), v(PR)))
A("v_exp_f32 %s, %s" % (v(PR + 1), v(PR + 1)))
A("v_cvt_pk_bf16_f32 %s, %s, %s" % (v(PR), v(PR), v(PR + 1)))
cyc(3)
lab0, lab1 = newlabel("VT"), newlabel("VTD")
A("s_cmp_eq_u32 %s, 0" % sL)
A("s_cbranch_scc1 %s" % lab0)
A.label(lab1)
with Cap() as vt:
    A("s_waitcnt vmcnt(%d)" % N_AFTER_V)
    stamp("G")
    for i in (0, 4, 1, 5, 2, 6, 3, 7):
        for p in range(4):
            A("v_perm_b32 %s, %s, %s, %s" % (v(VF + 4 * i + p), v(VR + 4 * (2 * p + 1) + (i >> 1)), v(VR + 4 * (2 * p) + (i >> 1)),
                                             sPermHi if (i & 1) else sPermLo))
OOL.append([lab0 + ":"] + vt.lines + ["v_mov_b32 v%d, 0x3f803f80" % (GS + 28 + i) for i in range(4)] + ["s_branch %s" % lab1])
D0 = 4
DL = 128
MK = 144
ONES = GS + 28


def pm(q, p):
    rot = (4 * (q - p)) % 16
    if rot == 0:
        A("v_and_b32 %s, %s, %s" % (v(PM + 4 * q + p), v(PR), v(MK + q)))
    else:
        A("v_and_b32_dpp %s, %s, %s row_ror:%d%s" % (v(PM + 4 * q + p), v(PR), v(MK + q), rot, DPP))


for p in range(4):
    pm(0, p)
pm(1, 0); pm(1, 1)
A("%s %s, %s, %s, 0" % (MFMA, v(DL, 4), v(ONES, 4), v(PM, 4)))
for q in range(4):
    for a in range(2):
        d = v(D0 + 4 * a, 4)
        A("%s %s, %s, %s, %s" % (MFMA, d, v(VF + 4 * (4 * a + q), 4), v(PM + 4 * q, 4), "0" if q == 0 else d))
        nxt = 4 * q + 2 * a + 6
        for k in (nxt, nxt + 1):
            if k < 16:
                pm(k >> 2, k & 3)
A("v_mov_b32 %s, %s" % (v(aMc + 1), v(DL)))
cyc(4)
A("s_mov_b64 exec, %s" % mQ[0])
A("ds_write_b64 %s, %s" % (v(gMlw), v(aMc, 2)))
A("s_mov_b64 exec, -1")
A("ds_write_b128 %s, %s" % (v(gApw), v(D0, 4)))
A("ds_write_b128 %s, %s offset:1024" % (v(gApw), v(D0 + 4, 4)))
A("s_waitcnt lgkmcnt(0)")
cyc(5)
A("s_barrier")
cyc(6)
cyc_dump(7)

a0, b0, c0 = GS, GS + 4, GS + 8
r0, r1_, r2, r3 = GS + 12, GS + 13, GS + 14, GS + 15


def add_ab():
    for e in range(4):
        A("v_add_f32 %s, %s, %s" % (v(a0 + e), v(a0 + e), v(b0 + e)))


BC = "row_newbcast:0" + DPP
NS_ = P.get("NSETS", 2)
GSETS = [GS, GS + 16, 112][:NS_]
GAP = P.get("GAP", 3)


def add_ab2(a):
    for e in range(4):
        A("v_add_f32 %s, %s, %s" % (v(a + e), v(a + e), v(a + 4 + e)))


def g_treduce_to(a, out):
    A("v_permlane16_swap_b32 %s, %s" % (v(a), v(a + 1)))
    A("v_permlane16_swap_b32 %s, %s" % (v(a + 2), v(a + 3)))
    A("v_add_f32 %s, %s, %s" % (v(a), v(a), v(a + 1)))
    A("v_add_f32 %s, %s, %s" % (v(a + 2), v(a + 2), v(a + 3)))
    A("v_permlane32_swap_b32 %s, %s" % (v(a), v(a + 2)))
    A("v_add_f32 %s, %s, %s" % (v(out), v(a), v(a + 2)))


A("ds_read_u16 %s, %s" % (v(r3), v(gW1x)))
A("s_barrier")
sleep(P.get("DI_O", 0))
stamp("G", 7)


def o_issue(a):
    set_exec(0x0001000100010001)
    A("global_load_dwordx4 %s, %s, %s sc1" % (v(a + 8, 4), v(gOml), pWJ))
    set_exec(-1)
    A("global_load_dwordx4 %s, %s, %s sc1" % (v(a, 4), v(gOg), pWJ))
    A("global_load_dwordx4 %s, %s, %s offset:512 sc1" % (v(a + 4, 4), v(gOg), pWJ))


def o_all(a):
    c = a + 8
    A("v_max_f32 %s, %s, %s" % (v(r0), v(c), v(c + 2)))
    for e in (0, 2, 1, 3):
        A("v_mov_b32_dpp %s, %s %s" % (v(c + e), v(c + e), BC))
    A("v_mov_b32_dpp %s, %s %s" % (v(r0), v(r0), BC))
    g_allreduce("v_max_f32", r0, r1_)
    A("v_sub_f32 %s, %s, %s" % (v(c), v(c), v(r0)))
    A("v_sub_f32 %s, %s, %s" % (v(c + 2), v(c + 2), v(r0)))
    A("v_exp_f32 %s, %s" % (v(c), v(c)))
    A("v_exp_f32 %s, %s" % (v(c + 2), v(c + 2)))
    with Cap() as c1:
        A("v_mul_f32 %s, %s, %s" % (v(r1_), v(c), v(c + 1)))
        A("v_fmac_f32 %s, %s, %s" % (v(r1_), v(c + 2), v(c + 3)))
        g_allreduce("v_add_f32", r1_, r2)
        A("v_rcp_f32 %s, %s" % (v(r1_), v(r1_)))
    with Cap() as c2:
        for e in range(4):
            A("v_mul_f32 %s, %s, %s" % (v(a + e), v(c), v(a + e)))
        for e in range(4):
            A("v_fmac_f32 %s, %s, %s" % (v(a + e), v(c + 2), v(a + 4 + e)))
        g_treduce_to(a, r0)
    for l in interleave(c2.lines, c1.lines):
        A(l)
    A("v_mul_f32 %s, %s, %s" % (v(r0), v(r0), v(r1_)))


fast_poll(o_issue, None, o_all, None, [r0], GS)
stamp("G")
A("v_cvt_pk_bf16_f32 %s, %s, %s" % (v(r0), v(r0), v(r0)))
A("ds_write_b16 %s, %s" % (v(gOlds), v(r0)))
A("s_waitcnt lgkmcnt(0)")
A("s_barrier")

A("v_lshlrev_b32 %s, 16, %s" % (v(r3), v(r3)))
A("s_barrier")
sleep(P["D_W1"])
stamp("G", 8)


def w1_issue(a):
    A("global_load_dwordx4 %s, %s, %s sc1" % (v(a, 4), v(gW1g), pWL))
    A("global_load_dwordx4 %s, %s, %s offset:%d sc1" % (v(a + 4, 4), v(gW1g), pWL, 1024 if P.get("E3L", 1) else 512))


def w1_post(a):
    add_ab2(a)
    g_treduce_to(a, r0)
    A("v_add_f32_dpp %s, %s, %s row_ror:4%s" % (v(r0), v(r0), v(r0), DPP))
    A("v_add_f32_dpp %s, %s, %s row_ror:8%s" % (v(r0), v(r0), v(r0), DPP))


fast_poll(w1_issue, None, w1_post, None, [r0], GS)
stamp("G")
A("v_add_f32 %s, %s, %s" % (v(r0), v(r0), v(r3)))
A("v_cvt_pk_bf16_f32 %s, %s, %s" % (v(r0), v(r0), v(r0)))
A("ds_write_b16 %s, %s" % (v(gW1lds), v(r0)))
A("s_waitcnt lgkmcnt(0)")
A("s_barrier")

lab = if_layer0()
A("s_mul_i32 %s, %s, %d" % (sT0, sHi, 16 * 896))
A("s_add_u32 %s, %s, %d" % (sT0, sT0, E4 - E4C))
A("v_subrev_u32 %s, %s, %s" % (v(r3), sT0, v(gW2g)))
poll(["global_load_dwordx4 %s, %s, %s sc1" % (v(a0, 4), v(r3), pWJ),
      "global_load_dwordx4 %s, %s, %s offset:896 sc1" % (v(b0, 4), v(r3), pWJ)],
     [(a0 + e, b0 + e) for e in range(4)])
add_ab()
g_treduce(a0)
A("v_add_f32_dpp %s, %s, %s row_ror:8%s" % (v(gCs1), v(a0), v(a0), DPP))
A("v_lshlrev_b32 %s, 16, %s" % (v(gB1), v(gB1)))
A("v_lshlrev_b32 %s, 16, %s" % (v(gB2), v(gB2)))
A.label(lab)
k0 = -2 * math.log2(math.e) * math.sqrt(2 / math.pi)
A("v_mov_b32 %s, %s" % (v(r2), f32(k0)))
A("s_barrier")
A("s_cmp_eq_u32 %s, 7" % sWave)
A("s_cbranch_scc1 G_W2_SKIP")
sleep(P.get("DI_W2", 0))
stamp("G", 12)


def w2_issue(a):
    set_exec(0xFFFF)
    A("global_load_dwordx2 %s, %s, %s sc1" % (v(a + 8, 2), v(gW2s), pWJ))
    set_exec(-1)
    A("global_load_dwordx4 %s, %s, %s sc1" % (v(a, 4), v(gW2g), pWJ))
    A("global_load_dwordx4 %s, %s, %s offset:896 sc1" % (v(a + 4, 4), v(gW2g), pWJ))


def w2_mid(a):
    c = a + 8
    for m in (X1, X2, HM, RM):
        A("v_add_f32_dpp %s, %s, %s %s" % (v(c), v(c), v(c), m))
        A("v_add_f32_dpp %s, %s, %s %s" % (v(c + 1), v(c + 1), v(c + 1), m))
    A("v_mul_f32 %s, %s, %s" % (v(c), f32(1 / 512), v(c)))
    A("v_mul_f32 %s, %s, %s" % (v(c + 1), f32(1 / 512), v(c + 1)))
    A("v_fma_f32 %s, -%s, %s, %s" % (v(c + 1), v(c), v(c), v(c + 1)))
    A("v_fmac_f32 %s, 0, %s" % (v(c), v(c + 1)))
    A("v_max_f32 %s, 0, %s" % (v(c + 1), v(c + 1)))
    A("v_add_f32 %s, %s, %s" % (v(c + 2), f32(1e-5), v(c + 1)))
    A("v_rcp_f32 %s, %s" % (v(c + 3), v(c + 2)))
    A("v_mul_f32 %s, %s, %s" % (v(c + 3), v(c + 1), v(c + 3)))
    A("v_add_f32 %s, %s, %s" % (v(c + 3), f32(1e-5), v(c + 3)))
    A("v_mul_f32 %s, %s, %s" % (v(c + 2), v(c + 2), v(c + 3)))
    A("v_rsq_f32 %s, %s" % (v(c + 2), v(c + 2)))
    A("v_mul_f32 %s, %s, %s" % (v(c), v(c), v(c + 2)))
    A("v_readfirstlane_b32 %s, %s" % (sT0, v(c + 2)))
    A("v_readfirstlane_b32 %s, %s" % (sT1, v(c)))
    A("v_fma_f32 %s, -%s, %s, %s" % (v(r3), sT1, v(gCs1), v(gB1)))


def w2_post(a):
    add_ab2(a)
    g_treduce_to(a, r0)
    A("v_add_f32_dpp %s, %s, %s row_ror:8%s" % (v(r0), v(r0), v(r0), DPP))


fast_poll(w2_issue, w2_mid, w2_post, lambda a: A("v_fma_f32 %s, %s, %s, %s" % (v(r0), v(r0), sT0, v(r3))), [r0], GS)
stamp("G")
RX = GS + 24
A("v_mul_f32 %s, %s, %s" % (v(r1_), v(r0), v(r0)))
A("v_fmac_f32 %s, %s, %s" % (v(r2), f32(k0 * 0.044715), v(r1_)))
A("v_mul_f32 %s, %s, %s" % (v(r2), v(r2), v(r0)))
A("v_exp_f32 %s, %s" % (v(r2), v(r2)))
A("v_add_f32 %s, 1.0, %s" % (v(r2), v(r2)))
A("v_rcp_f32 %s, %s" % (v(r2), v(r2)))
A("v_mul_f32 %s, %s, %s" % (v(r0), v(r0), v(r2)))
A("v_cvt_pk_bf16_f32 %s, %s, %s" % (v(r0), v(r0), v(r0)))
A("ds_write_b16 %s, %s" % (v(gW2lds), v(r0)))
A("s_waitcnt lgkmcnt(0)")
A.label("G_W2_SKIP")
A("s_barrier")

A("s_cmp_eq_u32 %s, 0" % sL)
A("s_cbranch_scc1 G_X_GO")
A("s_cmp_lg_u32 %s, 0" % sLo)
A("s_cbranch_scc1 L_EXIT")
A("s_cmp_lg_u32 %s, %s" % (sWave, sJ))
A("s_cbranch_scc1 L_EXIT")
A.label("G_X_GO")


def xpre():
    A("v_lshlrev_b32 %s, 16, %s" % (v(r3), v(r3)))


A("global_load_ushort %s, %s, %s sc1" % (v(RX), v(gXr), pWJ))
A.label("G_RX_CHK")
A("s_waitcnt vmcnt(0)")
A("v_lshlrev_b32 %s, 16, %s" % (v(r3), v(RX)))
A("v_cmp_u_f32 vcc, %s, %s" % (v(r3), v(r3)))
A("s_cbranch_vccnz G_RX_RETRY")
A.label("G_RX_OK")
OOL.append(["G_RX_RETRY:", "global_load_ushort %s, %s, %s sc1" % (v(RX), v(gXr), pWJ),
            "s_sub_u32 %s, %s, 1" % (sBud, sBud), "s_cbranch_scc0 G_RX_CHK", "s_mov_b32 %s, 0" % sBud, "s_branch G_RX_OK"])
A("v_add_f32 %s, %s, %s" % (v(r3), v(r3), v(gB2)))
A("s_barrier")
sleep(P["D_X"])
stamp("G", 13)


def x_issue(a):
    A("global_load_dwordx4 %s, %s, %s sc1" % (v(a, 4), v(gXg), pWL))
    A("global_load_dwordx4 %s, %s, %s offset:256 sc1" % (v(a + 4, 4), v(gXg), pWL))


def x_post(a):
    add_ab2(a)
    g_treduce_to(a, r0)


fast_poll(x_issue, None, x_post, None, [r0], GS)
stamp("G")
A("v_add_f32 %s, %s, %s" % (v(r0), v(r0), v(r3)))
A("v_cvt_pk_bf16_f32 %s, %s, %s" % (v(r0), v(r0), v(r0)))
A("s_cmp_lg_u32 %s, 0" % sL)
A("s_cbranch_scc1 G_FINAL")
A("ds_write_b16 %s, %s" % (v(gXlds), v(r0)))
A("s_mov_b32 %s, 1" % sL)
padd(pWL, pWL, LSTR)
padd(pWJ, pWJ, LSTR)
A("s_waitcnt lgkmcnt(0)")
A("s_barrier")
A("s_waitcnt vmcnt(0)")
A("s_branch G_ENTRY")
A.label("G_FINAL")
sleep(P.get("ENDSLEEP", 0))
if "ECHO" in P:
    A("s_memrealtime s[82:83]")
    A("s_sub_u32 s80, s80, s78")
    A("s_waitcnt lgkmcnt(0)")
    A("s_add_u32 s80, s80, s82")
    A.label("ECHO_SPIN")
    A("s_memrealtime s[82:83]")
    A("s_waitcnt lgkmcnt(0)")
    A("s_cmp_lt_u32 s82, s80")
    A("s_cbranch_scc1 ECHO_SPIN")
A("global_store_short %s, %s, %s" % (v(gOut), v(r0), pOUT))
A.label("L_EXIT")
stamp_dump()
A.label("L_END")
A("s_endpgm")
for blk in OOL:
    for l in blk:
        A(l)
A("s_endpgm")

A.fix_hazards()

hdr = open("cdna_kernels/%s.s.ref" % NAME).read().split("; Override launch")[0]
out = hdr + """; @launch grid=(256,1,1) block=(768,1,1) lds=%d
.amdgcn_target "amdgcn-amd-amdhsa--gfx950"
.text
.globl %s_kernel
.p2align 8
.type %s_kernel,@function
%s_kernel:
%s
    ; pad the code section so that the 12 KB code prefetch stays inside it
    .fill ((12288 + 256 - (. - %s_kernel)) / 4), 4, 0xbf810000
.section .rodata,"a"
.p2align 6
.amdhsa_kernel %s_kernel
  .amdhsa_next_free_vgpr 168
  .amdhsa_next_free_sgpr 96
  .amdhsa_accum_offset 168
  .amdhsa_group_segment_fixed_size 0
  .amdhsa_kernarg_size 104
  .amdhsa_user_sgpr_count 2
  .amdhsa_user_sgpr_kernarg_segment_ptr 1
  .amdhsa_system_sgpr_workgroup_id_x 1
.end_amdhsa_kernel
""" % (LDS_TOTAL, NAME, NAME, NAME, A.text(), NAME, NAME)
open(sys.argv[1], "w").write(out)
print("wrote", sys.argv[1], "instructions:", sum(1 for x in A.ins if not x.label), "LDS", LDS_TOTAL)
```

```python
import sys, math, struct, os
from asmlib import Asm

NAME = "interleave_layers__sliding_block_cached__mixer_channel_mlp__decode"

P = dict(B0POS=2, W=64, NV1=8, D_A0=60, NSL=6, D_O=0, D_W1=10, D_W2=0, D_X=9, D_A=0, NT="nt", STAMP=0, FORCE_SAFE=0, PREF=1)
for a in sys.argv[2:]:
    k, v_ = a.split("=")
    P[k] = int(v_) if v_.lstrip("-").isdigit() else v_


def f32(x):
    return "0x%08x" % struct.unpack("<I", struct.pack("<f", x))[0]


LSTR = 0x200000
JSTR = 196608
E1, E1S, E4C = 0, 40960, 45056
E1T = 0x200000 * 2
REC = 0x1D8000
E2, E4, E4R, E2S, E4S = 65536, 131072, 188416, 61440, 193536
E3, E5 = 0x180000, 0x1C0000
SENT = 0x7F817F81
LW_Q, LW_O, LW_2, LW_1 = 0, 16384, 32768, 61440
XOP = 68608
QOP = XOP + 5 * 272
OOP = QOP + 4 * 272
X1OP = OOP + 4 * 272
HOP = X1OP + 5 * 80
ML = HOP + 448
FLG = ML + 256
ST0 = FLG + 16
NONCE = ST0 + 32
AP = (NONCE + 16 + 1023) // 1024 * 1024
LDS_TOTAL = AP + 16384
assert all(x % 16 == 0 for x in (XOP, QOP, OOP, X1OP, HOP, ML))

sWave, sJ, sS, sHi, sLo, sR1, sC1, sL, sBud = "s3", "s4", "s5", "s6", "s7", "s8", "s9", "s10", "s11"
sT0, sT1, sT2, sT3 = "s12", "s13", "s14", "s15"
pX, pK, pV, pWQ, pWO, pW1, pB1, pW2, pB2, pOUT, pDBG, pWS = (
    "s[16:17]", "s[18:19]", "s[20:21]", "s[22:23]", "s[24:25]", "s[28:29]", "s[30:31]", "s[32:33]", "s[34:35]",
    "s[36:37]", "s[38:39]", "s[40:41]")
pWL = "s[42:43]"
sFast = "s44"
sU = "s45"
mQ = ["s[50:51]", "s[52:53]", "s[54:55]", "s[56:57]"]
sPermLo, sPermHi = "s58", "s59"
sC = "s60"
pT = "s[62:63]"
pT2 = "s[64:65]"
sXcc = "s66"
sK0, sK1, sK2 = "s67", "s68", "s69"
mT = "s[70:71]"
pWJ = "s[72:73]"
pPC = "s[46:47]"
pN = "s[48:49]"

A = Asm()
NT = (" " + P["NT"]) if P["NT"] else ""
STAMP = P["STAMP"]


def v(n, cnt=1):
    return "v%d" % n if cnt == 1 else "v[%d:%d]" % (n, n + cnt - 1)


def smov64(pair, val):
    lo = int(pair[2:].split(":")[0])
    A("s_mov_b32 s%d, 0x%08x" % (lo, val & 0xFFFFFFFF))
    A("s_mov_b32 s%d, 0x%08x" % (lo + 1, val >> 32))


def exec_lines(val):
    if val == -1:
        return ["s_mov_b64 exec, -1"]
    if 0 <= val <= 64:
        return ["s_mov_b64 exec, %d" % val]
    return ["s_mov_b32 exec_lo, 0x%08x" % (val & 0xFFFFFFFF), "s_mov_b32 exec_hi, 0x%08x" % (val >> 32)]


def set_exec(val):
    for l in exec_lines(val):
        A(l)


def padd(dst, src, soff):
    d = int(dst[2:].split(":")[0]); s = int(src[2:].split(":")[0])
    A("s_add_u32 s%d, s%d, %s" % (d, s, soff))
    A("s_addc_u32 s%d, s%d, 0" % (d + 1, s + 1))


def sexpr(dst, terms, const=0, tmp=sT3):
    first = True
    for (r, m) in terms:
        t = dst if first else tmp
        if m == 1:
            if first:
                A("s_mov_b32 %s, %s" % (dst, r))
            else:
                A("s_add_u32 %s, %s, %s" % (dst, dst, r))
            first = False
            continue
        if m & (m - 1) == 0:
            A("s_lshl_b32 %s, %s, %d" % (t, r, m.bit_length() - 1))
        else:
            A("s_mul_i32 %s, %s, %d" % (t, r, m))
        if not first:
            A("s_add_u32 %s, %s, %s" % (dst, dst, t))
        first = False
    if first:
        A("s_mov_b32 %s, %d" % (dst, const))
    elif const:
        A("s_add_u32 %s, %s, %d" % (dst, dst, const))


def vexpr(dst, terms, sreg=None, const=0):
    first = True
    for (r, m) in terms:
        if first:
            if m == 1:
                A("v_mov_b32 %s, %s" % (v(dst), v(r)))
            elif m & (m - 1) == 0:
                A("v_lshlrev_b32 %s, %d, %s" % (v(dst), m.bit_length() - 1, v(r)))
            else:
                A("v_mul_u32_u24 %s, %d, %s" % (v(dst), m, v(r)))
            first = False
        else:
            assert m & (m - 1) == 0, "non power of two term must come first"
            A("v_lshl_add_u32 %s, %s, %d, %s" % (v(dst), v(r), m.bit_length() - 1, v(dst)))
    if sreg:
        A("v_add_u32 %s, %s, %s" % (v(dst), sreg, v(dst)))
    if const:
        A("v_add_u32 %s, %d, %s" % (v(dst), const, v(dst)))


DPP = " row_mask:0xf bank_mask:0xf"
X1 = "quad_perm:[1,0,3,2]" + DPP
X2 = "quad_perm:[2,3,0,1]" + DPP
HM = "row_half_mirror" + DPP
RM = "row_mirror" + DPP
_lab = [0]


def newlabel(p="L"):
    _lab[0] += 1
    return "%s_%d" % (p, _lab[0])


def sleep(n):
    while n > 0:
        k = min(n, 127)
        A("s_sleep %d" % k)
        n -= k


def g_treduce(a):
    A("v_permlane16_swap_b32 %s, %s" % (v(a), v(a + 1)))
    A("v_permlane16_swap_b32 %s, %s" % (v(a + 2), v(a + 3)))
    A("v_add_f32 %s, %s, %s" % (v(a), v(a), v(a + 1)))
    A("v_add_f32 %s, %s, %s" % (v(a + 2), v(a + 2), v(a + 3)))
    A("v_permlane32_swap_b32 %s, %s" % (v(a), v(a + 2)))
    A("v_add_f32 %s, %s, %s" % (v(a), v(a), v(a + 2)))


def g_allreduce(op, r, t):
    for sw in ("v_permlane16_swap_b32", "v_permlane32_swap_b32"):
        A("v_mov_b32 %s, %s" % (v(t), v(r)))
        A("%s %s, %s" % (sw, v(r), v(t)))
        A("%s %s, %s, %s" % (op, v(r), v(r), v(t)))


def budget_loop(top):
    A("s_sub_u32 %s, %s, 1" % (sBud, sBud))
    A("s_cbranch_scc0 %s" % top)
    A("s_mov_b32 %s, 0" % sBud)


def poll(loads, check_pairs, pre=None, nap=0):
    top, done = newlabel("POLL"), newlabel("PDONE")
    A.label(top)
    for l in loads:
        A(l)
    A("s_waitcnt vmcnt(0)")
    if pre:
        pre()
    first = True
    for (a, b) in check_pairs:
        if first:
            A("v_cmp_u_f32 vcc, %s, %s" % (v(a), v(b)))
            first = False
        else:
            A("v_cmp_u_f32 %s, %s, %s" % (mT, v(a), v(b)))
            A("s_or_b64 vcc, vcc, %s" % mT)
    A("s_cbranch_vccz %s" % done)
    sleep(nap)
    budget_loop(top)
    A.label(done)


def half(loads):
    import re
    if P.get("HALF") == 1:
        m = re.search(r"v\[(\d+):(\d+)\]", loads[1])
        for r_ in range(int(m.group(1)), int(m.group(2)) + 1):
            A("v_mov_b32 v%d, 0" % r_)
        return loads[:1]
    if P.get("HALF") == 2:
        out = []
        for l in loads:
            m = re.search(r"v\[(\d+):(\d+)\]", l)
            lo = int(m.group(1))
            A("v_mov_b32 v%d, 0" % (lo + 2)); A("v_mov_b32 v%d, 0" % (lo + 3))
            out.append(l.replace("dwordx4", "dwordx2").replace(m.group(0), "v[%d:%d]" % (lo, lo + 1)))
        return out
    return loads


def canary(load, pairs, mask, nap=0):
    set_exec(mask)
    poll([load], pairs, nap=nap)
    set_exec(-1)


def bulk(loads, mid, post, res):
    top, again, done = newlabel("BK"), newlabel("BKA"), newlabel("BKD")
    loads = half(loads)
    for l in loads:
        A(l)
    if mid:
        mid()
    A.label(top)
    A("s_waitcnt vmcnt(0)")
    post()
    A("v_cmp_u_f32 vcc, %s, %s" % (v(res[0]), v(res[-1])))
    A("s_cbranch_vccz %s" % done)
    for l in loads:
        A(l)
    budget_loop(top)
    A("s_waitcnt vmcnt(0)")
    A.label(done)


def round1(small, mask, loads, mid, post, res):
    top, done = newlabel("RD"), newlabel("RDD")
    loads = half(loads)
    A.label(top)
    set_exec(mask)
    A(small)
    set_exec(-1)
    for l in loads:
        A(l)
    A("s_waitcnt vmcnt(%d)" % len(loads))
    mid()
    A("s_waitcnt vmcnt(0)")
    post()
    A("v_cmp_u_f32 vcc, %s, %s" % (v(res[0]), v(res[-1])))
    A("s_cbranch_vccz %s" % done)
    budget_loop(top)
    A.label(done)


def pipe_poll(issue, n_small, n_bulk, mid, post, res, sets, gap):
    n = n_small + n_bulk
    k = len(sets)
    top, done = newlabel("PP"), newlabel("PPD")
    for i in range(k - 1):
        issue(sets[i])
        sleep(gap)
    A.label(top)
    for i in range(k):
        issue(sets[(i + k - 1) % k])
        if n_small:
            A("s_waitcnt vmcnt(%d)" % ((k - 1) * n + n_bulk))
            mid(sets[i])
        A("s_waitcnt vmcnt(%d)" % ((k - 1) * n))
        post(sets[i])
        A("v_cmp_u_f32 vcc, %s, %s" % (v(res[0]), v(res[-1])))
        A("s_cbranch_vccz %s" % done)
    budget_loop(top)
    A.label(done)


OOL = []


def interleave(c1, c2):
    out, i2 = [], 0
    for k, x in enumerate(c1):
        out.append(x)
        want = (k + 1) * len(c2) // max(1, len(c1) - 4)
        while i2 < min(want, len(c2)):
            out.append(c2[i2]); i2 += 1
    return out + c2[i2:]


class Cap:
    def __enter__(self):
        self.n = len(A.ins); return self

    def __exit__(self, *a):
        self.lines = [x.text for x in A.ins[self.n:]]
        del A.ins[self.n:]


def fast_poll_full(issue, mid, post, fin, res, a):
    top, again, done = newlabel("FP"), newlabel("FPR"), newlabel("FPD")
    A.label(top)
    issue(a)
    A("s_waitcnt vmcnt(0)")
    with Cap() as c2:
        post(a)
    if mid:
        with Cap() as c1:
            mid(a)
        for l in interleave(c1.lines, c2.lines):
            A(l)
    else:
        for l in c2.lines:
            A(l)
    if fin:
        fin(a)
    A("v_cmp_u_f32 vcc, %s, %s" % (v(res[0]), v(res[-1])))
    A("s_cbranch_vccnz %s" % again)
    A.label(done)
    OOL.append([again + ":", "s_sub_u32 %s, %s, 1" % (sBud, sBud), "s_cbranch_scc0 %s" % top,
                "s_mov_b32 %s, 0" % sBud, "s_branch %s" % done])


def fast_poll(issue, mid, post, fin, res, a):
    if not P.get("MPOLL", 1):
        return fast_poll_full(issue, mid, post, fin, res, a)
    with Cap() as ci:
        issue(a)
    loads = [l for l in ci.lines if l.startswith("global_load")]
    small = len(loads) == 3
    chk, again, done = newlabel("MPC"), newlabel("MPR"), newlabel("MPD")
    if small:
        n = 4 if "dwordx4" in loads[0] else 2
        for e in range(n):
            A("v_mov_b32 %s, 0" % v(a + 8 + e))
    for l in ci.lines:
        A(l)
    A.label(chk)
    A("s_waitcnt vmcnt(0)")
    t = a + 20
    A("v_add_f32 %s, %s, %s" % (v(t), v(a), v(a + 1)))
    A("v_add_f32 %s, %s, %s" % (v(t + 1), v(a + 2), v(a + 3)))
    A("v_add_f32 %s, %s, %s" % (v(t + 2), v(a + 4), v(a + 5)))
    A("v_add_f32 %s, %s, %s" % (v(t + 3), v(a + 6), v(a + 7)))
    if small:
        A("v_add_f32 %s, %s, %s" % (v(t), v(t), v(a + 8)))
        A("v_add_f32 %s, %s, %s" % (v(t + 1), v(t + 1), v(a + 9)))
        if n == 4:
            A("v_add_f32 %s, %s, %s" % (v(t + 2), v(t + 2), v(a + 10)))
            A("v_add_f32 %s, %s, %s" % (v(t + 3), v(t + 3), v(a + 11)))
    A("v_add_f32 %s, %s, %s" % (v(t), v(t), v(t + 1)))
    A("v_add_f32 %s, %s, %s" % (v(t + 2), v(t + 2), v(t + 3)))
    A("v_cmp_u_f32 vcc, %s, %s" % (v(t), v(t + 2)))
    A("s_cbranch_vccnz %s" % again)
    A.label(done)
    with Cap() as c2:
        post(a)
    if mid:
        with Cap() as c1:
            mid(a)
        for l in interleave(c1.lines, c2.lines):
            A(l)
    else:
        for l in c2.lines:
            A(l)
    if fin:
        fin(a)
    blk = [again + ":"]
    if small:
        em = [l for l in ci.lines if l.startswith("s_mov") and "-1" not in l]
        blk += em + ["s_and_b64 exec, exec, vcc", loads[0]]
    blk += ["s_mov_b64 exec, vcc"] + loads[-2:] + ["s_mov_b64 exec, -1",
            "s_sub_u32 %s, %s, 1" % (sBud, sBud), "s_cbranch_scc0 %s" % chk,
            "s_mov_b32 %s, 0" % sBud, "s_waitcnt vmcnt(0)", "s_branch %s" % done]
    OOL.append(blk)


def store_intra(insn):
    ls, le = newlabel("SAFE"), newlabel("SEND")
    A("s_cmp_eq_u32 %s, 0" % sFast)
    A("s_cbranch_scc1 %s" % ls)
    for i in insn:
        A(i)
    A.label(le)
    OOL.append([ls + ":"] + [i + (" sc1" if i.startswith("global_store") else "") for i in insn] + ["s_branch %s" % le])


_st = {"G": 0, "S": 0}


def stamp(kind, idx=None):
    if idx is None:
        n = _st[kind]; _st[kind] += 1
    else:
        n = idx
    if "ECHO" in P and kind == "G" and P["ECHO"] % 100 == n:
        lab = newlabel("ECHO")
        A("s_cmp_lg_u32 %s, %d" % (sL, P["ECHO"] // 100))
        A("s_cbranch_scc1 %s" % lab)
        A("s_waitcnt lgkmcnt(0)")
        A("s_memrealtime s[80:81]")
        A("s_waitcnt lgkmcnt(0)")
        A.label(lab)
    if not STAMP:
        return
    if STAMP == 2 and not (kind == "G" and n in (2, 6)):
        return
    if STAMP == 4:
        return
    if STAMP == 3:
        A("s_lshl_b32 s76, %s, 4" % sL)
        A("s_add_u32 m0, s76, %d" % n)
        A("s_nop 0")
        A("v_writelane_b32 v15, %s, m0" % sBud)
        return
    A("s_waitcnt lgkmcnt(0)")
    A("s_memrealtime s[74:75]")
    A("s_lshl_b32 s76, %s, 4" % sL)
    A("s_add_u32 m0, s76, %d" % n)
    A("s_waitcnt lgkmcnt(0)")
    A("v_writelane_b32 v15, s74, m0")


def cyc(k):
    if STAMP == 4:
        A("s_memtime s[%d:%d]" % (80 + 2 * k, 81 + 2 * k))


def cyc_dump(n):
    if STAMP == 4:
        A("s_waitcnt lgkmcnt(0)")
        for k in range(n):
            A("v_writelane_b32 v15, s%d, %d" % (80 + 2 * k, 32 + k))


def stamp_init():
    if STAMP:
        A("v_mov_b32 v15, 0")
        A("v_writelane_b32 v15, s78, 15")


def stamp_dump():
    if not STAMP:
        return
    A("s_mul_i32 s76, s2, 12")
    A("s_add_u32 s76, s76, %s" % sWave)
    A("s_lshl_b32 s76, s76, 8")
    A("s_add_u32 s76, s76, 0x800000")
    A("v_lshlrev_b32 v13, 2, v0")
    A("v_add_u32 v13, s76, v13")
    A("global_store_dword v13, v15, %s" % pWS)


def if_layer0():
    lab = newlabel("NOTL0")
    A("s_cmp_lg_u32 %s, 0" % sL)
    A("s_cbranch_scc1 %s" % lab)
    return lab


def ssync(k):
    top = newlabel("SSY")
    A("v_mov_b32 v5, %d" % (FLG + 4 + 4 * k))
    A("v_mov_b32 v6, 1")
    set_exec(1)
    A("ds_add_u32 v5, v6")
    set_exec(-1)
    A.label(top)
    A("ds_read_b32 v6, v5")
    A("s_waitcnt lgkmcnt(0)")
    A("v_readfirstlane_b32 %s, v6" % sT0)
    A("s_cmp_eq_u32 %s, 4" % sT0)
    done = newlabel("SSD")
    A("s_cbranch_scc1 %s" % done)
    budget_loop(top)
    A.label(done)


MFMA = "v_mfma_f32_16x16x32_bf16"
A("s_getpc_b64 %s" % pPC)
A("s_cmp_ge_u32 s2, 256")
A("s_cbranch_scc1 L_END")
if STAMP or "ECHO" in P:
    A("s_memrealtime s[78:79]")
A("s_load_dwordx16 s[16:31], s[0:1], 0")
A("s_load_dwordx8 s[32:39], s[0:1], 64")
A("s_load_dwordx2 s[40:41], s[0:1], 96")
if P["PREF"]:
    A("v_lshlrev_b32 v3, 4, v0")
    A("global_load_dwordx4 v[140:143], v3, %s offset:-4" % pPC)
A("v_lshrrev_b32 v1, 6, v0")
A("v_and_b32 v0, 63, v0")
A("v_readfirstlane_b32 %s, v1" % sWave)
A("s_and_b32 %s, s2, 7" % sJ)
A("s_lshr_b32 %s, s2, 3" % sS)
A("s_lshr_b32 %s, s2, 6" % sHi)
A("s_and_b32 %s, %s, 7" % (sLo, sS))
A("s_lshr_b32 %s, s2, 4" % sR1)
A("s_and_b32 %s, %s, 1" % (sC1, sS))
A("s_mov_b32 %s, 0" % sL)
A("s_mov_b32 %s, 100000" % sBud)
A("v_and_b32 v1, 15, v0")
A("v_lshrrev_b32 v2, 4, v0")
A("v_lshlrev_b32 v3, 4, v0")
A("s_mov_b32 %s, %s" % (sU, sWave))
A("s_sub_u32 %s, %s, 4" % (sWave, sWave))
A("s_cbranch_scc0 L_G")

WQ, WO, W1R, W2R, XR, DR, SS = 16, 32, 48, 56, 84, 112, 120
(sXa, sXb, sOrd, sX1a, sX1b, sHrd, sE1w, sE1sw, sAg, sAst, sQw, sCq0, sCq1, sCrd, sMlrd, sE2w, sE3w, sE4w, sE4sw, sE4rw, sE5w,
 sTr, sClr, sTr1) = range(144, 168)
SN = 8
sCsP = 139
sDma = 138
X0 = 132
ga, gb, gc = SS, SS + 4, SS + 8
STM = 0x0018001400120011
A("s_add_u32 %s, %s, 8" % (sWave, sU))
A("v_mov_b32 v4, %d" % FLG)
A("v_mov_b32 v6, 0")
A("v_mov_b32 v7, 0")
A("ds_write_b64 v4, v[6:7]")
A("ds_write_b64 v4, v[6:7] offset:8")
for i in range(4):
    A("v_mov_b32 %s, 0x%08x" % (v(SN + i), SENT))
A("s_and_b32 %s, %s, 1" % (sK0, sU))
A("s_lshr_b32 %s, %s, 1" % (sK1, sU))
sexpr(sT0, [(sS, 6144), (sU, 1536)])
A("v_add_u32 v7, %s, v3" % sT0)
sexpr(sT0, [("s2", 1280), (sK0, LSTR), (sK1, 640)], E3)
A("v_add_u32 v12, %s, v3" % sT0)
A("s_mul_i32 %s, %s, %d" % (sT0, sJ, JSTR))
A("v_lshrrev_b32 v13, 3, v0")
A("v_and_b32 v14, 7, v0")
vexpr(SS, [(13, 8192), (14, 16)])
sexpr(sT1, [(sHi, 128 * 8192), (sU, 32 * 8192), (sJ, 1024), (sLo, 128)])
sexpr(sT2, [(sU, 1024)])
A("v_add_u32 %s, %s, v3" % (v(SS + 1), sT2))
A("s_waitcnt lgkmcnt(0)")
padd(pWJ, pWS, sT0)
padd(pT, pWQ, sT1)
A("v_mov_b32 v4, 0")
A("s_or_b32 %s, s2, %s" % (sT0, sU))
A("s_cbranch_scc1 S_NONONCE")
A("s_memrealtime %s" % pN)
A("s_waitcnt lgkmcnt(0)")
A("s_or_b32 s48, s48, 1")
A("v_mov_b32 %s, s49" % v(SS + 3))
A("v_mov_b32 %s, s48" % v(SS + 2))
set_exec(1)
A("global_store_dwordx2 v4, %s, %s sc1" % (v(SS + 2, 2), pDBG))
set_exec(-1)
A.label("S_NONONCE")
def nonce_fetch():
    A("s_cmp_lg_u32 %s, 3" % sU)
    A("s_cbranch_scc1 S_NP_SKIP")
    A("v_mov_b32 v4, 0")
    sleep(P.get("D_N", 0))
    A.label("S_NP")
    A("global_load_dwordx2 v[6:7], v4, %s sc1" % pDBG)
    A("s_waitcnt vmcnt(0)")
    A("v_cmp_eq_u32 vcc, 0, v6")
    A("s_cbranch_vccz S_NP_DONE")
    A("s_sleep %d" % P.get("NSL", 2))
    budget_loop("S_NP")
    A.label("S_NP_DONE")
    A("v_mov_b32 v5, %d" % NONCE)
    A("ds_write_b64 v5, v[6:7]")
    A("s_waitcnt lgkmcnt(0)")
    if P.get("NLATE"):
        stamp("S", 10)
    A.label("S_NP_SKIP")


if not P.get("NLATE"):
    A("v_mov_b32 %s, v7" % v(SS + 4))
    nonce_fetch()
    A("v_mov_b32 v7, %s" % v(SS + 4))
A("global_load_dwordx4 %s, %s, %s%s" % (v(X0, 4), v(SS + 1), pX, NT))
A("s_lshl_b32 %s, %s, 12" % (sT1, sU))
for i in range(4):
    A("s_add_u32 m0, %s, %d" % (sT1, LW_Q + 1024 * i))
    A("global_load_lds_dwordx4 %s, %s%s" % (v(SS), pT, NT))
    if i < 3:
        padd(pT, pT, 8 * 8192)
if P.get("NOCLR"):
    set_exec(1)
A("global_store_dwordx4 v7, %s, %s sc1" % (v(SN, 4), pWJ))
set_exec(1 if P.get("NOCLR") else 0xFFFFFFFF)
A("global_store_dwordx4 v7, %s, %s offset:1024 sc1" % (v(SN, 4), pWJ))
set_exec(1 if P.get("NOCLR") else 0xFFFFFFFFFF)
A("global_store_dwordx4 v12, %s, %s sc1" % (v(SN, 4), pWS))
set_exec(-1)
A("s_barrier")
stamp_init()
stamp("S", 9)
if P.get("NLATE"):
    nonce_fetch()
A("s_getreg_b32 %s, hwreg(HW_REG_XCC_ID)" % sXcc)
A("s_and_b32 %s, %s, 7" % (sXcc, sXcc))
A("s_mov_b32 s42, s40")
A("s_mov_b32 s43, s41")
A("s_mov_b32 %s, 0" % sFast)
sexpr(sT0, [(sS, 6144), (sU, 1536)])
A("v_add_u32 %s, %s, v3" % (v(sClr), sT0))
A("v_mov_b32 v12, 0x3f803f80")
vexpr(13, [(0, 4)], None, XOP + 4 * 272)
A("ds_write_b32 v13, v12")
vexpr(13, [(1, 4)], None, X1OP + 4 * 80)
A("ds_write_b32 v13, v12")
A("v_lshrrev_b32 v12, 2, v1")
A("v_min_u32 v13, 4, v1")
A("v_and_b32 v14, 3, v1")
vexpr(sXa, [(12, 272), (2, 16)], None, XOP)
sexpr(sT0, [(sU, 64)], XOP)
vexpr(sXb, [(13, 272), (2, 16)], sT0)
vexpr(sOrd, [(14 if P.get("WIDE", 0) else 12, 272), (2, 16)], None, OOP)
vexpr(sX1a, [(12, 80), (2, 16)], None, X1OP)
vexpr(sX1b, [(13, 80), (2, 16)], None, X1OP)
vexpr(sHrd, [(2, 16)], None, HOP)
sexpr(sT0, [(sHi, 2048), (sLo, 256), (sU, 64)], E1)
vexpr(sE1w, [(2, 8192), (1, 4)], sT0)
vexpr(SS + 3, [(2, 128)])
A("v_lshlrev_b32 %s, 2, v12" % v(SS + 4))
A("v_sub_u32 %s, %s, %s" % (v(SS + 3), v(SS + 3), v(SS + 4)))
sexpr(sT0, [(sLo, 512), (sHi, 32), (sU, 8)], E1S + 4)
A("v_add_u32 %s, %s, %s" % (v(sE1sw), sT0, v(SS + 3)))
sexpr(sT0, [(sR1, 8)], E4S + 4)
A("v_add_u32 %s, %s, %s" % (v(sE4sw), sT0, v(SS + 3)))
sexpr(sT0, [(sR1, 64)], E4R)
vexpr(sE4rw, [(14, 1024), (2, 16)], sT0)
A("v_and_b32 %s, 31, v0" % v(SS + 3))
A("v_lshrrev_b32 %s, 5, v0" % v(SS + 4))
sexpr(sT0, [(sHi, 8192), (sU, 512)], E1)
vexpr(sAg, [(SS + 4, 4096), (SS + 3, 16)], sT0)
sexpr(sT0, [(sLo, 512), (sHi, 128)], E1S)
vexpr(sAst, [(1, 8)], sT0)
sexpr(sT0, [(sU, 272)], QOP)
vexpr(sQw, [(SS + 3, 8), (SS + 4, 4)], sT0)
A("v_bfe_u32 %s, v0, 4, 1" % v(SS + 5))
A("v_bfe_u32 %s, v0, 2, 2" % v(SS + 6))
A("v_and_b32 %s, 3, v0" % v(SS + 7))
sexpr(sT0, [(sU, 16)], AP)
vexpr(sCrd, [(SS + 4, 8192), (SS + 5, 1024), (SS + 6, 256), (SS + 7, 64)], sT0)
sexpr(sT0, [(sU, 64)], ML)
vexpr(sMlrd, [(SS + 4, 32)], sT0)
sexpr(sT0, [(sU, 32 * 512), (sS, 512)], E2)
vexpr(sE2w, [(0, 8)], sT0)
sexpr(sC, [(sU, 256), (sS, 8)], E2S)
if P.get("E3L", 1):
    sexpr(sT0, [(sLo, 32768), (sK1, 16384), (sJ, 256), (sHi, 64), (sK0, 8192)], E3)
    vexpr(sE3w, [(2, 2048), (1, 4)], sT0)
else:
    sexpr(sT0, [(sLo, 32768), (sK1, 16384), (sJ, 2048), (sHi, 512), (sK0, 256)], E3)
    vexpr(sE3w, [(0, 4)], sT0)
sexpr(sT0, [(sR1, 896), (sC1, 448), (sU, 128)], E4)
vexpr(sE4w, [(2, 16 * 896), (1, 4)], sT0)
sexpr(sT0, [("s2", 256), (sU, 64)], E5)
if P.get("WIDE", 0):
    vexpr(sE5w, [(2, 16)], sT0)
else:
    vexpr(sE5w, [(1, 4)], sT0)
A("v_lshl_add_u32 %s, v2, 3, v12" % v(SS + 3))
sexpr(sT0, [(sU, 32)])
vexpr(sTr, [(SS + 3, 128), (14, 8)], sT0)
sexpr(sT0, [(sU, 64)])
vexpr(sTr1, [(SS + 3, 224), (14, 8)], sT0)
stamp("S", 11)
A("s_waitcnt vmcnt(0)")
stamp("S", 12)
sexpr(sT0, [(sU, 272)], XOP)
vexpr(4, [(1, 16)], sT0)
A("s_lshl_b32 %s, %s, 4" % (sT0, sHi))
A("s_mov_b32 %s, 0xffff" % sT2)
A("s_mov_b32 %s, 0" % sT3)
A("s_lshl_b64 exec, s[14:15], %s" % sT0)
A("ds_write_b128 v4, %s" % v(X0, 4))
set_exec(-1)
for i in range(4):
    A("v_lshlrev_b32 %s, 16, %s" % (v(SS + 2 * i), v(X0 + i)))
    A("v_and_b32 %s, 0xffff0000, %s" % (v(SS + 2 * i + 1), v(X0 + i)))
A("v_add_f32 v4, %s, %s" % (v(SS), v(SS + 1)))
A("v_mul_f32 v5, %s, %s" % (v(SS), v(SS)))
A("v_fmac_f32 v5, %s, %s" % (v(SS + 1), v(SS + 1)))
for i in range(2, 8):
    A("v_add_f32 v4, v4, %s" % v(SS + i))
    A("v_fmac_f32 v5, %s, %s" % (v(SS + i), v(SS + i)))
for m in (X1, X2, HM, RM):
    A("v_add_f32_dpp v4, v4, v4 %s" % m)
    A("v_add_f32_dpp v5, v5, v5 %s" % m)
g_allreduce("v_add_f32", 4, 6)
g_allreduce("v_add_f32", 5, 6)
A("v_mul_f32 v4, %s, v4" % f32(1 / 512))
A("v_mul_f32 v5, %s, v5" % f32(1 / 512))
A("v_fma_f32 v5, -v4, v4, v5")
A("v_max_f32 v5, 0, v5")
A("v_add_f32 v5, %s, v5" % f32(1e-5))
A("v_rsq_f32 v5, v5")
sexpr(sT0, [(sU, 8)], ST0)
A("v_mov_b32 v6, %s" % sT0)
A("ds_write_b64 v6, v[4:5]")
A("s_waitcnt lgkmcnt(0)")
ssync(0)
stamp("S", 0)
for t in range(4):
    A("ds_read_b128 %s, %s offset:%d" % (v(XR + 4 * t, 4), v(sXa), 64 * t))
for t in range(4):
    for hh in range(2):
        A("ds_read_b64_tr_b16 %s, %s offset:%d" % (v(WQ + 4 * t + 2 * hh, 2), v(sTr), LW_Q + (32 * t + 4 * hh) * 128))
vexpr(4, [(2, 8)], None, ST0)
A("ds_read_b64 v[6:7], v4")
A("v_mov_b32 v4, %d" % NONCE)
A("ds_read_b64 v[12:13], v4")
for i in range(4):
    A("v_mov_b32 %s, 0x3f803f80" % v(XR + 16 + i))
A("s_waitcnt lgkmcnt(0)")
for t in range(4):
    A("%s %s, %s, %s, %s" % (MFMA, v(DR, 4), v(XR + 4 * t, 4), v(WQ + 4 * t, 4), "0" if t == 0 else v(DR, 4)))
    A("%s %s, %s, %s, %s" % (MFMA, v(DR + 4, 4), v(XR + 16, 4), v(WQ + 4 * t, 4), "0" if t == 0 else v(DR + 4, 4)))
A("v_fma_f32 %s, -v6, %s, %s" % (v(DR), v(DR + 4), v(DR)))
A("v_mul_f32 %s, %s, v7" % (v(DR), v(DR)))
A("v_mov_b32 %s, %s" % (v(sCsP), v(DR + 4)))
A("v_mov_b32 %s, v12" % v(DR + 1))
sexpr(sT0, [(sJ, 65536), (sHi, 4096), (sLo, 512), (sU, 128)], E1T)
vexpr(4, [(2, 16384), (1, 8)], sT0)
stamp("S", 1)
A("global_store_dwordx2 v4, %s, %s sc1" % (v(DR, 2), pWS))
A("v_readfirstlane_b32 s48, v12")
A("v_readfirstlane_b32 s49, v13")
A("s_cmp_lg_u32 %s, 1" % sU)
A("s_cbranch_scc1 S_NOREC")
RS = P.get("RS", 16)
sexpr(sT0, [(sJ, 32 * RS), (sS, RS)], REC)
A("v_mov_b32 v4, %s" % sT0)
A("v_mov_b32 v14, %s" % sXcc)
set_exec(1)
A("global_store_dwordx3 v4, v[12:14], %s sc1" % pWS)
set_exec(-1)
A.label("S_NOREC")


W2BLK = r'''sexpr(sT0, [(sJ, 224 * 1024), (sLo, 128), (sU, 7 * 8192)])
padd(pT, pW2, sT0)
sexpr(sT1, [(sU, 7 * 1024)], LW_2)
for k in range(7):
    A("s_add_u32 m0, %s, %d" % (sT1, 1024 * k))
    A("global_load_lds_dwordx4 %s, %s%s" % (v(sDma), pT, NT))
    if k < 6:
        padd(pT, pT, 8192)
'''


def PT1():
    padd(pT, pWJ, LSTR)
    A("global_load_dwordx4 v[140:143], %s, %s sc1" % (v(sClr), pT))
    A("s_mov_b32 exec_hi, 0")
    A("global_load_dwordx4 v[140:143], %s, %s offset:1024 sc1" % (v(sClr), pT))
    A("s_mov_b64 exec, -1")


def ptouch():
    A("global_load_dwordx4 v[140:143], %s, %s sc1" % (v(sClr), pWJ))
    set_exec(0xFFFFFFFF)
    A("global_load_dwordx4 v[140:143], %s, %s offset:1024 sc1" % (v(sClr), pWJ))
    set_exec(-1)
    if P.get("PTX", 0):
        sexpr(sT0, [("s2", 1280), (sK0, LSTR), (sK1, 640)], E3)
        A("v_add_u32 v7, %s, v3" % sT0)
        set_exec(0xFFFFFFFFFF)
        A("global_load_dwordx4 v[140:143], v7, %s sc1" % pWS)
        set_exec(-1)


def wt_slice(base):
    A("global_store_dwordx4 %s, %s, %s sc1" % (v(sClr), v(SN, 4), base))
    A("s_mov_b32 exec_hi, 0")
    A("global_store_dwordx4 %s, %s, %s offset:1024 sc1" % (v(sClr), v(SN, 4), base))
    A("s_mov_b64 exec, -1")


def half_treduce(r):
    A("v_permlane32_swap_b32 %s, %s" % (v(r), v(r + 2)))
    A("v_permlane32_swap_b32 %s, %s" % (v(r + 1), v(r + 3)))
    A("v_add_f32 %s, %s, %s" % (v(r), v(r), v(r + 2)))
    A("v_add_f32 %s, %s, %s" % (v(r + 1), v(r + 1), v(r + 3)))


AG = ["global_load_dwordx4 %s, %s, %s sc1" % (v(ga, 4), v(sAg), pWJ),
      "global_load_dwordx4 %s, %s, %s offset:2048 sc1" % (v(gb, 4), v(sAg), pWJ)]
AGC = [(ga + e, gb + e) for e in range(4)]
sexpr(sT0, [(sJ, 65536), (sHi, 16384), (sU, 1024)], E1T + 4096)
A("v_add_u32 v4, %s, v3" % sT0)
A("v_add_u32 v5, 8192, v4")
sexpr(sT0, [(sU, 64 * RS)], REC)
vexpr(6, [(0, RS)], sT0)
if P.get("PTOUCH", 1) == 2:
    ptouch()
sleep(P.get("D_A0", 20))
TQ = XR
A.label("S_AG0")
A("global_load_dwordx4 %s, v4, %s offset:-4096 sc1" % (v(TQ, 4), pWS))
A("global_load_dwordx4 %s, v4, %s sc1" % (v(TQ + 4, 4), pWS))
A("global_load_dwordx4 %s, v5, %s offset:-4096 sc1" % (v(TQ + 8, 4), pWS))
A("global_load_dwordx4 %s, v5, %s sc1" % (v(TQ + 12, 4), pWS))
A("s_waitcnt vmcnt(0)")
for i in range(8):
    A("v_xor_b32 %s, s48, %s" % (v(TQ + 2 * i + 1), v(TQ + 2 * i + 1)))
A("v_or3_b32 v7, %s, %s, %s" % (v(TQ + 1), v(TQ + 3), v(TQ + 5)))
A("v_or3_b32 v7, v7, %s, %s" % (v(TQ + 7), v(TQ + 9)))
A("v_or3_b32 v7, v7, %s, %s" % (v(TQ + 11), v(TQ + 13)))
A("v_or_b32 v7, v7, %s" % v(TQ + 15))
A("v_cmp_ne_u32 vcc, 0, v7")
A("s_cbranch_vccz S_AG0_DONE")
sleep(P.get("NAPQ", 8))
budget_loop("S_AG0")
A.label("S_AG0_DONE")
A("global_load_dwordx3 v[12:14], v6, %s sc1" % pWS)
A("v_mov_b32 v4, %d" % (FLG + 12))
A("v_mov_b32 v5, 1")
A("ds_write_b32 v4, v5")
stamp("S", 2)
for c in range(2):
    A("v_add_f32 %s, %s, %s" % (v(TQ + 2 * c), v(TQ + 2 * c), v(TQ + 4 + 2 * c)))
    A("v_add_f32 %s, %s, %s" % (v(TQ + 8 + 2 * c), v(TQ + 8 + 2 * c), v(TQ + 12 + 2 * c)))
    A("v_add_f32 %s, %s, %s" % (v(TQ + 2 * c), v(TQ + 2 * c), v(TQ + 8 + 2 * c)))
A("v_cvt_pk_bf16_f32 %s, %s, %s" % (v(ga), v(TQ), v(TQ + 2)))
sexpr(sT0, [(sU, 272)], QOP)
vexpr(4, [(0, 4)], sT0)
A("ds_write_b32 v4, %s" % v(ga))
A("s_waitcnt lgkmcnt(0)")
A("s_barrier")
A("v_lshrrev_b32 v4, 3, v0")
A("v_and_b32 v5, 7, v0")
vexpr(sDma, [(4, 1024), (5, 16)])
sexpr(sT0, [(sJ, 512 * 1024), (sHi, 128 * 1024), (sU, 32 * 1024), (sLo, 128)])
padd(pT, pWO, sT0)
sexpr(sT1, [(sU, 4096)], LW_O)
for k in range(4):
    A("s_add_u32 m0, %s, %d" % (sT1, 1024 * k))
    A("global_load_lds_dwordx4 %s, %s%s" % (v(sDma), pT, NT))
    if k < 3:
        padd(pT, pT, 8192)
sexpr(sT0, [(sR1, 32 * 3584), (sJ, 448), (sC1, 224)])
padd(pT, pW1, sT0)
for k in range(2):
    A("s_lshl_b32 %s, %s, 1" % (sT1, sU))
    if k:
        A("s_add_u32 %s, %s, 1" % (sT1, sT1))
        A("s_min_u32 %s, %s, 6" % (sT1, sT1))
    A("s_lshl_b32 %s, %s, 6" % (sT0, sT1))
    A("v_add_u32 v4, %s, v0" % sT0)
    A("v_mul_u32_u24 v5, 4682, v4")
    A("v_lshrrev_b32 v5, 16, v5")
    A("v_mul_u32_u24 v7, 14, v5")
    A("v_sub_u32 v4, v4, v7")
    A("v_mul_u32_u24 v5, 3584, v5")
    A("v_lshl_add_u32 v4, v4, 4, v5")
    A("s_lshl_b32 %s, %s, 10" % (sT0, sT1))
    A("s_add_u32 m0, %s, %d" % (sT0, LW_1))
    A("global_load_lds_dwordx4 v4, %s%s" % (pT, NT))
for n in range(448):
    assert (n * 4682) >> 16 == n // 14
if P.get("W2P", 1) == 1:
    exec(W2BLK)
A("s_waitcnt vmcnt(%d)" % (13 if P.get("W2P", 1) == 1 else 6))
A("s_branch S_RP_CHK")
A.label("S_RP")
A("global_load_dwordx3 v[12:14], v6, %s sc1" % pWS)
A("s_waitcnt vmcnt(0)")
A.label("S_RP_CHK")
A("v_cmp_ne_u64 vcc, %s, v[12:13]" % pN)
A("s_cbranch_vccz S_RP_DONE")
A("s_sleep %d" % P.get("PSL", 8))
budget_loop("S_RP")
A("v_mov_b32 v14, -1")
A.label("S_RP_DONE")
A("s_lshr_b32 %s, %s, 1" % (sT0, sJ))
A("s_cmp_lg_u32 %s, %s" % (sT0, sU))
A("s_cbranch_scc1 S_REC_SKIP")
A("v_cmp_ne_u32 vcc, %s, v14" % sXcc)
A("s_bitcmp1_b32 %s, 0" % sJ)
A("s_cselect_b32 %s, vcc_hi, vcc_lo" % sT0)
A("s_cmp_eq_u32 %s, 0" % sT0)
A("s_cselect_b32 %s, 1, 0" % sT0)
if P["FORCE_SAFE"]:
    A("s_mov_b32 %s, 0" % sT0)
A("v_mov_b32 v5, %d" % FLG)
A("v_mov_b32 v7, %s" % sT0)
A("ds_write_b32 v5, v7")
A.label("S_REC_SKIP")
stamp("S", 14)
if P.get("PTOUCH", 1) == 1:
    ptouch()
A("s_waitcnt lgkmcnt(0)")

TRBLK = r'''lab = if_layer0()
for t in range(7):
    for hh in range(2):
        A("ds_read_b64_tr_b16 %s, %s offset:%d" % (v(W2R + 4 * t + 2 * hh, 2), v(sTr), LW_2 + (32 * t + 4 * hh) * 128))
A("s_waitcnt lgkmcnt(0)")
A.label(lab)
'''
A.label("S_LOOP")
A("s_barrier")
stamp("S", 3)
cm = XR
ca = XR + 8
A("v_mov_b32 v5, %d" % FLG)
A("ds_read_b32 v6, v5")
A("ds_read_b128 %s, %s" % (v(cm, 4), v(sMlrd)))
A("ds_read_b128 %s, %s offset:16" % (v(cm + 4, 4), v(sMlrd)))
for k in range(4):
    A("ds_read_b128 %s, %s offset:%d" % (v(ca + 4 * k, 4), v(sCrd), 2048 * k))
cM, cL, cT, cAd = SS, SS + 1, SS + 2, SS + 3
A("v_mov_b32 %s, %s" % (v(cAd), sC))
A("s_waitcnt lgkmcnt(4)")
A("v_readfirstlane_b32 %s, v6" % sFast)
A("v_max3_f32 %s, %s, %s, %s" % (v(cM), v(cm), v(cm + 2), v(cm + 4)))
A("v_max_f32 %s, %s, %s" % (v(cM), v(cM), v(cm + 6)))
A("v_mov_b32 %s, %s" % (v(cT), v(cM)))
A("v_permlane32_swap_b32 %s, %s" % (v(cM), v(cT)))
A("v_max_f32 %s, %s, %s" % (v(cM), v(cM), v(cT)))
for k in range(4):
    A("v_sub_f32 %s, %s, %s" % (v(cm + 2 * k), v(cm + 2 * k), v(cM)))
for k in range(4):
    A("v_exp_f32 %s, %s" % (v(cm + 2 * k), v(cm + 2 * k)))
A("s_waitcnt lgkmcnt(0)")
for e in range(4):
    A("v_mul_f32 %s, %s, %s" % (v(DR + e), v(cm), v(ca + e)))
A("v_mul_f32 %s, %s, %s" % (v(cL), v(cm), v(cm + 1)))
for k in range(1, 4):
    for e in range(4):
        A("v_fmac_f32 %s, %s, %s" % (v(DR + e), v(cm + 2 * k), v(ca + 4 * k + e)))
    A("v_fmac_f32 %s, %s, %s" % (v(cL), v(cm + 2 * k), v(cm + 2 * k + 1)))
A("v_mov_b32 %s, %s" % (v(cT), v(cL)))
A("v_permlane32_swap_b32 %s, %s" % (v(DR), v(DR + 2)))
A("v_permlane32_swap_b32 %s, %s" % (v(DR + 1), v(DR + 3)))
A("v_permlane32_swap_b32 %s, %s" % (v(cL), v(cT)))
A("v_add_f32 %s, %s, %s" % (v(DR), v(DR), v(DR + 2)))
A("v_add_f32 %s, %s, %s" % (v(DR + 1), v(DR + 1), v(DR + 3)))
A("v_add_f32 %s, %s, %s" % (v(cL), v(cL), v(cT)))
store_intra(["global_store_dwordx2 %s, %s, %s" % (v(sE2w), v(DR, 2), pWJ),
             "s_mov_b64 exec, 1",
             "global_store_dwordx2 %s, %s, %s" % (v(cAd), v(cM, 2), pWJ),
             "s_mov_b64 exec, -1"])
if P.get("SIGI", 1):
    A("s_barrier")
stamp("S", 4)
W2P = P.get("W2P", 1)
lab = if_layer0()
A("v_add_u32 %s, %d, %s" % (v(gc), 4 * 8192, v(sE1w)))
A("v_add_u32 %s, %d, %s" % (v(gc + 1), (E4C - E4) & 0xFFFFFFFF, v(sE4w)))
for i in range(4):
    A("v_mov_b32 %s, 0x3f803f80" % v(XR + i))
A("s_waitcnt vmcnt(%d)" % (2 + (7 if W2P == 1 else 0) + ((2 + P.get("PTX", 0)) if P.get("PTOUCH", 1) == 1 else 0)))
if W2P == 2:
    exec(W2BLK)
ssync(1)
for tl in range(2):
    for hh in range(2):
        A("ds_read_b64_tr_b16 %s, %s offset:%d" % (v(W1R + 4 * tl + 2 * hh, 2), v(sTr1), LW_1 + 4 * hh * 224 + 32 * tl))
for t in range(4):
    for hh in range(2):
        A("ds_read_b64_tr_b16 %s, %s offset:%d" % (v(WO + 4 * t + 2 * hh, 2), v(sTr), LW_O + (32 * t + 4 * hh) * 128))
A("s_waitcnt lgkmcnt(8)")
A("%s %s, %s, %s, 0" % (MFMA, v(DR + 4, 4), v(XR, 4), v(W1R, 4)))
A("%s %s, %s, %s, 0" % (MFMA, v(XR + 4, 4), v(XR, 4), v(W1R + 4, 4)))
A("s_cmp_eq_u32 %s, 3" % sU)
A("s_cselect_b32 %s, 0, 0xffff" % sT0)
store_intra(exec_lines(0xFFFF) +
            ["global_store_dword %s, %s, %s" % (v(gc), v(sCsP), pWJ),
             "global_store_dword %s, %s, %s" % (v(gc + 1), v(DR + 4), pWJ),
             "s_mov_b32 exec_lo, %s" % sT0,
             "global_store_dword %s, %s, %s offset:64" % (v(gc + 1), v(XR + 4), pWJ),
             "s_mov_b64 exec, -1"])
A("s_waitcnt lgkmcnt(0)")
A.label(lab)
A("s_barrier")
stamp("S", 5)
for t in range(4):
    A("ds_read_b128 %s, %s offset:%d" % (v(XR + 4 * t, 4), v(sOrd), 64 * t))
for t in range(4):
    A("s_waitcnt lgkmcnt(%d)" % (3 - t))
    A("%s %s, %s, %s, %s" % (MFMA, v(DR, 4), v(XR + 4 * t, 4), v(WO + 4 * t, 4), "0" if t == 0 else v(DR, 4)))
A("global_store_dword %s, %s, %s sc1" % (v(sE3w), v(DR), pWL))
A("s_barrier")
lab = if_layer0()
if W2P == 3:
    exec(W2BLK)
A("s_sub_u32 %s, 4, %s" % (sT0, sHi))
A("s_lshl_b32 %s, %s, 13" % (sT0, sT0))
A("v_add_u32 %s, %s, %s" % (v(gc), sT0, v(sAg)))
poll(["global_load_dwordx4 %s, %s, %s sc1" % (v(ga, 4), v(gc), pWJ),
      "global_load_dwordx4 %s, %s, %s offset:2048 sc1" % (v(gb, 4), v(gc), pWJ)], AGC, nap=4)
for e in range(4):
    A("v_add_f32 %s, %s, %s" % (v(ga + e), v(ga + e), v(gb + e)))
half_treduce(ga)
A("v_mov_b32 %s, %s" % (v(sCq0), v(ga)))
A("v_mov_b32 %s, %s" % (v(sCq1), v(ga + 1)))
A.label(lab)
A("s_barrier")
stamp("S", 6)
A("ds_read_b128 %s, %s" % (v(XR, 4), v(sX1a)))
A("s_cmp_eq_u32 %s, 3" % sU)
A("s_cbranch_scc1 S_W1_W3")
A("s_waitcnt lgkmcnt(0)")
A("%s %s, %s, %s, 0" % (MFMA, v(DR, 4), v(XR, 4), v(W1R, 4)))
A("%s %s, %s, %s, 0" % (MFMA, v(DR + 4, 4), v(XR, 4), v(W1R + 4, 4)))
store_intra(["global_store_dword %s, %s, %s" % (v(sE4w), v(DR), pWJ),
             "global_store_dword %s, %s, %s offset:64" % (v(sE4w), v(DR + 4), pWJ)])
A("s_branch S_W1_DONE")
A.label("S_W1_W3")
A("ds_read_b128 %s, %s" % (v(XR + 4, 4), v(sX1b)))
A("s_waitcnt lgkmcnt(1)")
A("%s %s, %s, %s, 0" % (MFMA, v(DR, 4), v(XR, 4), v(W1R, 4)))
A("s_waitcnt lgkmcnt(0)")
A("%s %s, %s, %s, 0" % (MFMA, v(DR + 4, 4), v(XR, 4), v(XR + 4, 4)))
store_intra(["global_store_dword %s, %s, %s" % (v(sE4w), v(DR), pWJ)] + exec_lines(STM) +
            ["global_store_dword %s, %s, %s" % (v(sE4sw), v(DR + 4), pWJ)] + exec_lines(0x000F000F000F000F) +
            ["global_store_dwordx4 %s, %s, %s" % (v(sE4rw), v(XR + 4, 4), pWJ), "s_mov_b64 exec, -1"])
A.label("S_W1_DONE")
if P.get("SIGI", 1):
    A("s_barrier")
KEEP = 136
if P.get("CLEAN", 0) & 8:
    A("v_mov_b32 %s, %s" % (v(KEEP), v(DR)))
    A("v_mov_b32 %s, %s" % (v(KEEP + 1), v(DR + 4)))
if P.get("W2LATE", 0):
    A("s_waitcnt vmcnt(0)")
else:
    exec(TRBLK)
A("s_barrier")
stamp("S", 7)
if P.get("W2LATE", 0):
    exec(TRBLK)
for t in range(7):
    A("ds_read_b128 %s, %s offset:%d" % (v(XR + 4 * t, 4), v(sHrd), 64 * t))
for t in range(7):
    A("s_waitcnt lgkmcnt(%d)" % (6 - t))
    ab = (v(W2R + 4 * t, 4), v(XR + 4 * t, 4)) if P.get("WIDE", 0) else (v(XR + 4 * t, 4), v(W2R + 4 * t, 4))
    A("%s %s, %s, %s, %s" % (MFMA, v(DR, 4), ab[0], ab[1], "0" if t == 0 else v(DR, 4)))
if P.get("WIDE", 0):
    set_exec(0x0001000100010001)
    A("global_store_dwordx4 %s, %s, %s sc1" % (v(sE5w), v(DR, 4), pWL))
else:
    set_exec(0xFFFF)
    A("global_store_dword %s, %s, %s sc1" % (v(sE5w), v(DR), pWL))
set_exec(-1)
if P.get("SIG", 1):
    A("s_barrier")
stamp("S", 8)
A("s_cmp_lg_u32 %s, 0" % sL)
A("s_cbranch_scc1 %s" % ("S_FIN" if P.get("CLEAN", 0) & 4 else "L_EXIT"))
A("s_mov_b32 %s, 1" % sL)
padd(pWL, pWL, LSTR)
sexpr(sT0, [(sS, 2176), (sU, 544)], E2S)
A("v_add_u32 v4, %s, v3" % sT0)
store_intra(exec_lines((1 << 34) - 1) + ["global_store_dwordx4 v4, %s, %s" % (v(SN, 4), pWJ), "s_mov_b64 exec, -1"])
A("s_lshl_b32 %s, %s, 6" % (sT0, sU))
A("v_add_u32 %s, %s, %s" % (v(SS), sT0, v(sXa)))
A("s_waitcnt vmcnt(0)")
A("s_barrier")
stamp("S", 0)
for t in range(4):
    A("ds_read_b128 %s, %s offset:%d" % (v(XR + 4 * t, 4), v(sXa), 64 * t))
A("ds_read_b128 %s, %s" % (v(XR + 16, 4), v(sXb)))
A("ds_read_b128 %s, %s" % (v(XR + 20, 4), v(SS)))
for t in range(4):
    A("s_waitcnt lgkmcnt(%d)" % (5 - t))
    A("%s %s, %s, %s, %s" % (MFMA, v(DR, 4), v(XR + 4 * t, 4), v(WQ + 4 * t, 4), "0" if t == 0 else v(DR, 4)))
A("s_waitcnt lgkmcnt(0)")
A("%s %s, %s, %s, 0" % (MFMA, v(DR + 4, 4), v(XR + 20, 4), v(XR + 16, 4)))
stamp("S", 1)
store_intra(["global_store_dword %s, %s, %s" % (v(sE1w), v(DR), pWJ)] + exec_lines(STM) +
            ["global_store_dword %s, %s, %s" % (v(sE1sw), v(DR + 4), pWJ), "s_mov_b64 exec, -1"])
sleep(P["D_A"])
SSETS = [SS, XR, XR + 12][:P.get("NSETS", 2)]
q0_, q1_, q2_, q3_ = 4, 5, 6, 7


def a_issue(a):
    set_exec(0xFFFF)
    A("global_load_dwordx2 %s, %s, %s sc1" % (v(a + 8, 2), v(sAst), pWJ))
    set_exec(-1)
    A("global_load_dwordx4 %s, %s, %s sc1" % (v(a, 4), v(sAg), pWJ))
    A("global_load_dwordx4 %s, %s, %s offset:2048 sc1" % (v(a + 4, 4), v(sAg), pWJ))


def a_mid(a):
    c = a + 8
    for m in (X1, X2, HM, RM):
        A("v_add_f32_dpp %s, %s, %s %s" % (v(c), v(c), v(c), m))
        A("v_add_f32_dpp %s, %s, %s %s" % (v(c + 1), v(c + 1), v(c + 1), m))
    A("v_mul_f32 %s, %s, %s" % (v(c), f32(1 / 512), v(c)))
    A("v_mul_f32 %s, %s, %s" % (v(c + 1), f32(1 / 512), v(c + 1)))
    A("v_fma_f32 %s, -%s, %s, %s" % (v(c + 1), v(c), v(c), v(c + 1)))
    A("v_fmac_f32 %s, 0, %s" % (v(c), v(c + 1)))
    A("v_max_f32 %s, 0, %s" % (v(c + 1), v(c + 1)))
    A("v_add_f32 %s, %s, %s" % (v(c + 1), f32(1e-5), v(c + 1)))
    A("v_rsq_f32 %s, %s" % (v(c + 1), v(c + 1)))
    A("v_mul_f32 %s, %s, %s" % (v(c), v(c), v(c + 1)))
    A("v_readfirstlane_b32 %s, %s" % (sT0, v(c + 1)))
    A("v_readfirstlane_b32 %s, %s" % (sT1, v(c)))
    A("v_mul_f32 %s, %s, %s" % (v(q2_), sT1, v(sCq0)))
    A("v_mul_f32 %s, %s, %s" % (v(q3_), sT1, v(sCq1)))


def a_post(a):
    for e in range(4):
        A("v_add_f32 %s, %s, %s" % (v(a + e), v(a + e), v(a + 4 + e)))
    half_treduce(a)


def a_fin(a):
    A("v_fma_f32 %s, %s, %s, -%s" % (v(q0_), v(a), sT0, v(q2_)))
    A("v_fma_f32 %s, %s, %s, -%s" % (v(q1_), v(a + 1), sT0, v(q3_)))


fast_poll(a_issue, a_mid, a_post, a_fin, [q0_, q1_], SS)
stamp("S", 2)
A("v_cvt_pk_bf16_f32 %s, %s, %s" % (v(q0_), v(q0_), v(q1_)))
A("ds_write_b32 %s, %s" % (v(sQw), v(q0_)))
A("s_waitcnt lgkmcnt(0)")
A("s_barrier")
sexpr(sT0, [(sS, 2048), (sU, 512)], E4)
A("v_add_u32 v4, %s, v3" % sT0)
store_intra(exec_lines(0xFFFFFFFF) + ["global_store_dwordx4 v4, %s, %s" % (v(SN, 4), pWJ), "s_mov_b64 exec, -1"])
A("s_waitcnt vmcnt(0)")
A("s_branch S_LOOP")
if P.get("CLEAN", 0) & 4:
    A.label("S_FIN")
    sexpr(sT0, [(sS, 4096), (sU, 1024)])
    A("v_add_u32 v4, %s, v3" % sT0)
    A("global_store_dwordx4 v4, %s, %s sc1" % (v(SN, 4), pWJ))
    if P.get("CLEAN", 0) & 8:
        A("global_store_dword %s, %s, %s sc1" % (v(sE4w), v(KEEP), pWJ))
        A("s_cmp_eq_u32 %s, 3" % sU)
        A("s_cbranch_scc1 L_EXIT")
        A("global_store_dword %s, %s, %s offset:64 sc1" % (v(sE4w), v(KEEP + 1), pWJ))
    A("s_branch L_EXIT")

KR, VR, VF, QR, SR = 16, 48, 80, 112, 128
GS = 48
(gOg, gOml, gOlds, gW1g, gW1x, gW1lds, gW2g, gW2s, gW2lds, gXg, gXr, gXlds, gB1, gB2, gCs1, gQrd, gApw, gMlw, gOut, gDma) = range(148, 168)
_gn = [1 if P["PREF"] else 0]


def gload(t):
    if P.get("NODMA") and "lds" in t:
        t = "global_load_dword v140, v3, %s" % pB1 if False else "s_nop 0"
        A(t)
        return
    if _gn[0] >= P["W"]:
        if P.get("ADAPT"):
            lab = newlabel("THR")
            A("ds_read_b32 v130, v129")
            A("s_waitcnt lgkmcnt(0)")
            A("v_readfirstlane_b32 %s, v130" % sT1)
            A("s_cmp_lg_u32 %s, 0" % sT1)
            A("s_cbranch_scc1 %s" % lab)
            A("s_waitcnt vmcnt(%d)" % (P["W"] - 1))
            A.label(lab)
        else:
            A("s_waitcnt vmcnt(%d)" % (P["W"] - 1))
    A(t)
    _gn[0] += 1


GADDR = r'''A("v_lshrrev_b32 v11, 3, v0")        # l>>3
A("v_and_b32 v12, 7, v0")            # l&7
vexpr(gDma, [(11, 1024), (12, 16)])
# bias elements
A("s_lshr_b32 %s, %s, 1" % (sK0, sWave))     # b = w>>1
A("s_and_b32 %s, %s, 1" % (sK1, sWave))      # w&1
A("s_min_u32 %s, %s, 6" % (sK2, sWave))      # w' for the W2 gather
vexpr(13, [(1, 4), (2, 1)])                  # X col local = 4 l16 + g
sexpr(sT0, [(sHi, 256), (sK1, 128)])
vexpr(14, [(13, 2)], sT0)                    # col*2 within a 512-col bf16 row
gload("global_load_ushort %s, v14, %s%s" % (v(gB2), pB2, NT))
vexpr(10, [(12, 4), (2, 1)])                 # 4 (l&7) + g
sexpr(sT0, [(sK2, 64)])
vexpr(10, [(10, 2)], sT0)                    # f*2 (local)
sexpr(sT0, [(sJ, 448)])
A("v_add_u32 v6, %s, v10" % sT0)
gload("global_load_ushort %s, v6, %s%s" % (v(gB1), pB1, NT))
N_AFTER_K, N_AFTER_V = 8, 0

for q in range(4):
    smov64(mQ[q], (0x000F000F000F000F << (4 * q)))
A("s_mov_b32 %s, 0x05040100" % sPermLo)
A("s_mov_b32 %s, 0x07060302" % sPermHi)
A("s_mov_b32 %s, %s" % (sC, f32(128 ** -0.5 * math.log2(math.e))))
A("s_mov_b32 s42, s40")
A("s_mov_b32 s43, s41")
A("s_mul_i32 %s, %s, %d" % (sT0, sJ, JSTR))
padd(pWJ, pWS, sT0)
A("v_add_u32 %s, %d, v10" % (v(gW2lds), HOP))
# O gather: E2 + ((ro*4+b)*8 + 2g)*512 + (16 (w&1) + l16)*16
sexpr(sT0, [(sHi, 16384), (sK0, 4096), (sK1, 256)], E2)
vexpr(gOg, [(2, 1024), (1, 16)], sT0)
sexpr(sT0, [(sHi, 256), (sK0, 64)], E2S)
vexpr(gOml, [(2, 16)], sT0)
# O lds: U = 16 h + l16 (h = w&1); lp = 2U + (g>>1); ups = lp&31 = (2 l16 + (g>>1)) ; e = 2 h + (g&1)
#   ups = 16 a + 4 g' + qq ; d = 32 g' + 8 e + 4 a + qq
A("v_lshrrev_b32 v4, 1, v2")
A("v_lshl_add_u32 v4, v1, 1, v4")            # ups
A("v_bfe_u32 v5, v4, 4, 1")                  # a
A("v_bfe_u32 v6, v4, 2, 2")                  # g'
A("v_and_b32 v7, 3, v4")                     # qq
A("v_and_b32 v4, 1, v2")                     # g&1
sexpr(sT0, [(sK0, 272), (sK1, 32)], OOP)
vexpr(gOlds, [(6, 64), (4, 16), (5, 8), (7, 2)], sT0)
# W1 gather: E3 + r1*16384 + (2 pp)*512 + (4 w + (l&3))*16 ; pp = l>>2
A("v_lshrrev_b32 v4, 2, v0")
A("v_and_b32 v5, 3, v0")
if P.get("E3L", 1):
    sexpr(sT0, [(sR1, 16384), (sWave, 2048)], E3)
    A("v_add_u32 %s, %s, v3" % (v(gW1g), sT0))
else:
    sexpr(sT0, [(sR1, 16384), (sWave, 64)], E3)
    vexpr(gW1g, [(4, 1024), (5, 16)], sT0)
# rho = 16 tile + 4 (l&3) + g ; tile = w>>2, b = w&3
A("s_lshr_b32 %s, %s, 2" % (sT1, sWave))
A("s_and_b32 %s, %s, 3" % (sT2, sWave))
vexpr(6, [(5, 8), (2, 2)])
sexpr(sT0, [(sT2, 80), (sT1, 32)], X1OP)
A("v_add_u32 %s, %s, v6" % (v(gW1lds), sT0))
sexpr(sT0, [(sT2, 272), (sT1, 32)], XOP)
A("s_and_b32 %s, %s, 3" % (sT1, sR1))
A("s_lshl_b32 %s, %s, 6" % (sT1, sT1))
A("s_add_u32 %s, %s, %s" % (sT0, sT0, sT1))
A("v_add_u32 %s, %s, v6" % (v(gW1x), sT0))
# W2 gather: E4 + (b*16 + 2 pp8)*896 + (8 w' + (l&7))*16 ; pp8 = l>>3
sexpr(sT0, [(sHi, 16 * 896), (sK2, 128)], E4)
vexpr(gW2g, [(11, 2 * 896), (12, 16)], sT0)
# W2 stats: E4S + (c1*4 + b)*128 + l16*8  (16 entries, row all-reduce)
sexpr(sT0, [(sHi, 128)], E4S)
vexpr(gW2s, [(1, 8)], sT0)
# X gather: E5 + ((b*8 + 2 rq + (w&1))*8 + 2g)*256 + l16*16
sexpr(sT0, [(sK0, 16384), (sHi, 4096), (sK1, 2048)], E5)
vexpr(gXg, [(2, 512), (1, 16)], sT0)
sexpr(sT0, [(sK0, 1024)], E4R)
A("v_add_u32 %s, %s, v14" % (v(gXr), sT0))
sexpr(sT0, [(sK0, 1024)])
A("v_add_u32 %s, %s, v14" % (v(gOut), sT0))
sexpr(sT0, [(sK0, 272), (sK1, 128)], XOP)
vexpr(gXlds, [(13, 2)], sT0)
vexpr(gQrd, [(8, 272), (2, 16)], None, QOP)
sexpr(sT0, [(sWave, 2048)], AP)
A("v_add_u32 %s, %s, v3" % (v(gApw), sT0))
sexpr(sT0, [(sWave, 8)], ML)
vexpr(gMlw, [(8, 64)], sT0)
'''
NV1 = 8
A.label("L_G")
ISTR, WSTR = ((65536, 8192) if P.get("KMODE", 5) == 5 else (8192, 65536))
sexpr(sT0, [(sHi, 8 << 21), (sJ, 1 << 21), (sLo, 1024), (sWave, WSTR)], 6144 * 256)
A("v_and_b32 v8, 3, v1")
A("v_lshrrev_b32 v9, 2, v1")
vexpr(10, [(8, ISTR), (9, 256), (2, 16)])
A("v_mov_b32 v129, %d" % (FLG + 12))
A("s_waitcnt lgkmcnt(0)")
stamp_init()
stamp("G", 10)
padd(pT, pK, sT0)
padd(pT2, pV, sT0)
for tau in range(2):
    for t in range(4):
        if 4 * tau + t == P["B0POS"]:
            A("s_barrier")
        gload("global_load_dwordx4 %s, v10, %s offset:%d%s" % (v(KR + 4 * (4 * tau + t), 4), pT, 64 * t, NT))
    if tau == 0:
        padd(pT, pT, 4 * ISTR)
        A("v_mov_b32 %s, v10" % v(SR))
        exec(GADDR)
        A("v_mov_b32 v10, %s" % v(SR))
stamp("G", 11)
NV1 = 8
for jj in range(8):
    gload("global_load_dwordx4 %s, v3, %s%s" % (v(VR + 4 * jj, 4), pT2, NT))
    if jj < 7:
        padd(pT2, pT2, ISTR)
for q in range(4):
    A("v_cndmask_b32 v%d, 0, -1, %s" % (144 + q, mQ[q]))
stamp("G", 9)
if P.get("KVWAIT"):
    A("s_waitcnt vmcnt(0)")
    stamp("G", 14)
if P.get("QLATE"):
    A("s_barrier")
if P.get("PRIO", 0):
    A("s_cmp_ge_u32 %s, 4" % sWave)
    A("s_cbranch_scc1 G_ENTRY")
    A("s_setprio %d" % P["PRIO"])
A.label("G_ENTRY")
A("s_barrier")
cyc(0)
stamp("G")
if NV1 < 8:
    lab = if_layer0()
    for jj in range(NV1, 8):
        A("global_load_dwordx4 %s, v3, %s offset:%d%s" % (v(VR + 4 * jj, 4), pT2, (jj - 4) * 1024, NT))
    A.label(lab)
for t in range(4):
    A("ds_read_b128 %s, %s offset:%d" % (v(QR + 4 * t, 4), v(gQrd), 64 * t))
A("s_waitcnt vmcnt(%d)" % N_AFTER_K)
stamp("G")
S0, S1 = SR, SR + 4
if STAMP == 4:
    A("s_waitcnt lgkmcnt(0)")
    cyc(1)
for t in range(4):
    A("s_waitcnt lgkmcnt(%d)" % ((3 - t) if STAMP != 4 else 15))
    for tau in range(2):
        d = v(SR + 4 * tau, 4)
        A("%s %s, %s, %s, %s" % (MFMA, d, v(KR + 4 * (4 * tau + t), 4), v(QR + 4 * t, 4), "0" if t == 0 else d))
aM, aT, aMc = 136, 137, 138
PR = 140
PM = QR
A("v_max3_f32 %s, %s, %s, %s" % (v(aM), v(S0), v(S0 + 1), v(S0 + 2)))
A("v_max3_f32 %s, %s, %s, %s" % (v(aT), v(S1), v(S1 + 1), v(S1 + 2)))
A("v_max3_f32 %s, %s, %s, %s" % (v(aM), v(aM), v(S0 + 3), v(S1 + 3)))
A("v_max_f32 %s, %s, %s" % (v(aM), v(aM), v(aT)))
cyc(2)
g_allreduce("v_max_f32", aM, aT)
A("v_mul_f32 %s, %s, %s" % (v(aMc), sC, v(aM)))
for q in range(4):
    A("s_mov_b64 exec, %s" % mQ[q])
    A("v_fma_f32 %s, %s, %s, -%s" % (v(PR), v(SR + 2 * q), sC, v(aMc)))
    A("v_fma_f32 %s, %s, %s, -%s" % (v(PR + 1), v(SR + 2 * q + 1), sC, v(aMc)))
A("s_mov_b64 exec, -1")
A("v_exp_f32 %s, %s" % (v(PR), v(PR)))
A("v_exp_f32 %s, %s" % (v(PR + 1), v(PR + 1)))
A("v_cvt_pk_bf16_f32 %s, %s, %s" % (v(PR), v(PR), v(PR + 1)))
cyc(3)
lab0, lab1 = newlabel("VT"), newlabel("VTD")
A("s_cmp_eq_u32 %s, 0" % sL)
A("s_cbranch_scc1 %s" % lab0)
A.label(lab1)
with Cap() as vt:
    A("s_waitcnt vmcnt(%d)" % N_AFTER_V)
    stamp("G")
    for i in (0, 4, 1, 5, 2, 6, 3, 7):
        for p in range(4):
            A("v_perm_b32 %s, %s, %s, %s" % (v(VF + 4 * i + p), v(VR + 4 * (2 * p + 1) + (i >> 1)), v(VR + 4 * (2 * p) + (i >> 1)),
                                             sPermHi if (i & 1) else sPermLo))
OOL.append([lab0 + ":"] + vt.lines + ["v_mov_b32 v%d, 0x3f803f80" % (GS + 28 + i) for i in range(4)] + ["s_branch %s" % lab1])
D0 = 4
DL = 128
MK = 144
ONES = GS + 28


def pm(q, p):
    rot = (4 * (q - p)) % 16
    if rot == 0:
        A("v_and_b32 %s, %s, %s" % (v(PM + 4 * q + p), v(PR), v(MK + q)))
    else:
        A("v_and_b32_dpp %s, %s, %s row_ror:%d%s" % (v(PM + 4 * q + p), v(PR), v(MK + q), rot, DPP))


for p in range(4):
    pm(0, p)
pm(1, 0); pm(1, 1)
A("%s %s, %s, %s, 0" % (MFMA, v(DL, 4), v(ONES, 4), v(PM, 4)))
for q in range(4):
    for a in range(2):
        d = v(D0 + 4 * a, 4)
        A("%s %s, %s, %s, %s" % (MFMA, d, v(VF + 4 * (4 * a + q), 4), v(PM + 4 * q, 4), "0" if q == 0 else d))
        nxt = 4 * q + 2 * a + 6
        for k in (nxt, nxt + 1):
            if k < 16:
                pm(k >> 2, k & 3)
A("v_mov_b32 %s, %s" % (v(aMc + 1), v(DL)))
cyc(4)
A("s_mov_b64 exec, %s" % mQ[0])
A("ds_write_b64 %s, %s" % (v(gMlw), v(aMc, 2)))
A("s_mov_b64 exec, -1")
A("ds_write_b128 %s, %s" % (v(gApw), v(D0, 4)))
A("ds_write_b128 %s, %s offset:1024" % (v(gApw), v(D0 + 4, 4)))
A("s_waitcnt lgkmcnt(0)")
cyc(5)
A("s_barrier")
cyc(6)
cyc_dump(7)

a0, b0, c0 = GS, GS + 4, GS + 8
r0, r1_, r2, r3 = GS + 12, GS + 13, GS + 14, GS + 15


def add_ab():
    for e in range(4):
        A("v_add_f32 %s, %s, %s" % (v(a0 + e), v(a0 + e), v(b0 + e)))


BC = "row_newbcast:0" + DPP
NS_ = P.get("NSETS", 2)
GSETS = [GS, GS + 16, 112][:NS_]
GAP = P.get("GAP", 3)


def add_ab2(a):
    for e in range(4):
        A("v_add_f32 %s, %s, %s" % (v(a + e), v(a + e), v(a + 4 + e)))


def g_treduce_to(a, out):
    A("v_permlane16_swap_b32 %s, %s" % (v(a), v(a + 1)))
    A("v_permlane16_swap_b32 %s, %s" % (v(a + 2), v(a + 3)))
    A("v_add_f32 %s, %s, %s" % (v(a), v(a), v(a + 1)))
    A("v_add_f32 %s, %s, %s" % (v(a + 2), v(a + 2), v(a + 3)))
    A("v_permlane32_swap_b32 %s, %s" % (v(a), v(a + 2)))
    A("v_add_f32 %s, %s, %s" % (v(out), v(a), v(a + 2)))


A("ds_read_u16 %s, %s" % (v(r3), v(gW1x)))
A("s_barrier")
sleep(P.get("DI_O", 0))
stamp("G", 7)


def o_issue(a):
    set_exec(0x0001000100010001)
    A("global_load_dwordx4 %s, %s, %s sc1" % (v(a + 8, 4), v(gOml), pWJ))
    set_exec(-1)
    A("global_load_dwordx4 %s, %s, %s sc1" % (v(a, 4), v(gOg), pWJ))
    A("global_load_dwordx4 %s, %s, %s offset:512 sc1" % (v(a + 4, 4), v(gOg), pWJ))


def o_all(a):
    c = a + 8
    A("v_max_f32 %s, %s, %s" % (v(r0), v(c), v(c + 2)))
    for e in (0, 2, 1, 3):
        A("v_mov_b32_dpp %s, %s %s" % (v(c + e), v(c + e), BC))
    A("v_mov_b32_dpp %s, %s %s" % (v(r0), v(r0), BC))
    g_allreduce("v_max_f32", r0, r1_)
    A("v_sub_f32 %s, %s, %s" % (v(c), v(c), v(r0)))
    A("v_sub_f32 %s, %s, %s" % (v(c + 2), v(c + 2), v(r0)))
    A("v_exp_f32 %s, %s" % (v(c), v(c)))
    A("v_exp_f32 %s, %s" % (v(c + 2), v(c + 2)))
    with Cap() as c1:
        A("v_mul_f32 %s, %s, %s" % (v(r1_), v(c), v(c + 1)))
        A("v_fmac_f32 %s, %s, %s" % (v(r1_), v(c + 2), v(c + 3)))
        g_allreduce("v_add_f32", r1_, r2)
        A("v_rcp_f32 %s, %s" % (v(r1_), v(r1_)))
    with Cap() as c2:
        for e in range(4):
            A("v_mul_f32 %s, %s, %s" % (v(a + e), v(c), v(a + e)))
        for e in range(4):
            A("v_fmac_f32 %s, %s, %s" % (v(a + e), v(c + 2), v(a + 4 + e)))
        g_treduce_to(a, r0)
    for l in interleave(c2.lines, c1.lines):
        A(l)
    A("v_mul_f32 %s, %s, %s" % (v(r0), v(r0), v(r1_)))


fast_poll(o_issue, None, o_all, None, [r0], GS)
stamp("G")
A("v_cvt_pk_bf16_f32 %s, %s, %s" % (v(r0), v(r0), v(r0)))
A("ds_write_b16 %s, %s" % (v(gOlds), v(r0)))
A("s_waitcnt lgkmcnt(0)")
A("s_barrier")

A("v_lshlrev_b32 %s, 16, %s" % (v(r3), v(r3)))
A("s_barrier")
A("s_cmp_eq_u32 %s, 0" % sL)
A("s_cbranch_scc1 G_CS1")
sleep(P["D_W1"])
A.label("G_CS1_DONE")
with Cap() as cs1:
    A("s_mul_i32 %s, %s, %d" % (sT0, sHi, 16 * 896))
    A("s_add_u32 %s, %s, %d" % (sT0, sT0, E4 - E4C))
    A("v_subrev_u32 %s, %s, %s" % (v(r2), sT0, v(gW2g)))
    poll(["global_load_dwordx4 %s, %s, %s sc1" % (v(a0, 4), v(r2), pWJ),
          "global_load_dwordx4 %s, %s, %s offset:896 sc1" % (v(b0, 4), v(r2), pWJ)],
         [(a0 + e, b0 + e) for e in range(4)])
    add_ab()
    g_treduce(a0)
    A("v_add_f32_dpp %s, %s, %s row_ror:8%s" % (v(gCs1), v(a0), v(a0), DPP))
    A("v_lshlrev_b32 %s, 16, %s" % (v(gB1), v(gB1)))
    A("v_lshlrev_b32 %s, 16, %s" % (v(gB2), v(gB2)))
OOL.append(["G_CS1:"] + cs1.lines + ["s_branch G_CS1_DONE"])
stamp("G", 8)


def w1_issue(a):
    A("global_load_dwordx4 %s, %s, %s sc1" % (v(a, 4), v(gW1g), pWL))
    A("global_load_dwordx4 %s, %s, %s offset:%d sc1" % (v(a + 4, 4), v(gW1g), pWL, 1024 if P.get("E3L", 1) else 512))


def w1_post(a):
    add_ab2(a)
    g_treduce_to(a, r0)
    A("v_add_f32_dpp %s, %s, %s row_ror:4%s" % (v(r0), v(r0), v(r0), DPP))
    A("v_add_f32_dpp %s, %s, %s row_ror:8%s" % (v(r0), v(r0), v(r0), DPP))


fast_poll(w1_issue, None, w1_post, None, [r0], GS)
stamp("G")
A("v_add_f32 %s, %s, %s" % (v(r0), v(r0), v(r3)))
A("v_cvt_pk_bf16_f32 %s, %s, %s" % (v(r0), v(r0), v(r0)))
A("ds_write_b16 %s, %s" % (v(gW1lds), v(r0)))
A("s_waitcnt lgkmcnt(0)")
A("s_barrier")

k0 = -2 * math.log2(math.e) * math.sqrt(2 / math.pi)
A("v_mov_b32 %s, %s" % (v(r2), f32(k0)))
A("s_barrier")
A("s_cmp_eq_u32 %s, 7" % sWave)
A("s_cbranch_scc1 G_W2_SKIP")
sleep(P.get("DI_W2", 0))
stamp("G", 12)


def w2_issue(a):
    set_exec(0xFFFF)
    A("global_load_dwordx2 %s, %s, %s sc1" % (v(a + 8, 2), v(gW2s), pWJ))
    set_exec(-1)
    A("global_load_dwordx4 %s, %s, %s sc1" % (v(a, 4), v(gW2g), pWJ))
    A("global_load_dwordx4 %s, %s, %s offset:896 sc1" % (v(a + 4, 4), v(gW2g), pWJ))


def w2_mid(a):
    c = a + 8
    for m in (X1, X2, HM, RM):
        A("v_add_f32_dpp %s, %s, %s %s" % (v(c), v(c), v(c), m))
        A("v_add_f32_dpp %s, %s, %s %s" % (v(c + 1), v(c + 1), v(c + 1), m))
    A("v_mul_f32 %s, %s, %s" % (v(c), f32(1 / 512), v(c)))
    A("v_mul_f32 %s, %s, %s" % (v(c + 1), f32(1 / 512), v(c + 1)))
    A("v_fma_f32 %s, -%s, %s, %s" % (v(c + 1), v(c), v(c), v(c + 1)))
    A("v_fmac_f32 %s, 0, %s" % (v(c), v(c + 1)))
    A("v_max_f32 %s, 0, %s" % (v(c + 1), v(c + 1)))
    A("v_add_f32 %s, %s, %s" % (v(c + 2), f32(1e-5), v(c + 1)))
    A("v_rcp_f32 %s, %s" % (v(c + 3), v(c + 2)))
    A("v_mul_f32 %s, %s, %s" % (v(c + 3), v(c + 1), v(c + 3)))
    A("v_add_f32 %s, %s, %s" % (v(c + 3), f32(1e-5), v(c + 3)))
    A("v_mul_f32 %s, %s, %s" % (v(c + 2), v(c + 2), v(c + 3)))
    A("v_rsq_f32 %s, %s" % (v(c + 2), v(c + 2)))
    A("v_mul_f32 %s, %s, %s" % (v(c), v(c), v(c + 2)))
    A("v_readfirstlane_b32 %s, %s" % (sT0, v(c + 2)))
    A("v_readfirstlane_b32 %s, %s" % (sT1, v(c)))
    A("v_fma_f32 %s, -%s, %s, %s" % (v(r3), sT1, v(gCs1), v(gB1)))


def w2_post(a):
    add_ab2(a)
    g_treduce_to(a, r0)
    A("v_add_f32_dpp %s, %s, %s row_ror:8%s" % (v(r0), v(r0), v(r0), DPP))


fast_poll(w2_issue, w2_mid, w2_post, lambda a: A("v_fma_f32 %s, %s, %s, %s" % (v(r0), v(r0), sT0, v(r3))), [r0], GS)
stamp("G")
RX = GS + 24
A("v_mul_f32 %s, %s, %s" % (v(r1_), v(r0), v(r0)))
A("v_fmac_f32 %s, %s, %s" % (v(r2), f32(k0 * 0.044715), v(r1_)))
A("v_mul_f32 %s, %s, %s" % (v(r2), v(r2), v(r0)))
A("v_exp_f32 %s, %s" % (v(r2), v(r2)))
A("v_add_f32 %s, 1.0, %s" % (v(r2), v(r2)))
A("v_rcp_f32 %s, %s" % (v(r2), v(r2)))
A("v_mul_f32 %s, %s, %s" % (v(r0), v(r0), v(r2)))
A("v_cvt_pk_bf16_f32 %s, %s, %s" % (v(r0), v(r0), v(r0)))
A("ds_write_b16 %s, %s" % (v(gW2lds), v(r0)))
A("s_waitcnt lgkmcnt(0)")
A.label("G_W2_SKIP")
A("s_barrier")

A("s_cmp_eq_u32 %s, 0" % sL)
A("s_cbranch_scc1 G_X_GO")
A("s_cmp_lg_u32 %s, 0" % sLo)
A("s_cbranch_scc1 L_EXIT")
A("s_cmp_lg_u32 %s, %s" % (sWave, sJ))
A("s_cbranch_scc1 L_EXIT")
A.label("G_X_GO")


def xpre():
    A("v_lshlrev_b32 %s, 16, %s" % (v(r3), v(r3)))


A("global_load_ushort %s, %s, %s sc1" % (v(RX), v(gXr), pWJ))
A.label("G_RX_CHK")
A("s_waitcnt vmcnt(0)")
A("v_lshlrev_b32 %s, 16, %s" % (v(r3), v(RX)))
A("v_cmp_u_f32 vcc, %s, %s" % (v(r3), v(r3)))
A("s_cbranch_vccnz G_RX_RETRY")
A.label("G_RX_OK")
OOL.append(["G_RX_RETRY:", "global_load_ushort %s, %s, %s sc1" % (v(RX), v(gXr), pWJ),
            "s_sub_u32 %s, %s, 1" % (sBud, sBud), "s_cbranch_scc0 G_RX_CHK", "s_mov_b32 %s, 0" % sBud, "s_branch G_RX_OK"])
A("v_add_f32 %s, %s, %s" % (v(r3), v(r3), v(gB2)))
A("s_barrier")
sleep(P["D_X"])
stamp("G", 13)


def x_issue(a):
    A("global_load_dwordx4 %s, %s, %s sc1" % (v(a, 4), v(gXg), pWL))
    A("global_load_dwordx4 %s, %s, %s offset:256 sc1" % (v(a + 4, 4), v(gXg), pWL))


def x_post(a):
    add_ab2(a)
    g_treduce_to(a, r0)


fast_poll(x_issue, None, x_post, None, [r0], GS)
stamp("G")
A("v_add_f32 %s, %s, %s" % (v(r0), v(r0), v(r3)))
A("v_cvt_pk_bf16_f32 %s, %s, %s" % (v(r0), v(r0), v(r0)))
A("s_cmp_lg_u32 %s, 0" % sL)
A("s_cbranch_scc1 G_FINAL")
A("ds_write_b16 %s, %s" % (v(gXlds), v(r0)))
A("s_mov_b32 %s, 1" % sL)
padd(pWL, pWL, LSTR)
A("s_waitcnt lgkmcnt(0)")
A("s_barrier")
A("s_waitcnt vmcnt(0)")
A("s_branch G_ENTRY")
A.label("G_FINAL")
sleep(P.get("ENDSLEEP", 0))
if "ECHO" in P:
    A("s_memrealtime s[82:83]")
    A("s_sub_u32 s80, s80, s78")
    A("s_waitcnt lgkmcnt(0)")
    A("s_add_u32 s80, s80, s82")
    A.label("ECHO_SPIN")
    A("s_memrealtime s[82:83]")
    A("s_waitcnt lgkmcnt(0)")
    A("s_cmp_lt_u32 s82, s80")
    A("s_cbranch_scc1 ECHO_SPIN")
A("global_store_short %s, %s, %s" % (v(gOut), v(r0), pOUT))
A.label("L_EXIT")
stamp_dump()
A.label("L_END")
A("s_endpgm")
for blk in OOL:
    for l in blk:
        A(l)
A("s_endpgm")

A.fix_hazards()

hdr = open("cdna_kernels/%s.s.ref" % NAME).read().split("; Override launch")[0]
out = hdr + """; @launch grid=(256,1,1) block=(768,1,1) lds=%d
.amdgcn_target "amdgcn-amd-amdhsa--gfx950"
.text
.globl %s_kernel
.p2align 8
.type %s_kernel,@function
%s_kernel:
%s
    ; pad the code section so that the 12 KB code prefetch stays inside it
    .fill ((12288 + 256 - (. - %s_kernel)) / 4), 4, 0xbf810000
.section .rodata,"a"
.p2align 6
.amdhsa_kernel %s_kernel
  .amdhsa_next_free_vgpr 168
  .amdhsa_next_free_sgpr 96
  .amdhsa_accum_offset 168
  .amdhsa_group_segment_fixed_size 0
  .amdhsa_kernarg_size 104
  .amdhsa_user_sgpr_count 2
  .amdhsa_user_sgpr_kernarg_segment_ptr 1
  .amdhsa_system_sgpr_workgroup_id_x 1
.end_amdhsa_kernel
""" % (LDS_TOTAL, NAME, NAME, NAME, A.text(), NAME, NAME)
open(sys.argv[1], "w").write(out)
print("wrote", sys.argv[1], "instructions:", sum(1 for x in A.ins if not x.label), "LDS", LDS_TOTAL)
```

```python
import re

TRANS = ("v_exp_f32", "v_log_f32", "v_rcp_f32", "v_rsq_f32", "v_sqrt_f32", "v_sin_f32", "v_cos_f32")


def _regs(tok):
    tok = tok.strip()
    tok = tok.lstrip("-")
    m = re.fullmatch(r"abs\((.*)\)", tok)
    if m:
        tok = m.group(1)
    m = re.fullmatch(r"\|(.*)\|", tok)
    if m:
        tok = m.group(1)
    m = re.fullmatch(r"([vsa])(\d+)", tok)
    if m:
        return {(m.group(1), int(m.group(2)))}
    m = re.fullmatch(r"([vsa])\[(\d+):(\d+)\]", tok)
    if m:
        return {(m.group(1), i) for i in range(int(m.group(2)), int(m.group(3)) + 1)}
    if tok in ("vcc", "vcc_lo", "vcc_hi"):
        return {("x", "vcc")}
    if tok in ("exec", "exec_lo", "exec_hi"):
        return {("x", "exec")}
    if tok == "m0":
        return {("x", "m0")}
    return set()


class Ins:
    def __init__(self, text):
        self.text = text
        t = text.split(";")[0].strip()
        self.label = None
        if t.endswith(":"):
            self.label = t[:-1]
            self.op = None
            return
        parts = t.split(None, 1)
        self.op = parts[0]
        rest = parts[1] if len(parts) > 1 else ""
        ops, cur, depth = [], "", 0
        for c in rest:
            if c in "[(":
                depth += 1
            if c in "])":
                depth -= 1
            if c == "," and depth == 0:
                ops.append(cur.strip())
                cur = ""
            else:
                cur += c
        if cur.strip():
            ops.append(cur.strip())
        self.mods = ""
        if ops:
            sp = ops[-1].split(None, 1)
            if len(sp) > 1 and not ops[-1].startswith("hwreg"):
                ops[-1] = sp[0]
                self.mods = sp[1]
        self.ops = ops
        op = self.op
        self.is_mfma = op.startswith("v_mfma")
        self.is_valu = op.startswith("v_") and not self.is_mfma
        self.is_trans = any(op.startswith(x) for x in TRANS)
        self.is_ds = op.startswith("ds_")
        self.is_vmem = op.startswith("global_") or op.startswith("buffer_")
        self.is_salu = op.startswith("s_")
        self.is_dpp = "_dpp" in op or "quad_perm" in self.mods or "row_" in self.mods
        self.is_permlane = op.startswith("v_permlane")
        self.is_branch = op.startswith("s_cbranch") or op == "s_branch"
        R = [_regs(o) for o in ops]
        w, r = set(), set()
        self.srcc = set()
        self.srcab = set()
        self.store_data = set()
        if self.is_mfma:
            w = R[0]
            self.srcab = R[1] | R[2]
            self.srcc = R[3]
            r = self.srcab | self.srcc
        elif self.is_permlane:
            w = R[0] | R[1]
            r = R[0] | R[1]
        elif op.startswith("v_cmp"):
            w = set(R[0])
            if op.startswith("v_cmpx"):
                w |= {("x", "exec")}
            for x in R[1:]:
                r |= x
        elif op.startswith(("v_add_co", "v_sub_co", "v_addc_co", "v_subb_co", "v_subrev_co")):
            w = R[0] | R[1]
            for x in R[2:]:
                r |= x
        elif self.is_valu:
            w = set(R[0])
            for x in R[1:]:
                r |= x
            if op.startswith(("v_fmac", "v_dot2c")) or self.is_dpp or op.startswith("v_writelane"):
                r |= R[0]
            if op.startswith("v_cndmask") and len(ops) == 3:
                r |= {("x", "vcc")}
        elif self.is_ds:
            if op.startswith(("ds_read", "ds_bpermute", "ds_permute", "ds_swizzle")):
                w = set(R[0])
                for x in R[1:]:
                    r |= x
                if "d16" in op:
                    r |= R[0]
            else:
                for x in R:
                    r |= x
        elif self.is_vmem:
            if "_load_lds" in op or " lds" in (" " + self.mods):
                for x in R:
                    r |= x
                r |= {("x", "m0")}
                self.is_ldsdma = True
            elif "_load" in op:
                w = set(R[0])
                for x in R[1:]:
                    r |= x
            elif "atomic" in op:
                if "sc0" in self.mods:
                    w = set(R[0])
                    for x in R[1:]:
                        r |= x
                else:
                    for x in R:
                        r |= x
            else:
                for x in R:
                    r |= x
                if op.endswith(("x3", "x4")):
                    self.store_data = R[1] if op.startswith("global_") else R[0]
        elif self.is_salu:
            if op.startswith(("s_cmp", "s_bitcmp", "s_waitcnt", "s_nop", "s_barrier", "s_sleep", "s_endpgm", "s_setprio", "s_cbranch", "s_branch")):
                for x in R:
                    r |= x
            else:
                if R:
                    w = set(R[0])
                for x in R[1:]:
                    r |= x
                if "saveexec" in op:
                    w |= {("x", "exec")}
                    r |= {("x", "exec")}
        self.w, self.r = w, r

    def states(self):
        if self.op == "s_nop":
            return int(self.ops[0], 0) + 1
        return 1


def mfma_passes(op):
    if "16x16x32" in op or "16x16x16" in op:
        return 4
    if "32x32x16" in op or "32x32x8" in op:
        return 8
    raise ValueError(op)


def required(p, c):
    n = 0
    vs = lambda s: {x for x in s if x[0] in "va"}
    sg = lambda s: {x for x in s if x[0] == "s" or x == ("x", "vcc")}
    if p.is_valu and p.op.startswith("v_dot"):
        pw = vs(p.w)
        if pw & (c.r | c.w) and not c.is_salu:
            same_acc = c.op == p.op and len(c.ops) == 4 and _regs(c.ops[3]) == pw and not (pw & (_regs(c.ops[1]) | _regs(c.ops[2])))
            if not same_acc:
                n = max(n, 3)
    if p.is_valu:
        pw = vs(p.w)
        if c.is_mfma and pw & c.r:
            n = max(n, 2)
        if c.is_valu and c.is_dpp and pw & c.r:
            n = max(n, 2)
        if c.is_permlane and pw & c.r:
            n = max(n, 2)
        if c.op.startswith(("v_readlane", "v_readfirstlane")) and pw & c.r:
            n = max(n, 1)
        if p.is_trans and (c.is_valu or c.is_mfma) and not c.is_trans and pw & c.r:
            n = max(n, 1)
        if p.is_trans and (c.is_ds or c.is_vmem) and pw & c.r:
            n = max(n, 1)
        ps = sg(p.w)
        if ps:
            if c.is_vmem and ps & c.r:
                n = max(n, 5)
            if (c.is_valu or c.is_mfma) and ps & c.r:
                n = max(n, 4 if c.op.startswith(("v_readlane", "v_writelane")) else 2)
            if c.is_salu and ps & c.r:
                n = max(n, 1)
            if c.op.startswith("s_cbranch_vcc") and ("x", "vcc") in ps:
                n = max(n, 1)
        if ("x", "exec") in p.w:
            if c.is_mfma or c.is_permlane or c.op.startswith(("v_readlane", "v_readfirstlane", "v_writelane")):
                n = max(n, 4)
            if c.is_valu and c.is_dpp:
                n = max(n, 5)
            if c.is_salu and (("x", "exec") in c.r or c.op.startswith("s_cbranch_exec")):
                n = max(n, 1)
    if p.is_mfma:
        ps = mfma_passes(p.op)
        idx = {2: 0, 4: 1, 8: 2, 16: 3}[ps]
        if c.is_mfma:
            if p.w & c.srcab:
                n = max(n, (5, 8, 12, 20)[idx])
            if p.w & c.srcc:
                if p.w == c.srcc and mfma_passes(c.op) == ps:
                    n = max(n, (2, 0, 0, 0)[idx])
                else:
                    n = max(n, (4, 6, 10, 18)[idx])
            if p.w & c.w and not (p.w & c.srcc):
                n = max(n, (5, 8, 12, 20)[idx])
        elif (c.is_valu or c.is_ds or c.is_vmem) and (p.w & (c.r | c.w)):
            n = max(n, (5, 8, 12, 20)[idx])
        if c.is_valu and p.srcc & c.w:
            n = max(n, (1, 3, 7, 15)[idx])
    if p.is_vmem and p.store_data:
        if p.store_data & c.w:
            n = max(n, 2)
    if p.is_salu and ("x", "m0") in p.w and ("x", "m0") in c.r and c.is_vmem:
        n = max(n, 1)
    return n


class Asm:
    def __init__(self):
        self.ins = []

    def __call__(self, text):
        for line in text.strip().split("\n"):
            line = line.strip()
            if not line or line.startswith(";"):
                continue
            self.ins.append(Ins(line))

    def label(self, name):
        self.ins.append(Ins(name + ":"))

    def fix_hazards(self):
        changed = True
        while changed:
            changed = False
            ins = self.ins
            labels = {x.label: i for i, x in enumerate(ins) if x.label}
            srcs = {}
            for i, x in enumerate(ins):
                if x.op and x.is_branch:
                    srcs.setdefault(labels[x.ops[0]], []).append(i)

            def need(ci):
                c = ins[ci]
                worst = 0
                stack = [(ci - 1, 0)]
                seen = set()
                while stack:
                    i, dist = stack.pop()
                    while i >= 0 and dist < 21:
                        if (i, dist) in seen:
                            break
                        seen.add((i, dist))
                        x = ins[i]
                        if x.label:
                            for sidx in srcs.get(i, []):
                                stack.append((sidx, dist))
                            j = i - 1
                            while j >= 0 and ins[j].label:
                                break
                            if i - 1 >= 0 and ins[i - 1].op in ("s_branch", "s_endpgm"):
                                break
                            i -= 1
                            continue
                        rq = required(x, c)
                        if rq - dist > worst:
                            worst = rq - dist
                        dist += x.states()
                        i -= 1
                return worst

            for ci, c in enumerate(ins):
                if c.label:
                    continue
                n = need(ci)
                if n > 0:
                    nops = []
                    while n > 0:
                        k = min(n, 16)
                        nops.append(Ins("s_nop %d" % (k - 1)))
                        n -= k
                    self.ins = ins[:ci] + nops + ins[ci:]
                    changed = True
                    break

    def text(self):
        out = []
        for x in self.ins:
            out.append(x.text if x.label else "    " + x.text)
        return "\n".join(out)
```

```python
import sys, math, struct, os
from asmlib import Asm

NAME = "interleave_layers__sliding_block_cached__mixer_channel_mlp__decode"

P = dict(B0POS=2, W=64, NV1=8, D_A0=60, NSL=6, D_O=0, D_W1=10, D_W2=0, D_X=9, D_A=0, NT="nt", STAMP=0, FORCE_SAFE=0, PREF=1)
for a in sys.argv[2:]:
    k, v_ = a.split("=")
    P[k] = int(v_) if v_.lstrip("-").isdigit() else v_


def f32(x):
    return "0x%08x" % struct.unpack("<I", struct.pack("<f", x))[0]


LSTR = 0x200000
JSTR = 196608
E1, E1S, E4C = 0, 40960, 45056
E1T = 0x200000 * 2
REC = 0x1D8000
E2, E4, E4R, E2S, E4S = 65536, 131072, 188416, 61440, 193536
E3, E5 = 0x180000, 0x1C0000
SENT = 0x7F817F81
LW_Q, LW_O, LW_2, LW_1 = 0, 16384, 32768, 61440
RS_, RS1 = 320, 64
XOP = 68608
QOP = XOP + 5 * RS_
OOP = QOP + 4 * RS_
X1OP = OOP + 4 * RS_
HOP = X1OP + 5 * RS1
ML = HOP + 448
FLG = ML + 256
ST0 = FLG + 16
NONCE = ST0 + 32
AP = (NONCE + 16 + 1023) // 1024 * 1024
APB = 1152
LDS_TOTAL = AP + 16 * APB
assert all(x % 16 == 0 for x in (XOP, QOP, OOP, X1OP, HOP, ML))

sWave, sJ, sS, sHi, sLo, sR1, sC1, sL, sBud = "s3", "s4", "s5", "s6", "s7", "s8", "s9", "s10", "s11"
sT0, sT1, sT2, sT3 = "s12", "s13", "s14", "s15"
pX, pK, pV, pWQ, pWO, pW1, pB1, pW2, pB2, pOUT, pDBG, pWS = (
    "s[16:17]", "s[18:19]", "s[20:21]", "s[22:23]", "s[24:25]", "s[28:29]", "s[30:31]", "s[32:33]", "s[34:35]",
    "s[36:37]", "s[38:39]", "s[40:41]")
pWL = "s[42:43]"
sFast = "s44"
sU = "s45"
mQ = ["s[50:51]", "s[52:53]", "s[54:55]", "s[56:57]"]
sPermLo, sPermHi = "s58", "s59"
sC = "s60"
pT = "s[62:63]"
pT2 = "s[64:65]"
sXcc = "s66"
sK0, sK1, sK2 = "s67", "s68", "s69"
mT = "s[70:71]"
pWJ = "s[72:73]"
pPC = "s[46:47]"
pN = "s[48:49]"

A = Asm()
NT = (" " + P["NT"]) if P["NT"] else ""
STAMP = P["STAMP"]


def v(n, cnt=1):
    return "v%d" % n if cnt == 1 else "v[%d:%d]" % (n, n + cnt - 1)


def smov64(pair, val):
    lo = int(pair[2:].split(":")[0])
    A("s_mov_b32 s%d, 0x%08x" % (lo, val & 0xFFFFFFFF))
    A("s_mov_b32 s%d, 0x%08x" % (lo + 1, val >> 32))


def exec_lines(val):
    if val == -1:
        return ["s_mov_b64 exec, -1"]
    if 0 <= val <= 64:
        return ["s_mov_b64 exec, %d" % val]
    return ["s_mov_b32 exec_lo, 0x%08x" % (val & 0xFFFFFFFF), "s_mov_b32 exec_hi, 0x%08x" % (val >> 32)]


def set_exec(val):
    for l in exec_lines(val):
        A(l)


def padd(dst, src, soff):
    d = int(dst[2:].split(":")[0]); s = int(src[2:].split(":")[0])
    A("s_add_u32 s%d, s%d, %s" % (d, s, soff))
    A("s_addc_u32 s%d, s%d, 0" % (d + 1, s + 1))


def sexpr(dst, terms, const=0, tmp=sT3):
    first = True
    for (r, m) in terms:
        t = dst if first else tmp
        if m == 1:
            if first:
                A("s_mov_b32 %s, %s" % (dst, r))
            else:
                A("s_add_u32 %s, %s, %s" % (dst, dst, r))
            first = False
            continue
        if m & (m - 1) == 0:
            A("s_lshl_b32 %s, %s, %d" % (t, r, m.bit_length() - 1))
        else:
            A("s_mul_i32 %s, %s, %d" % (t, r, m))
        if not first:
            A("s_add_u32 %s, %s, %s" % (dst, dst, t))
        first = False
    if first:
        A("s_mov_b32 %s, %d" % (dst, const))
    elif const:
        A("s_add_u32 %s, %s, %d" % (dst, dst, const))


def vexpr(dst, terms, sreg=None, const=0):
    first = True
    for (r, m) in terms:
        if first:
            if m == 1:
                A("v_mov_b32 %s, %s" % (v(dst), v(r)))
            elif m & (m - 1) == 0:
                A("v_lshlrev_b32 %s, %d, %s" % (v(dst), m.bit_length() - 1, v(r)))
            else:
                A("v_mul_u32_u24 %s, %d, %s" % (v(dst), m, v(r)))
            first = False
        else:
            assert m & (m - 1) == 0, "non power of two term must come first"
            A("v_lshl_add_u32 %s, %s, %d, %s" % (v(dst), v(r), m.bit_length() - 1, v(dst)))
    if sreg:
        A("v_add_u32 %s, %s, %s" % (v(dst), sreg, v(dst)))
    if const:
        A("v_add_u32 %s, %d, %s" % (v(dst), const, v(dst)))


DPP = " row_mask:0xf bank_mask:0xf"
X1 = "quad_perm:[1,0,3,2]" + DPP
X2 = "quad_perm:[2,3,0,1]" + DPP
HM = "row_half_mirror" + DPP
RM = "row_mirror" + DPP
_lab = [0]


def newlabel(p="L"):
    _lab[0] += 1
    return "%s_%d" % (p, _lab[0])


def sleep(n):
    while n > 0:
        k = min(n, 127)
        A("s_sleep %d" % k)
        n -= k


def g_treduce(a):
    A("v_permlane16_swap_b32 %s, %s" % (v(a), v(a + 1)))
    A("v_permlane16_swap_b32 %s, %s" % (v(a + 2), v(a + 3)))
    A("v_add_f32 %s, %s, %s" % (v(a), v(a), v(a + 1)))
    A("v_add_f32 %s, %s, %s" % (v(a + 2), v(a + 2), v(a + 3)))
    A("v_permlane32_swap_b32 %s, %s" % (v(a), v(a + 2)))
    A("v_add_f32 %s, %s, %s" % (v(a), v(a), v(a + 2)))


def g_allreduce(op, r, t):
    for sw in ("v_permlane16_swap_b32", "v_permlane32_swap_b32"):
        A("v_mov_b32 %s, %s" % (v(t), v(r)))
        A("%s %s, %s" % (sw, v(r), v(t)))
        A("%s %s, %s, %s" % (op, v(r), v(r), v(t)))


def budget_loop(top):
    A("s_sub_u32 %s, %s, 1" % (sBud, sBud))
    A("s_cbranch_scc0 %s" % top)
    A("s_mov_b32 %s, 0" % sBud)


def poll(loads, check_pairs, pre=None, nap=0):
    top, done = newlabel("POLL"), newlabel("PDONE")
    A.label(top)
    for l in loads:
        A(l)
    A("s_waitcnt vmcnt(0)")
    if pre:
        pre()
    first = True
    for (a, b) in check_pairs:
        if first:
            A("v_cmp_u_f32 vcc, %s, %s" % (v(a), v(b)))
            first = False
        else:
            A("v_cmp_u_f32 %s, %s, %s" % (mT, v(a), v(b)))
            A("s_or_b64 vcc, vcc, %s" % mT)
    A("s_cbranch_vccz %s" % done)
    sleep(nap)
    budget_loop(top)
    A.label(done)


def half(loads):
    import re
    if P.get("HALF") == 1:
        m = re.search(r"v\[(\d+):(\d+)\]", loads[1])
        for r_ in range(int(m.group(1)), int(m.group(2)) + 1):
            A("v_mov_b32 v%d, 0" % r_)
        return loads[:1]
    if P.get("HALF") == 2:
        out = []
        for l in loads:
            m = re.search(r"v\[(\d+):(\d+)\]", l)
            lo = int(m.group(1))
            A("v_mov_b32 v%d, 0" % (lo + 2)); A("v_mov_b32 v%d, 0" % (lo + 3))
            out.append(l.replace("dwordx4", "dwordx2").replace(m.group(0), "v[%d:%d]" % (lo, lo + 1)))
        return out
    return loads


def canary(load, pairs, mask, nap=0):
    set_exec(mask)
    poll([load], pairs, nap=nap)
    set_exec(-1)


def bulk(loads, mid, post, res):
    top, again, done = newlabel("BK"), newlabel("BKA"), newlabel("BKD")
    loads = half(loads)
    for l in loads:
        A(l)
    if mid:
        mid()
    A.label(top)
    A("s_waitcnt vmcnt(0)")
    post()
    A("v_cmp_u_f32 vcc, %s, %s" % (v(res[0]), v(res[-1])))
    A("s_cbranch_vccz %s" % done)
    for l in loads:
        A(l)
    budget_loop(top)
    A("s_waitcnt vmcnt(0)")
    A.label(done)


def round1(small, mask, loads, mid, post, res):
    top, done = newlabel("RD"), newlabel("RDD")
    loads = half(loads)
    A.label(top)
    set_exec(mask)
    A(small)
    set_exec(-1)
    for l in loads:
        A(l)
    A("s_waitcnt vmcnt(%d)" % len(loads))
    mid()
    A("s_waitcnt vmcnt(0)")
    post()
    A("v_cmp_u_f32 vcc, %s, %s" % (v(res[0]), v(res[-1])))
    A("s_cbranch_vccz %s" % done)
    budget_loop(top)
    A.label(done)


def pipe_poll(issue, n_small, n_bulk, mid, post, res, sets, gap):
    n = n_small + n_bulk
    k = len(sets)
    top, done = newlabel("PP"), newlabel("PPD")
    for i in range(k - 1):
        issue(sets[i])
        sleep(gap)
    A.label(top)
    for i in range(k):
        issue(sets[(i + k - 1) % k])
        if n_small:
            A("s_waitcnt vmcnt(%d)" % ((k - 1) * n + n_bulk))
            mid(sets[i])
        A("s_waitcnt vmcnt(%d)" % ((k - 1) * n))
        post(sets[i])
        A("v_cmp_u_f32 vcc, %s, %s" % (v(res[0]), v(res[-1])))
        A("s_cbranch_vccz %s" % done)
    budget_loop(top)
    A.label(done)


OOL = []


def interleave(c1, c2):
    out, i2 = [], 0
    for k, x in enumerate(c1):
        out.append(x)
        want = (k + 1) * len(c2) // max(1, len(c1) - 4)
        while i2 < min(want, len(c2)):
            out.append(c2[i2]); i2 += 1
    return out + c2[i2:]


class Cap:
    def __enter__(self):
        self.n = len(A.ins); return self

    def __exit__(self, *a):
        self.lines = [x.text for x in A.ins[self.n:]]
        del A.ins[self.n:]


def fast_poll_full(issue, mid, post, fin, res, a):
    top, again, done = newlabel("FP"), newlabel("FPR"), newlabel("FPD")
    A.label(top)
    issue(a)
    A("s_waitcnt vmcnt(0)")
    with Cap() as c2:
        post(a)
    if mid:
        with Cap() as c1:
            mid(a)
        for l in interleave(c1.lines, c2.lines):
            A(l)
    else:
        for l in c2.lines:
            A(l)
    if fin:
        fin(a)
    A("v_cmp_u_f32 vcc, %s, %s" % (v(res[0]), v(res[-1])))
    A("s_cbranch_vccnz %s" % again)
    A.label(done)
    OOL.append([again + ":", "s_sub_u32 %s, %s, 1" % (sBud, sBud), "s_cbranch_scc0 %s" % top,
                "s_mov_b32 %s, 0" % sBud, "s_branch %s" % done])


def fast_poll(issue, mid, post, fin, res, a):
    if not P.get("MPOLL", 1):
        return fast_poll_full(issue, mid, post, fin, res, a)
    with Cap() as ci:
        issue(a)
    loads = [l for l in ci.lines if l.startswith("global_load")]
    small = len(loads) == 3
    chk, again, done = newlabel("MPC"), newlabel("MPR"), newlabel("MPD")
    if small:
        n = 4 if "dwordx4" in loads[0] else 2
        for e in range(n):
            A("v_mov_b32 %s, 0" % v(a + 8 + e))
    for l in ci.lines:
        A(l)
    A.label(chk)
    A("s_waitcnt vmcnt(0)")
    t = a + 20
    A("v_add_f32 %s, %s, %s" % (v(t), v(a), v(a + 1)))
    A("v_add_f32 %s, %s, %s" % (v(t + 1), v(a + 2), v(a + 3)))
    A("v_add_f32 %s, %s, %s" % (v(t + 2), v(a + 4), v(a + 5)))
    A("v_add_f32 %s, %s, %s" % (v(t + 3), v(a + 6), v(a + 7)))
    if small:
        A("v_add_f32 %s, %s, %s" % (v(t), v(t), v(a + 8)))
        A("v_add_f32 %s, %s, %s" % (v(t + 1), v(t + 1), v(a + 9)))
        if n == 4:
            A("v_add_f32 %s, %s, %s" % (v(t + 2), v(t + 2), v(a + 10)))
            A("v_add_f32 %s, %s, %s" % (v(t + 3), v(t + 3), v(a + 11)))
    A("v_add_f32 %s, %s, %s" % (v(t), v(t), v(t + 1)))
    A("v_add_f32 %s, %s, %s" % (v(t + 2), v(t + 2), v(t + 3)))
    A("v_cmp_u_f32 vcc, %s, %s" % (v(t), v(t + 2)))
    A("s_cbranch_vccnz %s" % again)
    A.label(done)
    with Cap() as c2:
        post(a)
    if mid:
        with Cap() as c1:
            mid(a)
        for l in interleave(c1.lines, c2.lines):
            A(l)
    else:
        for l in c2.lines:
            A(l)
    if fin:
        fin(a)
    blk = [again + ":"]
    if small:
        em = [l for l in ci.lines if l.startswith("s_mov") and "-1" not in l]
        blk += em + ["s_and_b64 exec, exec, vcc", loads[0]]
    blk += ["s_mov_b64 exec, vcc"] + loads[-2:] + ["s_mov_b64 exec, -1",
            "s_sub_u32 %s, %s, 1" % (sBud, sBud), "s_cbranch_scc0 %s" % chk,
            "s_mov_b32 %s, 0" % sBud, "s_waitcnt vmcnt(0)", "s_branch %s" % done]
    OOL.append(blk)


def opt_poll(small, smask, sregs, loads, lregs, post, res, ck=None):
    top, done = newlabel("OP"), newlabel("OPD")
    cand, sm = "s[70:71]", "s[64:65]"
    regs = list(lregs) + (list(sregs) if small else [])
    if len(regs) % 2:
        regs.append(regs[-1])
    if small:
        smov64(sm, smask)
    A("s_mov_b64 %s, -1" % cand)
    if ck is not None:
        cycg(ck)
        if STAMP == 6:
            A("s_mov_b32 s77, %s" % sBud)
    A.label(top)
    if small:
        A("s_and_b64 exec, %s, %s" % (cand, sm))
        A(small)
        A("s_mov_b64 exec, %s" % cand)
    for l in loads:
        A(l)
    A("s_sub_u32 %s, %s, 1" % (sBud, sBud))
    A("s_cbranch_scc1 %s_X" % top)
    A("s_waitcnt vmcnt(0)")
    for i in range(0, len(regs), 2):
        A("v_cmpx_o_f32 vcc, %s, %s" % (v(regs[i]), v(regs[i + 1])))
    A("s_andn2_b64 %s, %s, exec" % (cand, cand))
    A("s_mov_b64 exec, %s" % cand)
    A("s_cbranch_scc1 %s" % top)
    A.label(done)
    A("s_mov_b64 exec, -1")
    if ck is not None:
        cycg(ck + 1)
        if STAMP == 6:
            A("s_sub_u32 s77, s77, %s" % sBud)
            A("v_writelane_b32 v15, s77, %d" % (48 + ck))
    post()
    if ck is not None:
        cycg(ck + 2)
    OOL.append([top + "_X:", "s_mov_b32 %s, 0" % sBud, "s_waitcnt vmcnt(0)", "s_branch %s" % done])


def split_poll(small, smask, sregs, loads, lregs, pre, post, ck=None):
    top, fm, slow, done = newlabel("SP"), newlabel("SPF"), newlabel("SPS"), newlabel("SPD")
    cand, sm = "s[70:71]", "s[64:65]"
    sr = list(sregs) + ([sregs[-1]] if len(sregs) % 2 else [])
    lr = list(lregs)
    smov64(sm, smask)
    A("s_mov_b64 %s, -1" % cand)
    if ck is not None:
        cycg(ck)
    A("s_mov_b64 exec, %s" % sm)
    A(small)
    A("s_mov_b64 exec, -1")
    for l in loads:
        A(l)
    A("s_waitcnt vmcnt(%d)" % len(loads))
    for i in range(0, len(sr), 2):
        A("v_cmpx_o_f32 vcc, %s, %s" % (v(sr[i]), v(sr[i + 1])))
    A("s_andn2_b64 vcc, %s, exec" % cand)
    A("s_mov_b64 exec, -1")
    A("s_cbranch_scc1 %s" % slow)
    A.label(fm)
    pre()
    A("s_branch %s_C" % top)
    A.label(top)
    for l in loads:
        A(l)
    A("s_sub_u32 %s, %s, 1" % (sBud, sBud))
    A("s_cbranch_scc1 %s_X" % top)
    A.label(top + "_C")
    A("s_waitcnt vmcnt(0)")
    for i in range(0, len(lr), 2):
        A("v_cmpx_o_f32 vcc, %s, %s" % (v(lr[i]), v(lr[i + 1])))
    A("s_andn2_b64 %s, %s, exec" % (cand, cand))
    A("s_mov_b64 exec, %s" % cand)
    A("s_cbranch_scc1 %s" % top)
    A.label(done)
    A("s_mov_b64 exec, -1")
    if ck is not None:
        cycg(ck + 1)
    post()
    if ck is not None:
        cycg(ck + 2)
    OOL.append([top + "_X:", "s_mov_b32 %s, 0" % sBud, "s_waitcnt vmcnt(0)", "s_branch %s" % done])
    allr = lr + sr
    blk = [slow + ":", "s_waitcnt vmcnt(0)"]
    blk += ["v_cmpx_o_f32 vcc, %s, %s" % (v(allr[i]), v(allr[i + 1])) for i in range(0, len(allr), 2)]
    blk += ["s_andn2_b64 %s, %s, exec" % (cand, cand), "s_cbranch_scc0 %s_E" % slow,
            "s_and_b64 exec, %s, %s" % (cand, sm), small, "s_mov_b64 exec, %s" % cand] + loads
    blk += ["s_sub_u32 %s, %s, 1" % (sBud, sBud), "s_cbranch_scc0 %s" % slow, "s_mov_b32 %s, 0" % sBud, "s_waitcnt vmcnt(0)",
            slow + "_E:", "s_mov_b64 exec, -1", "s_mov_b64 %s, -1" % cand, "s_branch %s" % fm]
    OOL.append(blk)


def stats_math(c, t, eps_mul, eps_add):
    A("v_add_f32_dpp %s, %s, %s %s" % (v(t), v(c), v(c), X1))
    for m in (X2, HM, RM):
        A("v_add_f32_dpp %s, %s, %s %s" % (v(t), v(t), v(t), m))
    A("v_readlane_b32 %s, %s, 0" % (sT0, v(t)))
    A("v_readlane_b32 %s, %s, 16" % (sT1, v(t)))
    A("v_mov_b32 %s, %s" % (v(t + 2), f32(1 / 512)))
    A("v_mov_b32 %s, %s" % (v(t + 3), f32(eps_add)))
    A("v_mul_f32 %s, %s, %s" % (v(t + 1), sT0, v(t + 2)))
    A("v_mul_f32 %s, %s, %s" % (v(t), sT1, v(t + 2)))
    A("v_fma_f32 %s, -%s, %s, %s" % (v(t), v(t + 1), v(t + 1), v(t)))
    if eps_mul == 1.0:
        A("v_add_f32 %s, abs(%s), %s" % (v(t), v(t), v(t + 3)))
    else:
        A("v_mov_b32 %s, %s" % (v(t + 2), f32(eps_mul)))
        A("v_fma_f32 %s, abs(%s), %s, %s" % (v(t), v(t), v(t + 2), v(t + 3)))
    A("v_rsq_f32 %s, %s" % (v(t), v(t)))
    A("v_mul_f32 %s, %s, %s" % (v(t + 1), v(t + 1), v(t)))


def store_intra(insn):
    ls, le = newlabel("SAFE"), newlabel("SEND")
    A("s_cmp_eq_u32 %s, 0" % sFast)
    A("s_cbranch_scc1 %s" % ls)
    for i in insn:
        A(i)
    A.label(le)
    OOL.append([ls + ":"] + [i + (" sc1" if i.startswith("global_store") else "") for i in insn] + ["s_branch %s" % le])


_st = {"G": 0, "S": 0}


def stamp(kind, idx=None):
    if idx is None:
        n = _st[kind]; _st[kind] += 1
    else:
        n = idx
    if "ECHO" in P and kind == "G" and P["ECHO"] % 100 == n:
        lab = newlabel("ECHO")
        A("s_cmp_lg_u32 %s, %d" % (sL, P["ECHO"] // 100))
        A("s_cbranch_scc1 %s" % lab)
        A("s_waitcnt lgkmcnt(0)")
        A("s_memrealtime s[80:81]")
        A("s_waitcnt lgkmcnt(0)")
        A.label(lab)
    if not STAMP:
        return
    if STAMP == 2 and not (kind == "G" and n in (2, 6)):
        return
    if STAMP in (4, 5, 6):
        return
    if STAMP == 3:
        A("s_lshl_b32 s76, %s, 4" % sL)
        A("s_add_u32 m0, s76, %d" % n)
        A("s_nop 0")
        A("v_writelane_b32 v15, %s, m0" % sBud)
        return
    A("s_waitcnt lgkmcnt(0)")
    A("s_memrealtime s[74:75]")
    A("s_lshl_b32 s76, %s, 4" % sL)
    A("s_add_u32 m0, s76, %d" % n)
    A("s_waitcnt lgkmcnt(0)")
    A("v_writelane_b32 v15, s74, m0")


def cyc(k):
    if STAMP == 4:
        A("s_memtime s[%d:%d]" % (80 + 2 * k, 81 + 2 * k))


def cycs(k):
    if STAMP == 5:
        A("s_memtime s[%d:%d]" % (80 + 2 * k, 81 + 2 * k))


def cycg(k):
    if STAMP == 6:
        A("s_memtime s[%d:%d]" % (80 + 2 * k, 81 + 2 * k))


def cycs_dump(n):
    if STAMP == 5:
        A("s_waitcnt lgkmcnt(0)")
        for k in range(n):
            A("v_writelane_b32 v15, s%d, %d" % (80 + 2 * k, 32 + k))


def cyc_dump(n):
    if STAMP == 4:
        A("s_waitcnt lgkmcnt(0)")
        for k in range(n):
            A("v_writelane_b32 v15, s%d, %d" % (80 + 2 * k, 32 + k))


def stamp_init():
    if STAMP:
        A("v_mov_b32 v15, 0")
        A("v_writelane_b32 v15, s78, 15")


def stamp_dump():
    if not STAMP:
        return
    A("s_mul_i32 s76, s2, 12")
    A("s_add_u32 s76, s76, %s" % sWave)
    A("s_lshl_b32 s76, s76, 8")
    A("s_add_u32 s76, s76, 0x800000")
    A("v_lshlrev_b32 v13, 2, v0")
    A("v_add_u32 v13, s76, v13")
    A("global_store_dword v13, v15, %s" % pWS)


def if_layer0():
    lab = newlabel("NOTL0")
    A("s_cmp_lg_u32 %s, 0" % sL)
    A("s_cbranch_scc1 %s" % lab)
    return lab


def ssync(k):
    top = newlabel("SSY")
    A("v_mov_b32 v5, %d" % (FLG + 4 + 4 * k))
    A("v_mov_b32 v6, 1")
    set_exec(1)
    A("ds_add_u32 v5, v6")
    set_exec(-1)
    A.label(top)
    A("ds_read_b32 v6, v5")
    A("s_waitcnt lgkmcnt(0)")
    A("v_readfirstlane_b32 %s, v6" % sT0)
    A("s_cmp_eq_u32 %s, 4" % sT0)
    done = newlabel("SSD")
    A("s_cbranch_scc1 %s" % done)
    budget_loop(top)
    A.label(done)


MFMA = "v_mfma_f32_16x16x32_bf16"
A("s_getpc_b64 %s" % pPC)
A("s_cmp_ge_u32 s2, 256")
A("s_cbranch_scc1 L_END")
if STAMP or "ECHO" in P:
    A("s_memrealtime s[78:79]")
A("s_load_dwordx16 s[16:31], s[0:1], 0")
A("s_load_dwordx8 s[32:39], s[0:1], 64")
A("s_load_dwordx2 s[40:41], s[0:1], 96")
if P["PREF"]:
    A("v_lshlrev_b32 v3, 4, v0")
    A("global_load_dwordx4 v[140:143], v3, %s offset:-4" % pPC)
A("v_lshrrev_b32 v1, 6, v0")
A("v_and_b32 v0, 63, v0")
A("v_readfirstlane_b32 %s, v1" % sWave)
A("s_and_b32 %s, s2, 7" % sJ)
A("s_lshr_b32 %s, s2, 3" % sS)
A("s_lshr_b32 %s, s2, 6" % sHi)
A("s_and_b32 %s, %s, 7" % (sLo, sS))
A("s_lshr_b32 %s, s2, 4" % sR1)
A("s_and_b32 %s, %s, 1" % (sC1, sS))
A("s_mov_b32 %s, 0" % sL)
A("s_mov_b32 %s, 100000" % sBud)
A("v_and_b32 v1, 15, v0")
A("v_lshrrev_b32 v2, 4, v0")
A("v_lshlrev_b32 v3, 4, v0")
A("s_mov_b32 %s, %s" % (sU, sWave))
A("s_sub_u32 %s, %s, 4" % (sWave, sWave))
A("s_cbranch_scc0 L_G")

WQ, WO, W1R, W2R, XR, DR, SS = 16, 32, 48, 56, 84, 112, 120
(sXa, sXb, sOrd, sX1a, sX1b, sHrd, sE1w, sE1sw, sAg, sAst, sQw, sCq0, sCq1, sCrd, sMlrd, sE2w, sE3w, sE4w, sE4sw, sE4rw, sE5w,
 sTr, sClr, sTr1) = range(144, 168)
SN = 8
sCsP = 139
sDma = 138
X0 = 132
ga, gb, gc = SS, SS + 4, SS + 8
STM = 0x0018001400120011
A("s_add_u32 %s, %s, 8" % (sWave, sU))
A("v_mov_b32 v4, %d" % FLG)
A("v_mov_b32 v6, 0")
A("v_mov_b32 v7, 0")
A("ds_write_b64 v4, v[6:7]")
A("ds_write_b64 v4, v[6:7] offset:8")
for i in range(4):
    A("v_mov_b32 %s, 0x%08x" % (v(SN + i), SENT))
A("s_and_b32 %s, %s, 1" % (sK0, sU))
A("s_lshr_b32 %s, %s, 1" % (sK1, sU))
sexpr(sT0, [(sS, 6144), (sU, 1536)])
A("v_add_u32 v7, %s, v3" % sT0)
sexpr(sT0, [("s2", 1280), (sK0, LSTR), (sK1, 640)], E3)
A("v_add_u32 v12, %s, v3" % sT0)
A("s_mul_i32 %s, %s, %d" % (sT0, sJ, JSTR))
A("v_lshrrev_b32 v13, 3, v0")
A("v_and_b32 v14, 7, v0")
vexpr(SS, [(13, 8192), (14, 16)])
sexpr(sT1, [(sHi, 128 * 8192), (sU, 32 * 8192), (sJ, 1024), (sLo, 128)])
sexpr(sT2, [(sU, 1024)])
A("v_add_u32 %s, %s, v3" % (v(SS + 1), sT2))
A("s_waitcnt lgkmcnt(0)")
padd(pWJ, pWS, sT0)
padd(pT, pWQ, sT1)
A("v_mov_b32 v4, 0")
A("s_or_b32 %s, s2, %s" % (sT0, sU))
A("s_cbranch_scc1 S_NONONCE")
A("s_memrealtime %s" % pN)
A("s_waitcnt lgkmcnt(0)")
A("s_or_b32 s48, s48, 1")
A("v_mov_b32 %s, s49" % v(SS + 3))
A("v_mov_b32 %s, s48" % v(SS + 2))
set_exec(1)
A("global_store_dwordx2 v4, %s, %s sc1" % (v(SS + 2, 2), pDBG))
set_exec(-1)
A.label("S_NONONCE")
def nonce_fetch():
    A("s_cmp_lg_u32 %s, 3" % sU)
    A("s_cbranch_scc1 S_NP_SKIP")
    A("v_mov_b32 v4, 0")
    sleep(P.get("D_N", 0))
    A.label("S_NP")
    A("global_load_dwordx2 v[6:7], v4, %s sc1" % pDBG)
    A("s_waitcnt vmcnt(0)")
    A("v_cmp_eq_u32 vcc, 0, v6")
    A("s_cbranch_vccz S_NP_DONE")
    A("s_sleep %d" % P.get("NSL", 2))
    budget_loop("S_NP")
    A.label("S_NP_DONE")
    A("v_mov_b32 v5, %d" % NONCE)
    A("ds_write_b64 v5, v[6:7]")
    A("s_waitcnt lgkmcnt(0)")
    if P.get("NLATE"):
        stamp("S", 10)
    A.label("S_NP_SKIP")


if not P.get("NLATE"):
    A("v_mov_b32 %s, v7" % v(SS + 4))
    nonce_fetch()
    A("v_mov_b32 v7, %s" % v(SS + 4))
A("global_load_dwordx4 %s, %s, %s%s" % (v(X0, 4), v(SS + 1), pX, NT))
A("s_lshl_b32 %s, %s, 12" % (sT1, sU))
for i in range(4):
    A("s_add_u32 m0, %s, %d" % (sT1, LW_Q + 1024 * i))
    A("global_load_lds_dwordx4 %s, %s%s" % (v(SS), pT, NT))
    if i < 3:
        padd(pT, pT, 8 * 8192)
if P.get("NOCLR"):
    set_exec(1)
A("global_store_dwordx4 v7, %s, %s sc1" % (v(SN, 4), pWJ))
set_exec(1 if P.get("NOCLR") else 0xFFFFFFFF)
A("global_store_dwordx4 v7, %s, %s offset:1024 sc1" % (v(SN, 4), pWJ))
set_exec(1 if P.get("NOCLR") else 0xFFFFFFFFFF)
A("global_store_dwordx4 v12, %s, %s sc1" % (v(SN, 4), pWS))
set_exec(-1)
A("s_barrier")
stamp_init()
stamp("S", 9)
if P.get("NLATE"):
    nonce_fetch()
A("s_getreg_b32 %s, hwreg(HW_REG_XCC_ID)" % sXcc)
A("s_and_b32 %s, %s, 7" % (sXcc, sXcc))
A("s_mov_b32 s42, s40")
A("s_mov_b32 s43, s41")
A("s_mov_b32 %s, 0" % sFast)
sexpr(sT0, [(sS, 6144), (sU, 1536)])
A("v_add_u32 %s, %s, v3" % (v(sClr), sT0))
A("v_mov_b32 v12, 0x3f803f80")
vexpr(13, [(0, 4)], None, XOP + 4 * RS_)
A("ds_write_b32 v13, v12")
vexpr(13, [(1, 4)], None, X1OP + 4 * RS1)
A("ds_write_b32 v13, v12")
A("v_lshrrev_b32 v12, 2, v1")
A("v_min_u32 v13, 4, v1")
A("v_and_b32 v14, 3, v1")
vexpr(sXa, [(12, RS_), (2, 16)], None, XOP)
sexpr(sT0, [(sU, 64)], XOP)
vexpr(sXb, [(13, RS_), (2, 16)], sT0)
vexpr(sOrd, [(14 if P.get("WIDE", 0) else 12, RS_), (2, 16)], None, OOP)
vexpr(sX1a, [(12, RS1), (2, 16)], None, X1OP)
vexpr(sX1b, [(13, RS1), (2, 16)], None, X1OP)
vexpr(sHrd, [(2, 16)], None, HOP)
sexpr(sT0, [(sHi, 2048), (sLo, 256), (sU, 64)], E1)
vexpr(sE1w, [(2, 8192), (1, 4)], sT0)
vexpr(SS + 3, [(2, 128)])
A("v_lshlrev_b32 %s, 2, v12" % v(SS + 4))
A("v_sub_u32 %s, %s, %s" % (v(SS + 3), v(SS + 3), v(SS + 4)))
sexpr(sT0, [(sLo, 512), (sHi, 32), (sU, 8)], E1S + 4)
A("v_add_u32 %s, %s, %s" % (v(sE1sw), sT0, v(SS + 3)))
sexpr(sT0, [(sR1, 8)], E4S + 4)
A("v_add_u32 %s, %s, %s" % (v(sE4sw), sT0, v(SS + 3)))
sexpr(sT0, [(sR1, 64)], E4R)
vexpr(sE4rw, [(14, 1024), (2, 16)], sT0)
A("v_and_b32 %s, 31, v0" % v(SS + 3))
A("v_lshrrev_b32 %s, 5, v0" % v(SS + 4))
sexpr(sT0, [(sHi, 8192), (sU, 512)], E1)
vexpr(sAg, [(SS + 4, 4096), (SS + 3, 16)], sT0)
sexpr(sT0, [(sLo, 512), (sHi, 128)], E1S)
vexpr(sAst, [(1, 8), (2, 4)], sT0)
sexpr(sT0, [(sU, RS_)], QOP)
vexpr(sQw, [(SS + 3, 8), (SS + 4, 4)], sT0)
A("v_bfe_u32 %s, v0, 4, 1" % v(SS + 5))
A("v_bfe_u32 %s, v0, 2, 2" % v(SS + 6))
A("v_and_b32 %s, 3, v0" % v(SS + 7))
sexpr(sT0, [(sU, 288)], AP)
vexpr(sCrd, [(SS + 4, 8 * APB), (1, 16)], sT0)
A("v_mul_u32_u24 %s, %d, %s" % (v(SS + 5), APB, v(SS + 5)))
A("v_add_u32 %s, %s, %s" % (v(sCrd), v(sCrd), v(SS + 5)))
sexpr(sT0, [(sU, 64)], ML)
vexpr(sMlrd, [(SS + 4, 32)], sT0)
sexpr(sT0, [(sU, 32 * 512), (sS, 512)], E2)
vexpr(sE2w, [(0, 8)], sT0)
sexpr(sC, [(sU, 256), (sS, 8)], E2S)
if P.get("E3B", 1):
    sexpr(sT0, [(sLo, 16384), (sK1, 8192), (sJ, 128), (sHi, 32), (sK0, 4096)], E3)
    vexpr(sE3w, [(2, 1024), (1, 2)], sT0)
elif P.get("E3L", 1):
    sexpr(sT0, [(sLo, 32768), (sK1, 16384), (sJ, 256), (sHi, 64), (sK0, 8192)], E3)
    vexpr(sE3w, [(2, 2048), (1, 4)], sT0)
else:
    sexpr(sT0, [(sLo, 32768), (sK1, 16384), (sJ, 2048), (sHi, 512), (sK0, 256)], E3)
    vexpr(sE3w, [(0, 4)], sT0)
sexpr(sT0, [(sR1, 896), (sC1, 448), (sU, 128)], E4)
vexpr(sE4w, [(2, 16 * 896), (1, 4)], sT0)
sexpr(sT0, [("s2", 256), (sU, 64)], E5)
if P.get("WIDE", 0):
    vexpr(sE5w, [(2, 16)], sT0)
else:
    vexpr(sE5w, [(1, 4)], sT0)
A("v_lshl_add_u32 %s, v2, 3, v12" % v(SS + 3))
sexpr(sT0, [(sU, 32)])
vexpr(sTr, [(SS + 3, 128), (14, 8)], sT0)
sexpr(sT0, [(sU, 64)])
vexpr(sTr1, [(SS + 3, 224), (14, 8)], sT0)
stamp("S", 11)
A("s_waitcnt vmcnt(0)")
stamp("S", 12)
sexpr(sT0, [(sU, RS_)], XOP)
vexpr(4, [(1, 16)], sT0)
A("s_lshl_b32 %s, %s, 4" % (sT0, sHi))
A("s_mov_b32 %s, 0xffff" % sT2)
A("s_mov_b32 %s, 0" % sT3)
A("s_lshl_b64 exec, s[14:15], %s" % sT0)
A("ds_write_b128 v4, %s" % v(X0, 4))
set_exec(-1)
for i in range(4):
    A("v_lshlrev_b32 %s, 16, %s" % (v(SS + 2 * i), v(X0 + i)))
    A("v_and_b32 %s, 0xffff0000, %s" % (v(SS + 2 * i + 1), v(X0 + i)))
A("v_add_f32 v4, %s, %s" % (v(SS), v(SS + 1)))
A("v_mul_f32 v5, %s, %s" % (v(SS), v(SS)))
A("v_fmac_f32 v5, %s, %s" % (v(SS + 1), v(SS + 1)))
for i in range(2, 8):
    A("v_add_f32 v4, v4, %s" % v(SS + i))
    A("v_fmac_f32 v5, %s, %s" % (v(SS + i), v(SS + i)))
for m in (X1, X2, HM, RM):
    A("v_add_f32_dpp v4, v4, v4 %s" % m)
    A("v_add_f32_dpp v5, v5, v5 %s" % m)
g_allreduce("v_add_f32", 4, 6)
g_allreduce("v_add_f32", 5, 6)
A("v_mul_f32 v4, %s, v4" % f32(1 / 512))
A("v_mul_f32 v5, %s, v5" % f32(1 / 512))
A("v_fma_f32 v5, -v4, v4, v5")
A("v_max_f32 v5, 0, v5")
A("v_add_f32 v5, %s, v5" % f32(1e-5))
A("v_rsq_f32 v5, v5")
sexpr(sT0, [(sU, 8)], ST0)
A("v_mov_b32 v6, %s" % sT0)
A("ds_write_b64 v6, v[4:5]")
A("s_waitcnt lgkmcnt(0)")
ssync(0)
stamp("S", 0)
for t in range(4):
    A("ds_read_b128 %s, %s offset:%d" % (v(XR + 4 * t, 4), v(sXa), 64 * t))
for t in range(4):
    for hh in range(2):
        A("ds_read_b64_tr_b16 %s, %s offset:%d" % (v(WQ + 4 * t + 2 * hh, 2), v(sTr), LW_Q + (32 * t + 4 * hh) * 128))
vexpr(4, [(2, 8)], None, ST0)
A("ds_read_b64 v[6:7], v4")
A("v_mov_b32 v4, %d" % NONCE)
A("ds_read_b64 v[12:13], v4")
for i in range(4):
    A("v_mov_b32 %s, 0x3f803f80" % v(XR + 16 + i))
A("s_waitcnt lgkmcnt(0)")
for t in range(4):
    A("%s %s, %s, %s, %s" % (MFMA, v(DR, 4), v(XR + 4 * t, 4), v(WQ + 4 * t, 4), "0" if t == 0 else v(DR, 4)))
    A("%s %s, %s, %s, %s" % (MFMA, v(DR + 4, 4), v(XR + 16, 4), v(WQ + 4 * t, 4), "0" if t == 0 else v(DR + 4, 4)))
A("v_fma_f32 %s, -v6, %s, %s" % (v(DR), v(DR + 4), v(DR)))
A("v_mul_f32 %s, %s, v7" % (v(DR), v(DR)))
A("v_mov_b32 %s, %s" % (v(sCsP), v(DR + 4)))
A("v_mov_b32 %s, v12" % v(DR + 1))
sexpr(sT0, [(sJ, 65536), (sHi, 4096), (sLo, 512), (sU, 128)], E1T)
vexpr(4, [(2, 16384), (1, 8)], sT0)
stamp("S", 1)
A("global_store_dwordx2 v4, %s, %s sc1" % (v(DR, 2), pWS))
A("v_readfirstlane_b32 s48, v12")
A("v_readfirstlane_b32 s49, v13")
A("s_cmp_lg_u32 %s, 1" % sU)
A("s_cbranch_scc1 S_NOREC")
RS = P.get("RS", 16)
sexpr(sT0, [(sJ, 32 * RS), (sS, RS)], REC)
A("v_mov_b32 v4, %s" % sT0)
A("v_mov_b32 v14, %s" % sXcc)
set_exec(1)
A("global_store_dwordx3 v4, v[12:14], %s sc1" % pWS)
set_exec(-1)
A.label("S_NOREC")


W2BLK = r'''sexpr(sT0, [(sJ, 224 * 1024), (sLo, 128), (sU, 7 * 8192)])
padd(pT, pW2, sT0)
sexpr(sT1, [(sU, 7 * 1024)], LW_2)
for k in range(7):
    A("s_add_u32 m0, %s, %d" % (sT1, 1024 * k))
    A("global_load_lds_dwordx4 %s, %s%s" % (v(sDma), pT, NT))
    if k < 6:
        padd(pT, pT, 8192)
'''


def PT1():
    padd(pT, pWJ, LSTR)
    A("global_load_dwordx4 v[140:143], %s, %s sc1" % (v(sClr), pT))
    A("s_mov_b32 exec_hi, 0")
    A("global_load_dwordx4 v[140:143], %s, %s offset:1024 sc1" % (v(sClr), pT))
    A("s_mov_b64 exec, -1")


def ptouch():
    A("global_load_dwordx4 v[140:143], %s, %s sc1" % (v(sClr), pWJ))
    set_exec(0xFFFFFFFF)
    A("global_load_dwordx4 v[140:143], %s, %s offset:1024 sc1" % (v(sClr), pWJ))
    set_exec(-1)
    if P.get("PTX", 0):
        sexpr(sT0, [("s2", 1280), (sK0, LSTR), (sK1, 640)], E3)
        A("v_add_u32 v7, %s, v3" % sT0)
        set_exec(0xFFFFFFFFFF)
        A("global_load_dwordx4 v[140:143], v7, %s sc1" % pWS)
        set_exec(-1)


def wt_slice(base):
    A("global_store_dwordx4 %s, %s, %s sc1" % (v(sClr), v(SN, 4), base))
    A("s_mov_b32 exec_hi, 0")
    A("global_store_dwordx4 %s, %s, %s offset:1024 sc1" % (v(sClr), v(SN, 4), base))
    A("s_mov_b64 exec, -1")


def half_treduce(r):
    A("v_permlane32_swap_b32 %s, %s" % (v(r), v(r + 2)))
    A("v_permlane32_swap_b32 %s, %s" % (v(r + 1), v(r + 3)))
    A("v_add_f32 %s, %s, %s" % (v(r), v(r), v(r + 2)))
    A("v_add_f32 %s, %s, %s" % (v(r + 1), v(r + 1), v(r + 3)))


AG = ["global_load_dwordx4 %s, %s, %s sc1" % (v(ga, 4), v(sAg), pWJ),
      "global_load_dwordx4 %s, %s, %s offset:2048 sc1" % (v(gb, 4), v(sAg), pWJ)]
AGC = [(ga + e, gb + e) for e in range(4)]
sexpr(sT0, [(sJ, 65536), (sHi, 16384), (sU, 1024)], E1T + 4096)
A("v_add_u32 v4, %s, v3" % sT0)
A("v_add_u32 v5, 8192, v4")
sexpr(sT0, [(sU, 64 * RS)], REC)
vexpr(6, [(0, RS)], sT0)
if P.get("PTOUCH", 1) == 2:
    ptouch()
sleep(P.get("D_A0", 20))
TQ = XR
A.label("S_AG0")
A("global_load_dwordx4 %s, v4, %s offset:-4096 sc1" % (v(TQ, 4), pWS))
A("global_load_dwordx4 %s, v4, %s sc1" % (v(TQ + 4, 4), pWS))
A("global_load_dwordx4 %s, v5, %s offset:-4096 sc1" % (v(TQ + 8, 4), pWS))
A("global_load_dwordx4 %s, v5, %s sc1" % (v(TQ + 12, 4), pWS))
A("s_waitcnt vmcnt(0)")
for i in range(8):
    A("v_xor_b32 %s, s48, %s" % (v(TQ + 2 * i + 1), v(TQ + 2 * i + 1)))
A("v_or3_b32 v7, %s, %s, %s" % (v(TQ + 1), v(TQ + 3), v(TQ + 5)))
A("v_or3_b32 v7, v7, %s, %s" % (v(TQ + 7), v(TQ + 9)))
A("v_or3_b32 v7, v7, %s, %s" % (v(TQ + 11), v(TQ + 13)))
A("v_or_b32 v7, v7, %s" % v(TQ + 15))
A("v_cmp_ne_u32 vcc, 0, v7")
A("s_cbranch_vccz S_AG0_DONE")
sleep(P.get("NAPQ", 8))
budget_loop("S_AG0")
A.label("S_AG0_DONE")
A("global_load_dwordx3 v[12:14], v6, %s sc1" % pWS)
A("v_mov_b32 v4, %d" % (FLG + 12))
A("v_mov_b32 v5, 1")
A("ds_write_b32 v4, v5")
stamp("S", 2)
for c in range(2):
    A("v_add_f32 %s, %s, %s" % (v(TQ + 2 * c), v(TQ + 2 * c), v(TQ + 4 + 2 * c)))
    A("v_add_f32 %s, %s, %s" % (v(TQ + 8 + 2 * c), v(TQ + 8 + 2 * c), v(TQ + 12 + 2 * c)))
    A("v_add_f32 %s, %s, %s" % (v(TQ + 2 * c), v(TQ + 2 * c), v(TQ + 8 + 2 * c)))
A("v_cvt_pk_bf16_f32 %s, %s, %s" % (v(ga), v(TQ), v(TQ + 2)))
sexpr(sT0, [(sU, RS_)], QOP)
vexpr(4, [(0, 4)], sT0)
A("ds_write_b32 v4, %s" % v(ga))
A("s_waitcnt lgkmcnt(0)")
A("s_barrier")
A("v_lshrrev_b32 v4, 3, v0")
A("v_and_b32 v5, 7, v0")
vexpr(sDma, [(4, 1024), (5, 16)])
sexpr(sT0, [(sJ, 512 * 1024), (sHi, 128 * 1024), (sU, 32 * 1024), (sLo, 128)])
padd(pT, pWO, sT0)
sexpr(sT1, [(sU, 4096)], LW_O)
for k in range(4):
    A("s_add_u32 m0, %s, %d" % (sT1, 1024 * k))
    A("global_load_lds_dwordx4 %s, %s%s" % (v(sDma), pT, NT))
    if k < 3:
        padd(pT, pT, 8192)
sexpr(sT0, [(sR1, 32 * 3584), (sJ, 448), (sC1, 224)])
padd(pT, pW1, sT0)
for k in range(2):
    A("s_lshl_b32 %s, %s, 1" % (sT1, sU))
    if k:
        A("s_add_u32 %s, %s, 1" % (sT1, sT1))
        A("s_min_u32 %s, %s, 6" % (sT1, sT1))
    A("s_lshl_b32 %s, %s, 6" % (sT0, sT1))
    A("v_add_u32 v4, %s, v0" % sT0)
    A("v_mul_u32_u24 v5, 4682, v4")
    A("v_lshrrev_b32 v5, 16, v5")
    A("v_mul_u32_u24 v7, 14, v5")
    A("v_sub_u32 v4, v4, v7")
    A("v_mul_u32_u24 v5, 3584, v5")
    A("v_lshl_add_u32 v4, v4, 4, v5")
    A("s_lshl_b32 %s, %s, 10" % (sT0, sT1))
    A("s_add_u32 m0, %s, %d" % (sT0, LW_1))
    A("global_load_lds_dwordx4 v4, %s%s" % (pT, NT))
for n in range(448):
    assert (n * 4682) >> 16 == n // 14
if P.get("W2P", 1) == 1:
    exec(W2BLK)
A("s_waitcnt vmcnt(%d)" % (13 if P.get("W2P", 1) == 1 else 6))
A("s_branch S_RP_CHK")
A.label("S_RP")
A("global_load_dwordx3 v[12:14], v6, %s sc1" % pWS)
A("s_waitcnt vmcnt(0)")
A.label("S_RP_CHK")
A("v_cmp_ne_u64 vcc, %s, v[12:13]" % pN)
A("s_cbranch_vccz S_RP_DONE")
A("s_sleep %d" % P.get("PSL", 8))
budget_loop("S_RP")
A("v_mov_b32 v14, -1")
A.label("S_RP_DONE")
A("s_lshr_b32 %s, %s, 1" % (sT0, sJ))
A("s_cmp_lg_u32 %s, %s" % (sT0, sU))
A("s_cbranch_scc1 S_REC_SKIP")
A("v_cmp_ne_u32 vcc, %s, v14" % sXcc)
A("s_bitcmp1_b32 %s, 0" % sJ)
A("s_cselect_b32 %s, vcc_hi, vcc_lo" % sT0)
A("s_cmp_eq_u32 %s, 0" % sT0)
A("s_cselect_b32 %s, 1, 0" % sT0)
if P["FORCE_SAFE"]:
    A("s_mov_b32 %s, 0" % sT0)
A("v_mov_b32 v5, %d" % FLG)
A("v_mov_b32 v7, %s" % sT0)
A("ds_write_b32 v5, v7")
A.label("S_REC_SKIP")
stamp("S", 14)
if P.get("PTOUCH", 1) == 1:
    ptouch()
A("s_waitcnt lgkmcnt(0)")

TRBLK = r'''lab = if_layer0()
for t in range(7):
    for hh in range(2):
        A("ds_read_b64_tr_b16 %s, %s offset:%d" % (v(W2R + 4 * t + 2 * hh, 2), v(sTr), LW_2 + (32 * t + 4 * hh) * 128))
A("s_waitcnt lgkmcnt(0)")
A.label(lab)
'''
A.label("S_LOOP")
A("s_barrier")
cycs(0)
stamp("S", 3)
cm = XR
ca = XR + 8
A("v_mov_b32 v5, %d" % FLG)
A("ds_read_b32 v6, v5")
A("ds_read_b128 %s, %s" % (v(cm, 4), v(sMlrd)))
A("ds_read_b128 %s, %s offset:16" % (v(cm + 4, 4), v(sMlrd)))
for k in range(4):
    A("ds_read_b128 %s, %s offset:%d" % (v(ca + 4 * k, 4), v(sCrd), 2 * APB * k))
cM, cL, cT, cAd = SS, SS + 1, SS + 2, SS + 3
A("v_mov_b32 %s, %s" % (v(cAd), sC))
A("s_waitcnt lgkmcnt(%d)" % (0 if STAMP == 5 else 4))
cycs(1)
A("v_readfirstlane_b32 %s, v6" % sFast)
A("v_max3_f32 %s, %s, %s, %s" % (v(cM), v(cm), v(cm + 2), v(cm + 4)))
A("v_max_f32 %s, %s, %s" % (v(cM), v(cM), v(cm + 6)))
A("v_mov_b32 %s, %s" % (v(cT), v(cM)))
A("v_permlane32_swap_b32 %s, %s" % (v(cM), v(cT)))
A("v_max_f32 %s, %s, %s" % (v(cM), v(cM), v(cT)))
for k in range(4):
    A("v_sub_f32 %s, %s, %s" % (v(cm + 2 * k), v(cm + 2 * k), v(cM)))
for k in range(4):
    A("v_exp_f32 %s, %s" % (v(cm + 2 * k), v(cm + 2 * k)))
A("s_waitcnt lgkmcnt(0)")
if P.get("PK", 1):
    for h in range(2):
        A("v_pk_mul_f32 %s, %s, %s op_sel_hi:[0,1]" % (v(DR + 2 * h, 2), v(cm, 2), v(ca + 2 * h, 2)))
    A("v_mul_f32 %s, %s, %s" % (v(cL), v(cm), v(cm + 1)))
    for k in range(1, 4):
        for h in range(2):
            A("v_pk_fma_f32 %s, %s, %s, %s op_sel_hi:[0,1,1]" % (v(DR + 2 * h, 2), v(cm + 2 * k, 2), v(ca + 4 * k + 2 * h, 2), v(DR + 2 * h, 2)))
        A("v_fmac_f32 %s, %s, %s" % (v(cL), v(cm + 2 * k), v(cm + 2 * k + 1)))
else:
    for e in range(4):
        A("v_mul_f32 %s, %s, %s" % (v(DR + e), v(cm), v(ca + e)))
    A("v_mul_f32 %s, %s, %s" % (v(cL), v(cm), v(cm + 1)))
    for k in range(1, 4):
        for e in range(4):
            A("v_fmac_f32 %s, %s, %s" % (v(DR + e), v(cm + 2 * k), v(ca + 4 * k + e)))
        A("v_fmac_f32 %s, %s, %s" % (v(cL), v(cm + 2 * k), v(cm + 2 * k + 1)))
A("v_mov_b32 %s, %s" % (v(cT), v(cL)))
A("v_permlane32_swap_b32 %s, %s" % (v(DR), v(DR + 2)))
A("v_permlane32_swap_b32 %s, %s" % (v(DR + 1), v(DR + 3)))
A("v_permlane32_swap_b32 %s, %s" % (v(cL), v(cT)))
A("v_add_f32 %s, %s, %s" % (v(DR), v(DR), v(DR + 2)))
A("v_add_f32 %s, %s, %s" % (v(DR + 1), v(DR + 1), v(DR + 3)))
A("v_add_f32 %s, %s, %s" % (v(cL), v(cL), v(cT)))
cycs(2)
store_intra(["global_store_dwordx2 %s, %s, %s" % (v(sE2w), v(DR, 2), pWJ),
             "s_mov_b64 exec, 1",
             "global_store_dwordx2 %s, %s, %s" % (v(cAd), v(cM, 2), pWJ),
             "s_mov_b64 exec, -1"])
if P.get("SIGI", 1):
    A("s_barrier")
cycs(3)
stamp("S", 4)
W2P = P.get("W2P", 1)
lab = if_layer0()
A("v_add_u32 %s, %d, %s" % (v(gc), 4 * 8192, v(sE1w)))
A("v_add_u32 %s, %d, %s" % (v(gc + 1), (E4C - E4) & 0xFFFFFFFF, v(sE4w)))
for i in range(4):
    A("v_mov_b32 %s, 0x3f803f80" % v(XR + i))
A("s_waitcnt vmcnt(%d)" % (2 + (7 if W2P == 1 else 0) + ((2 + P.get("PTX", 0)) if P.get("PTOUCH", 1) == 1 else 0)))
if W2P == 2:
    exec(W2BLK)
ssync(1)
for tl in range(2):
    for hh in range(2):
        A("ds_read_b64_tr_b16 %s, %s offset:%d" % (v(W1R + 4 * tl + 2 * hh, 2), v(sTr1), LW_1 + 4 * hh * 224 + 32 * tl))
for t in range(4):
    for hh in range(2):
        A("ds_read_b64_tr_b16 %s, %s offset:%d" % (v(WO + 4 * t + 2 * hh, 2), v(sTr), LW_O + (32 * t + 4 * hh) * 128))
A("s_waitcnt lgkmcnt(8)")
A("%s %s, %s, %s, 0" % (MFMA, v(DR + 4, 4), v(XR, 4), v(W1R, 4)))
A("%s %s, %s, %s, 0" % (MFMA, v(XR + 4, 4), v(XR, 4), v(W1R + 4, 4)))
A("s_cmp_eq_u32 %s, 3" % sU)
A("s_cselect_b32 %s, 0, 0xffff" % sT0)
store_intra(exec_lines(0xFFFF) +
            ["global_store_dword %s, %s, %s" % (v(gc), v(sCsP), pWJ),
             "global_store_dword %s, %s, %s" % (v(gc + 1), v(DR + 4), pWJ),
             "s_mov_b32 exec_lo, %s" % sT0,
             "global_store_dword %s, %s, %s offset:64" % (v(gc + 1), v(XR + 4), pWJ),
             "s_mov_b64 exec, -1"])
A("s_waitcnt lgkmcnt(0)")
A.label(lab)
A("s_barrier")
cycs(4)
if STAMP == 5:
    A("s_waitcnt lgkmcnt(0)")
stamp("S", 5)
for t in range(4):
    A("ds_read_b128 %s, %s offset:%d" % (v(XR + 4 * t, 4), v(sOrd), 64 * t))
for t in range(4):
    A("s_waitcnt lgkmcnt(%d)" % (3 - t))
    A("%s %s, %s, %s, %s" % (MFMA, v(DR, 4), v(XR + 4 * t, 4), v(WO + 4 * t, 4), "0" if t == 0 else v(DR, 4)))
if P.get("E3B", 1):
    A("v_cvt_pk_bf16_f32 %s, %s, %s" % (v(DR), v(DR), v(DR)))
    A("global_store_short %s, %s, %s sc1" % (v(sE3w), v(DR), pWL))
else:
    A("global_store_dword %s, %s, %s sc1" % (v(sE3w), v(DR), pWL))
cycs(5)
A("s_barrier")
lab = if_layer0()
if W2P == 3:
    exec(W2BLK)
A("s_sub_u32 %s, 4, %s" % (sT0, sHi))
A("s_lshl_b32 %s, %s, 13" % (sT0, sT0))
A("v_add_u32 %s, %s, %s" % (v(gc), sT0, v(sAg)))
poll(["global_load_dwordx4 %s, %s, %s sc1" % (v(ga, 4), v(gc), pWJ),
      "global_load_dwordx4 %s, %s, %s offset:2048 sc1" % (v(gb, 4), v(gc), pWJ)], AGC, nap=4)
for e in range(4):
    A("v_add_f32 %s, %s, %s" % (v(ga + e), v(ga + e), v(gb + e)))
half_treduce(ga)
A("v_mov_b32 %s, %s" % (v(sCq0), v(ga)))
A("v_mov_b32 %s, %s" % (v(sCq1), v(ga + 1)))
A.label(lab)
A("s_barrier")
cycs(6)
if STAMP == 5:
    A("s_waitcnt lgkmcnt(0)")
stamp("S", 6)
A("ds_read_b128 %s, %s" % (v(XR, 4), v(sX1a)))
A("s_cmp_eq_u32 %s, 3" % sU)
A("s_cbranch_scc1 S_W1_W3")
A("s_waitcnt lgkmcnt(0)")
A("%s %s, %s, %s, 0" % (MFMA, v(DR, 4), v(XR, 4), v(W1R, 4)))
A("%s %s, %s, %s, 0" % (MFMA, v(DR + 4, 4), v(XR, 4), v(W1R + 4, 4)))
store_intra(["global_store_dword %s, %s, %s" % (v(sE4w), v(DR), pWJ),
             "global_store_dword %s, %s, %s offset:64" % (v(sE4w), v(DR + 4), pWJ)])
A("s_branch S_W1_DONE")
A.label("S_W1_W3")
A("ds_read_b128 %s, %s" % (v(XR + 4, 4), v(sX1b)))
A("s_waitcnt lgkmcnt(1)")
A("%s %s, %s, %s, 0" % (MFMA, v(DR, 4), v(XR, 4), v(W1R, 4)))
A("s_waitcnt lgkmcnt(0)")
A("%s %s, %s, %s, 0" % (MFMA, v(DR + 4, 4), v(XR, 4), v(XR + 4, 4)))
store_intra(["global_store_dword %s, %s, %s" % (v(sE4w), v(DR), pWJ)] + exec_lines(STM) +
            ["global_store_dword %s, %s, %s" % (v(sE4sw), v(DR + 4), pWJ)] + exec_lines(0x000F000F000F000F) +
            ["global_store_dwordx4 %s, %s, %s" % (v(sE4rw), v(XR + 4, 4), pWJ), "s_mov_b64 exec, -1"])
A.label("S_W1_DONE")
cycs(7)
if P.get("SIGI", 1):
    A("s_barrier")
KEEP = 136
if P.get("CLEAN", 0) & 8:
    A("v_mov_b32 %s, %s" % (v(KEEP), v(DR)))
    A("v_mov_b32 %s, %s" % (v(KEEP + 1), v(DR + 4)))
if P.get("W2LATE", 0):
    A("s_waitcnt vmcnt(0)")
else:
    exec(TRBLK)
A("s_barrier")
cycs(8)
if STAMP == 5:
    A("s_waitcnt lgkmcnt(0)")
stamp("S", 7)
if P.get("W2LATE", 0):
    exec(TRBLK)
for t in range(7):
    A("ds_read_b128 %s, %s offset:%d" % (v(XR + 4 * t, 4), v(sHrd), 64 * t))
for t in range(7):
    A("s_waitcnt lgkmcnt(%d)" % (6 - t))
    ab = (v(W2R + 4 * t, 4), v(XR + 4 * t, 4)) if P.get("WIDE", 0) else (v(XR + 4 * t, 4), v(W2R + 4 * t, 4))
    A("%s %s, %s, %s, %s" % (MFMA, v(DR, 4), ab[0], ab[1], "0" if t == 0 else v(DR, 4)))
if P.get("WIDE", 0):
    set_exec(0x0001000100010001)
    A("global_store_dwordx4 %s, %s, %s sc1" % (v(sE5w), v(DR, 4), pWL))
else:
    set_exec(0xFFFF)
    A("global_store_dword %s, %s, %s sc1" % (v(sE5w), v(DR), pWL))
set_exec(-1)
if P.get("SIG", 1):
    A("s_barrier")
cycs(9)
cycs_dump(10)
stamp("S", 8)
A("s_cmp_lg_u32 %s, 0" % sL)
A("s_cbranch_scc1 %s" % ("S_FIN" if P.get("CLEAN", 0) & 4 else "L_EXIT"))
A("s_mov_b32 %s, 1" % sL)
padd(pWL, pWL, LSTR)
sexpr(sT0, [(sS, 2176), (sU, 544)], E2S)
A("v_add_u32 v4, %s, v3" % sT0)
store_intra(exec_lines((1 << 34) - 1) + ["global_store_dwordx4 v4, %s, %s" % (v(SN, 4), pWJ), "s_mov_b64 exec, -1"])
A("s_lshl_b32 %s, %s, 6" % (sT0, sU))
A("v_add_u32 %s, %s, %s" % (v(SS), sT0, v(sXa)))
A("v_mov_b32 %s, 0" % v(gc))
A("s_waitcnt vmcnt(0)")
A("s_barrier")
stamp("S", 0)
for t in range(4):
    A("ds_read_b128 %s, %s offset:%d" % (v(XR + 4 * t, 4), v(sXa), 64 * t))
A("ds_read_b128 %s, %s" % (v(XR + 16, 4), v(sXb)))
A("ds_read_b128 %s, %s" % (v(XR + 20, 4), v(SS)))
for t in range(4):
    A("s_waitcnt lgkmcnt(%d)" % (5 - t))
    A("%s %s, %s, %s, %s" % (MFMA, v(DR, 4), v(XR + 4 * t, 4), v(WQ + 4 * t, 4), "0" if t == 0 else v(DR, 4)))
A("s_waitcnt lgkmcnt(0)")
A("%s %s, %s, %s, 0" % (MFMA, v(DR + 4, 4), v(XR + 20, 4), v(XR + 16, 4)))
stamp("S", 1)
store_intra(["global_store_dword %s, %s, %s" % (v(sE1w), v(DR), pWJ)] + exec_lines(STM) +
            ["global_store_dword %s, %s, %s" % (v(sE1sw), v(DR + 4), pWJ), "s_mov_b64 exec, -1"])
sleep(P["D_A"])
SSETS = [SS, XR, XR + 12][:P.get("NSETS", 2)]
q0_, q1_, q2_, q3_ = 4, 5, 6, 7


def a_post():
    t = XR
    with Cap() as c1:
        stats_math(gc, XR + 4, 1.0, 1e-5)
        A("v_mul_f32 %s, %s, %s" % (v(q2_), v(XR + 5), v(sCq0)))
        A("v_mul_f32 %s, %s, %s" % (v(q3_), v(XR + 5), v(sCq1)))
    with Cap() as c2:
        for e in range(4):
            A("v_add_f32 %s, %s, %s" % (v(t + e), v(ga + e), v(gb + e)))
        half_treduce(t)
    for l in interleave(c1.lines, c2.lines):
        A(l)
    A("v_fma_f32 %s, %s, %s, -%s" % (v(q0_), v(t), v(XR + 4), v(q2_)))
    A("v_fma_f32 %s, %s, %s, -%s" % (v(q1_), v(t + 1), v(XR + 4), v(q3_)))


opt_poll("global_load_dword %s, %s, %s sc1" % (v(gc), v(sAst), pWJ), 0xFFFFFFFF, [gc], AG, range(ga, ga + 8), a_post, [q0_, q1_])
stamp("S", 2)
A("v_cvt_pk_bf16_f32 %s, %s, %s" % (v(q0_), v(q0_), v(q1_)))
A("ds_write_b32 %s, %s" % (v(sQw), v(q0_)))
A("s_waitcnt lgkmcnt(0)")
A("s_barrier")
sexpr(sT0, [(sS, 2048), (sU, 512)], E4)
A("v_add_u32 v4, %s, v3" % sT0)
store_intra(exec_lines(0xFFFFFFFF) + ["global_store_dwordx4 v4, %s, %s" % (v(SN, 4), pWJ), "s_mov_b64 exec, -1"])
A("s_waitcnt vmcnt(0)")
A("s_branch S_LOOP")
if P.get("CLEAN", 0) & 4:
    A.label("S_FIN")
    sexpr(sT0, [(sS, 4096), (sU, 1024)])
    A("v_add_u32 v4, %s, v3" % sT0)
    A("global_store_dwordx4 v4, %s, %s sc1" % (v(SN, 4), pWJ))
    if P.get("CLEAN", 0) & 8:
        A("global_store_dword %s, %s, %s sc1" % (v(sE4w), v(KEEP), pWJ))
        A("s_cmp_eq_u32 %s, 3" % sU)
        A("s_cbranch_scc1 L_EXIT")
        A("global_store_dword %s, %s, %s offset:64 sc1" % (v(sE4w), v(KEEP + 1), pWJ))
    A("s_branch L_EXIT")

KR, VR, VF, QR, SR = 16, 48, 80, 112, 128
GS = 48
(gOg, gOml, gOlds, gW1g, gW1x, gW1lds, gW2g, gW2s, gW2lds, gXg, gXr, gXlds, gB1, gB2, gCs1, gQrd, gApw, gMlw, gOut, gDma) = range(148, 168)
_gn = [1 if P["PREF"] else 0]


def gload(t):
    if P.get("NODMA") and "lds" in t:
        t = "global_load_dword v140, v3, %s" % pB1 if False else "s_nop 0"
        A(t)
        return
    if _gn[0] >= P["W"]:
        if P.get("ADAPT"):
            lab = newlabel("THR")
            A("ds_read_b32 v130, v129")
            A("s_waitcnt lgkmcnt(0)")
            A("v_readfirstlane_b32 %s, v130" % sT1)
            A("s_cmp_lg_u32 %s, 0" % sT1)
            A("s_cbranch_scc1 %s" % lab)
            A("s_waitcnt vmcnt(%d)" % (P["W"] - 1))
            A.label(lab)
        else:
            A("s_waitcnt vmcnt(%d)" % (P["W"] - 1))
    A(t)
    _gn[0] += 1


GADDR = r'''A("v_lshrrev_b32 v11, 3, v0")        # l>>3
A("v_and_b32 v12, 7, v0")            # l&7
vexpr(gDma, [(11, 1024), (12, 16)])
# bias elements
A("s_lshr_b32 %s, %s, 1" % (sK0, sWave))     # b = w>>1
A("s_and_b32 %s, %s, 1" % (sK1, sWave))      # w&1
A("s_min_u32 %s, %s, 6" % (sK2, sWave))      # w' for the W2 gather
vexpr(13, [(1, 4), (2, 1)])                  # X col local = 4 l16 + g
sexpr(sT0, [(sHi, 256), (sK1, 128)])
vexpr(14, [(13, 2)], sT0)                    # col*2 within a 512-col bf16 row
gload("global_load_ushort %s, v14, %s%s" % (v(gB2), pB2, NT))
vexpr(10, [(12, 4), (2, 1)])                 # 4 (l&7) + g
sexpr(sT0, [(sK2, 64)])
vexpr(10, [(10, 2)], sT0)                    # f*2 (local)
sexpr(sT0, [(sJ, 448)])
A("v_add_u32 v6, %s, v10" % sT0)
gload("global_load_ushort %s, v6, %s%s" % (v(gB1), pB1, NT))
N_AFTER_K, N_AFTER_V = 8, 0

for q in range(4):
    smov64(mQ[q], (0x000F000F000F000F << (4 * q)))
A("s_mov_b32 %s, 0x05040100" % sPermLo)
A("s_mov_b32 %s, 0x07060302" % sPermHi)
A("s_mov_b32 %s, %s" % (sC, f32(128 ** -0.5 * math.log2(math.e))))
A("s_mov_b32 s42, s40")
A("s_mov_b32 s43, s41")
A("s_mul_i32 %s, %s, %d" % (sT0, sJ, JSTR))
padd(pWJ, pWS, sT0)
A("v_add_u32 %s, %d, v10" % (v(gW2lds), HOP))
# O gather: E2 + ((ro*4+b)*8 + 2g)*512 + (16 (w&1) + l16)*16
sexpr(sT0, [(sHi, 16384), (sK0, 4096), (sK1, 256)], E2)
vexpr(gOg, [(2, 1024), (1, 16)], sT0)
sexpr(sT0, [(sHi, 256), (sK0, 64)], E2S)
vexpr(gOml, [(2, 16)], sT0)
# O lds: U = 16 h + l16 (h = w&1); lp = 2U + (g>>1); ups = lp&31 = (2 l16 + (g>>1)) ; e = 2 h + (g&1)
#   ups = 16 a + 4 g' + qq ; d = 32 g' + 8 e + 4 a + qq
A("v_lshrrev_b32 v4, 1, v2")
A("v_lshl_add_u32 v4, v1, 1, v4")            # ups
A("v_bfe_u32 v5, v4, 4, 1")                  # a
A("v_bfe_u32 v6, v4, 2, 2")                  # g'
A("v_and_b32 v7, 3, v4")                     # qq
A("v_and_b32 v4, 1, v2")                     # g&1
sexpr(sT0, [(sK0, RS_), (sK1, 32)], OOP)
vexpr(gOlds, [(6, 64), (4, 16), (5, 8), (7, 2)], sT0)
# W1 gather: E3 + r1*16384 + (2 pp)*512 + (4 w + (l&3))*16 ; pp = l>>2
A("v_lshrrev_b32 v4, 2, v0")
A("v_and_b32 v5, 3, v0")
if P.get("E3B", 1):
    sexpr(sT0, [(sR1, 8192), (sWave, 1024)], E3)
    A("v_add_u32 %s, %s, v3" % (v(gW1g), sT0))
elif P.get("E3L", 1):
    sexpr(sT0, [(sR1, 16384), (sWave, 2048)], E3)
    A("v_add_u32 %s, %s, v3" % (v(gW1g), sT0))
else:
    sexpr(sT0, [(sR1, 16384), (sWave, 64)], E3)
    vexpr(gW1g, [(4, 1024), (5, 16)], sT0)
# rho = 16 tile + 4 (l&3) + g ; tile = w>>2, b = w&3
A("s_lshr_b32 %s, %s, 2" % (sT1, sWave))
A("s_and_b32 %s, %s, 3" % (sT2, sWave))
if P.get("E3B", 1):
    # column = 8 (l&1) + 4 b5 + 2 b4 + b3
    A("v_and_b32 v4, 1, v0")
    A("v_bfe_u32 v5, v0, 5, 1")
    A("v_bfe_u32 v6, v0, 4, 1")
    A("v_bfe_u32 v7, v0, 3, 1")
    A("v_lshlrev_b32 v4, 4, v4")
    A("v_lshl_add_u32 v4, v5, 3, v4")
    A("v_lshl_add_u32 v4, v6, 2, v4")
    A("v_lshl_add_u32 v6, v7, 1, v4")
    A("s_mov_b32 s61, 0x00003f80")      # (1, 0)
    A("s_mov_b32 s46, 0x3f800000")      # (0, 1)
    A("s_mov_b32 s47, 0x3f803f80")      # (1, 1)
    smov64("s[48:49]", 0xFF00FF00FF00FF00)
else:
    vexpr(6, [(5, 8), (2, 2)])
sexpr(sT0, [(sT2, RS1), (sT1, 32)], X1OP)
A("v_add_u32 %s, %s, v6" % (v(gW1lds), sT0))
sexpr(sT0, [(sT2, RS_), (sT1, 32)], XOP)
A("s_and_b32 %s, %s, 3" % (sT1, sR1))
A("s_lshl_b32 %s, %s, 6" % (sT1, sT1))
A("s_add_u32 %s, %s, %s" % (sT0, sT0, sT1))
A("v_add_u32 %s, %s, v6" % (v(gW1x), sT0))
# W2 gather: E4 + (b*16 + 2 pp8)*896 + (8 w' + (l&7))*16 ; pp8 = l>>3
sexpr(sT0, [(sHi, 16 * 896), (sK2, 128)], E4)
vexpr(gW2g, [(11, 2 * 896), (12, 16)], sT0)
# W2 stats: E4S + (c1*4 + b)*128 + l16*8  (16 entries, row all-reduce)
sexpr(sT0, [(sHi, 128)], E4S)
vexpr(gW2s, [(1, 8), (2, 4)], sT0)
# X gather: E5 + ((b*8 + 2 rq + (w&1))*8 + 2g)*256 + l16*16
sexpr(sT0, [(sK0, 16384), (sHi, 4096), (sK1, 2048)], E5)
vexpr(gXg, [(2, 512), (1, 16)], sT0)
sexpr(sT0, [(sK0, 1024)], E4R)
A("v_add_u32 %s, %s, v14" % (v(gXr), sT0))
sexpr(sT0, [(sK0, 1024)])
A("v_add_u32 %s, %s, v14" % (v(gOut), sT0))
sexpr(sT0, [(sK0, RS_), (sK1, 128)], XOP)
vexpr(gXlds, [(13, 2)], sT0)
vexpr(gQrd, [(8, RS_), (2, 16)], None, QOP)
sexpr(sT0, [(sWave, 2 * APB)], AP)
vexpr(gApw, [(8, 288), (2, 64), (9, 16)], sT0)
sexpr(sT0, [(sWave, 8)], ML)
vexpr(gMlw, [(8, 64)], sT0)
'''
NV1 = 8
A.label("L_G")
ISTR, WSTR = ((65536, 8192) if P.get("KMODE", 5) == 5 else (8192, 65536))
sexpr(sT0, [(sHi, 8 << 21), (sJ, 1 << 21), (sLo, 1024), (sWave, WSTR)], 6144 * 256)
A("v_and_b32 v8, 3, v1")
A("v_lshrrev_b32 v9, 2, v1")
vexpr(10, [(8, ISTR), (9, 256), (2, 16)])
A("v_mov_b32 v129, %d" % (FLG + 12))
A("s_waitcnt lgkmcnt(0)")
stamp_init()
stamp("G", 10)
padd(pT, pK, sT0)
padd(pT2, pV, sT0)
for tau in range(2):
    for t in range(4):
        if 4 * tau + t == P["B0POS"]:
            A("s_barrier")
        gload("global_load_dwordx4 %s, v10, %s offset:%d%s" % (v(KR + 4 * (4 * tau + t), 4), pT, 64 * t, NT))
    if tau == 0:
        padd(pT, pT, 4 * ISTR)
        A("v_mov_b32 %s, v10" % v(SR))
        exec(GADDR)
        A("v_mov_b32 v10, %s" % v(SR))
stamp("G", 11)
NV1 = 8
for jj in range(8):
    gload("global_load_dwordx4 %s, v3, %s%s" % (v(VR + 4 * jj, 4), pT2, NT))
    if jj < 7:
        padd(pT2, pT2, ISTR)
for q in range(4):
    A("v_cndmask_b32 v%d, 0, -1, %s" % (144 + q, mQ[q]))
stamp("G", 9)
if P.get("KVWAIT"):
    A("s_waitcnt vmcnt(0)")
    stamp("G", 14)
if P.get("QLATE"):
    A("s_barrier")
if P.get("PRIO", 0):
    A("s_cmp_ge_u32 %s, 4" % sWave)
    A("s_cbranch_scc1 G_ENTRY")
    A("s_setprio %d" % P["PRIO"])
A.label("G_ENTRY")
A("s_barrier")
cyc(0)
stamp("G")
if NV1 < 8:
    lab = if_layer0()
    for jj in range(NV1, 8):
        A("global_load_dwordx4 %s, v3, %s offset:%d%s" % (v(VR + 4 * jj, 4), pT2, (jj - 4) * 1024, NT))
    A.label(lab)
for t in range(4):
    A("ds_read_b128 %s, %s offset:%d" % (v(QR + 4 * t, 4), v(gQrd), 64 * t))
A("s_waitcnt vmcnt(%d)" % N_AFTER_K)
stamp("G")
S0, S1 = SR, SR + 4
if STAMP == 4:
    A("s_waitcnt lgkmcnt(0)")
    cyc(1)
for t in range(4):
    A("s_waitcnt lgkmcnt(%d)" % ((3 - t) if STAMP != 4 else 15))
    for tau in range(2):
        d = v(SR + 4 * tau, 4)
        A("%s %s, %s, %s, %s" % (MFMA, d, v(KR + 4 * (4 * tau + t), 4), v(QR + 4 * t, 4), "0" if t == 0 else d))
aM, aT, aMc = 136, 137, 138
PR = 140
PM = QR
A("v_max3_f32 %s, %s, %s, %s" % (v(aM), v(S0), v(S0 + 1), v(S0 + 2)))
A("v_max3_f32 %s, %s, %s, %s" % (v(aT), v(S1), v(S1 + 1), v(S1 + 2)))
A("v_max3_f32 %s, %s, %s, %s" % (v(aM), v(aM), v(S0 + 3), v(S1 + 3)))
A("v_max_f32 %s, %s, %s" % (v(aM), v(aM), v(aT)))
cyc(2)
g_allreduce("v_max_f32", aM, aT)
A("v_mul_f32 %s, %s, %s" % (v(aMc), sC, v(aM)))
for q in range(4):
    A("s_mov_b64 exec, %s" % mQ[q])
    A("v_fma_f32 %s, %s, %s, -%s" % (v(PR), v(SR + 2 * q), sC, v(aMc)))
    A("v_fma_f32 %s, %s, %s, -%s" % (v(PR + 1), v(SR + 2 * q + 1), sC, v(aMc)))
A("s_mov_b64 exec, -1")
A("v_exp_f32 %s, %s" % (v(PR), v(PR)))
A("v_exp_f32 %s, %s" % (v(PR + 1), v(PR + 1)))
A("v_cvt_pk_bf16_f32 %s, %s, %s" % (v(PR), v(PR), v(PR + 1)))
cyc(3)
lab0, lab1 = newlabel("VT"), newlabel("VTD")
A("s_cmp_eq_u32 %s, 0" % sL)
A("s_cbranch_scc1 %s" % lab0)
A.label(lab1)
with Cap() as vt:
    A("s_waitcnt vmcnt(%d)" % N_AFTER_V)
    stamp("G")
    for i in (0, 4, 1, 5, 2, 6, 3, 7):
        for p in range(4):
            A("v_perm_b32 %s, %s, %s, %s" % (v(VF + 4 * i + p), v(VR + 4 * (2 * p + 1) + (i >> 1)), v(VR + 4 * (2 * p) + (i >> 1)),
                                             sPermHi if (i & 1) else sPermLo))
OOL.append([lab0 + ":"] + vt.lines + ["v_mov_b32 v%d, 0x3f803f80" % (GS + 28 + i) for i in range(4)] + ["s_branch %s" % lab1])
D0 = 4
DL = 128
MK = 144
ONES = GS + 28


def pm(q, p):
    rot = (4 * (q - p)) % 16
    if rot == 0:
        A("v_and_b32 %s, %s, %s" % (v(PM + 4 * q + p), v(PR), v(MK + q)))
    else:
        A("v_and_b32_dpp %s, %s, %s row_ror:%d%s" % (v(PM + 4 * q + p), v(PR), v(MK + q), rot, DPP))


for p in range(4):
    pm(0, p)
pm(1, 0); pm(1, 1)
A("%s %s, %s, %s, 0" % (MFMA, v(DL, 4), v(ONES, 4), v(PM, 4)))
for q in range(4):
    for a in range(2):
        d = v(D0 + 4 * a, 4)
        A("%s %s, %s, %s, %s" % (MFMA, d, v(VF + 4 * (4 * a + q), 4), v(PM + 4 * q, 4), "0" if q == 0 else d))
        nxt = 4 * q + 2 * a + 6
        for k in (nxt, nxt + 1):
            if k < 16:
                pm(k >> 2, k & 3)
A("v_mov_b32 %s, %s" % (v(aMc + 1), v(DL)))
cyc(4)
A("s_mov_b64 exec, %s" % mQ[0])
A("ds_write_b64 %s, %s" % (v(gMlw), v(aMc, 2)))
A("s_mov_b64 exec, -1")
A("ds_write_b128 %s, %s" % (v(gApw), v(D0, 4)))
A("ds_write_b128 %s, %s offset:%d" % (v(gApw), v(D0 + 4, 4), APB))
A("s_waitcnt lgkmcnt(0)")
cyc(5)
A("s_barrier")
cyc(6)
cyc_dump(7)

a0, b0, c0 = GS, GS + 4, GS + 8
r0, r1_, r2, r3 = GS + 12, GS + 13, GS + 14, GS + 15


def add_ab():
    for e in range(4):
        A("v_add_f32 %s, %s, %s" % (v(a0 + e), v(a0 + e), v(b0 + e)))


BC = "row_newbcast:0" + DPP
NS_ = P.get("NSETS", 2)
GSETS = [GS, GS + 16, 112][:NS_]
GAP = P.get("GAP", 3)


def add_ab2(a):
    for e in range(4):
        A("v_add_f32 %s, %s, %s" % (v(a + e), v(a + e), v(a + 4 + e)))


def g_treduce_to(a, out):
    A("v_permlane16_swap_b32 %s, %s" % (v(a), v(a + 1)))
    A("v_permlane16_swap_b32 %s, %s" % (v(a + 2), v(a + 3)))
    A("v_add_f32 %s, %s, %s" % (v(a), v(a), v(a + 1)))
    A("v_add_f32 %s, %s, %s" % (v(a + 2), v(a + 2), v(a + 3)))
    A("v_permlane32_swap_b32 %s, %s" % (v(a), v(a + 2)))
    A("v_add_f32 %s, %s, %s" % (v(out), v(a), v(a + 2)))


A("ds_read_u16 %s, %s" % (v(r3), v(gW1x)))
for e in range(4):
    A("v_mov_b32 %s, 0" % v(c0 + e))
A("s_barrier")
sleep(P.get("DI_O", 0))
stamp("G", 7)


T_ = GS + 16


def o_post():
    c, f0, f1, t = c0, T_ + 4, T_ + 5, T_
    A("v_max_f32 %s, %s, %s" % (v(r0), v(c), v(c + 2)))
    g_allreduce("v_max_f32", r0, r1_)
    A("v_sub_f32 %s, %s, %s" % (v(f0), v(c), v(r0)))
    A("v_sub_f32 %s, %s, %s" % (v(f1), v(c + 2), v(r0)))
    A("v_exp_f32 %s, %s" % (v(f0), v(f0)))
    A("v_exp_f32 %s, %s" % (v(f1), v(f1)))
    with Cap() as c1:
        A("v_mul_f32 %s, %s, %s" % (v(r1_), v(f0), v(c + 1)))
        A("v_fmac_f32 %s, %s, %s" % (v(r1_), v(f1), v(c + 3)))
        g_allreduce("v_add_f32", r1_, r2)
        A("v_rcp_f32 %s, %s" % (v(r1_), v(r1_)))
    with Cap() as c2:
        for e in range(4):
            A("v_mul_f32_dpp %s, %s, %s %s" % (v(t + e), v(f0), v(a0 + e), BC))
        for e in range(4):
            A("v_fmac_f32_dpp %s, %s, %s %s" % (v(t + e), v(f1), v(b0 + e), BC))
        g_treduce_to(t, r0)
    L1_, L2_ = c1.lines, c2.lines
    A(L1_[0]); A(L1_[1])
    for l in interleave(L2_, L1_[2:]):
        A(l)
    A("v_mul_f32_dpp %s, %s, %s %s" % (v(r0), v(r1_), v(r0), BC))


def o_pre():
    c, f0, f1 = c0, T_ + 4, T_ + 5
    A("v_max_f32 %s, %s, %s" % (v(r0), v(c), v(c + 2)))
    g_allreduce("v_max_f32", r0, r1_)
    A("v_sub_f32 %s, %s, %s" % (v(f0), v(c), v(r0)))
    A("v_sub_f32 %s, %s, %s" % (v(f1), v(c + 2), v(r0)))
    A("v_exp_f32 %s, %s" % (v(f0), v(f0)))
    A("v_exp_f32 %s, %s" % (v(f1), v(f1)))
    A("v_mul_f32 %s, %s, %s" % (v(r1_), v(f0), v(c + 1)))
    A("v_fmac_f32 %s, %s, %s" % (v(r1_), v(f1), v(c + 3)))
    g_allreduce("v_add_f32", r1_, r2)
    A("v_rcp_f32 %s, %s" % (v(r1_), v(r1_)))
    A("v_mul_f32 %s, %s, %s" % (v(f0), v(f0), v(r1_)))
    A("v_mul_f32 %s, %s, %s" % (v(f1), v(f1), v(r1_)))
    A("v_mov_b32_dpp %s, %s %s" % (v(f0), v(f0), BC))
    A("v_mov_b32_dpp %s, %s %s" % (v(f1 + 1), v(f1), BC))


def o_post2():
    f0, f1 = T_ + 4, T_ + 6
    for h in range(2):
        A("v_pk_mul_f32 %s, %s, %s op_sel_hi:[0,1]" % (v(a0 + 2 * h, 2), v(f0, 2), v(a0 + 2 * h, 2)))
    for h in range(2):
        A("v_pk_fma_f32 %s, %s, %s, %s op_sel_hi:[0,1,1]" % (v(a0 + 2 * h, 2), v(f1, 2), v(b0 + 2 * h, 2), v(a0 + 2 * h, 2)))
    g_treduce_to(a0, r0)


if P.get("SPLIT", 0):
    split_poll("global_load_dwordx4 %s, %s, %s sc1" % (v(c0, 4), v(gOml), pWJ), 0x0001000100010001, list(range(c0, c0 + 4)),
               ["global_load_dwordx4 %s, %s, %s sc1" % (v(a0, 4), v(gOg), pWJ),
                "global_load_dwordx4 %s, %s, %s offset:512 sc1" % (v(b0, 4), v(gOg), pWJ)], range(a0, a0 + 8), o_pre, o_post2, ck=0)
else:
    opt_poll("global_load_dwordx4 %s, %s, %s sc1" % (v(c0, 4), v(gOml), pWJ), 0x0001000100010001, range(c0, c0 + 4),
             ["global_load_dwordx4 %s, %s, %s sc1" % (v(a0, 4), v(gOg), pWJ),
              "global_load_dwordx4 %s, %s, %s offset:512 sc1" % (v(b0, 4), v(gOg), pWJ)], range(a0, a0 + 8), o_post, [r0], ck=0)
stamp("G")
A("v_cvt_pk_bf16_f32 %s, %s, %s" % (v(r0), v(r0), v(r0)))
A("ds_write_b16 %s, %s" % (v(gOlds), v(r0)))
A("s_waitcnt lgkmcnt(0)")
cycg(3)
A("s_barrier")
cycg(4)

A("v_lshlrev_b32 %s, 16, %s" % (v(r3), v(r3)))
A("s_barrier")
A("s_cmp_eq_u32 %s, 0" % sL)
A("s_cbranch_scc1 G_CS1")
sleep(P["D_W1"])
A.label("G_CS1_DONE")
with Cap() as cs1:
    A("s_mul_i32 %s, %s, %d" % (sT0, sHi, 16 * 896))
    A("s_add_u32 %s, %s, %d" % (sT0, sT0, E4 - E4C))
    A("v_subrev_u32 %s, %s, %s" % (v(r2), sT0, v(gW2g)))
    poll(["global_load_dwordx4 %s, %s, %s sc1" % (v(a0, 4), v(r2), pWJ),
          "global_load_dwordx4 %s, %s, %s offset:896 sc1" % (v(b0, 4), v(r2), pWJ)],
         [(a0 + e, b0 + e) for e in range(4)])
    add_ab()
    g_treduce(a0)
    A("v_add_f32_dpp %s, %s, %s row_ror:8%s" % (v(gCs1), v(a0), v(a0), DPP))
    A("v_lshlrev_b32 %s, 16, %s" % (v(gB1), v(gB1)))
    A("v_lshlrev_b32 %s, 16, %s" % (v(gB2), v(gB2)))
OOL.append(["G_CS1:"] + cs1.lines + ["s_branch G_CS1_DONE"])
stamp("G", 8)


def w1_issue(a):
    A("global_load_dwordx4 %s, %s, %s sc1" % (v(a, 4), v(gW1g), pWL))
    A("global_load_dwordx4 %s, %s, %s offset:%d sc1" % (v(a + 4, 4), v(gW1g), pWL, 1024 if P.get("E3L", 1) else 512))


def w1_post(a):
    add_ab2(a)
    g_treduce_to(a, r0)
    A("v_add_f32_dpp %s, %s, %s row_ror:4%s" % (v(r0), v(r0), v(r0), DPP))
    A("v_add_f32_dpp %s, %s, %s row_ror:8%s" % (v(r0), v(r0), v(r0), DPP))


if P.get("E3B", 1):
    pk, t_ = GS, GS + 4
    ld = "global_load_dwordx4 %s, %s, %s sc1" % (v(pk, 4), v(gW1g), pWL)
    A(ld)
    A.label("W1B_CHK")
    A("s_waitcnt vmcnt(0)")
    A("v_dot2_f32_bf16 %s, %s, s47, 0" % (v(t_), v(pk)))
    for e in range(1, 4):
        A("v_dot2_f32_bf16 %s, %s, s47, %s" % (v(t_), v(pk + e), v(t_)))
    A("v_cmp_u_f32 vcc, %s, %s" % (v(t_), v(t_)))
    A("s_cbranch_vccnz W1B_RETRY")
    A.label("W1B_OK")
    OOL.append(["W1B_RETRY:", "s_mov_b64 exec, vcc", ld, "s_mov_b64 exec, -1", "s_sub_u32 %s, %s, 1" % (sBud, sBud),
                "s_cbranch_scc0 W1B_CHK", "s_mov_b32 %s, 0" % sBud, "s_waitcnt vmcnt(0)", "s_branch W1B_OK"])
    A("v_permlane32_swap_b32 %s, %s" % (v(pk), v(pk + 2)))
    A("v_permlane32_swap_b32 %s, %s" % (v(pk + 1), v(pk + 3)))
    for e, (src, sel) in enumerate(((0, "s61"), (0, "s46"), (1, "s61"), (1, "s46"))):
        A("v_dot2_f32_bf16 %s, %s, %s, 0" % (v(t_ + e), v(pk + src), sel))
        A("v_dot2_f32_bf16 %s, %s, %s, %s" % (v(t_ + e), v(pk + 2 + src), sel, v(t_ + e)))
    A("v_permlane16_swap_b32 %s, %s" % (v(t_), v(t_ + 2)))
    A("v_permlane16_swap_b32 %s, %s" % (v(t_ + 1), v(t_ + 3)))
    A("v_add_f32 %s, %s, %s" % (v(t_), v(t_), v(t_ + 2)))
    A("v_add_f32 %s, %s, %s" % (v(t_ + 1), v(t_ + 1), v(t_ + 3)))
    A("v_cndmask_b32 %s, %s, %s, s[48:49]" % (v(t_ + 2), v(t_ + 1), v(t_)))
    A("v_cndmask_b32 %s, %s, %s, s[48:49]" % (v(r0), v(t_), v(t_ + 1)))
    A("v_add_f32_dpp %s, %s, %s row_ror:8%s" % (v(r0), v(t_ + 2), v(r0), DPP))
    A("v_add_f32_dpp %s, %s, %s %s" % (v(r0), v(r0), v(r0), X2))
    A("v_add_f32_dpp %s, %s, %s row_shr:4 row_mask:0xf bank_mask:0xa" % (v(r0), v(r0), v(r0)))
else:
    fast_poll(w1_issue, None, w1_post, None, [r0], GS)
stamp("G")
A("v_add_f32 %s, %s, %s" % (v(r0), v(r0), v(r3)))
A("v_cvt_pk_bf16_f32 %s, %s, %s" % (v(r0), v(r0), v(r0)))
if P.get("E3B", 1):
    set_exec(0xF0F0F0F0F0F0F0F0)
A("ds_write_b16 %s, %s" % (v(gW1lds), v(r0)))
if P.get("E3B", 1):
    set_exec(-1)
A("s_waitcnt lgkmcnt(0)")
A("s_barrier")

k0 = -2 * math.log2(math.e) * math.sqrt(2 / math.pi)
A("v_mov_b32 %s, %s" % (v(r2), f32(k0)))
A("s_barrier")
A("s_cmp_eq_u32 %s, 7" % sWave)
A("s_cbranch_scc1 G_W2_SKIP")
sleep(P.get("DI_W2", 0))
stamp("G", 12)


def add_to(t):
    for e in range(4):
        A("v_add_f32 %s, %s, %s" % (v(t + e), v(a0 + e), v(b0 + e)))


def w2_post():
    with Cap() as c1:
        stats_math(c0, T_ + 4, 1.0 + 1e-5, 1e-10)
        A("v_fma_f32 %s, -%s, %s, %s" % (v(r3), v(T_ + 5), v(gCs1), v(gB1)))
    with Cap() as c2:
        add_to(T_)
        g_treduce_to(T_, r0)
        A("v_add_f32_dpp %s, %s, %s row_ror:8%s" % (v(r0), v(r0), v(r0), DPP))
    for l in interleave(c1.lines, c2.lines):
        A(l)
    A("v_fma_f32 %s, %s, %s, %s" % (v(r0), v(r0), v(T_ + 4), v(r3)))


def pk_add(a):
    for h in range(2):
        A("v_pk_add_f32 %s, %s, %s" % (v(a + 2 * h, 2), v(a + 2 * h, 2), v(a + 4 + 2 * h, 2)))


def w2_pre():
    stats_math(c0, T_ + 4, 1.0 + 1e-5, 1e-10)
    A("v_fma_f32 %s, -%s, %s, %s" % (v(r3), v(T_ + 5), v(gCs1), v(gB1)))


def w2_post2():
    pk_add(a0)
    g_treduce_to(a0, r0)
    A("v_add_f32_dpp %s, %s, %s row_ror:8%s" % (v(r0), v(r0), v(r0), DPP))
    A("v_fma_f32 %s, %s, %s, %s" % (v(r0), v(r0), v(T_ + 4), v(r3)))


if P.get("SPLIT", 0):
    split_poll("global_load_dword %s, %s, %s sc1" % (v(c0), v(gW2s), pWJ), 0xFFFFFFFF, [c0],
               ["global_load_dwordx4 %s, %s, %s sc1" % (v(a0, 4), v(gW2g), pWJ),
                "global_load_dwordx4 %s, %s, %s offset:896 sc1" % (v(b0, 4), v(gW2g), pWJ)], range(a0, a0 + 8), w2_pre, w2_post2, ck=5)
else:
    opt_poll("global_load_dword %s, %s, %s sc1" % (v(c0), v(gW2s), pWJ), 0xFFFFFFFF, [c0],
             ["global_load_dwordx4 %s, %s, %s sc1" % (v(a0, 4), v(gW2g), pWJ),
              "global_load_dwordx4 %s, %s, %s offset:896 sc1" % (v(b0, 4), v(gW2g), pWJ)], range(a0, a0 + 8), w2_post, [r0], ck=5)
stamp("G")
RX = GS + 27
A("v_mul_f32 %s, %s, %s" % (v(r1_), v(r0), v(r0)))
A("v_fmac_f32 %s, %s, %s" % (v(r2), f32(k0 * 0.044715), v(r1_)))
A("v_mul_f32 %s, %s, %s" % (v(r2), v(r2), v(r0)))
A("v_exp_f32 %s, %s" % (v(r2), v(r2)))
A("v_add_f32 %s, 1.0, %s" % (v(r2), v(r2)))
A("v_rcp_f32 %s, %s" % (v(r2), v(r2)))
A("v_mul_f32 %s, %s, %s" % (v(r0), v(r0), v(r2)))
A("v_cvt_pk_bf16_f32 %s, %s, %s" % (v(r0), v(r0), v(r0)))
A("ds_write_b16 %s, %s" % (v(gW2lds), v(r0)))
A("s_waitcnt lgkmcnt(0)")
cycg(8)
A.label("G_W2_SKIP")
A("s_barrier")
cycg(9)
if STAMP == 6:
    A("s_waitcnt lgkmcnt(0)")
    for k in range(10):
        A("v_writelane_b32 v15, s%d, %d" % (80 + 2 * k, 32 + k))

A("s_cmp_eq_u32 %s, 0" % sL)
A("s_cbranch_scc1 G_X_GO")
A("s_cmp_lg_u32 %s, 0" % sLo)
A("s_cbranch_scc1 L_EXIT")
A("s_cmp_lg_u32 %s, %s" % (sWave, sJ))
A("s_cbranch_scc1 L_EXIT")
A.label("G_X_GO")


def xpre():
    A("v_lshlrev_b32 %s, 16, %s" % (v(r3), v(r3)))


A("global_load_ushort %s, %s, %s sc1" % (v(RX), v(gXr), pWJ))
A.label("G_RX_CHK")
A("s_waitcnt vmcnt(0)")
A("v_lshlrev_b32 %s, 16, %s" % (v(r3), v(RX)))
A("v_cmp_u_f32 vcc, %s, %s" % (v(r3), v(r3)))
A("s_cbranch_vccnz G_RX_RETRY")
A.label("G_RX_OK")
OOL.append(["G_RX_RETRY:", "global_load_ushort %s, %s, %s sc1" % (v(RX), v(gXr), pWJ),
            "s_sub_u32 %s, %s, 1" % (sBud, sBud), "s_cbranch_scc0 G_RX_CHK", "s_mov_b32 %s, 0" % sBud, "s_branch G_RX_OK"])
A("v_add_f32 %s, %s, %s" % (v(r3), v(r3), v(gB2)))
A("s_barrier")
sleep(P["D_X"])
stamp("G", 13)


def x_post():
    pk_add(a0)
    g_treduce_to(a0, r0)


opt_poll(None, 0, [], ["global_load_dwordx4 %s, %s, %s sc1" % (v(a0, 4), v(gXg), pWL),
                       "global_load_dwordx4 %s, %s, %s offset:256 sc1" % (v(b0, 4), v(gXg), pWL)], range(a0, a0 + 8), x_post, [r0])
stamp("G")
A("v_add_f32 %s, %s, %s" % (v(r0), v(r0), v(r3)))
A("v_cvt_pk_bf16_f32 %s, %s, %s" % (v(r0), v(r0), v(r0)))
A("s_cmp_lg_u32 %s, 0" % sL)
A("s_cbranch_scc1 G_FINAL")
A("ds_write_b16 %s, %s" % (v(gXlds), v(r0)))
A("s_mov_b32 %s, 1" % sL)
padd(pWL, pWL, LSTR)
A("s_waitcnt lgkmcnt(0)")
A("s_barrier")
A("s_waitcnt vmcnt(0)")
A("s_branch G_ENTRY")
A.label("G_FINAL")
sleep(P.get("ENDSLEEP", 0))
if "ECHO" in P:
    A("s_memrealtime s[82:83]")
    A("s_sub_u32 s80, s80, s78")
    A("s_waitcnt lgkmcnt(0)")
    A("s_add_u32 s80, s80, s82")
    A.label("ECHO_SPIN")
    A("s_memrealtime s[82:83]")
    A("s_waitcnt lgkmcnt(0)")
    A("s_cmp_lt_u32 s82, s80")
    A("s_cbranch_scc1 ECHO_SPIN")
A("global_store_short %s, %s, %s" % (v(gOut), v(r0), pOUT))
A.label("L_EXIT")
stamp_dump()
A.label("L_END")
A("s_endpgm")
for blk in OOL:
    for l in blk:
        A(l)
A("s_endpgm")

A.fix_hazards()

hdr = open("cdna_kernels/%s.s.ref" % NAME).read().split("; Override launch")[0]
out = hdr + """; @launch grid=(256,1,1) block=(768,1,1) lds=%d
.amdgcn_target "amdgcn-amd-amdhsa--gfx950"
.text
.globl %s_kernel
.p2align 8
.type %s_kernel,@function
%s_kernel:
%s
    ; pad the code section so that the 12 KB code prefetch stays inside it
    .fill ((12288 + 256 - (. - %s_kernel)) / 4), 4, 0xbf810000
.section .rodata,"a"
.p2align 6
.amdhsa_kernel %s_kernel
  .amdhsa_next_free_vgpr 168
  .amdhsa_next_free_sgpr 102
  .amdhsa_accum_offset 168
  .amdhsa_group_segment_fixed_size 0
  .amdhsa_kernarg_size 104
  .amdhsa_user_sgpr_count 2
  .amdhsa_user_sgpr_kernarg_segment_ptr 1
  .amdhsa_system_sgpr_workgroup_id_x 1
.end_amdhsa_kernel
""" % (LDS_TOTAL, NAME, NAME, NAME, A.text(), NAME, NAME)
open(sys.argv[1], "w").write(out)
print("wrote", sys.argv[1], "instructions:", sum(1 for x in A.ins if not x.label), "LDS", LDS_TOTAL)
```

```python
import sys, math, struct, os
from asmlib import Asm

NAME = "interleave_layers__sliding_block_cached__mixer_channel_mlp__decode"

P = dict(B0POS=0, W=64, NV1=8, D_A0=70, NSL=6, NLATE=1, D_O=0, D_W1=10, D_W2=0, D_X=9, D_A=0, NT="nt", STAMP=0, FORCE_SAFE=0, PREF=1)
for a in sys.argv[2:]:
    k, v_ = a.split("=")
    P[k] = int(v_) if v_.lstrip("-").isdigit() else v_


def f32(x):
    return "0x%08x" % struct.unpack("<I", struct.pack("<f", x))[0]


LSTR = 0x200000
JSTR = 196608
E1, E1S, E4C = 0, 40960, 45056
E1T = 0x200000 * 2
REC = 0x1D8000
E2, E4, E4R, E2S, E4S = 65536, 131072, 188416, 61440, 193536
E3, E5 = 0x180000, 0x1C0000
SENT = 0x7F817F81
LW_Q, LW_O, LW_2, LW_1 = 0, 16384, 32768, 61440
RS_, RS1 = 320, 64
XOP = 68608
QOP = XOP + 5 * RS_
OOP = QOP + 4 * RS_
X1OP = OOP + 4 * RS_
HOP = X1OP + 5 * RS1
ML = HOP + 448
FLG = ML + 256
ST0 = FLG + 16
NONCE = ST0 + 32
AP = (NONCE + 16 + 1023) // 1024 * 1024
APB = 1152
LDS_TOTAL = AP + 16 * APB
assert all(x % 16 == 0 for x in (XOP, QOP, OOP, X1OP, HOP, ML))

sWave, sJ, sS, sHi, sLo, sR1, sC1, sL, sBud = "s3", "s4", "s5", "s6", "s7", "s8", "s9", "s10", "s11"
sT0, sT1, sT2, sT3 = "s12", "s13", "s14", "s15"
pX, pK, pV, pWQ, pWO, pW1, pB1, pW2, pB2, pOUT, pDBG, pWS = (
    "s[16:17]", "s[18:19]", "s[20:21]", "s[22:23]", "s[24:25]", "s[28:29]", "s[30:31]", "s[32:33]", "s[34:35]",
    "s[36:37]", "s[38:39]", "s[40:41]")
pWL = "s[42:43]"
sFast = "s44"
sU = "s45"
mQ = ["s[50:51]", "s[52:53]", "s[54:55]", "s[56:57]"]
sPermLo, sPermHi = "s58", "s59"
sC = "s60"
pT = "s[62:63]"
pT2 = "s[64:65]"
sXcc = "s66"
sK0, sK1, sK2 = "s67", "s68", "s69"
mT = "s[70:71]"
pWJ = "s[72:73]"
pPC = "s[46:47]"
pN = "s[48:49]"

A = Asm()
NT = (" " + P["NT"]) if P["NT"] else ""
STAMP = P["STAMP"]


def v(n, cnt=1):
    return "v%d" % n if cnt == 1 else "v[%d:%d]" % (n, n + cnt - 1)


def smov64(pair, val):
    lo = int(pair[2:].split(":")[0])
    A("s_mov_b32 s%d, 0x%08x" % (lo, val & 0xFFFFFFFF))
    A("s_mov_b32 s%d, 0x%08x" % (lo + 1, val >> 32))


def exec_lines(val):
    if val == -1:
        return ["s_mov_b64 exec, -1"]
    if 0 <= val <= 64:
        return ["s_mov_b64 exec, %d" % val]
    return ["s_mov_b32 exec_lo, 0x%08x" % (val & 0xFFFFFFFF), "s_mov_b32 exec_hi, 0x%08x" % (val >> 32)]


def set_exec(val):
    for l in exec_lines(val):
        A(l)


def padd(dst, src, soff):
    d = int(dst[2:].split(":")[0]); s = int(src[2:].split(":")[0])
    A("s_add_u32 s%d, s%d, %s" % (d, s, soff))
    A("s_addc_u32 s%d, s%d, 0" % (d + 1, s + 1))


def sexpr(dst, terms, const=0, tmp=sT3):
    first = True
    for (r, m) in terms:
        t = dst if first else tmp
        if m == 1:
            if first:
                A("s_mov_b32 %s, %s" % (dst, r))
            else:
                A("s_add_u32 %s, %s, %s" % (dst, dst, r))
            first = False
            continue
        if m & (m - 1) == 0:
            A("s_lshl_b32 %s, %s, %d" % (t, r, m.bit_length() - 1))
        else:
            A("s_mul_i32 %s, %s, %d" % (t, r, m))
        if not first:
            A("s_add_u32 %s, %s, %s" % (dst, dst, t))
        first = False
    if first:
        A("s_mov_b32 %s, %d" % (dst, const))
    elif const:
        A("s_add_u32 %s, %s, %d" % (dst, dst, const))


def vexpr(dst, terms, sreg=None, const=0):
    first = True
    for (r, m) in terms:
        if first:
            if m == 1:
                A("v_mov_b32 %s, %s" % (v(dst), v(r)))
            elif m & (m - 1) == 0:
                A("v_lshlrev_b32 %s, %d, %s" % (v(dst), m.bit_length() - 1, v(r)))
            else:
                A("v_mul_u32_u24 %s, %d, %s" % (v(dst), m, v(r)))
            first = False
        else:
            assert m & (m - 1) == 0, "non power of two term must come first"
            A("v_lshl_add_u32 %s, %s, %d, %s" % (v(dst), v(r), m.bit_length() - 1, v(dst)))
    if sreg:
        A("v_add_u32 %s, %s, %s" % (v(dst), sreg, v(dst)))
    if const:
        A("v_add_u32 %s, %d, %s" % (v(dst), const, v(dst)))


DPP = " row_mask:0xf bank_mask:0xf"
X1 = "quad_perm:[1,0,3,2]" + DPP
X2 = "quad_perm:[2,3,0,1]" + DPP
HM = "row_half_mirror" + DPP
RM = "row_mirror" + DPP
_lab = [0]


def newlabel(p="L"):
    _lab[0] += 1
    return "%s_%d" % (p, _lab[0])


def sleep(n):
    while n > 0:
        k = min(n, 127)
        A("s_sleep %d" % k)
        n -= k


def g_treduce(a):
    A("v_permlane16_swap_b32 %s, %s" % (v(a), v(a + 1)))
    A("v_permlane16_swap_b32 %s, %s" % (v(a + 2), v(a + 3)))
    A("v_add_f32 %s, %s, %s" % (v(a), v(a), v(a + 1)))
    A("v_add_f32 %s, %s, %s" % (v(a + 2), v(a + 2), v(a + 3)))
    A("v_permlane32_swap_b32 %s, %s" % (v(a), v(a + 2)))
    A("v_add_f32 %s, %s, %s" % (v(a), v(a), v(a + 2)))


def g_allreduce(op, r, t):
    for sw in ("v_permlane16_swap_b32", "v_permlane32_swap_b32"):
        A("v_mov_b32 %s, %s" % (v(t), v(r)))
        A("%s %s, %s" % (sw, v(r), v(t)))
        A("%s %s, %s, %s" % (op, v(r), v(r), v(t)))


def budget_loop(top):
    A("s_sub_u32 %s, %s, 1" % (sBud, sBud))
    A("s_cbranch_scc0 %s" % top)
    A("s_mov_b32 %s, 0" % sBud)


def poll(loads, check_pairs, pre=None, nap=0):
    top, done = newlabel("POLL"), newlabel("PDONE")
    A.label(top)
    for l in loads:
        A(l)
    A("s_waitcnt vmcnt(0)")
    if pre:
        pre()
    first = True
    for (a, b) in check_pairs:
        if first:
            A("v_cmp_u_f32 vcc, %s, %s" % (v(a), v(b)))
            first = False
        else:
            A("v_cmp_u_f32 %s, %s, %s" % (mT, v(a), v(b)))
            A("s_or_b64 vcc, vcc, %s" % mT)
    A("s_cbranch_vccz %s" % done)
    sleep(nap)
    budget_loop(top)
    A.label(done)


def half(loads):
    import re
    if P.get("HALF") == 1:
        m = re.search(r"v\[(\d+):(\d+)\]", loads[1])
        for r_ in range(int(m.group(1)), int(m.group(2)) + 1):
            A("v_mov_b32 v%d, 0" % r_)
        return loads[:1]
    if P.get("HALF") == 2:
        out = []
        for l in loads:
            m = re.search(r"v\[(\d+):(\d+)\]", l)
            lo = int(m.group(1))
            A("v_mov_b32 v%d, 0" % (lo + 2)); A("v_mov_b32 v%d, 0" % (lo + 3))
            out.append(l.replace("dwordx4", "dwordx2").replace(m.group(0), "v[%d:%d]" % (lo, lo + 1)))
        return out
    return loads


def canary(load, pairs, mask, nap=0):
    set_exec(mask)
    poll([load], pairs, nap=nap)
    set_exec(-1)


def bulk(loads, mid, post, res):
    top, again, done = newlabel("BK"), newlabel("BKA"), newlabel("BKD")
    loads = half(loads)
    for l in loads:
        A(l)
    if mid:
        mid()
    A.label(top)
    A("s_waitcnt vmcnt(0)")
    post()
    A("v_cmp_u_f32 vcc, %s, %s" % (v(res[0]), v(res[-1])))
    A("s_cbranch_vccz %s" % done)
    for l in loads:
        A(l)
    budget_loop(top)
    A("s_waitcnt vmcnt(0)")
    A.label(done)


def round1(small, mask, loads, mid, post, res):
    top, done = newlabel("RD"), newlabel("RDD")
    loads = half(loads)
    A.label(top)
    set_exec(mask)
    A(small)
    set_exec(-1)
    for l in loads:
        A(l)
    A("s_waitcnt vmcnt(%d)" % len(loads))
    mid()
    A("s_waitcnt vmcnt(0)")
    post()
    A("v_cmp_u_f32 vcc, %s, %s" % (v(res[0]), v(res[-1])))
    A("s_cbranch_vccz %s" % done)
    budget_loop(top)
    A.label(done)


def pipe_poll(issue, n_small, n_bulk, mid, post, res, sets, gap):
    n = n_small + n_bulk
    k = len(sets)
    top, done = newlabel("PP"), newlabel("PPD")
    for i in range(k - 1):
        issue(sets[i])
        sleep(gap)
    A.label(top)
    for i in range(k):
        issue(sets[(i + k - 1) % k])
        if n_small:
            A("s_waitcnt vmcnt(%d)" % ((k - 1) * n + n_bulk))
            mid(sets[i])
        A("s_waitcnt vmcnt(%d)" % ((k - 1) * n))
        post(sets[i])
        A("v_cmp_u_f32 vcc, %s, %s" % (v(res[0]), v(res[-1])))
        A("s_cbranch_vccz %s" % done)
    budget_loop(top)
    A.label(done)


OOL = []


def interleave(c1, c2):
    out, i2 = [], 0
    for k, x in enumerate(c1):
        out.append(x)
        want = (k + 1) * len(c2) // max(1, len(c1) - 4)
        while i2 < min(want, len(c2)):
            out.append(c2[i2]); i2 += 1
    return out + c2[i2:]


class Cap:
    def __enter__(self):
        self.n = len(A.ins); return self

    def __exit__(self, *a):
        self.lines = [x.text for x in A.ins[self.n:]]
        del A.ins[self.n:]


def fast_poll_full(issue, mid, post, fin, res, a):
    top, again, done = newlabel("FP"), newlabel("FPR"), newlabel("FPD")
    A.label(top)
    issue(a)
    A("s_waitcnt vmcnt(0)")
    with Cap() as c2:
        post(a)
    if mid:
        with Cap() as c1:
            mid(a)
        for l in interleave(c1.lines, c2.lines):
            A(l)
    else:
        for l in c2.lines:
            A(l)
    if fin:
        fin(a)
    A("v_cmp_u_f32 vcc, %s, %s" % (v(res[0]), v(res[-1])))
    A("s_cbranch_vccnz %s" % again)
    A.label(done)
    OOL.append([again + ":", "s_sub_u32 %s, %s, 1" % (sBud, sBud), "s_cbranch_scc0 %s" % top,
                "s_mov_b32 %s, 0" % sBud, "s_branch %s" % done])


def fast_poll(issue, mid, post, fin, res, a):
    if not P.get("MPOLL", 1):
        return fast_poll_full(issue, mid, post, fin, res, a)
    with Cap() as ci:
        issue(a)
    loads = [l for l in ci.lines if l.startswith("global_load")]
    small = len(loads) == 3
    chk, again, done = newlabel("MPC"), newlabel("MPR"), newlabel("MPD")
    if small:
        n = 4 if "dwordx4" in loads[0] else 2
        for e in range(n):
            A("v_mov_b32 %s, 0" % v(a + 8 + e))
    for l in ci.lines:
        A(l)
    A.label(chk)
    A("s_waitcnt vmcnt(0)")
    t = a + 20
    A("v_add_f32 %s, %s, %s" % (v(t), v(a), v(a + 1)))
    A("v_add_f32 %s, %s, %s" % (v(t + 1), v(a + 2), v(a + 3)))
    A("v_add_f32 %s, %s, %s" % (v(t + 2), v(a + 4), v(a + 5)))
    A("v_add_f32 %s, %s, %s" % (v(t + 3), v(a + 6), v(a + 7)))
    if small:
        A("v_add_f32 %s, %s, %s" % (v(t), v(t), v(a + 8)))
        A("v_add_f32 %s, %s, %s" % (v(t + 1), v(t + 1), v(a + 9)))
        if n == 4:
            A("v_add_f32 %s, %s, %s" % (v(t + 2), v(t + 2), v(a + 10)))
            A("v_add_f32 %s, %s, %s" % (v(t + 3), v(t + 3), v(a + 11)))
    A("v_add_f32 %s, %s, %s" % (v(t), v(t), v(t + 1)))
    A("v_add_f32 %s, %s, %s" % (v(t + 2), v(t + 2), v(t + 3)))
    A("v_cmp_u_f32 vcc, %s, %s" % (v(t), v(t + 2)))
    A("s_cbranch_vccnz %s" % again)
    A.label(done)
    with Cap() as c2:
        post(a)
    if mid:
        with Cap() as c1:
            mid(a)
        for l in interleave(c1.lines, c2.lines):
            A(l)
    else:
        for l in c2.lines:
            A(l)
    if fin:
        fin(a)
    blk = [again + ":"]
    if small:
        em = [l for l in ci.lines if l.startswith("s_mov") and "-1" not in l]
        blk += em + ["s_and_b64 exec, exec, vcc", loads[0]]
    blk += ["s_mov_b64 exec, vcc"] + loads[-2:] + ["s_mov_b64 exec, -1",
            "s_sub_u32 %s, %s, 1" % (sBud, sBud), "s_cbranch_scc0 %s" % chk,
            "s_mov_b32 %s, 0" % sBud, "s_waitcnt vmcnt(0)", "s_branch %s" % done]
    OOL.append(blk)


def opt_poll(small, smask, sregs, loads, lregs, post, res, ck=None):
    top, done = newlabel("OP"), newlabel("OPD")
    cand, sm = "s[70:71]", "s[64:65]"
    regs = list(lregs) + (list(sregs) if small else [])
    if len(regs) % 2:
        regs.append(regs[-1])
    if small:
        smov64(sm, smask)
    A("s_mov_b64 %s, -1" % cand)
    if ck is not None:
        cycg(ck)
        if STAMP == 6:
            A("s_mov_b32 s77, %s" % sBud)
    A.label(top)
    if small:
        A("s_and_b64 exec, %s, %s" % (cand, sm))
        A(small)
        A("s_mov_b64 exec, %s" % cand)
    for l in loads:
        A(l)
    A("s_sub_u32 %s, %s, 1" % (sBud, sBud))
    A("s_cbranch_scc1 %s_X" % top)
    A("s_waitcnt vmcnt(0)")
    for i in range(0, len(regs), 2):
        A("v_cmpx_o_f32 vcc, %s, %s" % (v(regs[i]), v(regs[i + 1])))
    A("s_andn2_b64 %s, %s, exec" % (cand, cand))
    A("s_mov_b64 exec, %s" % cand)
    A("s_cbranch_scc1 %s" % top)
    A.label(done)
    A("s_mov_b64 exec, -1")
    if ck is not None:
        cycg(ck + 1)
        if STAMP == 6:
            A("s_sub_u32 s77, s77, %s" % sBud)
            A("v_writelane_b32 v15, s77, %d" % (48 + ck))
    post()
    if ck is not None:
        cycg(ck + 2)
    OOL.append([top + "_X:", "s_mov_b32 %s, 0" % sBud, "s_waitcnt vmcnt(0)", "s_branch %s" % done])


def split_poll(small, smask, sregs, loads, lregs, pre, post, ck=None):
    top, fm, slow, done = newlabel("SP"), newlabel("SPF"), newlabel("SPS"), newlabel("SPD")
    cand, sm = "s[70:71]", "s[64:65]"
    sr = list(sregs) + ([sregs[-1]] if len(sregs) % 2 else [])
    lr = list(lregs)
    smov64(sm, smask)
    A("s_mov_b64 %s, -1" % cand)
    if ck is not None:
        cycg(ck)
    A("s_mov_b64 exec, %s" % sm)
    A(small)
    A("s_mov_b64 exec, -1")
    for l in loads:
        A(l)
    A("s_waitcnt vmcnt(%d)" % len(loads))
    for i in range(0, len(sr), 2):
        A("v_cmpx_o_f32 vcc, %s, %s" % (v(sr[i]), v(sr[i + 1])))
    A("s_andn2_b64 vcc, %s, exec" % cand)
    A("s_mov_b64 exec, -1")
    A("s_cbranch_scc1 %s" % slow)
    A.label(fm)
    pre()
    A("s_branch %s_C" % top)
    A.label(top)
    for l in loads:
        A(l)
    A("s_sub_u32 %s, %s, 1" % (sBud, sBud))
    A("s_cbranch_scc1 %s_X" % top)
    A.label(top + "_C")
    A("s_waitcnt vmcnt(0)")
    for i in range(0, len(lr), 2):
        A("v_cmpx_o_f32 vcc, %s, %s" % (v(lr[i]), v(lr[i + 1])))
    A("s_andn2_b64 %s, %s, exec" % (cand, cand))
    A("s_mov_b64 exec, %s" % cand)
    A("s_cbranch_scc1 %s" % top)
    A.label(done)
    A("s_mov_b64 exec, -1")
    if ck is not None:
        cycg(ck + 1)
    post()
    if ck is not None:
        cycg(ck + 2)
    OOL.append([top + "_X:", "s_mov_b32 %s, 0" % sBud, "s_waitcnt vmcnt(0)", "s_branch %s" % done])
    allr = lr + sr
    blk = [slow + ":", "s_waitcnt vmcnt(0)"]
    blk += ["v_cmpx_o_f32 vcc, %s, %s" % (v(allr[i]), v(allr[i + 1])) for i in range(0, len(allr), 2)]
    blk += ["s_andn2_b64 %s, %s, exec" % (cand, cand), "s_cbranch_scc0 %s_E" % slow,
            "s_and_b64 exec, %s, %s" % (cand, sm), small, "s_mov_b64 exec, %s" % cand] + loads
    blk += ["s_sub_u32 %s, %s, 1" % (sBud, sBud), "s_cbranch_scc0 %s" % slow, "s_mov_b32 %s, 0" % sBud, "s_waitcnt vmcnt(0)",
            slow + "_E:", "s_mov_b64 exec, -1", "s_mov_b64 %s, -1" % cand, "s_branch %s" % fm]
    OOL.append(blk)


def stats_math(c, t, eps_mul, eps_add):
    A("v_add_f32_dpp %s, %s, %s %s" % (v(t), v(c), v(c), X1))
    for m in (X2, HM, RM):
        A("v_add_f32_dpp %s, %s, %s %s" % (v(t), v(t), v(t), m))
    A("v_readlane_b32 %s, %s, 0" % (sT0, v(t)))
    A("v_readlane_b32 %s, %s, 16" % (sT1, v(t)))
    A("v_mov_b32 %s, %s" % (v(t + 2), f32(1 / 512)))
    A("v_mov_b32 %s, %s" % (v(t + 3), f32(eps_add)))
    A("v_mul_f32 %s, %s, %s" % (v(t + 1), sT0, v(t + 2)))
    A("v_mul_f32 %s, %s, %s" % (v(t), sT1, v(t + 2)))
    A("v_fma_f32 %s, -%s, %s, %s" % (v(t), v(t + 1), v(t + 1), v(t)))
    if eps_mul == 1.0:
        A("v_add_f32 %s, abs(%s), %s" % (v(t), v(t), v(t + 3)))
    else:
        A("v_mov_b32 %s, %s" % (v(t + 2), f32(eps_mul)))
        A("v_fma_f32 %s, abs(%s), %s, %s" % (v(t), v(t), v(t + 2), v(t + 3)))
    A("v_rsq_f32 %s, %s" % (v(t), v(t)))
    A("v_mul_f32 %s, %s, %s" % (v(t + 1), v(t + 1), v(t)))


def store_intra(insn):
    ls, le = newlabel("SAFE"), newlabel("SEND")
    A("s_cmp_eq_u32 %s, 0" % sFast)
    A("s_cbranch_scc1 %s" % ls)
    for i in insn:
        A(i)
    A.label(le)
    OOL.append([ls + ":"] + [i + (" sc1" if i.startswith("global_store") else "") for i in insn] + ["s_branch %s" % le])


_st = {"G": 0, "S": 0}


def stamp(kind, idx=None):
    if idx is None:
        n = _st[kind]; _st[kind] += 1
    else:
        n = idx
    if "ECHO" in P and kind == "G" and P["ECHO"] % 100 == n:
        lab = newlabel("ECHO")
        A("s_cmp_lg_u32 %s, %d" % (sL, P["ECHO"] // 100))
        A("s_cbranch_scc1 %s" % lab)
        A("s_waitcnt lgkmcnt(0)")
        A("s_memrealtime s[80:81]")
        A("s_waitcnt lgkmcnt(0)")
        A.label(lab)
    if not STAMP:
        return
    if STAMP == 2 and not (kind == "G" and n in (2, 6)):
        return
    if STAMP in (4, 5, 6):
        return
    if STAMP == 3:
        A("s_lshl_b32 s76, %s, 4" % sL)
        A("s_add_u32 m0, s76, %d" % n)
        A("s_nop 0")
        A("v_writelane_b32 v15, %s, m0" % sBud)
        return
    A("s_waitcnt lgkmcnt(0)")
    A("s_memrealtime s[74:75]")
    A("s_lshl_b32 s76, %s, 4" % sL)
    A("s_add_u32 m0, s76, %d" % n)
    A("s_waitcnt lgkmcnt(0)")
    A("v_writelane_b32 v15, s74, m0")


def cyc(k):
    if STAMP == 4:
        A("s_memtime s[%d:%d]" % (80 + 2 * k, 81 + 2 * k))


def cycs(k):
    if STAMP == 5:
        A("s_memtime s[%d:%d]" % (80 + 2 * k, 81 + 2 * k))


def cycg(k):
    if STAMP == 6:
        A("s_memtime s[%d:%d]" % (80 + 2 * k, 81 + 2 * k))


def cycs_dump(n):
    if STAMP == 5:
        A("s_waitcnt lgkmcnt(0)")
        for k in range(n):
            A("v_writelane_b32 v15, s%d, %d" % (80 + 2 * k, 32 + k))


def cyc_dump(n):
    if STAMP == 4:
        A("s_waitcnt lgkmcnt(0)")
        for k in range(n):
            A("v_writelane_b32 v15, s%d, %d" % (80 + 2 * k, 32 + k))


def stamp_init():
    if STAMP:
        A("v_mov_b32 v15, 0")
        A("v_writelane_b32 v15, s78, 15")


def stamp_dump():
    if not STAMP:
        return
    A("s_mul_i32 s76, s2, 12")
    A("s_add_u32 s76, s76, %s" % sWave)
    A("s_lshl_b32 s76, s76, 8")
    A("s_add_u32 s76, s76, 0x800000")
    A("v_lshlrev_b32 v13, 2, v0")
    A("v_add_u32 v13, s76, v13")
    A("global_store_dword v13, v15, %s" % pWS)


def if_layer0():
    lab = newlabel("NOTL0")
    A("s_cmp_lg_u32 %s, 0" % sL)
    A("s_cbranch_scc1 %s" % lab)
    return lab


def ssync(k):
    top = newlabel("SSY")
    A("v_mov_b32 v5, %d" % (FLG + 4 + 4 * k))
    A("v_mov_b32 v6, 1")
    set_exec(1)
    A("ds_add_u32 v5, v6")
    set_exec(-1)
    A.label(top)
    A("ds_read_b32 v6, v5")
    A("s_waitcnt lgkmcnt(0)")
    A("v_readfirstlane_b32 %s, v6" % sT0)
    A("s_cmp_eq_u32 %s, 4" % sT0)
    done = newlabel("SSD")
    A("s_cbranch_scc1 %s" % done)
    budget_loop(top)
    A.label(done)


MFMA = "v_mfma_f32_16x16x32_bf16"
A("s_getpc_b64 %s" % pPC)
A("s_cmp_ge_u32 s2, 256")
A("s_cbranch_scc1 L_END")
if STAMP or "ECHO" in P:
    A("s_memrealtime s[78:79]")
A("s_load_dwordx16 s[16:31], s[0:1], 0")
A("s_load_dwordx8 s[32:39], s[0:1], 64")
A("s_load_dwordx2 s[40:41], s[0:1], 96")
if P["PREF"]:
    A("v_lshlrev_b32 v3, 4, v0")
    if P["PREF"] == 2:
        A("s_bfe_u32 %s, s2, 0x40003" % sT0)
        A("v_lshrrev_b32 v1, 6, v0")
        A("v_cmp_eq_u32 vcc, %s, v1" % sT0)
        A("s_and_b64 exec, exec, vcc")
    A("global_load_dwordx4 v[140:143], v3, %s offset:-4" % pPC)
    if P["PREF"] == 2:
        A("s_mov_b64 exec, -1")
A("v_lshrrev_b32 v1, 6, v0")
A("v_and_b32 v0, 63, v0")
A("v_readfirstlane_b32 %s, v1" % sWave)
A("s_and_b32 %s, s2, 7" % sJ)
A("s_lshr_b32 %s, s2, 3" % sS)
A("s_lshr_b32 %s, s2, 6" % sHi)
A("s_and_b32 %s, %s, 7" % (sLo, sS))
A("s_lshr_b32 %s, s2, 4" % sR1)
A("s_and_b32 %s, %s, 1" % (sC1, sS))
A("s_mov_b32 %s, 0" % sL)
A("s_mov_b32 %s, 100000" % sBud)
A("v_and_b32 v1, 15, v0")
A("v_lshrrev_b32 v2, 4, v0")
A("v_lshlrev_b32 v3, 4, v0")
A("s_mov_b32 %s, %s" % (sU, sWave))
A("s_sub_u32 %s, %s, 4" % (sWave, sWave))
A("s_cbranch_scc0 L_G")

WQ, WO, W1R, W2R, XR, DR, SS = 16, 32, 48, 56, 84, 112, 120
(sXa, sXb, sOrd, sX1a, sX1b, sHrd, sE1w, sE1sw, sAg, sAst, sQw, sCq0, sCq1, sCrd, sMlrd, sE2w, sE3w, sE4w, sE4sw, sE4rw, sE5w,
 sTr, sClr, sTr1) = range(144, 168)
SN = 8
sCsP = 139
sDma = 138
X0 = 132
ga, gb, gc = SS, SS + 4, SS + 8
STM = 0x0018001400120011
W2S = [int(c) for c in str(P.get("W2S", "x223"))[1:]]
assert sum(W2S) == 7


def w2_dma(part):
    k0_ = sum(W2S[:part])
    n = W2S[part]
    if not n:
        return
    sexpr(sT0, [(sJ, 224 * 1024), (sLo, 128), (sU, 7 * 8192)], k0_ * 8192)
    padd(pT, pW2, sT0)
    sexpr(sT1, [(sU, 7 * 1024)], LW_2)
    for k in range(k0_, k0_ + n):
        A("s_add_u32 m0, %s, %d" % (sT1, 1024 * k))
        A("global_load_lds_dwordx4 %s, %s%s" % (v(sDma), pT, NT))
        if k < k0_ + n - 1:
            padd(pT, pT, 8192)


W2BLK = "pass"
WOBLK = r'''# wo tile: 16 x 1 KB, 4 per wave
A("v_lshrrev_b32 v4, 3, v0")
A("v_and_b32 v5, 7, v0")
vexpr(sDma, [(4, 1024), (5, 16)])
sexpr(sT0, [(sJ, 512 * 1024), (sHi, 128 * 1024), (sU, 32 * 1024), (sLo, 128)])
padd(pT, pWO, sT0)
sexpr(sT1, [(sU, 4096)], LW_O)
for k in range(4):
    A("s_add_u32 m0, %s, %d" % (sT1, 1024 * k))
    A("global_load_lds_dwordx4 %s, %s%s" % (v(sDma), pT, NT))
    if k < 3:
        padd(pT, pT, 8192)
# w1 DMA: unit n = 64 i + l (i = 2u, 2u+1 clamped to 6): row = n/14, piece = n%14
sexpr(sT0, [(sR1, 32 * 3584), (sJ, 448), (sC1, 224)])
padd(pT, pW1, sT0)
for k in range(2):
    A("s_lshl_b32 %s, %s, 1" % (sT1, sU))
    if k:
        A("s_add_u32 %s, %s, 1" % (sT1, sT1))
        A("s_min_u32 %s, %s, 6" % (sT1, sT1))
    A("s_lshl_b32 %s, %s, 6" % (sT0, sT1))
    A("v_add_u32 v4, %s, v0" % sT0)
    A("v_mul_u32_u24 v5, 4682, v4")
    A("v_lshrrev_b32 v5, 16, v5")
    A("v_mul_u32_u24 v7, 14, v5")
    A("v_sub_u32 v4, v4, v7")
    A("v_mul_u32_u24 v5, 3584, v5")
    A("v_lshl_add_u32 v4, v4, 4, v5")
    A("s_lshl_b32 %s, %s, 10" % (sT0, sT1))
    A("s_add_u32 m0, %s, %d" % (sT0, LW_1))
    A("global_load_lds_dwordx4 v4, %s%s" % (pT, NT))
for n in range(448):
    assert (n * 4682) >> 16 == n // 14
'''
A("s_add_u32 %s, %s, 8" % (sWave, sU))
A("v_mov_b32 v4, %d" % FLG)
A("v_mov_b32 v6, 0")
A("v_mov_b32 v7, 0")
A("ds_write_b64 v4, v[6:7]")
A("ds_write_b64 v4, v[6:7] offset:8")
for i in range(4):
    A("v_mov_b32 %s, 0x%08x" % (v(SN + i), SENT))
A("s_and_b32 %s, %s, 1" % (sK0, sU))
A("s_lshr_b32 %s, %s, 1" % (sK1, sU))
sexpr(sT0, [(sS, 6144), (sU, 1536)])
A("v_add_u32 v7, %s, v3" % sT0)
sexpr(sT0, [("s2", 1280), (sK0, LSTR), (sK1, 640)], E3)
A("v_add_u32 v12, %s, v3" % sT0)
A("s_mul_i32 %s, %s, %d" % (sT0, sJ, JSTR))
A("v_lshrrev_b32 v13, 3, v0")
A("v_and_b32 v14, 7, v0")
vexpr(SS, [(13, 8192), (14, 16)])
sexpr(sT1, [(sHi, 128 * 8192), (sU, 32 * 8192), (sJ, 1024), (sLo, 128)])
sexpr(sT2, [(sU, 1024)])
A("v_add_u32 %s, %s, v3" % (v(SS + 1), sT2))
A("s_waitcnt lgkmcnt(0)")
padd(pWJ, pWS, sT0)
padd(pT, pWQ, sT1)
A("v_mov_b32 v4, 0")
A("s_or_b32 %s, s2, %s" % (sT0, sU))
A("s_cbranch_scc1 S_NONONCE")
A("s_memrealtime %s" % pN)
A("s_waitcnt lgkmcnt(0)")
A("s_or_b32 s48, s48, 1")
A("v_mov_b32 %s, s49" % v(SS + 3))
A("v_mov_b32 %s, s48" % v(SS + 2))
set_exec(1)
A("global_store_dwordx2 v4, %s, %s sc1" % (v(SS + 2, 2), pDBG))
set_exec(-1)
A.label("S_NONONCE")
def nonce_fetch():
    A("s_cmp_lg_u32 %s, 3" % sU)
    A("s_cbranch_scc1 S_NP_SKIP")
    A("v_mov_b32 v4, 0")
    sleep(P.get("D_N", 0))
    A.label("S_NP")
    A("global_load_dwordx2 v[6:7], v4, %s sc1" % pDBG)
    A("s_waitcnt vmcnt(0)")
    A("v_cmp_eq_u32 vcc, 0, v6")
    A("s_cbranch_vccz S_NP_DONE")
    A("s_sleep %d" % P.get("NSL", 2))
    budget_loop("S_NP")
    A.label("S_NP_DONE")
    A("v_mov_b32 v5, %d" % NONCE)
    A("ds_write_b64 v5, v[6:7]")
    A("s_waitcnt lgkmcnt(0)")
    if P.get("NLATE"):
        stamp("S", 10)
    A.label("S_NP_SKIP")


if not P.get("NLATE"):
    A("v_mov_b32 %s, v7" % v(SS + 4))
    nonce_fetch()
    A("v_mov_b32 v7, %s" % v(SS + 4))
A("global_load_dwordx4 %s, %s, %s%s" % (v(X0, 4), v(SS + 1), pX, NT))
A("s_lshl_b32 %s, %s, 12" % (sT1, sU))
for i in range(4):
    A("s_add_u32 m0, %s, %d" % (sT1, LW_Q + 1024 * i))
    A("global_load_lds_dwordx4 %s, %s%s" % (v(SS), pT, NT))
    if i < 3:
        padd(pT, pT, 8 * 8192)
if P.get("NOCLR"):
    set_exec(1)
A("global_store_dwordx4 v7, %s, %s sc1" % (v(SN, 4), pWJ))
set_exec(1 if P.get("NOCLR") else 0xFFFFFFFF)
A("global_store_dwordx4 v7, %s, %s offset:1024 sc1" % (v(SN, 4), pWJ))
set_exec(1 if P.get("NOCLR") else 0xFFFFFFFFFF)
A("global_store_dwordx4 v12, %s, %s sc1" % (v(SN, 4), pWS))
set_exec(-1)
if P.get("WF", 0) == 1:
    exec(WOBLK)
    exec(W2BLK)
A("s_barrier")
if P.get("WF", 0) == 2:
    exec(WOBLK)
    exec(W2BLK)
if P.get("WF", 0) == 3:
    exec(WOBLK)
stamp_init()
stamp("S", 9)
if P.get("NLATE"):
    nonce_fetch()
A("s_getreg_b32 %s, hwreg(HW_REG_XCC_ID)" % sXcc)
A("s_and_b32 %s, %s, 7" % (sXcc, sXcc))
A("s_mov_b32 s42, s40")
A("s_mov_b32 s43, s41")
A("s_mov_b32 %s, 0" % sFast)
sexpr(sT0, [(sS, 6144), (sU, 1536)])
A("v_add_u32 %s, %s, v3" % (v(sClr), sT0))
A("v_mov_b32 v12, 0x3f803f80")
vexpr(13, [(0, 4)], None, XOP + 4 * RS_)
A("ds_write_b32 v13, v12")
vexpr(13, [(1, 4)], None, X1OP + 4 * RS1)
A("ds_write_b32 v13, v12")
A("v_lshrrev_b32 v12, 2, v1")
A("v_min_u32 v13, 4, v1")
A("v_and_b32 v14, 3, v1")
vexpr(sXa, [(12, RS_), (2, 16)], None, XOP)
sexpr(sT0, [(sU, 64)], XOP)
vexpr(sXb, [(13, RS_), (2, 16)], sT0)
vexpr(sOrd, [(14 if P.get("WIDE", 0) else 12, RS_), (2, 16)], None, OOP)
vexpr(sX1a, [(12, RS1), (2, 16)], None, X1OP)
vexpr(sX1b, [(13, RS1), (2, 16)], None, X1OP)
vexpr(sHrd, [(2, 16)], None, HOP)
sexpr(sT0, [(sHi, 2048), (sLo, 256), (sU, 64)], E1)
vexpr(sE1w, [(2, 8192), (1, 4)], sT0)
vexpr(SS + 3, [(2, 128)])
A("v_lshlrev_b32 %s, 2, v12" % v(SS + 4))
A("v_sub_u32 %s, %s, %s" % (v(SS + 3), v(SS + 3), v(SS + 4)))
sexpr(sT0, [(sLo, 512), (sHi, 32), (sU, 8)], E1S + 4)
A("v_add_u32 %s, %s, %s" % (v(sE1sw), sT0, v(SS + 3)))
sexpr(sT0, [(sR1, 8)], E4S + 4)
A("v_add_u32 %s, %s, %s" % (v(sE4sw), sT0, v(SS + 3)))
sexpr(sT0, [(sR1, 64)], E4R)
vexpr(sE4rw, [(14, 1024), (2, 16)], sT0)
A("v_and_b32 %s, 31, v0" % v(SS + 3))
A("v_lshrrev_b32 %s, 5, v0" % v(SS + 4))
sexpr(sT0, [(sHi, 8192), (sU, 512)], E1)
vexpr(sAg, [(SS + 4, 4096), (SS + 3, 16)], sT0)
sexpr(sT0, [(sLo, 512), (sHi, 128)], E1S)
vexpr(sAst, [(1, 8), (2, 4)], sT0)
sexpr(sT0, [(sU, RS_)], QOP)
vexpr(sQw, [(SS + 3, 8), (SS + 4, 4)], sT0)
A("v_bfe_u32 %s, v0, 4, 1" % v(SS + 5))
A("v_bfe_u32 %s, v0, 2, 2" % v(SS + 6))
A("v_and_b32 %s, 3, v0" % v(SS + 7))
sexpr(sT0, [(sU, 288)], AP)
vexpr(sCrd, [(SS + 4, 8 * APB), (1, 16)], sT0)
A("v_mul_u32_u24 %s, %d, %s" % (v(SS + 5), APB, v(SS + 5)))
A("v_add_u32 %s, %s, %s" % (v(sCrd), v(sCrd), v(SS + 5)))
sexpr(sT0, [(sU, 64)], ML)
vexpr(sMlrd, [(SS + 4, 32)], sT0)
sexpr(sT0, [(sU, 32 * 512), (sS, 512)], E2)
vexpr(sE2w, [(0, 8)], sT0)
sexpr(sC, [(sU, 256), (sS, 8)], E2S)
if P.get("E3B", 1):
    sexpr(sT0, [(sLo, 16384), (sK1, 8192), (sJ, 128), (sHi, 32), (sK0, 4096)], E3)
    vexpr(sE3w, [(2, 1024), (1, 2)], sT0)
elif P.get("E3L", 1):
    sexpr(sT0, [(sLo, 32768), (sK1, 16384), (sJ, 256), (sHi, 64), (sK0, 8192)], E3)
    vexpr(sE3w, [(2, 2048), (1, 4)], sT0)
else:
    sexpr(sT0, [(sLo, 32768), (sK1, 16384), (sJ, 2048), (sHi, 512), (sK0, 256)], E3)
    vexpr(sE3w, [(0, 4)], sT0)
sexpr(sT0, [(sR1, 896), (sC1, 448), (sU, 128)], E4)
vexpr(sE4w, [(2, 16 * 896), (1, 4)], sT0)
sexpr(sT0, [("s2", 256), (sU, 64)], E5)
if P.get("WIDE", 0):
    vexpr(sE5w, [(2, 16)], sT0)
else:
    vexpr(sE5w, [(1, 4)], sT0)
A("v_lshl_add_u32 %s, v2, 3, v12" % v(SS + 3))
sexpr(sT0, [(sU, 32)])
vexpr(sTr, [(SS + 3, 128), (14, 8)], sT0)
sexpr(sT0, [(sU, 64)])
vexpr(sTr1, [(SS + 3, 224), (14, 8)], sT0)
stamp("S", 11)
A("s_waitcnt vmcnt(%d)" % {0: 0, 1: 13, 2: 13, 3: 6}[P.get("WF", 0)])
stamp("S", 12)
sexpr(sT0, [(sU, RS_)], XOP)
vexpr(4, [(1, 16)], sT0)
A("s_lshl_b32 %s, %s, 4" % (sT0, sHi))
A("s_mov_b32 %s, 0xffff" % sT2)
A("s_mov_b32 %s, 0" % sT3)
A("s_lshl_b64 exec, s[14:15], %s" % sT0)
A("ds_write_b128 v4, %s" % v(X0, 4))
set_exec(-1)
for i in range(4):
    A("v_lshlrev_b32 %s, 16, %s" % (v(SS + 2 * i), v(X0 + i)))
    A("v_and_b32 %s, 0xffff0000, %s" % (v(SS + 2 * i + 1), v(X0 + i)))
A("v_add_f32 v4, %s, %s" % (v(SS), v(SS + 1)))
A("v_mul_f32 v5, %s, %s" % (v(SS), v(SS)))
A("v_fmac_f32 v5, %s, %s" % (v(SS + 1), v(SS + 1)))
for i in range(2, 8):
    A("v_add_f32 v4, v4, %s" % v(SS + i))
    A("v_fmac_f32 v5, %s, %s" % (v(SS + i), v(SS + i)))
for m in (X1, X2, HM, RM):
    A("v_add_f32_dpp v4, v4, v4 %s" % m)
    A("v_add_f32_dpp v5, v5, v5 %s" % m)
g_allreduce("v_add_f32", 4, 6)
g_allreduce("v_add_f32", 5, 6)
A("v_mul_f32 v4, %s, v4" % f32(1 / 512))
A("v_mul_f32 v5, %s, v5" % f32(1 / 512))
A("v_fma_f32 v5, -v4, v4, v5")
A("v_max_f32 v5, 0, v5")
A("v_add_f32 v5, %s, v5" % f32(1e-5))
A("v_rsq_f32 v5, v5")
sexpr(sT0, [(sU, 8)], ST0)
A("v_mov_b32 v6, %s" % sT0)
A("ds_write_b64 v6, v[4:5]")
A("s_waitcnt lgkmcnt(0)")
ssync(0)
stamp("S", 0)
for t in range(4):
    A("ds_read_b128 %s, %s offset:%d" % (v(XR + 4 * t, 4), v(sXa), 64 * t))
for t in range(4):
    for hh in range(2):
        A("ds_read_b64_tr_b16 %s, %s offset:%d" % (v(WQ + 4 * t + 2 * hh, 2), v(sTr), LW_Q + (32 * t + 4 * hh) * 128))
vexpr(4, [(2, 8)], None, ST0)
A("ds_read_b64 v[6:7], v4")
A("v_mov_b32 v4, %d" % NONCE)
A("ds_read_b64 v[12:13], v4")
for i in range(4):
    A("v_mov_b32 %s, 0x3f803f80" % v(XR + 16 + i))
A("s_waitcnt lgkmcnt(0)")
for t in range(4):
    A("%s %s, %s, %s, %s" % (MFMA, v(DR, 4), v(XR + 4 * t, 4), v(WQ + 4 * t, 4), "0" if t == 0 else v(DR, 4)))
    A("%s %s, %s, %s, %s" % (MFMA, v(DR + 4, 4), v(XR + 16, 4), v(WQ + 4 * t, 4), "0" if t == 0 else v(DR + 4, 4)))
A("v_fma_f32 %s, -v6, %s, %s" % (v(DR), v(DR + 4), v(DR)))
A("v_mul_f32 %s, %s, v7" % (v(DR), v(DR)))
A("v_mov_b32 %s, %s" % (v(sCsP), v(DR + 4)))
A("v_mov_b32 %s, v12" % v(DR + 1))
sexpr(sT0, [(sJ, 65536), (sHi, 4096), (sLo, 512), (sU, 128)], E1T)
vexpr(4, [(2, 16384), (1, 8)], sT0)
stamp("S", 1)
A("global_store_dwordx2 v4, %s, %s sc1" % (v(DR, 2), pWS))
A("v_readfirstlane_b32 s48, v12")
A("v_readfirstlane_b32 s49, v13")
A("s_cmp_lg_u32 %s, 1" % sU)
A("s_cbranch_scc1 S_NOREC")
RS = P.get("RS", 16)
sexpr(sT0, [(sJ, 32 * RS), (sS, RS)], REC)
A("v_mov_b32 v4, %s" % sT0)
A("v_mov_b32 v14, %s" % sXcc)
set_exec(1)
A("global_store_dwordx3 v4, v[12:14], %s sc1" % pWS)
set_exec(-1)
A.label("S_NOREC")


def PT1():
    padd(pT, pWJ, LSTR)
    A("global_load_dwordx4 v[140:143], %s, %s sc1" % (v(sClr), pT))
    A("s_mov_b32 exec_hi, 0")
    A("global_load_dwordx4 v[140:143], %s, %s offset:1024 sc1" % (v(sClr), pT))
    A("s_mov_b64 exec, -1")


def ptouch():
    A("global_load_dwordx4 v[140:143], %s, %s sc1" % (v(sClr), pWJ))
    set_exec(0xFFFFFFFF)
    A("global_load_dwordx4 v[140:143], %s, %s offset:1024 sc1" % (v(sClr), pWJ))
    set_exec(-1)
    if P.get("PTX", 0):
        sexpr(sT0, [("s2", 1280), (sK0, LSTR), (sK1, 640)], E3)
        A("v_add_u32 v7, %s, v3" % sT0)
        set_exec(0xFFFFFFFFFF)
        A("global_load_dwordx4 v[140:143], v7, %s sc1" % pWS)
        set_exec(-1)


def wt_slice(base):
    A("global_store_dwordx4 %s, %s, %s sc1" % (v(sClr), v(SN, 4), base))
    A("s_mov_b32 exec_hi, 0")
    A("global_store_dwordx4 %s, %s, %s offset:1024 sc1" % (v(sClr), v(SN, 4), base))
    A("s_mov_b64 exec, -1")


def half_treduce(r):
    A("v_permlane32_swap_b32 %s, %s" % (v(r), v(r + 2)))
    A("v_permlane32_swap_b32 %s, %s" % (v(r + 1), v(r + 3)))
    A("v_add_f32 %s, %s, %s" % (v(r), v(r), v(r + 2)))
    A("v_add_f32 %s, %s, %s" % (v(r + 1), v(r + 1), v(r + 3)))


AG = ["global_load_dwordx4 %s, %s, %s sc1" % (v(ga, 4), v(sAg), pWJ),
      "global_load_dwordx4 %s, %s, %s offset:2048 sc1" % (v(gb, 4), v(sAg), pWJ)]
AGC = [(ga + e, gb + e) for e in range(4)]
sexpr(sT0, [(sJ, 65536), (sHi, 16384), (sU, 1024)], E1T + 4096)
A("v_add_u32 v4, %s, v3" % sT0)
A("v_add_u32 v5, 8192, v4")
sexpr(sT0, [(sU, 64 * RS)], REC)
vexpr(6, [(0, RS)], sT0)
if P.get("PTOUCH", 1) == 2:
    ptouch()
sleep(P.get("D_A0", 20))
TQ = XR
A.label("S_AG0")
A("global_load_dwordx4 %s, v4, %s offset:-4096 sc1" % (v(TQ, 4), pWS))
A("global_load_dwordx4 %s, v4, %s sc1" % (v(TQ + 4, 4), pWS))
A("global_load_dwordx4 %s, v5, %s offset:-4096 sc1" % (v(TQ + 8, 4), pWS))
A("global_load_dwordx4 %s, v5, %s sc1" % (v(TQ + 12, 4), pWS))
A("s_waitcnt vmcnt(0)")
for i in range(8):
    A("v_xor_b32 %s, s48, %s" % (v(TQ + 2 * i + 1), v(TQ + 2 * i + 1)))
A("v_or3_b32 v7, %s, %s, %s" % (v(TQ + 1), v(TQ + 3), v(TQ + 5)))
A("v_or3_b32 v7, v7, %s, %s" % (v(TQ + 7), v(TQ + 9)))
A("v_or3_b32 v7, v7, %s, %s" % (v(TQ + 11), v(TQ + 13)))
A("v_or_b32 v7, v7, %s" % v(TQ + 15))
A("v_cmp_ne_u32 vcc, 0, v7")
A("s_cbranch_vccz S_AG0_DONE")
sleep(P.get("NAPQ", 8))
budget_loop("S_AG0")
A.label("S_AG0_DONE")
A("global_load_dwordx3 v[12:14], v6, %s sc1" % pWS)
A("v_mov_b32 v4, %d" % (FLG + 12))
A("v_mov_b32 v5, 1")
A("ds_write_b32 v4, v5")
stamp("S", 2)
for c in range(2):
    A("v_add_f32 %s, %s, %s" % (v(TQ + 2 * c), v(TQ + 2 * c), v(TQ + 4 + 2 * c)))
    A("v_add_f32 %s, %s, %s" % (v(TQ + 8 + 2 * c), v(TQ + 8 + 2 * c), v(TQ + 12 + 2 * c)))
    A("v_add_f32 %s, %s, %s" % (v(TQ + 2 * c), v(TQ + 2 * c), v(TQ + 8 + 2 * c)))
A("v_cvt_pk_bf16_f32 %s, %s, %s" % (v(ga), v(TQ), v(TQ + 2)))
sexpr(sT0, [(sU, RS_)], QOP)
vexpr(4, [(0, 4)], sT0)
A("ds_write_b32 v4, %s" % v(ga))
A("s_waitcnt lgkmcnt(0)")
A("s_barrier")
if not P.get("WF", 0):
    exec(WOBLK)
A("s_waitcnt vmcnt(6)")
A("s_branch S_RP_CHK")
A.label("S_RP")
A("global_load_dwordx3 v[12:14], v6, %s sc1" % pWS)
A("s_waitcnt vmcnt(0)")
A.label("S_RP_CHK")
A("v_cmp_ne_u64 vcc, %s, v[12:13]" % pN)
A("s_cbranch_vccz S_RP_DONE")
A("s_sleep %d" % P.get("PSL", 8))
budget_loop("S_RP")
A("v_mov_b32 v14, -1")
A.label("S_RP_DONE")
A("s_lshr_b32 %s, %s, 1" % (sT0, sJ))
A("s_cmp_lg_u32 %s, %s" % (sT0, sU))
A("s_cbranch_scc1 S_REC_SKIP")
A("v_cmp_ne_u32 vcc, %s, v14" % sXcc)
A("s_bitcmp1_b32 %s, 0" % sJ)
A("s_cselect_b32 %s, vcc_hi, vcc_lo" % sT0)
A("s_cmp_eq_u32 %s, 0" % sT0)
A("s_cselect_b32 %s, 1, 0" % sT0)
if P["FORCE_SAFE"]:
    A("s_mov_b32 %s, 0" % sT0)
A("v_mov_b32 v5, %d" % FLG)
A("v_mov_b32 v7, %s" % sT0)
A("ds_write_b32 v5, v7")
A.label("S_REC_SKIP")
stamp("S", 14)
if P.get("PTOUCH", 1) == 1:
    ptouch()
w2_dma(0)
A("s_waitcnt lgkmcnt(0)")

TRBLK = r'''lab = if_layer0()
for t in range(7):
    for hh in range(2):
        A("ds_read_b64_tr_b16 %s, %s offset:%d" % (v(W2R + 4 * t + 2 * hh, 2), v(sTr), LW_2 + (32 * t + 4 * hh) * 128))
A("s_waitcnt lgkmcnt(0)")
A.label(lab)
'''
A.label("S_LOOP")
A("s_barrier")
cycs(0)
stamp("S", 3)
cm = XR
ca = XR + 8
A("v_mov_b32 v5, %d" % FLG)
A("ds_read_b32 v6, v5")
A("ds_read_b128 %s, %s" % (v(cm, 4), v(sMlrd)))
A("ds_read_b128 %s, %s offset:16" % (v(cm + 4, 4), v(sMlrd)))
for k in range(4):
    A("ds_read_b128 %s, %s offset:%d" % (v(ca + 4 * k, 4), v(sCrd), 2 * APB * k))
cM, cL, cT, cAd = SS, SS + 1, SS + 2, SS + 3
A("v_mov_b32 %s, %s" % (v(cAd), sC))
A("s_waitcnt lgkmcnt(%d)" % (0 if STAMP == 5 else 4))
cycs(1)
A("v_readfirstlane_b32 %s, v6" % sFast)
A("v_max3_f32 %s, %s, %s, %s" % (v(cM), v(cm), v(cm + 2), v(cm + 4)))
A("v_max_f32 %s, %s, %s" % (v(cM), v(cM), v(cm + 6)))
A("v_mov_b32 %s, %s" % (v(cT), v(cM)))
A("v_permlane32_swap_b32 %s, %s" % (v(cM), v(cT)))
A("v_max_f32 %s, %s, %s" % (v(cM), v(cM), v(cT)))
for k in range(4):
    A("v_sub_f32 %s, %s, %s" % (v(cm + 2 * k), v(cm + 2 * k), v(cM)))
for k in range(4):
    A("v_exp_f32 %s, %s" % (v(cm + 2 * k), v(cm + 2 * k)))
A("s_waitcnt lgkmcnt(0)")
if P.get("PK", 1):
    for h in range(2):
        A("v_pk_mul_f32 %s, %s, %s op_sel_hi:[0,1]" % (v(DR + 2 * h, 2), v(cm, 2), v(ca + 2 * h, 2)))
    A("v_mul_f32 %s, %s, %s" % (v(cL), v(cm), v(cm + 1)))
    for k in range(1, 4):
        for h in range(2):
            A("v_pk_fma_f32 %s, %s, %s, %s op_sel_hi:[0,1,1]" % (v(DR + 2 * h, 2), v(cm + 2 * k, 2), v(ca + 4 * k + 2 * h, 2), v(DR + 2 * h, 2)))
        A("v_fmac_f32 %s, %s, %s" % (v(cL), v(cm + 2 * k), v(cm + 2 * k + 1)))
else:
    for e in range(4):
        A("v_mul_f32 %s, %s, %s" % (v(DR + e), v(cm), v(ca + e)))
    A("v_mul_f32 %s, %s, %s" % (v(cL), v(cm), v(cm + 1)))
    for k in range(1, 4):
        for e in range(4):
            A("v_fmac_f32 %s, %s, %s" % (v(DR + e), v(cm + 2 * k), v(ca + 4 * k + e)))
        A("v_fmac_f32 %s, %s, %s" % (v(cL), v(cm + 2 * k), v(cm + 2 * k + 1)))
A("v_mov_b32 %s, %s" % (v(cT), v(cL)))
A("v_permlane32_swap_b32 %s, %s" % (v(DR), v(DR + 2)))
A("v_permlane32_swap_b32 %s, %s" % (v(DR + 1), v(DR + 3)))
A("v_permlane32_swap_b32 %s, %s" % (v(cL), v(cT)))
A("v_add_f32 %s, %s, %s" % (v(DR), v(DR), v(DR + 2)))
A("v_add_f32 %s, %s, %s" % (v(DR + 1), v(DR + 1), v(DR + 3)))
A("v_add_f32 %s, %s, %s" % (v(cL), v(cL), v(cT)))
cycs(2)
store_intra(["global_store_dwordx2 %s, %s, %s" % (v(sE2w), v(DR, 2), pWJ),
             "s_mov_b64 exec, 1",
             "global_store_dwordx2 %s, %s, %s" % (v(cAd), v(cM, 2), pWJ),
             "s_mov_b64 exec, -1"])
if P.get("SIGI", 1):
    A("s_barrier")
cycs(3)
stamp("S", 4)
W2P = P.get("W2P", 1)
lab = if_layer0()
A("v_add_u32 %s, %d, %s" % (v(gc), 4 * 8192, v(sE1w)))
A("v_add_u32 %s, %d, %s" % (v(gc + 1), (E4C - E4) & 0xFFFFFFFF, v(sE4w)))
for i in range(4):
    A("v_mov_b32 %s, 0x3f803f80" % v(XR + i))
A("s_waitcnt vmcnt(%d)" % (2 + W2S[0] + ((2 + P.get("PTX", 0)) if P.get("PTOUCH", 1) == 1 else 0)))
w2_dma(1)
ssync(1)
for tl in range(2):
    for hh in range(2):
        A("ds_read_b64_tr_b16 %s, %s offset:%d" % (v(W1R + 4 * tl + 2 * hh, 2), v(sTr1), LW_1 + 4 * hh * 224 + 32 * tl))
for t in range(4):
    for hh in range(2):
        A("ds_read_b64_tr_b16 %s, %s offset:%d" % (v(WO + 4 * t + 2 * hh, 2), v(sTr), LW_O + (32 * t + 4 * hh) * 128))
A("s_waitcnt lgkmcnt(8)")
A("%s %s, %s, %s, 0" % (MFMA, v(DR + 4, 4), v(XR, 4), v(W1R, 4)))
A("%s %s, %s, %s, 0" % (MFMA, v(XR + 4, 4), v(XR, 4), v(W1R + 4, 4)))
A("s_cmp_eq_u32 %s, 3" % sU)
A("s_cselect_b32 %s, 0, 0xffff" % sT0)
store_intra(exec_lines(0xFFFF) +
            ["global_store_dword %s, %s, %s" % (v(gc), v(sCsP), pWJ),
             "global_store_dword %s, %s, %s" % (v(gc + 1), v(DR + 4), pWJ),
             "s_mov_b32 exec_lo, %s" % sT0,
             "global_store_dword %s, %s, %s offset:64" % (v(gc + 1), v(XR + 4), pWJ),
             "s_mov_b64 exec, -1"])
A("s_waitcnt lgkmcnt(0)")
A.label(lab)
A("s_barrier")
cycs(4)
if STAMP == 5:
    A("s_waitcnt lgkmcnt(0)")
stamp("S", 5)
for t in range(4):
    A("ds_read_b128 %s, %s offset:%d" % (v(XR + 4 * t, 4), v(sOrd), 64 * t))
for t in range(4):
    A("s_waitcnt lgkmcnt(%d)" % (3 - t))
    A("%s %s, %s, %s, %s" % (MFMA, v(DR, 4), v(XR + 4 * t, 4), v(WO + 4 * t, 4), "0" if t == 0 else v(DR, 4)))
if P.get("E3B", 1):
    A("v_cvt_pk_bf16_f32 %s, %s, %s" % (v(DR), v(DR), v(DR)))
    A("global_store_short %s, %s, %s sc1" % (v(sE3w), v(DR), pWL))
else:
    A("global_store_dword %s, %s, %s sc1" % (v(sE3w), v(DR), pWL))
cycs(5)
A("s_barrier")
lab = if_layer0()
w2_dma(2)
A("s_sub_u32 %s, 4, %s" % (sT0, sHi))
A("s_lshl_b32 %s, %s, 13" % (sT0, sT0))
A("v_add_u32 %s, %s, %s" % (v(gc), sT0, v(sAg)))
poll(["global_load_dwordx4 %s, %s, %s sc1" % (v(ga, 4), v(gc), pWJ),
      "global_load_dwordx4 %s, %s, %s offset:2048 sc1" % (v(gb, 4), v(gc), pWJ)], AGC, nap=4)
for e in range(4):
    A("v_add_f32 %s, %s, %s" % (v(ga + e), v(ga + e), v(gb + e)))
half_treduce(ga)
A("v_mov_b32 %s, %s" % (v(sCq0), v(ga)))
A("v_mov_b32 %s, %s" % (v(sCq1), v(ga + 1)))
A.label(lab)
A("s_barrier")
cycs(6)
if STAMP == 5:
    A("s_waitcnt lgkmcnt(0)")
stamp("S", 6)
A("ds_read_b128 %s, %s" % (v(XR, 4), v(sX1a)))
A("s_cmp_eq_u32 %s, 3" % sU)
A("s_cbranch_scc1 S_W1_W3")
A("s_waitcnt lgkmcnt(0)")
A("%s %s, %s, %s, 0" % (MFMA, v(DR, 4), v(XR, 4), v(W1R, 4)))
A("%s %s, %s, %s, 0" % (MFMA, v(DR + 4, 4), v(XR, 4), v(W1R + 4, 4)))
store_intra(["global_store_dword %s, %s, %s" % (v(sE4w), v(DR), pWJ),
             "global_store_dword %s, %s, %s offset:64" % (v(sE4w), v(DR + 4), pWJ)])
A("s_branch S_W1_DONE")
A.label("S_W1_W3")
A("ds_read_b128 %s, %s" % (v(XR + 4, 4), v(sX1b)))
A("s_waitcnt lgkmcnt(1)")
A("%s %s, %s, %s, 0" % (MFMA, v(DR, 4), v(XR, 4), v(W1R, 4)))
A("s_waitcnt lgkmcnt(0)")
A("%s %s, %s, %s, 0" % (MFMA, v(DR + 4, 4), v(XR, 4), v(XR + 4, 4)))
store_intra(["global_store_dword %s, %s, %s" % (v(sE4w), v(DR), pWJ)] + exec_lines(STM) +
            ["global_store_dword %s, %s, %s" % (v(sE4sw), v(DR + 4), pWJ)] + exec_lines(0x000F000F000F000F) +
            ["global_store_dwordx4 %s, %s, %s" % (v(sE4rw), v(XR + 4, 4), pWJ), "s_mov_b64 exec, -1"])
A.label("S_W1_DONE")
cycs(7)
if P.get("SIGI", 1):
    A("s_barrier")
KEEP = 136
if P.get("CLEAN", 0) & 8:
    A("v_mov_b32 %s, %s" % (v(KEEP), v(DR)))
    A("v_mov_b32 %s, %s" % (v(KEEP + 1), v(DR + 4)))
if P.get("W2LATE", 0):
    A("s_waitcnt vmcnt(0)")
else:
    exec(TRBLK)
A("s_barrier")
cycs(8)
if STAMP == 5:
    A("s_waitcnt lgkmcnt(0)")
stamp("S", 7)
if P.get("W2LATE", 0):
    exec(TRBLK)
for t in range(7):
    A("ds_read_b128 %s, %s offset:%d" % (v(XR + 4 * t, 4), v(sHrd), 64 * t))
for t in range(7):
    A("s_waitcnt lgkmcnt(%d)" % (6 - t))
    ab = (v(W2R + 4 * t, 4), v(XR + 4 * t, 4)) if P.get("WIDE", 0) else (v(XR + 4 * t, 4), v(W2R + 4 * t, 4))
    A("%s %s, %s, %s, %s" % (MFMA, v(DR, 4), ab[0], ab[1], "0" if t == 0 else v(DR, 4)))
if P.get("WIDE", 0):
    set_exec(0x0001000100010001)
    A("global_store_dwordx4 %s, %s, %s sc1" % (v(sE5w), v(DR, 4), pWL))
else:
    set_exec(0xFFFF)
    A("global_store_dword %s, %s, %s sc1" % (v(sE5w), v(DR), pWL))
set_exec(-1)
if P.get("SIG", 1):
    A("s_barrier")
cycs(9)
cycs_dump(10)
stamp("S", 8)
A("s_cmp_lg_u32 %s, 0" % sL)
A("s_cbranch_scc1 %s" % ("S_FIN" if P.get("CLEAN", 0) & 4 else "L_EXIT"))
A("s_mov_b32 %s, 1" % sL)
padd(pWL, pWL, LSTR)
sexpr(sT0, [(sS, 2176), (sU, 544)], E2S)
A("v_add_u32 v4, %s, v3" % sT0)
store_intra(exec_lines((1 << 34) - 1) + ["global_store_dwordx4 v4, %s, %s" % (v(SN, 4), pWJ), "s_mov_b64 exec, -1"])
A("s_lshl_b32 %s, %s, 6" % (sT0, sU))
A("v_add_u32 %s, %s, %s" % (v(SS), sT0, v(sXa)))
A("v_mov_b32 %s, 0" % v(gc))
A("s_waitcnt vmcnt(0)")
A("s_barrier")
stamp("S", 0)
for t in range(4):
    A("ds_read_b128 %s, %s offset:%d" % (v(XR + 4 * t, 4), v(sXa), 64 * t))
A("ds_read_b128 %s, %s" % (v(XR + 16, 4), v(sXb)))
A("ds_read_b128 %s, %s" % (v(XR + 20, 4), v(SS)))
for t in range(4):
    A("s_waitcnt lgkmcnt(%d)" % (5 - t))
    A("%s %s, %s, %s, %s" % (MFMA, v(DR, 4), v(XR + 4 * t, 4), v(WQ + 4 * t, 4), "0" if t == 0 else v(DR, 4)))
A("s_waitcnt lgkmcnt(0)")
A("%s %s, %s, %s, 0" % (MFMA, v(DR + 4, 4), v(XR + 20, 4), v(XR + 16, 4)))
stamp("S", 1)
store_intra(["global_store_dword %s, %s, %s" % (v(sE1w), v(DR), pWJ)] + exec_lines(STM) +
            ["global_store_dword %s, %s, %s" % (v(sE1sw), v(DR + 4), pWJ), "s_mov_b64 exec, -1"])
sleep(P["D_A"])
SSETS = [SS, XR, XR + 12][:P.get("NSETS", 2)]
q0_, q1_, q2_, q3_ = 4, 5, 6, 7


def a_post():
    t = XR
    with Cap() as c1:
        stats_math(gc, XR + 4, 1.0, 1e-5)
        A("v_mul_f32 %s, %s, %s" % (v(q2_), v(XR + 5), v(sCq0)))
        A("v_mul_f32 %s, %s, %s" % (v(q3_), v(XR + 5), v(sCq1)))
    with Cap() as c2:
        for e in range(4):
            A("v_add_f32 %s, %s, %s" % (v(t + e), v(ga + e), v(gb + e)))
        half_treduce(t)
    for l in interleave(c1.lines, c2.lines):
        A(l)
    A("v_fma_f32 %s, %s, %s, -%s" % (v(q0_), v(t), v(XR + 4), v(q2_)))
    A("v_fma_f32 %s, %s, %s, -%s" % (v(q1_), v(t + 1), v(XR + 4), v(q3_)))


opt_poll("global_load_dword %s, %s, %s sc1" % (v(gc), v(sAst), pWJ), 0xFFFFFFFF, [gc], AG, range(ga, ga + 8), a_post, [q0_, q1_])
stamp("S", 2)
A("v_cvt_pk_bf16_f32 %s, %s, %s" % (v(q0_), v(q0_), v(q1_)))
A("ds_write_b32 %s, %s" % (v(sQw), v(q0_)))
A("s_waitcnt lgkmcnt(0)")
A("s_barrier")
sexpr(sT0, [(sS, 2048), (sU, 512)], E4)
A("v_add_u32 v4, %s, v3" % sT0)
store_intra(exec_lines(0xFFFFFFFF) + ["global_store_dwordx4 v4, %s, %s" % (v(SN, 4), pWJ), "s_mov_b64 exec, -1"])
A("s_waitcnt vmcnt(0)")
A("s_branch S_LOOP")
if P.get("CLEAN", 0) & 4:
    A.label("S_FIN")
    sexpr(sT0, [(sS, 4096), (sU, 1024)])
    A("v_add_u32 v4, %s, v3" % sT0)
    A("global_store_dwordx4 v4, %s, %s sc1" % (v(SN, 4), pWJ))
    if P.get("CLEAN", 0) & 8:
        A("global_store_dword %s, %s, %s sc1" % (v(sE4w), v(KEEP), pWJ))
        A("s_cmp_eq_u32 %s, 3" % sU)
        A("s_cbranch_scc1 L_EXIT")
        A("global_store_dword %s, %s, %s offset:64 sc1" % (v(sE4w), v(KEEP + 1), pWJ))
    A("s_branch L_EXIT")

KR, VR, VF, QR, SR = 16, 48, 80, 112, 128
GS = 48
(gOg, gOml, gOlds, gW1g, gW1x, gW1lds, gW2g, gW2s, gW2lds, gXg, gXr, gXlds, gB1, gB2, gCs1, gQrd, gApw, gMlw, gOut, gDma) = range(148, 168)
_gn = [1 if P["PREF"] else 0]


def gload(t):
    if P.get("NODMA") and "lds" in t:
        t = "global_load_dword v140, v3, %s" % pB1 if False else "s_nop 0"
        A(t)
        return
    if _gn[0] >= P["W"]:
        if P.get("ADAPT"):
            lab = newlabel("THR")
            A("ds_read_b32 v130, v129")
            A("s_waitcnt lgkmcnt(0)")
            A("v_readfirstlane_b32 %s, v130" % sT1)
            A("s_cmp_lg_u32 %s, 0" % sT1)
            A("s_cbranch_scc1 %s" % lab)
            A("s_waitcnt vmcnt(%d)" % (P["W"] - 1))
            A.label(lab)
        else:
            A("s_waitcnt vmcnt(%d)" % (P["W"] - 1))
    A(t)
    _gn[0] += 1


GADDR = r'''A("v_lshrrev_b32 v11, 3, v0")        # l>>3
A("v_and_b32 v12, 7, v0")            # l&7
vexpr(gDma, [(11, 1024), (12, 16)])
# bias elements
A("s_lshr_b32 %s, %s, 1" % (sK0, sWave))     # b = w>>1
A("s_and_b32 %s, %s, 1" % (sK1, sWave))      # w&1
A("s_min_u32 %s, %s, 6" % (sK2, sWave))      # w' for the W2 gather
vexpr(13, [(1, 4), (2, 1)])                  # X col local = 4 l16 + g
sexpr(sT0, [(sHi, 256), (sK1, 128)])
vexpr(14, [(13, 2)], sT0)                    # col*2 within a 512-col bf16 row
gload("global_load_ushort %s, v14, %s%s" % (v(gB2), pB2, NT))
vexpr(10, [(12, 4), (2, 1)])                 # 4 (l&7) + g
sexpr(sT0, [(sK2, 64)])
vexpr(10, [(10, 2)], sT0)                    # f*2 (local)
sexpr(sT0, [(sJ, 448)])
A("v_add_u32 v6, %s, v10" % sT0)
gload("global_load_ushort %s, v6, %s%s" % (v(gB1), pB1, NT))
N_AFTER_K, N_AFTER_V = 8, 0

for q in range(4):
    smov64(mQ[q], (0x000F000F000F000F << (4 * q)))
A("s_mov_b32 %s, 0x05040100" % sPermLo)
A("s_mov_b32 %s, 0x07060302" % sPermHi)
A("s_mov_b32 %s, %s" % (sC, f32(128 ** -0.5 * math.log2(math.e))))
A("s_mov_b32 s42, s40")
A("s_mov_b32 s43, s41")
A("s_mul_i32 %s, %s, %d" % (sT0, sJ, JSTR))
padd(pWJ, pWS, sT0)
A("v_add_u32 %s, %d, v10" % (v(gW2lds), HOP))
# O gather: E2 + ((ro*4+b)*8 + 2g)*512 + (16 (w&1) + l16)*16
sexpr(sT0, [(sHi, 16384), (sK0, 4096), (sK1, 256)], E2)
vexpr(gOg, [(2, 1024), (1, 16)], sT0)
sexpr(sT0, [(sHi, 256), (sK0, 64)], E2S)
vexpr(gOml, [(2, 16)], sT0)
# O lds: U = 16 h + l16 (h = w&1); lp = 2U + (g>>1); ups = lp&31 = (2 l16 + (g>>1)) ; e = 2 h + (g&1)
#   ups = 16 a + 4 g' + qq ; d = 32 g' + 8 e + 4 a + qq
A("v_lshrrev_b32 v4, 1, v2")
A("v_lshl_add_u32 v4, v1, 1, v4")            # ups
A("v_bfe_u32 v5, v4, 4, 1")                  # a
A("v_bfe_u32 v6, v4, 2, 2")                  # g'
A("v_and_b32 v7, 3, v4")                     # qq
A("v_and_b32 v4, 1, v2")                     # g&1
sexpr(sT0, [(sK0, RS_), (sK1, 32)], OOP)
vexpr(gOlds, [(6, 64), (4, 16), (5, 8), (7, 2)], sT0)
# W1 gather: E3 + r1*16384 + (2 pp)*512 + (4 w + (l&3))*16 ; pp = l>>2
A("v_lshrrev_b32 v4, 2, v0")
A("v_and_b32 v5, 3, v0")
if P.get("E3B", 1):
    sexpr(sT0, [(sR1, 8192), (sWave, 1024)], E3)
    A("v_add_u32 %s, %s, v3" % (v(gW1g), sT0))
elif P.get("E3L", 1):
    sexpr(sT0, [(sR1, 16384), (sWave, 2048)], E3)
    A("v_add_u32 %s, %s, v3" % (v(gW1g), sT0))
else:
    sexpr(sT0, [(sR1, 16384), (sWave, 64)], E3)
    vexpr(gW1g, [(4, 1024), (5, 16)], sT0)
# rho = 16 tile + 4 (l&3) + g ; tile = w>>2, b = w&3
A("s_lshr_b32 %s, %s, 2" % (sT1, sWave))
A("s_and_b32 %s, %s, 3" % (sT2, sWave))
if P.get("E3B", 1):
    # column = 8 (l&1) + 4 b5 + 2 b4 + b3
    A("v_and_b32 v4, 1, v0")
    A("v_bfe_u32 v5, v0, 5, 1")
    A("v_bfe_u32 v6, v0, 4, 1")
    A("v_bfe_u32 v7, v0, 3, 1")
    A("v_lshlrev_b32 v4, 4, v4")
    A("v_lshl_add_u32 v4, v5, 3, v4")
    A("v_lshl_add_u32 v4, v6, 2, v4")
    A("v_lshl_add_u32 v6, v7, 1, v4")
    A("s_mov_b32 s61, 0x00003f80")      # (1, 0)
    A("s_mov_b32 s46, 0x3f800000")      # (0, 1)
    A("s_mov_b32 s47, 0x3f803f80")      # (1, 1)
    smov64("s[48:49]", 0xFF00FF00FF00FF00)
else:
    vexpr(6, [(5, 8), (2, 2)])
sexpr(sT0, [(sT2, RS1), (sT1, 32)], X1OP)
A("v_add_u32 %s, %s, v6" % (v(gW1lds), sT0))
sexpr(sT0, [(sT2, RS_), (sT1, 32)], XOP)
A("s_and_b32 %s, %s, 3" % (sT1, sR1))
A("s_lshl_b32 %s, %s, 6" % (sT1, sT1))
A("s_add_u32 %s, %s, %s" % (sT0, sT0, sT1))
A("v_add_u32 %s, %s, v6" % (v(gW1x), sT0))
# W2 gather: E4 + (b*16 + 2 pp8)*896 + (8 w' + (l&7))*16 ; pp8 = l>>3
sexpr(sT0, [(sHi, 16 * 896), (sK2, 128)], E4)
vexpr(gW2g, [(11, 2 * 896), (12, 16)], sT0)
# W2 stats: E4S + (c1*4 + b)*128 + l16*8  (16 entries, row all-reduce)
sexpr(sT0, [(sHi, 128)], E4S)
vexpr(gW2s, [(1, 8), (2, 4)], sT0)
# X gather: E5 + ((b*8 + 2 rq + (w&1))*8 + 2g)*256 + l16*16
sexpr(sT0, [(sK0, 16384), (sHi, 4096), (sK1, 2048)], E5)
vexpr(gXg, [(2, 512), (1, 16)], sT0)
sexpr(sT0, [(sK0, 1024)], E4R)
A("v_add_u32 %s, %s, v14" % (v(gXr), sT0))
sexpr(sT0, [(sK0, 1024)])
A("v_add_u32 %s, %s, v14" % (v(gOut), sT0))
sexpr(sT0, [(sK0, RS_), (sK1, 128)], XOP)
vexpr(gXlds, [(13, 2)], sT0)
vexpr(gQrd, [(8, RS_), (2, 16)], None, QOP)
sexpr(sT0, [(sWave, 2 * APB)], AP)
vexpr(gApw, [(8, 288), (2, 64), (9, 16)], sT0)
sexpr(sT0, [(sWave, 8)], ML)
vexpr(gMlw, [(8, 64)], sT0)
'''
NV1 = 8
A.label("L_G")
ISTR, WSTR = ((65536, 8192) if P.get("KMODE", 5) == 5 else (8192, 65536))
sexpr(sT0, [(sHi, 8 << 21), (sJ, 1 << 21), (sLo, 1024), (sWave, WSTR)], 6144 * 256)
A("v_and_b32 v8, 3, v1")
A("v_lshrrev_b32 v9, 2, v1")
vexpr(10, [(8, ISTR), (9, 256), (2, 16)])
A("v_mov_b32 v129, %d" % (FLG + 12))
A("s_waitcnt lgkmcnt(0)")
stamp_init()
stamp("G", 10)
padd(pT, pK, sT0)
padd(pT2, pV, sT0)
for tau in range(2):
    for t in range(4):
        if 4 * tau + t == P["B0POS"]:
            A("s_barrier")
        gload("global_load_dwordx4 %s, v10, %s offset:%d%s" % (v(KR + 4 * (4 * tau + t), 4), pT, 64 * t, NT))
    if tau == 0:
        padd(pT, pT, 4 * ISTR)
        A("v_mov_b32 %s, v10" % v(SR))
        exec(GADDR)
        A("v_mov_b32 v10, %s" % v(SR))
stamp("G", 11)
NV1 = 8
for jj in range(8):
    gload("global_load_dwordx4 %s, v3, %s%s" % (v(VR + 4 * jj, 4), pT2, NT))
    if jj < 7:
        padd(pT2, pT2, ISTR)
for q in range(4):
    A("v_cndmask_b32 v%d, 0, -1, %s" % (144 + q, mQ[q]))
stamp("G", 9)
if P.get("KVWAIT"):
    A("s_waitcnt vmcnt(0)")
    stamp("G", 14)
if P.get("QLATE"):
    A("s_barrier")
if P.get("PRIO", 0):
    A("s_cmp_ge_u32 %s, 4" % sWave)
    A("s_cbranch_scc1 G_ENTRY")
    A("s_setprio %d" % P["PRIO"])
A.label("G_ENTRY")
A("s_barrier")
cyc(0)
stamp("G")
if NV1 < 8:
    lab = if_layer0()
    for jj in range(NV1, 8):
        A("global_load_dwordx4 %s, v3, %s offset:%d%s" % (v(VR + 4 * jj, 4), pT2, (jj - 4) * 1024, NT))
    A.label(lab)
for t in range(4):
    A("ds_read_b128 %s, %s offset:%d" % (v(QR + 4 * t, 4), v(gQrd), 64 * t))
A("s_waitcnt vmcnt(%d)" % N_AFTER_K)
stamp("G")
S0, S1 = SR, SR + 4
if STAMP == 4:
    A("s_waitcnt lgkmcnt(0)")
    cyc(1)
for t in range(4):
    A("s_waitcnt lgkmcnt(%d)" % ((3 - t) if STAMP != 4 else 15))
    for tau in range(2):
        d = v(SR + 4 * tau, 4)
        A("%s %s, %s, %s, %s" % (MFMA, d, v(KR + 4 * (4 * tau + t), 4), v(QR + 4 * t, 4), "0" if t == 0 else d))
aM, aT, aMc = 136, 137, 138
PR = 140
PM = QR
A("v_max3_f32 %s, %s, %s, %s" % (v(aM), v(S0), v(S0 + 1), v(S0 + 2)))
A("v_max3_f32 %s, %s, %s, %s" % (v(aT), v(S1), v(S1 + 1), v(S1 + 2)))
A("v_max3_f32 %s, %s, %s, %s" % (v(aM), v(aM), v(S0 + 3), v(S1 + 3)))
A("v_max_f32 %s, %s, %s" % (v(aM), v(aM), v(aT)))
cyc(2)
g_allreduce("v_max_f32", aM, aT)
A("v_mul_f32 %s, %s, %s" % (v(aMc), sC, v(aM)))
for q in range(4):
    A("s_mov_b64 exec, %s" % mQ[q])
    A("v_fma_f32 %s, %s, %s, -%s" % (v(PR), v(SR + 2 * q), sC, v(aMc)))
    A("v_fma_f32 %s, %s, %s, -%s" % (v(PR + 1), v(SR + 2 * q + 1), sC, v(aMc)))
A("s_mov_b64 exec, -1")
A("v_exp_f32 %s, %s" % (v(PR), v(PR)))
A("v_exp_f32 %s, %s" % (v(PR + 1), v(PR + 1)))
A("v_cvt_pk_bf16_f32 %s, %s, %s" % (v(PR), v(PR), v(PR + 1)))
cyc(3)
lab0, lab1 = newlabel("VT"), newlabel("VTD")
A("s_cmp_eq_u32 %s, 0" % sL)
A("s_cbranch_scc1 %s" % lab0)
D0 = 4
DL = 128
MK = 144
ONES = GS + 28


def pm(q, p):
    rot = (4 * (q - p)) % 16
    if rot == 0:
        A("v_and_b32 %s, %s, %s" % (v(PM + 4 * q + p), v(PR), v(MK + q)))
    else:
        A("v_and_b32_dpp %s, %s, %s row_ror:%d%s" % (v(PM + 4 * q + p), v(PR), v(MK + q), rot, DPP))


with Cap() as vt:
    for k in range(16):
        pm(k >> 2, k & 3)
    for i in range(4):
        A("v_mov_b32 %s, 0x3f803f80" % v(132 + i))
    A("%s %s, %s, %s, 0" % (MFMA, v(DL, 4), v(132, 4), v(PM, 4)))
    for p in range(4):
        A("s_waitcnt vmcnt(%d)" % (N_AFTER_V + 6 - 2 * p))
        if p == 3:
            stamp("G")
        for i in (0, 4, 1, 5, 2, 6, 3, 7):
            A("v_perm_b32 %s, %s, %s, %s" % (v(VF + 4 * i + p), v(VR + 4 * (2 * p + 1) + (i >> 1)), v(VR + 4 * (2 * p) + (i >> 1)),
                                             sPermHi if (i & 1) else sPermLo))
    for q in range(4):
        for a in range(2):
            d = v(D0 + 4 * a, 4)
            A("%s %s, %s, %s, %s" % (MFMA, d, v(VF + 4 * (4 * a + q), 4), v(PM + 4 * q, 4), "0" if q == 0 else d))
    for i in range(4):
        A("v_mov_b32 %s, 0x3f803f80" % v(ONES + i))
OOL.append([lab0 + ":"] + vt.lines + ["s_branch %s" % lab1])
for p in range(4):
    pm(0, p)
pm(1, 0); pm(1, 1)
A("%s %s, %s, %s, 0" % (MFMA, v(DL, 4), v(ONES, 4), v(PM, 4)))
for q in range(4):
    for a in range(2):
        d = v(D0 + 4 * a, 4)
        A("%s %s, %s, %s, %s" % (MFMA, d, v(VF + 4 * (4 * a + q), 4), v(PM + 4 * q, 4), "0" if q == 0 else d))
        nxt = 4 * q + 2 * a + 6
        for k in (nxt, nxt + 1):
            if k < 16:
                pm(k >> 2, k & 3)
A.label(lab1)
A("v_mov_b32 %s, %s" % (v(aMc + 1), v(DL)))
cyc(4)
A("s_mov_b64 exec, %s" % mQ[0])
A("ds_write_b64 %s, %s" % (v(gMlw), v(aMc, 2)))
A("s_mov_b64 exec, -1")
A("ds_write_b128 %s, %s" % (v(gApw), v(D0, 4)))
A("ds_write_b128 %s, %s offset:%d" % (v(gApw), v(D0 + 4, 4), APB))
A("s_waitcnt lgkmcnt(0)")
cyc(5)
A("s_barrier")
cyc(6)
cyc_dump(7)

a0, b0, c0 = GS, GS + 4, GS + 8
r0, r1_, r2, r3 = GS + 12, GS + 13, GS + 14, GS + 15


def add_ab():
    for e in range(4):
        A("v_add_f32 %s, %s, %s" % (v(a0 + e), v(a0 + e), v(b0 + e)))


BC = "row_newbcast:0" + DPP
NS_ = P.get("NSETS", 2)
GSETS = [GS, GS + 16, 112][:NS_]
GAP = P.get("GAP", 3)


def add_ab2(a):
    for e in range(4):
        A("v_add_f32 %s, %s, %s" % (v(a + e), v(a + e), v(a + 4 + e)))


def g_treduce_to(a, out):
    A("v_permlane16_swap_b32 %s, %s" % (v(a), v(a + 1)))
    A("v_permlane16_swap_b32 %s, %s" % (v(a + 2), v(a + 3)))
    A("v_add_f32 %s, %s, %s" % (v(a), v(a), v(a + 1)))
    A("v_add_f32 %s, %s, %s" % (v(a + 2), v(a + 2), v(a + 3)))
    A("v_permlane32_swap_b32 %s, %s" % (v(a), v(a + 2)))
    A("v_add_f32 %s, %s, %s" % (v(out), v(a), v(a + 2)))


A("ds_read_u16 %s, %s" % (v(r3), v(gW1x)))
for e in range(4):
    A("v_mov_b32 %s, 0" % v(c0 + e))
A("s_barrier")
sleep(P.get("DI_O", 0))
stamp("G", 7)


T_ = GS + 16


def o_post():
    c, f0, f1, t = c0, T_ + 4, T_ + 5, T_
    A("v_max_f32 %s, %s, %s" % (v(r0), v(c), v(c + 2)))
    g_allreduce("v_max_f32", r0, r1_)
    A("v_sub_f32 %s, %s, %s" % (v(f0), v(c), v(r0)))
    A("v_sub_f32 %s, %s, %s" % (v(f1), v(c + 2), v(r0)))
    A("v_exp_f32 %s, %s" % (v(f0), v(f0)))
    A("v_exp_f32 %s, %s" % (v(f1), v(f1)))
    with Cap() as c1:
        A("v_mul_f32 %s, %s, %s" % (v(r1_), v(f0), v(c + 1)))
        A("v_fmac_f32 %s, %s, %s" % (v(r1_), v(f1), v(c + 3)))
        g_allreduce("v_add_f32", r1_, r2)
        A("v_rcp_f32 %s, %s" % (v(r1_), v(r1_)))
    with Cap() as c2:
        for e in range(4):
            A("v_mul_f32_dpp %s, %s, %s %s" % (v(t + e), v(f0), v(a0 + e), BC))
        for e in range(4):
            A("v_fmac_f32_dpp %s, %s, %s %s" % (v(t + e), v(f1), v(b0 + e), BC))
        g_treduce_to(t, r0)
    L1_, L2_ = c1.lines, c2.lines
    A(L1_[0]); A(L1_[1])
    for l in interleave(L2_, L1_[2:]):
        A(l)
    A("v_mul_f32_dpp %s, %s, %s %s" % (v(r0), v(r1_), v(r0), BC))


def o_pre():
    c, f0, f1 = c0, T_ + 4, T_ + 5
    A("v_max_f32 %s, %s, %s" % (v(r0), v(c), v(c + 2)))
    g_allreduce("v_max_f32", r0, r1_)
    A("v_sub_f32 %s, %s, %s" % (v(f0), v(c), v(r0)))
    A("v_sub_f32 %s, %s, %s" % (v(f1), v(c + 2), v(r0)))
    A("v_exp_f32 %s, %s" % (v(f0), v(f0)))
    A("v_exp_f32 %s, %s" % (v(f1), v(f1)))
    A("v_mul_f32 %s, %s, %s" % (v(r1_), v(f0), v(c + 1)))
    A("v_fmac_f32 %s, %s, %s" % (v(r1_), v(f1), v(c + 3)))
    g_allreduce("v_add_f32", r1_, r2)
    A("v_rcp_f32 %s, %s" % (v(r1_), v(r1_)))
    A("v_mul_f32 %s, %s, %s" % (v(f0), v(f0), v(r1_)))
    A("v_mul_f32 %s, %s, %s" % (v(f1), v(f1), v(r1_)))
    A("v_mov_b32_dpp %s, %s %s" % (v(f0), v(f0), BC))
    A("v_mov_b32_dpp %s, %s %s" % (v(f1 + 1), v(f1), BC))


def o_post2():
    f0, f1 = T_ + 4, T_ + 6
    for h in range(2):
        A("v_pk_mul_f32 %s, %s, %s op_sel_hi:[0,1]" % (v(a0 + 2 * h, 2), v(f0, 2), v(a0 + 2 * h, 2)))
    for h in range(2):
        A("v_pk_fma_f32 %s, %s, %s, %s op_sel_hi:[0,1,1]" % (v(a0 + 2 * h, 2), v(f1, 2), v(b0 + 2 * h, 2), v(a0 + 2 * h, 2)))
    g_treduce_to(a0, r0)


if P.get("SPLIT", 0):
    split_poll("global_load_dwordx4 %s, %s, %s sc1" % (v(c0, 4), v(gOml), pWJ), 0x0001000100010001, list(range(c0, c0 + 4)),
               ["global_load_dwordx4 %s, %s, %s sc1" % (v(a0, 4), v(gOg), pWJ),
                "global_load_dwordx4 %s, %s, %s offset:512 sc1" % (v(b0, 4), v(gOg), pWJ)], range(a0, a0 + 8), o_pre, o_post2, ck=0)
else:
    opt_poll("global_load_dwordx4 %s, %s, %s sc1" % (v(c0, 4), v(gOml), pWJ), 0x0001000100010001, range(c0, c0 + 4),
             ["global_load_dwordx4 %s, %s, %s sc1" % (v(a0, 4), v(gOg), pWJ),
              "global_load_dwordx4 %s, %s, %s offset:512 sc1" % (v(b0, 4), v(gOg), pWJ)], range(a0, a0 + 8), o_post, [r0], ck=0)
stamp("G")
A("v_cvt_pk_bf16_f32 %s, %s, %s" % (v(r0), v(r0), v(r0)))
A("ds_write_b16 %s, %s" % (v(gOlds), v(r0)))
A("s_waitcnt lgkmcnt(0)")
cycg(3)
A("s_barrier")
cycg(4)

A("v_lshlrev_b32 %s, 16, %s" % (v(r3), v(r3)))
A("s_barrier")
A("s_cmp_eq_u32 %s, 0" % sL)
A("s_cbranch_scc1 G_CS1")
sleep(P["D_W1"])
A.label("G_CS1_DONE")
with Cap() as cs1:
    A("s_mul_i32 %s, %s, %d" % (sT0, sHi, 16 * 896))
    A("s_add_u32 %s, %s, %d" % (sT0, sT0, E4 - E4C))
    A("v_subrev_u32 %s, %s, %s" % (v(r2), sT0, v(gW2g)))
    poll(["global_load_dwordx4 %s, %s, %s sc1" % (v(a0, 4), v(r2), pWJ),
          "global_load_dwordx4 %s, %s, %s offset:896 sc1" % (v(b0, 4), v(r2), pWJ)],
         [(a0 + e, b0 + e) for e in range(4)])
    add_ab()
    g_treduce(a0)
    A("v_add_f32_dpp %s, %s, %s row_ror:8%s" % (v(gCs1), v(a0), v(a0), DPP))
    A("v_lshlrev_b32 %s, 16, %s" % (v(gB1), v(gB1)))
    A("v_lshlrev_b32 %s, 16, %s" % (v(gB2), v(gB2)))
OOL.append(["G_CS1:"] + cs1.lines + ["s_branch G_CS1_DONE"])
stamp("G", 8)


def w1_issue(a):
    A("global_load_dwordx4 %s, %s, %s sc1" % (v(a, 4), v(gW1g), pWL))
    A("global_load_dwordx4 %s, %s, %s offset:%d sc1" % (v(a + 4, 4), v(gW1g), pWL, 1024 if P.get("E3L", 1) else 512))


def w1_post(a):
    add_ab2(a)
    g_treduce_to(a, r0)
    A("v_add_f32_dpp %s, %s, %s row_ror:4%s" % (v(r0), v(r0), v(r0), DPP))
    A("v_add_f32_dpp %s, %s, %s row_ror:8%s" % (v(r0), v(r0), v(r0), DPP))


if P.get("E3B", 1):
    pk, t_ = GS, GS + 4
    ld = "global_load_dwordx4 %s, %s, %s sc1" % (v(pk, 4), v(gW1g), pWL)
    A(ld)
    A.label("W1B_CHK")
    A("s_waitcnt vmcnt(0)")
    A("v_dot2_f32_bf16 %s, %s, s47, 0" % (v(t_), v(pk)))
    for e in range(1, 4):
        A("v_dot2_f32_bf16 %s, %s, s47, %s" % (v(t_), v(pk + e), v(t_)))
    A("v_cmp_u_f32 vcc, %s, %s" % (v(t_), v(t_)))
    A("s_cbranch_vccnz W1B_RETRY")
    A.label("W1B_OK")
    OOL.append(["W1B_RETRY:", "s_mov_b64 exec, vcc", ld, "s_mov_b64 exec, -1", "s_sub_u32 %s, %s, 1" % (sBud, sBud),
                "s_cbranch_scc0 W1B_CHK", "s_mov_b32 %s, 0" % sBud, "s_waitcnt vmcnt(0)", "s_branch W1B_OK"])
    A("v_permlane32_swap_b32 %s, %s" % (v(pk), v(pk + 2)))
    A("v_permlane32_swap_b32 %s, %s" % (v(pk + 1), v(pk + 3)))
    for e, (src, sel) in enumerate(((0, "s61"), (0, "s46"), (1, "s61"), (1, "s46"))):
        A("v_dot2_f32_bf16 %s, %s, %s, 0" % (v(t_ + e), v(pk + src), sel))
        A("v_dot2_f32_bf16 %s, %s, %s, %s" % (v(t_ + e), v(pk + 2 + src), sel, v(t_ + e)))
    A("v_permlane16_swap_b32 %s, %s" % (v(t_), v(t_ + 2)))
    A("v_permlane16_swap_b32 %s, %s" % (v(t_ + 1), v(t_ + 3)))
    A("v_add_f32 %s, %s, %s" % (v(t_), v(t_), v(t_ + 2)))
    A("v_add_f32 %s, %s, %s" % (v(t_ + 1), v(t_ + 1), v(t_ + 3)))
    A("v_cndmask_b32 %s, %s, %s, s[48:49]" % (v(t_ + 2), v(t_ + 1), v(t_)))
    A("v_cndmask_b32 %s, %s, %s, s[48:49]" % (v(r0), v(t_), v(t_ + 1)))
    A("v_add_f32_dpp %s, %s, %s row_ror:8%s" % (v(r0), v(t_ + 2), v(r0), DPP))
    A("v_add_f32_dpp %s, %s, %s %s" % (v(r0), v(r0), v(r0), X2))
    A("v_add_f32_dpp %s, %s, %s row_shr:4 row_mask:0xf bank_mask:0xa" % (v(r0), v(r0), v(r0)))
else:
    fast_poll(w1_issue, None, w1_post, None, [r0], GS)
stamp("G")
A("v_add_f32 %s, %s, %s" % (v(r0), v(r0), v(r3)))
A("v_cvt_pk_bf16_f32 %s, %s, %s" % (v(r0), v(r0), v(r0)))
if P.get("E3B", 1):
    set_exec(0xF0F0F0F0F0F0F0F0)
A("ds_write_b16 %s, %s" % (v(gW1lds), v(r0)))
if P.get("E3B", 1):
    set_exec(-1)
A("s_waitcnt lgkmcnt(0)")
A("s_barrier")

k0 = -2 * math.log2(math.e) * math.sqrt(2 / math.pi)
A("v_mov_b32 %s, %s" % (v(r2), f32(k0)))
A("s_barrier")
A("s_cmp_eq_u32 %s, 7" % sWave)
A("s_cbranch_scc1 G_W2_SKIP")
sleep(P.get("DI_W2", 0))
stamp("G", 12)


def add_to(t):
    for e in range(4):
        A("v_add_f32 %s, %s, %s" % (v(t + e), v(a0 + e), v(b0 + e)))


def w2_post():
    with Cap() as c1:
        stats_math(c0, T_ + 4, 1.0 + 1e-5, 1e-10)
        A("v_fma_f32 %s, -%s, %s, %s" % (v(r3), v(T_ + 5), v(gCs1), v(gB1)))
    with Cap() as c2:
        add_to(T_)
        g_treduce_to(T_, r0)
        A("v_add_f32_dpp %s, %s, %s row_ror:8%s" % (v(r0), v(r0), v(r0), DPP))
    for l in interleave(c1.lines, c2.lines):
        A(l)
    A("v_fma_f32 %s, %s, %s, %s" % (v(r0), v(r0), v(T_ + 4), v(r3)))


def pk_add(a):
    for h in range(2):
        A("v_pk_add_f32 %s, %s, %s" % (v(a + 2 * h, 2), v(a + 2 * h, 2), v(a + 4 + 2 * h, 2)))


def w2_pre():
    stats_math(c0, T_ + 4, 1.0 + 1e-5, 1e-10)
    A("v_fma_f32 %s, -%s, %s, %s" % (v(r3), v(T_ + 5), v(gCs1), v(gB1)))


def w2_post2():
    pk_add(a0)
    g_treduce_to(a0, r0)
    A("v_add_f32_dpp %s, %s, %s row_ror:8%s" % (v(r0), v(r0), v(r0), DPP))
    A("v_fma_f32 %s, %s, %s, %s" % (v(r0), v(r0), v(T_ + 4), v(r3)))


if P.get("SPLIT", 0):
    split_poll("global_load_dword %s, %s, %s sc1" % (v(c0), v(gW2s), pWJ), 0xFFFFFFFF, [c0],
               ["global_load_dwordx4 %s, %s, %s sc1" % (v(a0, 4), v(gW2g), pWJ),
                "global_load_dwordx4 %s, %s, %s offset:896 sc1" % (v(b0, 4), v(gW2g), pWJ)], range(a0, a0 + 8), w2_pre, w2_post2, ck=5)
else:
    opt_poll("global_load_dword %s, %s, %s sc1" % (v(c0), v(gW2s), pWJ), 0xFFFFFFFF, [c0],
             ["global_load_dwordx4 %s, %s, %s sc1" % (v(a0, 4), v(gW2g), pWJ),
              "global_load_dwordx4 %s, %s, %s offset:896 sc1" % (v(b0, 4), v(gW2g), pWJ)], range(a0, a0 + 8), w2_post, [r0], ck=5)
stamp("G")
RX = GS + 27
A("v_mul_f32 %s, %s, %s" % (v(r1_), v(r0), v(r0)))
A("v_fmac_f32 %s, %s, %s" % (v(r2), f32(k0 * 0.044715), v(r1_)))
A("v_mul_f32 %s, %s, %s" % (v(r2), v(r2), v(r0)))
A("v_exp_f32 %s, %s" % (v(r2), v(r2)))
A("v_add_f32 %s, 1.0, %s" % (v(r2), v(r2)))
A("v_rcp_f32 %s, %s" % (v(r2), v(r2)))
A("v_mul_f32 %s, %s, %s" % (v(r0), v(r0), v(r2)))
A("v_cvt_pk_bf16_f32 %s, %s, %s" % (v(r0), v(r0), v(r0)))
A("ds_write_b16 %s, %s" % (v(gW2lds), v(r0)))
A("s_waitcnt lgkmcnt(0)")
cycg(8)
A.label("G_W2_SKIP")
A("s_barrier")
cycg(9)
if STAMP == 6:
    A("s_waitcnt lgkmcnt(0)")
    for k in range(10):
        A("v_writelane_b32 v15, s%d, %d" % (80 + 2 * k, 32 + k))

A("s_cmp_eq_u32 %s, 0" % sL)
A("s_cbranch_scc1 G_X_GO")
A("s_cmp_lg_u32 %s, 0" % sLo)
A("s_cbranch_scc1 L_EXIT")
A("s_cmp_lg_u32 %s, %s" % (sWave, sJ))
A("s_cbranch_scc1 L_EXIT")
A.label("G_X_GO")


def xpre():
    A("v_lshlrev_b32 %s, 16, %s" % (v(r3), v(r3)))


A("global_load_ushort %s, %s, %s sc1" % (v(RX), v(gXr), pWJ))
A.label("G_RX_CHK")
A("s_waitcnt vmcnt(0)")
A("v_lshlrev_b32 %s, 16, %s" % (v(r3), v(RX)))
A("v_cmp_u_f32 vcc, %s, %s" % (v(r3), v(r3)))
A("s_cbranch_vccnz G_RX_RETRY")
A.label("G_RX_OK")
OOL.append(["G_RX_RETRY:", "global_load_ushort %s, %s, %s sc1" % (v(RX), v(gXr), pWJ),
            "s_sub_u32 %s, %s, 1" % (sBud, sBud), "s_cbranch_scc0 G_RX_CHK", "s_mov_b32 %s, 0" % sBud, "s_branch G_RX_OK"])
A("v_add_f32 %s, %s, %s" % (v(r3), v(r3), v(gB2)))
A("s_barrier")
sleep(P["D_X"])
stamp("G", 13)


def x_post():
    pk_add(a0)
    g_treduce_to(a0, r0)


opt_poll(None, 0, [], ["global_load_dwordx4 %s, %s, %s sc1" % (v(a0, 4), v(gXg), pWL),
                       "global_load_dwordx4 %s, %s, %s offset:256 sc1" % (v(b0, 4), v(gXg), pWL)], range(a0, a0 + 8), x_post, [r0])
stamp("G")
A("v_add_f32 %s, %s, %s" % (v(r0), v(r0), v(r3)))
A("v_cvt_pk_bf16_f32 %s, %s, %s" % (v(r0), v(r0), v(r0)))
A("s_cmp_lg_u32 %s, 0" % sL)
A("s_cbranch_scc1 G_FINAL")
A("ds_write_b16 %s, %s" % (v(gXlds), v(r0)))
A("s_mov_b32 %s, 1" % sL)
padd(pWL, pWL, LSTR)
A("s_waitcnt lgkmcnt(0)")
A("s_barrier")
A("s_waitcnt vmcnt(0)")
A("s_branch G_ENTRY")
A.label("G_FINAL")
sleep(P.get("ENDSLEEP", 0))
if "ECHO" in P:
    A("s_memrealtime s[82:83]")
    A("s_sub_u32 s80, s80, s78")
    A("s_waitcnt lgkmcnt(0)")
    A("s_add_u32 s80, s80, s82")
    A.label("ECHO_SPIN")
    A("s_memrealtime s[82:83]")
    A("s_waitcnt lgkmcnt(0)")
    A("s_cmp_lt_u32 s82, s80")
    A("s_cbranch_scc1 ECHO_SPIN")
A("global_store_short %s, %s, %s" % (v(gOut), v(r0), pOUT))
A.label("L_EXIT")
stamp_dump()
A.label("L_END")
A("s_endpgm")
for blk in OOL:
    for l in blk:
        A(l)
A("s_endpgm")

A.fix_hazards()

hdr = open("cdna_kernels/%s.s.ref" % NAME).read().split("; Override launch")[0]
out = hdr + """; @launch grid=(256,1,1) block=(768,1,1) lds=%d
;
; One persistent launch, one workgroup per CU (12 waves: 4 "service" + 8 "attention/gather" waves).
; K/V window and all weight tiles are loaded once and stay on chip for both layers. Stages hand data to
; each other through d_ws: buffers are cleared to a signalling-NaN sentinel inside the launch (guarded by
; per-workgroup records tagged with a launch nonce published in d_debug) and polled with sc1 loads.
; Workgroups with equal (id & 7) form a group; a group whose members report the same XCC id uses plain
; stores for its private exchanges, any other placement falls back to write-through (sc1) stores.
; Generated by dev/gen.py (hand-written generator, wait states inserted by dev/asmlib.py).
.amdgcn_target "amdgcn-amd-amdhsa--gfx950"
.text
.globl %s_kernel
.p2align 8
.type %s_kernel,@function
%s_kernel:
%s
    ; pad the code section so that the 12 KB code prefetch stays inside it
    .fill ((12288 + 256 - (. - %s_kernel)) / 4), 4, 0xbf810000
.section .rodata,"a"
.p2align 6
.amdhsa_kernel %s_kernel
  .amdhsa_next_free_vgpr 168
  .amdhsa_next_free_sgpr 102
  .amdhsa_accum_offset 168
  .amdhsa_group_segment_fixed_size 0
  .amdhsa_kernarg_size 104
  .amdhsa_user_sgpr_count 2
  .amdhsa_user_sgpr_kernarg_segment_ptr 1
  .amdhsa_system_sgpr_workgroup_id_x 1
.end_amdhsa_kernel
""" % (LDS_TOTAL, NAME, NAME, NAME, A.text(), NAME, NAME)
open(sys.argv[1], "w").write(out)
print("wrote", sys.argv[1], "instructions:", sum(1 for x in A.ins if not x.label), "LDS", LDS_TOTAL)
```

```python
import sys, math, struct, os
from asmlib import Asm

NAME = "interleave_layers__sliding_block_cached__mixer_channel_mlp__decode"

P = dict(B0POS=0, W=64, NV1=8, D_A0=70, NSL=6, NLATE=1, D_O=0, D_W1=10, D_W2=0, D_X=9, D_A=0, NT="nt", STAMP=0, FORCE_SAFE=0, PREF=1)
for a in sys.argv[2:]:
    k, v_ = a.split("=")
    P[k] = int(v_) if v_.lstrip("-").isdigit() else v_


def f32(x):
    return "0x%08x" % struct.unpack("<I", struct.pack("<f", x))[0]


LSTR = 0x200000
JSTR = 196608
E1, E1S, E4C = 0, 40960, 45056
E1T = 0x200000 * 2
REC = 0x1D8000
E2, E4, E4R, E2S, E4S = 65536, 131072, 188416, 61440, 193536
E3, E5 = 0x180000, 0x1C0000
SENT = 0x7F817F81
LW_Q, LW_O, LW_2, LW_1 = 0, 16384, 32768, 61440
RS_, RS1 = 320, 64
XOP = 68608
QOP = XOP + 5 * RS_
OOP = QOP + 4 * RS_
X1OP = OOP + 4 * RS_
HOP = X1OP + 5 * RS1
ML = HOP + 448
FLG = ML + 256
ST0 = FLG + 16
NONCE = ST0 + 32
AP = (NONCE + 16 + 1023) // 1024 * 1024
APB = 1152
LDS_TOTAL = AP + 16 * APB
assert all(x % 16 == 0 for x in (XOP, QOP, OOP, X1OP, HOP, ML))

sWave, sJ, sS, sHi, sLo, sR1, sC1, sL, sBud = "s3", "s4", "s5", "s6", "s7", "s8", "s9", "s10", "s11"
sT0, sT1, sT2, sT3 = "s12", "s13", "s14", "s15"
pX, pK, pV, pWQ, pWO, pW1, pB1, pW2, pB2, pOUT, pDBG, pWS = (
    "s[16:17]", "s[18:19]", "s[20:21]", "s[22:23]", "s[24:25]", "s[28:29]", "s[30:31]", "s[32:33]", "s[34:35]",
    "s[36:37]", "s[38:39]", "s[40:41]")
pWL = "s[42:43]"
sFast = "s44"
sU = "s45"
mQ = ["s[50:51]", "s[52:53]", "s[54:55]", "s[56:57]"]
sPermLo, sPermHi = "s58", "s59"
sC = "s60"
pT = "s[62:63]"
pT2 = "s[64:65]"
sXcc = "s66"
sK0, sK1, sK2 = "s67", "s68", "s69"
mT = "s[70:71]"
pWJ = "s[72:73]"
pPC = "s[46:47]"
pN = "s[48:49]"

A = Asm()
NT = (" " + P["NT"]) if P["NT"] else ""
STAMP = P["STAMP"]


def v(n, cnt=1):
    return "v%d" % n if cnt == 1 else "v[%d:%d]" % (n, n + cnt - 1)


def smov64(pair, val):
    lo = int(pair[2:].split(":")[0])
    A("s_mov_b32 s%d, 0x%08x" % (lo, val & 0xFFFFFFFF))
    A("s_mov_b32 s%d, 0x%08x" % (lo + 1, val >> 32))


def exec_lines(val):
    if val == -1:
        return ["s_mov_b64 exec, -1"]
    if 0 <= val <= 64:
        return ["s_mov_b64 exec, %d" % val]
    return ["s_mov_b32 exec_lo, 0x%08x" % (val & 0xFFFFFFFF), "s_mov_b32 exec_hi, 0x%08x" % (val >> 32)]


def set_exec(val):
    for l in exec_lines(val):
        A(l)


def padd(dst, src, soff):
    d = int(dst[2:].split(":")[0]); s = int(src[2:].split(":")[0])
    A("s_add_u32 s%d, s%d, %s" % (d, s, soff))
    A("s_addc_u32 s%d, s%d, 0" % (d + 1, s + 1))


def sexpr(dst, terms, const=0, tmp=sT3):
    first = True
    for (r, m) in terms:
        t = dst if first else tmp
        if m == 1:
            if first:
                A("s_mov_b32 %s, %s" % (dst, r))
            else:
                A("s_add_u32 %s, %s, %s" % (dst, dst, r))
            first = False
            continue
        if m & (m - 1) == 0:
            A("s_lshl_b32 %s, %s, %d" % (t, r, m.bit_length() - 1))
        else:
            A("s_mul_i32 %s, %s, %d" % (t, r, m))
        if not first:
            A("s_add_u32 %s, %s, %s" % (dst, dst, t))
        first = False
    if first:
        A("s_mov_b32 %s, %d" % (dst, const))
    elif const:
        A("s_add_u32 %s, %s, %d" % (dst, dst, const))


def vexpr(dst, terms, sreg=None, const=0):
    first = True
    for (r, m) in terms:
        if first:
            if m == 1:
                A("v_mov_b32 %s, %s" % (v(dst), v(r)))
            elif m & (m - 1) == 0:
                A("v_lshlrev_b32 %s, %d, %s" % (v(dst), m.bit_length() - 1, v(r)))
            else:
                A("v_mul_u32_u24 %s, %d, %s" % (v(dst), m, v(r)))
            first = False
        else:
            assert m & (m - 1) == 0, "non power of two term must come first"
            A("v_lshl_add_u32 %s, %s, %d, %s" % (v(dst), v(r), m.bit_length() - 1, v(dst)))
    if sreg:
        A("v_add_u32 %s, %s, %s" % (v(dst), sreg, v(dst)))
    if const:
        A("v_add_u32 %s, %d, %s" % (v(dst), const, v(dst)))


DPP = " row_mask:0xf bank_mask:0xf"
X1 = "quad_perm:[1,0,3,2]" + DPP
X2 = "quad_perm:[2,3,0,1]" + DPP
HM = "row_half_mirror" + DPP
RM = "row_mirror" + DPP
_lab = [0]


def newlabel(p="L"):
    _lab[0] += 1
    return "%s_%d" % (p, _lab[0])


def sleep(n):
    while n > 0:
        k = min(n, 127)
        A("s_sleep %d" % k)
        n -= k


def g_treduce(a):
    A("v_permlane16_swap_b32 %s, %s" % (v(a), v(a + 1)))
    A("v_permlane16_swap_b32 %s, %s" % (v(a + 2), v(a + 3)))
    A("v_add_f32 %s, %s, %s" % (v(a), v(a), v(a + 1)))
    A("v_add_f32 %s, %s, %s" % (v(a + 2), v(a + 2), v(a + 3)))
    A("v_permlane32_swap_b32 %s, %s" % (v(a), v(a + 2)))
    A("v_add_f32 %s, %s, %s" % (v(a), v(a), v(a + 2)))


def g_allreduce(op, r, t):
    for sw in ("v_permlane16_swap_b32", "v_permlane32_swap_b32"):
        A("v_mov_b32 %s, %s" % (v(t), v(r)))
        A("%s %s, %s" % (sw, v(r), v(t)))
        A("%s %s, %s, %s" % (op, v(r), v(r), v(t)))


def budget_loop(top):
    A("s_sub_u32 %s, %s, 1" % (sBud, sBud))
    A("s_cbranch_scc0 %s" % top)
    A("s_mov_b32 %s, 0" % sBud)


def poll(loads, check_pairs, pre=None, nap=0):
    top, done = newlabel("POLL"), newlabel("PDONE")
    A.label(top)
    for l in loads:
        A(l)
    A("s_waitcnt vmcnt(0)")
    if pre:
        pre()
    first = True
    for (a, b) in check_pairs:
        if first:
            A("v_cmp_u_f32 vcc, %s, %s" % (v(a), v(b)))
            first = False
        else:
            A("v_cmp_u_f32 %s, %s, %s" % (mT, v(a), v(b)))
            A("s_or_b64 vcc, vcc, %s" % mT)
    A("s_cbranch_vccz %s" % done)
    sleep(nap)
    budget_loop(top)
    A.label(done)


def half(loads):
    import re
    if P.get("HALF") == 1:
        m = re.search(r"v\[(\d+):(\d+)\]", loads[1])
        for r_ in range(int(m.group(1)), int(m.group(2)) + 1):
            A("v_mov_b32 v%d, 0" % r_)
        return loads[:1]
    if P.get("HALF") == 2:
        out = []
        for l in loads:
            m = re.search(r"v\[(\d+):(\d+)\]", l)
            lo = int(m.group(1))
            A("v_mov_b32 v%d, 0" % (lo + 2)); A("v_mov_b32 v%d, 0" % (lo + 3))
            out.append(l.replace("dwordx4", "dwordx2").replace(m.group(0), "v[%d:%d]" % (lo, lo + 1)))
        return out
    return loads


def canary(load, pairs, mask, nap=0):
    set_exec(mask)
    poll([load], pairs, nap=nap)
    set_exec(-1)


def bulk(loads, mid, post, res):
    top, again, done = newlabel("BK"), newlabel("BKA"), newlabel("BKD")
    loads = half(loads)
    for l in loads:
        A(l)
    if mid:
        mid()
    A.label(top)
    A("s_waitcnt vmcnt(0)")
    post()
    A("v_cmp_u_f32 vcc, %s, %s" % (v(res[0]), v(res[-1])))
    A("s_cbranch_vccz %s" % done)
    for l in loads:
        A(l)
    budget_loop(top)
    A("s_waitcnt vmcnt(0)")
    A.label(done)


def round1(small, mask, loads, mid, post, res):
    top, done = newlabel("RD"), newlabel("RDD")
    loads = half(loads)
    A.label(top)
    set_exec(mask)
    A(small)
    set_exec(-1)
    for l in loads:
        A(l)
    A("s_waitcnt vmcnt(%d)" % len(loads))
    mid()
    A("s_waitcnt vmcnt(0)")
    post()
    A("v_cmp_u_f32 vcc, %s, %s" % (v(res[0]), v(res[-1])))
    A("s_cbranch_vccz %s" % done)
    budget_loop(top)
    A.label(done)


def pipe_poll(issue, n_small, n_bulk, mid, post, res, sets, gap):
    n = n_small + n_bulk
    k = len(sets)
    top, done = newlabel("PP"), newlabel("PPD")
    for i in range(k - 1):
        issue(sets[i])
        sleep(gap)
    A.label(top)
    for i in range(k):
        issue(sets[(i + k - 1) % k])
        if n_small:
            A("s_waitcnt vmcnt(%d)" % ((k - 1) * n + n_bulk))
            mid(sets[i])
        A("s_waitcnt vmcnt(%d)" % ((k - 1) * n))
        post(sets[i])
        A("v_cmp_u_f32 vcc, %s, %s" % (v(res[0]), v(res[-1])))
        A("s_cbranch_vccz %s" % done)
    budget_loop(top)
    A.label(done)


OOL = []


def interleave(c1, c2):
    out, i2 = [], 0
    for k, x in enumerate(c1):
        out.append(x)
        want = (k + 1) * len(c2) // max(1, len(c1) - 4)
        while i2 < min(want, len(c2)):
            out.append(c2[i2]); i2 += 1
    return out + c2[i2:]


class Cap:
    def __enter__(self):
        self.n = len(A.ins); return self

    def __exit__(self, *a):
        self.lines = [x.text for x in A.ins[self.n:]]
        del A.ins[self.n:]


def fast_poll_full(issue, mid, post, fin, res, a):
    top, again, done = newlabel("FP"), newlabel("FPR"), newlabel("FPD")
    A.label(top)
    issue(a)
    A("s_waitcnt vmcnt(0)")
    with Cap() as c2:
        post(a)
    if mid:
        with Cap() as c1:
            mid(a)
        for l in interleave(c1.lines, c2.lines):
            A(l)
    else:
        for l in c2.lines:
            A(l)
    if fin:
        fin(a)
    A("v_cmp_u_f32 vcc, %s, %s" % (v(res[0]), v(res[-1])))
    A("s_cbranch_vccnz %s" % again)
    A.label(done)
    OOL.append([again + ":", "s_sub_u32 %s, %s, 1" % (sBud, sBud), "s_cbranch_scc0 %s" % top,
                "s_mov_b32 %s, 0" % sBud, "s_branch %s" % done])


def fast_poll(issue, mid, post, fin, res, a):
    if not P.get("MPOLL", 1):
        return fast_poll_full(issue, mid, post, fin, res, a)
    with Cap() as ci:
        issue(a)
    loads = [l for l in ci.lines if l.startswith("global_load")]
    small = len(loads) == 3
    chk, again, done = newlabel("MPC"), newlabel("MPR"), newlabel("MPD")
    if small:
        n = 4 if "dwordx4" in loads[0] else 2
        for e in range(n):
            A("v_mov_b32 %s, 0" % v(a + 8 + e))
    for l in ci.lines:
        A(l)
    A.label(chk)
    A("s_waitcnt vmcnt(0)")
    t = a + 20
    A("v_add_f32 %s, %s, %s" % (v(t), v(a), v(a + 1)))
    A("v_add_f32 %s, %s, %s" % (v(t + 1), v(a + 2), v(a + 3)))
    A("v_add_f32 %s, %s, %s" % (v(t + 2), v(a + 4), v(a + 5)))
    A("v_add_f32 %s, %s, %s" % (v(t + 3), v(a + 6), v(a + 7)))
    if small:
        A("v_add_f32 %s, %s, %s" % (v(t), v(t), v(a + 8)))
        A("v_add_f32 %s, %s, %s" % (v(t + 1), v(t + 1), v(a + 9)))
        if n == 4:
            A("v_add_f32 %s, %s, %s" % (v(t + 2), v(t + 2), v(a + 10)))
            A("v_add_f32 %s, %s, %s" % (v(t + 3), v(t + 3), v(a + 11)))
    A("v_add_f32 %s, %s, %s" % (v(t), v(t), v(t + 1)))
    A("v_add_f32 %s, %s, %s" % (v(t + 2), v(t + 2), v(t + 3)))
    A("v_cmp_u_f32 vcc, %s, %s" % (v(t), v(t + 2)))
    A("s_cbranch_vccnz %s" % again)
    A.label(done)
    with Cap() as c2:
        post(a)
    if mid:
        with Cap() as c1:
            mid(a)
        for l in interleave(c1.lines, c2.lines):
            A(l)
    else:
        for l in c2.lines:
            A(l)
    if fin:
        fin(a)
    blk = [again + ":"]
    if small:
        em = [l for l in ci.lines if l.startswith("s_mov") and "-1" not in l]
        blk += em + ["s_and_b64 exec, exec, vcc", loads[0]]
    blk += ["s_mov_b64 exec, vcc"] + loads[-2:] + ["s_mov_b64 exec, -1",
            "s_sub_u32 %s, %s, 1" % (sBud, sBud), "s_cbranch_scc0 %s" % chk,
            "s_mov_b32 %s, 0" % sBud, "s_waitcnt vmcnt(0)", "s_branch %s" % done]
    OOL.append(blk)


def opt_poll(small, smask, sregs, loads, lregs, post, res, ck=None):
    top, done = newlabel("OP"), newlabel("OPD")
    cand, sm = "s[70:71]", "s[64:65]"
    regs = list(lregs) + (list(sregs) if small else [])
    if len(regs) % 2:
        regs.append(regs[-1])
    if small:
        smov64(sm, smask)
    A("s_mov_b64 %s, -1" % cand)
    if ck is not None:
        cycg(ck)
        if STAMP == 6:
            A("s_mov_b32 s77, %s" % sBud)
    A.label(top)
    if small:
        A("s_and_b64 exec, %s, %s" % (cand, sm))
        A(small)
        A("s_mov_b64 exec, %s" % cand)
    for l in loads:
        A(l)
    A("s_sub_u32 %s, %s, 1" % (sBud, sBud))
    A("s_cbranch_scc1 %s_X" % top)
    A("s_waitcnt vmcnt(0)")
    for i in range(0, len(regs), 2):
        A("v_cmpx_o_f32 vcc, %s, %s" % (v(regs[i]), v(regs[i + 1])))
    A("s_andn2_b64 %s, %s, exec" % (cand, cand))
    A("s_mov_b64 exec, %s" % cand)
    A("s_cbranch_scc1 %s" % top)
    A.label(done)
    A("s_mov_b64 exec, -1")
    if ck is not None:
        cycg(ck + 1)
        if STAMP == 6:
            A("s_sub_u32 s77, s77, %s" % sBud)
            A("v_writelane_b32 v15, s77, %d" % (48 + ck))
    post()
    if ck is not None:
        cycg(ck + 2)
    OOL.append([top + "_X:", "s_mov_b32 %s, 0" % sBud, "s_waitcnt vmcnt(0)", "s_branch %s" % done])


def split_poll(small, smask, sregs, loads, lregs, pre, post, ck=None):
    top, fm, slow, done = newlabel("SP"), newlabel("SPF"), newlabel("SPS"), newlabel("SPD")
    cand, sm = "s[70:71]", "s[64:65]"
    sr = list(sregs) + ([sregs[-1]] if len(sregs) % 2 else [])
    lr = list(lregs)
    smov64(sm, smask)
    A("s_mov_b64 %s, -1" % cand)
    if ck is not None:
        cycg(ck)
    A("s_mov_b64 exec, %s" % sm)
    A(small)
    A("s_mov_b64 exec, -1")
    for l in loads:
        A(l)
    A("s_waitcnt vmcnt(%d)" % len(loads))
    for i in range(0, len(sr), 2):
        A("v_cmpx_o_f32 vcc, %s, %s" % (v(sr[i]), v(sr[i + 1])))
    A("s_andn2_b64 vcc, %s, exec" % cand)
    A("s_mov_b64 exec, -1")
    A("s_cbranch_scc1 %s" % slow)
    A.label(fm)
    pre()
    A("s_branch %s_C" % top)
    A.label(top)
    for l in loads:
        A(l)
    A("s_sub_u32 %s, %s, 1" % (sBud, sBud))
    A("s_cbranch_scc1 %s_X" % top)
    A.label(top + "_C")
    A("s_waitcnt vmcnt(0)")
    for i in range(0, len(lr), 2):
        A("v_cmpx_o_f32 vcc, %s, %s" % (v(lr[i]), v(lr[i + 1])))
    A("s_andn2_b64 %s, %s, exec" % (cand, cand))
    A("s_mov_b64 exec, %s" % cand)
    A("s_cbranch_scc1 %s" % top)
    A.label(done)
    A("s_mov_b64 exec, -1")
    if ck is not None:
        cycg(ck + 1)
    post()
    if ck is not None:
        cycg(ck + 2)
    OOL.append([top + "_X:", "s_mov_b32 %s, 0" % sBud, "s_waitcnt vmcnt(0)", "s_branch %s" % done])
    allr = lr + sr
    blk = [slow + ":", "s_waitcnt vmcnt(0)"]
    blk += ["v_cmpx_o_f32 vcc, %s, %s" % (v(allr[i]), v(allr[i + 1])) for i in range(0, len(allr), 2)]
    blk += ["s_andn2_b64 %s, %s, exec" % (cand, cand), "s_cbranch_scc0 %s_E" % slow,
            "s_and_b64 exec, %s, %s" % (cand, sm), small, "s_mov_b64 exec, %s" % cand] + loads
    blk += ["s_sub_u32 %s, %s, 1" % (sBud, sBud), "s_cbranch_scc0 %s" % slow, "s_mov_b32 %s, 0" % sBud, "s_waitcnt vmcnt(0)",
            slow + "_E:", "s_mov_b64 exec, -1", "s_mov_b64 %s, -1" % cand, "s_branch %s" % fm]
    OOL.append(blk)


def stats_math(c, t, eps_mul, eps_add):
    A("v_add_f32_dpp %s, %s, %s %s" % (v(t), v(c), v(c), X1))
    for m in (X2, HM, RM):
        A("v_add_f32_dpp %s, %s, %s %s" % (v(t), v(t), v(t), m))
    A("v_readlane_b32 %s, %s, 0" % (sT0, v(t)))
    A("v_readlane_b32 %s, %s, 16" % (sT1, v(t)))
    A("v_mov_b32 %s, %s" % (v(t + 2), f32(1 / 512)))
    A("v_mov_b32 %s, %s" % (v(t + 3), f32(eps_add)))
    A("v_mul_f32 %s, %s, %s" % (v(t + 1), sT0, v(t + 2)))
    A("v_mul_f32 %s, %s, %s" % (v(t), sT1, v(t + 2)))
    A("v_fma_f32 %s, -%s, %s, %s" % (v(t), v(t + 1), v(t + 1), v(t)))
    if eps_mul == 1.0:
        A("v_add_f32 %s, abs(%s), %s" % (v(t), v(t), v(t + 3)))
    else:
        A("v_mov_b32 %s, %s" % (v(t + 2), f32(eps_mul)))
        A("v_fma_f32 %s, abs(%s), %s, %s" % (v(t), v(t), v(t + 2), v(t + 3)))
    A("v_rsq_f32 %s, %s" % (v(t), v(t)))
    A("v_mul_f32 %s, %s, %s" % (v(t + 1), v(t + 1), v(t)))


def store_intra(insn):
    ls, le = newlabel("SAFE"), newlabel("SEND")
    A("s_cmp_eq_u32 %s, 0" % sFast)
    A("s_cbranch_scc1 %s" % ls)
    for i in insn:
        A(i)
    A.label(le)
    OOL.append([ls + ":"] + [i + (" sc1" if i.startswith("global_store") else "") for i in insn] + ["s_branch %s" % le])


_st = {"G": 0, "S": 0}


def stamp(kind, idx=None):
    if idx is None:
        n = _st[kind]; _st[kind] += 1
    else:
        n = idx
    if "ECHO" in P and kind == "G" and P["ECHO"] % 100 == n:
        lab = newlabel("ECHO")
        A("s_cmp_lg_u32 %s, %d" % (sL, P["ECHO"] // 100))
        A("s_cbranch_scc1 %s" % lab)
        A("s_waitcnt lgkmcnt(0)")
        A("s_memrealtime s[80:81]")
        A("s_waitcnt lgkmcnt(0)")
        A.label(lab)
    if not STAMP:
        return
    if STAMP == 2 and not (kind == "G" and n in (2, 6)):
        return
    if STAMP in (4, 5, 6):
        return
    if STAMP == 3:
        A("s_lshl_b32 s76, %s, 4" % sL)
        A("s_add_u32 m0, s76, %d" % n)
        A("s_nop 0")
        A("v_writelane_b32 v15, %s, m0" % sBud)
        return
    A("s_waitcnt lgkmcnt(0)")
    A("s_memrealtime s[74:75]")
    A("s_lshl_b32 s76, %s, 4" % sL)
    A("s_add_u32 m0, s76, %d" % n)
    A("s_waitcnt lgkmcnt(0)")
    A("v_writelane_b32 v15, s74, m0")


def cyc(k):
    if STAMP == 4:
        A("s_memtime s[%d:%d]" % (80 + 2 * k, 81 + 2 * k))


def cycs(k):
    if STAMP == 5:
        A("s_memtime s[%d:%d]" % (80 + 2 * k, 81 + 2 * k))


def cycg(k):
    if STAMP == 6:
        A("s_memtime s[%d:%d]" % (80 + 2 * k, 81 + 2 * k))


def cycs_dump(n):
    if STAMP == 5:
        A("s_waitcnt lgkmcnt(0)")
        for k in range(n):
            A("v_writelane_b32 v15, s%d, %d" % (80 + 2 * k, 32 + k))


def cyc_dump(n):
    if STAMP == 4:
        A("s_waitcnt lgkmcnt(0)")
        for k in range(n):
            A("v_writelane_b32 v15, s%d, %d" % (80 + 2 * k, 32 + k))


def stamp_init():
    if STAMP:
        A("v_mov_b32 v15, 0")
        A("v_writelane_b32 v15, s78, 15")


def stamp_dump():
    if not STAMP:
        return
    A("s_mul_i32 s76, s2, 12")
    A("s_add_u32 s76, s76, %s" % sWave)
    A("s_lshl_b32 s76, s76, 8")
    A("s_add_u32 s76, s76, 0x800000")
    A("v_lshlrev_b32 v13, 2, v0")
    A("v_add_u32 v13, s76, v13")
    A("global_store_dword v13, v15, %s" % pWS)


def if_layer0():
    lab = newlabel("NOTL0")
    A("s_cmp_lg_u32 %s, 0" % sL)
    A("s_cbranch_scc1 %s" % lab)
    return lab


def ssync(k):
    top = newlabel("SSY")
    A("v_mov_b32 v5, %d" % (FLG + 4 + 4 * k))
    A("v_mov_b32 v6, 1")
    set_exec(1)
    A("ds_add_u32 v5, v6")
    set_exec(-1)
    A.label(top)
    A("ds_read_b32 v6, v5")
    A("s_waitcnt lgkmcnt(0)")
    A("v_readfirstlane_b32 %s, v6" % sT0)
    A("s_cmp_eq_u32 %s, 4" % sT0)
    done = newlabel("SSD")
    A("s_cbranch_scc1 %s" % done)
    budget_loop(top)
    A.label(done)


MFMA = "v_mfma_f32_16x16x32_bf16"
A("s_getpc_b64 %s" % pPC)
A("s_cmp_ge_u32 s2, 256")
A("s_cbranch_scc1 L_END")
if STAMP or "ECHO" in P:
    A("s_memrealtime s[78:79]")
A("s_load_dwordx16 s[16:31], s[0:1], 0")
A("s_load_dwordx8 s[32:39], s[0:1], 64")
A("s_load_dwordx2 s[40:41], s[0:1], 96")
if P["PREF"]:
    A("v_lshlrev_b32 v3, 4, v0")
    if P["PREF"] == 2:
        A("s_bfe_u32 %s, s2, 0x40003" % sT0)
        A("v_lshrrev_b32 v1, 6, v0")
        A("v_cmp_eq_u32 vcc, %s, v1" % sT0)
        A("s_and_b64 exec, exec, vcc")
    A("global_load_dwordx4 v[140:143], v3, %s offset:-4" % pPC)
    if P["PREF"] == 2:
        A("s_mov_b64 exec, -1")
A("v_lshrrev_b32 v1, 6, v0")
A("v_and_b32 v0, 63, v0")
A("v_readfirstlane_b32 %s, v1" % sWave)
A("s_and_b32 %s, s2, 7" % sJ)
A("s_lshr_b32 %s, s2, 3" % sS)
A("s_lshr_b32 %s, s2, 6" % sHi)
A("s_and_b32 %s, %s, 7" % (sLo, sS))
A("s_lshr_b32 %s, s2, 4" % sR1)
A("s_and_b32 %s, %s, 1" % (sC1, sS))
A("s_mov_b32 %s, 0" % sL)
A("s_mov_b32 %s, 100000" % sBud)
A("v_and_b32 v1, 15, v0")
A("v_lshrrev_b32 v2, 4, v0")
A("v_lshlrev_b32 v3, 4, v0")
A("s_mov_b32 %s, %s" % (sU, sWave))
A("s_sub_u32 %s, %s, 4" % (sWave, sWave))
A("s_cbranch_scc0 L_G")

WQ, WO, W1R, W2R, XR, DR, SS = 16, 32, 48, 56, 84, 112, 120
(sXa, sXb, sOrd, sX1a, sX1b, sHrd, sE1w, sE1sw, sAg, sAst, sQw, sCq0, sCq1, sCrd, sMlrd, sE2w, sE3w, sE4w, sE4sw, sE4rw, sE5w,
 sTr, sClr, sTr1) = range(144, 168)
SN = 8
sCsP = 139
sDma = 138
X0 = 132
ga, gb, gc = SS, SS + 4, SS + 8
STM = 0x0018001400120011
W2S = [int(c) for c in str(P.get("W2S", "x223"))[1:]]
assert sum(W2S) == 7


def w2_dma(part):
    k0_ = sum(W2S[:part])
    n = W2S[part]
    if not n:
        return
    sexpr(sT0, [(sJ, 224 * 1024), (sLo, 128), (sU, 7 * 8192)], k0_ * 8192)
    padd(pT, pW2, sT0)
    sexpr(sT1, [(sU, 7 * 1024)], LW_2)
    for k in range(k0_, k0_ + n):
        A("s_add_u32 m0, %s, %d" % (sT1, 1024 * k))
        A("global_load_lds_dwordx4 %s, %s%s" % (v(sDma), pT, NT))
        if k < k0_ + n - 1:
            padd(pT, pT, 8192)


W2BLK = "pass"
WOBLK = r'''# wo tile: 16 x 1 KB, 4 per wave
A("v_lshrrev_b32 v4, 3, v0")
A("v_and_b32 v5, 7, v0")
vexpr(sDma, [(4, 1024), (5, 16)])
sexpr(sT0, [(sJ, 512 * 1024), (sHi, 128 * 1024), (sU, 32 * 1024), (sLo, 128)])
padd(pT, pWO, sT0)
sexpr(sT1, [(sU, 4096)], LW_O)
for k in range(4):
    A("s_add_u32 m0, %s, %d" % (sT1, 1024 * k))
    A("global_load_lds_dwordx4 %s, %s%s" % (v(sDma), pT, NT))
    if k < 3:
        padd(pT, pT, 8192)
# w1 DMA: unit n = 64 i + l (i = 2u, 2u+1 clamped to 6): row = n/14, piece = n%14
sexpr(sT0, [(sR1, 32 * 3584), (sJ, 448), (sC1, 224)])
padd(pT, pW1, sT0)
for k in range(2):
    A("s_lshl_b32 %s, %s, 1" % (sT1, sU))
    if k:
        A("s_add_u32 %s, %s, 1" % (sT1, sT1))
        A("s_min_u32 %s, %s, 6" % (sT1, sT1))
    A("s_lshl_b32 %s, %s, 6" % (sT0, sT1))
    A("v_add_u32 v4, %s, v0" % sT0)
    A("v_mul_u32_u24 v5, 4682, v4")
    A("v_lshrrev_b32 v5, 16, v5")
    A("v_mul_u32_u24 v7, 14, v5")
    A("v_sub_u32 v4, v4, v7")
    A("v_mul_u32_u24 v5, 3584, v5")
    A("v_lshl_add_u32 v4, v4, 4, v5")
    A("s_lshl_b32 %s, %s, 10" % (sT0, sT1))
    A("s_add_u32 m0, %s, %d" % (sT0, LW_1))
    A("global_load_lds_dwordx4 v4, %s%s" % (pT, NT))
for n in range(448):
    assert (n * 4682) >> 16 == n // 14
'''
A("s_add_u32 %s, %s, 8" % (sWave, sU))
A("v_mov_b32 v4, %d" % FLG)
A("v_mov_b32 v6, 0")
A("v_mov_b32 v7, 0")
A("ds_write_b64 v4, v[6:7]")
A("ds_write_b64 v4, v[6:7] offset:8")
for i in range(4):
    A("v_mov_b32 %s, 0x%08x" % (v(SN + i), SENT))
A("s_and_b32 %s, %s, 1" % (sK0, sU))
A("s_lshr_b32 %s, %s, 1" % (sK1, sU))
sexpr(sT0, [(sS, 6144), (sU, 1536)])
A("v_add_u32 v7, %s, v3" % sT0)
sexpr(sT0, [("s2", 1280), (sK0, LSTR), (sK1, 640)], E3)
A("v_add_u32 v12, %s, v3" % sT0)
A("s_mul_i32 %s, %s, %d" % (sT0, sJ, JSTR))
A("v_lshrrev_b32 v13, 3, v0")
A("v_and_b32 v14, 7, v0")
vexpr(SS, [(13, 8192), (14, 16)])
sexpr(sT1, [(sHi, 128 * 8192), (sU, 32 * 8192), (sJ, 1024), (sLo, 128)])
sexpr(sT2, [(sU, 1024)])
A("v_add_u32 %s, %s, v3" % (v(SS + 1), sT2))
A("s_waitcnt lgkmcnt(0)")
padd(pWJ, pWS, sT0)
padd(pT, pWQ, sT1)
A("v_mov_b32 v4, 0")
A("s_or_b32 %s, s2, %s" % (sT0, sU))
A("s_cbranch_scc1 S_NONONCE")
A("s_memrealtime %s" % pN)
A("s_waitcnt lgkmcnt(0)")
A("s_or_b32 s48, s48, 1")
A("v_mov_b32 %s, s49" % v(SS + 3))
A("v_mov_b32 %s, s48" % v(SS + 2))
set_exec(1)
A("global_store_dwordx2 v4, %s, %s sc1" % (v(SS + 2, 2), pDBG))
set_exec(-1)
A.label("S_NONONCE")
def nonce_fetch():
    A("s_cmp_lg_u32 %s, 3" % sU)
    A("s_cbranch_scc1 S_NP_SKIP")
    A("v_mov_b32 v4, 0")
    sleep(P.get("D_N", 0))
    A.label("S_NP")
    A("global_load_dwordx2 v[6:7], v4, %s sc1" % pDBG)
    A("s_waitcnt vmcnt(0)")
    A("v_cmp_eq_u32 vcc, 0, v6")
    A("s_cbranch_vccz S_NP_DONE")
    A("s_sleep %d" % P.get("NSL", 2))
    budget_loop("S_NP")
    A.label("S_NP_DONE")
    A("v_mov_b32 v5, %d" % NONCE)
    A("ds_write_b64 v5, v[6:7]")
    A("s_waitcnt lgkmcnt(0)")
    if P.get("NLATE"):
        stamp("S", 10)
    A.label("S_NP_SKIP")


if not P.get("NLATE"):
    A("v_mov_b32 %s, v7" % v(SS + 4))
    nonce_fetch()
    A("v_mov_b32 v7, %s" % v(SS + 4))
A("global_load_dwordx4 %s, %s, %s%s" % (v(X0, 4), v(SS + 1), pX, NT))
A("s_lshl_b32 %s, %s, 12" % (sT1, sU))
for i in range(4):
    A("s_add_u32 m0, %s, %d" % (sT1, LW_Q + 1024 * i))
    A("global_load_lds_dwordx4 %s, %s%s" % (v(SS), pT, NT))
    if i < 3:
        padd(pT, pT, 8 * 8192)
if P.get("NOCLR"):
    set_exec(1)
A("global_store_dwordx4 v7, %s, %s sc1" % (v(SN, 4), pWJ))
set_exec(1 if P.get("NOCLR") else 0xFFFFFFFF)
A("global_store_dwordx4 v7, %s, %s offset:1024 sc1" % (v(SN, 4), pWJ))
set_exec(1 if P.get("NOCLR") else 0xFFFFFFFFFF)
A("global_store_dwordx4 v12, %s, %s sc1" % (v(SN, 4), pWS))
set_exec(-1)
if P.get("WF", 0) == 1:
    exec(WOBLK)
    exec(W2BLK)
A("s_barrier")
if P.get("WF", 0) == 2:
    exec(WOBLK)
    exec(W2BLK)
if P.get("WF", 0) == 3:
    exec(WOBLK)
stamp_init()
stamp("S", 9)
if P.get("NLATE"):
    nonce_fetch()
A("s_getreg_b32 %s, hwreg(HW_REG_XCC_ID)" % sXcc)
A("s_and_b32 %s, %s, 7" % (sXcc, sXcc))
A("s_mov_b32 s42, s40")
A("s_mov_b32 s43, s41")
A("s_mov_b32 %s, 0" % sFast)
sexpr(sT0, [(sS, 6144), (sU, 1536)])
A("v_add_u32 %s, %s, v3" % (v(sClr), sT0))
A("v_mov_b32 v12, 0x3f803f80")
vexpr(13, [(0, 4)], None, XOP + 4 * RS_)
A("ds_write_b32 v13, v12")
vexpr(13, [(1, 4)], None, X1OP + 4 * RS1)
A("ds_write_b32 v13, v12")
A("v_lshrrev_b32 v12, 2, v1")
A("v_min_u32 v13, 4, v1")
A("v_and_b32 v14, 3, v1")
vexpr(sXa, [(12, RS_), (2, 16)], None, XOP)
sexpr(sT0, [(sU, 64)], XOP)
vexpr(sXb, [(13, RS_), (2, 16)], sT0)
vexpr(sOrd, [(14 if P.get("WIDE", 0) else 12, RS_), (2, 16)], None, OOP)
vexpr(sX1a, [(12, RS1), (2, 16)], None, X1OP)
vexpr(sX1b, [(13, RS1), (2, 16)], None, X1OP)
vexpr(sHrd, [(2, 16)], None, HOP)
sexpr(sT0, [(sHi, 2048), (sLo, 256), (sU, 64)], E1)
vexpr(sE1w, [(2, 8192), (1, 4)], sT0)
vexpr(SS + 3, [(2, 128)])
A("v_lshlrev_b32 %s, 2, v12" % v(SS + 4))
A("v_sub_u32 %s, %s, %s" % (v(SS + 3), v(SS + 3), v(SS + 4)))
sexpr(sT0, [(sLo, 512), (sHi, 32), (sU, 8)], E1S + 4)
A("v_add_u32 %s, %s, %s" % (v(sE1sw), sT0, v(SS + 3)))
sexpr(sT0, [(sR1, 8)], E4S + 4)
A("v_add_u32 %s, %s, %s" % (v(sE4sw), sT0, v(SS + 3)))
sexpr(sT0, [(sR1, 64)], E4R)
vexpr(sE4rw, [(14, 1024), (2, 16)], sT0)
A("v_and_b32 %s, 31, v0" % v(SS + 3))
A("v_lshrrev_b32 %s, 5, v0" % v(SS + 4))
sexpr(sT0, [(sHi, 8192), (sU, 512)], E1)
vexpr(sAg, [(SS + 4, 4096), (SS + 3, 16)], sT0)
sexpr(sT0, [(sLo, 512), (sHi, 128)], E1S)
vexpr(sAst, [(1, 8), (2, 4)], sT0)
sexpr(sT0, [(sU, RS_)], QOP)
vexpr(sQw, [(SS + 3, 8), (SS + 4, 4)], sT0)
A("v_bfe_u32 %s, v0, 4, 1" % v(SS + 5))
A("v_bfe_u32 %s, v0, 2, 2" % v(SS + 6))
A("v_and_b32 %s, 3, v0" % v(SS + 7))
sexpr(sT0, [(sU, 288)], AP)
vexpr(sCrd, [(SS + 4, 8 * APB), (1, 16)], sT0)
A("v_mul_u32_u24 %s, %d, %s" % (v(SS + 5), APB, v(SS + 5)))
A("v_add_u32 %s, %s, %s" % (v(sCrd), v(sCrd), v(SS + 5)))
sexpr(sT0, [(sU, 64)], ML)
vexpr(sMlrd, [(SS + 4, 32)], sT0)
sexpr(sT0, [(sU, 32 * 512), (sS, 512)], E2)
vexpr(sE2w, [(0, 8)], sT0)
sexpr(sC, [(sU, 256), (sS, 8)], E2S)
if P.get("E3B", 1):
    sexpr(sT0, [(sLo, 16384), (sK1, 8192), (sJ, 128), (sHi, 32), (sK0, 4096)], E3)
    vexpr(sE3w, [(2, 1024), (1, 2)], sT0)
elif P.get("E3L", 1):
    sexpr(sT0, [(sLo, 32768), (sK1, 16384), (sJ, 256), (sHi, 64), (sK0, 8192)], E3)
    vexpr(sE3w, [(2, 2048), (1, 4)], sT0)
else:
    sexpr(sT0, [(sLo, 32768), (sK1, 16384), (sJ, 2048), (sHi, 512), (sK0, 256)], E3)
    vexpr(sE3w, [(0, 4)], sT0)
sexpr(sT0, [(sR1, 896), (sC1, 448), (sU, 128)], E4)
vexpr(sE4w, [(2, 16 * 896), (1, 4)], sT0)
sexpr(sT0, [("s2", 256), (sU, 64)], E5)
if P.get("WIDE", 0):
    vexpr(sE5w, [(2, 16)], sT0)
else:
    vexpr(sE5w, [(1, 4)], sT0)
A("v_lshl_add_u32 %s, v2, 3, v12" % v(SS + 3))
sexpr(sT0, [(sU, 32)])
vexpr(sTr, [(SS + 3, 128), (14, 8)], sT0)
sexpr(sT0, [(sU, 64)])
vexpr(sTr1, [(SS + 3, 224), (14, 8)], sT0)
stamp("S", 11)
A("s_waitcnt vmcnt(%d)" % {0: 0, 1: 13, 2: 13, 3: 6}[P.get("WF", 0)])
stamp("S", 12)
sexpr(sT0, [(sU, RS_)], XOP)
vexpr(4, [(1, 16)], sT0)
A("s_lshl_b32 %s, %s, 4" % (sT0, sHi))
A("s_mov_b32 %s, 0xffff" % sT2)
A("s_mov_b32 %s, 0" % sT3)
A("s_lshl_b64 exec, s[14:15], %s" % sT0)
A("ds_write_b128 v4, %s" % v(X0, 4))
set_exec(-1)
for i in range(4):
    A("v_lshlrev_b32 %s, 16, %s" % (v(SS + 2 * i), v(X0 + i)))
    A("v_and_b32 %s, 0xffff0000, %s" % (v(SS + 2 * i + 1), v(X0 + i)))
A("v_add_f32 v4, %s, %s" % (v(SS), v(SS + 1)))
A("v_mul_f32 v5, %s, %s" % (v(SS), v(SS)))
A("v_fmac_f32 v5, %s, %s" % (v(SS + 1), v(SS + 1)))
for i in range(2, 8):
    A("v_add_f32 v4, v4, %s" % v(SS + i))
    A("v_fmac_f32 v5, %s, %s" % (v(SS + i), v(SS + i)))
for m in (X1, X2, HM, RM):
    A("v_add_f32_dpp v4, v4, v4 %s" % m)
    A("v_add_f32_dpp v5, v5, v5 %s" % m)
g_allreduce("v_add_f32", 4, 6)
g_allreduce("v_add_f32", 5, 6)
A("v_mul_f32 v4, %s, v4" % f32(1 / 512))
A("v_mul_f32 v5, %s, v5" % f32(1 / 512))
A("v_fma_f32 v5, -v4, v4, v5")
A("v_max_f32 v5, 0, v5")
A("v_add_f32 v5, %s, v5" % f32(1e-5))
A("v_rsq_f32 v5, v5")
sexpr(sT0, [(sU, 8)], ST0)
A("v_mov_b32 v6, %s" % sT0)
A("ds_write_b64 v6, v[4:5]")
A("s_waitcnt lgkmcnt(0)")
ssync(0)
stamp("S", 0)
for t in range(4):
    A("ds_read_b128 %s, %s offset:%d" % (v(XR + 4 * t, 4), v(sXa), 64 * t))
for t in range(4):
    for hh in range(2):
        A("ds_read_b64_tr_b16 %s, %s offset:%d" % (v(WQ + 4 * t + 2 * hh, 2), v(sTr), LW_Q + (32 * t + 4 * hh) * 128))
vexpr(4, [(2, 8)], None, ST0)
A("ds_read_b64 v[6:7], v4")
A("v_mov_b32 v4, %d" % NONCE)
A("ds_read_b64 v[12:13], v4")
for i in range(4):
    A("v_mov_b32 %s, 0x3f803f80" % v(XR + 16 + i))
A("s_waitcnt lgkmcnt(0)")
for t in range(4):
    A("%s %s, %s, %s, %s" % (MFMA, v(DR, 4), v(XR + 4 * t, 4), v(WQ + 4 * t, 4), "0" if t == 0 else v(DR, 4)))
    A("%s %s, %s, %s, %s" % (MFMA, v(DR + 4, 4), v(XR + 16, 4), v(WQ + 4 * t, 4), "0" if t == 0 else v(DR + 4, 4)))
A("v_fma_f32 %s, -v6, %s, %s" % (v(DR), v(DR + 4), v(DR)))
A("v_mul_f32 %s, %s, v7" % (v(DR), v(DR)))
A("v_mov_b32 %s, %s" % (v(sCsP), v(DR + 4)))
A("v_mov_b32 %s, v12" % v(DR + 1))
sexpr(sT0, [(sJ, 65536), (sHi, 4096), (sLo, 512), (sU, 128)], E1T)
vexpr(4, [(2, 16384), (1, 8)], sT0)
stamp("S", 1)
A("global_store_dwordx2 v4, %s, %s sc1" % (v(DR, 2), pWS))
A("v_readfirstlane_b32 s48, v12")
A("v_readfirstlane_b32 s49, v13")
A("s_cmp_lg_u32 %s, 1" % sU)
A("s_cbranch_scc1 S_NOREC")
RS = P.get("RS", 16)
sexpr(sT0, [(sJ, 32 * RS), (sS, RS)], REC)
A("v_mov_b32 v4, %s" % sT0)
A("v_mov_b32 v14, %s" % sXcc)
set_exec(1)
A("global_store_dwordx3 v4, v[12:14], %s sc1" % pWS)
set_exec(-1)
A.label("S_NOREC")


def PT1():
    padd(pT, pWJ, LSTR)
    A("global_load_dwordx4 v[140:143], %s, %s sc1" % (v(sClr), pT))
    A("s_mov_b32 exec_hi, 0")
    A("global_load_dwordx4 v[140:143], %s, %s offset:1024 sc1" % (v(sClr), pT))
    A("s_mov_b64 exec, -1")


def ptouch():
    A("global_load_dwordx4 v[140:143], %s, %s sc1" % (v(sClr), pWJ))
    set_exec(0xFFFFFFFF)
    A("global_load_dwordx4 v[140:143], %s, %s offset:1024 sc1" % (v(sClr), pWJ))
    set_exec(-1)
    if P.get("PTX", 0):
        sexpr(sT0, [("s2", 1280), (sK0, LSTR), (sK1, 640)], E3)
        A("v_add_u32 v7, %s, v3" % sT0)
        set_exec(0xFFFFFFFFFF)
        A("global_load_dwordx4 v[140:143], v7, %s sc1" % pWS)
        set_exec(-1)


def wt_slice(base):
    A("global_store_dwordx4 %s, %s, %s sc1" % (v(sClr), v(SN, 4), base))
    A("s_mov_b32 exec_hi, 0")
    A("global_store_dwordx4 %s, %s, %s offset:1024 sc1" % (v(sClr), v(SN, 4), base))
    A("s_mov_b64 exec, -1")


def half_treduce(r):
    A("v_permlane32_swap_b32 %s, %s" % (v(r), v(r + 2)))
    A("v_permlane32_swap_b32 %s, %s" % (v(r + 1), v(r + 3)))
    A("v_add_f32 %s, %s, %s" % (v(r), v(r), v(r + 2)))
    A("v_add_f32 %s, %s, %s" % (v(r + 1), v(r + 1), v(r + 3)))


AG = ["global_load_dwordx4 %s, %s, %s sc1" % (v(ga, 4), v(sAg), pWJ),
      "global_load_dwordx4 %s, %s, %s offset:2048 sc1" % (v(gb, 4), v(sAg), pWJ)]
AGC = [(ga + e, gb + e) for e in range(4)]
sexpr(sT0, [(sJ, 65536), (sHi, 16384), (sU, 1024)], E1T + 4096)
A("v_add_u32 v4, %s, v3" % sT0)
A("v_add_u32 v5, 8192, v4")
sexpr(sT0, [(sU, 64 * RS)], REC)
vexpr(6, [(0, RS)], sT0)
if P.get("PTOUCH", 1) == 2:
    ptouch()
sleep(P.get("D_A0", 20))
TQ = XR
A.label("S_AG0")
A("global_load_dwordx4 %s, v4, %s offset:-4096 sc1" % (v(TQ, 4), pWS))
A("global_load_dwordx4 %s, v4, %s sc1" % (v(TQ + 4, 4), pWS))
A("global_load_dwordx4 %s, v5, %s offset:-4096 sc1" % (v(TQ + 8, 4), pWS))
A("global_load_dwordx4 %s, v5, %s sc1" % (v(TQ + 12, 4), pWS))
A("s_waitcnt vmcnt(0)")
for i in range(8):
    A("v_xor_b32 %s, s48, %s" % (v(TQ + 2 * i + 1), v(TQ + 2 * i + 1)))
A("v_or3_b32 v7, %s, %s, %s" % (v(TQ + 1), v(TQ + 3), v(TQ + 5)))
A("v_or3_b32 v7, v7, %s, %s" % (v(TQ + 7), v(TQ + 9)))
A("v_or3_b32 v7, v7, %s, %s" % (v(TQ + 11), v(TQ + 13)))
A("v_or_b32 v7, v7, %s" % v(TQ + 15))
A("v_cmp_ne_u32 vcc, 0, v7")
A("s_cbranch_vccz S_AG0_DONE")
sleep(P.get("NAPQ", 8))
budget_loop("S_AG0")
A.label("S_AG0_DONE")
A("global_load_dwordx3 v[12:14], v6, %s sc1" % pWS)
A("v_mov_b32 v4, %d" % (FLG + 12))
A("v_mov_b32 v5, 1")
A("ds_write_b32 v4, v5")
stamp("S", 2)
for c in range(2):
    A("v_add_f32 %s, %s, %s" % (v(TQ + 2 * c), v(TQ + 2 * c), v(TQ + 4 + 2 * c)))
    A("v_add_f32 %s, %s, %s" % (v(TQ + 8 + 2 * c), v(TQ + 8 + 2 * c), v(TQ + 12 + 2 * c)))
    A("v_add_f32 %s, %s, %s" % (v(TQ + 2 * c), v(TQ + 2 * c), v(TQ + 8 + 2 * c)))
A("v_cvt_pk_bf16_f32 %s, %s, %s" % (v(ga), v(TQ), v(TQ + 2)))
sexpr(sT0, [(sU, RS_)], QOP)
vexpr(4, [(0, 4)], sT0)
A("ds_write_b32 v4, %s" % v(ga))
A("s_waitcnt lgkmcnt(0)")
A("s_barrier")
if not P.get("WF", 0):
    exec(WOBLK)
A("s_waitcnt vmcnt(6)")
A("s_branch S_RP_CHK")
A.label("S_RP")
A("global_load_dwordx3 v[12:14], v6, %s sc1" % pWS)
A("s_waitcnt vmcnt(0)")
A.label("S_RP_CHK")
A("v_cmp_ne_u64 vcc, %s, v[12:13]" % pN)
A("s_cbranch_vccz S_RP_DONE")
A("s_sleep %d" % P.get("PSL", 8))
budget_loop("S_RP")
A("v_mov_b32 v14, -1")
A.label("S_RP_DONE")
A("s_lshr_b32 %s, %s, 1" % (sT0, sJ))
A("s_cmp_lg_u32 %s, %s" % (sT0, sU))
A("s_cbranch_scc1 S_REC_SKIP")
A("v_cmp_ne_u32 vcc, %s, v14" % sXcc)
A("s_bitcmp1_b32 %s, 0" % sJ)
A("s_cselect_b32 %s, vcc_hi, vcc_lo" % sT0)
A("s_cmp_eq_u32 %s, 0" % sT0)
A("s_cselect_b32 %s, 1, 0" % sT0)
if P["FORCE_SAFE"]:
    A("s_mov_b32 %s, 0" % sT0)
A("v_mov_b32 v5, %d" % FLG)
A("v_mov_b32 v7, %s" % sT0)
A("ds_write_b32 v5, v7")
A.label("S_REC_SKIP")
stamp("S", 14)
if P.get("PTOUCH", 1) == 1:
    ptouch()
w2_dma(0)
A("s_waitcnt lgkmcnt(0)")

TRBLK = r'''lab = if_layer0()
for t in range(7):
    for hh in range(2):
        A("ds_read_b64_tr_b16 %s, %s offset:%d" % (v(W2R + 4 * t + 2 * hh, 2), v(sTr), LW_2 + (32 * t + 4 * hh) * 128))
A("s_waitcnt lgkmcnt(0)")
A.label(lab)
'''
A.label("S_LOOP")
A("s_barrier")
cycs(0)
stamp("S", 3)
cm = XR
ca = XR + 8
A("v_mov_b32 v5, %d" % FLG)
A("ds_read_b32 v6, v5")
A("ds_read_b128 %s, %s" % (v(cm, 4), v(sMlrd)))
A("ds_read_b128 %s, %s offset:16" % (v(cm + 4, 4), v(sMlrd)))
for k in range(4):
    A("ds_read_b128 %s, %s offset:%d" % (v(ca + 4 * k, 4), v(sCrd), 2 * APB * k))
cM, cL, cT, cAd = SS, SS + 1, SS + 2, SS + 3
A("v_mov_b32 %s, %s" % (v(cAd), sC))
A("s_waitcnt lgkmcnt(%d)" % (0 if STAMP == 5 else 4))
cycs(1)
A("v_readfirstlane_b32 %s, v6" % sFast)
A("v_max3_f32 %s, %s, %s, %s" % (v(cM), v(cm), v(cm + 2), v(cm + 4)))
A("v_max_f32 %s, %s, %s" % (v(cM), v(cM), v(cm + 6)))
A("v_mov_b32 %s, %s" % (v(cT), v(cM)))
A("v_permlane32_swap_b32 %s, %s" % (v(cM), v(cT)))
A("v_max_f32 %s, %s, %s" % (v(cM), v(cM), v(cT)))
for k in range(4):
    A("v_sub_f32 %s, %s, %s" % (v(cm + 2 * k), v(cm + 2 * k), v(cM)))
for k in range(4):
    A("v_exp_f32 %s, %s" % (v(cm + 2 * k), v(cm + 2 * k)))
A("s_waitcnt lgkmcnt(0)")
if P.get("PK", 1):
    for h in range(2):
        A("v_pk_mul_f32 %s, %s, %s op_sel_hi:[0,1]" % (v(DR + 2 * h, 2), v(cm, 2), v(ca + 2 * h, 2)))
    A("v_mul_f32 %s, %s, %s" % (v(cL), v(cm), v(cm + 1)))
    for k in range(1, 4):
        for h in range(2):
            A("v_pk_fma_f32 %s, %s, %s, %s op_sel_hi:[0,1,1]" % (v(DR + 2 * h, 2), v(cm + 2 * k, 2), v(ca + 4 * k + 2 * h, 2), v(DR + 2 * h, 2)))
        A("v_fmac_f32 %s, %s, %s" % (v(cL), v(cm + 2 * k), v(cm + 2 * k + 1)))
else:
    for e in range(4):
        A("v_mul_f32 %s, %s, %s" % (v(DR + e), v(cm), v(ca + e)))
    A("v_mul_f32 %s, %s, %s" % (v(cL), v(cm), v(cm + 1)))
    for k in range(1, 4):
        for e in range(4):
            A("v_fmac_f32 %s, %s, %s" % (v(DR + e), v(cm + 2 * k), v(ca + 4 * k + e)))
        A("v_fmac_f32 %s, %s, %s" % (v(cL), v(cm + 2 * k), v(cm + 2 * k + 1)))
A("v_mov_b32 %s, %s" % (v(cT), v(cL)))
A("v_permlane32_swap_b32 %s, %s" % (v(DR), v(DR + 2)))
A("v_permlane32_swap_b32 %s, %s" % (v(DR + 1), v(DR + 3)))
A("v_permlane32_swap_b32 %s, %s" % (v(cL), v(cT)))
A("v_add_f32 %s, %s, %s" % (v(DR), v(DR), v(DR + 2)))
A("v_add_f32 %s, %s, %s" % (v(DR + 1), v(DR + 1), v(DR + 3)))
A("v_add_f32 %s, %s, %s" % (v(cL), v(cL), v(cT)))
cycs(2)
store_intra(["global_store_dwordx2 %s, %s, %s" % (v(sE2w), v(DR, 2), pWJ),
             "s_mov_b64 exec, 1",
             "global_store_dwordx2 %s, %s, %s" % (v(cAd), v(cM, 2), pWJ),
             "s_mov_b64 exec, -1"])
if P.get("SIGI", 1):
    A("s_barrier")
cycs(3)
stamp("S", 4)
W2P = P.get("W2P", 1)
lab = if_layer0()
A("v_add_u32 %s, %d, %s" % (v(gc), 4 * 8192, v(sE1w)))
A("v_add_u32 %s, %d, %s" % (v(gc + 1), (E4C - E4) & 0xFFFFFFFF, v(sE4w)))
for i in range(4):
    A("v_mov_b32 %s, 0x3f803f80" % v(XR + i))
A("s_waitcnt vmcnt(%d)" % (2 + W2S[0] + ((2 + P.get("PTX", 0)) if P.get("PTOUCH", 1) == 1 else 0)))
w2_dma(1)
ssync(1)
for tl in range(2):
    for hh in range(2):
        A("ds_read_b64_tr_b16 %s, %s offset:%d" % (v(W1R + 4 * tl + 2 * hh, 2), v(sTr1), LW_1 + 4 * hh * 224 + 32 * tl))
for t in range(4):
    for hh in range(2):
        A("ds_read_b64_tr_b16 %s, %s offset:%d" % (v(WO + 4 * t + 2 * hh, 2), v(sTr), LW_O + (32 * t + 4 * hh) * 128))
A("s_waitcnt lgkmcnt(8)")
A("%s %s, %s, %s, 0" % (MFMA, v(DR + 4, 4), v(XR, 4), v(W1R, 4)))
A("%s %s, %s, %s, 0" % (MFMA, v(XR + 4, 4), v(XR, 4), v(W1R + 4, 4)))
A("s_cmp_eq_u32 %s, 3" % sU)
A("s_cselect_b32 %s, 0, 0xffff" % sT0)
store_intra(exec_lines(0xFFFF) +
            ["global_store_dword %s, %s, %s" % (v(gc), v(sCsP), pWJ),
             "global_store_dword %s, %s, %s" % (v(gc + 1), v(DR + 4), pWJ),
             "s_mov_b32 exec_lo, %s" % sT0,
             "global_store_dword %s, %s, %s offset:64" % (v(gc + 1), v(XR + 4), pWJ),
             "s_mov_b64 exec, -1"])
A("s_waitcnt lgkmcnt(0)")
A.label(lab)
A("s_barrier")
cycs(4)
if STAMP == 5:
    A("s_waitcnt lgkmcnt(0)")
stamp("S", 5)
for t in range(4):
    A("ds_read_b128 %s, %s offset:%d" % (v(XR + 4 * t, 4), v(sOrd), 64 * t))
for t in range(4):
    A("s_waitcnt lgkmcnt(%d)" % (3 - t))
    A("%s %s, %s, %s, %s" % (MFMA, v(DR, 4), v(XR + 4 * t, 4), v(WO + 4 * t, 4), "0" if t == 0 else v(DR, 4)))
if P.get("E3B", 1):
    A("v_cvt_pk_bf16_f32 %s, %s, %s" % (v(DR), v(DR), v(DR)))
    A("global_store_short %s, %s, %s sc1" % (v(sE3w), v(DR), pWL))
else:
    A("global_store_dword %s, %s, %s sc1" % (v(sE3w), v(DR), pWL))
cycs(5)
A("s_barrier")
lab = if_layer0()
w2_dma(2)
A("s_sub_u32 %s, 4, %s" % (sT0, sHi))
A("s_lshl_b32 %s, %s, 13" % (sT0, sT0))
A("v_add_u32 %s, %s, %s" % (v(gc), sT0, v(sAg)))
poll(["global_load_dwordx4 %s, %s, %s sc1" % (v(ga, 4), v(gc), pWJ),
      "global_load_dwordx4 %s, %s, %s offset:2048 sc1" % (v(gb, 4), v(gc), pWJ)], AGC, nap=4)
for e in range(4):
    A("v_add_f32 %s, %s, %s" % (v(ga + e), v(ga + e), v(gb + e)))
half_treduce(ga)
A("v_mov_b32 %s, %s" % (v(sCq0), v(ga)))
A("v_mov_b32 %s, %s" % (v(sCq1), v(ga + 1)))
A.label(lab)
A("s_barrier")
cycs(6)
if STAMP == 5:
    A("s_waitcnt lgkmcnt(0)")
stamp("S", 6)
A("ds_read_b128 %s, %s" % (v(XR, 4), v(sX1a)))
A("s_cmp_eq_u32 %s, 3" % sU)
A("s_cbranch_scc1 S_W1_W3")
A("s_waitcnt lgkmcnt(0)")
A("%s %s, %s, %s, 0" % (MFMA, v(DR, 4), v(XR, 4), v(W1R, 4)))
A("%s %s, %s, %s, 0" % (MFMA, v(DR + 4, 4), v(XR, 4), v(W1R + 4, 4)))
store_intra(["global_store_dword %s, %s, %s" % (v(sE4w), v(DR), pWJ),
             "global_store_dword %s, %s, %s offset:64" % (v(sE4w), v(DR + 4), pWJ)])
A("s_branch S_W1_DONE")
A.label("S_W1_W3")
A("ds_read_b128 %s, %s" % (v(XR + 4, 4), v(sX1b)))
A("s_waitcnt lgkmcnt(1)")
A("%s %s, %s, %s, 0" % (MFMA, v(DR, 4), v(XR, 4), v(W1R, 4)))
A("s_waitcnt lgkmcnt(0)")
A("%s %s, %s, %s, 0" % (MFMA, v(DR + 4, 4), v(XR, 4), v(XR + 4, 4)))
store_intra(["global_store_dword %s, %s, %s" % (v(sE4w), v(DR), pWJ)] + exec_lines(STM) +
            ["global_store_dword %s, %s, %s" % (v(sE4sw), v(DR + 4), pWJ)] + exec_lines(0x000F000F000F000F) +
            ["global_store_dwordx4 %s, %s, %s" % (v(sE4rw), v(XR + 4, 4), pWJ), "s_mov_b64 exec, -1"])
A.label("S_W1_DONE")
cycs(7)
if P.get("SIGI", 1):
    A("s_barrier")
KEEP = 136
if P.get("CLEAN", 0) & 8:
    A("v_mov_b32 %s, %s" % (v(KEEP), v(DR)))
    A("v_mov_b32 %s, %s" % (v(KEEP + 1), v(DR + 4)))
if P.get("W2LATE", 0):
    A("s_waitcnt vmcnt(0)")
else:
    exec(TRBLK)
A("s_barrier")
cycs(8)
if STAMP == 5:
    A("s_waitcnt lgkmcnt(0)")
stamp("S", 7)
if P.get("W2LATE", 0):
    exec(TRBLK)
for t in range(7):
    A("ds_read_b128 %s, %s offset:%d" % (v(XR + 4 * t, 4), v(sHrd), 64 * t))
for t in range(7):
    A("s_waitcnt lgkmcnt(%d)" % (6 - t))
    ab = (v(W2R + 4 * t, 4), v(XR + 4 * t, 4)) if P.get("WIDE", 0) else (v(XR + 4 * t, 4), v(W2R + 4 * t, 4))
    A("%s %s, %s, %s, %s" % (MFMA, v(DR, 4), ab[0], ab[1], "0" if t == 0 else v(DR, 4)))
if P.get("WIDE", 0):
    set_exec(0x0001000100010001)
    A("global_store_dwordx4 %s, %s, %s sc1" % (v(sE5w), v(DR, 4), pWL))
else:
    set_exec(0xFFFF)
    A("global_store_dword %s, %s, %s sc1" % (v(sE5w), v(DR), pWL))
set_exec(-1)
if P.get("SIG", 1):
    A("s_barrier")
if P.get("SAFEDLY"):
    A("s_cmp_lg_u32 %s, 0" % sFast)
    A("s_cbranch_scc1 S_NODLY")
    sleep(400)
    A.label("S_NODLY")
cycs(9)
cycs_dump(10)
stamp("S", 8)
A("s_cmp_lg_u32 %s, 0" % sL)
A("s_cbranch_scc1 %s" % ("S_FIN" if P.get("CLEAN", 0) & 4 else "L_EXIT"))
A("s_mov_b32 %s, 1" % sL)
padd(pWL, pWL, LSTR)
sexpr(sT0, [(sS, 2176), (sU, 544)], E2S)
A("v_add_u32 v4, %s, v3" % sT0)
store_intra(exec_lines((1 << 34) - 1) + ["global_store_dwordx4 v4, %s, %s" % (v(SN, 4), pWJ), "s_mov_b64 exec, -1"])
A("s_lshl_b32 %s, %s, 6" % (sT0, sU))
A("v_add_u32 %s, %s, %s" % (v(SS), sT0, v(sXa)))
A("v_mov_b32 %s, 0" % v(gc))
A("s_waitcnt vmcnt(0)")
A("s_barrier")
stamp("S", 0)
for t in range(4):
    A("ds_read_b128 %s, %s offset:%d" % (v(XR + 4 * t, 4), v(sXa), 64 * t))
A("ds_read_b128 %s, %s" % (v(XR + 16, 4), v(sXb)))
A("ds_read_b128 %s, %s" % (v(XR + 20, 4), v(SS)))
for t in range(4):
    A("s_waitcnt lgkmcnt(%d)" % (5 - t))
    A("%s %s, %s, %s, %s" % (MFMA, v(DR, 4), v(XR + 4 * t, 4), v(WQ + 4 * t, 4), "0" if t == 0 else v(DR, 4)))
A("s_waitcnt lgkmcnt(0)")
A("%s %s, %s, %s, 0" % (MFMA, v(DR + 4, 4), v(XR + 20, 4), v(XR + 16, 4)))
stamp("S", 1)
store_intra(["global_store_dword %s, %s, %s" % (v(sE1w), v(DR), pWJ)] + exec_lines(STM) +
            ["global_store_dword %s, %s, %s" % (v(sE1sw), v(DR + 4), pWJ), "s_mov_b64 exec, -1"])
sleep(P["D_A"])
SSETS = [SS, XR, XR + 12][:P.get("NSETS", 2)]
q0_, q1_, q2_, q3_ = 4, 5, 6, 7


def a_post():
    t = XR
    with Cap() as c1:
        stats_math(gc, XR + 4, 1.0, 1e-5)
        A("v_mul_f32 %s, %s, %s" % (v(q2_), v(XR + 5), v(sCq0)))
        A("v_mul_f32 %s, %s, %s" % (v(q3_), v(XR + 5), v(sCq1)))
    with Cap() as c2:
        for e in range(4):
            A("v_add_f32 %s, %s, %s" % (v(t + e), v(ga + e), v(gb + e)))
        half_treduce(t)
    for l in interleave(c1.lines, c2.lines):
        A(l)
    A("v_fma_f32 %s, %s, %s, -%s" % (v(q0_), v(t), v(XR + 4), v(q2_)))
    A("v_fma_f32 %s, %s, %s, -%s" % (v(q1_), v(t + 1), v(XR + 4), v(q3_)))


opt_poll("global_load_dword %s, %s, %s sc1" % (v(gc), v(sAst), pWJ), 0xFFFFFFFF, [gc], AG, range(ga, ga + 8), a_post, [q0_, q1_])
stamp("S", 2)
A("v_cvt_pk_bf16_f32 %s, %s, %s" % (v(q0_), v(q0_), v(q1_)))
A("ds_write_b32 %s, %s" % (v(sQw), v(q0_)))
A("s_waitcnt lgkmcnt(0)")
A("s_barrier")
sexpr(sT0, [(sS, 2048), (sU, 512)], E4)
A("v_add_u32 v4, %s, v3" % sT0)
store_intra(exec_lines(0xFFFFFFFF) + ["global_store_dwordx4 v4, %s, %s" % (v(SN, 4), pWJ), "s_mov_b64 exec, -1"])
A("s_waitcnt vmcnt(0)")
A("s_branch S_LOOP")
if P.get("CLEAN", 0) & 4:
    A.label("S_FIN")
    sexpr(sT0, [(sS, 4096), (sU, 1024)])
    A("v_add_u32 v4, %s, v3" % sT0)
    A("global_store_dwordx4 v4, %s, %s sc1" % (v(SN, 4), pWJ))
    if P.get("CLEAN", 0) & 8:
        A("global_store_dword %s, %s, %s sc1" % (v(sE4w), v(KEEP), pWJ))
        A("s_cmp_eq_u32 %s, 3" % sU)
        A("s_cbranch_scc1 L_EXIT")
        A("global_store_dword %s, %s, %s offset:64 sc1" % (v(sE4w), v(KEEP + 1), pWJ))
    A("s_branch L_EXIT")

KR, VR, VF, QR, SR = 16, 48, 80, 112, 128
GS = 48
(gOg, gOml, gOlds, gW1g, gW1x, gW1lds, gW2g, gW2s, gW2lds, gXg, gXr, gXlds, gB1, gB2, gCs1, gQrd, gApw, gMlw, gOut, gDma) = range(148, 168)
_gn = [1 if P["PREF"] else 0]


def gload(t):
    if P.get("NODMA") and "lds" in t:
        t = "global_load_dword v140, v3, %s" % pB1 if False else "s_nop 0"
        A(t)
        return
    if _gn[0] >= P["W"]:
        if P.get("ADAPT"):
            lab = newlabel("THR")
            A("ds_read_b32 v130, v129")
            A("s_waitcnt lgkmcnt(0)")
            A("v_readfirstlane_b32 %s, v130" % sT1)
            A("s_cmp_lg_u32 %s, 0" % sT1)
            A("s_cbranch_scc1 %s" % lab)
            A("s_waitcnt vmcnt(%d)" % (P["W"] - 1))
            A.label(lab)
        else:
            A("s_waitcnt vmcnt(%d)" % (P["W"] - 1))
    A(t)
    _gn[0] += 1


GADDR = r'''A("v_lshrrev_b32 v11, 3, v0")        # l>>3
A("v_and_b32 v12, 7, v0")            # l&7
vexpr(gDma, [(11, 1024), (12, 16)])
# bias elements
A("s_lshr_b32 %s, %s, 1" % (sK0, sWave))     # b = w>>1
A("s_and_b32 %s, %s, 1" % (sK1, sWave))      # w&1
A("s_min_u32 %s, %s, 6" % (sK2, sWave))      # w' for the W2 gather
vexpr(13, [(1, 4), (2, 1)])                  # X col local = 4 l16 + g
sexpr(sT0, [(sHi, 256), (sK1, 128)])
vexpr(14, [(13, 2)], sT0)                    # col*2 within a 512-col bf16 row
gload("global_load_ushort %s, v14, %s%s" % (v(gB2), pB2, NT))
vexpr(10, [(12, 4), (2, 1)])                 # 4 (l&7) + g
sexpr(sT0, [(sK2, 64)])
vexpr(10, [(10, 2)], sT0)                    # f*2 (local)
sexpr(sT0, [(sJ, 448)])
A("v_add_u32 v6, %s, v10" % sT0)
gload("global_load_ushort %s, v6, %s%s" % (v(gB1), pB1, NT))
N_AFTER_K, N_AFTER_V = 8, 0

for q in range(4):
    smov64(mQ[q], (0x000F000F000F000F << (4 * q)))
A("s_mov_b32 %s, 0x05040100" % sPermLo)
A("s_mov_b32 %s, 0x07060302" % sPermHi)
A("s_mov_b32 %s, %s" % (sC, f32(128 ** -0.5 * math.log2(math.e))))
A("s_mov_b32 s42, s40")
A("s_mov_b32 s43, s41")
A("s_mul_i32 %s, %s, %d" % (sT0, sJ, JSTR))
padd(pWJ, pWS, sT0)
A("v_add_u32 %s, %d, v10" % (v(gW2lds), HOP))
# O gather: E2 + ((ro*4+b)*8 + 2g)*512 + (16 (w&1) + l16)*16
sexpr(sT0, [(sHi, 16384), (sK0, 4096), (sK1, 256)], E2)
vexpr(gOg, [(2, 1024), (1, 16)], sT0)
sexpr(sT0, [(sHi, 256), (sK0, 64)], E2S)
vexpr(gOml, [(2, 16)], sT0)
# O lds: U = 16 h + l16 (h = w&1); lp = 2U + (g>>1); ups = lp&31 = (2 l16 + (g>>1)) ; e = 2 h + (g&1)
#   ups = 16 a + 4 g' + qq ; d = 32 g' + 8 e + 4 a + qq
A("v_lshrrev_b32 v4, 1, v2")
A("v_lshl_add_u32 v4, v1, 1, v4")            # ups
A("v_bfe_u32 v5, v4, 4, 1")                  # a
A("v_bfe_u32 v6, v4, 2, 2")                  # g'
A("v_and_b32 v7, 3, v4")                     # qq
A("v_and_b32 v4, 1, v2")                     # g&1
sexpr(sT0, [(sK0, RS_), (sK1, 32)], OOP)
vexpr(gOlds, [(6, 64), (4, 16), (5, 8), (7, 2)], sT0)
# W1 gather: E3 + r1*16384 + (2 pp)*512 + (4 w + (l&3))*16 ; pp = l>>2
A("v_lshrrev_b32 v4, 2, v0")
A("v_and_b32 v5, 3, v0")
if P.get("E3B", 1):
    sexpr(sT0, [(sR1, 8192), (sWave, 1024)], E3)
    A("v_add_u32 %s, %s, v3" % (v(gW1g), sT0))
elif P.get("E3L", 1):
    sexpr(sT0, [(sR1, 16384), (sWave, 2048)], E3)
    A("v_add_u32 %s, %s, v3" % (v(gW1g), sT0))
else:
    sexpr(sT0, [(sR1, 16384), (sWave, 64)], E3)
    vexpr(gW1g, [(4, 1024), (5, 16)], sT0)
# rho = 16 tile + 4 (l&3) + g ; tile = w>>2, b = w&3
A("s_lshr_b32 %s, %s, 2" % (sT1, sWave))
A("s_and_b32 %s, %s, 3" % (sT2, sWave))
if P.get("E3B", 1):
    # column = 8 (l&1) + 4 b5 + 2 b4 + b3
    A("v_and_b32 v4, 1, v0")
    A("v_bfe_u32 v5, v0, 5, 1")
    A("v_bfe_u32 v6, v0, 4, 1")
    A("v_bfe_u32 v7, v0, 3, 1")
    A("v_lshlrev_b32 v4, 4, v4")
    A("v_lshl_add_u32 v4, v5, 3, v4")
    A("v_lshl_add_u32 v4, v6, 2, v4")
    A("v_lshl_add_u32 v6, v7, 1, v4")
    A("s_mov_b32 s61, 0x00003f80")      # (1, 0)
    A("s_mov_b32 s46, 0x3f800000")      # (0, 1)
    A("s_mov_b32 s47, 0x3f803f80")      # (1, 1)
    smov64("s[48:49]", 0xFF00FF00FF00FF00)
else:
    vexpr(6, [(5, 8), (2, 2)])
sexpr(sT0, [(sT2, RS1), (sT1, 32)], X1OP)
A("v_add_u32 %s, %s, v6" % (v(gW1lds), sT0))
sexpr(sT0, [(sT2, RS_), (sT1, 32)], XOP)
A("s_and_b32 %s, %s, 3" % (sT1, sR1))
A("s_lshl_b32 %s, %s, 6" % (sT1, sT1))
A("s_add_u32 %s, %s, %s" % (sT0, sT0, sT1))
A("v_add_u32 %s, %s, v6" % (v(gW1x), sT0))
# W2 gather: E4 + (b*16 + 2 pp8)*896 + (8 w' + (l&7))*16 ; pp8 = l>>3
sexpr(sT0, [(sHi, 16 * 896), (sK2, 128)], E4)
vexpr(gW2g, [(11, 2 * 896), (12, 16)], sT0)
# W2 stats: E4S + (c1*4 + b)*128 + l16*8  (16 entries, row all-reduce)
sexpr(sT0, [(sHi, 128)], E4S)
vexpr(gW2s, [(1, 8), (2, 4)], sT0)
# X gather: E5 + ((b*8 + 2 rq + (w&1))*8 + 2g)*256 + l16*16
sexpr(sT0, [(sK0, 16384), (sHi, 4096), (sK1, 2048)], E5)
vexpr(gXg, [(2, 512), (1, 16)], sT0)
sexpr(sT0, [(sK0, 1024)], E4R)
A("v_add_u32 %s, %s, v14" % (v(gXr), sT0))
sexpr(sT0, [(sK0, 1024)])
A("v_add_u32 %s, %s, v14" % (v(gOut), sT0))
sexpr(sT0, [(sK0, RS_), (sK1, 128)], XOP)
vexpr(gXlds, [(13, 2)], sT0)
vexpr(gQrd, [(8, RS_), (2, 16)], None, QOP)
sexpr(sT0, [(sWave, 2 * APB)], AP)
vexpr(gApw, [(8, 288), (2, 64), (9, 16)], sT0)
sexpr(sT0, [(sWave, 8)], ML)
vexpr(gMlw, [(8, 64)], sT0)
'''
NV1 = 8
A.label("L_G")
ISTR, WSTR = ((65536, 8192) if P.get("KMODE", 5) == 5 else (8192, 65536))
sexpr(sT0, [(sHi, 8 << 21), (sJ, 1 << 21), (sLo, 1024), (sWave, WSTR)], 6144 * 256)
A("v_and_b32 v8, 3, v1")
A("v_lshrrev_b32 v9, 2, v1")
vexpr(10, [(8, ISTR), (9, 256), (2, 16)])
A("v_mov_b32 v129, %d" % (FLG + 12))
A("s_waitcnt lgkmcnt(0)")
stamp_init()
stamp("G", 10)
padd(pT, pK, sT0)
padd(pT2, pV, sT0)
for tau in range(2):
    for t in range(4):
        if 4 * tau + t == P["B0POS"]:
            A("s_barrier")
        gload("global_load_dwordx4 %s, v10, %s offset:%d%s" % (v(KR + 4 * (4 * tau + t), 4), pT, 64 * t, NT))
    if tau == 0:
        padd(pT, pT, 4 * ISTR)
        A("v_mov_b32 %s, v10" % v(SR))
        exec(GADDR)
        A("v_mov_b32 v10, %s" % v(SR))
stamp("G", 11)
NV1 = 8
for jj in range(8):
    gload("global_load_dwordx4 %s, v3, %s%s" % (v(VR + 4 * jj, 4), pT2, NT))
    if jj < 7:
        padd(pT2, pT2, ISTR)
for q in range(4):
    A("v_cndmask_b32 v%d, 0, -1, %s" % (144 + q, mQ[q]))
stamp("G", 9)
if P.get("KVWAIT"):
    A("s_waitcnt vmcnt(0)")
    stamp("G", 14)
if P.get("QLATE"):
    A("s_barrier")
if P.get("PRIO", 0):
    A("s_cmp_ge_u32 %s, 4" % sWave)
    A("s_cbranch_scc1 G_ENTRY")
    A("s_setprio %d" % P["PRIO"])
A.label("G_ENTRY")
A("s_barrier")
cyc(0)
stamp("G")
if NV1 < 8:
    lab = if_layer0()
    for jj in range(NV1, 8):
        A("global_load_dwordx4 %s, v3, %s offset:%d%s" % (v(VR + 4 * jj, 4), pT2, (jj - 4) * 1024, NT))
    A.label(lab)
for t in range(4):
    A("ds_read_b128 %s, %s offset:%d" % (v(QR + 4 * t, 4), v(gQrd), 64 * t))
A("s_waitcnt vmcnt(%d)" % N_AFTER_K)
stamp("G")
S0, S1 = SR, SR + 4
if STAMP == 4:
    A("s_waitcnt lgkmcnt(0)")
    cyc(1)
for t in range(4):
    A("s_waitcnt lgkmcnt(%d)" % ((3 - t) if STAMP != 4 else 15))
    for tau in range(2):
        d = v(SR + 4 * tau, 4)
        A("%s %s, %s, %s, %s" % (MFMA, d, v(KR + 4 * (4 * tau + t), 4), v(QR + 4 * t, 4), "0" if t == 0 else d))
aM, aT, aMc = 136, 137, 138
PR = 140
PM = QR
A("v_max3_f32 %s, %s, %s, %s" % (v(aM), v(S0), v(S0 + 1), v(S0 + 2)))
A("v_max3_f32 %s, %s, %s, %s" % (v(aT), v(S1), v(S1 + 1), v(S1 + 2)))
A("v_max3_f32 %s, %s, %s, %s" % (v(aM), v(aM), v(S0 + 3), v(S1 + 3)))
A("v_max_f32 %s, %s, %s" % (v(aM), v(aM), v(aT)))
cyc(2)
g_allreduce("v_max_f32", aM, aT)
A("v_mul_f32 %s, %s, %s" % (v(aMc), sC, v(aM)))
for q in range(4):
    A("s_mov_b64 exec, %s" % mQ[q])
    A("v_fma_f32 %s, %s, %s, -%s" % (v(PR), v(SR + 2 * q), sC, v(aMc)))
    A("v_fma_f32 %s, %s, %s, -%s" % (v(PR + 1), v(SR + 2 * q + 1), sC, v(aMc)))
A("s_mov_b64 exec, -1")
A("v_exp_f32 %s, %s" % (v(PR), v(PR)))
A("v_exp_f32 %s, %s" % (v(PR + 1), v(PR + 1)))
A("v_cvt_pk_bf16_f32 %s, %s, %s" % (v(PR), v(PR), v(PR + 1)))
cyc(3)
lab0, lab1 = newlabel("VT"), newlabel("VTD")
A("s_cmp_eq_u32 %s, 0" % sL)
A("s_cbranch_scc1 %s" % lab0)
D0 = 4
DL = 128
MK = 144
ONES = GS + 28


def pm(q, p):
    rot = (4 * (q - p)) % 16
    if rot == 0:
        A("v_and_b32 %s, %s, %s" % (v(PM + 4 * q + p), v(PR), v(MK + q)))
    else:
        A("v_and_b32_dpp %s, %s, %s row_ror:%d%s" % (v(PM + 4 * q + p), v(PR), v(MK + q), rot, DPP))


with Cap() as vt:
    for k in range(16):
        pm(k >> 2, k & 3)
    for i in range(4):
        A("v_mov_b32 %s, 0x3f803f80" % v(132 + i))
    A("%s %s, %s, %s, 0" % (MFMA, v(DL, 4), v(132, 4), v(PM, 4)))
    for p in range(4):
        A("s_waitcnt vmcnt(%d)" % (N_AFTER_V + 6 - 2 * p))
        if p == 3:
            stamp("G")
        for i in (0, 4, 1, 5, 2, 6, 3, 7):
            A("v_perm_b32 %s, %s, %s, %s" % (v(VF + 4 * i + p), v(VR + 4 * (2 * p + 1) + (i >> 1)), v(VR + 4 * (2 * p) + (i >> 1)),
                                             sPermHi if (i & 1) else sPermLo))
    for q in range(4):
        for a in range(2):
            d = v(D0 + 4 * a, 4)
            A("%s %s, %s, %s, %s" % (MFMA, d, v(VF + 4 * (4 * a + q), 4), v(PM + 4 * q, 4), "0" if q == 0 else d))
    for i in range(4):
        A("v_mov_b32 %s, 0x3f803f80" % v(ONES + i))
OOL.append([lab0 + ":"] + vt.lines + ["s_branch %s" % lab1])
for p in range(4):
    pm(0, p)
pm(1, 0); pm(1, 1)
A("%s %s, %s, %s, 0" % (MFMA, v(DL, 4), v(ONES, 4), v(PM, 4)))
for q in range(4):
    for a in range(2):
        d = v(D0 + 4 * a, 4)
        A("%s %s, %s, %s, %s" % (MFMA, d, v(VF + 4 * (4 * a + q), 4), v(PM + 4 * q, 4), "0" if q == 0 else d))
        nxt = 4 * q + 2 * a + 6
        for k in (nxt, nxt + 1):
            if k < 16:
                pm(k >> 2, k & 3)
A.label(lab1)
A("v_mov_b32 %s, %s" % (v(aMc + 1), v(DL)))
cyc(4)
A("s_mov_b64 exec, %s" % mQ[0])
A("ds_write_b64 %s, %s" % (v(gMlw), v(aMc, 2)))
A("s_mov_b64 exec, -1")
A("ds_write_b128 %s, %s" % (v(gApw), v(D0, 4)))
A("ds_write_b128 %s, %s offset:%d" % (v(gApw), v(D0 + 4, 4), APB))
A("s_waitcnt lgkmcnt(0)")
cyc(5)
A("s_barrier")
cyc(6)
cyc_dump(7)

a0, b0, c0 = GS, GS + 4, GS + 8
r0, r1_, r2, r3 = GS + 12, GS + 13, GS + 14, GS + 15


def add_ab():
    for e in range(4):
        A("v_add_f32 %s, %s, %s" % (v(a0 + e), v(a0 + e), v(b0 + e)))


BC = "row_newbcast:0" + DPP
NS_ = P.get("NSETS", 2)
GSETS = [GS, GS + 16, 112][:NS_]
GAP = P.get("GAP", 3)


def add_ab2(a):
    for e in range(4):
        A("v_add_f32 %s, %s, %s" % (v(a + e), v(a + e), v(a + 4 + e)))


def g_treduce_to(a, out):
    A("v_permlane16_swap_b32 %s, %s" % (v(a), v(a + 1)))
    A("v_permlane16_swap_b32 %s, %s" % (v(a + 2), v(a + 3)))
    A("v_add_f32 %s, %s, %s" % (v(a), v(a), v(a + 1)))
    A("v_add_f32 %s, %s, %s" % (v(a + 2), v(a + 2), v(a + 3)))
    A("v_permlane32_swap_b32 %s, %s" % (v(a), v(a + 2)))
    A("v_add_f32 %s, %s, %s" % (v(out), v(a), v(a + 2)))


A("ds_read_u16 %s, %s" % (v(r3), v(gW1x)))
for e in range(4):
    A("v_mov_b32 %s, 0" % v(c0 + e))
A("s_barrier")
sleep(P.get("DI_O", 0))
stamp("G", 7)


T_ = GS + 16


def o_post():
    c, f0, f1, t = c0, T_ + 4, T_ + 5, T_
    A("v_max_f32 %s, %s, %s" % (v(r0), v(c), v(c + 2)))
    g_allreduce("v_max_f32", r0, r1_)
    A("v_sub_f32 %s, %s, %s" % (v(f0), v(c), v(r0)))
    A("v_sub_f32 %s, %s, %s" % (v(f1), v(c + 2), v(r0)))
    A("v_exp_f32 %s, %s" % (v(f0), v(f0)))
    A("v_exp_f32 %s, %s" % (v(f1), v(f1)))
    with Cap() as c1:
        A("v_mul_f32 %s, %s, %s" % (v(r1_), v(f0), v(c + 1)))
        A("v_fmac_f32 %s, %s, %s" % (v(r1_), v(f1), v(c + 3)))
        g_allreduce("v_add_f32", r1_, r2)
        A("v_rcp_f32 %s, %s" % (v(r1_), v(r1_)))
    with Cap() as c2:
        for e in range(4):
            A("v_mul_f32_dpp %s, %s, %s %s" % (v(t + e), v(f0), v(a0 + e), BC))
        for e in range(4):
            A("v_fmac_f32_dpp %s, %s, %s %s" % (v(t + e), v(f1), v(b0 + e), BC))
        g_treduce_to(t, r0)
    L1_, L2_ = c1.lines, c2.lines
    A(L1_[0]); A(L1_[1])
    for l in interleave(L2_, L1_[2:]):
        A(l)
    A("v_mul_f32_dpp %s, %s, %s %s" % (v(r0), v(r1_), v(r0), BC))


def o_pre():
    c, f0, f1 = c0, T_ + 4, T_ + 5
    A("v_max_f32 %s, %s, %s" % (v(r0), v(c), v(c + 2)))
    g_allreduce("v_max_f32", r0, r1_)
    A("v_sub_f32 %s, %s, %s" % (v(f0), v(c), v(r0)))
    A("v_sub_f32 %s, %s, %s" % (v(f1), v(c + 2), v(r0)))
    A("v_exp_f32 %s, %s" % (v(f0), v(f0)))
    A("v_exp_f32 %s, %s" % (v(f1), v(f1)))
    A("v_mul_f32 %s, %s, %s" % (v(r1_), v(f0), v(c + 1)))
    A("v_fmac_f32 %s, %s, %s" % (v(r1_), v(f1), v(c + 3)))
    g_allreduce("v_add_f32", r1_, r2)
    A("v_rcp_f32 %s, %s" % (v(r1_), v(r1_)))
    A("v_mul_f32 %s, %s, %s" % (v(f0), v(f0), v(r1_)))
    A("v_mul_f32 %s, %s, %s" % (v(f1), v(f1), v(r1_)))
    A("v_mov_b32_dpp %s, %s %s" % (v(f0), v(f0), BC))
    A("v_mov_b32_dpp %s, %s %s" % (v(f1 + 1), v(f1), BC))


def o_post2():
    f0, f1 = T_ + 4, T_ + 6
    for h in range(2):
        A("v_pk_mul_f32 %s, %s, %s op_sel_hi:[0,1]" % (v(a0 + 2 * h, 2), v(f0, 2), v(a0 + 2 * h, 2)))
    for h in range(2):
        A("v_pk_fma_f32 %s, %s, %s, %s op_sel_hi:[0,1,1]" % (v(a0 + 2 * h, 2), v(f1, 2), v(b0 + 2 * h, 2), v(a0 + 2 * h, 2)))
    g_treduce_to(a0, r0)


if P.get("SPLIT", 0):
    split_poll("global_load_dwordx4 %s, %s, %s sc1" % (v(c0, 4), v(gOml), pWJ), 0x0001000100010001, list(range(c0, c0 + 4)),
               ["global_load_dwordx4 %s, %s, %s sc1" % (v(a0, 4), v(gOg), pWJ),
                "global_load_dwordx4 %s, %s, %s offset:512 sc1" % (v(b0, 4), v(gOg), pWJ)], range(a0, a0 + 8), o_pre, o_post2, ck=0)
else:
    opt_poll("global_load_dwordx4 %s, %s, %s sc1" % (v(c0, 4), v(gOml), pWJ), 0x0001000100010001, range(c0, c0 + 4),
             ["global_load_dwordx4 %s, %s, %s sc1" % (v(a0, 4), v(gOg), pWJ),
              "global_load_dwordx4 %s, %s, %s offset:512 sc1" % (v(b0, 4), v(gOg), pWJ)], range(a0, a0 + 8), o_post, [r0], ck=0)
stamp("G")
A("v_cvt_pk_bf16_f32 %s, %s, %s" % (v(r0), v(r0), v(r0)))
A("ds_write_b16 %s, %s" % (v(gOlds), v(r0)))
A("s_waitcnt lgkmcnt(0)")
cycg(3)
A("s_barrier")
cycg(4)

A("v_lshlrev_b32 %s, 16, %s" % (v(r3), v(r3)))
A("s_barrier")
A("s_cmp_eq_u32 %s, 0" % sL)
A("s_cbranch_scc1 G_CS1")
sleep(P["D_W1"])
A.label("G_CS1_DONE")
with Cap() as cs1:
    A("s_mul_i32 %s, %s, %d" % (sT0, sHi, 16 * 896))
    A("s_add_u32 %s, %s, %d" % (sT0, sT0, E4 - E4C))
    A("v_subrev_u32 %s, %s, %s" % (v(r2), sT0, v(gW2g)))
    poll(["global_load_dwordx4 %s, %s, %s sc1" % (v(a0, 4), v(r2), pWJ),
          "global_load_dwordx4 %s, %s, %s offset:896 sc1" % (v(b0, 4), v(r2), pWJ)],
         [(a0 + e, b0 + e) for e in range(4)])
    add_ab()
    g_treduce(a0)
    A("v_add_f32_dpp %s, %s, %s row_ror:8%s" % (v(gCs1), v(a0), v(a0), DPP))
    A("v_lshlrev_b32 %s, 16, %s" % (v(gB1), v(gB1)))
    A("v_lshlrev_b32 %s, 16, %s" % (v(gB2), v(gB2)))
OOL.append(["G_CS1:"] + cs1.lines + ["s_branch G_CS1_DONE"])
stamp("G", 8)


def w1_issue(a):
    A("global_load_dwordx4 %s, %s, %s sc1" % (v(a, 4), v(gW1g), pWL))
    A("global_load_dwordx4 %s, %s, %s offset:%d sc1" % (v(a + 4, 4), v(gW1g), pWL, 1024 if P.get("E3L", 1) else 512))


def w1_post(a):
    add_ab2(a)
    g_treduce_to(a, r0)
    A("v_add_f32_dpp %s, %s, %s row_ror:4%s" % (v(r0), v(r0), v(r0), DPP))
    A("v_add_f32_dpp %s, %s, %s row_ror:8%s" % (v(r0), v(r0), v(r0), DPP))


if P.get("E3B", 1):
    pk, t_ = GS, GS + 4
    ld = "global_load_dwordx4 %s, %s, %s sc1" % (v(pk, 4), v(gW1g), pWL)
    A(ld)
    A.label("W1B_CHK")
    A("s_waitcnt vmcnt(0)")
    A("v_dot2_f32_bf16 %s, %s, s47, 0" % (v(t_), v(pk)))
    for e in range(1, 4):
        A("v_dot2_f32_bf16 %s, %s, s47, %s" % (v(t_), v(pk + e), v(t_)))
    A("v_cmp_u_f32 vcc, %s, %s" % (v(t_), v(t_)))
    A("s_cbranch_vccnz W1B_RETRY")
    A.label("W1B_OK")
    OOL.append(["W1B_RETRY:", "s_mov_b64 exec, vcc", ld, "s_mov_b64 exec, -1", "s_sub_u32 %s, %s, 1" % (sBud, sBud),
                "s_cbranch_scc0 W1B_CHK", "s_mov_b32 %s, 0" % sBud, "s_waitcnt vmcnt(0)", "s_branch W1B_OK"])
    A("v_permlane32_swap_b32 %s, %s" % (v(pk), v(pk + 2)))
    A("v_permlane32_swap_b32 %s, %s" % (v(pk + 1), v(pk + 3)))
    for e, (src, sel) in enumerate(((0, "s61"), (0, "s46"), (1, "s61"), (1, "s46"))):
        A("v_dot2_f32_bf16 %s, %s, %s, 0" % (v(t_ + e), v(pk + src), sel))
        A("v_dot2_f32_bf16 %s, %s, %s, %s" % (v(t_ + e), v(pk + 2 + src), sel, v(t_ + e)))
    A("v_permlane16_swap_b32 %s, %s" % (v(t_), v(t_ + 2)))
    A("v_permlane16_swap_b32 %s, %s" % (v(t_ + 1), v(t_ + 3)))
    A("v_add_f32 %s, %s, %s" % (v(t_), v(t_), v(t_ + 2)))
    A("v_add_f32 %s, %s, %s" % (v(t_ + 1), v(t_ + 1), v(t_ + 3)))
    A("v_cndmask_b32 %s, %s, %s, s[48:49]" % (v(t_ + 2), v(t_ + 1), v(t_)))
    A("v_cndmask_b32 %s, %s, %s, s[48:49]" % (v(r0), v(t_), v(t_ + 1)))
    A("v_add_f32_dpp %s, %s, %s row_ror:8%s" % (v(r0), v(t_ + 2), v(r0), DPP))
    A("v_add_f32_dpp %s, %s, %s %s" % (v(r0), v(r0), v(r0), X2))
    A("v_add_f32_dpp %s, %s, %s row_shr:4 row_mask:0xf bank_mask:0xa" % (v(r0), v(r0), v(r0)))
else:
    fast_poll(w1_issue, None, w1_post, None, [r0], GS)
stamp("G")
A("v_add_f32 %s, %s, %s" % (v(r0), v(r0), v(r3)))
A("v_cvt_pk_bf16_f32 %s, %s, %s" % (v(r0), v(r0), v(r0)))
if P.get("E3B", 1):
    set_exec(0xF0F0F0F0F0F0F0F0)
A("ds_write_b16 %s, %s" % (v(gW1lds), v(r0)))
if P.get("E3B", 1):
    set_exec(-1)
A("s_waitcnt lgkmcnt(0)")
A("s_barrier")

k0 = -2 * math.log2(math.e) * math.sqrt(2 / math.pi)
A("v_mov_b32 %s, %s" % (v(r2), f32(k0)))
A("s_barrier")
A("s_cmp_eq_u32 %s, 7" % sWave)
A("s_cbranch_scc1 G_W2_SKIP")
sleep(P.get("DI_W2", 0))
stamp("G", 12)


def add_to(t):
    for e in range(4):
        A("v_add_f32 %s, %s, %s" % (v(t + e), v(a0 + e), v(b0 + e)))


def w2_post():
    with Cap() as c1:
        stats_math(c0, T_ + 4, 1.0 + 1e-5, 1e-10)
        A("v_fma_f32 %s, -%s, %s, %s" % (v(r3), v(T_ + 5), v(gCs1), v(gB1)))
    with Cap() as c2:
        add_to(T_)
        g_treduce_to(T_, r0)
        A("v_add_f32_dpp %s, %s, %s row_ror:8%s" % (v(r0), v(r0), v(r0), DPP))
    for l in interleave(c1.lines, c2.lines):
        A(l)
    A("v_fma_f32 %s, %s, %s, %s" % (v(r0), v(r0), v(T_ + 4), v(r3)))


def pk_add(a):
    for h in range(2):
        A("v_pk_add_f32 %s, %s, %s" % (v(a + 2 * h, 2), v(a + 2 * h, 2), v(a + 4 + 2 * h, 2)))


def w2_pre():
    stats_math(c0, T_ + 4, 1.0 + 1e-5, 1e-10)
    A("v_fma_f32 %s, -%s, %s, %s" % (v(r3), v(T_ + 5), v(gCs1), v(gB1)))


def w2_post2():
    pk_add(a0)
    g_treduce_to(a0, r0)
    A("v_add_f32_dpp %s, %s, %s row_ror:8%s" % (v(r0), v(r0), v(r0), DPP))
    A("v_fma_f32 %s, %s, %s, %s" % (v(r0), v(r0), v(T_ + 4), v(r3)))


if P.get("SPLIT", 0):
    split_poll("global_load_dword %s, %s, %s sc1" % (v(c0), v(gW2s), pWJ), 0xFFFFFFFF, [c0],
               ["global_load_dwordx4 %s, %s, %s sc1" % (v(a0, 4), v(gW2g), pWJ),
                "global_load_dwordx4 %s, %s, %s offset:896 sc1" % (v(b0, 4), v(gW2g), pWJ)], range(a0, a0 + 8), w2_pre, w2_post2, ck=5)
else:
    opt_poll("global_load_dword %s, %s, %s sc1" % (v(c0), v(gW2s), pWJ), 0xFFFFFFFF, [c0],
             ["global_load_dwordx4 %s, %s, %s sc1" % (v(a0, 4), v(gW2g), pWJ),
              "global_load_dwordx4 %s, %s, %s offset:896 sc1" % (v(b0, 4), v(gW2g), pWJ)], range(a0, a0 + 8), w2_post, [r0], ck=5)
stamp("G")
RX = GS + 27
A("v_mul_f32 %s, %s, %s" % (v(r1_), v(r0), v(r0)))
A("v_fmac_f32 %s, %s, %s" % (v(r2), f32(k0 * 0.044715), v(r1_)))
A("v_mul_f32 %s, %s, %s" % (v(r2), v(r2), v(r0)))
A("v_exp_f32 %s, %s" % (v(r2), v(r2)))
A("v_add_f32 %s, 1.0, %s" % (v(r2), v(r2)))
A("v_rcp_f32 %s, %s" % (v(r2), v(r2)))
A("v_mul_f32 %s, %s, %s" % (v(r0), v(r0), v(r2)))
A("v_cvt_pk_bf16_f32 %s, %s, %s" % (v(r0), v(r0), v(r0)))
A("ds_write_b16 %s, %s" % (v(gW2lds), v(r0)))
A("s_waitcnt lgkmcnt(0)")
cycg(8)
A.label("G_W2_SKIP")
A("s_barrier")
cycg(9)
if STAMP == 6:
    A("s_waitcnt lgkmcnt(0)")
    for k in range(10):
        A("v_writelane_b32 v15, s%d, %d" % (80 + 2 * k, 32 + k))

A("s_cmp_eq_u32 %s, 0" % sL)
A("s_cbranch_scc1 G_X_GO")
A("s_cmp_lg_u32 %s, 0" % sLo)
A("s_cbranch_scc1 L_EXIT")
A("s_cmp_lg_u32 %s, %s" % (sWave, sJ))
A("s_cbranch_scc1 L_EXIT")
A.label("G_X_GO")


def xpre():
    A("v_lshlrev_b32 %s, 16, %s" % (v(r3), v(r3)))


A("global_load_ushort %s, %s, %s sc1" % (v(RX), v(gXr), pWJ))
A.label("G_RX_CHK")
A("s_waitcnt vmcnt(0)")
A("v_lshlrev_b32 %s, 16, %s" % (v(r3), v(RX)))
A("v_cmp_u_f32 vcc, %s, %s" % (v(r3), v(r3)))
A("s_cbranch_vccnz G_RX_RETRY")
A.label("G_RX_OK")
OOL.append(["G_RX_RETRY:", "global_load_ushort %s, %s, %s sc1" % (v(RX), v(gXr), pWJ),
            "s_sub_u32 %s, %s, 1" % (sBud, sBud), "s_cbranch_scc0 G_RX_CHK", "s_mov_b32 %s, 0" % sBud, "s_branch G_RX_OK"])
A("v_add_f32 %s, %s, %s" % (v(r3), v(r3), v(gB2)))
A("s_barrier")
sleep(P["D_X"])
stamp("G", 13)


def x_post():
    pk_add(a0)
    g_treduce_to(a0, r0)


opt_poll(None, 0, [], ["global_load_dwordx4 %s, %s, %s sc1" % (v(a0, 4), v(gXg), pWL),
                       "global_load_dwordx4 %s, %s, %s offset:256 sc1" % (v(b0, 4), v(gXg), pWL)], range(a0, a0 + 8), x_post, [r0])
stamp("G")
A("v_add_f32 %s, %s, %s" % (v(r0), v(r0), v(r3)))
A("v_cvt_pk_bf16_f32 %s, %s, %s" % (v(r0), v(r0), v(r0)))
A("s_cmp_lg_u32 %s, 0" % sL)
A("s_cbranch_scc1 G_FINAL")
A("ds_write_b16 %s, %s" % (v(gXlds), v(r0)))
A("s_mov_b32 %s, 1" % sL)
padd(pWL, pWL, LSTR)
A("s_waitcnt lgkmcnt(0)")
A("s_barrier")
A("s_waitcnt vmcnt(0)")
A("s_branch G_ENTRY")
A.label("G_FINAL")
sleep(P.get("ENDSLEEP", 0))
if "ECHO" in P:
    A("s_memrealtime s[82:83]")
    A("s_sub_u32 s80, s80, s78")
    A("s_waitcnt lgkmcnt(0)")
    A("s_add_u32 s80, s80, s82")
    A.label("ECHO_SPIN")
    A("s_memrealtime s[82:83]")
    A("s_waitcnt lgkmcnt(0)")
    A("s_cmp_lt_u32 s82, s80")
    A("s_cbranch_scc1 ECHO_SPIN")
A("global_store_short %s, %s, %s" % (v(gOut), v(r0), pOUT))
A.label("L_EXIT")
stamp_dump()
A.label("L_END")
A("s_endpgm")
for blk in OOL:
    for l in blk:
        A(l)
A("s_endpgm")

A.fix_hazards()

hdr = open("cdna_kernels/%s.s.ref" % NAME).read().split("; Override launch")[0]
out = hdr + """; @launch grid=(256,1,1) block=(768,1,1) lds=%d
;
; One persistent launch, one workgroup per CU (12 waves: 4 "service" + 8 "attention/gather" waves).
; K/V window and all weight tiles are loaded once and stay on chip for both layers. Stages hand data to
; each other through d_ws: buffers are cleared to a signalling-NaN sentinel inside the launch (guarded by
; per-workgroup records tagged with a launch nonce published in d_debug) and polled with sc1 loads.
; Workgroups with equal (id & 7) form a group; a group whose members report the same XCC id uses plain
; stores for its private exchanges, any other placement falls back to write-through (sc1) stores.
; Generated by dev/gen.py (hand-written generator, wait states inserted by dev/asmlib.py).
.amdgcn_target "amdgcn-amd-amdhsa--gfx950"
.text
.globl %s_kernel
.p2align 8
.type %s_kernel,@function
%s_kernel:
%s
    ; pad the code section so that the 12 KB code prefetch stays inside it
    .fill ((12288 + 256 - (. - %s_kernel)) / 4), 4, 0xbf810000
.section .rodata,"a"
.p2align 6
.amdhsa_kernel %s_kernel
  .amdhsa_next_free_vgpr 168
  .amdhsa_next_free_sgpr 102
  .amdhsa_accum_offset 168
  .amdhsa_group_segment_fixed_size 0
  .amdhsa_kernarg_size 104
  .amdhsa_user_sgpr_count 2
  .amdhsa_user_sgpr_kernarg_segment_ptr 1
  .amdhsa_system_sgpr_workgroup_id_x 1
.end_amdhsa_kernel
""" % (LDS_TOTAL, NAME, NAME, NAME, A.text(), NAME, NAME)
open(sys.argv[1], "w").write(out)
print("wrote", sys.argv[1], "instructions:", sum(1 for x in A.ins if not x.label), "LDS", LDS_TOTAL)
```

```python
import sys, math, struct, os
from asmlib import Asm

NAME = "interleave_layers__sliding_block_cached__mixer_channel_mlp__decode"

P = dict(B0POS=0, W=64, NV1=8, D_A0=70, NSL=6, NLATE=1, D_O=0, D_W1=10, D_W2=0, D_X=9, D_A=0, NT="", STAMP=0, FORCE_SAFE=0, PREF=1)
for a in sys.argv[2:]:
    k, v_ = a.split("=")
    P[k] = int(v_) if v_.lstrip("-").isdigit() else v_


def f32(x):
    return "0x%08x" % struct.unpack("<I", struct.pack("<f", x))[0]


LSTR = 0x200000
JSTR = 196608
E1, E1S, E4C = 0, 40960, 45056
E1T = 0x200000 * 2
REC = 0x1D8000
E2, E4, E4R, E2S, E4S = 65536, 131072, 188416, 61440, 193536
E3, E5 = 0x180000, 0x1C0000
SENT = 0x7F817F81
LW_Q, LW_O, LW_2, LW_1 = 0, 16384, 32768, 61440
RS_, RS1 = 320, 64
XOP = 68608
QOP = XOP + 5 * RS_
OOP = QOP + 4 * RS_
X1OP = OOP + 4 * RS_
HOP = X1OP + 5 * RS1
ML = HOP + 448
FLG = ML + 256
ST0 = FLG + 16
NONCE = ST0 + 32
AP = (NONCE + 16 + 1023) // 1024 * 1024
APB = 1152
LDS_TOTAL = AP + 16 * APB
assert all(x % 16 == 0 for x in (XOP, QOP, OOP, X1OP, HOP, ML))

sWave, sJ, sS, sHi, sLo, sR1, sC1, sL, sBud = "s3", "s4", "s5", "s6", "s7", "s8", "s9", "s10", "s11"
sT0, sT1, sT2, sT3 = "s12", "s13", "s14", "s15"
pX, pK, pV, pWQ, pWO, pW1, pB1, pW2, pB2, pOUT, pDBG, pWS = (
    "s[16:17]", "s[18:19]", "s[20:21]", "s[22:23]", "s[24:25]", "s[28:29]", "s[30:31]", "s[32:33]", "s[34:35]",
    "s[36:37]", "s[38:39]", "s[40:41]")
pWL = "s[42:43]"
sFast = "s44"
sU = "s45"
mQ = ["s[50:51]", "s[52:53]", "s[54:55]", "s[56:57]"]
sPermLo, sPermHi = "s58", "s59"
sC = "s60"
pT = "s[62:63]"
pT2 = "s[64:65]"
sXcc = "s66"
sK0, sK1, sK2 = "s67", "s68", "s69"
mT = "s[70:71]"
pWJ = "s[72:73]"
pPC = "s[46:47]"
pN = "s[48:49]"

A = Asm()
NT = (" " + P["NT"]) if P["NT"] else ""
STAMP = P["STAMP"]


def v(n, cnt=1):
    return "v%d" % n if cnt == 1 else "v[%d:%d]" % (n, n + cnt - 1)


def smov64(pair, val):
    lo = int(pair[2:].split(":")[0])
    A("s_mov_b32 s%d, 0x%08x" % (lo, val & 0xFFFFFFFF))
    A("s_mov_b32 s%d, 0x%08x" % (lo + 1, val >> 32))


def exec_lines(val):
    if val == -1:
        return ["s_mov_b64 exec, -1"]
    if 0 <= val <= 64:
        return ["s_mov_b64 exec, %d" % val]
    return ["s_mov_b32 exec_lo, 0x%08x" % (val & 0xFFFFFFFF), "s_mov_b32 exec_hi, 0x%08x" % (val >> 32)]


def set_exec(val):
    for l in exec_lines(val):
        A(l)


def padd(dst, src, soff):
    d = int(dst[2:].split(":")[0]); s = int(src[2:].split(":")[0])
    A("s_add_u32 s%d, s%d, %s" % (d, s, soff))
    A("s_addc_u32 s%d, s%d, 0" % (d + 1, s + 1))


def sexpr(dst, terms, const=0, tmp=sT3):
    first = True
    for (r, m) in terms:
        t = dst if first else tmp
        if m == 1:
            if first:
                A("s_mov_b32 %s, %s" % (dst, r))
            else:
                A("s_add_u32 %s, %s, %s" % (dst, dst, r))
            first = False
            continue
        if m & (m - 1) == 0:
            A("s_lshl_b32 %s, %s, %d" % (t, r, m.bit_length() - 1))
        else:
            A("s_mul_i32 %s, %s, %d" % (t, r, m))
        if not first:
            A("s_add_u32 %s, %s, %s" % (dst, dst, t))
        first = False
    if first:
        A("s_mov_b32 %s, %d" % (dst, const))
    elif const:
        A("s_add_u32 %s, %s, %d" % (dst, dst, const))


def vexpr(dst, terms, sreg=None, const=0):
    first = True
    for (r, m) in terms:
        if first:
            if m == 1:
                A("v_mov_b32 %s, %s" % (v(dst), v(r)))
            elif m & (m - 1) == 0:
                A("v_lshlrev_b32 %s, %d, %s" % (v(dst), m.bit_length() - 1, v(r)))
            else:
                A("v_mul_u32_u24 %s, %d, %s" % (v(dst), m, v(r)))
            first = False
        else:
            assert m & (m - 1) == 0, "non power of two term must come first"
            A("v_lshl_add_u32 %s, %s, %d, %s" % (v(dst), v(r), m.bit_length() - 1, v(dst)))
    if sreg:
        A("v_add_u32 %s, %s, %s" % (v(dst), sreg, v(dst)))
    if const:
        A("v_add_u32 %s, %d, %s" % (v(dst), const, v(dst)))


DPP = " row_mask:0xf bank_mask:0xf"
X1 = "quad_perm:[1,0,3,2]" + DPP
X2 = "quad_perm:[2,3,0,1]" + DPP
HM = "row_half_mirror" + DPP
RM = "row_mirror" + DPP
_lab = [0]


def newlabel(p="L"):
    _lab[0] += 1
    return "%s_%d" % (p, _lab[0])


def sleep(n):
    while n > 0:
        k = min(n, 127)
        A("s_sleep %d" % k)
        n -= k


def g_treduce(a):
    A("v_permlane16_swap_b32 %s, %s" % (v(a), v(a + 1)))
    A("v_permlane16_swap_b32 %s, %s" % (v(a + 2), v(a + 3)))
    A("v_add_f32 %s, %s, %s" % (v(a), v(a), v(a + 1)))
    A("v_add_f32 %s, %s, %s" % (v(a + 2), v(a + 2), v(a + 3)))
    A("v_permlane32_swap_b32 %s, %s" % (v(a), v(a + 2)))
    A("v_add_f32 %s, %s, %s" % (v(a), v(a), v(a + 2)))


def g_allreduce(op, r, t):
    for sw in ("v_permlane16_swap_b32", "v_permlane32_swap_b32"):
        A("v_mov_b32 %s, %s" % (v(t), v(r)))
        A("%s %s, %s" % (sw, v(r), v(t)))
        A("%s %s, %s, %s" % (op, v(r), v(r), v(t)))


def budget_loop(top):
    A("s_sub_u32 %s, %s, 1" % (sBud, sBud))
    A("s_cbranch_scc0 %s" % top)
    A("s_mov_b32 %s, 0" % sBud)


def poll(loads, check_pairs, pre=None, nap=0):
    top, done = newlabel("POLL"), newlabel("PDONE")
    A.label(top)
    for l in loads:
        A(l)
    A("s_waitcnt vmcnt(0)")
    if pre:
        pre()
    first = True
    for (a, b) in check_pairs:
        if first:
            A("v_cmp_u_f32 vcc, %s, %s" % (v(a), v(b)))
            first = False
        else:
            A("v_cmp_u_f32 %s, %s, %s" % (mT, v(a), v(b)))
            A("s_or_b64 vcc, vcc, %s" % mT)
    A("s_cbranch_vccz %s" % done)
    sleep(nap)
    budget_loop(top)
    A.label(done)


def half(loads):
    import re
    if P.get("HALF") == 1:
        m = re.search(r"v\[(\d+):(\d+)\]", loads[1])
        for r_ in range(int(m.group(1)), int(m.group(2)) + 1):
            A("v_mov_b32 v%d, 0" % r_)
        return loads[:1]
    if P.get("HALF") == 2:
        out = []
        for l in loads:
            m = re.search(r"v\[(\d+):(\d+)\]", l)
            lo = int(m.group(1))
            A("v_mov_b32 v%d, 0" % (lo + 2)); A("v_mov_b32 v%d, 0" % (lo + 3))
            out.append(l.replace("dwordx4", "dwordx2").replace(m.group(0), "v[%d:%d]" % (lo, lo + 1)))
        return out
    return loads


def canary(load, pairs, mask, nap=0):
    set_exec(mask)
    poll([load], pairs, nap=nap)
    set_exec(-1)


def bulk(loads, mid, post, res):
    top, again, done = newlabel("BK"), newlabel("BKA"), newlabel("BKD")
    loads = half(loads)
    for l in loads:
        A(l)
    if mid:
        mid()
    A.label(top)
    A("s_waitcnt vmcnt(0)")
    post()
    A("v_cmp_u_f32 vcc, %s, %s" % (v(res[0]), v(res[-1])))
    A("s_cbranch_vccz %s" % done)
    for l in loads:
        A(l)
    budget_loop(top)
    A("s_waitcnt vmcnt(0)")
    A.label(done)


def round1(small, mask, loads, mid, post, res):
    top, done = newlabel("RD"), newlabel("RDD")
    loads = half(loads)
    A.label(top)
    set_exec(mask)
    A(small)
    set_exec(-1)
    for l in loads:
        A(l)
    A("s_waitcnt vmcnt(%d)" % len(loads))
    mid()
    A("s_waitcnt vmcnt(0)")
    post()
    A("v_cmp_u_f32 vcc, %s, %s" % (v(res[0]), v(res[-1])))
    A("s_cbranch_vccz %s" % done)
    budget_loop(top)
    A.label(done)


def pipe_poll(issue, n_small, n_bulk, mid, post, res, sets, gap):
    n = n_small + n_bulk
    k = len(sets)
    top, done = newlabel("PP"), newlabel("PPD")
    for i in range(k - 1):
        issue(sets[i])
        sleep(gap)
    A.label(top)
    for i in range(k):
        issue(sets[(i + k - 1) % k])
        if n_small:
            A("s_waitcnt vmcnt(%d)" % ((k - 1) * n + n_bulk))
            mid(sets[i])
        A("s_waitcnt vmcnt(%d)" % ((k - 1) * n))
        post(sets[i])
        A("v_cmp_u_f32 vcc, %s, %s" % (v(res[0]), v(res[-1])))
        A("s_cbranch_vccz %s" % done)
    budget_loop(top)
    A.label(done)


OOL = []


def interleave(c1, c2):
    out, i2 = [], 0
    for k, x in enumerate(c1):
        out.append(x)
        want = (k + 1) * len(c2) // max(1, len(c1) - 4)
        while i2 < min(want, len(c2)):
            out.append(c2[i2]); i2 += 1
    return out + c2[i2:]


class Cap:
    def __enter__(self):
        self.n = len(A.ins); return self

    def __exit__(self, *a):
        self.lines = [x.text for x in A.ins[self.n:]]
        del A.ins[self.n:]


def fast_poll_full(issue, mid, post, fin, res, a):
    top, again, done = newlabel("FP"), newlabel("FPR"), newlabel("FPD")
    A.label(top)
    issue(a)
    A("s_waitcnt vmcnt(0)")
    with Cap() as c2:
        post(a)
    if mid:
        with Cap() as c1:
            mid(a)
        for l in interleave(c1.lines, c2.lines):
            A(l)
    else:
        for l in c2.lines:
            A(l)
    if fin:
        fin(a)
    A("v_cmp_u_f32 vcc, %s, %s" % (v(res[0]), v(res[-1])))
    A("s_cbranch_vccnz %s" % again)
    A.label(done)
    OOL.append([again + ":", "s_sub_u32 %s, %s, 1" % (sBud, sBud), "s_cbranch_scc0 %s" % top,
                "s_mov_b32 %s, 0" % sBud, "s_branch %s" % done])


def fast_poll(issue, mid, post, fin, res, a):
    if not P.get("MPOLL", 1):
        return fast_poll_full(issue, mid, post, fin, res, a)
    with Cap() as ci:
        issue(a)
    loads = [l for l in ci.lines if l.startswith("global_load")]
    small = len(loads) == 3
    chk, again, done = newlabel("MPC"), newlabel("MPR"), newlabel("MPD")
    if small:
        n = 4 if "dwordx4" in loads[0] else 2
        for e in range(n):
            A("v_mov_b32 %s, 0" % v(a + 8 + e))
    for l in ci.lines:
        A(l)
    A.label(chk)
    A("s_waitcnt vmcnt(0)")
    t = a + 20
    A("v_add_f32 %s, %s, %s" % (v(t), v(a), v(a + 1)))
    A("v_add_f32 %s, %s, %s" % (v(t + 1), v(a + 2), v(a + 3)))
    A("v_add_f32 %s, %s, %s" % (v(t + 2), v(a + 4), v(a + 5)))
    A("v_add_f32 %s, %s, %s" % (v(t + 3), v(a + 6), v(a + 7)))
    if small:
        A("v_add_f32 %s, %s, %s" % (v(t), v(t), v(a + 8)))
        A("v_add_f32 %s, %s, %s" % (v(t + 1), v(t + 1), v(a + 9)))
        if n == 4:
            A("v_add_f32 %s, %s, %s" % (v(t + 2), v(t + 2), v(a + 10)))
            A("v_add_f32 %s, %s, %s" % (v(t + 3), v(t + 3), v(a + 11)))
    A("v_add_f32 %s, %s, %s" % (v(t), v(t), v(t + 1)))
    A("v_add_f32 %s, %s, %s" % (v(t + 2), v(t + 2), v(t + 3)))
    A("v_cmp_u_f32 vcc, %s, %s" % (v(t), v(t + 2)))
    A("s_cbranch_vccnz %s" % again)
    A.label(done)
    with Cap() as c2:
        post(a)
    if mid:
        with Cap() as c1:
            mid(a)
        for l in interleave(c1.lines, c2.lines):
            A(l)
    else:
        for l in c2.lines:
            A(l)
    if fin:
        fin(a)
    blk = [again + ":"]
    if small:
        em = [l for l in ci.lines if l.startswith("s_mov") and "-1" not in l]
        blk += em + ["s_and_b64 exec, exec, vcc", loads[0]]
    blk += ["s_mov_b64 exec, vcc"] + loads[-2:] + ["s_mov_b64 exec, -1",
            "s_sub_u32 %s, %s, 1" % (sBud, sBud), "s_cbranch_scc0 %s" % chk,
            "s_mov_b32 %s, 0" % sBud, "s_waitcnt vmcnt(0)", "s_branch %s" % done]
    OOL.append(blk)


def opt_poll(small, smask, sregs, loads, lregs, post, res, ck=None):
    top, done = newlabel("OP"), newlabel("OPD")
    cand, sm = "s[70:71]", "s[64:65]"
    regs = list(lregs) + (list(sregs) if small else [])
    if len(regs) % 2:
        regs.append(regs[-1])
    if small:
        smov64(sm, smask)
    A("s_mov_b64 %s, -1" % cand)
    if ck is not None:
        cycg(ck)
        if STAMP == 6:
            A("s_mov_b32 s77, %s" % sBud)
    A.label(top)
    if small:
        A("s_and_b64 exec, %s, %s" % (cand, sm))
        A(small)
        A("s_mov_b64 exec, %s" % cand)
    for l in loads:
        A(l)
    A("s_sub_u32 %s, %s, 1" % (sBud, sBud))
    A("s_cbranch_scc1 %s_X" % top)
    A("s_waitcnt vmcnt(0)")
    for i in range(0, len(regs), 2):
        A("v_cmpx_o_f32 vcc, %s, %s" % (v(regs[i]), v(regs[i + 1])))
    A("s_andn2_b64 %s, %s, exec" % (cand, cand))
    A("s_mov_b64 exec, %s" % cand)
    A("s_cbranch_scc1 %s" % top)
    A.label(done)
    A("s_mov_b64 exec, -1")
    if ck is not None:
        cycg(ck + 1)
        if STAMP == 6:
            A("s_sub_u32 s77, s77, %s" % sBud)
            A("v_writelane_b32 v15, s77, %d" % (48 + ck))
    post()
    if ck is not None:
        cycg(ck + 2)
    OOL.append([top + "_X:", "s_mov_b32 %s, 0" % sBud, "s_waitcnt vmcnt(0)", "s_branch %s" % done])


def split_poll(small, smask, sregs, loads, lregs, pre, post, ck=None):
    top, fm, slow, done = newlabel("SP"), newlabel("SPF"), newlabel("SPS"), newlabel("SPD")
    cand, sm = "s[70:71]", "s[64:65]"
    sr = list(sregs) + ([sregs[-1]] if len(sregs) % 2 else [])
    lr = list(lregs)
    smov64(sm, smask)
    A("s_mov_b64 %s, -1" % cand)
    if ck is not None:
        cycg(ck)
    A("s_mov_b64 exec, %s" % sm)
    A(small)
    A("s_mov_b64 exec, -1")
    for l in loads:
        A(l)
    A("s_waitcnt vmcnt(%d)" % len(loads))
    for i in range(0, len(sr), 2):
        A("v_cmpx_o_f32 vcc, %s, %s" % (v(sr[i]), v(sr[i + 1])))
    A("s_andn2_b64 vcc, %s, exec" % cand)
    A("s_mov_b64 exec, -1")
    A("s_cbranch_scc1 %s" % slow)
    A.label(fm)
    pre()
    A("s_branch %s_C" % top)
    A.label(top)
    for l in loads:
        A(l)
    A("s_sub_u32 %s, %s, 1" % (sBud, sBud))
    A("s_cbranch_scc1 %s_X" % top)
    A.label(top + "_C")
    A("s_waitcnt vmcnt(0)")
    for i in range(0, len(lr), 2):
        A("v_cmpx_o_f32 vcc, %s, %s" % (v(lr[i]), v(lr[i + 1])))
    A("s_andn2_b64 %s, %s, exec" % (cand, cand))
    A("s_mov_b64 exec, %s" % cand)
    A("s_cbranch_scc1 %s" % top)
    A.label(done)
    A("s_mov_b64 exec, -1")
    if ck is not None:
        cycg(ck + 1)
    post()
    if ck is not None:
        cycg(ck + 2)
    OOL.append([top + "_X:", "s_mov_b32 %s, 0" % sBud, "s_waitcnt vmcnt(0)", "s_branch %s" % done])
    allr = lr + sr
    blk = [slow + ":", "s_waitcnt vmcnt(0)"]
    blk += ["v_cmpx_o_f32 vcc, %s, %s" % (v(allr[i]), v(allr[i + 1])) for i in range(0, len(allr), 2)]
    blk += ["s_andn2_b64 %s, %s, exec" % (cand, cand), "s_cbranch_scc0 %s_E" % slow,
            "s_and_b64 exec, %s, %s" % (cand, sm), small, "s_mov_b64 exec, %s" % cand] + loads
    blk += ["s_sub_u32 %s, %s, 1" % (sBud, sBud), "s_cbranch_scc0 %s" % slow, "s_mov_b32 %s, 0" % sBud, "s_waitcnt vmcnt(0)",
            slow + "_E:", "s_mov_b64 exec, -1", "s_mov_b64 %s, -1" % cand, "s_branch %s" % fm]
    OOL.append(blk)


def stats_math(c, t, eps_mul, eps_add):
    A("v_add_f32_dpp %s, %s, %s %s" % (v(t), v(c), v(c), X1))
    for m in (X2, HM, RM):
        A("v_add_f32_dpp %s, %s, %s %s" % (v(t), v(t), v(t), m))
    A("v_readlane_b32 %s, %s, 0" % (sT0, v(t)))
    A("v_readlane_b32 %s, %s, 16" % (sT1, v(t)))
    A("v_mov_b32 %s, %s" % (v(t + 2), f32(1 / 512)))
    A("v_mov_b32 %s, %s" % (v(t + 3), f32(eps_add)))
    A("v_mul_f32 %s, %s, %s" % (v(t + 1), sT0, v(t + 2)))
    A("v_mul_f32 %s, %s, %s" % (v(t), sT1, v(t + 2)))
    A("v_fma_f32 %s, -%s, %s, %s" % (v(t), v(t + 1), v(t + 1), v(t)))
    if eps_mul == 1.0:
        A("v_add_f32 %s, abs(%s), %s" % (v(t), v(t), v(t + 3)))
    else:
        A("v_mov_b32 %s, %s" % (v(t + 2), f32(eps_mul)))
        A("v_fma_f32 %s, abs(%s), %s, %s" % (v(t), v(t), v(t + 2), v(t + 3)))
    A("v_rsq_f32 %s, %s" % (v(t), v(t)))
    A("v_mul_f32 %s, %s, %s" % (v(t + 1), v(t + 1), v(t)))


def store_intra(insn):
    ls, le = newlabel("SAFE"), newlabel("SEND")
    A("s_cmp_eq_u32 %s, 0" % sFast)
    A("s_cbranch_scc1 %s" % ls)
    for i in insn:
        A(i)
    A.label(le)
    OOL.append([ls + ":"] + [i + (" sc1" if i.startswith("global_store") else "") for i in insn] + ["s_branch %s" % le])


_st = {"G": 0, "S": 0}


def stamp(kind, idx=None):
    if idx is None:
        n = _st[kind]; _st[kind] += 1
    else:
        n = idx
    if "ECHO" in P and kind == "G" and P["ECHO"] % 100 == n:
        lab = newlabel("ECHO")
        A("s_cmp_lg_u32 %s, %d" % (sL, P["ECHO"] // 100))
        A("s_cbranch_scc1 %s" % lab)
        A("s_waitcnt lgkmcnt(0)")
        A("s_memrealtime s[80:81]")
        A("s_waitcnt lgkmcnt(0)")
        A.label(lab)
    if not STAMP:
        return
    if STAMP == 2 and not (kind == "G" and n in (2, 6)):
        return
    if STAMP in (4, 5, 6):
        return
    if STAMP == 3:
        A("s_lshl_b32 s76, %s, 4" % sL)
        A("s_add_u32 m0, s76, %d" % n)
        A("s_nop 0")
        A("v_writelane_b32 v15, %s, m0" % sBud)
        return
    A("s_waitcnt lgkmcnt(0)")
    A("s_memrealtime s[74:75]")
    A("s_lshl_b32 s76, %s, 4" % sL)
    A("s_add_u32 m0, s76, %d" % n)
    A("s_waitcnt lgkmcnt(0)")
    A("v_writelane_b32 v15, s74, m0")


def cyc(k):
    if STAMP == 4:
        A("s_memtime s[%d:%d]" % (80 + 2 * k, 81 + 2 * k))


def cycs(k):
    if STAMP == 5:
        A("s_memtime s[%d:%d]" % (80 + 2 * k, 81 + 2 * k))


def cycg(k):
    if STAMP == 6:
        A("s_memtime s[%d:%d]" % (80 + 2 * k, 81 + 2 * k))


def cycs_dump(n):
    if STAMP == 5:
        A("s_waitcnt lgkmcnt(0)")
        for k in range(n):
            A("v_writelane_b32 v15, s%d, %d" % (80 + 2 * k, 32 + k))


def cyc_dump(n):
    if STAMP == 4:
        A("s_waitcnt lgkmcnt(0)")
        for k in range(n):
            A("v_writelane_b32 v15, s%d, %d" % (80 + 2 * k, 32 + k))


def stamp_init():
    if STAMP:
        A("v_mov_b32 v15, 0")
        A("v_writelane_b32 v15, s78, 15")


def stamp_dump():
    if not STAMP:
        return
    A("s_mul_i32 s76, s2, 12")
    A("s_add_u32 s76, s76, %s" % sWave)
    A("s_lshl_b32 s76, s76, 8")
    A("s_add_u32 s76, s76, 0x800000")
    A("v_lshlrev_b32 v13, 2, v0")
    A("v_add_u32 v13, s76, v13")
    A("global_store_dword v13, v15, %s" % pWS)


def if_layer0():
    lab = newlabel("NOTL0")
    A("s_cmp_lg_u32 %s, 0" % sL)
    A("s_cbranch_scc1 %s" % lab)
    return lab


def ssync(k):
    top = newlabel("SSY")
    A("v_mov_b32 v5, %d" % (FLG + 4 + 4 * k))
    A("v_mov_b32 v6, 1")
    set_exec(1)
    A("ds_add_u32 v5, v6")
    set_exec(-1)
    A.label(top)
    A("ds_read_b32 v6, v5")
    A("s_waitcnt lgkmcnt(0)")
    A("v_readfirstlane_b32 %s, v6" % sT0)
    A("s_cmp_eq_u32 %s, 4" % sT0)
    done = newlabel("SSD")
    A("s_cbranch_scc1 %s" % done)
    budget_loop(top)
    A.label(done)


MFMA = "v_mfma_f32_16x16x32_bf16"
A("s_getpc_b64 %s" % pPC)
A("s_cmp_ge_u32 s2, 256")
A("s_cbranch_scc1 L_END")
if STAMP or "ECHO" in P:
    A("s_memrealtime s[78:79]")
A("s_load_dwordx16 s[16:31], s[0:1], 0")
A("s_load_dwordx8 s[32:39], s[0:1], 64")
A("s_load_dwordx2 s[40:41], s[0:1], 96")
if P["PREF"]:
    A("v_lshlrev_b32 v3, 4, v0")
    if P["PREF"] == 2:
        A("s_bfe_u32 %s, s2, 0x40003" % sT0)
        A("v_lshrrev_b32 v1, 6, v0")
        A("v_cmp_eq_u32 vcc, %s, v1" % sT0)
        A("s_and_b64 exec, exec, vcc")
    A("global_load_dwordx4 v[140:143], v3, %s offset:-4" % pPC)
    if P["PREF"] == 2:
        A("s_mov_b64 exec, -1")
A("v_lshrrev_b32 v1, 6, v0")
A("v_and_b32 v0, 63, v0")
A("v_readfirstlane_b32 %s, v1" % sWave)
A("s_and_b32 %s, s2, 7" % sJ)
A("s_lshr_b32 %s, s2, 3" % sS)
A("s_lshr_b32 %s, s2, 6" % sHi)
A("s_and_b32 %s, %s, 7" % (sLo, sS))
A("s_lshr_b32 %s, s2, 4" % sR1)
A("s_and_b32 %s, %s, 1" % (sC1, sS))
A("s_mov_b32 %s, 0" % sL)
A("s_mov_b32 %s, 100000" % sBud)
A("v_and_b32 v1, 15, v0")
A("v_lshrrev_b32 v2, 4, v0")
A("v_lshlrev_b32 v3, 4, v0")
A("s_mov_b32 %s, %s" % (sU, sWave))
A("s_sub_u32 %s, %s, 4" % (sWave, sWave))
A("s_cbranch_scc0 L_G")

WQ, WO, W1R, W2R, XR, DR, SS = 16, 32, 48, 56, 84, 112, 120
(sXa, sXb, sOrd, sX1a, sX1b, sHrd, sE1w, sE1sw, sAg, sAst, sQw, sCq0, sCq1, sCrd, sMlrd, sE2w, sE3w, sE4w, sE4sw, sE4rw, sE5w,
 sTr, sClr, sTr1) = range(144, 168)
SN = 8
sCsP = 139
sDma = 138
X0 = 132
ga, gb, gc = SS, SS + 4, SS + 8
STM = 0x0018001400120011
W2S = [int(c) for c in str(P.get("W2S", "x223"))[1:]]
assert sum(W2S) == 7


def w2_dma(part):
    k0_ = sum(W2S[:part])
    n = W2S[part]
    if not n:
        return
    sexpr(sT0, [(sJ, 224 * 1024), (sLo, 128), (sU, 7 * 8192)], k0_ * 8192)
    padd(pT, pW2, sT0)
    sexpr(sT1, [(sU, 7 * 1024)], LW_2)
    for k in range(k0_, k0_ + n):
        A("s_add_u32 m0, %s, %d" % (sT1, 1024 * k))
        A("global_load_lds_dwordx4 %s, %s%s" % (v(sDma), pT, NT))
        if k < k0_ + n - 1:
            padd(pT, pT, 8192)


W2BLK = "pass"
WOBLK = r'''# wo tile: 16 x 1 KB, 4 per wave
A("v_lshrrev_b32 v4, 3, v0")
A("v_and_b32 v5, 7, v0")
vexpr(sDma, [(4, 1024), (5, 16)])
sexpr(sT0, [(sJ, 512 * 1024), (sHi, 128 * 1024), (sU, 32 * 1024), (sLo, 128)])
padd(pT, pWO, sT0)
sexpr(sT1, [(sU, 4096)], LW_O)
for k in range(4):
    A("s_add_u32 m0, %s, %d" % (sT1, 1024 * k))
    A("global_load_lds_dwordx4 %s, %s%s" % (v(sDma), pT, NT))
    if k < 3:
        padd(pT, pT, 8192)
# w1 DMA: unit n = 64 i + l (i = 2u, 2u+1 clamped to 6): row = n/14, piece = n%14
sexpr(sT0, [(sR1, 32 * 3584), (sJ, 448), (sC1, 224)])
padd(pT, pW1, sT0)
for k in range(2):
    A("s_lshl_b32 %s, %s, 1" % (sT1, sU))
    if k:
        A("s_add_u32 %s, %s, 1" % (sT1, sT1))
        A("s_min_u32 %s, %s, 6" % (sT1, sT1))
    A("s_lshl_b32 %s, %s, 6" % (sT0, sT1))
    A("v_add_u32 v4, %s, v0" % sT0)
    A("v_mul_u32_u24 v5, 4682, v4")
    A("v_lshrrev_b32 v5, 16, v5")
    A("v_mul_u32_u24 v7, 14, v5")
    A("v_sub_u32 v4, v4, v7")
    A("v_mul_u32_u24 v5, 3584, v5")
    A("v_lshl_add_u32 v4, v4, 4, v5")
    A("s_lshl_b32 %s, %s, 10" % (sT0, sT1))
    A("s_add_u32 m0, %s, %d" % (sT0, LW_1))
    A("global_load_lds_dwordx4 v4, %s%s" % (pT, NT))
for n in range(448):
    assert (n * 4682) >> 16 == n // 14
'''
A("s_add_u32 %s, %s, 8" % (sWave, sU))
A("v_mov_b32 v4, %d" % FLG)
A("v_mov_b32 v6, 0")
A("v_mov_b32 v7, 0")
A("ds_write_b64 v4, v[6:7]")
A("ds_write_b64 v4, v[6:7] offset:8")
for i in range(4):
    A("v_mov_b32 %s, 0x%08x" % (v(SN + i), SENT))
A("s_and_b32 %s, %s, 1" % (sK0, sU))
A("s_lshr_b32 %s, %s, 1" % (sK1, sU))
sexpr(sT0, [(sS, 6144), (sU, 1536)])
A("v_add_u32 v7, %s, v3" % sT0)
sexpr(sT0, [("s2", 1280), (sK0, LSTR), (sK1, 640)], E3)
A("v_add_u32 v12, %s, v3" % sT0)
A("s_mul_i32 %s, %s, %d" % (sT0, sJ, JSTR))
A("v_lshrrev_b32 v13, 3, v0")
A("v_and_b32 v14, 7, v0")
vexpr(SS, [(13, 8192), (14, 16)])
sexpr(sT1, [(sHi, 128 * 8192), (sU, 32 * 8192), (sJ, 1024), (sLo, 128)])
sexpr(sT2, [(sU, 1024)])
A("v_add_u32 %s, %s, v3" % (v(SS + 1), sT2))
A("s_waitcnt lgkmcnt(0)")
padd(pWJ, pWS, sT0)
padd(pT, pWQ, sT1)
A("v_mov_b32 v4, 0")
A("s_or_b32 %s, s2, %s" % (sT0, sU))
A("s_cbranch_scc1 S_NONONCE")
A("s_memrealtime %s" % pN)
A("s_waitcnt lgkmcnt(0)")
A("s_or_b32 s48, s48, 1")
A("v_mov_b32 %s, s49" % v(SS + 3))
A("v_mov_b32 %s, s48" % v(SS + 2))
set_exec(1)
A("global_store_dwordx2 v4, %s, %s sc1" % (v(SS + 2, 2), pDBG))
set_exec(-1)
A.label("S_NONONCE")
def nonce_fetch():
    A("s_cmp_lg_u32 %s, 3" % sU)
    A("s_cbranch_scc1 S_NP_SKIP")
    A("v_mov_b32 v4, 0")
    sleep(P.get("D_N", 0))
    A.label("S_NP")
    A("global_load_dwordx2 v[6:7], v4, %s sc1" % pDBG)
    A("s_waitcnt vmcnt(0)")
    A("v_cmp_eq_u32 vcc, 0, v6")
    A("s_cbranch_vccz S_NP_DONE")
    A("s_sleep %d" % P.get("NSL", 2))
    budget_loop("S_NP")
    A.label("S_NP_DONE")
    A("v_mov_b32 v5, %d" % NONCE)
    A("ds_write_b64 v5, v[6:7]")
    A("s_waitcnt lgkmcnt(0)")
    if P.get("NLATE"):
        stamp("S", 10)
    A.label("S_NP_SKIP")


if not P.get("NLATE"):
    A("v_mov_b32 %s, v7" % v(SS + 4))
    nonce_fetch()
    A("v_mov_b32 v7, %s" % v(SS + 4))
A("global_load_dwordx4 %s, %s, %s%s" % (v(X0, 4), v(SS + 1), pX, NT))
A("s_lshl_b32 %s, %s, 12" % (sT1, sU))
for i in range(4):
    A("s_add_u32 m0, %s, %d" % (sT1, LW_Q + 1024 * i))
    A("global_load_lds_dwordx4 %s, %s%s" % (v(SS), pT, NT))
    if i < 3:
        padd(pT, pT, 8 * 8192)
if P.get("NOCLR"):
    set_exec(1)
A("global_store_dwordx4 v7, %s, %s sc1" % (v(SN, 4), pWJ))
set_exec(1 if P.get("NOCLR") else 0xFFFFFFFF)
A("global_store_dwordx4 v7, %s, %s offset:1024 sc1" % (v(SN, 4), pWJ))
set_exec(1 if P.get("NOCLR") else 0xFFFFFFFFFF)
A("global_store_dwordx4 v12, %s, %s sc1" % (v(SN, 4), pWS))
set_exec(-1)
if P.get("WF", 0) == 1:
    exec(WOBLK)
    exec(W2BLK)
A("s_barrier")
if P.get("WF", 0) == 2:
    exec(WOBLK)
    exec(W2BLK)
if P.get("WF", 0) == 3:
    exec(WOBLK)
stamp_init()
stamp("S", 9)
if P.get("NLATE"):
    nonce_fetch()
A("s_getreg_b32 %s, hwreg(HW_REG_XCC_ID)" % sXcc)
A("s_and_b32 %s, %s, 7" % (sXcc, sXcc))
A("s_mov_b32 s42, s40")
A("s_mov_b32 s43, s41")
A("s_mov_b32 %s, 0" % sFast)
sexpr(sT0, [(sS, 6144), (sU, 1536)])
A("v_add_u32 %s, %s, v3" % (v(sClr), sT0))
A("v_mov_b32 v12, 0x3f803f80")
vexpr(13, [(0, 4)], None, XOP + 4 * RS_)
A("ds_write_b32 v13, v12")
vexpr(13, [(1, 4)], None, X1OP + 4 * RS1)
A("ds_write_b32 v13, v12")
A("v_lshrrev_b32 v12, 2, v1")
A("v_min_u32 v13, 4, v1")
A("v_and_b32 v14, 3, v1")
vexpr(sXa, [(12, RS_), (2, 16)], None, XOP)
sexpr(sT0, [(sU, 64)], XOP)
vexpr(sXb, [(13, RS_), (2, 16)], sT0)
vexpr(sOrd, [(14 if P.get("WIDE", 0) else 12, RS_), (2, 16)], None, OOP)
vexpr(sX1a, [(12, RS1), (2, 16)], None, X1OP)
vexpr(sX1b, [(13, RS1), (2, 16)], None, X1OP)
vexpr(sHrd, [(2, 16)], None, HOP)
sexpr(sT0, [(sHi, 2048), (sLo, 256), (sU, 64)], E1)
vexpr(sE1w, [(2, 8192), (1, 4)], sT0)
vexpr(SS + 3, [(2, 128)])
A("v_lshlrev_b32 %s, 2, v12" % v(SS + 4))
A("v_sub_u32 %s, %s, %s" % (v(SS + 3), v(SS + 3), v(SS + 4)))
sexpr(sT0, [(sLo, 512), (sHi, 32), (sU, 8)], E1S + 4)
A("v_add_u32 %s, %s, %s" % (v(sE1sw), sT0, v(SS + 3)))
sexpr(sT0, [(sR1, 8)], E4S + 4)
A("v_add_u32 %s, %s, %s" % (v(sE4sw), sT0, v(SS + 3)))
sexpr(sT0, [(sR1, 64)], E4R)
vexpr(sE4rw, [(14, 1024), (2, 16)], sT0)
A("v_and_b32 %s, 31, v0" % v(SS + 3))
A("v_lshrrev_b32 %s, 5, v0" % v(SS + 4))
sexpr(sT0, [(sHi, 8192), (sU, 512)], E1)
vexpr(sAg, [(SS + 4, 4096), (SS + 3, 16)], sT0)
sexpr(sT0, [(sLo, 512), (sHi, 128)], E1S)
vexpr(sAst, [(1, 8), (2, 4)], sT0)
sexpr(sT0, [(sU, RS_)], QOP)
vexpr(sQw, [(SS + 3, 8), (SS + 4, 4)], sT0)
A("v_bfe_u32 %s, v0, 4, 1" % v(SS + 5))
A("v_bfe_u32 %s, v0, 2, 2" % v(SS + 6))
A("v_and_b32 %s, 3, v0" % v(SS + 7))
sexpr(sT0, [(sU, 288)], AP)
vexpr(sCrd, [(SS + 4, 8 * APB), (1, 16)], sT0)
A("v_mul_u32_u24 %s, %d, %s" % (v(SS + 5), APB, v(SS + 5)))
A("v_add_u32 %s, %s, %s" % (v(sCrd), v(sCrd), v(SS + 5)))
sexpr(sT0, [(sU, 64)], ML)
vexpr(sMlrd, [(SS + 4, 32)], sT0)
sexpr(sT0, [(sU, 32 * 512), (sS, 512)], E2)
vexpr(sE2w, [(0, 8)], sT0)
sexpr(sC, [(sU, 256), (sS, 8)], E2S)
if P.get("E3B", 1):
    sexpr(sT0, [(sLo, 16384), (sK1, 8192), (sJ, 128), (sHi, 32), (sK0, 4096)], E3)
    vexpr(sE3w, [(2, 1024), (1, 2)], sT0)
elif P.get("E3L", 1):
    sexpr(sT0, [(sLo, 32768), (sK1, 16384), (sJ, 256), (sHi, 64), (sK0, 8192)], E3)
    vexpr(sE3w, [(2, 2048), (1, 4)], sT0)
else:
    sexpr(sT0, [(sLo, 32768), (sK1, 16384), (sJ, 2048), (sHi, 512), (sK0, 256)], E3)
    vexpr(sE3w, [(0, 4)], sT0)
sexpr(sT0, [(sR1, 896), (sC1, 448), (sU, 128)], E4)
vexpr(sE4w, [(2, 16 * 896), (1, 4)], sT0)
sexpr(sT0, [("s2", 256), (sU, 64)], E5)
if P.get("WIDE", 0):
    vexpr(sE5w, [(2, 16)], sT0)
else:
    vexpr(sE5w, [(1, 4)], sT0)
A("v_lshl_add_u32 %s, v2, 3, v12" % v(SS + 3))
sexpr(sT0, [(sU, 32)])
vexpr(sTr, [(SS + 3, 128), (14, 8)], sT0)
sexpr(sT0, [(sU, 64)])
vexpr(sTr1, [(SS + 3, 224), (14, 8)], sT0)
stamp("S", 11)
A("s_waitcnt vmcnt(%d)" % {0: 0, 1: 13, 2: 13, 3: 6}[P.get("WF", 0)])
stamp("S", 12)
sexpr(sT0, [(sU, RS_)], XOP)
vexpr(4, [(1, 16)], sT0)
A("s_lshl_b32 %s, %s, 4" % (sT0, sHi))
A("s_mov_b32 %s, 0xffff" % sT2)
A("s_mov_b32 %s, 0" % sT3)
A("s_lshl_b64 exec, s[14:15], %s" % sT0)
A("ds_write_b128 v4, %s" % v(X0, 4))
set_exec(-1)
for i in range(4):
    A("v_lshlrev_b32 %s, 16, %s" % (v(SS + 2 * i), v(X0 + i)))
    A("v_and_b32 %s, 0xffff0000, %s" % (v(SS + 2 * i + 1), v(X0 + i)))
A("v_add_f32 v4, %s, %s" % (v(SS), v(SS + 1)))
A("v_mul_f32 v5, %s, %s" % (v(SS), v(SS)))
A("v_fmac_f32 v5, %s, %s" % (v(SS + 1), v(SS + 1)))
for i in range(2, 8):
    A("v_add_f32 v4, v4, %s" % v(SS + i))
    A("v_fmac_f32 v5, %s, %s" % (v(SS + i), v(SS + i)))
for m in (X1, X2, HM, RM):
    A("v_add_f32_dpp v4, v4, v4 %s" % m)
    A("v_add_f32_dpp v5, v5, v5 %s" % m)
g_allreduce("v_add_f32", 4, 6)
g_allreduce("v_add_f32", 5, 6)
A("v_mul_f32 v4, %s, v4" % f32(1 / 512))
A("v_mul_f32 v5, %s, v5" % f32(1 / 512))
A("v_fma_f32 v5, -v4, v4, v5")
A("v_max_f32 v5, 0, v5")
A("v_add_f32 v5, %s, v5" % f32(1e-5))
A("v_rsq_f32 v5, v5")
sexpr(sT0, [(sU, 8)], ST0)
A("v_mov_b32 v6, %s" % sT0)
A("ds_write_b64 v6, v[4:5]")
A("s_waitcnt lgkmcnt(0)")
ssync(0)
stamp("S", 0)
for t in range(4):
    A("ds_read_b128 %s, %s offset:%d" % (v(XR + 4 * t, 4), v(sXa), 64 * t))
for t in range(4):
    for hh in range(2):
        A("ds_read_b64_tr_b16 %s, %s offset:%d" % (v(WQ + 4 * t + 2 * hh, 2), v(sTr), LW_Q + (32 * t + 4 * hh) * 128))
vexpr(4, [(2, 8)], None, ST0)
A("ds_read_b64 v[6:7], v4")
A("v_mov_b32 v4, %d" % NONCE)
A("ds_read_b64 v[12:13], v4")
for i in range(4):
    A("v_mov_b32 %s, 0x3f803f80" % v(XR + 16 + i))
A("s_waitcnt lgkmcnt(0)")
for t in range(4):
    A("%s %s, %s, %s, %s" % (MFMA, v(DR, 4), v(XR + 4 * t, 4), v(WQ + 4 * t, 4), "0" if t == 0 else v(DR, 4)))
    A("%s %s, %s, %s, %s" % (MFMA, v(DR + 4, 4), v(XR + 16, 4), v(WQ + 4 * t, 4), "0" if t == 0 else v(DR + 4, 4)))
A("v_fma_f32 %s, -v6, %s, %s" % (v(DR), v(DR + 4), v(DR)))
A("v_mul_f32 %s, %s, v7" % (v(DR), v(DR)))
A("v_mov_b32 %s, %s" % (v(sCsP), v(DR + 4)))
A("v_mov_b32 %s, v12" % v(DR + 1))
sexpr(sT0, [(sJ, 65536), (sHi, 4096), (sLo, 512), (sU, 128)], E1T)
vexpr(4, [(2, 16384), (1, 8)], sT0)
stamp("S", 1)
A("global_store_dwordx2 v4, %s, %s sc1" % (v(DR, 2), pWS))
A("v_readfirstlane_b32 s48, v12")
A("v_readfirstlane_b32 s49, v13")
A("s_cmp_lg_u32 %s, 1" % sU)
A("s_cbranch_scc1 S_NOREC")
RS = P.get("RS", 16)
sexpr(sT0, [(sJ, 32 * RS), (sS, RS)], REC)
A("v_mov_b32 v4, %s" % sT0)
A("v_mov_b32 v14, %s" % sXcc)
set_exec(1)
A("global_store_dwordx3 v4, v[12:14], %s sc1" % pWS)
set_exec(-1)
A.label("S_NOREC")


def PT1():
    padd(pT, pWJ, LSTR)
    A("global_load_dwordx4 v[140:143], %s, %s sc1" % (v(sClr), pT))
    A("s_mov_b32 exec_hi, 0")
    A("global_load_dwordx4 v[140:143], %s, %s offset:1024 sc1" % (v(sClr), pT))
    A("s_mov_b64 exec, -1")


def ptouch():
    A("global_load_dwordx4 v[140:143], %s, %s sc1" % (v(sClr), pWJ))
    set_exec(0xFFFFFFFF)
    A("global_load_dwordx4 v[140:143], %s, %s offset:1024 sc1" % (v(sClr), pWJ))
    set_exec(-1)
    if P.get("PTX", 0):
        sexpr(sT0, [("s2", 1280), (sK0, LSTR), (sK1, 640)], E3)
        A("v_add_u32 v7, %s, v3" % sT0)
        set_exec(0xFFFFFFFFFF)
        A("global_load_dwordx4 v[140:143], v7, %s sc1" % pWS)
        set_exec(-1)


def wt_slice(base):
    A("global_store_dwordx4 %s, %s, %s sc1" % (v(sClr), v(SN, 4), base))
    A("s_mov_b32 exec_hi, 0")
    A("global_store_dwordx4 %s, %s, %s offset:1024 sc1" % (v(sClr), v(SN, 4), base))
    A("s_mov_b64 exec, -1")


def half_treduce(r):
    A("v_permlane32_swap_b32 %s, %s" % (v(r), v(r + 2)))
    A("v_permlane32_swap_b32 %s, %s" % (v(r + 1), v(r + 3)))
    A("v_add_f32 %s, %s, %s" % (v(r), v(r), v(r + 2)))
    A("v_add_f32 %s, %s, %s" % (v(r + 1), v(r + 1), v(r + 3)))


AG = ["global_load_dwordx4 %s, %s, %s sc1" % (v(ga, 4), v(sAg), pWJ),
      "global_load_dwordx4 %s, %s, %s offset:2048 sc1" % (v(gb, 4), v(sAg), pWJ)]
AGC = [(ga + e, gb + e) for e in range(4)]
sexpr(sT0, [(sJ, 65536), (sHi, 16384), (sU, 1024)], E1T + 4096)
A("v_add_u32 v4, %s, v3" % sT0)
A("v_add_u32 v5, 8192, v4")
sexpr(sT0, [(sU, 64 * RS)], REC)
vexpr(6, [(0, RS)], sT0)
if P.get("PTOUCH", 1) == 2:
    ptouch()
sleep(P.get("D_A0", 20))
TQ = XR
A.label("S_AG0")
A("global_load_dwordx4 %s, v4, %s offset:-4096 sc1" % (v(TQ, 4), pWS))
A("global_load_dwordx4 %s, v4, %s sc1" % (v(TQ + 4, 4), pWS))
A("global_load_dwordx4 %s, v5, %s offset:-4096 sc1" % (v(TQ + 8, 4), pWS))
A("global_load_dwordx4 %s, v5, %s sc1" % (v(TQ + 12, 4), pWS))
A("s_waitcnt vmcnt(0)")
for i in range(8):
    A("v_xor_b32 %s, s48, %s" % (v(TQ + 2 * i + 1), v(TQ + 2 * i + 1)))
A("v_or3_b32 v7, %s, %s, %s" % (v(TQ + 1), v(TQ + 3), v(TQ + 5)))
A("v_or3_b32 v7, v7, %s, %s" % (v(TQ + 7), v(TQ + 9)))
A("v_or3_b32 v7, v7, %s, %s" % (v(TQ + 11), v(TQ + 13)))
A("v_or_b32 v7, v7, %s" % v(TQ + 15))
A("v_cmp_ne_u32 vcc, 0, v7")
A("s_cbranch_vccz S_AG0_DONE")
sleep(P.get("NAPQ", 8))
budget_loop("S_AG0")
A.label("S_AG0_DONE")
A("global_load_dwordx3 v[12:14], v6, %s sc1" % pWS)
stamp("S", 2)
for c in range(2):
    A("v_add_f32 %s, %s, %s" % (v(TQ + 2 * c), v(TQ + 2 * c), v(TQ + 4 + 2 * c)))
    A("v_add_f32 %s, %s, %s" % (v(TQ + 8 + 2 * c), v(TQ + 8 + 2 * c), v(TQ + 12 + 2 * c)))
    A("v_add_f32 %s, %s, %s" % (v(TQ + 2 * c), v(TQ + 2 * c), v(TQ + 8 + 2 * c)))
A("v_cvt_pk_bf16_f32 %s, %s, %s" % (v(ga), v(TQ), v(TQ + 2)))
sexpr(sT0, [(sU, RS_)], QOP)
vexpr(4, [(0, 4)], sT0)
A("ds_write_b32 v4, %s" % v(ga))
A("s_waitcnt lgkmcnt(0)")
A("s_barrier")
if P.get("VSIG"):
    A("v_mov_b32 v4, %d" % (FLG + 12))
    A("s_mov_b32 %s, %d" % (sT1, P["VSIG"]))
    A.label("S_VW")
    A("ds_read_b32 v5, v4")
    A("s_waitcnt lgkmcnt(0)")
    A("v_readfirstlane_b32 %s, v5" % sT0)
    A("s_cmp_ge_u32 %s, 8" % sT0)
    A("s_cbranch_scc1 S_VW_D")
    A("s_sleep 1")
    A("s_sub_u32 %s, %s, 1" % (sT1, sT1))
    A("s_cbranch_scc0 S_VW")
    A.label("S_VW_D")
if not P.get("WF", 0):
    exec(WOBLK)
A("s_waitcnt vmcnt(6)")
A("s_branch S_RP_CHK")
A.label("S_RP")
A("global_load_dwordx3 v[12:14], v6, %s sc1" % pWS)
A("s_waitcnt vmcnt(0)")
A.label("S_RP_CHK")
A("v_cmp_ne_u64 vcc, %s, v[12:13]" % pN)
A("s_cbranch_vccz S_RP_DONE")
A("s_sleep %d" % P.get("PSL", 8))
budget_loop("S_RP")
A("v_mov_b32 v14, -1")
A.label("S_RP_DONE")
A("s_lshr_b32 %s, %s, 1" % (sT0, sJ))
A("s_cmp_lg_u32 %s, %s" % (sT0, sU))
A("s_cbranch_scc1 S_REC_SKIP")
A("v_cmp_ne_u32 vcc, %s, v14" % sXcc)
A("s_bitcmp1_b32 %s, 0" % sJ)
A("s_cselect_b32 %s, vcc_hi, vcc_lo" % sT0)
A("s_cmp_eq_u32 %s, 0" % sT0)
A("s_cselect_b32 %s, 1, 0" % sT0)
if P["FORCE_SAFE"]:
    A("s_mov_b32 %s, 0" % sT0)
A("v_mov_b32 v5, %d" % FLG)
A("v_mov_b32 v7, %s" % sT0)
A("ds_write_b32 v5, v7")
A.label("S_REC_SKIP")
stamp("S", 14)
if P.get("PTOUCH", 1) == 1:
    ptouch()
w2_dma(0)
if P.get("PREF2", 1):
    A("s_and_b32 %s, %s, 3" % (sT0, sS))
    A("s_min_u32 %s, %s, 2" % (sT0, sT0))
    sexpr(sT0, [(sT0, 4096), (sU, 1024)])
    A("v_add_u32 v7, %s, v3" % sT0)
    A("global_load_dwordx4 v[140:143], v7, %s offset:-4" % pPC)
A("s_waitcnt lgkmcnt(0)")

TRBLK = r'''lab = if_layer0()
for t in range(7):
    for hh in range(2):
        A("ds_read_b64_tr_b16 %s, %s offset:%d" % (v(W2R + 4 * t + 2 * hh, 2), v(sTr), LW_2 + (32 * t + 4 * hh) * 128))
A("s_waitcnt lgkmcnt(0)")
A.label(lab)
'''
A.label("S_LOOP")
A("s_barrier")
cycs(0)
stamp("S", 3)
cm = XR
ca = XR + 8
A("v_mov_b32 v5, %d" % FLG)
A("ds_read_b32 v6, v5")
A("ds_read_b128 %s, %s" % (v(cm, 4), v(sMlrd)))
A("ds_read_b128 %s, %s offset:16" % (v(cm + 4, 4), v(sMlrd)))
for k in range(4):
    A("ds_read_b128 %s, %s offset:%d" % (v(ca + 4 * k, 4), v(sCrd), 2 * APB * k))
cM, cL, cT, cAd = SS, SS + 1, SS + 2, SS + 3
A("v_mov_b32 %s, %s" % (v(cAd), sC))
A("s_waitcnt lgkmcnt(%d)" % (0 if STAMP == 5 else 4))
cycs(1)
A("v_readfirstlane_b32 %s, v6" % sFast)
A("v_max3_f32 %s, %s, %s, %s" % (v(cM), v(cm), v(cm + 2), v(cm + 4)))
A("v_max_f32 %s, %s, %s" % (v(cM), v(cM), v(cm + 6)))
A("v_mov_b32 %s, %s" % (v(cT), v(cM)))
A("v_permlane32_swap_b32 %s, %s" % (v(cM), v(cT)))
A("v_max_f32 %s, %s, %s" % (v(cM), v(cM), v(cT)))
for k in range(4):
    A("v_sub_f32 %s, %s, %s" % (v(cm + 2 * k), v(cm + 2 * k), v(cM)))
for k in range(4):
    A("v_exp_f32 %s, %s" % (v(cm + 2 * k), v(cm + 2 * k)))
A("s_waitcnt lgkmcnt(0)")
if P.get("PK", 1):
    for h in range(2):
        A("v_pk_mul_f32 %s, %s, %s op_sel_hi:[0,1]" % (v(DR + 2 * h, 2), v(cm, 2), v(ca + 2 * h, 2)))
    A("v_mul_f32 %s, %s, %s" % (v(cL), v(cm), v(cm + 1)))
    for k in range(1, 4):
        for h in range(2):
            A("v_pk_fma_f32 %s, %s, %s, %s op_sel_hi:[0,1,1]" % (v(DR + 2 * h, 2), v(cm + 2 * k, 2), v(ca + 4 * k + 2 * h, 2), v(DR + 2 * h, 2)))
        A("v_fmac_f32 %s, %s, %s" % (v(cL), v(cm + 2 * k), v(cm + 2 * k + 1)))
else:
    for e in range(4):
        A("v_mul_f32 %s, %s, %s" % (v(DR + e), v(cm), v(ca + e)))
    A("v_mul_f32 %s, %s, %s" % (v(cL), v(cm), v(cm + 1)))
    for k in range(1, 4):
        for e in range(4):
            A("v_fmac_f32 %s, %s, %s" % (v(DR + e), v(cm + 2 * k), v(ca + 4 * k + e)))
        A("v_fmac_f32 %s, %s, %s" % (v(cL), v(cm + 2 * k), v(cm + 2 * k + 1)))
A("v_mov_b32 %s, %s" % (v(cT), v(cL)))
A("v_permlane32_swap_b32 %s, %s" % (v(DR), v(DR + 2)))
A("v_permlane32_swap_b32 %s, %s" % (v(DR + 1), v(DR + 3)))
A("v_permlane32_swap_b32 %s, %s" % (v(cL), v(cT)))
A("v_add_f32 %s, %s, %s" % (v(DR), v(DR), v(DR + 2)))
A("v_add_f32 %s, %s, %s" % (v(DR + 1), v(DR + 1), v(DR + 3)))
A("v_add_f32 %s, %s, %s" % (v(cL), v(cL), v(cT)))
cycs(2)
store_intra(["global_store_dwordx2 %s, %s, %s" % (v(sE2w), v(DR, 2), pWJ),
             "s_mov_b64 exec, 1",
             "global_store_dwordx2 %s, %s, %s" % (v(cAd), v(cM, 2), pWJ),
             "s_mov_b64 exec, -1"])
if P.get("SIGI", 1):
    A("s_barrier")
cycs(3)
stamp("S", 4)
W2P = P.get("W2P", 1)
lab = if_layer0()
A("v_add_u32 %s, %d, %s" % (v(gc), 4 * 8192, v(sE1w)))
A("v_add_u32 %s, %d, %s" % (v(gc + 1), (E4C - E4) & 0xFFFFFFFF, v(sE4w)))
for i in range(4):
    A("v_mov_b32 %s, 0x3f803f80" % v(XR + i))
A("s_waitcnt vmcnt(%d)" % (2 + P.get("PREF2", 1) + W2S[0] + ((2 + P.get("PTX", 0)) if P.get("PTOUCH", 1) == 1 else 0)))
w2_dma(1)
ssync(1)
for tl in range(2):
    for hh in range(2):
        A("ds_read_b64_tr_b16 %s, %s offset:%d" % (v(W1R + 4 * tl + 2 * hh, 2), v(sTr1), LW_1 + 4 * hh * 224 + 32 * tl))
for t in range(4):
    for hh in range(2):
        A("ds_read_b64_tr_b16 %s, %s offset:%d" % (v(WO + 4 * t + 2 * hh, 2), v(sTr), LW_O + (32 * t + 4 * hh) * 128))
A("s_waitcnt lgkmcnt(8)")
A("%s %s, %s, %s, 0" % (MFMA, v(DR + 4, 4), v(XR, 4), v(W1R, 4)))
A("%s %s, %s, %s, 0" % (MFMA, v(XR + 4, 4), v(XR, 4), v(W1R + 4, 4)))
A("s_cmp_eq_u32 %s, 3" % sU)
A("s_cselect_b32 %s, 0, 0xffff" % sT0)
store_intra(exec_lines(0xFFFF) +
            ["global_store_dword %s, %s, %s" % (v(gc), v(sCsP), pWJ),
             "global_store_dword %s, %s, %s" % (v(gc + 1), v(DR + 4), pWJ),
             "s_mov_b32 exec_lo, %s" % sT0,
             "global_store_dword %s, %s, %s offset:64" % (v(gc + 1), v(XR + 4), pWJ),
             "s_mov_b64 exec, -1"])
A("s_waitcnt lgkmcnt(0)")
A.label(lab)
A("s_barrier")
cycs(4)
if STAMP == 5:
    A("s_waitcnt lgkmcnt(0)")
stamp("S", 5)
for t in range(4):
    A("ds_read_b128 %s, %s offset:%d" % (v(XR + 4 * t, 4), v(sOrd), 64 * t))
for t in range(4):
    A("s_waitcnt lgkmcnt(%d)" % (3 - t))
    A("%s %s, %s, %s, %s" % (MFMA, v(DR, 4), v(XR + 4 * t, 4), v(WO + 4 * t, 4), "0" if t == 0 else v(DR, 4)))
if P.get("E3B", 1):
    A("v_cvt_pk_bf16_f32 %s, %s, %s" % (v(DR), v(DR), v(DR)))
    A("global_store_short %s, %s, %s sc1" % (v(sE3w), v(DR), pWL))
else:
    A("global_store_dword %s, %s, %s sc1" % (v(sE3w), v(DR), pWL))
cycs(5)
A("s_barrier")
lab = if_layer0()
w2_dma(2)
A("s_sub_u32 %s, 4, %s" % (sT0, sHi))
A("s_lshl_b32 %s, %s, 13" % (sT0, sT0))
A("v_add_u32 %s, %s, %s" % (v(gc), sT0, v(sAg)))
poll(["global_load_dwordx4 %s, %s, %s sc1" % (v(ga, 4), v(gc), pWJ),
      "global_load_dwordx4 %s, %s, %s offset:2048 sc1" % (v(gb, 4), v(gc), pWJ)], AGC, nap=4)
for e in range(4):
    A("v_add_f32 %s, %s, %s" % (v(ga + e), v(ga + e), v(gb + e)))
half_treduce(ga)
A("v_mov_b32 %s, %s" % (v(sCq0), v(ga)))
A("v_mov_b32 %s, %s" % (v(sCq1), v(ga + 1)))
A.label(lab)
A("s_barrier")
cycs(6)
if STAMP == 5:
    A("s_waitcnt lgkmcnt(0)")
stamp("S", 6)
A("ds_read_b128 %s, %s" % (v(XR, 4), v(sX1a)))
A("s_cmp_eq_u32 %s, 3" % sU)
A("s_cbranch_scc1 S_W1_W3")
A("s_waitcnt lgkmcnt(0)")
A("%s %s, %s, %s, 0" % (MFMA, v(DR, 4), v(XR, 4), v(W1R, 4)))
A("%s %s, %s, %s, 0" % (MFMA, v(DR + 4, 4), v(XR, 4), v(W1R + 4, 4)))
store_intra(["global_store_dword %s, %s, %s" % (v(sE4w), v(DR), pWJ),
             "global_store_dword %s, %s, %s offset:64" % (v(sE4w), v(DR + 4), pWJ)])
A("s_branch S_W1_DONE")
A.label("S_W1_W3")
A("ds_read_b128 %s, %s" % (v(XR + 4, 4), v(sX1b)))
A("s_waitcnt lgkmcnt(1)")
A("%s %s, %s, %s, 0" % (MFMA, v(DR, 4), v(XR, 4), v(W1R, 4)))
A("s_waitcnt lgkmcnt(0)")
A("%s %s, %s, %s, 0" % (MFMA, v(DR + 4, 4), v(XR, 4), v(XR + 4, 4)))
store_intra(["global_store_dword %s, %s, %s" % (v(sE4w), v(DR), pWJ)] + exec_lines(STM) +
            ["global_store_dword %s, %s, %s" % (v(sE4sw), v(DR + 4), pWJ)] + exec_lines(0x000F000F000F000F) +
            ["global_store_dwordx4 %s, %s, %s" % (v(sE4rw), v(XR + 4, 4), pWJ), "s_mov_b64 exec, -1"])
A.label("S_W1_DONE")
cycs(7)
if P.get("SIGI", 1):
    A("s_barrier")
KEEP = 136
if P.get("CLEAN", 0) & 8:
    A("v_mov_b32 %s, %s" % (v(KEEP), v(DR)))
    A("v_mov_b32 %s, %s" % (v(KEEP + 1), v(DR + 4)))
if P.get("W2LATE", 0):
    A("s_waitcnt vmcnt(0)")
else:
    exec(TRBLK)
A("s_barrier")
cycs(8)
if STAMP == 5:
    A("s_waitcnt lgkmcnt(0)")
stamp("S", 7)
if P.get("W2LATE", 0):
    exec(TRBLK)
for t in range(7):
    A("ds_read_b128 %s, %s offset:%d" % (v(XR + 4 * t, 4), v(sHrd), 64 * t))
for t in range(7):
    A("s_waitcnt lgkmcnt(%d)" % (6 - t))
    ab = (v(W2R + 4 * t, 4), v(XR + 4 * t, 4)) if P.get("WIDE", 0) else (v(XR + 4 * t, 4), v(W2R + 4 * t, 4))
    A("%s %s, %s, %s, %s" % (MFMA, v(DR, 4), ab[0], ab[1], "0" if t == 0 else v(DR, 4)))
if P.get("WIDE", 0):
    set_exec(0x0001000100010001)
    A("global_store_dwordx4 %s, %s, %s sc1" % (v(sE5w), v(DR, 4), pWL))
else:
    set_exec(0xFFFF)
    A("global_store_dword %s, %s, %s sc1" % (v(sE5w), v(DR), pWL))
set_exec(-1)
if P.get("SIG", 1):
    A("s_barrier")
if P.get("SAFEDLY"):
    A("s_cmp_lg_u32 %s, 0" % sFast)
    A("s_cbranch_scc1 S_NODLY")
    sleep(400)
    A.label("S_NODLY")
cycs(9)
cycs_dump(10)
stamp("S", 8)
A("s_cmp_lg_u32 %s, 0" % sL)
A("s_cbranch_scc1 %s" % ("S_FIN" if P.get("CLEAN", 0) & 4 else "L_EXIT"))
A("s_mov_b32 %s, 1" % sL)
padd(pWL, pWL, LSTR)
sexpr(sT0, [(sS, 2176), (sU, 544)], E2S)
A("v_add_u32 v4, %s, v3" % sT0)
store_intra(exec_lines((1 << 34) - 1) + ["global_store_dwordx4 v4, %s, %s" % (v(SN, 4), pWJ), "s_mov_b64 exec, -1"])
A("s_lshl_b32 %s, %s, 6" % (sT0, sU))
A("v_add_u32 %s, %s, %s" % (v(SS), sT0, v(sXa)))
A("v_mov_b32 %s, 0" % v(gc))
A("s_waitcnt vmcnt(0)")
A("s_barrier")
stamp("S", 0)
for t in range(4):
    A("ds_read_b128 %s, %s offset:%d" % (v(XR + 4 * t, 4), v(sXa), 64 * t))
A("ds_read_b128 %s, %s" % (v(XR + 16, 4), v(sXb)))
A("ds_read_b128 %s, %s" % (v(XR + 20, 4), v(SS)))
for t in range(4):
    A("s_waitcnt lgkmcnt(%d)" % (5 - t))
    A("%s %s, %s, %s, %s" % (MFMA, v(DR, 4), v(XR + 4 * t, 4), v(WQ + 4 * t, 4), "0" if t == 0 else v(DR, 4)))
A("s_waitcnt lgkmcnt(0)")
A("%s %s, %s, %s, 0" % (MFMA, v(DR + 4, 4), v(XR + 20, 4), v(XR + 16, 4)))
stamp("S", 1)
store_intra(["global_store_dword %s, %s, %s" % (v(sE1w), v(DR), pWJ)] + exec_lines(STM) +
            ["global_store_dword %s, %s, %s" % (v(sE1sw), v(DR + 4), pWJ), "s_mov_b64 exec, -1"])
sleep(P["D_A"])
SSETS = [SS, XR, XR + 12][:P.get("NSETS", 2)]
q0_, q1_, q2_, q3_ = 4, 5, 6, 7


def a_post():
    t = XR
    with Cap() as c1:
        stats_math(gc, XR + 4, 1.0, 1e-5)
        A("v_mul_f32 %s, %s, %s" % (v(q2_), v(XR + 5), v(sCq0)))
        A("v_mul_f32 %s, %s, %s" % (v(q3_), v(XR + 5), v(sCq1)))
    with Cap() as c2:
        for e in range(4):
            A("v_add_f32 %s, %s, %s" % (v(t + e), v(ga + e), v(gb + e)))
        half_treduce(t)
    for l in interleave(c1.lines, c2.lines):
        A(l)
    A("v_fma_f32 %s, %s, %s, -%s" % (v(q0_), v(t), v(XR + 4), v(q2_)))
    A("v_fma_f32 %s, %s, %s, -%s" % (v(q1_), v(t + 1), v(XR + 4), v(q3_)))


opt_poll("global_load_dword %s, %s, %s sc1" % (v(gc), v(sAst), pWJ), 0xFFFFFFFF, [gc], AG, range(ga, ga + 8), a_post, [q0_, q1_])
stamp("S", 2)
A("v_cvt_pk_bf16_f32 %s, %s, %s" % (v(q0_), v(q0_), v(q1_)))
A("ds_write_b32 %s, %s" % (v(sQw), v(q0_)))
A("s_waitcnt lgkmcnt(0)")
A("s_barrier")
sexpr(sT0, [(sS, 2048), (sU, 512)], E4)
A("v_add_u32 v4, %s, v3" % sT0)
store_intra(exec_lines(0xFFFFFFFF) + ["global_store_dwordx4 v4, %s, %s" % (v(SN, 4), pWJ), "s_mov_b64 exec, -1"])
A("s_waitcnt vmcnt(0)")
A("s_branch S_LOOP")
if P.get("CLEAN", 0) & 4:
    A.label("S_FIN")
    sexpr(sT0, [(sS, 4096), (sU, 1024)])
    A("v_add_u32 v4, %s, v3" % sT0)
    A("global_store_dwordx4 v4, %s, %s sc1" % (v(SN, 4), pWJ))
    if P.get("CLEAN", 0) & 8:
        A("global_store_dword %s, %s, %s sc1" % (v(sE4w), v(KEEP), pWJ))
        A("s_cmp_eq_u32 %s, 3" % sU)
        A("s_cbranch_scc1 L_EXIT")
        A("global_store_dword %s, %s, %s offset:64 sc1" % (v(sE4w), v(KEEP + 1), pWJ))
    A("s_branch L_EXIT")

KR, VR, VF, QR, SR = 16, 48, 80, 112, 128
GS = 48
(gOg, gOml, gOlds, gW1g, gW1x, gW1lds, gW2g, gW2s, gW2lds, gXg, gXr, gXlds, gB1, gB2, gCs1, gQrd, gApw, gMlw, gOut, gDma) = range(148, 168)
_gn = [1 if P["PREF"] else 0]


def gload(t):
    if P.get("NODMA") and "lds" in t:
        t = "global_load_dword v140, v3, %s" % pB1 if False else "s_nop 0"
        A(t)
        return
    if _gn[0] >= P["W"]:
        if P.get("ADAPT"):
            lab = newlabel("THR")
            A("ds_read_b32 v130, v129")
            A("s_waitcnt lgkmcnt(0)")
            A("v_readfirstlane_b32 %s, v130" % sT1)
            A("s_cmp_lg_u32 %s, 0" % sT1)
            A("s_cbranch_scc1 %s" % lab)
            A("s_waitcnt vmcnt(%d)" % (P["W"] - 1))
            A.label(lab)
        else:
            A("s_waitcnt vmcnt(%d)" % (P["W"] - 1))
    A(t)
    _gn[0] += 1


GADDR = r'''A("v_lshrrev_b32 v11, 3, v0")        # l>>3
A("v_and_b32 v12, 7, v0")            # l&7
vexpr(gDma, [(11, 1024), (12, 16)])
# bias elements
A("s_lshr_b32 %s, %s, 1" % (sK0, sWave))     # b = w>>1
A("s_and_b32 %s, %s, 1" % (sK1, sWave))      # w&1
A("s_min_u32 %s, %s, 6" % (sK2, sWave))      # w' for the W2 gather
vexpr(13, [(1, 4), (2, 1)])                  # X col local = 4 l16 + g
sexpr(sT0, [(sHi, 256), (sK1, 128)])
vexpr(14, [(13, 2)], sT0)                    # col*2 within a 512-col bf16 row
gload("global_load_ushort %s, v14, %s%s" % (v(gB2), pB2, NT))
vexpr(10, [(12, 4), (2, 1)])                 # 4 (l&7) + g
sexpr(sT0, [(sK2, 64)])
vexpr(10, [(10, 2)], sT0)                    # f*2 (local)
sexpr(sT0, [(sJ, 448)])
A("v_add_u32 v6, %s, v10" % sT0)
gload("global_load_ushort %s, v6, %s%s" % (v(gB1), pB1, NT))
N_AFTER_K, N_AFTER_V = 8, 0

for q in range(4):
    smov64(mQ[q], (0x000F000F000F000F << (4 * q)))
A("s_mov_b32 %s, 0x05040100" % sPermLo)
A("s_mov_b32 %s, 0x07060302" % sPermHi)
A("s_mov_b32 %s, %s" % (sC, f32(128 ** -0.5 * math.log2(math.e))))
A("s_mov_b32 s42, s40")
A("s_mov_b32 s43, s41")
A("s_mul_i32 %s, %s, %d" % (sT0, sJ, JSTR))
padd(pWJ, pWS, sT0)
A("v_add_u32 %s, %d, v10" % (v(gW2lds), HOP))
# O gather: E2 + ((ro*4+b)*8 + 2g)*512 + (16 (w&1) + l16)*16
sexpr(sT0, [(sHi, 16384), (sK0, 4096), (sK1, 256)], E2)
vexpr(gOg, [(2, 1024), (1, 16)], sT0)
sexpr(sT0, [(sHi, 256), (sK0, 64)], E2S)
vexpr(gOml, [(2, 16)], sT0)
# O lds: U = 16 h + l16 (h = w&1); lp = 2U + (g>>1); ups = lp&31 = (2 l16 + (g>>1)) ; e = 2 h + (g&1)
#   ups = 16 a + 4 g' + qq ; d = 32 g' + 8 e + 4 a + qq
A("v_lshrrev_b32 v4, 1, v2")
A("v_lshl_add_u32 v4, v1, 1, v4")            # ups
A("v_bfe_u32 v5, v4, 4, 1")                  # a
A("v_bfe_u32 v6, v4, 2, 2")                  # g'
A("v_and_b32 v7, 3, v4")                     # qq
A("v_and_b32 v4, 1, v2")                     # g&1
sexpr(sT0, [(sK0, RS_), (sK1, 32)], OOP)
vexpr(gOlds, [(6, 64), (4, 16), (5, 8), (7, 2)], sT0)
# W1 gather: E3 + r1*16384 + (2 pp)*512 + (4 w + (l&3))*16 ; pp = l>>2
A("v_lshrrev_b32 v4, 2, v0")
A("v_and_b32 v5, 3, v0")
if P.get("E3B", 1):
    sexpr(sT0, [(sR1, 8192), (sWave, 1024)], E3)
    A("v_add_u32 %s, %s, v3" % (v(gW1g), sT0))
elif P.get("E3L", 1):
    sexpr(sT0, [(sR1, 16384), (sWave, 2048)], E3)
    A("v_add_u32 %s, %s, v3" % (v(gW1g), sT0))
else:
    sexpr(sT0, [(sR1, 16384), (sWave, 64)], E3)
    vexpr(gW1g, [(4, 1024), (5, 16)], sT0)
# rho = 16 tile + 4 (l&3) + g ; tile = w>>2, b = w&3
A("s_lshr_b32 %s, %s, 2" % (sT1, sWave))
A("s_and_b32 %s, %s, 3" % (sT2, sWave))
if P.get("E3B", 1):
    # column = 8 (l&1) + 4 b5 + 2 b4 + b3
    A("v_and_b32 v4, 1, v0")
    A("v_bfe_u32 v5, v0, 5, 1")
    A("v_bfe_u32 v6, v0, 4, 1")
    A("v_bfe_u32 v7, v0, 3, 1")
    A("v_lshlrev_b32 v4, 4, v4")
    A("v_lshl_add_u32 v4, v5, 3, v4")
    A("v_lshl_add_u32 v4, v6, 2, v4")
    A("v_lshl_add_u32 v6, v7, 1, v4")
    A("s_mov_b32 s61, 0x00003f80")      # (1, 0)
    A("s_mov_b32 s46, 0x3f800000")      # (0, 1)
    A("s_mov_b32 s47, 0x3f803f80")      # (1, 1)
    smov64("s[48:49]", 0xFF00FF00FF00FF00)
else:
    vexpr(6, [(5, 8), (2, 2)])
sexpr(sT0, [(sT2, RS1), (sT1, 32)], X1OP)
A("v_add_u32 %s, %s, v6" % (v(gW1lds), sT0))
sexpr(sT0, [(sT2, RS_), (sT1, 32)], XOP)
A("s_and_b32 %s, %s, 3" % (sT1, sR1))
A("s_lshl_b32 %s, %s, 6" % (sT1, sT1))
A("s_add_u32 %s, %s, %s" % (sT0, sT0, sT1))
A("v_add_u32 %s, %s, v6" % (v(gW1x), sT0))
# W2 gather: E4 + (b*16 + 2 pp8)*896 + (8 w' + (l&7))*16 ; pp8 = l>>3
sexpr(sT0, [(sHi, 16 * 896), (sK2, 128)], E4)
vexpr(gW2g, [(11, 2 * 896), (12, 16)], sT0)
# W2 stats: E4S + (c1*4 + b)*128 + l16*8  (16 entries, row all-reduce)
sexpr(sT0, [(sHi, 128)], E4S)
vexpr(gW2s, [(1, 8), (2, 4)], sT0)
# X gather: E5 + ((b*8 + 2 rq + (w&1))*8 + 2g)*256 + l16*16
sexpr(sT0, [(sK0, 16384), (sHi, 4096), (sK1, 2048)], E5)
vexpr(gXg, [(2, 512), (1, 16)], sT0)
sexpr(sT0, [(sK0, 1024)], E4R)
A("v_add_u32 %s, %s, v14" % (v(gXr), sT0))
sexpr(sT0, [(sK0, 1024)])
A("v_add_u32 %s, %s, v14" % (v(gOut), sT0))
sexpr(sT0, [(sK0, RS_), (sK1, 128)], XOP)
vexpr(gXlds, [(13, 2)], sT0)
vexpr(gQrd, [(8, RS_), (2, 16)], None, QOP)
sexpr(sT0, [(sWave, 2 * APB)], AP)
vexpr(gApw, [(8, 288), (2, 64), (9, 16)], sT0)
sexpr(sT0, [(sWave, 8)], ML)
vexpr(gMlw, [(8, 64)], sT0)
'''
NV1 = 8
A.label("L_G")
ISTR, WSTR = ((65536, 8192) if P.get("KMODE", 5) == 5 else (8192, 65536))
SWZ = P.get("SWZ", 1)
sFa = "s66"
if SWZ:
    A("s_lshr_b32 %s, %s, 1" % (sFa, sJ))
    A("s_and_b32 %s, %s, 1" % (sT1, sHi))
    A("s_lshl_b32 %s, %s, 2" % (sT1, sT1))
    A("s_or_b32 %s, %s, %s" % (sFa, sFa, sT1))
    A("s_lshl_b32 %s, %s, 1" % (sT1, sHi))
    A("s_xor_b32 %s, %s, %s" % (sT1, sT1, sWave))
    sexpr(sT0, [(sHi, 8 << 21), (sJ, 1 << 21), (sLo, 1024), (sT1, WSTR)], 6144 * 256)
else:
    sexpr(sT0, [(sHi, 8 << 21), (sJ, 1 << 21), (sLo, 1024), (sWave, WSTR)], 6144 * 256)
A("v_and_b32 v8, 3, v1")
A("v_lshrrev_b32 v9, 2, v1")
if SWZ:
    A("s_and_b32 %s, %s, 3" % (sT1, sFa))
    A("v_xor_b32 v10, %s, v8" % sT1)
    vexpr(10, [(10, ISTR), (9, 256), (2, 16)])
    A("s_lshr_b32 %s, %s, 2" % (sT2, sFa))
    A("s_mul_i32 %s, %s, %d" % (sT2, sT2, 4 * ISTR))
else:
    vexpr(10, [(8, ISTR), (9, 256), (2, 16)])
A("v_mov_b32 v129, %d" % (FLG + 12))
A("s_waitcnt lgkmcnt(0)")
stamp_init()
stamp("G", 10)
padd(pT2, pV, sT0)
if SWZ:
    padd("s[26:27]", pK, sT0)
    padd(pT, "s[26:27]", sT2)
    A("s_xor_b32 s77, %s, %d" % (sT2, 4 * ISTR))
else:
    padd(pT, pK, sT0)
for tau in range(2):
    for t in range(4):
        if 4 * tau + t == P["B0POS"]:
            A("s_barrier")
        gload("global_load_dwordx4 %s, v10, %s offset:%d%s" % (v(KR + 4 * (4 * tau + t), 4), pT, 64 * t, NT))
    if tau == 0:
        if SWZ:
            padd(pT, "s[26:27]", "s77")
        else:
            padd(pT, pT, 4 * ISTR)
        A("v_mov_b32 %s, v10" % v(SR))
        exec(GADDR)
        A("v_mov_b32 v10, %s" % v(SR))
stamp("G", 11)
NV1 = 8
for jj in range(8):
    if SWZ:
        A("s_xor_b32 %s, %s, %d" % (sT0, sFa, jj))
        A("s_mul_i32 %s, %s, %d" % (sT0, sT0, ISTR))
        padd(pT, pT2, sT0)
        gload("global_load_dwordx4 %s, v3, %s%s" % (v(VR + 4 * jj, 4), pT, NT))
        continue
    gload("global_load_dwordx4 %s, v3, %s%s" % (v(VR + 4 * jj, 4), pT2, NT))
    if jj < 7:
        padd(pT2, pT2, ISTR)
for q in range(4):
    A("v_cndmask_b32 v%d, 0, -1, %s" % (144 + q, mQ[q]))
stamp("G", 9)
if P.get("KVWAIT"):
    A("s_waitcnt vmcnt(0)")
    stamp("G", 14)
if P.get("QLATE"):
    A("s_barrier")
if P.get("PRIO", 0):
    A("s_cmp_ge_u32 %s, 4" % sWave)
    A("s_cbranch_scc1 G_ENTRY")
    A("s_setprio %d" % P["PRIO"])
A.label("G_ENTRY")
A("s_barrier")
cyc(0)
stamp("G")
if NV1 < 8:
    lab = if_layer0()
    for jj in range(NV1, 8):
        A("global_load_dwordx4 %s, v3, %s offset:%d%s" % (v(VR + 4 * jj, 4), pT2, (jj - 4) * 1024, NT))
    A.label(lab)
for t in range(4):
    A("ds_read_b128 %s, %s offset:%d" % (v(QR + 4 * t, 4), v(gQrd), 64 * t))
A("s_waitcnt vmcnt(%d)" % N_AFTER_K)
stamp("G")
S0, S1 = SR, SR + 4
if STAMP == 4:
    A("s_waitcnt lgkmcnt(0)")
    cyc(1)
for t in range(4):
    A("s_waitcnt lgkmcnt(%d)" % ((3 - t) if STAMP != 4 else 15))
    for tau in range(2):
        d = v(SR + 4 * tau, 4)
        A("%s %s, %s, %s, %s" % (MFMA, d, v(KR + 4 * (4 * tau + t), 4), v(QR + 4 * t, 4), "0" if t == 0 else d))
aM, aT, aMc = 136, 137, 138
PR = 140
PM = QR
A("v_max3_f32 %s, %s, %s, %s" % (v(aM), v(S0), v(S0 + 1), v(S0 + 2)))
A("v_max3_f32 %s, %s, %s, %s" % (v(aT), v(S1), v(S1 + 1), v(S1 + 2)))
A("v_max3_f32 %s, %s, %s, %s" % (v(aM), v(aM), v(S0 + 3), v(S1 + 3)))
A("v_max_f32 %s, %s, %s" % (v(aM), v(aM), v(aT)))
cyc(2)
g_allreduce("v_max_f32", aM, aT)
A("v_mul_f32 %s, %s, %s" % (v(aMc), sC, v(aM)))
for q in range(4):
    A("s_mov_b64 exec, %s" % mQ[q])
    A("v_fma_f32 %s, %s, %s, -%s" % (v(PR), v(SR + 2 * q), sC, v(aMc)))
    A("v_fma_f32 %s, %s, %s, -%s" % (v(PR + 1), v(SR + 2 * q + 1), sC, v(aMc)))
A("s_mov_b64 exec, -1")
A("v_exp_f32 %s, %s" % (v(PR), v(PR)))
A("v_exp_f32 %s, %s" % (v(PR + 1), v(PR + 1)))
A("v_cvt_pk_bf16_f32 %s, %s, %s" % (v(PR), v(PR), v(PR + 1)))
cyc(3)
lab0, lab1 = newlabel("VT"), newlabel("VTD")
A("s_cmp_eq_u32 %s, 0" % sL)
A("s_cbranch_scc1 %s" % lab0)
D0 = 4
DL = 128
MK = 144
ONES = GS + 28


def pm(q, p):
    rot = (4 * (q - p)) % 16
    if rot == 0:
        A("v_and_b32 %s, %s, %s" % (v(PM + 4 * q + p), v(PR), v(MK + q)))
    else:
        A("v_and_b32_dpp %s, %s, %s row_ror:%d%s" % (v(PM + 4 * q + p), v(PR), v(MK + q), rot, DPP))


with Cap() as vt:
    for k in range(16):
        pm(k >> 2, k & 3)
    for i in range(4):
        A("v_mov_b32 %s, 0x3f803f80" % v(132 + i))
    A("%s %s, %s, %s, 0" % (MFMA, v(DL, 4), v(132, 4), v(PM, 4)))
    for p in range(4):
        A("s_waitcnt vmcnt(%d)" % (N_AFTER_V + 6 - 2 * p))
        if p == 3:
            stamp("G")
        if P.get("VSIG") and p == P.get("VSP", 1):
            A("v_mov_b32 v12, %d" % (FLG + 12))
            A("v_mov_b32 v13, 1")
            A("s_mov_b64 exec, 1")
            A("ds_add_u32 v12, v13")
            A("s_mov_b64 exec, -1")
        for i in (0, 4, 1, 5, 2, 6, 3, 7):
            A("v_perm_b32 %s, %s, %s, %s" % (v(VF + 4 * i + p), v(VR + 4 * (2 * p + 1) + (i >> 1)), v(VR + 4 * (2 * p) + (i >> 1)),
                                             sPermHi if (i & 1) else sPermLo))
    for q in range(4):
        for a in range(2):
            d = v(D0 + 4 * a, 4)
            A("%s %s, %s, %s, %s" % (MFMA, d, v(VF + 4 * (4 * a + q), 4), v(PM + 4 * q, 4), "0" if q == 0 else d))
    for i in range(4):
        A("v_mov_b32 %s, 0x3f803f80" % v(ONES + i))
OOL.append([lab0 + ":"] + vt.lines + ["s_branch %s" % lab1])
for p in range(4):
    pm(0, p)
pm(1, 0); pm(1, 1)
A("%s %s, %s, %s, 0" % (MFMA, v(DL, 4), v(ONES, 4), v(PM, 4)))
for q in range(4):
    for a in range(2):
        d = v(D0 + 4 * a, 4)
        A("%s %s, %s, %s, %s" % (MFMA, d, v(VF + 4 * (4 * a + q), 4), v(PM + 4 * q, 4), "0" if q == 0 else d))
        nxt = 4 * q + 2 * a + 6
        for k in (nxt, nxt + 1):
            if k < 16:
                pm(k >> 2, k & 3)
A.label(lab1)
A("v_mov_b32 %s, %s" % (v(aMc + 1), v(DL)))
cyc(4)
A("s_mov_b64 exec, %s" % mQ[0])
A("ds_write_b64 %s, %s" % (v(gMlw), v(aMc, 2)))
A("s_mov_b64 exec, -1")
A("ds_write_b128 %s, %s" % (v(gApw), v(D0, 4)))
A("ds_write_b128 %s, %s offset:%d" % (v(gApw), v(D0 + 4, 4), APB))
A("s_waitcnt lgkmcnt(0)")
cyc(5)
A("s_barrier")
cyc(6)
cyc_dump(7)

a0, b0, c0 = GS, GS + 4, GS + 8
r0, r1_, r2, r3 = GS + 12, GS + 13, GS + 14, GS + 15


def add_ab():
    for e in range(4):
        A("v_add_f32 %s, %s, %s" % (v(a0 + e), v(a0 + e), v(b0 + e)))


BC = "row_newbcast:0" + DPP
NS_ = P.get("NSETS", 2)
GSETS = [GS, GS + 16, 112][:NS_]
GAP = P.get("GAP", 3)


def add_ab2(a):
    for e in range(4):
        A("v_add_f32 %s, %s, %s" % (v(a + e), v(a + e), v(a + 4 + e)))


def g_treduce_to(a, out):
    A("v_permlane16_swap_b32 %s, %s" % (v(a), v(a + 1)))
    A("v_permlane16_swap_b32 %s, %s" % (v(a + 2), v(a + 3)))
    A("v_add_f32 %s, %s, %s" % (v(a), v(a), v(a + 1)))
    A("v_add_f32 %s, %s, %s" % (v(a + 2), v(a + 2), v(a + 3)))
    A("v_permlane32_swap_b32 %s, %s" % (v(a), v(a + 2)))
    A("v_add_f32 %s, %s, %s" % (v(out), v(a), v(a + 2)))


A("ds_read_u16 %s, %s" % (v(r3), v(gW1x)))
for e in range(4):
    A("v_mov_b32 %s, 0" % v(c0 + e))
A("s_barrier")
sleep(P.get("DI_O", 0))
stamp("G", 7)


T_ = GS + 16


def o_post():
    c, f0, f1, t = c0, T_ + 4, T_ + 5, T_
    A("v_max_f32 %s, %s, %s" % (v(r0), v(c), v(c + 2)))
    g_allreduce("v_max_f32", r0, r1_)
    A("v_sub_f32 %s, %s, %s" % (v(f0), v(c), v(r0)))
    A("v_sub_f32 %s, %s, %s" % (v(f1), v(c + 2), v(r0)))
    A("v_exp_f32 %s, %s" % (v(f0), v(f0)))
    A("v_exp_f32 %s, %s" % (v(f1), v(f1)))
    with Cap() as c1:
        A("v_mul_f32 %s, %s, %s" % (v(r1_), v(f0), v(c + 1)))
        A("v_fmac_f32 %s, %s, %s" % (v(r1_), v(f1), v(c + 3)))
        g_allreduce("v_add_f32", r1_, r2)
        A("v_rcp_f32 %s, %s" % (v(r1_), v(r1_)))
    with Cap() as c2:
        for e in range(4):
            A("v_mul_f32_dpp %s, %s, %s %s" % (v(t + e), v(f0), v(a0 + e), BC))
        for e in range(4):
            A("v_fmac_f32_dpp %s, %s, %s %s" % (v(t + e), v(f1), v(b0 + e), BC))
        g_treduce_to(t, r0)
    L1_, L2_ = c1.lines, c2.lines
    A(L1_[0]); A(L1_[1])
    for l in interleave(L2_, L1_[2:]):
        A(l)
    A("v_mul_f32_dpp %s, %s, %s %s" % (v(r0), v(r1_), v(r0), BC))


def o_pre():
    c, f0, f1 = c0, T_ + 4, T_ + 5
    A("v_max_f32 %s, %s, %s" % (v(r0), v(c), v(c + 2)))
    g_allreduce("v_max_f32", r0, r1_)
    A("v_sub_f32 %s, %s, %s" % (v(f0), v(c), v(r0)))
    A("v_sub_f32 %s, %s, %s" % (v(f1), v(c + 2), v(r0)))
    A("v_exp_f32 %s, %s" % (v(f0), v(f0)))
    A("v_exp_f32 %s, %s" % (v(f1), v(f1)))
    A("v_mul_f32 %s, %s, %s" % (v(r1_), v(f0), v(c + 1)))
    A("v_fmac_f32 %s, %s, %s" % (v(r1_), v(f1), v(c + 3)))
    g_allreduce("v_add_f32", r1_, r2)
    A("v_rcp_f32 %s, %s" % (v(r1_), v(r1_)))
    A("v_mul_f32 %s, %s, %s" % (v(f0), v(f0), v(r1_)))
    A("v_mul_f32 %s, %s, %s" % (v(f1), v(f1), v(r1_)))
    A("v_mov_b32_dpp %s, %s %s" % (v(f0), v(f0), BC))
    A("v_mov_b32_dpp %s, %s %s" % (v(f1 + 1), v(f1), BC))


def o_post2():
    f0, f1 = T_ + 4, T_ + 6
    for h in range(2):
        A("v_pk_mul_f32 %s, %s, %s op_sel_hi:[0,1]" % (v(a0 + 2 * h, 2), v(f0, 2), v(a0 + 2 * h, 2)))
    for h in range(2):
        A("v_pk_fma_f32 %s, %s, %s, %s op_sel_hi:[0,1,1]" % (v(a0 + 2 * h, 2), v(f1, 2), v(b0 + 2 * h, 2), v(a0 + 2 * h, 2)))
    g_treduce_to(a0, r0)


if P.get("SPLIT", 0):
    split_poll("global_load_dwordx4 %s, %s, %s sc1" % (v(c0, 4), v(gOml), pWJ), 0x0001000100010001, list(range(c0, c0 + 4)),
               ["global_load_dwordx4 %s, %s, %s sc1" % (v(a0, 4), v(gOg), pWJ),
                "global_load_dwordx4 %s, %s, %s offset:512 sc1" % (v(b0, 4), v(gOg), pWJ)], range(a0, a0 + 8), o_pre, o_post2, ck=0)
else:
    opt_poll("global_load_dwordx4 %s, %s, %s sc1" % (v(c0, 4), v(gOml), pWJ), 0x0001000100010001, range(c0, c0 + 4),
             ["global_load_dwordx4 %s, %s, %s sc1" % (v(a0, 4), v(gOg), pWJ),
              "global_load_dwordx4 %s, %s, %s offset:512 sc1" % (v(b0, 4), v(gOg), pWJ)], range(a0, a0 + 8), o_post, [r0], ck=0)
stamp("G")
A("v_cvt_pk_bf16_f32 %s, %s, %s" % (v(r0), v(r0), v(r0)))
A("ds_write_b16 %s, %s" % (v(gOlds), v(r0)))
A("s_waitcnt lgkmcnt(0)")
cycg(3)
A("s_barrier")
cycg(4)

A("v_lshlrev_b32 %s, 16, %s" % (v(r3), v(r3)))
A("s_barrier")
A("s_cmp_eq_u32 %s, 0" % sL)
A("s_cbranch_scc1 G_CS1")
sleep(P["D_W1"])
A.label("G_CS1_DONE")
with Cap() as cs1:
    A("s_mul_i32 %s, %s, %d" % (sT0, sHi, 16 * 896))
    A("s_add_u32 %s, %s, %d" % (sT0, sT0, E4 - E4C))
    A("v_subrev_u32 %s, %s, %s" % (v(r2), sT0, v(gW2g)))
    poll(["global_load_dwordx4 %s, %s, %s sc1" % (v(a0, 4), v(r2), pWJ),
          "global_load_dwordx4 %s, %s, %s offset:896 sc1" % (v(b0, 4), v(r2), pWJ)],
         [(a0 + e, b0 + e) for e in range(4)])
    add_ab()
    g_treduce(a0)
    A("v_add_f32_dpp %s, %s, %s row_ror:8%s" % (v(gCs1), v(a0), v(a0), DPP))
    A("v_lshlrev_b32 %s, 16, %s" % (v(gB1), v(gB1)))
    A("v_lshlrev_b32 %s, 16, %s" % (v(gB2), v(gB2)))
OOL.append(["G_CS1:"] + cs1.lines + ["s_branch G_CS1_DONE"])
stamp("G", 8)


def w1_issue(a):
    A("global_load_dwordx4 %s, %s, %s sc1" % (v(a, 4), v(gW1g), pWL))
    A("global_load_dwordx4 %s, %s, %s offset:%d sc1" % (v(a + 4, 4), v(gW1g), pWL, 1024 if P.get("E3L", 1) else 512))


def w1_post(a):
    add_ab2(a)
    g_treduce_to(a, r0)
    A("v_add_f32_dpp %s, %s, %s row_ror:4%s" % (v(r0), v(r0), v(r0), DPP))
    A("v_add_f32_dpp %s, %s, %s row_ror:8%s" % (v(r0), v(r0), v(r0), DPP))


if P.get("E3B", 1):
    pk, t_ = GS, GS + 4
    ld = "global_load_dwordx4 %s, %s, %s sc1" % (v(pk, 4), v(gW1g), pWL)
    A(ld)
    A.label("W1B_CHK")
    A("s_waitcnt vmcnt(0)")
    A("v_dot2_f32_bf16 %s, %s, s47, 0" % (v(t_), v(pk)))
    for e in range(1, 4):
        A("v_dot2_f32_bf16 %s, %s, s47, %s" % (v(t_), v(pk + e), v(t_)))
    A("v_cmp_u_f32 vcc, %s, %s" % (v(t_), v(t_)))
    A("s_cbranch_vccnz W1B_RETRY")
    A.label("W1B_OK")
    OOL.append(["W1B_RETRY:", "s_mov_b64 exec, vcc", ld, "s_mov_b64 exec, -1", "s_sub_u32 %s, %s, 1" % (sBud, sBud),
                "s_cbranch_scc0 W1B_CHK", "s_mov_b32 %s, 0" % sBud, "s_waitcnt vmcnt(0)", "s_branch W1B_OK"])
    A("v_permlane32_swap_b32 %s, %s" % (v(pk), v(pk + 2)))
    A("v_permlane32_swap_b32 %s, %s" % (v(pk + 1), v(pk + 3)))
    for e, (src, sel) in enumerate(((0, "s61"), (0, "s46"), (1, "s61"), (1, "s46"))):
        A("v_dot2_f32_bf16 %s, %s, %s, 0" % (v(t_ + e), v(pk + src), sel))
        A("v_dot2_f32_bf16 %s, %s, %s, %s" % (v(t_ + e), v(pk + 2 + src), sel, v(t_ + e)))
    A("v_permlane16_swap_b32 %s, %s" % (v(t_), v(t_ + 2)))
    A("v_permlane16_swap_b32 %s, %s" % (v(t_ + 1), v(t_ + 3)))
    A("v_add_f32 %s, %s, %s" % (v(t_), v(t_), v(t_ + 2)))
    A("v_add_f32 %s, %s, %s" % (v(t_ + 1), v(t_ + 1), v(t_ + 3)))
    A("v_cndmask_b32 %s, %s, %s, s[48:49]" % (v(t_ + 2), v(t_ + 1), v(t_)))
    A("v_cndmask_b32 %s, %s, %s, s[48:49]" % (v(r0), v(t_), v(t_ + 1)))
    A("v_add_f32_dpp %s, %s, %s row_ror:8%s" % (v(r0), v(t_ + 2), v(r0), DPP))
    A("v_add_f32_dpp %s, %s, %s %s" % (v(r0), v(r0), v(r0), X2))
    A("v_add_f32_dpp %s, %s, %s row_shr:4 row_mask:0xf bank_mask:0xa" % (v(r0), v(r0), v(r0)))
else:
    fast_poll(w1_issue, None, w1_post, None, [r0], GS)
stamp("G")
A("v_add_f32 %s, %s, %s" % (v(r0), v(r0), v(r3)))
A("v_cvt_pk_bf16_f32 %s, %s, %s" % (v(r0), v(r0), v(r0)))
if P.get("E3B", 1):
    set_exec(0xF0F0F0F0F0F0F0F0)
A("ds_write_b16 %s, %s" % (v(gW1lds), v(r0)))
if P.get("E3B", 1):
    set_exec(-1)
A("s_waitcnt lgkmcnt(0)")
A("s_barrier")

k0 = -2 * math.log2(math.e) * math.sqrt(2 / math.pi)
A("v_mov_b32 %s, %s" % (v(r2), f32(k0)))
A("s_barrier")
A("s_cmp_eq_u32 %s, 7" % sWave)
A("s_cbranch_scc1 G_W2_SKIP")
sleep(P.get("DI_W2", 0))
stamp("G", 12)


def add_to(t):
    for e in range(4):
        A("v_add_f32 %s, %s, %s" % (v(t + e), v(a0 + e), v(b0 + e)))


def w2_post():
    with Cap() as c1:
        stats_math(c0, T_ + 4, 1.0 + 1e-5, 1e-10)
        A("v_fma_f32 %s, -%s, %s, %s" % (v(r3), v(T_ + 5), v(gCs1), v(gB1)))
    with Cap() as c2:
        add_to(T_)
        g_treduce_to(T_, r0)
        A("v_add_f32_dpp %s, %s, %s row_ror:8%s" % (v(r0), v(r0), v(r0), DPP))
    for l in interleave(c1.lines, c2.lines):
        A(l)
    A("v_fma_f32 %s, %s, %s, %s" % (v(r0), v(r0), v(T_ + 4), v(r3)))


def pk_add(a):
    for h in range(2):
        A("v_pk_add_f32 %s, %s, %s" % (v(a + 2 * h, 2), v(a + 2 * h, 2), v(a + 4 + 2 * h, 2)))


def w2_pre():
    stats_math(c0, T_ + 4, 1.0 + 1e-5, 1e-10)
    A("v_fma_f32 %s, -%s, %s, %s" % (v(r3), v(T_ + 5), v(gCs1), v(gB1)))


def w2_post2():
    pk_add(a0)
    g_treduce_to(a0, r0)
    A("v_add_f32_dpp %s, %s, %s row_ror:8%s" % (v(r0), v(r0), v(r0), DPP))
    A("v_fma_f32 %s, %s, %s, %s" % (v(r0), v(r0), v(T_ + 4), v(r3)))


if P.get("SPLIT", 0):
    split_poll("global_load_dword %s, %s, %s sc1" % (v(c0), v(gW2s), pWJ), 0xFFFFFFFF, [c0],
               ["global_load_dwordx4 %s, %s, %s sc1" % (v(a0, 4), v(gW2g), pWJ),
                "global_load_dwordx4 %s, %s, %s offset:896 sc1" % (v(b0, 4), v(gW2g), pWJ)], range(a0, a0 + 8), w2_pre, w2_post2, ck=5)
else:
    opt_poll("global_load_dword %s, %s, %s sc1" % (v(c0), v(gW2s), pWJ), 0xFFFFFFFF, [c0],
             ["global_load_dwordx4 %s, %s, %s sc1" % (v(a0, 4), v(gW2g), pWJ),
              "global_load_dwordx4 %s, %s, %s offset:896 sc1" % (v(b0, 4), v(gW2g), pWJ)], range(a0, a0 + 8), w2_post, [r0], ck=5)
stamp("G")
RX = GS + 27
A("v_mul_f32 %s, %s, %s" % (v(r1_), v(r0), v(r0)))
A("v_fmac_f32 %s, %s, %s" % (v(r2), f32(k0 * 0.044715), v(r1_)))
A("v_mul_f32 %s, %s, %s" % (v(r2), v(r2), v(r0)))
A("v_exp_f32 %s, %s" % (v(r2), v(r2)))
A("v_add_f32 %s, 1.0, %s" % (v(r2), v(r2)))
A("v_rcp_f32 %s, %s" % (v(r2), v(r2)))
A("v_mul_f32 %s, %s, %s" % (v(r0), v(r0), v(r2)))
A("v_cvt_pk_bf16_f32 %s, %s, %s" % (v(r0), v(r0), v(r0)))
A("ds_write_b16 %s, %s" % (v(gW2lds), v(r0)))
A("s_waitcnt lgkmcnt(0)")
cycg(8)
A.label("G_W2_SKIP")
A("s_barrier")
cycg(9)
if STAMP == 6:
    A("s_waitcnt lgkmcnt(0)")
    for k in range(10):
        A("v_writelane_b32 v15, s%d, %d" % (80 + 2 * k, 32 + k))

A("s_cmp_eq_u32 %s, 0" % sL)
A("s_cbranch_scc1 G_X_GO")
A("s_cmp_lg_u32 %s, 0" % sLo)
A("s_cbranch_scc1 L_EXIT")
A("s_cmp_lg_u32 %s, %s" % (sWave, sJ))
A("s_cbranch_scc1 L_EXIT")
A.label("G_X_GO")


def xpre():
    A("v_lshlrev_b32 %s, 16, %s" % (v(r3), v(r3)))


A("global_load_ushort %s, %s, %s sc1" % (v(RX), v(gXr), pWJ))
A.label("G_RX_CHK")
A("s_waitcnt vmcnt(0)")
A("v_lshlrev_b32 %s, 16, %s" % (v(r3), v(RX)))
A("v_cmp_u_f32 vcc, %s, %s" % (v(r3), v(r3)))
A("s_cbranch_vccnz G_RX_RETRY")
A.label("G_RX_OK")
OOL.append(["G_RX_RETRY:", "global_load_ushort %s, %s, %s sc1" % (v(RX), v(gXr), pWJ),
            "s_sub_u32 %s, %s, 1" % (sBud, sBud), "s_cbranch_scc0 G_RX_CHK", "s_mov_b32 %s, 0" % sBud, "s_branch G_RX_OK"])
A("v_add_f32 %s, %s, %s" % (v(r3), v(r3), v(gB2)))
A("s_barrier")
sleep(P["D_X"])
stamp("G", 13)


def x_post():
    pk_add(a0)
    g_treduce_to(a0, r0)


opt_poll(None, 0, [], ["global_load_dwordx4 %s, %s, %s sc1" % (v(a0, 4), v(gXg), pWL),
                       "global_load_dwordx4 %s, %s, %s offset:256 sc1" % (v(b0, 4), v(gXg), pWL)], range(a0, a0 + 8), x_post, [r0])
stamp("G")
A("v_add_f32 %s, %s, %s" % (v(r0), v(r0), v(r3)))
A("v_cvt_pk_bf16_f32 %s, %s, %s" % (v(r0), v(r0), v(r0)))
A("s_cmp_lg_u32 %s, 0" % sL)
A("s_cbranch_scc1 G_FINAL")
A("ds_write_b16 %s, %s" % (v(gXlds), v(r0)))
A("s_mov_b32 %s, 1" % sL)
padd(pWL, pWL, LSTR)
A("s_waitcnt lgkmcnt(0)")
A("s_barrier")
A("s_waitcnt vmcnt(0)")
A("s_branch G_ENTRY")
A.label("G_FINAL")
sleep(P.get("ENDSLEEP", 0))
if "ECHO" in P:
    A("s_memrealtime s[82:83]")
    A("s_sub_u32 s80, s80, s78")
    A("s_waitcnt lgkmcnt(0)")
    A("s_add_u32 s80, s80, s82")
    A.label("ECHO_SPIN")
    A("s_memrealtime s[82:83]")
    A("s_waitcnt lgkmcnt(0)")
    A("s_cmp_lt_u32 s82, s80")
    A("s_cbranch_scc1 ECHO_SPIN")
A("global_store_short %s, %s, %s" % (v(gOut), v(r0), pOUT))
A.label("L_EXIT")
stamp_dump()
A.label("L_END")
A("s_endpgm")
for blk in OOL:
    for l in blk:
        A(l)
A("s_endpgm")

A.fix_hazards()

hdr = open("cdna_kernels/%s.s.ref" % NAME).read().split("; Override launch")[0]
out = hdr + """; @launch grid=(256,1,1) block=(768,1,1) lds=%d
;
; One persistent launch, one workgroup per CU (12 waves: 4 "service" + 8 "attention/gather" waves).
; K/V window and all weight tiles are loaded once and stay on chip for both layers. Stages hand data to
; each other through d_ws: buffers are cleared to a signalling-NaN sentinel inside the launch (guarded by
; per-workgroup records tagged with a launch nonce published in d_debug) and polled with sc1 loads.
; Workgroups with equal (id & 7) form a group; a group whose members report the same XCC id uses plain
; stores for its private exchanges, any other placement falls back to write-through (sc1) stores.
; Generated by dev/gen.py (hand-written generator, wait states inserted by dev/asmlib.py).
.amdgcn_target "amdgcn-amd-amdhsa--gfx950"
.text
.globl %s_kernel
.p2align 8
.type %s_kernel,@function
%s_kernel:
%s
    ; pad the code section so that the 12 KB code prefetch stays inside it
    .fill ((12288 + 256 - (. - %s_kernel)) / 4), 4, 0xbf810000
.section .rodata,"a"
.p2align 6
.amdhsa_kernel %s_kernel
  .amdhsa_next_free_vgpr 168
  .amdhsa_next_free_sgpr 102
  .amdhsa_accum_offset 168
  .amdhsa_group_segment_fixed_size 0
  .amdhsa_kernarg_size 104
  .amdhsa_user_sgpr_count 2
  .amdhsa_user_sgpr_kernarg_segment_ptr 1
  .amdhsa_system_sgpr_workgroup_id_x 1
.end_amdhsa_kernel
""" % (LDS_TOTAL, NAME, NAME, NAME, A.text(), NAME, NAME)
open(sys.argv[1], "w").write(out)
print("wrote", sys.argv[1], "instructions:", sum(1 for x in A.ins if not x.label), "LDS", LDS_TOTAL)
```

```python
import sys, math, struct, os
from asmlib import Asm

NAME = "interleave_layers__sliding_block_cached__mixer_channel_mlp__decode"

P = dict(B0POS=0, W=64, NV1=8, D_A0=64, NSL=6, NLATE=1, D_O=0, D_W1=10, D_W2=0, D_X=9, D_A=0, NT="", STAMP=0, FORCE_SAFE=0, PREF=1)
for a in sys.argv[2:]:
    k, v_ = a.split("=")
    P[k] = int(v_) if v_.lstrip("-").isdigit() else v_


def f32(x):
    return "0x%08x" % struct.unpack("<I", struct.pack("<f", x))[0]


LSTR = 0x200000
JSTR = 196608
E1, E1S, E4C = 0, 40960, 45056
E1T = 0x200000 * 2
REC = 0x1D8000
E2, E4, E4R, E2S, E4S = 65536, 131072, 188416, 61440, 193536
E3, E5 = 0x180000, 0x1C0000
SENT = 0x7F817F81
LW_Q, LW_O, LW_2, LW_1 = 0, 16384, 32768, 61440
RS_, RS1 = 320, 64
XOP = 68608
QOP = XOP + 5 * RS_
OOP = QOP + 4 * RS_
X1OP = OOP + 4 * RS_
HOP = X1OP + 5 * RS1
ML = HOP + 448
FLG = ML + 256
ST0 = FLG + 16
NONCE = ST0 + 32
AP = (NONCE + 16 + 1023) // 1024 * 1024
APB = 1152
LDS_TOTAL = AP + 16 * APB
assert all(x % 16 == 0 for x in (XOP, QOP, OOP, X1OP, HOP, ML))

sWave, sJ, sS, sHi, sLo, sR1, sC1, sL, sBud = "s3", "s4", "s5", "s6", "s7", "s8", "s9", "s10", "s11"
sT0, sT1, sT2, sT3 = "s12", "s13", "s14", "s15"
pX, pK, pV, pWQ, pWO, pW1, pB1, pW2, pB2, pOUT, pDBG, pWS = (
    "s[16:17]", "s[18:19]", "s[20:21]", "s[22:23]", "s[24:25]", "s[28:29]", "s[30:31]", "s[32:33]", "s[34:35]",
    "s[36:37]", "s[38:39]", "s[40:41]")
pWL = "s[42:43]"
sFast = "s44"
sU = "s45"
mQ = ["s[50:51]", "s[52:53]", "s[54:55]", "s[56:57]"]
sPermLo, sPermHi = "s58", "s59"
sC = "s60"
pT = "s[62:63]"
pT2 = "s[64:65]"
sXcc = "s66"
sK0, sK1, sK2 = "s67", "s68", "s69"
mT = "s[70:71]"
pWJ = "s[72:73]"
pPC = "s[46:47]"
pN = "s[48:49]"

A = Asm()
NT = (" " + P["NT"]) if P["NT"] else ""
STAMP = P["STAMP"]


def v(n, cnt=1):
    return "v%d" % n if cnt == 1 else "v[%d:%d]" % (n, n + cnt - 1)


def smov64(pair, val):
    lo = int(pair[2:].split(":")[0])
    A("s_mov_b32 s%d, 0x%08x" % (lo, val & 0xFFFFFFFF))
    A("s_mov_b32 s%d, 0x%08x" % (lo + 1, val >> 32))


def exec_lines(val):
    if val == -1:
        return ["s_mov_b64 exec, -1"]
    if 0 <= val <= 64:
        return ["s_mov_b64 exec, %d" % val]
    return ["s_mov_b32 exec_lo, 0x%08x" % (val & 0xFFFFFFFF), "s_mov_b32 exec_hi, 0x%08x" % (val >> 32)]


def set_exec(val):
    for l in exec_lines(val):
        A(l)


def padd(dst, src, soff):
    d = int(dst[2:].split(":")[0]); s = int(src[2:].split(":")[0])
    A("s_add_u32 s%d, s%d, %s" % (d, s, soff))
    A("s_addc_u32 s%d, s%d, 0" % (d + 1, s + 1))


def sexpr(dst, terms, const=0, tmp=sT3):
    first = True
    for (r, m) in terms:
        t = dst if first else tmp
        if m == 1:
            if first:
                A("s_mov_b32 %s, %s" % (dst, r))
            else:
                A("s_add_u32 %s, %s, %s" % (dst, dst, r))
            first = False
            continue
        if m & (m - 1) == 0:
            A("s_lshl_b32 %s, %s, %d" % (t, r, m.bit_length() - 1))
        else:
            A("s_mul_i32 %s, %s, %d" % (t, r, m))
        if not first:
            A("s_add_u32 %s, %s, %s" % (dst, dst, t))
        first = False
    if first:
        A("s_mov_b32 %s, %d" % (dst, const))
    elif const:
        A("s_add_u32 %s, %s, %d" % (dst, dst, const))


def vexpr(dst, terms, sreg=None, const=0):
    first = True
    for (r, m) in terms:
        if first:
            if m == 1:
                A("v_mov_b32 %s, %s" % (v(dst), v(r)))
            elif m & (m - 1) == 0:
                A("v_lshlrev_b32 %s, %d, %s" % (v(dst), m.bit_length() - 1, v(r)))
            else:
                A("v_mul_u32_u24 %s, %d, %s" % (v(dst), m, v(r)))
            first = False
        else:
            assert m & (m - 1) == 0, "non power of two term must come first"
            A("v_lshl_add_u32 %s, %s, %d, %s" % (v(dst), v(r), m.bit_length() - 1, v(dst)))
    if sreg:
        A("v_add_u32 %s, %s, %s" % (v(dst), sreg, v(dst)))
    if const:
        A("v_add_u32 %s, %d, %s" % (v(dst), const, v(dst)))


DPP = " row_mask:0xf bank_mask:0xf"
X1 = "quad_perm:[1,0,3,2]" + DPP
X2 = "quad_perm:[2,3,0,1]" + DPP
HM = "row_half_mirror" + DPP
RM = "row_mirror" + DPP
_lab = [0]


def newlabel(p="L"):
    _lab[0] += 1
    return "%s_%d" % (p, _lab[0])


def sleep(n):
    while n > 0:
        k = min(n, 127)
        A("s_sleep %d" % k)
        n -= k


def g_treduce(a):
    A("v_permlane16_swap_b32 %s, %s" % (v(a), v(a + 1)))
    A("v_permlane16_swap_b32 %s, %s" % (v(a + 2), v(a + 3)))
    A("v_add_f32 %s, %s, %s" % (v(a), v(a), v(a + 1)))
    A("v_add_f32 %s, %s, %s" % (v(a + 2), v(a + 2), v(a + 3)))
    A("v_permlane32_swap_b32 %s, %s" % (v(a), v(a + 2)))
    A("v_add_f32 %s, %s, %s" % (v(a), v(a), v(a + 2)))


def g_allreduce(op, r, t):
    for sw in ("v_permlane16_swap_b32", "v_permlane32_swap_b32"):
        A("v_mov_b32 %s, %s" % (v(t), v(r)))
        A("%s %s, %s" % (sw, v(r), v(t)))
        A("%s %s, %s, %s" % (op, v(r), v(r), v(t)))


def budget_loop(top):
    A("s_sub_u32 %s, %s, 1" % (sBud, sBud))
    A("s_cbranch_scc0 %s" % top)
    A("s_mov_b32 %s, 0" % sBud)


def poll(loads, check_pairs, pre=None, nap=0):
    top, done = newlabel("POLL"), newlabel("PDONE")
    A.label(top)
    for l in loads:
        A(l)
    A("s_waitcnt vmcnt(0)")
    if pre:
        pre()
    first = True
    for (a, b) in check_pairs:
        if first:
            A("v_cmp_u_f32 vcc, %s, %s" % (v(a), v(b)))
            first = False
        else:
            A("v_cmp_u_f32 %s, %s, %s" % (mT, v(a), v(b)))
            A("s_or_b64 vcc, vcc, %s" % mT)
    A("s_cbranch_vccz %s" % done)
    sleep(nap)
    budget_loop(top)
    A.label(done)


def half(loads):
    import re
    if P.get("HALF") == 1:
        m = re.search(r"v\[(\d+):(\d+)\]", loads[1])
        for r_ in range(int(m.group(1)), int(m.group(2)) + 1):
            A("v_mov_b32 v%d, 0" % r_)
        return loads[:1]
    if P.get("HALF") == 2:
        out = []
        for l in loads:
            m = re.search(r"v\[(\d+):(\d+)\]", l)
            lo = int(m.group(1))
            A("v_mov_b32 v%d, 0" % (lo + 2)); A("v_mov_b32 v%d, 0" % (lo + 3))
            out.append(l.replace("dwordx4", "dwordx2").replace(m.group(0), "v[%d:%d]" % (lo, lo + 1)))
        return out
    return loads


def canary(load, pairs, mask, nap=0):
    set_exec(mask)
    poll([load], pairs, nap=nap)
    set_exec(-1)


def bulk(loads, mid, post, res):
    top, again, done = newlabel("BK"), newlabel("BKA"), newlabel("BKD")
    loads = half(loads)
    for l in loads:
        A(l)
    if mid:
        mid()
    A.label(top)
    A("s_waitcnt vmcnt(0)")
    post()
    A("v_cmp_u_f32 vcc, %s, %s" % (v(res[0]), v(res[-1])))
    A("s_cbranch_vccz %s" % done)
    for l in loads:
        A(l)
    budget_loop(top)
    A("s_waitcnt vmcnt(0)")
    A.label(done)


def round1(small, mask, loads, mid, post, res):
    top, done = newlabel("RD"), newlabel("RDD")
    loads = half(loads)
    A.label(top)
    set_exec(mask)
    A(small)
    set_exec(-1)
    for l in loads:
        A(l)
    A("s_waitcnt vmcnt(%d)" % len(loads))
    mid()
    A("s_waitcnt vmcnt(0)")
    post()
    A("v_cmp_u_f32 vcc, %s, %s" % (v(res[0]), v(res[-1])))
    A("s_cbranch_vccz %s" % done)
    budget_loop(top)
    A.label(done)


def pipe_poll(issue, n_small, n_bulk, mid, post, res, sets, gap):
    n = n_small + n_bulk
    k = len(sets)
    top, done = newlabel("PP"), newlabel("PPD")
    for i in range(k - 1):
        issue(sets[i])
        sleep(gap)
    A.label(top)
    for i in range(k):
        issue(sets[(i + k - 1) % k])
        if n_small:
            A("s_waitcnt vmcnt(%d)" % ((k - 1) * n + n_bulk))
            mid(sets[i])
        A("s_waitcnt vmcnt(%d)" % ((k - 1) * n))
        post(sets[i])
        A("v_cmp_u_f32 vcc, %s, %s" % (v(res[0]), v(res[-1])))
        A("s_cbranch_vccz %s" % done)
    budget_loop(top)
    A.label(done)


OOL = []


def interleave(c1, c2):
    out, i2 = [], 0
    for k, x in enumerate(c1):
        out.append(x)
        want = (k + 1) * len(c2) // max(1, len(c1) - 4)
        while i2 < min(want, len(c2)):
            out.append(c2[i2]); i2 += 1
    return out + c2[i2:]


class Cap:
    def __enter__(self):
        self.n = len(A.ins); return self

    def __exit__(self, *a):
        self.lines = [x.text for x in A.ins[self.n:]]
        del A.ins[self.n:]


def fast_poll_full(issue, mid, post, fin, res, a):
    top, again, done = newlabel("FP"), newlabel("FPR"), newlabel("FPD")
    A.label(top)
    issue(a)
    A("s_waitcnt vmcnt(0)")
    with Cap() as c2:
        post(a)
    if mid:
        with Cap() as c1:
            mid(a)
        for l in interleave(c1.lines, c2.lines):
            A(l)
    else:
        for l in c2.lines:
            A(l)
    if fin:
        fin(a)
    A("v_cmp_u_f32 vcc, %s, %s" % (v(res[0]), v(res[-1])))
    A("s_cbranch_vccnz %s" % again)
    A.label(done)
    OOL.append([again + ":", "s_sub_u32 %s, %s, 1" % (sBud, sBud), "s_cbranch_scc0 %s" % top,
                "s_mov_b32 %s, 0" % sBud, "s_branch %s" % done])


def fast_poll(issue, mid, post, fin, res, a):
    if not P.get("MPOLL", 1):
        return fast_poll_full(issue, mid, post, fin, res, a)
    with Cap() as ci:
        issue(a)
    loads = [l for l in ci.lines if l.startswith("global_load")]
    small = len(loads) == 3
    chk, again, done = newlabel("MPC"), newlabel("MPR"), newlabel("MPD")
    if small:
        n = 4 if "dwordx4" in loads[0] else 2
        for e in range(n):
            A("v_mov_b32 %s, 0" % v(a + 8 + e))
    for l in ci.lines:
        A(l)
    A.label(chk)
    A("s_waitcnt vmcnt(0)")
    t = a + 20
    A("v_add_f32 %s, %s, %s" % (v(t), v(a), v(a + 1)))
    A("v_add_f32 %s, %s, %s" % (v(t + 1), v(a + 2), v(a + 3)))
    A("v_add_f32 %s, %s, %s" % (v(t + 2), v(a + 4), v(a + 5)))
    A("v_add_f32 %s, %s, %s" % (v(t + 3), v(a + 6), v(a + 7)))
    if small:
        A("v_add_f32 %s, %s, %s" % (v(t), v(t), v(a + 8)))
        A("v_add_f32 %s, %s, %s" % (v(t + 1), v(t + 1), v(a + 9)))
        if n == 4:
            A("v_add_f32 %s, %s, %s" % (v(t + 2), v(t + 2), v(a + 10)))
            A("v_add_f32 %s, %s, %s" % (v(t + 3), v(t + 3), v(a + 11)))
    A("v_add_f32 %s, %s, %s" % (v(t), v(t), v(t + 1)))
    A("v_add_f32 %s, %s, %s" % (v(t + 2), v(t + 2), v(t + 3)))
    A("v_cmp_u_f32 vcc, %s, %s" % (v(t), v(t + 2)))
    A("s_cbranch_vccnz %s" % again)
    A.label(done)
    with Cap() as c2:
        post(a)
    if mid:
        with Cap() as c1:
            mid(a)
        for l in interleave(c1.lines, c2.lines):
            A(l)
    else:
        for l in c2.lines:
            A(l)
    if fin:
        fin(a)
    blk = [again + ":"]
    if small:
        em = [l for l in ci.lines if l.startswith("s_mov") and "-1" not in l]
        blk += em + ["s_and_b64 exec, exec, vcc", loads[0]]
    blk += ["s_mov_b64 exec, vcc"] + loads[-2:] + ["s_mov_b64 exec, -1",
            "s_sub_u32 %s, %s, 1" % (sBud, sBud), "s_cbranch_scc0 %s" % chk,
            "s_mov_b32 %s, 0" % sBud, "s_waitcnt vmcnt(0)", "s_branch %s" % done]
    OOL.append(blk)


def opt_poll(small, smask, sregs, loads, lregs, post, res, ck=None):
    top, done = newlabel("OP"), newlabel("OPD")
    cand, sm = "s[70:71]", "s[64:65]"
    regs = list(lregs) + (list(sregs) if small else [])
    if len(regs) % 2:
        regs.append(regs[-1])
    if small:
        smov64(sm, smask)
    A("s_mov_b64 %s, -1" % cand)
    if ck is not None:
        cycg(ck)
        if STAMP == 6:
            A("s_mov_b32 s77, %s" % sBud)
    A.label(top)
    if small:
        A("s_and_b64 exec, %s, %s" % (cand, sm))
        A(small)
        A("s_mov_b64 exec, %s" % cand)
    for l in loads:
        A(l)
    A("s_sub_u32 %s, %s, 1" % (sBud, sBud))
    A("s_cbranch_scc1 %s_X" % top)
    A("s_waitcnt vmcnt(0)")
    for i in range(0, len(regs), 2):
        A("v_cmpx_o_f32 vcc, %s, %s" % (v(regs[i]), v(regs[i + 1])))
    A("s_andn2_b64 %s, %s, exec" % (cand, cand))
    A("s_mov_b64 exec, %s" % cand)
    A("s_cbranch_scc1 %s" % top)
    A.label(done)
    A("s_mov_b64 exec, -1")
    if ck is not None:
        cycg(ck + 1)
        if STAMP == 6:
            A("s_sub_u32 s77, s77, %s" % sBud)
            A("v_writelane_b32 v15, s77, %d" % (48 + ck))
    post()
    if ck is not None:
        cycg(ck + 2)
    OOL.append([top + "_X:", "s_mov_b32 %s, 0" % sBud, "s_waitcnt vmcnt(0)", "s_branch %s" % done])


def split_poll(small, smask, sregs, loads, lregs, pre, post, ck=None):
    top, fm, slow, done = newlabel("SP"), newlabel("SPF"), newlabel("SPS"), newlabel("SPD")
    cand, sm = "s[70:71]", "s[64:65]"
    sr = list(sregs) + ([sregs[-1]] if len(sregs) % 2 else [])
    lr = list(lregs)
    smov64(sm, smask)
    A("s_mov_b64 %s, -1" % cand)
    if ck is not None:
        cycg(ck)
    A("s_mov_b64 exec, %s" % sm)
    A(small)
    A("s_mov_b64 exec, -1")
    for l in loads:
        A(l)
    A("s_waitcnt vmcnt(%d)" % len(loads))
    for i in range(0, len(sr), 2):
        A("v_cmpx_o_f32 vcc, %s, %s" % (v(sr[i]), v(sr[i + 1])))
    A("s_andn2_b64 vcc, %s, exec" % cand)
    A("s_mov_b64 exec, -1")
    A("s_cbranch_scc1 %s" % slow)
    A.label(fm)
    pre()
    A("s_branch %s_C" % top)
    A.label(top)
    for l in loads:
        A(l)
    A("s_sub_u32 %s, %s, 1" % (sBud, sBud))
    A("s_cbranch_scc1 %s_X" % top)
    A.label(top + "_C")
    A("s_waitcnt vmcnt(0)")
    for i in range(0, len(lr), 2):
        A("v_cmpx_o_f32 vcc, %s, %s" % (v(lr[i]), v(lr[i + 1])))
    A("s_andn2_b64 %s, %s, exec" % (cand, cand))
    A("s_mov_b64 exec, %s" % cand)
    A("s_cbranch_scc1 %s" % top)
    A.label(done)
    A("s_mov_b64 exec, -1")
    if ck is not None:
        cycg(ck + 1)
    post()
    if ck is not None:
        cycg(ck + 2)
    OOL.append([top + "_X:", "s_mov_b32 %s, 0" % sBud, "s_waitcnt vmcnt(0)", "s_branch %s" % done])
    allr = lr + sr
    blk = [slow + ":", "s_waitcnt vmcnt(0)"]
    blk += ["v_cmpx_o_f32 vcc, %s, %s" % (v(allr[i]), v(allr[i + 1])) for i in range(0, len(allr), 2)]
    blk += ["s_andn2_b64 %s, %s, exec" % (cand, cand), "s_cbranch_scc0 %s_E" % slow,
            "s_and_b64 exec, %s, %s" % (cand, sm), small, "s_mov_b64 exec, %s" % cand] + loads
    blk += ["s_sub_u32 %s, %s, 1" % (sBud, sBud), "s_cbranch_scc0 %s" % slow, "s_mov_b32 %s, 0" % sBud, "s_waitcnt vmcnt(0)",
            slow + "_E:", "s_mov_b64 exec, -1", "s_mov_b64 %s, -1" % cand, "s_branch %s" % fm]
    OOL.append(blk)


def stats_math(c, t, eps_mul, eps_add):
    A("v_add_f32_dpp %s, %s, %s %s" % (v(t), v(c), v(c), X1))
    for m in (X2, HM, RM):
        A("v_add_f32_dpp %s, %s, %s %s" % (v(t), v(t), v(t), m))
    A("v_readlane_b32 %s, %s, 0" % (sT0, v(t)))
    A("v_readlane_b32 %s, %s, 16" % (sT1, v(t)))
    A("v_mov_b32 %s, %s" % (v(t + 2), f32(1 / 512)))
    A("v_mov_b32 %s, %s" % (v(t + 3), f32(eps_add)))
    A("v_mul_f32 %s, %s, %s" % (v(t + 1), sT0, v(t + 2)))
    A("v_mul_f32 %s, %s, %s" % (v(t), sT1, v(t + 2)))
    A("v_fma_f32 %s, -%s, %s, %s" % (v(t), v(t + 1), v(t + 1), v(t)))
    if eps_mul == 1.0:
        A("v_add_f32 %s, abs(%s), %s" % (v(t), v(t), v(t + 3)))
    else:
        A("v_mov_b32 %s, %s" % (v(t + 2), f32(eps_mul)))
        A("v_fma_f32 %s, abs(%s), %s, %s" % (v(t), v(t), v(t + 2), v(t + 3)))
    A("v_rsq_f32 %s, %s" % (v(t), v(t)))
    A("v_mul_f32 %s, %s, %s" % (v(t + 1), v(t + 1), v(t)))


def store_intra(insn):
    ls, le = newlabel("SAFE"), newlabel("SEND")
    A("s_cmp_eq_u32 %s, 0" % sFast)
    A("s_cbranch_scc1 %s" % ls)
    for i in insn:
        A(i)
    A.label(le)
    OOL.append([ls + ":"] + [i + (" sc1" if i.startswith("global_store") else "") for i in insn] + ["s_branch %s" % le])


_st = {"G": 0, "S": 0}


def stamp(kind, idx=None):
    if idx is None:
        n = _st[kind]; _st[kind] += 1
    else:
        n = idx
    if "ECHO" in P and kind == "G" and P["ECHO"] % 100 == n:
        lab = newlabel("ECHO")
        A("s_cmp_lg_u32 %s, %d" % (sL, P["ECHO"] // 100))
        A("s_cbranch_scc1 %s" % lab)
        A("s_waitcnt lgkmcnt(0)")
        A("s_memrealtime s[80:81]")
        A("s_waitcnt lgkmcnt(0)")
        A.label(lab)
    if not STAMP:
        return
    if STAMP == 2 and not (kind == "G" and n in (2, 6)):
        return
    if STAMP in (4, 5, 6):
        return
    if STAMP == 3:
        A("s_lshl_b32 s76, %s, 4" % sL)
        A("s_add_u32 m0, s76, %d" % n)
        A("s_nop 0")
        A("v_writelane_b32 v15, %s, m0" % sBud)
        return
    A("s_waitcnt lgkmcnt(0)")
    A("s_memrealtime s[74:75]")
    A("s_lshl_b32 s76, %s, 4" % sL)
    A("s_add_u32 m0, s76, %d" % n)
    A("s_waitcnt lgkmcnt(0)")
    A("v_writelane_b32 v15, s74, m0")


def cyc(k):
    if STAMP == 4:
        A("s_memtime s[%d:%d]" % (80 + 2 * k, 81 + 2 * k))


def cycs(k):
    if STAMP == 5:
        A("s_memtime s[%d:%d]" % (80 + 2 * k, 81 + 2 * k))


def cycg(k):
    if STAMP == 6:
        A("s_memtime s[%d:%d]" % (80 + 2 * k, 81 + 2 * k))


def cycs_dump(n):
    if STAMP == 5:
        A("s_waitcnt lgkmcnt(0)")
        for k in range(n):
            A("v_writelane_b32 v15, s%d, %d" % (80 + 2 * k, 32 + k))


def cyc_dump(n):
    if STAMP == 4:
        A("s_waitcnt lgkmcnt(0)")
        for k in range(n):
            A("v_writelane_b32 v15, s%d, %d" % (80 + 2 * k, 32 + k))


def stamp_init():
    if STAMP:
        A("v_mov_b32 v15, 0")
        A("v_writelane_b32 v15, s78, 15")


def stamp_dump():
    if not STAMP:
        return
    A("s_mul_i32 s76, s2, 12")
    A("s_add_u32 s76, s76, %s" % sWave)
    A("s_lshl_b32 s76, s76, 8")
    A("s_add_u32 s76, s76, 0x800000")
    A("v_lshlrev_b32 v13, 2, v0")
    A("v_add_u32 v13, s76, v13")
    A("global_store_dword v13, v15, %s" % pWS)


def if_layer0():
    lab = newlabel("NOTL0")
    A("s_cmp_lg_u32 %s, 0" % sL)
    A("s_cbranch_scc1 %s" % lab)
    return lab


def ssync(k):
    top = newlabel("SSY")
    A("v_mov_b32 v5, %d" % (FLG + 4 + 4 * k))
    A("v_mov_b32 v6, 1")
    set_exec(1)
    A("ds_add_u32 v5, v6")
    set_exec(-1)
    A.label(top)
    A("ds_read_b32 v6, v5")
    A("s_waitcnt lgkmcnt(0)")
    A("v_readfirstlane_b32 %s, v6" % sT0)
    A("s_cmp_eq_u32 %s, 4" % sT0)
    done = newlabel("SSD")
    A("s_cbranch_scc1 %s" % done)
    budget_loop(top)
    A.label(done)


MFMA = "v_mfma_f32_16x16x32_bf16"
A("s_getpc_b64 %s" % pPC)
A("s_cmp_ge_u32 s2, 256")
A("s_cbranch_scc1 L_END")
if STAMP or "ECHO" in P:
    A("s_memrealtime s[78:79]")
A("s_load_dwordx16 s[16:31], s[0:1], 0")
A("s_load_dwordx8 s[32:39], s[0:1], 64")
A("s_load_dwordx2 s[40:41], s[0:1], 96")
if P["PREF"]:
    A("v_lshlrev_b32 v3, 4, v0")
    if P["PREF"] == 2:
        A("s_bfe_u32 %s, s2, 0x40003" % sT0)
        A("v_lshrrev_b32 v1, 6, v0")
        A("v_cmp_eq_u32 vcc, %s, v1" % sT0)
        A("s_and_b64 exec, exec, vcc")
    A("global_load_dwordx4 v[140:143], v3, %s offset:-4" % pPC)
    if P["PREF"] == 2:
        A("s_mov_b64 exec, -1")
A("v_lshrrev_b32 v1, 6, v0")
A("v_and_b32 v0, 63, v0")
A("v_readfirstlane_b32 %s, v1" % sWave)
A("s_and_b32 %s, s2, 7" % sJ)
A("s_lshr_b32 %s, s2, 3" % sS)
A("s_lshr_b32 %s, s2, 6" % sHi)
A("s_and_b32 %s, %s, 7" % (sLo, sS))
A("s_lshr_b32 %s, s2, 4" % sR1)
A("s_and_b32 %s, %s, 1" % (sC1, sS))
A("s_mov_b32 %s, 0" % sL)
A("s_mov_b32 %s, 100000" % sBud)
A("v_and_b32 v1, 15, v0")
A("v_lshrrev_b32 v2, 4, v0")
A("v_lshlrev_b32 v3, 4, v0")
A("s_mov_b32 %s, %s" % (sU, sWave))
A("s_sub_u32 %s, %s, 4" % (sWave, sWave))
A("s_cbranch_scc0 L_G")

WQ, WO, W1R, W2R, XR, DR, SS = 16, 32, 48, 56, 84, 112, 120
(sXa, sXb, sOrd, sX1a, sX1b, sHrd, sE1w, sE1sw, sAg, sAst, sQw, sCq0, sCq1, sCrd, sMlrd, sE2w, sE3w, sE4w, sE4sw, sE4rw, sE5w,
 sTr, sClr, sTr1) = range(144, 168)
SN = 8
sCsP = 139
sDma = 138
X0 = 132
ga, gb, gc = SS, SS + 4, SS + 8
STM = 0x0018001400120011
W2S = [int(c) for c in str(P.get("W2S", "x304"))[1:]]
assert sum(W2S) == 7


def w2_dma(part):
    k0_ = sum(W2S[:part])
    n = W2S[part]
    if not n:
        return
    sexpr(sT0, [(sJ, 224 * 1024), (sLo, 128), (sU, 7 * 8192)], k0_ * 8192)
    padd(pT, pW2, sT0)
    sexpr(sT1, [(sU, 7 * 1024)], LW_2)
    for k in range(k0_, k0_ + n):
        A("s_add_u32 m0, %s, %d" % (sT1, 1024 * k))
        A("global_load_lds_dwordx4 %s, %s%s" % (v(sDma), pT, NT))
        if k < k0_ + n - 1:
            padd(pT, pT, 8192)


W2BLK = "pass"
WOBLK = r'''# wo tile: 16 x 1 KB, 4 per wave
A("v_lshrrev_b32 v4, 3, v0")
A("v_and_b32 v5, 7, v0")
vexpr(sDma, [(4, 1024), (5, 16)])
sexpr(sT0, [(sJ, 512 * 1024), (sHi, 128 * 1024), (sU, 32 * 1024), (sLo, 128)])
padd(pT, pWO, sT0)
sexpr(sT1, [(sU, 4096)], LW_O)
for k in range(4):
    A("s_add_u32 m0, %s, %d" % (sT1, 1024 * k))
    A("global_load_lds_dwordx4 %s, %s%s" % (v(sDma), pT, NT))
    if k < 3:
        padd(pT, pT, 8192)
# w1 DMA: unit n = 64 i + l (i = 2u, 2u+1 clamped to 6): row = n/14, piece = n%14
sexpr(sT0, [(sR1, 32 * 3584), (sJ, 448), (sC1, 224)])
padd(pT, pW1, sT0)
for k in range(2):
    A("s_lshl_b32 %s, %s, 1" % (sT1, sU))
    if k:
        A("s_add_u32 %s, %s, 1" % (sT1, sT1))
        A("s_min_u32 %s, %s, 6" % (sT1, sT1))
    A("s_lshl_b32 %s, %s, 6" % (sT0, sT1))
    A("v_add_u32 v4, %s, v0" % sT0)
    A("v_mul_u32_u24 v5, 4682, v4")
    A("v_lshrrev_b32 v5, 16, v5")
    A("v_mul_u32_u24 v7, 14, v5")
    A("v_sub_u32 v4, v4, v7")
    A("v_mul_u32_u24 v5, 3584, v5")
    A("v_lshl_add_u32 v4, v4, 4, v5")
    A("s_lshl_b32 %s, %s, 10" % (sT0, sT1))
    A("s_add_u32 m0, %s, %d" % (sT0, LW_1))
    A("global_load_lds_dwordx4 v4, %s%s" % (pT, NT))
for n in range(448):
    assert (n * 4682) >> 16 == n // 14
'''
A("s_add_u32 %s, %s, 8" % (sWave, sU))
A("v_mov_b32 v4, %d" % FLG)
A("v_mov_b32 v6, 0")
A("v_mov_b32 v7, 0")
A("ds_write_b64 v4, v[6:7]")
A("ds_write_b64 v4, v[6:7] offset:8")
for i in range(4):
    A("v_mov_b32 %s, 0x%08x" % (v(SN + i), SENT))
A("s_and_b32 %s, %s, 1" % (sK0, sU))
A("s_lshr_b32 %s, %s, 1" % (sK1, sU))
sexpr(sT0, [(sS, 6144), (sU, 1536)])
A("v_add_u32 v7, %s, v3" % sT0)
sexpr(sT0, [("s2", 1280), (sK0, LSTR), (sK1, 640)], E3)
A("v_add_u32 v12, %s, v3" % sT0)
A("s_mul_i32 %s, %s, %d" % (sT0, sJ, JSTR))
A("v_lshrrev_b32 v13, 3, v0")
A("v_and_b32 v14, 7, v0")
vexpr(SS, [(13, 8192), (14, 16)])
sexpr(sT1, [(sHi, 128 * 8192), (sU, 32 * 8192), (sJ, 1024), (sLo, 128)])
sexpr(sT2, [(sU, 1024)])
A("v_add_u32 %s, %s, v3" % (v(SS + 1), sT2))
A("s_waitcnt lgkmcnt(0)")
padd(pWJ, pWS, sT0)
padd(pT, pWQ, sT1)
A("v_mov_b32 v4, 0")
A("s_or_b32 %s, s2, %s" % (sT0, sU))
A("s_cbranch_scc1 S_NONONCE")
A("s_memrealtime %s" % pN)
A("s_waitcnt lgkmcnt(0)")
A("s_or_b32 s48, s48, 1")
A("v_mov_b32 %s, s49" % v(SS + 3))
A("v_mov_b32 %s, s48" % v(SS + 2))
set_exec(1)
A("global_store_dwordx2 v4, %s, %s sc1" % (v(SS + 2, 2), pDBG))
set_exec(-1)
A.label("S_NONONCE")
def nonce_fetch():
    A("s_cmp_lg_u32 %s, 3" % sU)
    A("s_cbranch_scc1 S_NP_SKIP")
    A("v_mov_b32 v4, 0")
    sleep(P.get("D_N", 0))
    A.label("S_NP")
    A("global_load_dwordx2 v[6:7], v4, %s sc1" % pDBG)
    A("s_waitcnt vmcnt(0)")
    A("v_cmp_eq_u32 vcc, 0, v6")
    A("s_cbranch_vccz S_NP_DONE")
    A("s_sleep %d" % P.get("NSL", 2))
    budget_loop("S_NP")
    A.label("S_NP_DONE")
    A("v_mov_b32 v5, %d" % NONCE)
    A("ds_write_b64 v5, v[6:7]")
    A("s_waitcnt lgkmcnt(0)")
    if P.get("NLATE"):
        stamp("S", 10)
    A.label("S_NP_SKIP")


if not P.get("NLATE"):
    A("v_mov_b32 %s, v7" % v(SS + 4))
    nonce_fetch()
    A("v_mov_b32 v7, %s" % v(SS + 4))
A("global_load_dwordx4 %s, %s, %s%s" % (v(X0, 4), v(SS + 1), pX, NT))
A("s_lshl_b32 %s, %s, 12" % (sT1, sU))
for i in range(4):
    A("s_add_u32 m0, %s, %d" % (sT1, LW_Q + 1024 * i))
    A("global_load_lds_dwordx4 %s, %s%s" % (v(SS), pT, NT))
    if i < 3:
        padd(pT, pT, 8 * 8192)
if P.get("NOCLR"):
    set_exec(1)
A("global_store_dwordx4 v7, %s, %s sc1" % (v(SN, 4), pWJ))
set_exec(1 if P.get("NOCLR") else 0xFFFFFFFF)
A("global_store_dwordx4 v7, %s, %s offset:1024 sc1" % (v(SN, 4), pWJ))
set_exec(1 if P.get("NOCLR") else 0xFFFFFFFFFF)
A("global_store_dwordx4 v12, %s, %s sc1" % (v(SN, 4), pWS))
set_exec(-1)
if P.get("WF", 0) == 1:
    exec(WOBLK)
    exec(W2BLK)
A("s_barrier")
if P.get("WF", 0) == 2:
    exec(WOBLK)
    exec(W2BLK)
if P.get("WF", 0) == 3:
    exec(WOBLK)
stamp_init()
stamp("S", 9)
if P.get("NLATE"):
    nonce_fetch()
A("s_getreg_b32 %s, hwreg(HW_REG_XCC_ID)" % sXcc)
A("s_and_b32 %s, %s, 7" % (sXcc, sXcc))
A("s_mov_b32 s42, s40")
A("s_mov_b32 s43, s41")
A("s_mov_b32 %s, 0" % sFast)
sexpr(sT0, [(sS, 6144), (sU, 1536)])
A("v_add_u32 %s, %s, v3" % (v(sClr), sT0))
A("v_mov_b32 v12, 0x3f803f80")
vexpr(13, [(0, 4)], None, XOP + 4 * RS_)
A("ds_write_b32 v13, v12")
vexpr(13, [(1, 4)], None, X1OP + 4 * RS1)
A("ds_write_b32 v13, v12")
A("v_lshrrev_b32 v12, 2, v1")
A("v_min_u32 v13, 4, v1")
A("v_and_b32 v14, 3, v1")
vexpr(sXa, [(12, RS_), (2, 16)], None, XOP)
sexpr(sT0, [(sU, 64)], XOP)
vexpr(sXb, [(13, RS_), (2, 16)], sT0)
vexpr(sOrd, [(14 if P.get("WIDE", 0) else 12, RS_), (2, 16)], None, OOP)
vexpr(sX1a, [(12, RS1), (2, 16)], None, X1OP)
vexpr(sX1b, [(13, RS1), (2, 16)], None, X1OP)
vexpr(sHrd, [(2, 16)], None, HOP)
sexpr(sT0, [(sHi, 2048), (sLo, 256), (sU, 64)], E1)
vexpr(sE1w, [(2, 8192), (1, 4)], sT0)
vexpr(SS + 3, [(2, 128)])
A("v_lshlrev_b32 %s, 2, v12" % v(SS + 4))
A("v_sub_u32 %s, %s, %s" % (v(SS + 3), v(SS + 3), v(SS + 4)))
sexpr(sT0, [(sLo, 512), (sHi, 32), (sU, 8)], E1S + 4)
A("v_add_u32 %s, %s, %s" % (v(sE1sw), sT0, v(SS + 3)))
sexpr(sT0, [(sR1, 8)], E4S + 4)
A("v_add_u32 %s, %s, %s" % (v(sE4sw), sT0, v(SS + 3)))
sexpr(sT0, [(sR1, 64)], E4R)
vexpr(sE4rw, [(14, 1024), (2, 16)], sT0)
A("v_and_b32 %s, 31, v0" % v(SS + 3))
A("v_lshrrev_b32 %s, 5, v0" % v(SS + 4))
sexpr(sT0, [(sHi, 8192), (sU, 512)], E1)
vexpr(sAg, [(SS + 4, 4096), (SS + 3, 16)], sT0)
sexpr(sT0, [(sLo, 512), (sHi, 128)], E1S)
vexpr(sAst, [(1, 8), (2, 4)], sT0)
sexpr(sT0, [(sU, RS_)], QOP)
vexpr(sQw, [(SS + 3, 8), (SS + 4, 4)], sT0)
A("v_bfe_u32 %s, v0, 4, 1" % v(SS + 5))
A("v_bfe_u32 %s, v0, 2, 2" % v(SS + 6))
A("v_and_b32 %s, 3, v0" % v(SS + 7))
sexpr(sT0, [(sU, 288)], AP)
vexpr(sCrd, [(SS + 4, 8 * APB), (1, 16)], sT0)
A("v_mul_u32_u24 %s, %d, %s" % (v(SS + 5), APB, v(SS + 5)))
A("v_add_u32 %s, %s, %s" % (v(sCrd), v(sCrd), v(SS + 5)))
sexpr(sT0, [(sU, 64)], ML)
vexpr(sMlrd, [(SS + 4, 32)], sT0)
sexpr(sT0, [(sU, 32 * 512), (sS, 512)], E2)
vexpr(sE2w, [(0, 8)], sT0)
sexpr(sC, [(sU, 256), (sS, 8)], E2S)
if P.get("E3B", 1):
    sexpr(sT0, [(sLo, 16384), (sK1, 8192), (sJ, 128), (sHi, 32), (sK0, 4096)], E3)
    vexpr(sE3w, [(2, 1024), (1, 2)], sT0)
elif P.get("E3L", 1):
    sexpr(sT0, [(sLo, 32768), (sK1, 16384), (sJ, 256), (sHi, 64), (sK0, 8192)], E3)
    vexpr(sE3w, [(2, 2048), (1, 4)], sT0)
else:
    sexpr(sT0, [(sLo, 32768), (sK1, 16384), (sJ, 2048), (sHi, 512), (sK0, 256)], E3)
    vexpr(sE3w, [(0, 4)], sT0)
sexpr(sT0, [(sR1, 896), (sC1, 448), (sU, 128)], E4)
vexpr(sE4w, [(2, 16 * 896), (1, 4)], sT0)
sexpr(sT0, [("s2", 256), (sU, 64)], E5)
if P.get("WIDE", 0):
    vexpr(sE5w, [(2, 16)], sT0)
else:
    vexpr(sE5w, [(1, 4)], sT0)
A("v_lshl_add_u32 %s, v2, 3, v12" % v(SS + 3))
sexpr(sT0, [(sU, 32)])
vexpr(sTr, [(SS + 3, 128), (14, 8)], sT0)
sexpr(sT0, [(sU, 64)])
vexpr(sTr1, [(SS + 3, 224), (14, 8)], sT0)
stamp("S", 11)
A("s_waitcnt vmcnt(%d)" % {0: 0, 1: 13, 2: 13, 3: 6}[P.get("WF", 0)])
stamp("S", 12)
sexpr(sT0, [(sU, RS_)], XOP)
vexpr(4, [(1, 16)], sT0)
A("s_lshl_b32 %s, %s, 4" % (sT0, sHi))
A("s_mov_b32 %s, 0xffff" % sT2)
A("s_mov_b32 %s, 0" % sT3)
A("s_lshl_b64 exec, s[14:15], %s" % sT0)
A("ds_write_b128 v4, %s" % v(X0, 4))
set_exec(-1)
for i in range(4):
    A("v_lshlrev_b32 %s, 16, %s" % (v(SS + 2 * i), v(X0 + i)))
    A("v_and_b32 %s, 0xffff0000, %s" % (v(SS + 2 * i + 1), v(X0 + i)))
A("v_add_f32 v4, %s, %s" % (v(SS), v(SS + 1)))
A("v_mul_f32 v5, %s, %s" % (v(SS), v(SS)))
A("v_fmac_f32 v5, %s, %s" % (v(SS + 1), v(SS + 1)))
for i in range(2, 8):
    A("v_add_f32 v4, v4, %s" % v(SS + i))
    A("v_fmac_f32 v5, %s, %s" % (v(SS + i), v(SS + i)))
for m in (X1, X2, HM, RM):
    A("v_add_f32_dpp v4, v4, v4 %s" % m)
    A("v_add_f32_dpp v5, v5, v5 %s" % m)
g_allreduce("v_add_f32", 4, 6)
g_allreduce("v_add_f32", 5, 6)
A("v_mul_f32 v4, %s, v4" % f32(1 / 512))
A("v_mul_f32 v5, %s, v5" % f32(1 / 512))
A("v_fma_f32 v5, -v4, v4, v5")
A("v_max_f32 v5, 0, v5")
A("v_add_f32 v5, %s, v5" % f32(1e-5))
A("v_rsq_f32 v5, v5")
sexpr(sT0, [(sU, 8)], ST0)
A("v_mov_b32 v6, %s" % sT0)
A("ds_write_b64 v6, v[4:5]")
A("s_waitcnt lgkmcnt(0)")
ssync(0)
stamp("S", 0)
for t in range(4):
    A("ds_read_b128 %s, %s offset:%d" % (v(XR + 4 * t, 4), v(sXa), 64 * t))
for t in range(4):
    for hh in range(2):
        A("ds_read_b64_tr_b16 %s, %s offset:%d" % (v(WQ + 4 * t + 2 * hh, 2), v(sTr), LW_Q + (32 * t + 4 * hh) * 128))
vexpr(4, [(2, 8)], None, ST0)
A("ds_read_b64 v[6:7], v4")
A("v_mov_b32 v4, %d" % NONCE)
A("ds_read_b64 v[12:13], v4")
for i in range(4):
    A("v_mov_b32 %s, 0x3f803f80" % v(XR + 16 + i))
A("s_waitcnt lgkmcnt(0)")
for t in range(4):
    A("%s %s, %s, %s, %s" % (MFMA, v(DR, 4), v(XR + 4 * t, 4), v(WQ + 4 * t, 4), "0" if t == 0 else v(DR, 4)))
    A("%s %s, %s, %s, %s" % (MFMA, v(DR + 4, 4), v(XR + 16, 4), v(WQ + 4 * t, 4), "0" if t == 0 else v(DR + 4, 4)))
A("v_fma_f32 %s, -v6, %s, %s" % (v(DR), v(DR + 4), v(DR)))
A("v_mul_f32 %s, %s, v7" % (v(DR), v(DR)))
A("v_mov_b32 %s, %s" % (v(sCsP), v(DR + 4)))
A("v_mov_b32 %s, v12" % v(DR + 1))
sexpr(sT0, [(sJ, 65536), (sHi, 4096), (sLo, 512), (sU, 128)], E1T)
vexpr(4, [(2, 16384), (1, 8)], sT0)
stamp("S", 1)
A("global_store_dwordx2 v4, %s, %s sc1" % (v(DR, 2), pWS))
A("v_readfirstlane_b32 s48, v12")
A("v_readfirstlane_b32 s49, v13")
A("s_cmp_lg_u32 %s, 1" % sU)
A("s_cbranch_scc1 S_NOREC")
RS = P.get("RS", 16)
sexpr(sT0, [(sJ, 32 * RS), (sS, RS)], REC)
A("v_mov_b32 v4, %s" % sT0)
A("v_mov_b32 v14, %s" % sXcc)
set_exec(1)
A("global_store_dwordx3 v4, v[12:14], %s sc1" % pWS)
set_exec(-1)
A.label("S_NOREC")


def PT1():
    padd(pT, pWJ, LSTR)
    A("global_load_dwordx4 v[140:143], %s, %s sc1" % (v(sClr), pT))
    A("s_mov_b32 exec_hi, 0")
    A("global_load_dwordx4 v[140:143], %s, %s offset:1024 sc1" % (v(sClr), pT))
    A("s_mov_b64 exec, -1")


def ptouch():
    A("global_load_dwordx4 v[140:143], %s, %s sc1" % (v(sClr), pWJ))
    set_exec(0xFFFFFFFF)
    A("global_load_dwordx4 v[140:143], %s, %s offset:1024 sc1" % (v(sClr), pWJ))
    set_exec(-1)
    if P.get("PTX", 0):
        sexpr(sT0, [("s2", 1280), (sK0, LSTR), (sK1, 640)], E3)
        A("v_add_u32 v7, %s, v3" % sT0)
        set_exec(0xFFFFFFFFFF)
        A("global_load_dwordx4 v[140:143], v7, %s sc1" % pWS)
        set_exec(-1)


def wt_slice(base):
    A("global_store_dwordx4 %s, %s, %s sc1" % (v(sClr), v(SN, 4), base))
    A("s_mov_b32 exec_hi, 0")
    A("global_store_dwordx4 %s, %s, %s offset:1024 sc1" % (v(sClr), v(SN, 4), base))
    A("s_mov_b64 exec, -1")


def half_treduce(r):
    A("v_permlane32_swap_b32 %s, %s" % (v(r), v(r + 2)))
    A("v_permlane32_swap_b32 %s, %s" % (v(r + 1), v(r + 3)))
    A("v_add_f32 %s, %s, %s" % (v(r), v(r), v(r + 2)))
    A("v_add_f32 %s, %s, %s" % (v(r + 1), v(r + 1), v(r + 3)))


AG = ["global_load_dwordx4 %s, %s, %s sc1" % (v(ga, 4), v(sAg), pWJ),
      "global_load_dwordx4 %s, %s, %s offset:2048 sc1" % (v(gb, 4), v(sAg), pWJ)]
AGC = [(ga + e, gb + e) for e in range(4)]
sexpr(sT0, [(sJ, 65536), (sHi, 16384), (sU, 1024)], E1T + 4096)
A("v_add_u32 v4, %s, v3" % sT0)
A("v_add_u32 v5, 8192, v4")
sexpr(sT0, [(sU, 64 * RS)], REC)
vexpr(6, [(0, RS)], sT0)
if P.get("PTOUCH", 1) == 2:
    ptouch()
sleep(P.get("D_A0", 20))
TQ = XR
A.label("S_AG0")
A("global_load_dwordx4 %s, v4, %s offset:-4096 sc1" % (v(TQ, 4), pWS))
A("global_load_dwordx4 %s, v4, %s sc1" % (v(TQ + 4, 4), pWS))
A("global_load_dwordx4 %s, v5, %s offset:-4096 sc1" % (v(TQ + 8, 4), pWS))
A("global_load_dwordx4 %s, v5, %s sc1" % (v(TQ + 12, 4), pWS))
A("s_waitcnt vmcnt(0)")
for i in range(8):
    A("v_xor_b32 %s, s48, %s" % (v(TQ + 2 * i + 1), v(TQ + 2 * i + 1)))
A("v_or3_b32 v7, %s, %s, %s" % (v(TQ + 1), v(TQ + 3), v(TQ + 5)))
A("v_or3_b32 v7, v7, %s, %s" % (v(TQ + 7), v(TQ + 9)))
A("v_or3_b32 v7, v7, %s, %s" % (v(TQ + 11), v(TQ + 13)))
A("v_or_b32 v7, v7, %s" % v(TQ + 15))
A("v_cmp_ne_u32 vcc, 0, v7")
A("s_cbranch_vccz S_AG0_DONE")
sleep(P.get("NAPQ", 8))
budget_loop("S_AG0")
A.label("S_AG0_DONE")
A("global_load_dwordx3 v[12:14], v6, %s sc1" % pWS)
stamp("S", 2)
for c in range(2):
    A("v_add_f32 %s, %s, %s" % (v(TQ + 2 * c), v(TQ + 2 * c), v(TQ + 4 + 2 * c)))
    A("v_add_f32 %s, %s, %s" % (v(TQ + 8 + 2 * c), v(TQ + 8 + 2 * c), v(TQ + 12 + 2 * c)))
    A("v_add_f32 %s, %s, %s" % (v(TQ + 2 * c), v(TQ + 2 * c), v(TQ + 8 + 2 * c)))
A("v_cvt_pk_bf16_f32 %s, %s, %s" % (v(ga), v(TQ), v(TQ + 2)))
sexpr(sT0, [(sU, RS_)], QOP)
vexpr(4, [(0, 4)], sT0)
A("ds_write_b32 v4, %s" % v(ga))
A("s_waitcnt lgkmcnt(0)")
A("s_barrier")
if P.get("VSIG"):
    A("v_mov_b32 v4, %d" % (FLG + 12))
    A("s_mov_b32 %s, %d" % (sT1, P["VSIG"]))
    A.label("S_VW")
    A("ds_read_b32 v5, v4")
    A("s_waitcnt lgkmcnt(0)")
    A("v_readfirstlane_b32 %s, v5" % sT0)
    A("s_cmp_ge_u32 %s, 8" % sT0)
    A("s_cbranch_scc1 S_VW_D")
    A("s_sleep 1")
    A("s_sub_u32 %s, %s, 1" % (sT1, sT1))
    A("s_cbranch_scc0 S_VW")
    A.label("S_VW_D")
if not P.get("WF", 0):
    exec(WOBLK)
A("s_waitcnt vmcnt(6)")
A("s_branch S_RP_CHK")
A.label("S_RP")
A("global_load_dwordx3 v[12:14], v6, %s sc1" % pWS)
A("s_waitcnt vmcnt(0)")
A.label("S_RP_CHK")
A("v_cmp_ne_u64 vcc, %s, v[12:13]" % pN)
A("s_cbranch_vccz S_RP_DONE")
A("s_sleep %d" % P.get("PSL", 8))
budget_loop("S_RP")
A("v_mov_b32 v14, -1")
A.label("S_RP_DONE")
A("s_lshr_b32 %s, %s, 1" % (sT0, sJ))
A("s_cmp_lg_u32 %s, %s" % (sT0, sU))
A("s_cbranch_scc1 S_REC_SKIP")
A("v_cmp_ne_u32 vcc, %s, v14" % sXcc)
A("s_bitcmp1_b32 %s, 0" % sJ)
A("s_cselect_b32 %s, vcc_hi, vcc_lo" % sT0)
A("s_cmp_eq_u32 %s, 0" % sT0)
A("s_cselect_b32 %s, 1, 0" % sT0)
if P["FORCE_SAFE"]:
    A("s_mov_b32 %s, 0" % sT0)
A("v_mov_b32 v5, %d" % FLG)
A("v_mov_b32 v7, %s" % sT0)
A("ds_write_b32 v5, v7")
A.label("S_REC_SKIP")
stamp("S", 14)
if P.get("PTOUCH", 1) == 1:
    ptouch()
w2_dma(0)
if P.get("PREF2", 1):
    A("s_and_b32 %s, %s, 3" % (sT0, sS))
    A("s_min_u32 %s, %s, 2" % (sT0, sT0))
    sexpr(sT0, [(sT0, 4096), (sU, 1024)])
    A("v_add_u32 v7, %s, v3" % sT0)
    A("global_load_dwordx4 v[140:143], v7, %s offset:-4" % pPC)
A("s_waitcnt lgkmcnt(0)")

TRBLK = r'''lab = if_layer0()
for t in range(7):
    for hh in range(2):
        A("ds_read_b64_tr_b16 %s, %s offset:%d" % (v(W2R + 4 * t + 2 * hh, 2), v(sTr), LW_2 + (32 * t + 4 * hh) * 128))
A("s_waitcnt lgkmcnt(0)")
A.label(lab)
'''
A.label("S_LOOP")
A("s_barrier")
cycs(0)
stamp("S", 3)
cm = XR
ca = XR + 8
A("v_mov_b32 v5, %d" % FLG)
A("ds_read_b32 v6, v5")
A("ds_read_b128 %s, %s" % (v(cm, 4), v(sMlrd)))
A("ds_read_b128 %s, %s offset:16" % (v(cm + 4, 4), v(sMlrd)))
for k in range(4):
    A("ds_read_b128 %s, %s offset:%d" % (v(ca + 4 * k, 4), v(sCrd), 2 * APB * k))
cM, cL, cT, cAd = SS, SS + 1, SS + 2, SS + 3
A("v_mov_b32 %s, %s" % (v(cAd), sC))
A("s_waitcnt lgkmcnt(%d)" % (0 if STAMP == 5 else 4))
cycs(1)
A("v_readfirstlane_b32 %s, v6" % sFast)
A("v_max3_f32 %s, %s, %s, %s" % (v(cM), v(cm), v(cm + 2), v(cm + 4)))
A("v_max_f32 %s, %s, %s" % (v(cM), v(cM), v(cm + 6)))
A("v_mov_b32 %s, %s" % (v(cT), v(cM)))
A("v_permlane32_swap_b32 %s, %s" % (v(cM), v(cT)))
A("v_max_f32 %s, %s, %s" % (v(cM), v(cM), v(cT)))
for k in range(4):
    A("v_sub_f32 %s, %s, %s" % (v(cm + 2 * k), v(cm + 2 * k), v(cM)))
for k in range(4):
    A("v_exp_f32 %s, %s" % (v(cm + 2 * k), v(cm + 2 * k)))
A("s_waitcnt lgkmcnt(0)")
if P.get("PK", 1):
    for h in range(2):
        A("v_pk_mul_f32 %s, %s, %s op_sel_hi:[0,1]" % (v(DR + 2 * h, 2), v(cm, 2), v(ca + 2 * h, 2)))
    A("v_mul_f32 %s, %s, %s" % (v(cL), v(cm), v(cm + 1)))
    for k in range(1, 4):
        for h in range(2):
            A("v_pk_fma_f32 %s, %s, %s, %s op_sel_hi:[0,1,1]" % (v(DR + 2 * h, 2), v(cm + 2 * k, 2), v(ca + 4 * k + 2 * h, 2), v(DR + 2 * h, 2)))
        A("v_fmac_f32 %s, %s, %s" % (v(cL), v(cm + 2 * k), v(cm + 2 * k + 1)))
else:
    for e in range(4):
        A("v_mul_f32 %s, %s, %s" % (v(DR + e), v(cm), v(ca + e)))
    A("v_mul_f32 %s, %s, %s" % (v(cL), v(cm), v(cm + 1)))
    for k in range(1, 4):
        for e in range(4):
            A("v_fmac_f32 %s, %s, %s" % (v(DR + e), v(cm + 2 * k), v(ca + 4 * k + e)))
        A("v_fmac_f32 %s, %s, %s" % (v(cL), v(cm + 2 * k), v(cm + 2 * k + 1)))
A("v_mov_b32 %s, %s" % (v(cT), v(cL)))
A("v_permlane32_swap_b32 %s, %s" % (v(DR), v(DR + 2)))
A("v_permlane32_swap_b32 %s, %s" % (v(DR + 1), v(DR + 3)))
A("v_permlane32_swap_b32 %s, %s" % (v(cL), v(cT)))
A("v_add_f32 %s, %s, %s" % (v(DR), v(DR), v(DR + 2)))
A("v_add_f32 %s, %s, %s" % (v(DR + 1), v(DR + 1), v(DR + 3)))
A("v_add_f32 %s, %s, %s" % (v(cL), v(cL), v(cT)))
cycs(2)
store_intra(["global_store_dwordx2 %s, %s, %s" % (v(sE2w), v(DR, 2), pWJ),
             "s_mov_b64 exec, 1",
             "global_store_dwordx2 %s, %s, %s" % (v(cAd), v(cM, 2), pWJ),
             "s_mov_b64 exec, -1"])
if P.get("SIGI", 1):
    A("s_barrier")
cycs(3)
stamp("S", 4)
W2P = P.get("W2P", 1)
lab = if_layer0()
A("v_add_u32 %s, %d, %s" % (v(gc), 4 * 8192, v(sE1w)))
A("v_add_u32 %s, %d, %s" % (v(gc + 1), (E4C - E4) & 0xFFFFFFFF, v(sE4w)))
for i in range(4):
    A("v_mov_b32 %s, 0x3f803f80" % v(XR + i))
A("s_waitcnt vmcnt(%d)" % (2 + P.get("PREF2", 1) + W2S[0] + ((2 + P.get("PTX", 0)) if P.get("PTOUCH", 1) == 1 else 0)))
w2_dma(1)
ssync(1)
for tl in range(2):
    for hh in range(2):
        A("ds_read_b64_tr_b16 %s, %s offset:%d" % (v(W1R + 4 * tl + 2 * hh, 2), v(sTr1), LW_1 + 4 * hh * 224 + 32 * tl))
for t in range(4):
    for hh in range(2):
        A("ds_read_b64_tr_b16 %s, %s offset:%d" % (v(WO + 4 * t + 2 * hh, 2), v(sTr), LW_O + (32 * t + 4 * hh) * 128))
A("s_waitcnt lgkmcnt(8)")
A("%s %s, %s, %s, 0" % (MFMA, v(DR + 4, 4), v(XR, 4), v(W1R, 4)))
A("%s %s, %s, %s, 0" % (MFMA, v(XR + 4, 4), v(XR, 4), v(W1R + 4, 4)))
A("s_cmp_eq_u32 %s, 3" % sU)
A("s_cselect_b32 %s, 0, 0xffff" % sT0)
store_intra(exec_lines(0xFFFF) +
            ["global_store_dword %s, %s, %s" % (v(gc), v(sCsP), pWJ),
             "global_store_dword %s, %s, %s" % (v(gc + 1), v(DR + 4), pWJ),
             "s_mov_b32 exec_lo, %s" % sT0,
             "global_store_dword %s, %s, %s offset:64" % (v(gc + 1), v(XR + 4), pWJ),
             "s_mov_b64 exec, -1"])
A("s_waitcnt lgkmcnt(0)")
A.label(lab)
A("s_barrier")
cycs(4)
if STAMP == 5:
    A("s_waitcnt lgkmcnt(0)")
stamp("S", 5)
for t in range(4):
    A("ds_read_b128 %s, %s offset:%d" % (v(XR + 4 * t, 4), v(sOrd), 64 * t))
for t in range(4):
    A("s_waitcnt lgkmcnt(%d)" % (3 - t))
    A("%s %s, %s, %s, %s" % (MFMA, v(DR, 4), v(XR + 4 * t, 4), v(WO + 4 * t, 4), "0" if t == 0 else v(DR, 4)))
if P.get("E3B", 1):
    A("v_cvt_pk_bf16_f32 %s, %s, %s" % (v(DR), v(DR), v(DR)))
    A("global_store_short %s, %s, %s sc1" % (v(sE3w), v(DR), pWL))
else:
    A("global_store_dword %s, %s, %s sc1" % (v(sE3w), v(DR), pWL))
cycs(5)
A("s_barrier")
lab = if_layer0()
w2_dma(2)
A("s_sub_u32 %s, 4, %s" % (sT0, sHi))
A("s_lshl_b32 %s, %s, 13" % (sT0, sT0))
A("v_add_u32 %s, %s, %s" % (v(gc), sT0, v(sAg)))
poll(["global_load_dwordx4 %s, %s, %s sc1" % (v(ga, 4), v(gc), pWJ),
      "global_load_dwordx4 %s, %s, %s offset:2048 sc1" % (v(gb, 4), v(gc), pWJ)], AGC, nap=4)
for e in range(4):
    A("v_add_f32 %s, %s, %s" % (v(ga + e), v(ga + e), v(gb + e)))
half_treduce(ga)
A("v_mov_b32 %s, %s" % (v(sCq0), v(ga)))
A("v_mov_b32 %s, %s" % (v(sCq1), v(ga + 1)))
A.label(lab)
A("s_barrier")
cycs(6)
if STAMP == 5:
    A("s_waitcnt lgkmcnt(0)")
stamp("S", 6)
A("ds_read_b128 %s, %s" % (v(XR, 4), v(sX1a)))
A("s_cmp_eq_u32 %s, 3" % sU)
A("s_cbranch_scc1 S_W1_W3")
A("s_waitcnt lgkmcnt(0)")
A("%s %s, %s, %s, 0" % (MFMA, v(DR, 4), v(XR, 4), v(W1R, 4)))
A("%s %s, %s, %s, 0" % (MFMA, v(DR + 4, 4), v(XR, 4), v(W1R + 4, 4)))
store_intra(["global_store_dword %s, %s, %s" % (v(sE4w), v(DR), pWJ),
             "global_store_dword %s, %s, %s offset:64" % (v(sE4w), v(DR + 4), pWJ)])
A("s_branch S_W1_DONE")
A.label("S_W1_W3")
A("ds_read_b128 %s, %s" % (v(XR + 4, 4), v(sX1b)))
A("s_waitcnt lgkmcnt(1)")
A("%s %s, %s, %s, 0" % (MFMA, v(DR, 4), v(XR, 4), v(W1R, 4)))
A("s_waitcnt lgkmcnt(0)")
A("%s %s, %s, %s, 0" % (MFMA, v(DR + 4, 4), v(XR, 4), v(XR + 4, 4)))
store_intra(["global_store_dword %s, %s, %s" % (v(sE4w), v(DR), pWJ)] + exec_lines(STM) +
            ["global_store_dword %s, %s, %s" % (v(sE4sw), v(DR + 4), pWJ)] + exec_lines(0x000F000F000F000F) +
            ["global_store_dwordx4 %s, %s, %s" % (v(sE4rw), v(XR + 4, 4), pWJ), "s_mov_b64 exec, -1"])
A.label("S_W1_DONE")
cycs(7)
if P.get("SIGI", 1):
    A("s_barrier")
KEEP = 136
if P.get("CLEAN", 0) & 8:
    A("v_mov_b32 %s, %s" % (v(KEEP), v(DR)))
    A("v_mov_b32 %s, %s" % (v(KEEP + 1), v(DR + 4)))
if P.get("W2LATE", 0):
    A("s_waitcnt vmcnt(0)")
else:
    exec(TRBLK)
A("s_barrier")
cycs(8)
if STAMP == 5:
    A("s_waitcnt lgkmcnt(0)")
stamp("S", 7)
if P.get("W2LATE", 0):
    exec(TRBLK)
for t in range(7):
    A("ds_read_b128 %s, %s offset:%d" % (v(XR + 4 * t, 4), v(sHrd), 64 * t))
for t in range(7):
    A("s_waitcnt lgkmcnt(%d)" % (6 - t))
    ab = (v(W2R + 4 * t, 4), v(XR + 4 * t, 4)) if P.get("WIDE", 0) else (v(XR + 4 * t, 4), v(W2R + 4 * t, 4))
    A("%s %s, %s, %s, %s" % (MFMA, v(DR, 4), ab[0], ab[1], "0" if t == 0 else v(DR, 4)))
if P.get("WIDE", 0):
    set_exec(0x0001000100010001)
    A("global_store_dwordx4 %s, %s, %s sc1" % (v(sE5w), v(DR, 4), pWL))
else:
    set_exec(0xFFFF)
    A("global_store_dword %s, %s, %s sc1" % (v(sE5w), v(DR), pWL))
set_exec(-1)
if P.get("SIG", 1):
    A("s_barrier")
if P.get("SAFEDLY"):
    A("s_cmp_lg_u32 %s, 0" % sFast)
    A("s_cbranch_scc1 S_NODLY")
    sleep(400)
    A.label("S_NODLY")
cycs(9)
cycs_dump(10)
stamp("S", 8)
A("s_cmp_lg_u32 %s, 0" % sL)
A("s_cbranch_scc1 %s" % ("S_FIN" if P.get("CLEAN", 0) & 4 else "L_EXIT"))
A("s_mov_b32 %s, 1" % sL)
padd(pWL, pWL, LSTR)
sexpr(sT0, [(sS, 2176), (sU, 544)], E2S)
A("v_add_u32 v4, %s, v3" % sT0)
store_intra(exec_lines((1 << 34) - 1) + ["global_store_dwordx4 v4, %s, %s" % (v(SN, 4), pWJ), "s_mov_b64 exec, -1"])
A("s_lshl_b32 %s, %s, 6" % (sT0, sU))
A("v_add_u32 %s, %s, %s" % (v(SS), sT0, v(sXa)))
A("v_mov_b32 %s, 0" % v(gc))
A("s_waitcnt vmcnt(0)")
A("s_barrier")
stamp("S", 0)
for t in range(4):
    A("ds_read_b128 %s, %s offset:%d" % (v(XR + 4 * t, 4), v(sXa), 64 * t))
A("ds_read_b128 %s, %s" % (v(XR + 16, 4), v(sXb)))
A("ds_read_b128 %s, %s" % (v(XR + 20, 4), v(SS)))
for t in range(4):
    A("s_waitcnt lgkmcnt(%d)" % (5 - t))
    A("%s %s, %s, %s, %s" % (MFMA, v(DR, 4), v(XR + 4 * t, 4), v(WQ + 4 * t, 4), "0" if t == 0 else v(DR, 4)))
A("s_waitcnt lgkmcnt(0)")
A("%s %s, %s, %s, 0" % (MFMA, v(DR + 4, 4), v(XR + 20, 4), v(XR + 16, 4)))
stamp("S", 1)
store_intra(["global_store_dword %s, %s, %s" % (v(sE1w), v(DR), pWJ)] + exec_lines(STM) +
            ["global_store_dword %s, %s, %s" % (v(sE1sw), v(DR + 4), pWJ), "s_mov_b64 exec, -1"])
sleep(P["D_A"])
SSETS = [SS, XR, XR + 12][:P.get("NSETS", 2)]
q0_, q1_, q2_, q3_ = 4, 5, 6, 7


def a_post():
    t = XR
    with Cap() as c1:
        stats_math(gc, XR + 4, 1.0, 1e-5)
        A("v_mul_f32 %s, %s, %s" % (v(q2_), v(XR + 5), v(sCq0)))
        A("v_mul_f32 %s, %s, %s" % (v(q3_), v(XR + 5), v(sCq1)))
    with Cap() as c2:
        for e in range(4):
            A("v_add_f32 %s, %s, %s" % (v(t + e), v(ga + e), v(gb + e)))
        half_treduce(t)
    for l in interleave(c1.lines, c2.lines):
        A(l)
    A("v_fma_f32 %s, %s, %s, -%s" % (v(q0_), v(t), v(XR + 4), v(q2_)))
    A("v_fma_f32 %s, %s, %s, -%s" % (v(q1_), v(t + 1), v(XR + 4), v(q3_)))


opt_poll("global_load_dword %s, %s, %s sc1" % (v(gc), v(sAst), pWJ), 0xFFFFFFFF, [gc], AG, range(ga, ga + 8), a_post, [q0_, q1_])
stamp("S", 2)
A("v_cvt_pk_bf16_f32 %s, %s, %s" % (v(q0_), v(q0_), v(q1_)))
A("ds_write_b32 %s, %s" % (v(sQw), v(q0_)))
A("s_waitcnt lgkmcnt(0)")
A("s_barrier")
sexpr(sT0, [(sS, 2048), (sU, 512)], E4)
A("v_add_u32 v4, %s, v3" % sT0)
store_intra(exec_lines(0xFFFFFFFF) + ["global_store_dwordx4 v4, %s, %s" % (v(SN, 4), pWJ), "s_mov_b64 exec, -1"])
A("s_waitcnt vmcnt(0)")
A("s_branch S_LOOP")
if P.get("CLEAN", 0) & 4:
    A.label("S_FIN")
    sexpr(sT0, [(sS, 4096), (sU, 1024)])
    A("v_add_u32 v4, %s, v3" % sT0)
    A("global_store_dwordx4 v4, %s, %s sc1" % (v(SN, 4), pWJ))
    if P.get("CLEAN", 0) & 8:
        A("global_store_dword %s, %s, %s sc1" % (v(sE4w), v(KEEP), pWJ))
        A("s_cmp_eq_u32 %s, 3" % sU)
        A("s_cbranch_scc1 L_EXIT")
        A("global_store_dword %s, %s, %s offset:64 sc1" % (v(sE4w), v(KEEP + 1), pWJ))
    A("s_branch L_EXIT")

KR, VR, VF, QR, SR = 16, 48, 80, 112, 128
GS = 48
(gOg, gOml, gOlds, gW1g, gW1x, gW1lds, gW2g, gW2s, gW2lds, gXg, gXr, gXlds, gB1, gB2, gCs1, gQrd, gApw, gMlw, gOut, gDma) = range(148, 168)
_gn = [1 if P["PREF"] else 0]


def gload(t):
    if P.get("NODMA") and "lds" in t:
        t = "global_load_dword v140, v3, %s" % pB1 if False else "s_nop 0"
        A(t)
        return
    if _gn[0] >= P["W"]:
        if P.get("ADAPT"):
            lab = newlabel("THR")
            A("ds_read_b32 v130, v129")
            A("s_waitcnt lgkmcnt(0)")
            A("v_readfirstlane_b32 %s, v130" % sT1)
            A("s_cmp_lg_u32 %s, 0" % sT1)
            A("s_cbranch_scc1 %s" % lab)
            A("s_waitcnt vmcnt(%d)" % (P["W"] - 1))
            A.label(lab)
        else:
            A("s_waitcnt vmcnt(%d)" % (P["W"] - 1))
    A(t)
    _gn[0] += 1


GADDR = r'''A("v_lshrrev_b32 v11, 3, v0")        # l>>3
A("v_and_b32 v12, 7, v0")            # l&7
vexpr(gDma, [(11, 1024), (12, 16)])
# bias elements
A("s_lshr_b32 %s, %s, 1" % (sK0, sWave))     # b = w>>1
A("s_and_b32 %s, %s, 1" % (sK1, sWave))      # w&1
A("s_min_u32 %s, %s, 6" % (sK2, sWave))      # w' for the W2 gather
vexpr(13, [(1, 4), (2, 1)])                  # X col local = 4 l16 + g
sexpr(sT0, [(sHi, 256), (sK1, 128)])
vexpr(14, [(13, 2)], sT0)                    # col*2 within a 512-col bf16 row
gload("global_load_ushort %s, v14, %s%s" % (v(gB2), pB2, NT))
vexpr(10, [(12, 4), (2, 1)])                 # 4 (l&7) + g
sexpr(sT0, [(sK2, 64)])
vexpr(10, [(10, 2)], sT0)                    # f*2 (local)
sexpr(sT0, [(sJ, 448)])
A("v_add_u32 v6, %s, v10" % sT0)
gload("global_load_ushort %s, v6, %s%s" % (v(gB1), pB1, NT))
N_AFTER_K, N_AFTER_V = 8, 0

for q in range(4):
    smov64(mQ[q], (0x000F000F000F000F << (4 * q)))
A("s_mov_b32 %s, 0x05040100" % sPermLo)
A("s_mov_b32 %s, 0x07060302" % sPermHi)
A("s_mov_b32 %s, %s" % (sC, f32(128 ** -0.5 * math.log2(math.e))))
A("s_mov_b32 s42, s40")
A("s_mov_b32 s43, s41")
A("s_mul_i32 %s, %s, %d" % (sT0, sJ, JSTR))
padd(pWJ, pWS, sT0)
A("v_add_u32 %s, %d, v10" % (v(gW2lds), HOP))
# O gather: E2 + ((ro*4+b)*8 + 2g)*512 + (16 (w&1) + l16)*16
sexpr(sT0, [(sHi, 16384), (sK0, 4096), (sK1, 256)], E2)
vexpr(gOg, [(2, 1024), (1, 16)], sT0)
sexpr(sT0, [(sHi, 256), (sK0, 64)], E2S)
vexpr(gOml, [(2, 16)], sT0)
# O lds: U = 16 h + l16 (h = w&1); lp = 2U + (g>>1); ups = lp&31 = (2 l16 + (g>>1)) ; e = 2 h + (g&1)
#   ups = 16 a + 4 g' + qq ; d = 32 g' + 8 e + 4 a + qq
A("v_lshrrev_b32 v4, 1, v2")
A("v_lshl_add_u32 v4, v1, 1, v4")            # ups
A("v_bfe_u32 v5, v4, 4, 1")                  # a
A("v_bfe_u32 v6, v4, 2, 2")                  # g'
A("v_and_b32 v7, 3, v4")                     # qq
A("v_and_b32 v4, 1, v2")                     # g&1
sexpr(sT0, [(sK0, RS_), (sK1, 32)], OOP)
vexpr(gOlds, [(6, 64), (4, 16), (5, 8), (7, 2)], sT0)
# W1 gather: E3 + r1*16384 + (2 pp)*512 + (4 w + (l&3))*16 ; pp = l>>2
A("v_lshrrev_b32 v4, 2, v0")
A("v_and_b32 v5, 3, v0")
if P.get("E3B", 1):
    sexpr(sT0, [(sR1, 8192), (sWave, 1024)], E3)
    A("v_add_u32 %s, %s, v3" % (v(gW1g), sT0))
elif P.get("E3L", 1):
    sexpr(sT0, [(sR1, 16384), (sWave, 2048)], E3)
    A("v_add_u32 %s, %s, v3" % (v(gW1g), sT0))
else:
    sexpr(sT0, [(sR1, 16384), (sWave, 64)], E3)
    vexpr(gW1g, [(4, 1024), (5, 16)], sT0)
# rho = 16 tile + 4 (l&3) + g ; tile = w>>2, b = w&3
A("s_lshr_b32 %s, %s, 2" % (sT1, sWave))
A("s_and_b32 %s, %s, 3" % (sT2, sWave))
if P.get("E3B", 1):
    # column = 8 (l&1) + 4 b5 + 2 b4 + b3
    A("v_and_b32 v4, 1, v0")
    A("v_bfe_u32 v5, v0, 5, 1")
    A("v_bfe_u32 v6, v0, 4, 1")
    A("v_bfe_u32 v7, v0, 3, 1")
    A("v_lshlrev_b32 v4, 4, v4")
    A("v_lshl_add_u32 v4, v5, 3, v4")
    A("v_lshl_add_u32 v4, v6, 2, v4")
    A("v_lshl_add_u32 v6, v7, 1, v4")
    A("s_mov_b32 s61, 0x00003f80")      # (1, 0)
    A("s_mov_b32 s46, 0x3f800000")      # (0, 1)
    A("s_mov_b32 s47, 0x3f803f80")      # (1, 1)
    smov64("s[48:49]", 0xFF00FF00FF00FF00)
else:
    vexpr(6, [(5, 8), (2, 2)])
sexpr(sT0, [(sT2, RS1), (sT1, 32)], X1OP)
A("v_add_u32 %s, %s, v6" % (v(gW1lds), sT0))
sexpr(sT0, [(sT2, RS_), (sT1, 32)], XOP)
A("s_and_b32 %s, %s, 3" % (sT1, sR1))
A("s_lshl_b32 %s, %s, 6" % (sT1, sT1))
A("s_add_u32 %s, %s, %s" % (sT0, sT0, sT1))
A("v_add_u32 %s, %s, v6" % (v(gW1x), sT0))
# W2 gather: E4 + (b*16 + 2 pp8)*896 + (8 w' + (l&7))*16 ; pp8 = l>>3
sexpr(sT0, [(sHi, 16 * 896), (sK2, 128)], E4)
vexpr(gW2g, [(11, 2 * 896), (12, 16)], sT0)
# W2 stats: E4S + (c1*4 + b)*128 + l16*8  (16 entries, row all-reduce)
sexpr(sT0, [(sHi, 128)], E4S)
vexpr(gW2s, [(1, 8), (2, 4)], sT0)
# X gather: E5 + ((b*8 + 2 rq + (w&1))*8 + 2g)*256 + l16*16
sexpr(sT0, [(sK0, 16384), (sHi, 4096), (sK1, 2048)], E5)
vexpr(gXg, [(2, 512), (1, 16)], sT0)
sexpr(sT0, [(sK0, 1024)], E4R)
A("v_add_u32 %s, %s, v14" % (v(gXr), sT0))
sexpr(sT0, [(sK0, 1024)])
A("v_add_u32 %s, %s, v14" % (v(gOut), sT0))
sexpr(sT0, [(sK0, RS_), (sK1, 128)], XOP)
vexpr(gXlds, [(13, 2)], sT0)
vexpr(gQrd, [(8, RS_), (2, 16)], None, QOP)
sexpr(sT0, [(sWave, 2 * APB)], AP)
vexpr(gApw, [(8, 288), (2, 64), (9, 16)], sT0)
sexpr(sT0, [(sWave, 8)], ML)
vexpr(gMlw, [(8, 64)], sT0)
'''
NV1 = 8
A.label("L_G")
ISTR, WSTR = ((65536, 8192) if P.get("KMODE", 5) == 5 else (8192, 65536))
SWZ = P.get("SWZ", 1)
sFa = "s66"
if SWZ:
    A("s_lshr_b32 %s, %s, 1" % (sFa, sJ))
    A("s_and_b32 %s, %s, 1" % (sT1, sHi))
    A("s_lshl_b32 %s, %s, 2" % (sT1, sT1))
    A("s_or_b32 %s, %s, %s" % (sFa, sFa, sT1))
    A("s_lshl_b32 %s, %s, 1" % (sT1, sHi))
    A("s_xor_b32 %s, %s, %s" % (sT1, sT1, sWave))
    sexpr(sT0, [(sHi, 8 << 21), (sJ, 1 << 21), (sLo, 1024), (sT1, WSTR)], 6144 * 256)
else:
    sexpr(sT0, [(sHi, 8 << 21), (sJ, 1 << 21), (sLo, 1024), (sWave, WSTR)], 6144 * 256)
A("v_and_b32 v8, 3, v1")
A("v_lshrrev_b32 v9, 2, v1")
if SWZ:
    A("s_and_b32 %s, %s, 3" % (sT1, sFa))
    A("v_xor_b32 v10, %s, v8" % sT1)
    vexpr(10, [(10, ISTR), (9, 256), (2, 16)])
    A("s_lshr_b32 %s, %s, 2" % (sT2, sFa))
    A("s_mul_i32 %s, %s, %d" % (sT2, sT2, 4 * ISTR))
else:
    vexpr(10, [(8, ISTR), (9, 256), (2, 16)])
A("v_mov_b32 v129, %d" % (FLG + 12))
A("s_waitcnt lgkmcnt(0)")
stamp_init()
stamp("G", 10)
padd(pT2, pV, sT0)
if SWZ:
    padd("s[26:27]", pK, sT0)
    padd(pT, "s[26:27]", sT2)
    A("s_xor_b32 s77, %s, %d" % (sT2, 4 * ISTR))
else:
    padd(pT, pK, sT0)
for tau in range(2):
    for t in range(4):
        if 4 * tau + t == P["B0POS"]:
            A("s_barrier")
        gload("global_load_dwordx4 %s, v10, %s offset:%d%s" % (v(KR + 4 * (4 * tau + t), 4), pT, 64 * t, NT))
    if tau == 0:
        if SWZ:
            padd(pT, "s[26:27]", "s77")
        else:
            padd(pT, pT, 4 * ISTR)
        A("v_mov_b32 %s, v10" % v(SR))
        exec(GADDR)
        A("v_mov_b32 v10, %s" % v(SR))
stamp("G", 11)
NV1 = 8
for jj in range(8):
    if SWZ:
        A("s_xor_b32 %s, %s, %d" % (sT0, sFa, jj))
        A("s_mul_i32 %s, %s, %d" % (sT0, sT0, ISTR))
        padd(pT, pT2, sT0)
        gload("global_load_dwordx4 %s, v3, %s%s" % (v(VR + 4 * jj, 4), pT, NT))
        continue
    gload("global_load_dwordx4 %s, v3, %s%s" % (v(VR + 4 * jj, 4), pT2, NT))
    if jj < 7:
        padd(pT2, pT2, ISTR)
for q in range(4):
    A("v_cndmask_b32 v%d, 0, -1, %s" % (144 + q, mQ[q]))
stamp("G", 9)
if P.get("KVWAIT"):
    A("s_waitcnt vmcnt(0)")
    stamp("G", 14)
if P.get("QLATE"):
    A("s_barrier")
if P.get("PRIO", 0):
    A("s_cmp_ge_u32 %s, 4" % sWave)
    A("s_cbranch_scc1 G_ENTRY")
    A("s_setprio %d" % P["PRIO"])
A.label("G_ENTRY")
A("s_barrier")
cyc(0)
stamp("G")
if NV1 < 8:
    lab = if_layer0()
    for jj in range(NV1, 8):
        A("global_load_dwordx4 %s, v3, %s offset:%d%s" % (v(VR + 4 * jj, 4), pT2, (jj - 4) * 1024, NT))
    A.label(lab)
for t in range(4):
    A("ds_read_b128 %s, %s offset:%d" % (v(QR + 4 * t, 4), v(gQrd), 64 * t))
A("s_waitcnt vmcnt(%d)" % N_AFTER_K)
stamp("G")
S0, S1 = SR, SR + 4
if STAMP == 4:
    A("s_waitcnt lgkmcnt(0)")
    cyc(1)
for t in range(4):
    A("s_waitcnt lgkmcnt(%d)" % ((3 - t) if STAMP != 4 else 15))
    for tau in range(2):
        d = v(SR + 4 * tau, 4)
        A("%s %s, %s, %s, %s" % (MFMA, d, v(KR + 4 * (4 * tau + t), 4), v(QR + 4 * t, 4), "0" if t == 0 else d))
aM, aT, aMc = 136, 137, 138
PR = 140
PM = QR
A("v_max3_f32 %s, %s, %s, %s" % (v(aM), v(S0), v(S0 + 1), v(S0 + 2)))
A("v_max3_f32 %s, %s, %s, %s" % (v(aT), v(S1), v(S1 + 1), v(S1 + 2)))
A("v_max3_f32 %s, %s, %s, %s" % (v(aM), v(aM), v(S0 + 3), v(S1 + 3)))
A("v_max_f32 %s, %s, %s" % (v(aM), v(aM), v(aT)))
cyc(2)
g_allreduce("v_max_f32", aM, aT)
A("v_mul_f32 %s, %s, %s" % (v(aMc), sC, v(aM)))
for q in range(4):
    A("s_mov_b64 exec, %s" % mQ[q])
    A("v_fma_f32 %s, %s, %s, -%s" % (v(PR), v(SR + 2 * q), sC, v(aMc)))
    A("v_fma_f32 %s, %s, %s, -%s" % (v(PR + 1), v(SR + 2 * q + 1), sC, v(aMc)))
A("s_mov_b64 exec, -1")
A("v_exp_f32 %s, %s" % (v(PR), v(PR)))
A("v_exp_f32 %s, %s" % (v(PR + 1), v(PR + 1)))
A("v_cvt_pk_bf16_f32 %s, %s, %s" % (v(PR), v(PR), v(PR + 1)))
cyc(3)
lab0, lab1 = newlabel("VT"), newlabel("VTD")
A("s_cmp_eq_u32 %s, 0" % sL)
A("s_cbranch_scc1 %s" % lab0)
D0 = 4
DL = 128
MK = 144
ONES = GS + 28


def pm(q, p):
    rot = (4 * (q - p)) % 16
    if rot == 0:
        A("v_and_b32 %s, %s, %s" % (v(PM + 4 * q + p), v(PR), v(MK + q)))
    else:
        A("v_and_b32_dpp %s, %s, %s row_ror:%d%s" % (v(PM + 4 * q + p), v(PR), v(MK + q), rot, DPP))


with Cap() as vt:
    for k in range(16):
        pm(k >> 2, k & 3)
    for i in range(4):
        A("v_mov_b32 %s, 0x3f803f80" % v(132 + i))
    A("%s %s, %s, %s, 0" % (MFMA, v(DL, 4), v(132, 4), v(PM, 4)))
    for p in range(4):
        A("s_waitcnt vmcnt(%d)" % (N_AFTER_V + 6 - 2 * p))
        if p == 3:
            stamp("G")
        if P.get("VSIG") and p == P.get("VSP", 1):
            A("v_mov_b32 v12, %d" % (FLG + 12))
            A("v_mov_b32 v13, 1")
            A("s_mov_b64 exec, 1")
            A("ds_add_u32 v12, v13")
            A("s_mov_b64 exec, -1")
        for i in (0, 4, 1, 5, 2, 6, 3, 7):
            A("v_perm_b32 %s, %s, %s, %s" % (v(VF + 4 * i + p), v(VR + 4 * (2 * p + 1) + (i >> 1)), v(VR + 4 * (2 * p) + (i >> 1)),
                                             sPermHi if (i & 1) else sPermLo))
    for q in range(4):
        for a in range(2):
            d = v(D0 + 4 * a, 4)
            A("%s %s, %s, %s, %s" % (MFMA, d, v(VF + 4 * (4 * a + q), 4), v(PM + 4 * q, 4), "0" if q == 0 else d))
    for i in range(4):
        A("v_mov_b32 %s, 0x3f803f80" % v(ONES + i))
OOL.append([lab0 + ":"] + vt.lines + ["s_branch %s" % lab1])
for p in range(4):
    pm(0, p)
pm(1, 0); pm(1, 1)
A("%s %s, %s, %s, 0" % (MFMA, v(DL, 4), v(ONES, 4), v(PM, 4)))
for q in range(4):
    for a in range(2):
        d = v(D0 + 4 * a, 4)
        A("%s %s, %s, %s, %s" % (MFMA, d, v(VF + 4 * (4 * a + q), 4), v(PM + 4 * q, 4), "0" if q == 0 else d))
        nxt = 4 * q + 2 * a + 6
        for k in (nxt, nxt + 1):
            if k < 16:
                pm(k >> 2, k & 3)
A.label(lab1)
A("v_mov_b32 %s, %s" % (v(aMc + 1), v(DL)))
cyc(4)
A("s_mov_b64 exec, %s" % mQ[0])
A("ds_write_b64 %s, %s" % (v(gMlw), v(aMc, 2)))
A("s_mov_b64 exec, -1")
A("ds_write_b128 %s, %s" % (v(gApw), v(D0, 4)))
A("ds_write_b128 %s, %s offset:%d" % (v(gApw), v(D0 + 4, 4), APB))
A("s_waitcnt lgkmcnt(0)")
cyc(5)
A("s_barrier")
cyc(6)
cyc_dump(7)

a0, b0, c0 = GS, GS + 4, GS + 8
r0, r1_, r2, r3 = GS + 12, GS + 13, GS + 14, GS + 15


def add_ab():
    for e in range(4):
        A("v_add_f32 %s, %s, %s" % (v(a0 + e), v(a0 + e), v(b0 + e)))


BC = "row_newbcast:0" + DPP
NS_ = P.get("NSETS", 2)
GSETS = [GS, GS + 16, 112][:NS_]
GAP = P.get("GAP", 3)


def add_ab2(a):
    for e in range(4):
        A("v_add_f32 %s, %s, %s" % (v(a + e), v(a + e), v(a + 4 + e)))


def g_treduce_to(a, out):
    A("v_permlane16_swap_b32 %s, %s" % (v(a), v(a + 1)))
    A("v_permlane16_swap_b32 %s, %s" % (v(a + 2), v(a + 3)))
    A("v_add_f32 %s, %s, %s" % (v(a), v(a), v(a + 1)))
    A("v_add_f32 %s, %s, %s" % (v(a + 2), v(a + 2), v(a + 3)))
    A("v_permlane32_swap_b32 %s, %s" % (v(a), v(a + 2)))
    A("v_add_f32 %s, %s, %s" % (v(out), v(a), v(a + 2)))


A("ds_read_u16 %s, %s" % (v(r3), v(gW1x)))
for e in range(4):
    A("v_mov_b32 %s, 0" % v(c0 + e))
A("s_barrier")
sleep(P.get("DI_O", 0))
stamp("G", 7)


T_ = GS + 16


def o_post():
    c, f0, f1, t = c0, T_ + 4, T_ + 5, T_
    A("v_max_f32 %s, %s, %s" % (v(r0), v(c), v(c + 2)))
    g_allreduce("v_max_f32", r0, r1_)
    A("v_sub_f32 %s, %s, %s" % (v(f0), v(c), v(r0)))
    A("v_sub_f32 %s, %s, %s" % (v(f1), v(c + 2), v(r0)))
    A("v_exp_f32 %s, %s" % (v(f0), v(f0)))
    A("v_exp_f32 %s, %s" % (v(f1), v(f1)))
    with Cap() as c1:
        A("v_mul_f32 %s, %s, %s" % (v(r1_), v(f0), v(c + 1)))
        A("v_fmac_f32 %s, %s, %s" % (v(r1_), v(f1), v(c + 3)))
        g_allreduce("v_add_f32", r1_, r2)
        A("v_rcp_f32 %s, %s" % (v(r1_), v(r1_)))
    with Cap() as c2:
        for e in range(4):
            A("v_mul_f32_dpp %s, %s, %s %s" % (v(t + e), v(f0), v(a0 + e), BC))
        for e in range(4):
            A("v_fmac_f32_dpp %s, %s, %s %s" % (v(t + e), v(f1), v(b0 + e), BC))
        g_treduce_to(t, r0)
    L1_, L2_ = c1.lines, c2.lines
    A(L1_[0]); A(L1_[1])
    for l in interleave(L2_, L1_[2:]):
        A(l)
    A("v_mul_f32_dpp %s, %s, %s %s" % (v(r0), v(r1_), v(r0), BC))


def o_pre():
    c, f0, f1 = c0, T_ + 4, T_ + 5
    A("v_max_f32 %s, %s, %s" % (v(r0), v(c), v(c + 2)))
    g_allreduce("v_max_f32", r0, r1_)
    A("v_sub_f32 %s, %s, %s" % (v(f0), v(c), v(r0)))
    A("v_sub_f32 %s, %s, %s" % (v(f1), v(c + 2), v(r0)))
    A("v_exp_f32 %s, %s" % (v(f0), v(f0)))
    A("v_exp_f32 %s, %s" % (v(f1), v(f1)))
    A("v_mul_f32 %s, %s, %s" % (v(r1_), v(f0), v(c + 1)))
    A("v_fmac_f32 %s, %s, %s" % (v(r1_), v(f1), v(c + 3)))
    g_allreduce("v_add_f32", r1_, r2)
    A("v_rcp_f32 %s, %s" % (v(r1_), v(r1_)))
    A("v_mul_f32 %s, %s, %s" % (v(f0), v(f0), v(r1_)))
    A("v_mul_f32 %s, %s, %s" % (v(f1), v(f1), v(r1_)))
    A("v_mov_b32_dpp %s, %s %s" % (v(f0), v(f0), BC))
    A("v_mov_b32_dpp %s, %s %s" % (v(f1 + 1), v(f1), BC))


def o_post2():
    f0, f1 = T_ + 4, T_ + 6
    for h in range(2):
        A("v_pk_mul_f32 %s, %s, %s op_sel_hi:[0,1]" % (v(a0 + 2 * h, 2), v(f0, 2), v(a0 + 2 * h, 2)))
    for h in range(2):
        A("v_pk_fma_f32 %s, %s, %s, %s op_sel_hi:[0,1,1]" % (v(a0 + 2 * h, 2), v(f1, 2), v(b0 + 2 * h, 2), v(a0 + 2 * h, 2)))
    g_treduce_to(a0, r0)


if P.get("SPLIT", 0):
    split_poll("global_load_dwordx4 %s, %s, %s sc1" % (v(c0, 4), v(gOml), pWJ), 0x0001000100010001, list(range(c0, c0 + 4)),
               ["global_load_dwordx4 %s, %s, %s sc1" % (v(a0, 4), v(gOg), pWJ),
                "global_load_dwordx4 %s, %s, %s offset:512 sc1" % (v(b0, 4), v(gOg), pWJ)], range(a0, a0 + 8), o_pre, o_post2, ck=0)
else:
    opt_poll("global_load_dwordx4 %s, %s, %s sc1" % (v(c0, 4), v(gOml), pWJ), 0x0001000100010001, range(c0, c0 + 4),
             ["global_load_dwordx4 %s, %s, %s sc1" % (v(a0, 4), v(gOg), pWJ),
              "global_load_dwordx4 %s, %s, %s offset:512 sc1" % (v(b0, 4), v(gOg), pWJ)], range(a0, a0 + 8), o_post, [r0], ck=0)
stamp("G")
A("v_cvt_pk_bf16_f32 %s, %s, %s" % (v(r0), v(r0), v(r0)))
A("ds_write_b16 %s, %s" % (v(gOlds), v(r0)))
A("s_waitcnt lgkmcnt(0)")
cycg(3)
A("s_barrier")
cycg(4)

A("v_lshlrev_b32 %s, 16, %s" % (v(r3), v(r3)))
A("s_barrier")
CA, CB, CAD = GS + 16, GS + 20, GS + 24
CSL = ["global_load_dwordx4 %s, %s, %s sc1" % (v(CA, 4), v(CAD), pWJ),
       "global_load_dwordx4 %s, %s, %s offset:896 sc1" % (v(CB, 4), v(CAD), pWJ)]
A("s_cmp_eq_u32 %s, 0" % sL)
A("s_cbranch_scc1 G_CS1")
sleep(P["D_W1"])
A.label("G_CS1_DONE")
OOL.append(["G_CS1:", "s_mul_i32 %s, %s, %d" % (sT0, sHi, 16 * 896), "s_add_u32 %s, %s, %d" % (sT0, sT0, E4 - E4C),
            "v_subrev_u32 %s, %s, %s" % (v(CAD), sT0, v(gW2g)), "s_sleep %d" % (P["D_W1"] - 2)] + CSL + ["s_branch G_CS1_DONE"])
stamp("G", 8)


def w1_issue(a):
    A("global_load_dwordx4 %s, %s, %s sc1" % (v(a, 4), v(gW1g), pWL))
    A("global_load_dwordx4 %s, %s, %s offset:%d sc1" % (v(a + 4, 4), v(gW1g), pWL, 1024 if P.get("E3L", 1) else 512))


def w1_post(a):
    add_ab2(a)
    g_treduce_to(a, r0)
    A("v_add_f32_dpp %s, %s, %s row_ror:4%s" % (v(r0), v(r0), v(r0), DPP))
    A("v_add_f32_dpp %s, %s, %s row_ror:8%s" % (v(r0), v(r0), v(r0), DPP))


if P.get("E3B", 1):
    pk, t_ = GS, GS + 4
    ld = "global_load_dwordx4 %s, %s, %s sc1" % (v(pk, 4), v(gW1g), pWL)
    A(ld)
    A.label("W1B_CHK")
    A("s_waitcnt vmcnt(0)")
    A("v_dot2_f32_bf16 %s, %s, s47, 0" % (v(t_), v(pk)))
    for e in range(1, 4):
        A("v_dot2_f32_bf16 %s, %s, s47, %s" % (v(t_), v(pk + e), v(t_)))
    A("v_cmp_u_f32 vcc, %s, %s" % (v(t_), v(t_)))
    A("s_cbranch_vccnz W1B_RETRY")
    A.label("W1B_OK")
    OOL.append(["W1B_RETRY:", "s_mov_b64 exec, vcc", ld, "s_mov_b64 exec, -1", "s_sub_u32 %s, %s, 1" % (sBud, sBud),
                "s_cbranch_scc0 W1B_CHK", "s_mov_b32 %s, 0" % sBud, "s_waitcnt vmcnt(0)", "s_branch W1B_OK"])
    A("v_permlane32_swap_b32 %s, %s" % (v(pk), v(pk + 2)))
    A("v_permlane32_swap_b32 %s, %s" % (v(pk + 1), v(pk + 3)))
    for e, (src, sel) in enumerate(((0, "s61"), (0, "s46"), (1, "s61"), (1, "s46"))):
        A("v_dot2_f32_bf16 %s, %s, %s, 0" % (v(t_ + e), v(pk + src), sel))
        A("v_dot2_f32_bf16 %s, %s, %s, %s" % (v(t_ + e), v(pk + 2 + src), sel, v(t_ + e)))
    A("v_permlane16_swap_b32 %s, %s" % (v(t_), v(t_ + 2)))
    A("v_permlane16_swap_b32 %s, %s" % (v(t_ + 1), v(t_ + 3)))
    A("v_add_f32 %s, %s, %s" % (v(t_), v(t_), v(t_ + 2)))
    A("v_add_f32 %s, %s, %s" % (v(t_ + 1), v(t_ + 1), v(t_ + 3)))
    A("v_cndmask_b32 %s, %s, %s, s[48:49]" % (v(t_ + 2), v(t_ + 1), v(t_)))
    A("v_cndmask_b32 %s, %s, %s, s[48:49]" % (v(r0), v(t_), v(t_ + 1)))
    A("v_add_f32_dpp %s, %s, %s row_ror:8%s" % (v(r0), v(t_ + 2), v(r0), DPP))
    A("v_add_f32_dpp %s, %s, %s %s" % (v(r0), v(r0), v(r0), X2))
    A("v_add_f32_dpp %s, %s, %s row_shr:4 row_mask:0xf bank_mask:0xa" % (v(r0), v(r0), v(r0)))
else:
    fast_poll(w1_issue, None, w1_post, None, [r0], GS)
stamp("G")
A("v_add_f32 %s, %s, %s" % (v(r0), v(r0), v(r3)))
A("v_cvt_pk_bf16_f32 %s, %s, %s" % (v(r0), v(r0), v(r0)))
if P.get("E3B", 1):
    set_exec(0xF0F0F0F0F0F0F0F0)
A("ds_write_b16 %s, %s" % (v(gW1lds), v(r0)))
if P.get("E3B", 1):
    set_exec(-1)
A("s_waitcnt lgkmcnt(0)")
A("s_barrier")

A("s_cmp_eq_u32 %s, 0" % sL)
A("s_cbranch_scc1 G_CS2")
A.label("G_CS2_DONE")
with Cap() as cs2:
    A.label("G_CS2_CHK")
    for e in range(4):
        A("v_add_f32 %s, %s, %s" % (v(a0 + e), v(CA + e), v(CB + e)))
    g_treduce(a0)
    A("v_add_f32_dpp %s, %s, %s row_ror:8%s" % (v(gCs1), v(a0), v(a0), DPP))
    A("v_cmp_u_f32 vcc, %s, %s" % (v(gCs1), v(gCs1)))
    A("s_cbranch_vccz G_CS2_OK")
    for l in CSL:
        A(l)
    A("s_waitcnt vmcnt(0)")
    budget_loop("G_CS2_CHK")
    A.label("G_CS2_OK")
    A("v_lshlrev_b32 %s, 16, %s" % (v(gB1), v(gB1)))
    A("v_lshlrev_b32 %s, 16, %s" % (v(gB2), v(gB2)))
OOL.append(["G_CS2:"] + cs2.lines + ["s_branch G_CS2_DONE"])
k0 = -2 * math.log2(math.e) * math.sqrt(2 / math.pi)
A("v_mov_b32 %s, %s" % (v(r2), f32(k0)))
A("s_barrier")
A("s_cmp_eq_u32 %s, 7" % sWave)
A("s_cbranch_scc1 G_W2_SKIP")
sleep(P.get("DI_W2", 0))
stamp("G", 12)


def add_to(t):
    for e in range(4):
        A("v_add_f32 %s, %s, %s" % (v(t + e), v(a0 + e), v(b0 + e)))


def w2_post():
    with Cap() as c1:
        stats_math(c0, T_ + 4, 1.0 + 1e-5, 1e-10)
        A("v_fma_f32 %s, -%s, %s, %s" % (v(r3), v(T_ + 5), v(gCs1), v(gB1)))
    with Cap() as c2:
        add_to(T_)
        g_treduce_to(T_, r0)
        A("v_add_f32_dpp %s, %s, %s row_ror:8%s" % (v(r0), v(r0), v(r0), DPP))
    for l in interleave(c1.lines, c2.lines):
        A(l)
    A("v_fma_f32 %s, %s, %s, %s" % (v(r0), v(r0), v(T_ + 4), v(r3)))


def pk_add(a):
    for h in range(2):
        A("v_pk_add_f32 %s, %s, %s" % (v(a + 2 * h, 2), v(a + 2 * h, 2), v(a + 4 + 2 * h, 2)))


def w2_pre():
    stats_math(c0, T_ + 4, 1.0 + 1e-5, 1e-10)
    A("v_fma_f32 %s, -%s, %s, %s" % (v(r3), v(T_ + 5), v(gCs1), v(gB1)))


def w2_post2():
    pk_add(a0)
    g_treduce_to(a0, r0)
    A("v_add_f32_dpp %s, %s, %s row_ror:8%s" % (v(r0), v(r0), v(r0), DPP))
    A("v_fma_f32 %s, %s, %s, %s" % (v(r0), v(r0), v(T_ + 4), v(r3)))


if P.get("SPLIT", 0):
    split_poll("global_load_dword %s, %s, %s sc1" % (v(c0), v(gW2s), pWJ), 0xFFFFFFFF, [c0],
               ["global_load_dwordx4 %s, %s, %s sc1" % (v(a0, 4), v(gW2g), pWJ),
                "global_load_dwordx4 %s, %s, %s offset:896 sc1" % (v(b0, 4), v(gW2g), pWJ)], range(a0, a0 + 8), w2_pre, w2_post2, ck=5)
else:
    opt_poll("global_load_dword %s, %s, %s sc1" % (v(c0), v(gW2s), pWJ), 0xFFFFFFFF, [c0],
             ["global_load_dwordx4 %s, %s, %s sc1" % (v(a0, 4), v(gW2g), pWJ),
              "global_load_dwordx4 %s, %s, %s offset:896 sc1" % (v(b0, 4), v(gW2g), pWJ)], range(a0, a0 + 8), w2_post, [r0], ck=5)
stamp("G")
RX = GS + 27
A("v_mul_f32 %s, %s, %s" % (v(r1_), v(r0), v(r0)))
A("v_fmac_f32 %s, %s, %s" % (v(r2), f32(k0 * 0.044715), v(r1_)))
A("v_mul_f32 %s, %s, %s" % (v(r2), v(r2), v(r0)))
A("v_exp_f32 %s, %s" % (v(r2), v(r2)))
A("v_add_f32 %s, 1.0, %s" % (v(r2), v(r2)))
A("v_rcp_f32 %s, %s" % (v(r2), v(r2)))
A("v_mul_f32 %s, %s, %s" % (v(r0), v(r0), v(r2)))
A("v_cvt_pk_bf16_f32 %s, %s, %s" % (v(r0), v(r0), v(r0)))
A("ds_write_b16 %s, %s" % (v(gW2lds), v(r0)))
A("s_waitcnt lgkmcnt(0)")
cycg(8)
A.label("G_W2_SKIP")
A("s_barrier")
cycg(9)
if STAMP == 6:
    A("s_waitcnt lgkmcnt(0)")
    for k in range(10):
        A("v_writelane_b32 v15, s%d, %d" % (80 + 2 * k, 32 + k))

A("s_cmp_eq_u32 %s, 0" % sL)
A("s_cbranch_scc1 G_X_GO")
A("s_cmp_lg_u32 %s, 0" % sLo)
A("s_cbranch_scc1 L_EXIT")
A("s_cmp_lg_u32 %s, %s" % (sWave, sJ))
A("s_cbranch_scc1 L_EXIT")
A.label("G_X_GO")


def xpre():
    A("v_lshlrev_b32 %s, 16, %s" % (v(r3), v(r3)))


A("global_load_ushort %s, %s, %s sc1" % (v(RX), v(gXr), pWJ))
A.label("G_RX_CHK")
A("s_waitcnt vmcnt(0)")
A("v_lshlrev_b32 %s, 16, %s" % (v(r3), v(RX)))
A("v_cmp_u_f32 vcc, %s, %s" % (v(r3), v(r3)))
A("s_cbranch_vccnz G_RX_RETRY")
A.label("G_RX_OK")
OOL.append(["G_RX_RETRY:", "global_load_ushort %s, %s, %s sc1" % (v(RX), v(gXr), pWJ),
            "s_sub_u32 %s, %s, 1" % (sBud, sBud), "s_cbranch_scc0 G_RX_CHK", "s_mov_b32 %s, 0" % sBud, "s_branch G_RX_OK"])
A("v_add_f32 %s, %s, %s" % (v(r3), v(r3), v(gB2)))
A("s_barrier")
sleep(P["D_X"])
stamp("G", 13)


def x_post():
    pk_add(a0)
    g_treduce_to(a0, r0)


opt_poll(None, 0, [], ["global_load_dwordx4 %s, %s, %s sc1" % (v(a0, 4), v(gXg), pWL),
                       "global_load_dwordx4 %s, %s, %s offset:256 sc1" % (v(b0, 4), v(gXg), pWL)], range(a0, a0 + 8), x_post, [r0])
stamp("G")
A("v_add_f32 %s, %s, %s" % (v(r0), v(r0), v(r3)))
A("v_cvt_pk_bf16_f32 %s, %s, %s" % (v(r0), v(r0), v(r0)))
A("s_cmp_lg_u32 %s, 0" % sL)
A("s_cbranch_scc1 G_FINAL")
A("ds_write_b16 %s, %s" % (v(gXlds), v(r0)))
A("s_mov_b32 %s, 1" % sL)
padd(pWL, pWL, LSTR)
A("s_waitcnt lgkmcnt(0)")
A("s_barrier")
A("s_waitcnt vmcnt(0)")
A("s_branch G_ENTRY")
A.label("G_FINAL")
sleep(P.get("ENDSLEEP", 0))
if "ECHO" in P:
    A("s_memrealtime s[82:83]")
    A("s_sub_u32 s80, s80, s78")
    A("s_waitcnt lgkmcnt(0)")
    A("s_add_u32 s80, s80, s82")
    A.label("ECHO_SPIN")
    A("s_memrealtime s[82:83]")
    A("s_waitcnt lgkmcnt(0)")
    A("s_cmp_lt_u32 s82, s80")
    A("s_cbranch_scc1 ECHO_SPIN")
A("global_store_short %s, %s, %s" % (v(gOut), v(r0), pOUT))
A.label("L_EXIT")
stamp_dump()
A.label("L_END")
A("s_endpgm")
for blk in OOL:
    for l in blk:
        A(l)
A("s_endpgm")

A.fix_hazards()

hdr = open("cdna_kernels/%s.s.ref" % NAME).read().split("; Override launch")[0]
out = hdr + """; @launch grid=(256,1,1) block=(768,1,1) lds=%d
;
; One persistent launch, one workgroup per CU (12 waves: 4 "service" + 8 "attention/gather" waves).
; K/V window and all weight tiles are loaded once and stay on chip for both layers. Stages hand data to
; each other through d_ws: buffers are cleared to a signalling-NaN sentinel inside the launch (guarded by
; per-workgroup records tagged with a launch nonce published in d_debug) and polled with sc1 loads.
; Workgroups with equal (id & 7) form a group; a group whose members report the same XCC id uses plain
; stores for its private exchanges, any other placement falls back to write-through (sc1) stores.
; Generated by dev/gen.py (hand-written generator, wait states inserted by dev/asmlib.py).
.amdgcn_target "amdgcn-amd-amdhsa--gfx950"
.text
.globl %s_kernel
.p2align 8
.type %s_kernel,@function
%s_kernel:
%s
    ; pad the code section so that the 12 KB code prefetch stays inside it
    .fill ((12288 + 256 - (. - %s_kernel)) / 4), 4, 0xbf810000
.section .rodata,"a"
.p2align 6
.amdhsa_kernel %s_kernel
  .amdhsa_next_free_vgpr 168
  .amdhsa_next_free_sgpr 102
  .amdhsa_accum_offset 168
  .amdhsa_group_segment_fixed_size 0
  .amdhsa_kernarg_size 104
  .amdhsa_user_sgpr_count 2
  .amdhsa_user_sgpr_kernarg_segment_ptr 1
  .amdhsa_system_sgpr_workgroup_id_x 1
.end_amdhsa_kernel
""" % (LDS_TOTAL, NAME, NAME, NAME, A.text(), NAME, NAME)
open(sys.argv[1], "w").write(out)
print("wrote", sys.argv[1], "instructions:", sum(1 for x in A.ins if not x.label), "LDS", LDS_TOTAL)
```

```python
import sys, math, struct, os
from asmlib import Asm

NAME = "interleave_layers__sliding_block_cached__mixer_channel_mlp__decode"

P = dict(B0POS=0, W=64, NV1=8, D_A0=64, NSL=3, NLATE=1, D_O=0, D_W1=10, D_W2=0, D_X=9, D_A=0, NT="", STAMP=0, FORCE_SAFE=0, PREF=1)
for a in sys.argv[2:]:
    k, v_ = a.split("=")
    P[k] = int(v_) if v_.lstrip("-").isdigit() else v_


def f32(x):
    return "0x%08x" % struct.unpack("<I", struct.pack("<f", x))[0]


LSTR = 0x200000
JSTR = 196608
E1, E1S, E4C = 0, 40960, 45056
E1T = 0x200000 * 2
REC = 0x1D8000
E2, E4, E4R, E2S, E4S = 65536, 131072, 188416, 61440, 193536
E3, E5 = 0x180000, 0x1C0000
SENT = 0x7F817F81
LW_Q, LW_O, LW_2, LW_1 = 0, 16384, 32768, 61440
RS_, RS1 = 320, 64
XOP = 68608
QOP = XOP + 5 * RS_
OOP = QOP + 4 * RS_
X1OP = OOP + 4 * RS_
HOP = X1OP + 5 * RS1
ML = HOP + 448
FLG = ML + 256
ST0 = FLG + 16
NONCE = ST0 + 32
AP = (NONCE + 16 + 1023) // 1024 * 1024
APB = 1152
LDS_TOTAL = AP + 16 * APB
assert all(x % 16 == 0 for x in (XOP, QOP, OOP, X1OP, HOP, ML))

sWave, sJ, sS, sHi, sLo, sR1, sC1, sL, sBud = "s3", "s4", "s5", "s6", "s7", "s8", "s9", "s10", "s11"
sT0, sT1, sT2, sT3 = "s12", "s13", "s14", "s15"
pX, pK, pV, pWQ, pWO, pW1, pB1, pW2, pB2, pOUT, pDBG, pWS = (
    "s[16:17]", "s[18:19]", "s[20:21]", "s[22:23]", "s[24:25]", "s[28:29]", "s[30:31]", "s[32:33]", "s[34:35]",
    "s[36:37]", "s[38:39]", "s[40:41]")
pWL = "s[42:43]"
sFast = "s44"
sU = "s45"
mQ = ["s[50:51]", "s[52:53]", "s[54:55]", "s[56:57]"]
sPermLo, sPermHi = "s58", "s59"
sC = "s60"
pT = "s[62:63]"
pT2 = "s[64:65]"
sXcc = "s66"
sK0, sK1, sK2 = "s67", "s68", "s69"
mT = "s[70:71]"
pWJ = "s[72:73]"
pPC = "s[46:47]"
pN = "s[48:49]"

A = Asm()
NT = (" " + P["NT"]) if P["NT"] else ""
STAMP = P["STAMP"]


def v(n, cnt=1):
    return "v%d" % n if cnt == 1 else "v[%d:%d]" % (n, n + cnt - 1)


def smov64(pair, val):
    lo = int(pair[2:].split(":")[0])
    A("s_mov_b32 s%d, 0x%08x" % (lo, val & 0xFFFFFFFF))
    A("s_mov_b32 s%d, 0x%08x" % (lo + 1, val >> 32))


def exec_lines(val):
    if val == -1:
        return ["s_mov_b64 exec, -1"]
    if 0 <= val <= 64:
        return ["s_mov_b64 exec, %d" % val]
    return ["s_mov_b32 exec_lo, 0x%08x" % (val & 0xFFFFFFFF), "s_mov_b32 exec_hi, 0x%08x" % (val >> 32)]


def set_exec(val):
    for l in exec_lines(val):
        A(l)


def padd(dst, src, soff):
    d = int(dst[2:].split(":")[0]); s = int(src[2:].split(":")[0])
    A("s_add_u32 s%d, s%d, %s" % (d, s, soff))
    A("s_addc_u32 s%d, s%d, 0" % (d + 1, s + 1))


def sexpr(dst, terms, const=0, tmp=sT3):
    first = True
    for (r, m) in terms:
        t = dst if first else tmp
        if m == 1:
            if first:
                A("s_mov_b32 %s, %s" % (dst, r))
            else:
                A("s_add_u32 %s, %s, %s" % (dst, dst, r))
            first = False
            continue
        if m & (m - 1) == 0:
            A("s_lshl_b32 %s, %s, %d" % (t, r, m.bit_length() - 1))
        else:
            A("s_mul_i32 %s, %s, %d" % (t, r, m))
        if not first:
            A("s_add_u32 %s, %s, %s" % (dst, dst, t))
        first = False
    if first:
        A("s_mov_b32 %s, %d" % (dst, const))
    elif const:
        A("s_add_u32 %s, %s, %d" % (dst, dst, const))


def vexpr(dst, terms, sreg=None, const=0):
    first = True
    for (r, m) in terms:
        if first:
            if m == 1:
                A("v_mov_b32 %s, %s" % (v(dst), v(r)))
            elif m & (m - 1) == 0:
                A("v_lshlrev_b32 %s, %d, %s" % (v(dst), m.bit_length() - 1, v(r)))
            else:
                A("v_mul_u32_u24 %s, %d, %s" % (v(dst), m, v(r)))
            first = False
        else:
            assert m & (m - 1) == 0, "non power of two term must come first"
            A("v_lshl_add_u32 %s, %s, %d, %s" % (v(dst), v(r), m.bit_length() - 1, v(dst)))
    if sreg:
        A("v_add_u32 %s, %s, %s" % (v(dst), sreg, v(dst)))
    if const:
        A("v_add_u32 %s, %d, %s" % (v(dst), const, v(dst)))


DPP = " row_mask:0xf bank_mask:0xf"
X1 = "quad_perm:[1,0,3,2]" + DPP
X2 = "quad_perm:[2,3,0,1]" + DPP
HM = "row_half_mirror" + DPP
RM = "row_mirror" + DPP
_lab = [0]


def newlabel(p="L"):
    _lab[0] += 1
    return "%s_%d" % (p, _lab[0])


def sleep(n):
    while n > 0:
        k = min(n, 127)
        A("s_sleep %d" % k)
        n -= k


def g_treduce(a):
    A("v_permlane16_swap_b32 %s, %s" % (v(a), v(a + 1)))
    A("v_permlane16_swap_b32 %s, %s" % (v(a + 2), v(a + 3)))
    A("v_add_f32 %s, %s, %s" % (v(a), v(a), v(a + 1)))
    A("v_add_f32 %s, %s, %s" % (v(a + 2), v(a + 2), v(a + 3)))
    A("v_permlane32_swap_b32 %s, %s" % (v(a), v(a + 2)))
    A("v_add_f32 %s, %s, %s" % (v(a), v(a), v(a + 2)))


def g_allreduce(op, r, t):
    for sw in ("v_permlane16_swap_b32", "v_permlane32_swap_b32"):
        A("v_mov_b32 %s, %s" % (v(t), v(r)))
        A("%s %s, %s" % (sw, v(r), v(t)))
        A("%s %s, %s, %s" % (op, v(r), v(r), v(t)))


def budget_loop(top):
    A("s_sub_u32 %s, %s, 1" % (sBud, sBud))
    A("s_cbranch_scc0 %s" % top)
    A("s_mov_b32 %s, 0" % sBud)


def poll(loads, check_pairs, pre=None, nap=0):
    top, done = newlabel("POLL"), newlabel("PDONE")
    A.label(top)
    for l in loads:
        A(l)
    A("s_waitcnt vmcnt(0)")
    if pre:
        pre()
    first = True
    for (a, b) in check_pairs:
        if first:
            A("v_cmp_u_f32 vcc, %s, %s" % (v(a), v(b)))
            first = False
        else:
            A("v_cmp_u_f32 %s, %s, %s" % (mT, v(a), v(b)))
            A("s_or_b64 vcc, vcc, %s" % mT)
    A("s_cbranch_vccz %s" % done)
    sleep(nap)
    budget_loop(top)
    A.label(done)


def half(loads):
    import re
    if P.get("HALF") == 1:
        m = re.search(r"v\[(\d+):(\d+)\]", loads[1])
        for r_ in range(int(m.group(1)), int(m.group(2)) + 1):
            A("v_mov_b32 v%d, 0" % r_)
        return loads[:1]
    if P.get("HALF") == 2:
        out = []
        for l in loads:
            m = re.search(r"v\[(\d+):(\d+)\]", l)
            lo = int(m.group(1))
            A("v_mov_b32 v%d, 0" % (lo + 2)); A("v_mov_b32 v%d, 0" % (lo + 3))
            out.append(l.replace("dwordx4", "dwordx2").replace(m.group(0), "v[%d:%d]" % (lo, lo + 1)))
        return out
    return loads


def canary(load, pairs, mask, nap=0):
    set_exec(mask)
    poll([load], pairs, nap=nap)
    set_exec(-1)


def bulk(loads, mid, post, res):
    top, again, done = newlabel("BK"), newlabel("BKA"), newlabel("BKD")
    loads = half(loads)
    for l in loads:
        A(l)
    if mid:
        mid()
    A.label(top)
    A("s_waitcnt vmcnt(0)")
    post()
    A("v_cmp_u_f32 vcc, %s, %s" % (v(res[0]), v(res[-1])))
    A("s_cbranch_vccz %s" % done)
    for l in loads:
        A(l)
    budget_loop(top)
    A("s_waitcnt vmcnt(0)")
    A.label(done)


def round1(small, mask, loads, mid, post, res):
    top, done = newlabel("RD"), newlabel("RDD")
    loads = half(loads)
    A.label(top)
    set_exec(mask)
    A(small)
    set_exec(-1)
    for l in loads:
        A(l)
    A("s_waitcnt vmcnt(%d)" % len(loads))
    mid()
    A("s_waitcnt vmcnt(0)")
    post()
    A("v_cmp_u_f32 vcc, %s, %s" % (v(res[0]), v(res[-1])))
    A("s_cbranch_vccz %s" % done)
    budget_loop(top)
    A.label(done)


def pipe_poll(issue, n_small, n_bulk, mid, post, res, sets, gap):
    n = n_small + n_bulk
    k = len(sets)
    top, done = newlabel("PP"), newlabel("PPD")
    for i in range(k - 1):
        issue(sets[i])
        sleep(gap)
    A.label(top)
    for i in range(k):
        issue(sets[(i + k - 1) % k])
        if n_small:
            A("s_waitcnt vmcnt(%d)" % ((k - 1) * n + n_bulk))
            mid(sets[i])
        A("s_waitcnt vmcnt(%d)" % ((k - 1) * n))
        post(sets[i])
        A("v_cmp_u_f32 vcc, %s, %s" % (v(res[0]), v(res[-1])))
        A("s_cbranch_vccz %s" % done)
    budget_loop(top)
    A.label(done)


OOL = []


def interleave(c1, c2):
    out, i2 = [], 0
    for k, x in enumerate(c1):
        out.append(x)
        want = (k + 1) * len(c2) // max(1, len(c1) - 4)
        while i2 < min(want, len(c2)):
            out.append(c2[i2]); i2 += 1
    return out + c2[i2:]


class Cap:
    def __enter__(self):
        self.n = len(A.ins); return self

    def __exit__(self, *a):
        self.lines = [x.text for x in A.ins[self.n:]]
        del A.ins[self.n:]


def fast_poll_full(issue, mid, post, fin, res, a):
    top, again, done = newlabel("FP"), newlabel("FPR"), newlabel("FPD")
    A.label(top)
    issue(a)
    A("s_waitcnt vmcnt(0)")
    with Cap() as c2:
        post(a)
    if mid:
        with Cap() as c1:
            mid(a)
        for l in interleave(c1.lines, c2.lines):
            A(l)
    else:
        for l in c2.lines:
            A(l)
    if fin:
        fin(a)
    A("v_cmp_u_f32 vcc, %s, %s" % (v(res[0]), v(res[-1])))
    A("s_cbranch_vccnz %s" % again)
    A.label(done)
    OOL.append([again + ":", "s_sub_u32 %s, %s, 1" % (sBud, sBud), "s_cbranch_scc0 %s" % top,
                "s_mov_b32 %s, 0" % sBud, "s_branch %s" % done])


def fast_poll(issue, mid, post, fin, res, a):
    if not P.get("MPOLL", 1):
        return fast_poll_full(issue, mid, post, fin, res, a)
    with Cap() as ci:
        issue(a)
    loads = [l for l in ci.lines if l.startswith("global_load")]
    small = len(loads) == 3
    chk, again, done = newlabel("MPC"), newlabel("MPR"), newlabel("MPD")
    if small:
        n = 4 if "dwordx4" in loads[0] else 2
        for e in range(n):
            A("v_mov_b32 %s, 0" % v(a + 8 + e))
    for l in ci.lines:
        A(l)
    A.label(chk)
    A("s_waitcnt vmcnt(0)")
    t = a + 20
    A("v_add_f32 %s, %s, %s" % (v(t), v(a), v(a + 1)))
    A("v_add_f32 %s, %s, %s" % (v(t + 1), v(a + 2), v(a + 3)))
    A("v_add_f32 %s, %s, %s" % (v(t + 2), v(a + 4), v(a + 5)))
    A("v_add_f32 %s, %s, %s" % (v(t + 3), v(a + 6), v(a + 7)))
    if small:
        A("v_add_f32 %s, %s, %s" % (v(t), v(t), v(a + 8)))
        A("v_add_f32 %s, %s, %s" % (v(t + 1), v(t + 1), v(a + 9)))
        if n == 4:
            A("v_add_f32 %s, %s, %s" % (v(t + 2), v(t + 2), v(a + 10)))
            A("v_add_f32 %s, %s, %s" % (v(t + 3), v(t + 3), v(a + 11)))
    A("v_add_f32 %s, %s, %s" % (v(t), v(t), v(t + 1)))
    A("v_add_f32 %s, %s, %s" % (v(t + 2), v(t + 2), v(t + 3)))
    A("v_cmp_u_f32 vcc, %s, %s" % (v(t), v(t + 2)))
    A("s_cbranch_vccnz %s" % again)
    A.label(done)
    with Cap() as c2:
        post(a)
    if mid:
        with Cap() as c1:
            mid(a)
        for l in interleave(c1.lines, c2.lines):
            A(l)
    else:
        for l in c2.lines:
            A(l)
    if fin:
        fin(a)
    blk = [again + ":"]
    if small:
        em = [l for l in ci.lines if l.startswith("s_mov") and "-1" not in l]
        blk += em + ["s_and_b64 exec, exec, vcc", loads[0]]
    blk += ["s_mov_b64 exec, vcc"] + loads[-2:] + ["s_mov_b64 exec, -1",
            "s_sub_u32 %s, %s, 1" % (sBud, sBud), "s_cbranch_scc0 %s" % chk,
            "s_mov_b32 %s, 0" % sBud, "s_waitcnt vmcnt(0)", "s_branch %s" % done]
    OOL.append(blk)


def opt_poll(small, smask, sregs, loads, lregs, post, res, ck=None):
    top, done = newlabel("OP"), newlabel("OPD")
    cand, sm = "s[70:71]", "s[64:65]"
    regs = list(lregs) + (list(sregs) if small else [])
    if len(regs) % 2:
        regs.append(regs[-1])
    if small:
        smov64(sm, smask)
    A("s_mov_b64 %s, -1" % cand)
    if ck is not None:
        cycg(ck)
        if STAMP == 6:
            A("s_mov_b32 s77, %s" % sBud)
    A.label(top)
    if small:
        A("s_and_b64 exec, %s, %s" % (cand, sm))
        A(small)
        A("s_mov_b64 exec, %s" % cand)
    for l in loads:
        A(l)
    A("s_sub_u32 %s, %s, 1" % (sBud, sBud))
    A("s_cbranch_scc1 %s_X" % top)
    A("s_waitcnt vmcnt(0)")
    for i in range(0, len(regs), 2):
        A("v_cmpx_o_f32 vcc, %s, %s" % (v(regs[i]), v(regs[i + 1])))
    A("s_andn2_b64 %s, %s, exec" % (cand, cand))
    A("s_mov_b64 exec, %s" % cand)
    A("s_cbranch_scc1 %s" % top)
    A.label(done)
    A("s_mov_b64 exec, -1")
    if ck is not None:
        cycg(ck + 1)
        if STAMP == 6:
            A("s_sub_u32 s77, s77, %s" % sBud)
            A("v_writelane_b32 v15, s77, %d" % (48 + ck))
    post()
    if ck is not None:
        cycg(ck + 2)
    OOL.append([top + "_X:", "s_mov_b32 %s, 0" % sBud, "s_waitcnt vmcnt(0)", "s_branch %s" % done])


def split_poll(small, smask, sregs, loads, lregs, pre, post, ck=None):
    top, fm, slow, done = newlabel("SP"), newlabel("SPF"), newlabel("SPS"), newlabel("SPD")
    cand, sm = "s[70:71]", "s[64:65]"
    sr = list(sregs) + ([sregs[-1]] if len(sregs) % 2 else [])
    lr = list(lregs)
    smov64(sm, smask)
    A("s_mov_b64 %s, -1" % cand)
    if ck is not None:
        cycg(ck)
    A("s_mov_b64 exec, %s" % sm)
    A(small)
    A("s_mov_b64 exec, -1")
    for l in loads:
        A(l)
    A("s_waitcnt vmcnt(%d)" % len(loads))
    for i in range(0, len(sr), 2):
        A("v_cmpx_o_f32 vcc, %s, %s" % (v(sr[i]), v(sr[i + 1])))
    A("s_andn2_b64 vcc, %s, exec" % cand)
    A("s_mov_b64 exec, -1")
    A("s_cbranch_scc1 %s" % slow)
    A.label(fm)
    pre()
    A("s_branch %s_C" % top)
    A.label(top)
    for l in loads:
        A(l)
    A("s_sub_u32 %s, %s, 1" % (sBud, sBud))
    A("s_cbranch_scc1 %s_X" % top)
    A.label(top + "_C")
    A("s_waitcnt vmcnt(0)")
    for i in range(0, len(lr), 2):
        A("v_cmpx_o_f32 vcc, %s, %s" % (v(lr[i]), v(lr[i + 1])))
    A("s_andn2_b64 %s, %s, exec" % (cand, cand))
    A("s_mov_b64 exec, %s" % cand)
    A("s_cbranch_scc1 %s" % top)
    A.label(done)
    A("s_mov_b64 exec, -1")
    if ck is not None:
        cycg(ck + 1)
    post()
    if ck is not None:
        cycg(ck + 2)
    OOL.append([top + "_X:", "s_mov_b32 %s, 0" % sBud, "s_waitcnt vmcnt(0)", "s_branch %s" % done])
    allr = lr + sr
    blk = [slow + ":", "s_waitcnt vmcnt(0)"]
    blk += ["v_cmpx_o_f32 vcc, %s, %s" % (v(allr[i]), v(allr[i + 1])) for i in range(0, len(allr), 2)]
    blk += ["s_andn2_b64 %s, %s, exec" % (cand, cand), "s_cbranch_scc0 %s_E" % slow,
            "s_and_b64 exec, %s, %s" % (cand, sm), small, "s_mov_b64 exec, %s" % cand] + loads
    blk += ["s_sub_u32 %s, %s, 1" % (sBud, sBud), "s_cbranch_scc0 %s" % slow, "s_mov_b32 %s, 0" % sBud, "s_waitcnt vmcnt(0)",
            slow + "_E:", "s_mov_b64 exec, -1", "s_mov_b64 %s, -1" % cand, "s_branch %s" % fm]
    OOL.append(blk)


def stats_math(c, t, eps_mul, eps_add):
    A("v_add_f32_dpp %s, %s, %s %s" % (v(t), v(c), v(c), X1))
    for m in (X2, HM, RM):
        A("v_add_f32_dpp %s, %s, %s %s" % (v(t), v(t), v(t), m))
    A("v_readlane_b32 %s, %s, 0" % (sT0, v(t)))
    A("v_readlane_b32 %s, %s, 16" % (sT1, v(t)))
    A("v_mov_b32 %s, %s" % (v(t + 2), f32(1 / 512)))
    A("v_mov_b32 %s, %s" % (v(t + 3), f32(eps_add)))
    A("v_mul_f32 %s, %s, %s" % (v(t + 1), sT0, v(t + 2)))
    A("v_mul_f32 %s, %s, %s" % (v(t), sT1, v(t + 2)))
    A("v_fma_f32 %s, -%s, %s, %s" % (v(t), v(t + 1), v(t + 1), v(t)))
    if eps_mul == 1.0:
        A("v_add_f32 %s, abs(%s), %s" % (v(t), v(t), v(t + 3)))
    else:
        A("v_mov_b32 %s, %s" % (v(t + 2), f32(eps_mul)))
        A("v_fma_f32 %s, abs(%s), %s, %s" % (v(t), v(t), v(t + 2), v(t + 3)))
    A("v_rsq_f32 %s, %s" % (v(t), v(t)))
    A("v_mul_f32 %s, %s, %s" % (v(t + 1), v(t + 1), v(t)))


def store_intra(insn):
    ls, le = newlabel("SAFE"), newlabel("SEND")
    A("s_cmp_eq_u32 %s, 0" % sFast)
    A("s_cbranch_scc1 %s" % ls)
    for i in insn:
        A(i)
    A.label(le)
    OOL.append([ls + ":"] + [i + (" sc1" if i.startswith("global_store") else "") for i in insn] + ["s_branch %s" % le])


_st = {"G": 0, "S": 0}


def stamp(kind, idx=None):
    if idx is None:
        n = _st[kind]; _st[kind] += 1
    else:
        n = idx
    if "ECHO" in P and kind == "G" and P["ECHO"] % 100 == n:
        lab = newlabel("ECHO")
        A("s_cmp_lg_u32 %s, %d" % (sL, P["ECHO"] // 100))
        A("s_cbranch_scc1 %s" % lab)
        A("s_waitcnt lgkmcnt(0)")
        A("s_memrealtime s[80:81]")
        A("s_waitcnt lgkmcnt(0)")
        A.label(lab)
    if not STAMP:
        return
    if STAMP == 2 and not (kind == "G" and n in (2, 6)):
        return
    if STAMP in (4, 5, 6):
        return
    if STAMP == 3:
        A("s_lshl_b32 s76, %s, 4" % sL)
        A("s_add_u32 m0, s76, %d" % n)
        A("s_nop 0")
        A("v_writelane_b32 v15, %s, m0" % sBud)
        return
    A("s_waitcnt lgkmcnt(0)")
    A("s_memrealtime s[74:75]")
    A("s_lshl_b32 s76, %s, 4" % sL)
    A("s_add_u32 m0, s76, %d" % n)
    A("s_waitcnt lgkmcnt(0)")
    A("v_writelane_b32 v15, s74, m0")


def cyc(k):
    if STAMP == 4:
        A("s_memtime s[%d:%d]" % (80 + 2 * k, 81 + 2 * k))


def cycs(k):
    if STAMP == 5:
        A("s_memtime s[%d:%d]" % (80 + 2 * k, 81 + 2 * k))


def cycg(k):
    if STAMP == 6:
        A("s_memtime s[%d:%d]" % (80 + 2 * k, 81 + 2 * k))


def cycs_dump(n):
    if STAMP == 5:
        A("s_waitcnt lgkmcnt(0)")
        for k in range(n):
            A("v_writelane_b32 v15, s%d, %d" % (80 + 2 * k, 32 + k))


def cyc_dump(n):
    if STAMP == 4:
        A("s_waitcnt lgkmcnt(0)")
        for k in range(n):
            A("v_writelane_b32 v15, s%d, %d" % (80 + 2 * k, 32 + k))


def stamp_init():
    if STAMP:
        A("v_mov_b32 v15, 0")
        A("v_writelane_b32 v15, s78, 15")


def stamp_dump():
    if not STAMP:
        return
    A("s_mul_i32 s76, s2, 12")
    A("s_add_u32 s76, s76, %s" % sWave)
    A("s_lshl_b32 s76, s76, 8")
    A("s_add_u32 s76, s76, 0x800000")
    A("v_lshlrev_b32 v13, 2, v0")
    A("v_add_u32 v13, s76, v13")
    A("global_store_dword v13, v15, %s" % pWS)


def if_layer0():
    lab = newlabel("NOTL0")
    A("s_cmp_lg_u32 %s, 0" % sL)
    A("s_cbranch_scc1 %s" % lab)
    return lab


def ssync(k):
    top = newlabel("SSY")
    A("v_mov_b32 v5, %d" % (FLG + 4 + 4 * k))
    A("v_mov_b32 v6, 1")
    set_exec(1)
    A("ds_add_u32 v5, v6")
    set_exec(-1)
    A.label(top)
    A("ds_read_b32 v6, v5")
    A("s_waitcnt lgkmcnt(0)")
    A("v_readfirstlane_b32 %s, v6" % sT0)
    A("s_cmp_eq_u32 %s, 4" % sT0)
    done = newlabel("SSD")
    A("s_cbranch_scc1 %s" % done)
    budget_loop(top)
    A.label(done)


MFMA = "v_mfma_f32_16x16x32_bf16"
A("s_getpc_b64 %s" % pPC)
A("s_cmp_ge_u32 s2, 256")
A("s_cbranch_scc1 L_END")
if STAMP or "ECHO" in P:
    A("s_memrealtime s[78:79]")
A("s_load_dwordx16 s[16:31], s[0:1], 0")
A("s_load_dwordx8 s[32:39], s[0:1], 64")
A("s_load_dwordx2 s[40:41], s[0:1], 96")
if P["PREF"]:
    A("v_lshlrev_b32 v3, 4, v0")
    if P["PREF"] == 2:
        A("s_bfe_u32 %s, s2, 0x40003" % sT0)
        A("v_lshrrev_b32 v1, 6, v0")
        A("v_cmp_eq_u32 vcc, %s, v1" % sT0)
        A("s_and_b64 exec, exec, vcc")
    A("global_load_dwordx4 v[140:143], v3, %s offset:-4" % pPC)
    if P["PREF"] == 2:
        A("s_mov_b64 exec, -1")
A("v_lshrrev_b32 v1, 6, v0")
A("v_and_b32 v0, 63, v0")
A("v_readfirstlane_b32 %s, v1" % sWave)
A("s_and_b32 %s, s2, 7" % sJ)
A("s_lshr_b32 %s, s2, 3" % sS)
A("s_lshr_b32 %s, s2, 6" % sHi)
A("s_and_b32 %s, %s, 7" % (sLo, sS))
A("s_lshr_b32 %s, s2, 4" % sR1)
A("s_and_b32 %s, %s, 1" % (sC1, sS))
A("s_mov_b32 %s, 0" % sL)
A("s_mov_b32 %s, 100000" % sBud)
A("v_and_b32 v1, 15, v0")
A("v_lshrrev_b32 v2, 4, v0")
A("v_lshlrev_b32 v3, 4, v0")
A("s_mov_b32 %s, %s" % (sU, sWave))
A("s_sub_u32 %s, %s, 4" % (sWave, sWave))
A("s_cbranch_scc0 L_G")

WQ, WO, W1R, W2R, XR, DR, SS = 16, 32, 48, 56, 84, 112, 120
(sXa, sXb, sOrd, sX1a, sX1b, sHrd, sE1w, sE1sw, sAg, sAst, sQw, sCq0, sCq1, sCrd, sMlrd, sE2w, sE3w, sE4w, sE4sw, sE4rw, sE5w,
 sTr, sClr, sTr1) = range(144, 168)
SN = 8
sCsP = 139
sDma = 138
X0 = 132
ga, gb, gc = SS, SS + 4, SS + 8
STM = 0x0018001400120011
W2S = [int(c) for c in str(P.get("W2S", "x304"))[1:]]
assert sum(W2S) == 7


def w2_dma(part):
    k0_ = sum(W2S[:part])
    n = W2S[part]
    if not n:
        return
    sexpr(sT0, [(sJ, 224 * 1024), (sLo, 128), (sU, 7 * 8192)], k0_ * 8192)
    padd(pT, pW2, sT0)
    sexpr(sT1, [(sU, 7 * 1024)], LW_2)
    for k in range(k0_, k0_ + n):
        A("s_add_u32 m0, %s, %d" % (sT1, 1024 * k))
        A("global_load_lds_dwordx4 %s, %s%s" % (v(sDma), pT, NT))
        if k < k0_ + n - 1:
            padd(pT, pT, 8192)


W2BLK = "pass"
WOBLK = r'''# wo tile: 16 x 1 KB, 4 per wave
A("v_lshrrev_b32 v4, 3, v0")
A("v_and_b32 v5, 7, v0")
vexpr(sDma, [(4, 1024), (5, 16)])
sexpr(sT0, [(sJ, 512 * 1024), (sHi, 128 * 1024), (sU, 32 * 1024), (sLo, 128)])
padd(pT, pWO, sT0)
sexpr(sT1, [(sU, 4096)], LW_O)
for k in range(4):
    A("s_add_u32 m0, %s, %d" % (sT1, 1024 * k))
    A("global_load_lds_dwordx4 %s, %s%s" % (v(sDma), pT, NT))
    if k < 3:
        padd(pT, pT, 8192)
# w1 DMA: unit n = 64 i + l (i = 2u, 2u+1 clamped to 6): row = n/14, piece = n%14
sexpr(sT0, [(sR1, 32 * 3584), (sJ, 448), (sC1, 224)])
padd(pT, pW1, sT0)
for k in range(2):
    A("s_lshl_b32 %s, %s, 1" % (sT1, sU))
    if k:
        A("s_add_u32 %s, %s, 1" % (sT1, sT1))
        A("s_min_u32 %s, %s, 6" % (sT1, sT1))
    A("s_lshl_b32 %s, %s, 6" % (sT0, sT1))
    A("v_add_u32 v4, %s, v0" % sT0)
    A("v_mul_u32_u24 v5, 4682, v4")
    A("v_lshrrev_b32 v5, 16, v5")
    A("v_mul_u32_u24 v7, 14, v5")
    A("v_sub_u32 v4, v4, v7")
    A("v_mul_u32_u24 v5, 3584, v5")
    A("v_lshl_add_u32 v4, v4, 4, v5")
    A("s_lshl_b32 %s, %s, 10" % (sT0, sT1))
    A("s_add_u32 m0, %s, %d" % (sT0, LW_1))
    A("global_load_lds_dwordx4 v4, %s%s" % (pT, NT))
for n in range(448):
    assert (n * 4682) >> 16 == n // 14
'''
A("s_add_u32 %s, %s, 8" % (sWave, sU))
A("v_mov_b32 v4, %d" % FLG)
A("v_mov_b32 v6, 0")
A("v_mov_b32 v7, 0")
A("ds_write_b64 v4, v[6:7]")
A("ds_write_b64 v4, v[6:7] offset:8")
for i in range(4):
    A("v_mov_b32 %s, 0x%08x" % (v(SN + i), SENT))
A("s_and_b32 %s, %s, 1" % (sK0, sU))
A("s_lshr_b32 %s, %s, 1" % (sK1, sU))
sexpr(sT0, [(sS, 6144), (sU, 1536)])
A("v_add_u32 v7, %s, v3" % sT0)
sexpr(sT0, [("s2", 1280), (sK0, LSTR), (sK1, 640)], E3)
A("v_add_u32 v12, %s, v3" % sT0)
A("s_mul_i32 %s, %s, %d" % (sT0, sJ, JSTR))
A("v_lshrrev_b32 v13, 3, v0")
A("v_and_b32 v14, 7, v0")
vexpr(SS, [(13, 8192), (14, 16)])
sexpr(sT1, [(sHi, 128 * 8192), (sU, 32 * 8192), (sJ, 1024), (sLo, 128)])
sexpr(sT2, [(sU, 1024)])
A("v_add_u32 %s, %s, v3" % (v(SS + 1), sT2))
A("s_waitcnt lgkmcnt(0)")
padd(pWJ, pWS, sT0)
padd(pT, pWQ, sT1)
A("v_mov_b32 v4, 0")
A("s_or_b32 %s, s2, %s" % (sT0, sU))
A("s_cbranch_scc1 S_NONONCE")
A("s_memrealtime %s" % pN)
A("s_waitcnt lgkmcnt(0)")
A("s_or_b32 s48, s48, 1")
A("v_mov_b32 %s, s49" % v(SS + 3))
A("v_mov_b32 %s, s48" % v(SS + 2))
set_exec(1)
A("global_store_dwordx2 v4, %s, %s sc1" % (v(SS + 2, 2), pDBG))
set_exec(-1)
A.label("S_NONONCE")
def nonce_fetch():
    A("s_cmp_lg_u32 %s, 3" % sU)
    A("s_cbranch_scc1 S_NP_SKIP")
    A("v_mov_b32 v4, 0")
    sleep(P.get("D_N", 0))
    if P.get("NE", 1):
        A("s_waitcnt vmcnt(8)")
        A("v_mov_b32 v6, v136")
        A("v_mov_b32 v7, v137")
        A("s_branch S_NP_C")
    A.label("S_NP")
    A("global_load_dwordx2 v[6:7], v4, %s sc1" % pDBG)
    A("s_waitcnt vmcnt(0)")
    A.label("S_NP_C")
    A("v_cmp_eq_u32 vcc, 0, v6")
    A("s_cbranch_vccz S_NP_DONE")
    A("s_sleep %d" % P.get("NSL", 2))
    budget_loop("S_NP")
    A.label("S_NP_DONE")
    A("v_mov_b32 v5, %d" % NONCE)
    A("ds_write_b64 v5, v[6:7]")
    A("s_waitcnt lgkmcnt(0)")
    if P.get("NLATE"):
        stamp("S", 10)
    A.label("S_NP_SKIP")


if not P.get("NLATE"):
    A("v_mov_b32 %s, v7" % v(SS + 4))
    nonce_fetch()
    A("v_mov_b32 v7, %s" % v(SS + 4))
if P.get("NE", 1) and P.get("NLATE"):
    A("s_cmp_lg_u32 %s, 3" % sU)
    A("s_cbranch_scc1 S_NE_SKIP")
    A("global_load_dwordx2 v[136:137], v4, %s sc1" % pDBG)
    A.label("S_NE_SKIP")
A("global_load_dwordx4 %s, %s, %s%s" % (v(X0, 4), v(SS + 1), pX, NT))
A("s_lshl_b32 %s, %s, 12" % (sT1, sU))
for i in range(4):
    A("s_add_u32 m0, %s, %d" % (sT1, LW_Q + 1024 * i))
    A("global_load_lds_dwordx4 %s, %s%s" % (v(SS), pT, NT))
    if i < 3:
        padd(pT, pT, 8 * 8192)
if P.get("NOCLR"):
    set_exec(1)
A("global_store_dwordx4 v7, %s, %s sc1" % (v(SN, 4), pWJ))
set_exec(1 if P.get("NOCLR") else 0xFFFFFFFF)
A("global_store_dwordx4 v7, %s, %s offset:1024 sc1" % (v(SN, 4), pWJ))
set_exec(1 if P.get("NOCLR") else 0xFFFFFFFFFF)
A("global_store_dwordx4 v12, %s, %s sc1" % (v(SN, 4), pWS))
set_exec(-1)
if P.get("WF", 0) == 1:
    exec(WOBLK)
    exec(W2BLK)
A("s_barrier")
if P.get("WF", 0) == 2:
    exec(WOBLK)
    exec(W2BLK)
if P.get("WF", 0) == 3:
    exec(WOBLK)
stamp_init()
stamp("S", 9)
if P.get("NLATE"):
    nonce_fetch()
A("s_getreg_b32 %s, hwreg(HW_REG_XCC_ID)" % sXcc)
A("s_and_b32 %s, %s, 7" % (sXcc, sXcc))
A("s_mov_b32 s42, s40")
A("s_mov_b32 s43, s41")
A("s_mov_b32 %s, 0" % sFast)
sexpr(sT0, [(sS, 6144), (sU, 1536)])
A("v_add_u32 %s, %s, v3" % (v(sClr), sT0))
A("v_mov_b32 v12, 0x3f803f80")
vexpr(13, [(0, 4)], None, XOP + 4 * RS_)
A("ds_write_b32 v13, v12")
vexpr(13, [(1, 4)], None, X1OP + 4 * RS1)
A("ds_write_b32 v13, v12")
A("v_lshrrev_b32 v12, 2, v1")
A("v_min_u32 v13, 4, v1")
A("v_and_b32 v14, 3, v1")
vexpr(sXa, [(12, RS_), (2, 16)], None, XOP)
sexpr(sT0, [(sU, 64)], XOP)
vexpr(sXb, [(13, RS_), (2, 16)], sT0)
vexpr(sOrd, [(14 if P.get("WIDE", 0) else 12, RS_), (2, 16)], None, OOP)
vexpr(sX1a, [(12, RS1), (2, 16)], None, X1OP)
vexpr(sX1b, [(13, RS1), (2, 16)], None, X1OP)
vexpr(sHrd, [(2, 16)], None, HOP)
sexpr(sT0, [(sHi, 2048), (sLo, 256), (sU, 64)], E1)
vexpr(sE1w, [(2, 8192), (1, 4)], sT0)
vexpr(SS + 3, [(2, 128)])
A("v_lshlrev_b32 %s, 2, v12" % v(SS + 4))
A("v_sub_u32 %s, %s, %s" % (v(SS + 3), v(SS + 3), v(SS + 4)))
sexpr(sT0, [(sLo, 512), (sHi, 32), (sU, 8)], E1S + 4)
A("v_add_u32 %s, %s, %s" % (v(sE1sw), sT0, v(SS + 3)))
sexpr(sT0, [(sR1, 8)], E4S + 4)
A("v_add_u32 %s, %s, %s" % (v(sE4sw), sT0, v(SS + 3)))
sexpr(sT0, [(sR1, 64)], E4R)
vexpr(sE4rw, [(14, 1024), (2, 16)], sT0)
A("v_and_b32 %s, 31, v0" % v(SS + 3))
A("v_lshrrev_b32 %s, 5, v0" % v(SS + 4))
sexpr(sT0, [(sHi, 8192), (sU, 512)], E1)
vexpr(sAg, [(SS + 4, 4096), (SS + 3, 16)], sT0)
sexpr(sT0, [(sLo, 512), (sHi, 128)], E1S)
vexpr(sAst, [(1, 8), (2, 4)], sT0)
sexpr(sT0, [(sU, RS_)], QOP)
vexpr(sQw, [(SS + 3, 8), (SS + 4, 4)], sT0)
A("v_bfe_u32 %s, v0, 4, 1" % v(SS + 5))
A("v_bfe_u32 %s, v0, 2, 2" % v(SS + 6))
A("v_and_b32 %s, 3, v0" % v(SS + 7))
sexpr(sT0, [(sU, 288)], AP)
vexpr(sCrd, [(SS + 4, 8 * APB), (1, 16)], sT0)
A("v_mul_u32_u24 %s, %d, %s" % (v(SS + 5), APB, v(SS + 5)))
A("v_add_u32 %s, %s, %s" % (v(sCrd), v(sCrd), v(SS + 5)))
sexpr(sT0, [(sU, 64)], ML)
vexpr(sMlrd, [(SS + 4, 32)], sT0)
sexpr(sT0, [(sU, 32 * 512), (sS, 512)], E2)
vexpr(sE2w, [(0, 8)], sT0)
sexpr(sC, [(sU, 256), (sS, 8)], E2S)
if P.get("E3B", 1):
    sexpr(sT0, [(sLo, 16384), (sK1, 8192), (sJ, 128), (sHi, 32), (sK0, 4096)], E3)
    vexpr(sE3w, [(2, 1024), (1, 2)], sT0)
elif P.get("E3L", 1):
    sexpr(sT0, [(sLo, 32768), (sK1, 16384), (sJ, 256), (sHi, 64), (sK0, 8192)], E3)
    vexpr(sE3w, [(2, 2048), (1, 4)], sT0)
else:
    sexpr(sT0, [(sLo, 32768), (sK1, 16384), (sJ, 2048), (sHi, 512), (sK0, 256)], E3)
    vexpr(sE3w, [(0, 4)], sT0)
sexpr(sT0, [(sR1, 896), (sC1, 448), (sU, 128)], E4)
vexpr(sE4w, [(2, 16 * 896), (1, 4)], sT0)
sexpr(sT0, [("s2", 256), (sU, 64)], E5)
if P.get("WIDE", 0):
    vexpr(sE5w, [(2, 16)], sT0)
else:
    vexpr(sE5w, [(1, 4)], sT0)
A("v_lshl_add_u32 %s, v2, 3, v12" % v(SS + 3))
sexpr(sT0, [(sU, 32)])
vexpr(sTr, [(SS + 3, 128), (14, 8)], sT0)
sexpr(sT0, [(sU, 64)])
vexpr(sTr1, [(SS + 3, 224), (14, 8)], sT0)
stamp("S", 11)
A("s_waitcnt vmcnt(%d)" % {0: 0, 1: 13, 2: 13, 3: 6}[P.get("WF", 0)])
stamp("S", 12)
sexpr(sT0, [(sU, RS_)], XOP)
vexpr(4, [(1, 16)], sT0)
A("s_lshl_b32 %s, %s, 4" % (sT0, sHi))
A("s_mov_b32 %s, 0xffff" % sT2)
A("s_mov_b32 %s, 0" % sT3)
A("s_lshl_b64 exec, s[14:15], %s" % sT0)
A("ds_write_b128 v4, %s" % v(X0, 4))
set_exec(-1)
for i in range(4):
    A("v_lshlrev_b32 %s, 16, %s" % (v(SS + 2 * i), v(X0 + i)))
    A("v_and_b32 %s, 0xffff0000, %s" % (v(SS + 2 * i + 1), v(X0 + i)))
A("v_add_f32 v4, %s, %s" % (v(SS), v(SS + 1)))
A("v_mul_f32 v5, %s, %s" % (v(SS), v(SS)))
A("v_fmac_f32 v5, %s, %s" % (v(SS + 1), v(SS + 1)))
for i in range(2, 8):
    A("v_add_f32 v4, v4, %s" % v(SS + i))
    A("v_fmac_f32 v5, %s, %s" % (v(SS + i), v(SS + i)))
for m in (X1, X2, HM, RM):
    A("v_add_f32_dpp v4, v4, v4 %s" % m)
    A("v_add_f32_dpp v5, v5, v5 %s" % m)
g_allreduce("v_add_f32", 4, 6)
g_allreduce("v_add_f32", 5, 6)
A("v_mul_f32 v4, %s, v4" % f32(1 / 512))
A("v_mul_f32 v5, %s, v5" % f32(1 / 512))
A("v_fma_f32 v5, -v4, v4, v5")
A("v_max_f32 v5, 0, v5")
A("v_add_f32 v5, %s, v5" % f32(1e-5))
A("v_rsq_f32 v5, v5")
sexpr(sT0, [(sU, 8)], ST0)
A("v_mov_b32 v6, %s" % sT0)
A("ds_write_b64 v6, v[4:5]")
A("s_waitcnt lgkmcnt(0)")
ssync(0)
stamp("S", 0)
for t in range(4):
    A("ds_read_b128 %s, %s offset:%d" % (v(XR + 4 * t, 4), v(sXa), 64 * t))
for t in range(4):
    for hh in range(2):
        A("ds_read_b64_tr_b16 %s, %s offset:%d" % (v(WQ + 4 * t + 2 * hh, 2), v(sTr), LW_Q + (32 * t + 4 * hh) * 128))
vexpr(4, [(2, 8)], None, ST0)
A("ds_read_b64 v[6:7], v4")
A("v_mov_b32 v4, %d" % NONCE)
A("ds_read_b64 v[12:13], v4")
for i in range(4):
    A("v_mov_b32 %s, 0x3f803f80" % v(XR + 16 + i))
A("s_waitcnt lgkmcnt(0)")
for t in range(4):
    A("%s %s, %s, %s, %s" % (MFMA, v(DR, 4), v(XR + 4 * t, 4), v(WQ + 4 * t, 4), "0" if t == 0 else v(DR, 4)))
    A("%s %s, %s, %s, %s" % (MFMA, v(DR + 4, 4), v(XR + 16, 4), v(WQ + 4 * t, 4), "0" if t == 0 else v(DR + 4, 4)))
A("v_fma_f32 %s, -v6, %s, %s" % (v(DR), v(DR + 4), v(DR)))
A("v_mul_f32 %s, %s, v7" % (v(DR), v(DR)))
A("v_mov_b32 %s, %s" % (v(sCsP), v(DR + 4)))
if P.get("QB", 0):
    A("v_mov_b32_dpp %s, %s %s" % (v(DR + 2), v(DR), X1))
    A("v_mov_b32 %s, v12" % v(DR + 1))
    sexpr(sT0, [(sJ, 32768), (sHi, 2048), (sLo, 256), (sU, 64)], E1T)
    vexpr(4, [(2, 8192), (1, 4)], sT0)
    A("v_cvt_pk_bf16_f32 %s, %s, %s" % (v(DR), v(DR), v(DR + 2)))
    stamp("S", 1)
    set_exec(0x5555555555555555)
    A("global_store_dwordx2 v4, %s, %s sc1" % (v(DR, 2), pWS))
    set_exec(-1)
else:
    A("v_mov_b32 %s, v12" % v(DR + 1))
    sexpr(sT0, [(sJ, 65536), (sHi, 4096), (sLo, 512), (sU, 128)], E1T)
    vexpr(4, [(2, 16384), (1, 8)], sT0)
    stamp("S", 1)
    A("global_store_dwordx2 v4, %s, %s sc1" % (v(DR, 2), pWS))
A("v_readfirstlane_b32 s48, v12")
A("v_readfirstlane_b32 s49, v13")
A("s_cmp_lg_u32 %s, 1" % sU)
A("s_cbranch_scc1 S_NOREC")
RS = P.get("RS", 16)
sexpr(sT0, [(sJ, 32 * RS), (sS, RS)], REC)
A("v_mov_b32 v4, %s" % sT0)
A("v_mov_b32 v14, %s" % sXcc)
set_exec(1)
A("global_store_dwordx3 v4, v[12:14], %s sc1" % pWS)
set_exec(-1)
A.label("S_NOREC")


def PT1():
    padd(pT, pWJ, LSTR)
    A("global_load_dwordx4 v[140:143], %s, %s sc1" % (v(sClr), pT))
    A("s_mov_b32 exec_hi, 0")
    A("global_load_dwordx4 v[140:143], %s, %s offset:1024 sc1" % (v(sClr), pT))
    A("s_mov_b64 exec, -1")


def ptouch():
    A("global_load_dwordx4 v[140:143], %s, %s sc1" % (v(sClr), pWJ))
    set_exec(0xFFFFFFFF)
    A("global_load_dwordx4 v[140:143], %s, %s offset:1024 sc1" % (v(sClr), pWJ))
    set_exec(-1)
    if P.get("PTX", 0):
        sexpr(sT0, [("s2", 1280), (sK0, LSTR), (sK1, 640)], E3)
        A("v_add_u32 v7, %s, v3" % sT0)
        set_exec(0xFFFFFFFFFF)
        A("global_load_dwordx4 v[140:143], v7, %s sc1" % pWS)
        set_exec(-1)


def wt_slice(base):
    A("global_store_dwordx4 %s, %s, %s sc1" % (v(sClr), v(SN, 4), base))
    A("s_mov_b32 exec_hi, 0")
    A("global_store_dwordx4 %s, %s, %s offset:1024 sc1" % (v(sClr), v(SN, 4), base))
    A("s_mov_b64 exec, -1")


def half_treduce(r):
    A("v_permlane32_swap_b32 %s, %s" % (v(r), v(r + 2)))
    A("v_permlane32_swap_b32 %s, %s" % (v(r + 1), v(r + 3)))
    A("v_add_f32 %s, %s, %s" % (v(r), v(r), v(r + 2)))
    A("v_add_f32 %s, %s, %s" % (v(r + 1), v(r + 1), v(r + 3)))


AG = ["global_load_dwordx4 %s, %s, %s sc1" % (v(ga, 4), v(sAg), pWJ),
      "global_load_dwordx4 %s, %s, %s offset:2048 sc1" % (v(gb, 4), v(sAg), pWJ)]
AGC = [(ga + e, gb + e) for e in range(4)]
if P.get("QB", 0):
    sexpr(sT0, [(sJ, 32768)], E1T - E1)
    A("v_add_u32 v4, %s, %s" % (sT0, v(sAg)))
    sexpr(sT0, [(sU, 64 * RS)], REC)
    vexpr(6, [(0, RS)], sT0)
    A("s_mov_b32 s61, 0x00003f80")
    A("s_mov_b32 s58, 0x3f800000")
    A("s_mov_b64 s[70:71], -1")
    sleep(P.get("D_A0", 20))
    TQ = XR
    A.label("S_AG0")
    A("global_load_dwordx4 %s, v4, %s sc1" % (v(TQ, 4), pWS))
    A("global_load_dwordx4 %s, v4, %s offset:2048 sc1" % (v(TQ + 4, 4), pWS))
    A("s_sub_u32 %s, %s, 1" % (sBud, sBud))
    A("s_cbranch_scc1 S_AG0_X")
    A("s_waitcnt vmcnt(0)")
    for i in range(4):
        A("v_cmpx_eq_u32 vcc, s48, %s" % v(TQ + 2 * i + 1))
    A("s_andn2_b64 s[70:71], s[70:71], exec")
    A("s_mov_b64 exec, s[70:71]")
    A("s_cbranch_scc1 S_AG0")
    A.label("S_AG0_DONE")
    A("s_mov_b64 exec, -1")
    OOL.append(["S_AG0_X:", "s_mov_b32 %s, 0" % sBud, "s_waitcnt vmcnt(0)", "s_branch S_AG0_DONE"])
    A("global_load_dwordx3 v[12:14], v6, %s sc1" % pWS)
    stamp("S", 2)
    for e, (src, sel) in enumerate(((0, "s61"), (0, "s58"), (2, "s61"), (2, "s58"))):
        A("v_dot2_f32_bf16 %s, %s, %s, 0" % (v(ga + e), v(TQ + src), sel))
        A("v_dot2_f32_bf16 %s, %s, %s, %s" % (v(ga + e), v(TQ + 4 + src), sel, v(ga + e)))
    half_treduce(ga)
    A("v_cvt_pk_bf16_f32 %s, %s, %s" % (v(ga), v(ga), v(ga + 1)))
    A("ds_write_b32 %s, %s" % (v(sQw), v(ga)))
else:
    sexpr(sT0, [(sJ, 65536), (sHi, 16384), (sU, 1024)], E1T + 4096)
    A("v_add_u32 v4, %s, v3" % sT0)
    A("v_add_u32 v5, 8192, v4")
    sexpr(sT0, [(sU, 64 * RS)], REC)
    vexpr(6, [(0, RS)], sT0)
    if P.get("PTOUCH", 1) == 2:
        ptouch()
    sleep(P.get("D_A0", 20))
    A("s_mov_b64 s[70:71], -1")
    TQ = XR
    A.label("S_AG0")
    A("global_load_dwordx4 %s, v4, %s offset:-4096 sc1" % (v(TQ, 4), pWS))
    A("global_load_dwordx4 %s, v4, %s sc1" % (v(TQ + 4, 4), pWS))
    A("global_load_dwordx4 %s, v5, %s offset:-4096 sc1" % (v(TQ + 8, 4), pWS))
    A("global_load_dwordx4 %s, v5, %s sc1" % (v(TQ + 12, 4), pWS))
    A("s_sub_u32 %s, %s, 1" % (sBud, sBud))
    A("s_cbranch_scc1 S_AG0_X")
    A("s_waitcnt vmcnt(0)")
    for i in range(8):
        A("v_cmpx_eq_u32 vcc, s48, %s" % v(TQ + 2 * i + 1))
    A("s_andn2_b64 s[70:71], s[70:71], exec")
    A("s_mov_b64 exec, s[70:71]")
    A("s_cbranch_scc1 S_AG0")
    A.label("S_AG0_DONE")
    A("s_mov_b64 exec, -1")
    OOL.append(["S_AG0_X:", "s_mov_b32 %s, 0" % sBud, "s_waitcnt vmcnt(0)", "s_branch S_AG0_DONE"])
    A("global_load_dwordx3 v[12:14], v6, %s sc1" % pWS)
    stamp("S", 2)
    for c in range(2):
        A("v_add_f32 %s, %s, %s" % (v(TQ + 2 * c), v(TQ + 2 * c), v(TQ + 4 + 2 * c)))
        A("v_add_f32 %s, %s, %s" % (v(TQ + 8 + 2 * c), v(TQ + 8 + 2 * c), v(TQ + 12 + 2 * c)))
        A("v_add_f32 %s, %s, %s" % (v(TQ + 2 * c), v(TQ + 2 * c), v(TQ + 8 + 2 * c)))
    A("v_cvt_pk_bf16_f32 %s, %s, %s" % (v(ga), v(TQ), v(TQ + 2)))
    sexpr(sT0, [(sU, RS_)], QOP)
    vexpr(4, [(0, 4)], sT0)
    A("ds_write_b32 v4, %s" % v(ga))
A("s_waitcnt lgkmcnt(0)")
A("s_barrier")
if P.get("VSIG"):
    A("v_mov_b32 v4, %d" % (FLG + 12))
    A("s_mov_b32 %s, %d" % (sT1, P["VSIG"]))
    A.label("S_VW")
    A("ds_read_b32 v5, v4")
    A("s_waitcnt lgkmcnt(0)")
    A("v_readfirstlane_b32 %s, v5" % sT0)
    A("s_cmp_ge_u32 %s, 8" % sT0)
    A("s_cbranch_scc1 S_VW_D")
    A("s_sleep 1")
    A("s_sub_u32 %s, %s, 1" % (sT1, sT1))
    A("s_cbranch_scc0 S_VW")
    A.label("S_VW_D")
if not P.get("WF", 0):
    exec(WOBLK)
A("s_waitcnt vmcnt(6)")
A("s_branch S_RP_CHK")
A.label("S_RP")
A("global_load_dwordx3 v[12:14], v6, %s sc1" % pWS)
A("s_waitcnt vmcnt(0)")
A.label("S_RP_CHK")
A("v_cmp_ne_u64 vcc, %s, v[12:13]" % pN)
A("s_cbranch_vccz S_RP_DONE")
A("s_sleep %d" % P.get("PSL", 8))
budget_loop("S_RP")
A("v_mov_b32 v14, -1")
A.label("S_RP_DONE")
A("s_lshr_b32 %s, %s, 1" % (sT0, sJ))
A("s_cmp_lg_u32 %s, %s" % (sT0, sU))
A("s_cbranch_scc1 S_REC_SKIP")
A("v_cmp_ne_u32 vcc, %s, v14" % sXcc)
A("s_bitcmp1_b32 %s, 0" % sJ)
A("s_cselect_b32 %s, vcc_hi, vcc_lo" % sT0)
A("s_cmp_eq_u32 %s, 0" % sT0)
A("s_cselect_b32 %s, 1, 0" % sT0)
if P["FORCE_SAFE"]:
    A("s_mov_b32 %s, 0" % sT0)
A("v_mov_b32 v5, %d" % FLG)
A("v_mov_b32 v7, %s" % sT0)
A("ds_write_b32 v5, v7")
A.label("S_REC_SKIP")
stamp("S", 14)
if P.get("PTOUCH", 1) == 1:
    ptouch()
w2_dma(0)
if P.get("PREF2", 1):
    A("s_and_b32 %s, %s, 3" % (sT0, sS))
    A("s_min_u32 %s, %s, 2" % (sT0, sT0))
    sexpr(sT0, [(sT0, 4096), (sU, 1024)])
    A("v_add_u32 v7, %s, v3" % sT0)
    A("global_load_dwordx4 v[140:143], v7, %s offset:-4" % pPC)
A("s_waitcnt lgkmcnt(0)")

TRBLK = r'''lab = if_layer0()
for t in range(7):
    for hh in range(2):
        A("ds_read_b64_tr_b16 %s, %s offset:%d" % (v(W2R + 4 * t + 2 * hh, 2), v(sTr), LW_2 + (32 * t + 4 * hh) * 128))
A("s_waitcnt lgkmcnt(0)")
A.label(lab)
'''
A.label("S_LOOP")
A("s_barrier")
cycs(0)
stamp("S", 3)
cm = XR
ca = XR + 8
A("v_mov_b32 v5, %d" % FLG)
A("ds_read_b32 v6, v5")
A("ds_read_b128 %s, %s" % (v(cm, 4), v(sMlrd)))
A("ds_read_b128 %s, %s offset:16" % (v(cm + 4, 4), v(sMlrd)))
for k in range(4):
    A("ds_read_b128 %s, %s offset:%d" % (v(ca + 4 * k, 4), v(sCrd), 2 * APB * k))
cM, cL, cT, cAd = SS, SS + 1, SS + 2, SS + 3
A("v_mov_b32 %s, %s" % (v(cAd), sC))
A("s_waitcnt lgkmcnt(%d)" % (0 if STAMP == 5 else 4))
cycs(1)
A("v_readfirstlane_b32 %s, v6" % sFast)
A("v_max3_f32 %s, %s, %s, %s" % (v(cM), v(cm), v(cm + 2), v(cm + 4)))
A("v_max_f32 %s, %s, %s" % (v(cM), v(cM), v(cm + 6)))
A("v_mov_b32 %s, %s" % (v(cT), v(cM)))
A("v_permlane32_swap_b32 %s, %s" % (v(cM), v(cT)))
A("v_max_f32 %s, %s, %s" % (v(cM), v(cM), v(cT)))
for k in range(4):
    A("v_sub_f32 %s, %s, %s" % (v(cm + 2 * k), v(cm + 2 * k), v(cM)))
for k in range(4):
    A("v_exp_f32 %s, %s" % (v(cm + 2 * k), v(cm + 2 * k)))
A("s_waitcnt lgkmcnt(0)")
if P.get("PK", 1):
    for h in range(2):
        A("v_pk_mul_f32 %s, %s, %s op_sel_hi:[0,1]" % (v(DR + 2 * h, 2), v(cm, 2), v(ca + 2 * h, 2)))
    A("v_mul_f32 %s, %s, %s" % (v(cL), v(cm), v(cm + 1)))
    for k in range(1, 4):
        for h in range(2):
            A("v_pk_fma_f32 %s, %s, %s, %s op_sel_hi:[0,1,1]" % (v(DR + 2 * h, 2), v(cm + 2 * k, 2), v(ca + 4 * k + 2 * h, 2), v(DR + 2 * h, 2)))
        A("v_fmac_f32 %s, %s, %s" % (v(cL), v(cm + 2 * k), v(cm + 2 * k + 1)))
else:
    for e in range(4):
        A("v_mul_f32 %s, %s, %s" % (v(DR + e), v(cm), v(ca + e)))
    A("v_mul_f32 %s, %s, %s" % (v(cL), v(cm), v(cm + 1)))
    for k in range(1, 4):
        for e in range(4):
            A("v_fmac_f32 %s, %s, %s" % (v(DR + e), v(cm + 2 * k), v(ca + 4 * k + e)))
        A("v_fmac_f32 %s, %s, %s" % (v(cL), v(cm + 2 * k), v(cm + 2 * k + 1)))
A("v_mov_b32 %s, %s" % (v(cT), v(cL)))
A("v_permlane32_swap_b32 %s, %s" % (v(DR), v(DR + 2)))
A("v_permlane32_swap_b32 %s, %s" % (v(DR + 1), v(DR + 3)))
A("v_permlane32_swap_b32 %s, %s" % (v(cL), v(cT)))
A("v_add_f32 %s, %s, %s" % (v(DR), v(DR), v(DR + 2)))
A("v_add_f32 %s, %s, %s" % (v(DR + 1), v(DR + 1), v(DR + 3)))
A("v_add_f32 %s, %s, %s" % (v(cL), v(cL), v(cT)))
cycs(2)
store_intra(["global_store_dwordx2 %s, %s, %s" % (v(sE2w), v(DR, 2), pWJ),
             "s_mov_b64 exec, 1",
             "global_store_dwordx2 %s, %s, %s" % (v(cAd), v(cM, 2), pWJ),
             "s_mov_b64 exec, -1"])
if P.get("SIGI", 1):
    A("s_barrier")
cycs(3)
stamp("S", 4)
W2P = P.get("W2P", 1)
lab = if_layer0()
A("v_add_u32 %s, %d, %s" % (v(gc), 4 * 8192, v(sE1w)))
A("v_add_u32 %s, %d, %s" % (v(gc + 1), (E4C - E4) & 0xFFFFFFFF, v(sE4w)))
for i in range(4):
    A("v_mov_b32 %s, 0x3f803f80" % v(XR + i))
A("s_waitcnt vmcnt(%d)" % (2 + P.get("PREF2", 1) + W2S[0] + ((2 + P.get("PTX", 0)) if P.get("PTOUCH", 1) == 1 else 0)))
w2_dma(1)
ssync(1)
for tl in range(2):
    for hh in range(2):
        A("ds_read_b64_tr_b16 %s, %s offset:%d" % (v(W1R + 4 * tl + 2 * hh, 2), v(sTr1), LW_1 + 4 * hh * 224 + 32 * tl))
for t in range(4):
    for hh in range(2):
        A("ds_read_b64_tr_b16 %s, %s offset:%d" % (v(WO + 4 * t + 2 * hh, 2), v(sTr), LW_O + (32 * t + 4 * hh) * 128))
A("s_waitcnt lgkmcnt(8)")
A("%s %s, %s, %s, 0" % (MFMA, v(DR + 4, 4), v(XR, 4), v(W1R, 4)))
A("%s %s, %s, %s, 0" % (MFMA, v(XR + 4, 4), v(XR, 4), v(W1R + 4, 4)))
A("s_cmp_eq_u32 %s, 3" % sU)
A("s_cselect_b32 %s, 0, 0xffff" % sT0)
store_intra(exec_lines(0xFFFF) +
            ["global_store_dword %s, %s, %s" % (v(gc), v(sCsP), pWJ),
             "global_store_dword %s, %s, %s" % (v(gc + 1), v(DR + 4), pWJ),
             "s_mov_b32 exec_lo, %s" % sT0,
             "global_store_dword %s, %s, %s offset:64" % (v(gc + 1), v(XR + 4), pWJ),
             "s_mov_b64 exec, -1"])
A("s_waitcnt lgkmcnt(0)")
A.label(lab)
A("s_barrier")
cycs(4)
if STAMP == 5:
    A("s_waitcnt lgkmcnt(0)")
stamp("S", 5)
for t in range(4):
    A("ds_read_b128 %s, %s offset:%d" % (v(XR + 4 * t, 4), v(sOrd), 64 * t))
for t in range(4):
    A("s_waitcnt lgkmcnt(%d)" % (3 - t))
    A("%s %s, %s, %s, %s" % (MFMA, v(DR, 4), v(XR + 4 * t, 4), v(WO + 4 * t, 4), "0" if t == 0 else v(DR, 4)))
if P.get("E3B", 1):
    A("v_cvt_pk_bf16_f32 %s, %s, %s" % (v(DR), v(DR), v(DR)))
    A("global_store_short %s, %s, %s sc1" % (v(sE3w), v(DR), pWL))
else:
    A("global_store_dword %s, %s, %s sc1" % (v(sE3w), v(DR), pWL))
cycs(5)
A("s_barrier")
lab = if_layer0()
w2_dma(2)
A("s_sub_u32 %s, 4, %s" % (sT0, sHi))
A("s_lshl_b32 %s, %s, 13" % (sT0, sT0))
A("v_add_u32 %s, %s, %s" % (v(gc), sT0, v(sAg)))
poll(["global_load_dwordx4 %s, %s, %s sc1" % (v(ga, 4), v(gc), pWJ),
      "global_load_dwordx4 %s, %s, %s offset:2048 sc1" % (v(gb, 4), v(gc), pWJ)], AGC, nap=4)
for e in range(4):
    A("v_add_f32 %s, %s, %s" % (v(ga + e), v(ga + e), v(gb + e)))
half_treduce(ga)
A("v_mov_b32 %s, %s" % (v(sCq0), v(ga)))
A("v_mov_b32 %s, %s" % (v(sCq1), v(ga + 1)))
A.label(lab)
A("s_barrier")
cycs(6)
if STAMP == 5:
    A("s_waitcnt lgkmcnt(0)")
stamp("S", 6)
A("ds_read_b128 %s, %s" % (v(XR, 4), v(sX1a)))
A("s_cmp_eq_u32 %s, 3" % sU)
A("s_cbranch_scc1 S_W1_W3")
A("s_waitcnt lgkmcnt(0)")
A("%s %s, %s, %s, 0" % (MFMA, v(DR, 4), v(XR, 4), v(W1R, 4)))
A("%s %s, %s, %s, 0" % (MFMA, v(DR + 4, 4), v(XR, 4), v(W1R + 4, 4)))
store_intra(["global_store_dword %s, %s, %s" % (v(sE4w), v(DR), pWJ),
             "global_store_dword %s, %s, %s offset:64" % (v(sE4w), v(DR + 4), pWJ)])
A("s_branch S_W1_DONE")
A.label("S_W1_W3")
A("ds_read_b128 %s, %s" % (v(XR + 4, 4), v(sX1b)))
A("s_waitcnt lgkmcnt(1)")
A("%s %s, %s, %s, 0" % (MFMA, v(DR, 4), v(XR, 4), v(W1R, 4)))
A("s_waitcnt lgkmcnt(0)")
A("%s %s, %s, %s, 0" % (MFMA, v(DR + 4, 4), v(XR, 4), v(XR + 4, 4)))
store_intra(["global_store_dword %s, %s, %s" % (v(sE4w), v(DR), pWJ)] + exec_lines(STM) +
            ["global_store_dword %s, %s, %s" % (v(sE4sw), v(DR + 4), pWJ)] + exec_lines(0x000F000F000F000F) +
            ["global_store_dwordx4 %s, %s, %s" % (v(sE4rw), v(XR + 4, 4), pWJ), "s_mov_b64 exec, -1"])
A.label("S_W1_DONE")
cycs(7)
if P.get("SIGI", 1):
    A("s_barrier")
KEEP = 136
if P.get("CLEAN", 0) & 8:
    A("v_mov_b32 %s, %s" % (v(KEEP), v(DR)))
    A("v_mov_b32 %s, %s" % (v(KEEP + 1), v(DR + 4)))
if P.get("W2LATE", 0):
    A("s_waitcnt vmcnt(0)")
else:
    exec(TRBLK)
A("s_barrier")
cycs(8)
if STAMP == 5:
    A("s_waitcnt lgkmcnt(0)")
stamp("S", 7)
if P.get("W2LATE", 0):
    exec(TRBLK)
for t in range(7):
    A("ds_read_b128 %s, %s offset:%d" % (v(XR + 4 * t, 4), v(sHrd), 64 * t))
for t in range(7):
    A("s_waitcnt lgkmcnt(%d)" % (6 - t))
    ab = (v(W2R + 4 * t, 4), v(XR + 4 * t, 4)) if P.get("WIDE", 0) else (v(XR + 4 * t, 4), v(W2R + 4 * t, 4))
    A("%s %s, %s, %s, %s" % (MFMA, v(DR, 4), ab[0], ab[1], "0" if t == 0 else v(DR, 4)))
if P.get("WIDE", 0):
    set_exec(0x0001000100010001)
    A("global_store_dwordx4 %s, %s, %s sc1" % (v(sE5w), v(DR, 4), pWL))
else:
    set_exec(0xFFFF)
    A("global_store_dword %s, %s, %s sc1" % (v(sE5w), v(DR), pWL))
set_exec(-1)
if P.get("SIG", 1):
    A("s_barrier")
if P.get("SAFEDLY"):
    A("s_cmp_lg_u32 %s, 0" % sFast)
    A("s_cbranch_scc1 S_NODLY")
    sleep(400)
    A.label("S_NODLY")
cycs(9)
cycs_dump(10)
stamp("S", 8)
A("s_cmp_lg_u32 %s, 0" % sL)
A("s_cbranch_scc1 S_ZERO")
OOL.append(["S_ZERO:", "s_or_b32 %s, s2, %s" % (sT0, sU), "s_cbranch_scc1 L_EXIT", "v_mov_b32 v4, 0", "v_mov_b32 v6, 0", "v_mov_b32 v7, 0",
            "s_mov_b64 exec, 1", "global_store_dwordx2 v4, v[6:7], %s sc1" % pDBG, "s_mov_b64 exec, -1", "s_branch L_EXIT"])
A("s_mov_b32 %s, 1" % sL)
padd(pWL, pWL, LSTR)
sexpr(sT0, [(sS, 2176), (sU, 544)], E2S)
A("v_add_u32 v4, %s, v3" % sT0)
store_intra(exec_lines((1 << 34) - 1) + ["global_store_dwordx4 v4, %s, %s" % (v(SN, 4), pWJ), "s_mov_b64 exec, -1"])
A("s_lshl_b32 %s, %s, 6" % (sT0, sU))
A("v_add_u32 %s, %s, %s" % (v(SS), sT0, v(sXa)))
A("v_mov_b32 %s, 0" % v(gc))
A("s_waitcnt vmcnt(0)")
A("s_barrier")
stamp("S", 0)
for t in range(4):
    A("ds_read_b128 %s, %s offset:%d" % (v(XR + 4 * t, 4), v(sXa), 64 * t))
A("ds_read_b128 %s, %s" % (v(XR + 16, 4), v(sXb)))
A("ds_read_b128 %s, %s" % (v(XR + 20, 4), v(SS)))
for t in range(4):
    A("s_waitcnt lgkmcnt(%d)" % (5 - t))
    A("%s %s, %s, %s, %s" % (MFMA, v(DR, 4), v(XR + 4 * t, 4), v(WQ + 4 * t, 4), "0" if t == 0 else v(DR, 4)))
A("s_waitcnt lgkmcnt(0)")
A("%s %s, %s, %s, 0" % (MFMA, v(DR + 4, 4), v(XR + 20, 4), v(XR + 16, 4)))
stamp("S", 1)
store_intra(["global_store_dword %s, %s, %s" % (v(sE1w), v(DR), pWJ)] + exec_lines(STM) +
            ["global_store_dword %s, %s, %s" % (v(sE1sw), v(DR + 4), pWJ), "s_mov_b64 exec, -1"])
sleep(P["D_A"])
SSETS = [SS, XR, XR + 12][:P.get("NSETS", 2)]
q0_, q1_, q2_, q3_ = 4, 5, 6, 7


def a_post():
    t = XR
    with Cap() as c1:
        stats_math(gc, XR + 4, 1.0, 1e-5)
        A("v_mul_f32 %s, %s, %s" % (v(q2_), v(XR + 5), v(sCq0)))
        A("v_mul_f32 %s, %s, %s" % (v(q3_), v(XR + 5), v(sCq1)))
    with Cap() as c2:
        for e in range(4):
            A("v_add_f32 %s, %s, %s" % (v(t + e), v(ga + e), v(gb + e)))
        half_treduce(t)
    for l in interleave(c1.lines, c2.lines):
        A(l)
    A("v_fma_f32 %s, %s, %s, -%s" % (v(q0_), v(t), v(XR + 4), v(q2_)))
    A("v_fma_f32 %s, %s, %s, -%s" % (v(q1_), v(t + 1), v(XR + 4), v(q3_)))


opt_poll("global_load_dword %s, %s, %s sc1" % (v(gc), v(sAst), pWJ), 0xFFFFFFFF, [gc], AG, range(ga, ga + 8), a_post, [q0_, q1_])
stamp("S", 2)
A("v_cvt_pk_bf16_f32 %s, %s, %s" % (v(q0_), v(q0_), v(q1_)))
A("ds_write_b32 %s, %s" % (v(sQw), v(q0_)))
A("s_waitcnt lgkmcnt(0)")
A("s_barrier")
sexpr(sT0, [(sS, 2048), (sU, 512)], E4)
A("v_add_u32 v4, %s, v3" % sT0)
store_intra(exec_lines(0xFFFFFFFF) + ["global_store_dwordx4 v4, %s, %s" % (v(SN, 4), pWJ), "s_mov_b64 exec, -1"])
A("s_waitcnt vmcnt(0)")
A("s_branch S_LOOP")
if P.get("CLEAN", 0) & 4:
    A.label("S_FIN")
    sexpr(sT0, [(sS, 4096), (sU, 1024)])
    A("v_add_u32 v4, %s, v3" % sT0)
    A("global_store_dwordx4 v4, %s, %s sc1" % (v(SN, 4), pWJ))
    if P.get("CLEAN", 0) & 8:
        A("global_store_dword %s, %s, %s sc1" % (v(sE4w), v(KEEP), pWJ))
        A("s_cmp_eq_u32 %s, 3" % sU)
        A("s_cbranch_scc1 L_EXIT")
        A("global_store_dword %s, %s, %s offset:64 sc1" % (v(sE4w), v(KEEP + 1), pWJ))
    A("s_branch L_EXIT")

KR, VR, VF, QR, SR = 16, 48, 80, 112, 128
GS = 48
(gOg, gOml, gOlds, gW1g, gW1x, gW1lds, gW2g, gW2s, gW2lds, gXg, gXr, gXlds, gB1, gB2, gCs1, gQrd, gApw, gMlw, gOut, gDma) = range(148, 168)
_gn = [1 if P["PREF"] else 0]


def gload(t):
    if P.get("NODMA") and "lds" in t:
        t = "global_load_dword v140, v3, %s" % pB1 if False else "s_nop 0"
        A(t)
        return
    if _gn[0] >= P["W"]:
        if P.get("ADAPT"):
            lab = newlabel("THR")
            A("ds_read_b32 v130, v129")
            A("s_waitcnt lgkmcnt(0)")
            A("v_readfirstlane_b32 %s, v130" % sT1)
            A("s_cmp_lg_u32 %s, 0" % sT1)
            A("s_cbranch_scc1 %s" % lab)
            A("s_waitcnt vmcnt(%d)" % (P["W"] - 1))
            A.label(lab)
        else:
            A("s_waitcnt vmcnt(%d)" % (P["W"] - 1))
    A(t)
    _gn[0] += 1


GADDR = r'''A("v_lshrrev_b32 v11, 3, v0")        # l>>3
A("v_and_b32 v12, 7, v0")            # l&7
vexpr(gDma, [(11, 1024), (12, 16)])
# bias elements
A("s_lshr_b32 %s, %s, 1" % (sK0, sWave))     # b = w>>1
A("s_and_b32 %s, %s, 1" % (sK1, sWave))      # w&1
A("s_min_u32 %s, %s, 6" % (sK2, sWave))      # w' for the W2 gather
vexpr(13, [(1, 4), (2, 1)])                  # X col local = 4 l16 + g
sexpr(sT0, [(sHi, 256), (sK1, 128)])
vexpr(14, [(13, 2)], sT0)                    # col*2 within a 512-col bf16 row
gload("global_load_ushort %s, v14, %s%s" % (v(gB2), pB2, NT))
vexpr(10, [(12, 4), (2, 1)])                 # 4 (l&7) + g
sexpr(sT0, [(sK2, 64)])
vexpr(10, [(10, 2)], sT0)                    # f*2 (local)
sexpr(sT0, [(sJ, 448)])
A("v_add_u32 v6, %s, v10" % sT0)
gload("global_load_ushort %s, v6, %s%s" % (v(gB1), pB1, NT))
N_AFTER_K, N_AFTER_V = 8, 0

for q in range(4):
    smov64(mQ[q], (0x000F000F000F000F << (4 * q)))
A("s_mov_b32 %s, 0x05040100" % sPermLo)
A("s_mov_b32 %s, 0x07060302" % sPermHi)
A("s_mov_b32 %s, %s" % (sC, f32(128 ** -0.5 * math.log2(math.e))))
A("s_mov_b32 s42, s40")
A("s_mov_b32 s43, s41")
A("s_mul_i32 %s, %s, %d" % (sT0, sJ, JSTR))
padd(pWJ, pWS, sT0)
A("v_add_u32 %s, %d, v10" % (v(gW2lds), HOP))
# O gather: E2 + ((ro*4+b)*8 + 2g)*512 + (16 (w&1) + l16)*16
sexpr(sT0, [(sHi, 16384), (sK0, 4096), (sK1, 256)], E2)
vexpr(gOg, [(2, 1024), (1, 16)], sT0)
sexpr(sT0, [(sHi, 256), (sK0, 64)], E2S)
vexpr(gOml, [(2, 16)], sT0)
# O lds: U = 16 h + l16 (h = w&1); lp = 2U + (g>>1); ups = lp&31 = (2 l16 + (g>>1)) ; e = 2 h + (g&1)
#   ups = 16 a + 4 g' + qq ; d = 32 g' + 8 e + 4 a + qq
A("v_lshrrev_b32 v4, 1, v2")
A("v_lshl_add_u32 v4, v1, 1, v4")            # ups
A("v_bfe_u32 v5, v4, 4, 1")                  # a
A("v_bfe_u32 v6, v4, 2, 2")                  # g'
A("v_and_b32 v7, 3, v4")                     # qq
A("v_and_b32 v4, 1, v2")                     # g&1
sexpr(sT0, [(sK0, RS_), (sK1, 32)], OOP)
vexpr(gOlds, [(6, 64), (4, 16), (5, 8), (7, 2)], sT0)
# W1 gather: E3 + r1*16384 + (2 pp)*512 + (4 w + (l&3))*16 ; pp = l>>2
A("v_lshrrev_b32 v4, 2, v0")
A("v_and_b32 v5, 3, v0")
if P.get("E3B", 1):
    sexpr(sT0, [(sR1, 8192), (sWave, 1024)], E3)
    A("v_add_u32 %s, %s, v3" % (v(gW1g), sT0))
elif P.get("E3L", 1):
    sexpr(sT0, [(sR1, 16384), (sWave, 2048)], E3)
    A("v_add_u32 %s, %s, v3" % (v(gW1g), sT0))
else:
    sexpr(sT0, [(sR1, 16384), (sWave, 64)], E3)
    vexpr(gW1g, [(4, 1024), (5, 16)], sT0)
# rho = 16 tile + 4 (l&3) + g ; tile = w>>2, b = w&3
A("s_lshr_b32 %s, %s, 2" % (sT1, sWave))
A("s_and_b32 %s, %s, 3" % (sT2, sWave))
if P.get("E3B", 1):
    # column = 8 (l&1) + 4 b5 + 2 b4 + b3
    A("v_and_b32 v4, 1, v0")
    A("v_bfe_u32 v5, v0, 5, 1")
    A("v_bfe_u32 v6, v0, 4, 1")
    A("v_bfe_u32 v7, v0, 3, 1")
    A("v_lshlrev_b32 v4, 4, v4")
    A("v_lshl_add_u32 v4, v5, 3, v4")
    A("v_lshl_add_u32 v4, v6, 2, v4")
    A("v_lshl_add_u32 v6, v7, 1, v4")
    A("s_mov_b32 s61, 0x00003f80")      # (1, 0)
    A("s_mov_b32 s46, 0x3f800000")      # (0, 1)
    A("s_mov_b32 s47, 0x3f803f80")      # (1, 1)
    smov64("s[48:49]", 0xFF00FF00FF00FF00)
else:
    vexpr(6, [(5, 8), (2, 2)])
sexpr(sT0, [(sT2, RS1), (sT1, 32)], X1OP)
A("v_add_u32 %s, %s, v6" % (v(gW1lds), sT0))
sexpr(sT0, [(sT2, RS_), (sT1, 32)], XOP)
A("s_and_b32 %s, %s, 3" % (sT1, sR1))
A("s_lshl_b32 %s, %s, 6" % (sT1, sT1))
A("s_add_u32 %s, %s, %s" % (sT0, sT0, sT1))
A("v_add_u32 %s, %s, v6" % (v(gW1x), sT0))
# W2 gather: E4 + (b*16 + 2 pp8)*896 + (8 w' + (l&7))*16 ; pp8 = l>>3
sexpr(sT0, [(sHi, 16 * 896), (sK2, 128)], E4)
vexpr(gW2g, [(11, 2 * 896), (12, 16)], sT0)
# W2 stats: E4S + (c1*4 + b)*128 + l16*8  (16 entries, row all-reduce)
sexpr(sT0, [(sHi, 128)], E4S)
vexpr(gW2s, [(1, 8), (2, 4)], sT0)
# X gather: E5 + ((b*8 + 2 rq + (w&1))*8 + 2g)*256 + l16*16
sexpr(sT0, [(sK0, 16384), (sHi, 4096), (sK1, 2048)], E5)
vexpr(gXg, [(2, 512), (1, 16)], sT0)
sexpr(sT0, [(sK0, 1024)], E4R)
A("v_add_u32 %s, %s, v14" % (v(gXr), sT0))
sexpr(sT0, [(sK0, 1024)])
A("v_add_u32 %s, %s, v14" % (v(gOut), sT0))
sexpr(sT0, [(sK0, RS_), (sK1, 128)], XOP)
vexpr(gXlds, [(13, 2)], sT0)
vexpr(gQrd, [(8, RS_), (2, 16)], None, QOP)
sexpr(sT0, [(sWave, 2 * APB)], AP)
vexpr(gApw, [(8, 288), (2, 64), (9, 16)], sT0)
sexpr(sT0, [(sWave, 8)], ML)
vexpr(gMlw, [(8, 64)], sT0)
'''
NV1 = 8
A.label("L_G")
ISTR, WSTR = ((65536, 8192) if P.get("KMODE", 5) == 5 else (8192, 65536))
SWZ = P.get("SWZ", 1)
sFa = "s66"
if SWZ:
    A("s_lshr_b32 %s, %s, 1" % (sFa, sJ))
    A("s_and_b32 %s, %s, 1" % (sT1, sHi))
    A("s_lshl_b32 %s, %s, 2" % (sT1, sT1))
    A("s_or_b32 %s, %s, %s" % (sFa, sFa, sT1))
    A("s_lshl_b32 %s, %s, 1" % (sT1, sHi))
    A("s_xor_b32 %s, %s, %s" % (sT1, sT1, sWave))
    sexpr(sT0, [(sHi, 8 << 21), (sJ, 1 << 21), (sLo, 1024), (sT1, WSTR)], 6144 * 256)
else:
    sexpr(sT0, [(sHi, 8 << 21), (sJ, 1 << 21), (sLo, 1024), (sWave, WSTR)], 6144 * 256)
A("v_and_b32 v8, 3, v1")
A("v_lshrrev_b32 v9, 2, v1")
if SWZ:
    A("s_and_b32 %s, %s, 3" % (sT1, sFa))
    A("v_xor_b32 v10, %s, v8" % sT1)
    vexpr(10, [(10, ISTR), (9, 256), (2, 16)])
    A("s_lshr_b32 %s, %s, 2" % (sT2, sFa))
    A("s_mul_i32 %s, %s, %d" % (sT2, sT2, 4 * ISTR))
else:
    vexpr(10, [(8, ISTR), (9, 256), (2, 16)])
A("v_mov_b32 v129, %d" % (FLG + 12))
A("s_waitcnt lgkmcnt(0)")
stamp_init()
stamp("G", 10)
padd(pT2, pV, sT0)
if SWZ:
    padd("s[26:27]", pK, sT0)
    padd(pT, "s[26:27]", sT2)
    A("s_xor_b32 s77, %s, %d" % (sT2, 4 * ISTR))
else:
    padd(pT, pK, sT0)
for tau in range(2):
    for t in range(4):
        if 4 * tau + t == P["B0POS"]:
            A("s_barrier")
        gload("global_load_dwordx4 %s, v10, %s offset:%d%s" % (v(KR + 4 * (4 * tau + t), 4), pT, 64 * t, NT))
    if tau == 0:
        if SWZ:
            padd(pT, "s[26:27]", "s77")
        else:
            padd(pT, pT, 4 * ISTR)
        A("v_mov_b32 %s, v10" % v(SR))
        exec(GADDR)
        A("v_mov_b32 v10, %s" % v(SR))
stamp("G", 11)
NV1 = 8
for jj in range(8):
    if SWZ:
        A("s_xor_b32 %s, %s, %d" % (sT0, sFa, jj))
        A("s_mul_i32 %s, %s, %d" % (sT0, sT0, ISTR))
        padd(pT, pT2, sT0)
        gload("global_load_dwordx4 %s, v3, %s%s" % (v(VR + 4 * jj, 4), pT, NT))
        continue
    gload("global_load_dwordx4 %s, v3, %s%s" % (v(VR + 4 * jj, 4), pT2, NT))
    if jj < 7:
        padd(pT2, pT2, ISTR)
for q in range(4):
    A("v_cndmask_b32 v%d, 0, -1, %s" % (144 + q, mQ[q]))
stamp("G", 9)
if P.get("KVWAIT"):
    A("s_waitcnt vmcnt(0)")
    stamp("G", 14)
if P.get("QLATE"):
    A("s_barrier")
if P.get("PRIO", 0):
    A("s_cmp_ge_u32 %s, 4" % sWave)
    A("s_cbranch_scc1 G_ENTRY")
    A("s_setprio %d" % P["PRIO"])
A.label("G_ENTRY")
A("s_barrier")
cyc(0)
stamp("G")
if NV1 < 8:
    lab = if_layer0()
    for jj in range(NV1, 8):
        A("global_load_dwordx4 %s, v3, %s offset:%d%s" % (v(VR + 4 * jj, 4), pT2, (jj - 4) * 1024, NT))
    A.label(lab)
for t in range(4):
    A("ds_read_b128 %s, %s offset:%d" % (v(QR + 4 * t, 4), v(gQrd), 64 * t))
A("s_waitcnt vmcnt(%d)" % N_AFTER_K)
stamp("G")
S0, S1 = SR, SR + 4
if STAMP == 4:
    A("s_waitcnt lgkmcnt(0)")
    cyc(1)
for t in range(4):
    A("s_waitcnt lgkmcnt(%d)" % ((3 - t) if STAMP != 4 else 15))
    for tau in range(2):
        d = v(SR + 4 * tau, 4)
        A("%s %s, %s, %s, %s" % (MFMA, d, v(KR + 4 * (4 * tau + t), 4), v(QR + 4 * t, 4), "0" if t == 0 else d))
aM, aT, aMc = 136, 137, 138
PR = 140
PM = QR
A("v_max3_f32 %s, %s, %s, %s" % (v(aM), v(S0), v(S0 + 1), v(S0 + 2)))
A("v_max3_f32 %s, %s, %s, %s" % (v(aT), v(S1), v(S1 + 1), v(S1 + 2)))
A("v_max3_f32 %s, %s, %s, %s" % (v(aM), v(aM), v(S0 + 3), v(S1 + 3)))
A("v_max_f32 %s, %s, %s" % (v(aM), v(aM), v(aT)))
cyc(2)
g_allreduce("v_max_f32", aM, aT)
A("v_mul_f32 %s, %s, %s" % (v(aMc), sC, v(aM)))
for q in range(4):
    A("s_mov_b64 exec, %s" % mQ[q])
    A("v_fma_f32 %s, %s, %s, -%s" % (v(PR), v(SR + 2 * q), sC, v(aMc)))
    A("v_fma_f32 %s, %s, %s, -%s" % (v(PR + 1), v(SR + 2 * q + 1), sC, v(aMc)))
A("s_mov_b64 exec, -1")
A("v_exp_f32 %s, %s" % (v(PR), v(PR)))
A("v_exp_f32 %s, %s" % (v(PR + 1), v(PR + 1)))
A("v_cvt_pk_bf16_f32 %s, %s, %s" % (v(PR), v(PR), v(PR + 1)))
cyc(3)
lab0, lab1 = newlabel("VT"), newlabel("VTD")
A("s_cmp_eq_u32 %s, 0" % sL)
A("s_cbranch_scc1 %s" % lab0)
D0 = 4
DL = 128
MK = 144
ONES = GS + 28


def pm(q, p):
    rot = (4 * (q - p)) % 16
    if rot == 0:
        A("v_and_b32 %s, %s, %s" % (v(PM + 4 * q + p), v(PR), v(MK + q)))
    else:
        A("v_and_b32_dpp %s, %s, %s row_ror:%d%s" % (v(PM + 4 * q + p), v(PR), v(MK + q), rot, DPP))


with Cap() as vt:
    for k in range(16):
        pm(k >> 2, k & 3)
    for i in range(4):
        A("v_mov_b32 %s, 0x3f803f80" % v(132 + i))
    A("%s %s, %s, %s, 0" % (MFMA, v(DL, 4), v(132, 4), v(PM, 4)))
    for p in range(4):
        A("s_waitcnt vmcnt(%d)" % (N_AFTER_V + 6 - 2 * p))
        if p == 3:
            stamp("G")
        if P.get("VSIG") and p == P.get("VSP", 1):
            A("v_mov_b32 v12, %d" % (FLG + 12))
            A("v_mov_b32 v13, 1")
            A("s_mov_b64 exec, 1")
            A("ds_add_u32 v12, v13")
            A("s_mov_b64 exec, -1")
        for i in (0, 4, 1, 5, 2, 6, 3, 7):
            A("v_perm_b32 %s, %s, %s, %s" % (v(VF + 4 * i + p), v(VR + 4 * (2 * p + 1) + (i >> 1)), v(VR + 4 * (2 * p) + (i >> 1)),
                                             sPermHi if (i & 1) else sPermLo))
    for q in range(4):
        for a in range(2):
            d = v(D0 + 4 * a, 4)
            A("%s %s, %s, %s, %s" % (MFMA, d, v(VF + 4 * (4 * a + q), 4), v(PM + 4 * q, 4), "0" if q == 0 else d))
    for i in range(4):
        A("v_mov_b32 %s, 0x3f803f80" % v(ONES + i))
OOL.append([lab0 + ":"] + vt.lines + ["s_branch %s" % lab1])
for p in range(4):
    pm(0, p)
pm(1, 0); pm(1, 1)
A("%s %s, %s, %s, 0" % (MFMA, v(DL, 4), v(ONES, 4), v(PM, 4)))
for q in range(4):
    for a in range(2):
        d = v(D0 + 4 * a, 4)
        A("%s %s, %s, %s, %s" % (MFMA, d, v(VF + 4 * (4 * a + q), 4), v(PM + 4 * q, 4), "0" if q == 0 else d))
        nxt = 4 * q + 2 * a + 6
        for k in (nxt, nxt + 1):
            if k < 16:
                pm(k >> 2, k & 3)
A.label(lab1)
A("v_mov_b32 %s, %s" % (v(aMc + 1), v(DL)))
cyc(4)
A("s_mov_b64 exec, %s" % mQ[0])
A("ds_write_b64 %s, %s" % (v(gMlw), v(aMc, 2)))
A("s_mov_b64 exec, -1")
A("ds_write_b128 %s, %s" % (v(gApw), v(D0, 4)))
A("ds_write_b128 %s, %s offset:%d" % (v(gApw), v(D0 + 4, 4), APB))
A("s_waitcnt lgkmcnt(0)")
cyc(5)
A("s_barrier")
cyc(6)
cyc_dump(7)

a0, b0, c0 = GS, GS + 4, GS + 8
r0, r1_, r2, r3 = GS + 12, GS + 13, GS + 14, GS + 15


def add_ab():
    for e in range(4):
        A("v_add_f32 %s, %s, %s" % (v(a0 + e), v(a0 + e), v(b0 + e)))


BC = "row_newbcast:0" + DPP
NS_ = P.get("NSETS", 2)
GSETS = [GS, GS + 16, 112][:NS_]
GAP = P.get("GAP", 3)


def add_ab2(a):
    for e in range(4):
        A("v_add_f32 %s, %s, %s" % (v(a + e), v(a + e), v(a + 4 + e)))


def g_treduce_to(a, out):
    A("v_permlane16_swap_b32 %s, %s" % (v(a), v(a + 1)))
    A("v_permlane16_swap_b32 %s, %s" % (v(a + 2), v(a + 3)))
    A("v_add_f32 %s, %s, %s" % (v(a), v(a), v(a + 1)))
    A("v_add_f32 %s, %s, %s" % (v(a + 2), v(a + 2), v(a + 3)))
    A("v_permlane32_swap_b32 %s, %s" % (v(a), v(a + 2)))
    A("v_add_f32 %s, %s, %s" % (v(out), v(a), v(a + 2)))


A("ds_read_u16 %s, %s" % (v(r3), v(gW1x)))
for e in range(4):
    A("v_mov_b32 %s, 0" % v(c0 + e))
A("s_barrier")
sleep(P.get("DI_O", 0))
stamp("G", 7)


T_ = GS + 16


def o_post():
    c, f0, f1, t = c0, T_ + 4, T_ + 5, T_
    A("v_max_f32 %s, %s, %s" % (v(r0), v(c), v(c + 2)))
    g_allreduce("v_max_f32", r0, r1_)
    A("v_sub_f32 %s, %s, %s" % (v(f0), v(c), v(r0)))
    A("v_sub_f32 %s, %s, %s" % (v(f1), v(c + 2), v(r0)))
    A("v_exp_f32 %s, %s" % (v(f0), v(f0)))
    A("v_exp_f32 %s, %s" % (v(f1), v(f1)))
    with Cap() as c1:
        A("v_mul_f32 %s, %s, %s" % (v(r1_), v(f0), v(c + 1)))
        A("v_fmac_f32 %s, %s, %s" % (v(r1_), v(f1), v(c + 3)))
        g_allreduce("v_add_f32", r1_, r2)
        A("v_rcp_f32 %s, %s" % (v(r1_), v(r1_)))
    with Cap() as c2:
        for e in range(4):
            A("v_mul_f32_dpp %s, %s, %s %s" % (v(t + e), v(f0), v(a0 + e), BC))
        for e in range(4):
            A("v_fmac_f32_dpp %s, %s, %s %s" % (v(t + e), v(f1), v(b0 + e), BC))
        g_treduce_to(t, r0)
    L1_, L2_ = c1.lines, c2.lines
    A(L1_[0]); A(L1_[1])
    for l in interleave(L2_, L1_[2:]):
        A(l)
    A("v_mul_f32_dpp %s, %s, %s %s" % (v(r0), v(r1_), v(r0), BC))


def o_pre():
    c, f0, f1 = c0, T_ + 4, T_ + 5
    A("v_max_f32 %s, %s, %s" % (v(r0), v(c), v(c + 2)))
    g_allreduce("v_max_f32", r0, r1_)
    A("v_sub_f32 %s, %s, %s" % (v(f0), v(c), v(r0)))
    A("v_sub_f32 %s, %s, %s" % (v(f1), v(c + 2), v(r0)))
    A("v_exp_f32 %s, %s" % (v(f0), v(f0)))
    A("v_exp_f32 %s, %s" % (v(f1), v(f1)))
    A("v_mul_f32 %s, %s, %s" % (v(r1_), v(f0), v(c + 1)))
    A("v_fmac_f32 %s, %s, %s" % (v(r1_), v(f1), v(c + 3)))
    g_allreduce("v_add_f32", r1_, r2)
    A("v_rcp_f32 %s, %s" % (v(r1_), v(r1_)))
    A("v_mul_f32 %s, %s, %s" % (v(f0), v(f0), v(r1_)))
    A("v_mul_f32 %s, %s, %s" % (v(f1), v(f1), v(r1_)))
    A("v_mov_b32_dpp %s, %s %s" % (v(f0), v(f0), BC))
    A("v_mov_b32_dpp %s, %s %s" % (v(f1 + 1), v(f1), BC))


def o_post2():
    f0, f1 = T_ + 4, T_ + 6
    for h in range(2):
        A("v_pk_mul_f32 %s, %s, %s op_sel_hi:[0,1]" % (v(a0 + 2 * h, 2), v(f0, 2), v(a0 + 2 * h, 2)))
    for h in range(2):
        A("v_pk_fma_f32 %s, %s, %s, %s op_sel_hi:[0,1,1]" % (v(a0 + 2 * h, 2), v(f1, 2), v(b0 + 2 * h, 2), v(a0 + 2 * h, 2)))
    g_treduce_to(a0, r0)


if P.get("SPLIT", 0):
    split_poll("global_load_dwordx4 %s, %s, %s sc1" % (v(c0, 4), v(gOml), pWJ), 0x0001000100010001, list(range(c0, c0 + 4)),
               ["global_load_dwordx4 %s, %s, %s sc1" % (v(a0, 4), v(gOg), pWJ),
                "global_load_dwordx4 %s, %s, %s offset:512 sc1" % (v(b0, 4), v(gOg), pWJ)], range(a0, a0 + 8), o_pre, o_post2, ck=0)
else:
    opt_poll("global_load_dwordx4 %s, %s, %s sc1" % (v(c0, 4), v(gOml), pWJ), 0x0001000100010001, range(c0, c0 + 4),
             ["global_load_dwordx4 %s, %s, %s sc1" % (v(a0, 4), v(gOg), pWJ),
              "global_load_dwordx4 %s, %s, %s offset:512 sc1" % (v(b0, 4), v(gOg), pWJ)], range(a0, a0 + 8), o_post, [r0], ck=0)
stamp("G")
A("v_cvt_pk_bf16_f32 %s, %s, %s" % (v(r0), v(r0), v(r0)))
A("ds_write_b16 %s, %s" % (v(gOlds), v(r0)))
A("s_waitcnt lgkmcnt(0)")
cycg(3)
A("s_barrier")
cycg(4)

A("v_lshlrev_b32 %s, 16, %s" % (v(r3), v(r3)))
A("s_barrier")
CA, CB, CAD = GS + 16, GS + 20, GS + 24
CSL = ["global_load_dwordx4 %s, %s, %s sc1" % (v(CA, 4), v(CAD), pWJ),
       "global_load_dwordx4 %s, %s, %s offset:896 sc1" % (v(CB, 4), v(CAD), pWJ)]
A("s_cmp_eq_u32 %s, 0" % sL)
A("s_cbranch_scc1 G_CS1")
sleep(P["D_W1"])
A.label("G_CS1_DONE")
OOL.append(["G_CS1:", "s_mul_i32 %s, %s, %d" % (sT0, sHi, 16 * 896), "s_add_u32 %s, %s, %d" % (sT0, sT0, E4 - E4C),
            "v_subrev_u32 %s, %s, %s" % (v(CAD), sT0, v(gW2g)), "s_sleep %d" % (P["D_W1"] - 2)] + CSL + ["s_branch G_CS1_DONE"])
stamp("G", 8)


def w1_issue(a):
    A("global_load_dwordx4 %s, %s, %s sc1" % (v(a, 4), v(gW1g), pWL))
    A("global_load_dwordx4 %s, %s, %s offset:%d sc1" % (v(a + 4, 4), v(gW1g), pWL, 1024 if P.get("E3L", 1) else 512))


def w1_post(a):
    add_ab2(a)
    g_treduce_to(a, r0)
    A("v_add_f32_dpp %s, %s, %s row_ror:4%s" % (v(r0), v(r0), v(r0), DPP))
    A("v_add_f32_dpp %s, %s, %s row_ror:8%s" % (v(r0), v(r0), v(r0), DPP))


if P.get("E3B", 1):
    pk, t_ = GS, GS + 4
    ld = "global_load_dwordx4 %s, %s, %s sc1" % (v(pk, 4), v(gW1g), pWL)
    A(ld)
    A.label("W1B_CHK")
    A("s_waitcnt vmcnt(0)")
    A("v_dot2_f32_bf16 %s, %s, s47, 0" % (v(t_), v(pk)))
    for e in range(1, 4):
        A("v_dot2_f32_bf16 %s, %s, s47, %s" % (v(t_), v(pk + e), v(t_)))
    A("v_cmp_u_f32 vcc, %s, %s" % (v(t_), v(t_)))
    A("s_cbranch_vccnz W1B_RETRY")
    A.label("W1B_OK")
    OOL.append(["W1B_RETRY:", "s_mov_b64 exec, vcc", ld, "s_mov_b64 exec, -1", "s_sub_u32 %s, %s, 1" % (sBud, sBud),
                "s_cbranch_scc0 W1B_CHK", "s_mov_b32 %s, 0" % sBud, "s_waitcnt vmcnt(0)", "s_branch W1B_OK"])
    A("v_permlane32_swap_b32 %s, %s" % (v(pk), v(pk + 2)))
    A("v_permlane32_swap_b32 %s, %s" % (v(pk + 1), v(pk + 3)))
    for e, (src, sel) in enumerate(((0, "s61"), (0, "s46"), (1, "s61"), (1, "s46"))):
        A("v_dot2_f32_bf16 %s, %s, %s, 0" % (v(t_ + e), v(pk + src), sel))
        A("v_dot2_f32_bf16 %s, %s, %s, %s" % (v(t_ + e), v(pk + 2 + src), sel, v(t_ + e)))
    A("v_permlane16_swap_b32 %s, %s" % (v(t_), v(t_ + 2)))
    A("v_permlane16_swap_b32 %s, %s" % (v(t_ + 1), v(t_ + 3)))
    A("v_add_f32 %s, %s, %s" % (v(t_), v(t_), v(t_ + 2)))
    A("v_add_f32 %s, %s, %s" % (v(t_ + 1), v(t_ + 1), v(t_ + 3)))
    A("v_cndmask_b32 %s, %s, %s, s[48:49]" % (v(t_ + 2), v(t_ + 1), v(t_)))
    A("v_cndmask_b32 %s, %s, %s, s[48:49]" % (v(r0), v(t_), v(t_ + 1)))
    A("v_add_f32_dpp %s, %s, %s row_ror:8%s" % (v(r0), v(t_ + 2), v(r0), DPP))
    A("v_add_f32_dpp %s, %s, %s %s" % (v(r0), v(r0), v(r0), X2))
    A("v_add_f32_dpp %s, %s, %s row_shr:4 row_mask:0xf bank_mask:0xa" % (v(r0), v(r0), v(r0)))
else:
    fast_poll(w1_issue, None, w1_post, None, [r0], GS)
stamp("G")
A("v_add_f32 %s, %s, %s" % (v(r0), v(r0), v(r3)))
A("v_cvt_pk_bf16_f32 %s, %s, %s" % (v(r0), v(r0), v(r0)))
if P.get("E3B", 1):
    set_exec(0xF0F0F0F0F0F0F0F0)
A("ds_write_b16 %s, %s" % (v(gW1lds), v(r0)))
if P.get("E3B", 1):
    set_exec(-1)
A("s_waitcnt lgkmcnt(0)")
A("s_barrier")

A("s_cmp_eq_u32 %s, 0" % sL)
A("s_cbranch_scc1 G_CS2")
A.label("G_CS2_DONE")
with Cap() as cs2:
    A.label("G_CS2_CHK")
    for e in range(4):
        A("v_add_f32 %s, %s, %s" % (v(a0 + e), v(CA + e), v(CB + e)))
    g_treduce(a0)
    A("v_add_f32_dpp %s, %s, %s row_ror:8%s" % (v(gCs1), v(a0), v(a0), DPP))
    A("v_cmp_u_f32 vcc, %s, %s" % (v(gCs1), v(gCs1)))
    A("s_cbranch_vccz G_CS2_OK")
    for l in CSL:
        A(l)
    A("s_waitcnt vmcnt(0)")
    budget_loop("G_CS2_CHK")
    A.label("G_CS2_OK")
    A("v_lshlrev_b32 %s, 16, %s" % (v(gB1), v(gB1)))
    A("v_lshlrev_b32 %s, 16, %s" % (v(gB2), v(gB2)))
OOL.append(["G_CS2:"] + cs2.lines + ["s_branch G_CS2_DONE"])
k0 = -2 * math.log2(math.e) * math.sqrt(2 / math.pi)
A("v_mov_b32 %s, %s" % (v(r2), f32(k0)))
A("s_barrier")
A("s_cmp_eq_u32 %s, 7" % sWave)
A("s_cbranch_scc1 G_W2_SKIP")
sleep(P.get("DI_W2", 0))
stamp("G", 12)


def add_to(t):
    for e in range(4):
        A("v_add_f32 %s, %s, %s" % (v(t + e), v(a0 + e), v(b0 + e)))


def w2_post():
    with Cap() as c1:
        stats_math(c0, T_ + 4, 1.0 + 1e-5, 1e-10)
        A("v_fma_f32 %s, -%s, %s, %s" % (v(r3), v(T_ + 5), v(gCs1), v(gB1)))
    with Cap() as c2:
        add_to(T_)
        g_treduce_to(T_, r0)
        A("v_add_f32_dpp %s, %s, %s row_ror:8%s" % (v(r0), v(r0), v(r0), DPP))
    for l in interleave(c1.lines, c2.lines):
        A(l)
    A("v_fma_f32 %s, %s, %s, %s" % (v(r0), v(r0), v(T_ + 4), v(r3)))


def pk_add(a):
    for h in range(2):
        A("v_pk_add_f32 %s, %s, %s" % (v(a + 2 * h, 2), v(a + 2 * h, 2), v(a + 4 + 2 * h, 2)))


def w2_pre():
    stats_math(c0, T_ + 4, 1.0 + 1e-5, 1e-10)
    A("v_fma_f32 %s, -%s, %s, %s" % (v(r3), v(T_ + 5), v(gCs1), v(gB1)))


def w2_post2():
    pk_add(a0)
    g_treduce_to(a0, r0)
    A("v_add_f32_dpp %s, %s, %s row_ror:8%s" % (v(r0), v(r0), v(r0), DPP))
    A("v_fma_f32 %s, %s, %s, %s" % (v(r0), v(r0), v(T_ + 4), v(r3)))


if P.get("SPLIT", 0):
    split_poll("global_load_dword %s, %s, %s sc1" % (v(c0), v(gW2s), pWJ), 0xFFFFFFFF, [c0],
               ["global_load_dwordx4 %s, %s, %s sc1" % (v(a0, 4), v(gW2g), pWJ),
                "global_load_dwordx4 %s, %s, %s offset:896 sc1" % (v(b0, 4), v(gW2g), pWJ)], range(a0, a0 + 8), w2_pre, w2_post2, ck=5)
else:
    opt_poll("global_load_dword %s, %s, %s sc1" % (v(c0), v(gW2s), pWJ), 0xFFFFFFFF, [c0],
             ["global_load_dwordx4 %s, %s, %s sc1" % (v(a0, 4), v(gW2g), pWJ),
              "global_load_dwordx4 %s, %s, %s offset:896 sc1" % (v(b0, 4), v(gW2g), pWJ)], range(a0, a0 + 8), w2_post, [r0], ck=5)
stamp("G")
RX = GS + 27
A("v_mul_f32 %s, %s, %s" % (v(r1_), v(r0), v(r0)))
A("v_fmac_f32 %s, %s, %s" % (v(r2), f32(k0 * 0.044715), v(r1_)))
A("v_mul_f32 %s, %s, %s" % (v(r2), v(r2), v(r0)))
A("v_exp_f32 %s, %s" % (v(r2), v(r2)))
A("v_add_f32 %s, 1.0, %s" % (v(r2), v(r2)))
A("v_rcp_f32 %s, %s" % (v(r2), v(r2)))
A("v_mul_f32 %s, %s, %s" % (v(r0), v(r0), v(r2)))
A("v_cvt_pk_bf16_f32 %s, %s, %s" % (v(r0), v(r0), v(r0)))
A("ds_write_b16 %s, %s" % (v(gW2lds), v(r0)))
A("s_waitcnt lgkmcnt(0)")
cycg(8)
A.label("G_W2_SKIP")
A("s_barrier")
cycg(9)
if STAMP == 6:
    A("s_waitcnt lgkmcnt(0)")
    for k in range(10):
        A("v_writelane_b32 v15, s%d, %d" % (80 + 2 * k, 32 + k))

A("s_cmp_eq_u32 %s, 0" % sL)
A("s_cbranch_scc1 G_X_GO")
A("s_cmp_lg_u32 %s, 0" % sLo)
A("s_cbranch_scc1 L_EXIT")
A("s_cmp_lg_u32 %s, %s" % (sWave, sJ))
A("s_cbranch_scc1 L_EXIT")
A.label("G_X_GO")


def xpre():
    A("v_lshlrev_b32 %s, 16, %s" % (v(r3), v(r3)))


A("global_load_ushort %s, %s, %s sc1" % (v(RX), v(gXr), pWJ))
A.label("G_RX_CHK")
A("s_waitcnt vmcnt(0)")
A("v_lshlrev_b32 %s, 16, %s" % (v(r3), v(RX)))
A("v_cmp_u_f32 vcc, %s, %s" % (v(r3), v(r3)))
A("s_cbranch_vccnz G_RX_RETRY")
A.label("G_RX_OK")
OOL.append(["G_RX_RETRY:", "global_load_ushort %s, %s, %s sc1" % (v(RX), v(gXr), pWJ),
            "s_sub_u32 %s, %s, 1" % (sBud, sBud), "s_cbranch_scc0 G_RX_CHK", "s_mov_b32 %s, 0" % sBud, "s_branch G_RX_OK"])
A("v_add_f32 %s, %s, %s" % (v(r3), v(r3), v(gB2)))
A("s_barrier")
sleep(P["D_X"])
stamp("G", 13)


def x_post():
    pk_add(a0)
    g_treduce_to(a0, r0)


opt_poll(None, 0, [], ["global_load_dwordx4 %s, %s, %s sc1" % (v(a0, 4), v(gXg), pWL),
                       "global_load_dwordx4 %s, %s, %s offset:256 sc1" % (v(b0, 4), v(gXg), pWL)], range(a0, a0 + 8), x_post, [r0])
stamp("G")
A("v_add_f32 %s, %s, %s" % (v(r0), v(r0), v(r3)))
A("v_cvt_pk_bf16_f32 %s, %s, %s" % (v(r0), v(r0), v(r0)))
A("s_cmp_lg_u32 %s, 0" % sL)
A("s_cbranch_scc1 G_FINAL")
A("ds_write_b16 %s, %s" % (v(gXlds), v(r0)))
A("s_mov_b32 %s, 1" % sL)
padd(pWL, pWL, LSTR)
A("s_waitcnt lgkmcnt(0)")
A("s_barrier")
A("s_waitcnt vmcnt(0)")
A("s_branch G_ENTRY")
A.label("G_FINAL")
sleep(P.get("ENDSLEEP", 0))
if "ECHO" in P:
    A("s_memrealtime s[82:83]")
    A("s_sub_u32 s80, s80, s78")
    A("s_waitcnt lgkmcnt(0)")
    A("s_add_u32 s80, s80, s82")
    A.label("ECHO_SPIN")
    A("s_memrealtime s[82:83]")
    A("s_waitcnt lgkmcnt(0)")
    A("s_cmp_lt_u32 s82, s80")
    A("s_cbranch_scc1 ECHO_SPIN")
A("global_store_short %s, %s, %s" % (v(gOut), v(r0), pOUT))
A.label("L_EXIT")
stamp_dump()
A.label("L_END")
A("s_endpgm")
for blk in OOL:
    for l in blk:
        A(l)
A("s_endpgm")

A.fix_hazards()

hdr = open("cdna_kernels/%s.s.ref" % NAME).read().split("; Override launch")[0]
out = hdr + """; @launch grid=(256,1,1) block=(768,1,1) lds=%d
;
; One persistent launch, one workgroup per CU (12 waves: 4 "service" + 8 "attention/gather" waves).
; K/V window and all weight tiles are loaded once and stay on chip for both layers. Stages hand data to
; each other through d_ws: buffers are cleared to a signalling-NaN sentinel inside the launch (guarded by
; per-workgroup records tagged with a launch nonce published in d_debug) and polled with sc1 loads.
; Workgroups with equal (id & 7) form a group; a group whose members report the same XCC id uses plain
; stores for its private exchanges, any other placement falls back to write-through (sc1) stores.
; Generated by dev/gen.py (hand-written generator, wait states inserted by dev/asmlib.py).
.amdgcn_target "amdgcn-amd-amdhsa--gfx950"
.text
.globl %s_kernel
.p2align 8
.type %s_kernel,@function
%s_kernel:
%s
    ; pad the code section so that the 12 KB code prefetch stays inside it
    .fill ((12288 + 256 - (. - %s_kernel)) / 4), 4, 0xbf810000
.section .rodata,"a"
.p2align 6
.amdhsa_kernel %s_kernel
  .amdhsa_next_free_vgpr 168
  .amdhsa_next_free_sgpr 102
  .amdhsa_accum_offset 168
  .amdhsa_group_segment_fixed_size 0
  .amdhsa_kernarg_size 104
  .amdhsa_user_sgpr_count 2
  .amdhsa_user_sgpr_kernarg_segment_ptr 1
  .amdhsa_system_sgpr_workgroup_id_x 1
.end_amdhsa_kernel
""" % (LDS_TOTAL, NAME, NAME, NAME, A.text(), NAME, NAME)
open(sys.argv[1], "w").write(out)
print("wrote", sys.argv[1], "instructions:", sum(1 for x in A.ins if not x.label), "LDS", LDS_TOTAL)
```

```python
import sys, math, struct, os
from asmlib import Asm

NAME = "interleave_layers__sliding_block_cached__mixer_channel_mlp__decode"

P = dict(B0POS=0, W=64, NV1=8, D_A0=64, NSL=3, NLATE=1, D_O=0, D_W1=10, D_W2=0, D_X=9, D_XF=6, D_A=0, NT="", STAMP=0, FORCE_SAFE=0, PREF=1)
for a in sys.argv[2:]:
    k, v_ = a.split("=")
    P[k] = int(v_) if v_.lstrip("-").isdigit() else v_


def f32(x):
    return "0x%08x" % struct.unpack("<I", struct.pack("<f", x))[0]


LSTR = 0x200000
JSTR = 196608
E1, E1S, E4C = 0, 40960, 45056
E1T = 0x200000 * 2
REC = 0x1D8000
E2, E4, E4R, E2S, E4S = 65536, 131072, 188416, 61440, 193536
E3, E5 = 0x180000, 0x1C0000
SENT = 0x7F817F81
LW_Q, LW_O, LW_2, LW_1 = 0, 16384, 32768, 61440
RS_, RS1 = 320, 64
XOP = 68608
QOP = XOP + 5 * RS_
OOP = QOP + 4 * RS_
X1OP = OOP + 4 * RS_
HOP = X1OP + 5 * RS1
ML = HOP + 448
FLG = ML + 256
ST0 = FLG + 16
NONCE = ST0 + 32
AP = (NONCE + 16 + 1023) // 1024 * 1024
APB = 1152
LDS_TOTAL = AP + 16 * APB
assert all(x % 16 == 0 for x in (XOP, QOP, OOP, X1OP, HOP, ML))

sWave, sJ, sS, sHi, sLo, sR1, sC1, sL, sBud = "s3", "s4", "s5", "s6", "s7", "s8", "s9", "s10", "s11"
sT0, sT1, sT2, sT3 = "s12", "s13", "s14", "s15"
pX, pK, pV, pWQ, pWO, pW1, pB1, pW2, pB2, pOUT, pDBG, pWS = (
    "s[16:17]", "s[18:19]", "s[20:21]", "s[22:23]", "s[24:25]", "s[28:29]", "s[30:31]", "s[32:33]", "s[34:35]",
    "s[36:37]", "s[38:39]", "s[40:41]")
pWL = "s[42:43]"
sFast = "s44"
sU = "s45"
mQ = ["s[50:51]", "s[52:53]", "s[54:55]", "s[56:57]"]
sPermLo, sPermHi = "s58", "s59"
sC = "s60"
pT = "s[62:63]"
pT2 = "s[64:65]"
sXcc = "s66"
sK0, sK1, sK2 = "s67", "s68", "s69"
mT = "s[70:71]"
pWJ = "s[72:73]"
pPC = "s[46:47]"
pN = "s[48:49]"

A = Asm()
NT = (" " + P["NT"]) if P["NT"] else ""
STAMP = P["STAMP"]


def v(n, cnt=1):
    return "v%d" % n if cnt == 1 else "v[%d:%d]" % (n, n + cnt - 1)


def smov64(pair, val):
    lo = int(pair[2:].split(":")[0])
    A("s_mov_b32 s%d, 0x%08x" % (lo, val & 0xFFFFFFFF))
    A("s_mov_b32 s%d, 0x%08x" % (lo + 1, val >> 32))


def exec_lines(val):
    if val == -1:
        return ["s_mov_b64 exec, -1"]
    if 0 <= val <= 64:
        return ["s_mov_b64 exec, %d" % val]
    return ["s_mov_b32 exec_lo, 0x%08x" % (val & 0xFFFFFFFF), "s_mov_b32 exec_hi, 0x%08x" % (val >> 32)]


def set_exec(val):
    for l in exec_lines(val):
        A(l)


def padd(dst, src, soff):
    d = int(dst[2:].split(":")[0]); s = int(src[2:].split(":")[0])
    A("s_add_u32 s%d, s%d, %s" % (d, s, soff))
    A("s_addc_u32 s%d, s%d, 0" % (d + 1, s + 1))


def sexpr(dst, terms, const=0, tmp=sT3):
    first = True
    for (r, m) in terms:
        t = dst if first else tmp
        if m == 1:
            if first:
                A("s_mov_b32 %s, %s" % (dst, r))
            else:
                A("s_add_u32 %s, %s, %s" % (dst, dst, r))
            first = False
            continue
        if m & (m - 1) == 0:
            A("s_lshl_b32 %s, %s, %d" % (t, r, m.bit_length() - 1))
        else:
            A("s_mul_i32 %s, %s, %d" % (t, r, m))
        if not first:
            A("s_add_u32 %s, %s, %s" % (dst, dst, t))
        first = False
    if first:
        A("s_mov_b32 %s, %d" % (dst, const))
    elif const:
        A("s_add_u32 %s, %s, %d" % (dst, dst, const))


def vexpr(dst, terms, sreg=None, const=0):
    first = True
    for (r, m) in terms:
        if first:
            if m == 1:
                A("v_mov_b32 %s, %s" % (v(dst), v(r)))
            elif m & (m - 1) == 0:
                A("v_lshlrev_b32 %s, %d, %s" % (v(dst), m.bit_length() - 1, v(r)))
            else:
                A("v_mul_u32_u24 %s, %d, %s" % (v(dst), m, v(r)))
            first = False
        else:
            assert m & (m - 1) == 0, "non power of two term must come first"
            A("v_lshl_add_u32 %s, %s, %d, %s" % (v(dst), v(r), m.bit_length() - 1, v(dst)))
    if sreg:
        A("v_add_u32 %s, %s, %s" % (v(dst), sreg, v(dst)))
    if const:
        A("v_add_u32 %s, %d, %s" % (v(dst), const, v(dst)))


DPP = " row_mask:0xf bank_mask:0xf"
X1 = "quad_perm:[1,0,3,2]" + DPP
X2 = "quad_perm:[2,3,0,1]" + DPP
HM = "row_half_mirror" + DPP
RM = "row_mirror" + DPP
_lab = [0]


def newlabel(p="L"):
    _lab[0] += 1
    return "%s_%d" % (p, _lab[0])


def sleep(n):
    while n > 0:
        k = min(n, 127)
        A("s_sleep %d    ; poll back-off: probing a line before its producer's store lands slows that store down" % k)
        n -= k


def g_treduce(a):
    A("v_permlane16_swap_b32 %s, %s" % (v(a), v(a + 1)))
    A("v_permlane16_swap_b32 %s, %s" % (v(a + 2), v(a + 3)))
    A("v_add_f32 %s, %s, %s" % (v(a), v(a), v(a + 1)))
    A("v_add_f32 %s, %s, %s" % (v(a + 2), v(a + 2), v(a + 3)))
    A("v_permlane32_swap_b32 %s, %s" % (v(a), v(a + 2)))
    A("v_add_f32 %s, %s, %s" % (v(a), v(a), v(a + 2)))


def g_allreduce(op, r, t):
    for sw in ("v_permlane16_swap_b32", "v_permlane32_swap_b32"):
        A("v_mov_b32 %s, %s" % (v(t), v(r)))
        A("%s %s, %s" % (sw, v(r), v(t)))
        A("%s %s, %s, %s" % (op, v(r), v(r), v(t)))


def budget_loop(top):
    A("s_sub_u32 %s, %s, 1" % (sBud, sBud))
    A("s_cbranch_scc0 %s" % top)
    A("s_mov_b32 %s, 0" % sBud)


def poll(loads, check_pairs, pre=None, nap=0):
    top, done = newlabel("POLL"), newlabel("PDONE")
    A.label(top)
    for l in loads:
        A(l)
    A("s_waitcnt vmcnt(0)")
    if pre:
        pre()
    first = True
    for (a, b) in check_pairs:
        if first:
            A("v_cmp_u_f32 vcc, %s, %s" % (v(a), v(b)))
            first = False
        else:
            A("v_cmp_u_f32 %s, %s, %s" % (mT, v(a), v(b)))
            A("s_or_b64 vcc, vcc, %s" % mT)
    A("s_cbranch_vccz %s" % done)
    sleep(nap)
    budget_loop(top)
    A.label(done)


def half(loads):
    import re
    if P.get("HALF") == 1:
        m = re.search(r"v\[(\d+):(\d+)\]", loads[1])
        for r_ in range(int(m.group(1)), int(m.group(2)) + 1):
            A("v_mov_b32 v%d, 0" % r_)
        return loads[:1]
    if P.get("HALF") == 2:
        out = []
        for l in loads:
            m = re.search(r"v\[(\d+):(\d+)\]", l)
            lo = int(m.group(1))
            A("v_mov_b32 v%d, 0" % (lo + 2)); A("v_mov_b32 v%d, 0" % (lo + 3))
            out.append(l.replace("dwordx4", "dwordx2").replace(m.group(0), "v[%d:%d]" % (lo, lo + 1)))
        return out
    return loads


def canary(load, pairs, mask, nap=0):
    set_exec(mask)
    poll([load], pairs, nap=nap)
    set_exec(-1)


def bulk(loads, mid, post, res):
    top, again, done = newlabel("BK"), newlabel("BKA"), newlabel("BKD")
    loads = half(loads)
    for l in loads:
        A(l)
    if mid:
        mid()
    A.label(top)
    A("s_waitcnt vmcnt(0)")
    post()
    A("v_cmp_u_f32 vcc, %s, %s" % (v(res[0]), v(res[-1])))
    A("s_cbranch_vccz %s" % done)
    for l in loads:
        A(l)
    budget_loop(top)
    A("s_waitcnt vmcnt(0)")
    A.label(done)


def round1(small, mask, loads, mid, post, res):
    top, done = newlabel("RD"), newlabel("RDD")
    loads = half(loads)
    A.label(top)
    set_exec(mask)
    A(small)
    set_exec(-1)
    for l in loads:
        A(l)
    A("s_waitcnt vmcnt(%d)" % len(loads))
    mid()
    A("s_waitcnt vmcnt(0)")
    post()
    A("v_cmp_u_f32 vcc, %s, %s" % (v(res[0]), v(res[-1])))
    A("s_cbranch_vccz %s" % done)
    budget_loop(top)
    A.label(done)


def pipe_poll(issue, n_small, n_bulk, mid, post, res, sets, gap):
    n = n_small + n_bulk
    k = len(sets)
    top, done = newlabel("PP"), newlabel("PPD")
    for i in range(k - 1):
        issue(sets[i])
        sleep(gap)
    A.label(top)
    for i in range(k):
        issue(sets[(i + k - 1) % k])
        if n_small:
            A("s_waitcnt vmcnt(%d)" % ((k - 1) * n + n_bulk))
            mid(sets[i])
        A("s_waitcnt vmcnt(%d)" % ((k - 1) * n))
        post(sets[i])
        A("v_cmp_u_f32 vcc, %s, %s" % (v(res[0]), v(res[-1])))
        A("s_cbranch_vccz %s" % done)
    budget_loop(top)
    A.label(done)


OOL = []


def interleave(c1, c2):
    out, i2 = [], 0
    for k, x in enumerate(c1):
        out.append(x)
        want = (k + 1) * len(c2) // max(1, len(c1) - 4)
        while i2 < min(want, len(c2)):
            out.append(c2[i2]); i2 += 1
    return out + c2[i2:]


class Cap:
    def __enter__(self):
        self.n = len(A.ins); return self

    def __exit__(self, *a):
        self.lines = [x.text for x in A.ins[self.n:]]
        del A.ins[self.n:]


def fast_poll_full(issue, mid, post, fin, res, a):
    top, again, done = newlabel("FP"), newlabel("FPR"), newlabel("FPD")
    A.label(top)
    issue(a)
    A("s_waitcnt vmcnt(0)")
    with Cap() as c2:
        post(a)
    if mid:
        with Cap() as c1:
            mid(a)
        for l in interleave(c1.lines, c2.lines):
            A(l)
    else:
        for l in c2.lines:
            A(l)
    if fin:
        fin(a)
    A("v_cmp_u_f32 vcc, %s, %s" % (v(res[0]), v(res[-1])))
    A("s_cbranch_vccnz %s" % again)
    A.label(done)
    OOL.append([again + ":", "s_sub_u32 %s, %s, 1" % (sBud, sBud), "s_cbranch_scc0 %s" % top,
                "s_mov_b32 %s, 0" % sBud, "s_branch %s" % done])


def fast_poll(issue, mid, post, fin, res, a):
    if not P.get("MPOLL", 1):
        return fast_poll_full(issue, mid, post, fin, res, a)
    with Cap() as ci:
        issue(a)
    loads = [l for l in ci.lines if l.startswith("global_load")]
    small = len(loads) == 3
    chk, again, done = newlabel("MPC"), newlabel("MPR"), newlabel("MPD")
    if small:
        n = 4 if "dwordx4" in loads[0] else 2
        for e in range(n):
            A("v_mov_b32 %s, 0" % v(a + 8 + e))
    for l in ci.lines:
        A(l)
    A.label(chk)
    A("s_waitcnt vmcnt(0)")
    t = a + 20
    A("v_add_f32 %s, %s, %s" % (v(t), v(a), v(a + 1)))
    A("v_add_f32 %s, %s, %s" % (v(t + 1), v(a + 2), v(a + 3)))
    A("v_add_f32 %s, %s, %s" % (v(t + 2), v(a + 4), v(a + 5)))
    A("v_add_f32 %s, %s, %s" % (v(t + 3), v(a + 6), v(a + 7)))
    if small:
        A("v_add_f32 %s, %s, %s" % (v(t), v(t), v(a + 8)))
        A("v_add_f32 %s, %s, %s" % (v(t + 1), v(t + 1), v(a + 9)))
        if n == 4:
            A("v_add_f32 %s, %s, %s" % (v(t + 2), v(t + 2), v(a + 10)))
            A("v_add_f32 %s, %s, %s" % (v(t + 3), v(t + 3), v(a + 11)))
    A("v_add_f32 %s, %s, %s" % (v(t), v(t), v(t + 1)))
    A("v_add_f32 %s, %s, %s" % (v(t + 2), v(t + 2), v(t + 3)))
    A("v_cmp_u_f32 vcc, %s, %s" % (v(t), v(t + 2)))
    A("s_cbranch_vccnz %s" % again)
    A.label(done)
    with Cap() as c2:
        post(a)
    if mid:
        with Cap() as c1:
            mid(a)
        for l in interleave(c1.lines, c2.lines):
            A(l)
    else:
        for l in c2.lines:
            A(l)
    if fin:
        fin(a)
    blk = [again + ":"]
    if small:
        em = [l for l in ci.lines if l.startswith("s_mov") and "-1" not in l]
        blk += em + ["s_and_b64 exec, exec, vcc", loads[0]]
    blk += ["s_mov_b64 exec, vcc"] + loads[-2:] + ["s_mov_b64 exec, -1",
            "s_sub_u32 %s, %s, 1" % (sBud, sBud), "s_cbranch_scc0 %s" % chk,
            "s_mov_b32 %s, 0" % sBud, "s_waitcnt vmcnt(0)", "s_branch %s" % done]
    OOL.append(blk)


def opt_poll(small, smask, sregs, loads, lregs, post, res, ck=None):
    top, done = newlabel("OP"), newlabel("OPD")
    cand, sm = "s[70:71]", "s[64:65]"
    regs = list(lregs) + (list(sregs) if small else [])
    if len(regs) % 2:
        regs.append(regs[-1])
    if small:
        smov64(sm, smask)
    A("s_mov_b64 %s, -1" % cand)
    if ck is not None:
        cycg(ck)
        if STAMP == 6:
            A("s_mov_b32 s77, %s" % sBud)
    A.label(top)
    if small:
        A("s_and_b64 exec, %s, %s" % (cand, sm))
        A(small)
        A("s_mov_b64 exec, %s" % cand)
    for l in loads:
        A(l)
    A("s_sub_u32 %s, %s, 1" % (sBud, sBud))
    A("s_cbranch_scc1 %s_X" % top)
    A("s_waitcnt vmcnt(0)")
    for i in range(0, len(regs), 2):
        A("v_cmpx_o_f32 vcc, %s, %s" % (v(regs[i]), v(regs[i + 1])))
    A("s_andn2_b64 %s, %s, exec" % (cand, cand))
    A("s_mov_b64 exec, %s" % cand)
    A("s_cbranch_scc1 %s" % top)
    A.label(done)
    A("s_mov_b64 exec, -1")
    if ck is not None:
        cycg(ck + 1)
        if STAMP == 6:
            A("s_sub_u32 s77, s77, %s" % sBud)
            A("v_writelane_b32 v15, s77, %d" % (48 + ck))
    post()
    if ck is not None:
        cycg(ck + 2)
    OOL.append([top + "_X:", "s_mov_b32 %s, 0" % sBud, "s_waitcnt vmcnt(0)", "s_branch %s" % done])


def split_poll(small, smask, sregs, loads, lregs, pre, post, ck=None):
    top, fm, slow, done = newlabel("SP"), newlabel("SPF"), newlabel("SPS"), newlabel("SPD")
    cand, sm = "s[70:71]", "s[64:65]"
    sr = list(sregs) + ([sregs[-1]] if len(sregs) % 2 else [])
    lr = list(lregs)
    smov64(sm, smask)
    A("s_mov_b64 %s, -1" % cand)
    if ck is not None:
        cycg(ck)
    A("s_mov_b64 exec, %s" % sm)
    A(small)
    A("s_mov_b64 exec, -1")
    for l in loads:
        A(l)
    A("s_waitcnt vmcnt(%d)" % len(loads))
    for i in range(0, len(sr), 2):
        A("v_cmpx_o_f32 vcc, %s, %s" % (v(sr[i]), v(sr[i + 1])))
    A("s_andn2_b64 vcc, %s, exec" % cand)
    A("s_mov_b64 exec, -1")
    A("s_cbranch_scc1 %s" % slow)
    A.label(fm)
    pre()
    A("s_branch %s_C" % top)
    A.label(top)
    for l in loads:
        A(l)
    A("s_sub_u32 %s, %s, 1" % (sBud, sBud))
    A("s_cbranch_scc1 %s_X" % top)
    A.label(top + "_C")
    A("s_waitcnt vmcnt(0)")
    for i in range(0, len(lr), 2):
        A("v_cmpx_o_f32 vcc, %s, %s" % (v(lr[i]), v(lr[i + 1])))
    A("s_andn2_b64 %s, %s, exec" % (cand, cand))
    A("s_mov_b64 exec, %s" % cand)
    A("s_cbranch_scc1 %s" % top)
    A.label(done)
    A("s_mov_b64 exec, -1")
    if ck is not None:
        cycg(ck + 1)
    post()
    if ck is not None:
        cycg(ck + 2)
    OOL.append([top + "_X:", "s_mov_b32 %s, 0" % sBud, "s_waitcnt vmcnt(0)", "s_branch %s" % done])
    allr = lr + sr
    blk = [slow + ":", "s_waitcnt vmcnt(0)"]
    blk += ["v_cmpx_o_f32 vcc, %s, %s" % (v(allr[i]), v(allr[i + 1])) for i in range(0, len(allr), 2)]
    blk += ["s_andn2_b64 %s, %s, exec" % (cand, cand), "s_cbranch_scc0 %s_E" % slow,
            "s_and_b64 exec, %s, %s" % (cand, sm), small, "s_mov_b64 exec, %s" % cand] + loads
    blk += ["s_sub_u32 %s, %s, 1" % (sBud, sBud), "s_cbranch_scc0 %s" % slow, "s_mov_b32 %s, 0" % sBud, "s_waitcnt vmcnt(0)",
            slow + "_E:", "s_mov_b64 exec, -1", "s_mov_b64 %s, -1" % cand, "s_branch %s" % fm]
    OOL.append(blk)


def stats_math(c, t, eps_mul, eps_add):
    A("v_add_f32_dpp %s, %s, %s %s" % (v(t), v(c), v(c), X1))
    for m in (X2, HM, RM):
        A("v_add_f32_dpp %s, %s, %s %s" % (v(t), v(t), v(t), m))
    A("v_readlane_b32 %s, %s, 0" % (sT0, v(t)))
    A("v_readlane_b32 %s, %s, 16" % (sT1, v(t)))
    A("v_mov_b32 %s, %s" % (v(t + 2), f32(1 / 512)))
    A("v_mov_b32 %s, %s" % (v(t + 3), f32(eps_add)))
    A("v_mul_f32 %s, %s, %s" % (v(t + 1), sT0, v(t + 2)))
    A("v_mul_f32 %s, %s, %s" % (v(t), sT1, v(t + 2)))
    A("v_fma_f32 %s, -%s, %s, %s" % (v(t), v(t + 1), v(t + 1), v(t)))
    if eps_mul == 1.0:
        A("v_add_f32 %s, abs(%s), %s" % (v(t), v(t), v(t + 3)))
    else:
        A("v_mov_b32 %s, %s" % (v(t + 2), f32(eps_mul)))
        A("v_fma_f32 %s, abs(%s), %s, %s" % (v(t), v(t), v(t + 2), v(t + 3)))
    A("v_rsq_f32 %s, %s" % (v(t), v(t)))
    A("v_mul_f32 %s, %s, %s" % (v(t + 1), v(t + 1), v(t)))


def store_intra(insn):
    ls, le = newlabel("SAFE"), newlabel("SEND")
    A("s_cmp_eq_u32 %s, 0" % sFast)
    A("s_cbranch_scc1 %s" % ls)
    for i in insn:
        A(i)
    A.label(le)
    OOL.append([ls + ":"] + [i + (" sc1" if i.startswith("global_store") else "") for i in insn] + ["s_branch %s" % le])


_st = {"G": 0, "S": 0}


def stamp(kind, idx=None):
    if idx is None:
        n = _st[kind]; _st[kind] += 1
    else:
        n = idx
    if "ECHO" in P and kind == "G" and P["ECHO"] % 100 == n:
        lab = newlabel("ECHO")
        A("s_cmp_lg_u32 %s, %d" % (sL, P["ECHO"] // 100))
        A("s_cbranch_scc1 %s" % lab)
        A("s_waitcnt lgkmcnt(0)")
        A("s_memrealtime s[80:81]")
        A("s_waitcnt lgkmcnt(0)")
        A.label(lab)
    if not STAMP:
        return
    if STAMP == 2 and not (kind == "G" and n in (2, 6)):
        return
    if STAMP in (4, 5, 6):
        return
    if STAMP == 3:
        A("s_lshl_b32 s76, %s, 4" % sL)
        A("s_add_u32 m0, s76, %d" % n)
        A("s_nop 0")
        A("v_writelane_b32 v15, %s, m0" % sBud)
        return
    A("s_waitcnt lgkmcnt(0)")
    A("s_memrealtime s[74:75]")
    A("s_lshl_b32 s76, %s, 4" % sL)
    A("s_add_u32 m0, s76, %d" % n)
    A("s_waitcnt lgkmcnt(0)")
    A("v_writelane_b32 v15, s74, m0")


def cyc(k):
    if STAMP == 4:
        A("s_memtime s[%d:%d]" % (80 + 2 * k, 81 + 2 * k))


def cycs(k):
    if STAMP == 5:
        A("s_memtime s[%d:%d]" % (80 + 2 * k, 81 + 2 * k))


def cycg(k):
    if STAMP == 6:
        A("s_memtime s[%d:%d]" % (80 + 2 * k, 81 + 2 * k))


def cycs_dump(n):
    if STAMP == 5:
        A("s_waitcnt lgkmcnt(0)")
        for k in range(n):
            A("v_writelane_b32 v15, s%d, %d" % (80 + 2 * k, 32 + k))


def cyc_dump(n):
    if STAMP == 4:
        A("s_waitcnt lgkmcnt(0)")
        for k in range(n):
            A("v_writelane_b32 v15, s%d, %d" % (80 + 2 * k, 32 + k))


def stamp_init():
    if STAMP:
        A("v_mov_b32 v15, 0")
        A("v_writelane_b32 v15, s78, 15")


def stamp_dump():
    if not STAMP:
        return
    A("s_mul_i32 s76, s2, 12")
    A("s_add_u32 s76, s76, %s" % sWave)
    A("s_lshl_b32 s76, s76, 8")
    A("s_add_u32 s76, s76, 0x800000")
    A("v_lshlrev_b32 v13, 2, v0")
    A("v_add_u32 v13, s76, v13")
    A("global_store_dword v13, v15, %s" % pWS)


def if_layer0():
    lab = newlabel("NOTL0")
    A("s_cmp_lg_u32 %s, 0" % sL)
    A("s_cbranch_scc1 %s" % lab)
    return lab


def ssync(k):
    top = newlabel("SSY")
    A("v_mov_b32 v5, %d" % (FLG + 4 + 4 * k))
    A("v_mov_b32 v6, 1")
    set_exec(1)
    A("ds_add_u32 v5, v6")
    set_exec(-1)
    A.label(top)
    A("ds_read_b32 v6, v5")
    A("s_waitcnt lgkmcnt(0)")
    A("v_readfirstlane_b32 %s, v6" % sT0)
    A("s_cmp_eq_u32 %s, 4" % sT0)
    done = newlabel("SSD")
    A("s_cbranch_scc1 %s" % done)
    budget_loop(top)
    A.label(done)


MFMA = "v_mfma_f32_16x16x32_bf16"
A("s_getpc_b64 %s" % pPC)
A("s_cmp_ge_u32 s2, 256")
A("s_cbranch_scc1 L_END")
if STAMP or "ECHO" in P:
    A("s_memrealtime s[78:79]")
A("s_load_dwordx16 s[16:31], s[0:1], 0")
A("s_load_dwordx8 s[32:39], s[0:1], 64")
A("s_load_dwordx2 s[40:41], s[0:1], 96")
if P["PREF"]:
    A("v_lshlrev_b32 v3, 4, v0")
    if P["PREF"] == 2:
        A("s_bfe_u32 %s, s2, 0x40003" % sT0)
        A("v_lshrrev_b32 v1, 6, v0")
        A("v_cmp_eq_u32 vcc, %s, v1" % sT0)
        A("s_and_b64 exec, exec, vcc")
    A("global_load_dwordx4 v[140:143], v3, %s offset:-4" % pPC)
    if P["PREF"] == 2:
        A("s_mov_b64 exec, -1")
A("v_lshrrev_b32 v1, 6, v0")
A("v_and_b32 v0, 63, v0")
A("v_readfirstlane_b32 %s, v1" % sWave)
A("s_and_b32 %s, s2, 7" % sJ)
A("s_lshr_b32 %s, s2, 3" % sS)
A("s_lshr_b32 %s, s2, 6" % sHi)
A("s_and_b32 %s, %s, 7" % (sLo, sS))
A("s_lshr_b32 %s, s2, 4" % sR1)
A("s_and_b32 %s, %s, 1" % (sC1, sS))
A("s_mov_b32 %s, 0" % sL)
A("s_mov_b32 %s, 1000000" % sBud)
A("v_and_b32 v1, 15, v0")
A("v_lshrrev_b32 v2, 4, v0")
A("v_lshlrev_b32 v3, 4, v0")
A("s_mov_b32 %s, %s" % (sU, sWave))
A("s_sub_u32 %s, %s, 4" % (sWave, sWave))
A("s_cbranch_scc0 L_G")

WQ, WO, W1R, W2R, XR, DR, SS = 16, 32, 48, 56, 84, 112, 120
(sXa, sXb, sOrd, sX1a, sX1b, sHrd, sE1w, sE1sw, sAg, sAst, sQw, sCq0, sCq1, sCrd, sMlrd, sE2w, sE3w, sE4w, sE4sw, sE4rw, sE5w,
 sTr, sClr, sTr1) = range(144, 168)
SN = 8
sCsP = 139
sDma = 138
X0 = 132
ga, gb, gc = SS, SS + 4, SS + 8
STM = 0x0018001400120011
W2S = [int(c) for c in str(P.get("W2S", "x304"))[1:]]
assert sum(W2S) == 7


def w2_dma(part):
    k0_ = sum(W2S[:part])
    n = W2S[part]
    if not n:
        return
    sexpr(sT0, [(sJ, 224 * 1024), (sLo, 128), (sU, 7 * 8192)], k0_ * 8192)
    padd(pT, pW2, sT0)
    sexpr(sT1, [(sU, 7 * 1024)], LW_2)
    for k in range(k0_, k0_ + n):
        A("s_add_u32 m0, %s, %d" % (sT1, 1024 * k))
        A("global_load_lds_dwordx4 %s, %s%s" % (v(sDma), pT, NT))
        if k < k0_ + n - 1:
            padd(pT, pT, 8192)


W2BLK = "pass"
WOBLK = r'''# wo tile: 16 x 1 KB, 4 per wave
A("v_lshrrev_b32 v4, 3, v0")
A("v_and_b32 v5, 7, v0")
vexpr(sDma, [(4, 1024), (5, 16)])
sexpr(sT0, [(sJ, 512 * 1024), (sHi, 128 * 1024), (sU, 32 * 1024), (sLo, 128)])
padd(pT, pWO, sT0)
sexpr(sT1, [(sU, 4096)], LW_O)
for k in range(4):
    A("s_add_u32 m0, %s, %d" % (sT1, 1024 * k))
    A("global_load_lds_dwordx4 %s, %s%s" % (v(sDma), pT, NT))
    if k < 3:
        padd(pT, pT, 8192)
# w1 DMA: unit n = 64 i + l (i = 2u, 2u+1 clamped to 6): row = n/14, piece = n%14
sexpr(sT0, [(sR1, 32 * 3584), (sJ, 448), (sC1, 224)])
padd(pT, pW1, sT0)
for k in range(2):
    A("s_lshl_b32 %s, %s, 1" % (sT1, sU))
    if k:
        A("s_add_u32 %s, %s, 1" % (sT1, sT1))
        A("s_min_u32 %s, %s, 6" % (sT1, sT1))
    A("s_lshl_b32 %s, %s, 6" % (sT0, sT1))
    A("v_add_u32 v4, %s, v0" % sT0)
    A("v_mul_u32_u24 v5, 4682, v4")
    A("v_lshrrev_b32 v5, 16, v5")
    A("v_mul_u32_u24 v7, 14, v5")
    A("v_sub_u32 v4, v4, v7")
    A("v_mul_u32_u24 v5, 3584, v5")
    A("v_lshl_add_u32 v4, v4, 4, v5")
    A("s_lshl_b32 %s, %s, 10" % (sT0, sT1))
    A("s_add_u32 m0, %s, %d" % (sT0, LW_1))
    A("global_load_lds_dwordx4 v4, %s%s" % (pT, NT))
for n in range(448):
    assert (n * 4682) >> 16 == n // 14
'''
A("s_add_u32 %s, %s, 8" % (sWave, sU))
A("v_mov_b32 v4, %d" % FLG)
A("v_mov_b32 v6, 0")
A("v_mov_b32 v7, 0")
A("ds_write_b64 v4, v[6:7]")
A("ds_write_b64 v4, v[6:7] offset:8")
for i in range(4):
    A("v_mov_b32 %s, 0x%08x" % (v(SN + i), SENT))
A("s_and_b32 %s, %s, 1" % (sK0, sU))
A("s_lshr_b32 %s, %s, 1" % (sK1, sU))
sexpr(sT0, [(sS, 6144), (sU, 1536)])
A("v_add_u32 v7, %s, v3" % sT0)
sexpr(sT0, [("s2", 1280), (sK0, LSTR), (sK1, 640)], E3)
A("v_add_u32 v12, %s, v3" % sT0)
A("s_mul_i32 %s, %s, %d" % (sT0, sJ, JSTR))
A("v_lshrrev_b32 v13, 3, v0")
A("v_and_b32 v14, 7, v0")
vexpr(SS, [(13, 8192), (14, 16)])
sexpr(sT1, [(sHi, 128 * 8192), (sU, 32 * 8192), (sJ, 1024), (sLo, 128)])
sexpr(sT2, [(sU, 1024)])
A("v_add_u32 %s, %s, v3" % (v(SS + 1), sT2))
A("s_waitcnt lgkmcnt(0)")
padd(pWJ, pWS, sT0)
padd(pT, pWQ, sT1)
A("v_mov_b32 v4, 0")
A("s_or_b32 %s, s2, %s" % (sT0, sU))
A("s_cbranch_scc1 S_NONONCE")
A("s_memrealtime %s" % pN)
A("s_waitcnt lgkmcnt(0)")
A("s_or_b32 s48, s48, 1")
A("v_mov_b32 %s, s49" % v(SS + 3))
A("v_mov_b32 %s, s48" % v(SS + 2))
set_exec(1)
A("global_store_dwordx2 v4, %s, %s sc1" % (v(SS + 2, 2), pDBG))
set_exec(-1)
A.label("S_NONONCE")
def nonce_fetch():
    A("s_cmp_lg_u32 %s, 3" % sU)
    A("s_cbranch_scc1 S_NP_SKIP")
    A("v_mov_b32 v4, 0")
    sleep(P.get("D_N", 0))
    if P.get("NE", 1):
        A("s_waitcnt vmcnt(8)")
        A("v_mov_b32 v6, v136")
        A("v_mov_b32 v7, v137")
        A("s_branch S_NP_C")
    A.label("S_NP")
    A("global_load_dwordx2 v[6:7], v4, %s sc1" % pDBG)
    A("s_waitcnt vmcnt(0)")
    A.label("S_NP_C")
    A("v_cmp_eq_u32 vcc, 0, v6")
    A("s_cbranch_vccz S_NP_DONE")
    A("s_sleep %d" % P.get("NSL", 2))
    budget_loop("S_NP")
    A.label("S_NP_DONE")
    A("v_mov_b32 v5, %d" % NONCE)
    A("ds_write_b64 v5, v[6:7]")
    A("s_waitcnt lgkmcnt(0)")
    if P.get("NLATE"):
        stamp("S", 10)
    A.label("S_NP_SKIP")


if not P.get("NLATE"):
    A("v_mov_b32 %s, v7" % v(SS + 4))
    nonce_fetch()
    A("v_mov_b32 v7, %s" % v(SS + 4))
if P.get("NE", 1) and P.get("NLATE"):
    A("s_cmp_lg_u32 %s, 3" % sU)
    A("s_cbranch_scc1 S_NE_SKIP")
    A("global_load_dwordx2 v[136:137], v4, %s sc1" % pDBG)
    A.label("S_NE_SKIP")
A("global_load_dwordx4 %s, %s, %s%s" % (v(X0, 4), v(SS + 1), pX, NT))
A("s_lshl_b32 %s, %s, 12" % (sT1, sU))
for i in range(4):
    A("s_add_u32 m0, %s, %d" % (sT1, LW_Q + 1024 * i))
    A("global_load_lds_dwordx4 %s, %s%s" % (v(SS), pT, NT))
    if i < 3:
        padd(pT, pT, 8 * 8192)
if P.get("NOCLR"):
    set_exec(1)
A("global_store_dwordx4 v7, %s, %s sc1" % (v(SN, 4), pWJ))
set_exec(1 if P.get("NOCLR") else 0xFFFFFFFF)
A("global_store_dwordx4 v7, %s, %s offset:1024 sc1" % (v(SN, 4), pWJ))
set_exec(1 if P.get("NOCLR") else 0xFFFFFFFFFF)
A("global_store_dwordx4 v12, %s, %s sc1" % (v(SN, 4), pWS))
set_exec(-1)
if P.get("WF", 0) == 1:
    exec(WOBLK)
    exec(W2BLK)
A("s_barrier")
if P.get("WF", 0) == 2:
    exec(WOBLK)
    exec(W2BLK)
if P.get("WF", 0) == 3:
    exec(WOBLK)
stamp_init()
stamp("S", 9)
if P.get("NLATE"):
    nonce_fetch()
A("s_getreg_b32 %s, hwreg(HW_REG_XCC_ID)" % sXcc)
A("s_and_b32 %s, %s, 7" % (sXcc, sXcc))
A("s_mov_b32 s42, s40")
A("s_mov_b32 s43, s41")
A("s_mov_b32 %s, 0" % sFast)
sexpr(sT0, [(sS, 6144), (sU, 1536)])
A("v_add_u32 %s, %s, v3" % (v(sClr), sT0))
A("v_mov_b32 v12, 0x3f803f80")
vexpr(13, [(0, 4)], None, XOP + 4 * RS_)
A("ds_write_b32 v13, v12")
vexpr(13, [(1, 4)], None, X1OP + 4 * RS1)
A("ds_write_b32 v13, v12")
A("v_lshrrev_b32 v12, 2, v1")
A("v_min_u32 v13, 4, v1")
A("v_and_b32 v14, 3, v1")
vexpr(sXa, [(12, RS_), (2, 16)], None, XOP)
sexpr(sT0, [(sU, 64)], XOP)
vexpr(sXb, [(13, RS_), (2, 16)], sT0)
vexpr(sOrd, [(14 if P.get("WIDE", 0) else 12, RS_), (2, 16)], None, OOP)
vexpr(sX1a, [(12, RS1), (2, 16)], None, X1OP)
vexpr(sX1b, [(13, RS1), (2, 16)], None, X1OP)
vexpr(sHrd, [(2, 16)], None, HOP)
sexpr(sT0, [(sHi, 2048), (sLo, 256), (sU, 64)], E1)
vexpr(sE1w, [(2, 8192), (1, 4)], sT0)
vexpr(SS + 3, [(2, 128)])
A("v_lshlrev_b32 %s, 2, v12" % v(SS + 4))
A("v_sub_u32 %s, %s, %s" % (v(SS + 3), v(SS + 3), v(SS + 4)))
sexpr(sT0, [(sLo, 512), (sHi, 32), (sU, 8)], E1S + 4)
A("v_add_u32 %s, %s, %s" % (v(sE1sw), sT0, v(SS + 3)))
sexpr(sT0, [(sR1, 8)], E4S + 4)
A("v_add_u32 %s, %s, %s" % (v(sE4sw), sT0, v(SS + 3)))
sexpr(sT0, [(sR1, 64)], E4R)
vexpr(sE4rw, [(14, 1024), (2, 16)], sT0)
A("v_and_b32 %s, 31, v0" % v(SS + 3))
A("v_lshrrev_b32 %s, 5, v0" % v(SS + 4))
sexpr(sT0, [(sHi, 8192), (sU, 512)], E1)
vexpr(sAg, [(SS + 4, 4096), (SS + 3, 16)], sT0)
sexpr(sT0, [(sLo, 512), (sHi, 128)], E1S)
vexpr(sAst, [(1, 8), (2, 4)], sT0)
sexpr(sT0, [(sU, RS_)], QOP)
vexpr(sQw, [(SS + 3, 8), (SS + 4, 4)], sT0)
A("v_bfe_u32 %s, v0, 4, 1" % v(SS + 5))
A("v_bfe_u32 %s, v0, 2, 2" % v(SS + 6))
A("v_and_b32 %s, 3, v0" % v(SS + 7))
sexpr(sT0, [(sU, 288)], AP)
vexpr(sCrd, [(SS + 4, 8 * APB), (1, 16)], sT0)
A("v_mul_u32_u24 %s, %d, %s" % (v(SS + 5), APB, v(SS + 5)))
A("v_add_u32 %s, %s, %s" % (v(sCrd), v(sCrd), v(SS + 5)))
sexpr(sT0, [(sU, 64)], ML)
vexpr(sMlrd, [(SS + 4, 32)], sT0)
sexpr(sT0, [(sU, 32 * 512), (sS, 512)], E2)
vexpr(sE2w, [(0, 8)], sT0)
sexpr(sC, [(sU, 256), (sS, 8)], E2S)
if P.get("E3B", 1):
    sexpr(sT0, [(sLo, 16384), (sK1, 8192), (sJ, 128), (sHi, 32), (sK0, 4096)], E3)
    vexpr(sE3w, [(2, 1024), (1, 2)], sT0)
elif P.get("E3L", 1):
    sexpr(sT0, [(sLo, 32768), (sK1, 16384), (sJ, 256), (sHi, 64), (sK0, 8192)], E3)
    vexpr(sE3w, [(2, 2048), (1, 4)], sT0)
else:
    sexpr(sT0, [(sLo, 32768), (sK1, 16384), (sJ, 2048), (sHi, 512), (sK0, 256)], E3)
    vexpr(sE3w, [(0, 4)], sT0)
sexpr(sT0, [(sR1, 896), (sC1, 448), (sU, 128)], E4)
vexpr(sE4w, [(2, 16 * 896), (1, 4)], sT0)
sexpr(sT0, [("s2", 256), (sU, 64)], E5)
if P.get("WIDE", 0):
    vexpr(sE5w, [(2, 16)], sT0)
else:
    vexpr(sE5w, [(1, 4)], sT0)
A("v_lshl_add_u32 %s, v2, 3, v12" % v(SS + 3))
sexpr(sT0, [(sU, 32)])
vexpr(sTr, [(SS + 3, 128), (14, 8)], sT0)
sexpr(sT0, [(sU, 64)])
vexpr(sTr1, [(SS + 3, 224), (14, 8)], sT0)
stamp("S", 11)
A("s_waitcnt vmcnt(%d)" % {0: 0, 1: 13, 2: 13, 3: 6}[P.get("WF", 0)])
stamp("S", 12)
sexpr(sT0, [(sU, RS_)], XOP)
vexpr(4, [(1, 16)], sT0)
A("s_lshl_b32 %s, %s, 4" % (sT0, sHi))
A("s_mov_b32 %s, 0xffff" % sT2)
A("s_mov_b32 %s, 0" % sT3)
A("s_lshl_b64 exec, s[14:15], %s" % sT0)
A("ds_write_b128 v4, %s" % v(X0, 4))
set_exec(-1)
for i in range(4):
    A("v_lshlrev_b32 %s, 16, %s" % (v(SS + 2 * i), v(X0 + i)))
    A("v_and_b32 %s, 0xffff0000, %s" % (v(SS + 2 * i + 1), v(X0 + i)))
A("v_add_f32 v4, %s, %s" % (v(SS), v(SS + 1)))
A("v_mul_f32 v5, %s, %s" % (v(SS), v(SS)))
A("v_fmac_f32 v5, %s, %s" % (v(SS + 1), v(SS + 1)))
for i in range(2, 8):
    A("v_add_f32 v4, v4, %s" % v(SS + i))
    A("v_fmac_f32 v5, %s, %s" % (v(SS + i), v(SS + i)))
for m in (X1, X2, HM, RM):
    A("v_add_f32_dpp v4, v4, v4 %s" % m)
    A("v_add_f32_dpp v5, v5, v5 %s" % m)
g_allreduce("v_add_f32", 4, 6)
g_allreduce("v_add_f32", 5, 6)
A("v_mul_f32 v4, %s, v4" % f32(1 / 512))
A("v_mul_f32 v5, %s, v5" % f32(1 / 512))
A("v_fma_f32 v5, -v4, v4, v5")
A("v_max_f32 v5, 0, v5")
A("v_add_f32 v5, %s, v5" % f32(1e-5))
A("v_rsq_f32 v5, v5")
sexpr(sT0, [(sU, 8)], ST0)
A("v_mov_b32 v6, %s" % sT0)
A("ds_write_b64 v6, v[4:5]")
A("s_waitcnt lgkmcnt(0)")
ssync(0)
stamp("S", 0)
for t in range(4):
    A("ds_read_b128 %s, %s offset:%d" % (v(XR + 4 * t, 4), v(sXa), 64 * t))
for t in range(4):
    for hh in range(2):
        A("ds_read_b64_tr_b16 %s, %s offset:%d" % (v(WQ + 4 * t + 2 * hh, 2), v(sTr), LW_Q + (32 * t + 4 * hh) * 128))
vexpr(4, [(2, 8)], None, ST0)
A("ds_read_b64 v[6:7], v4")
A("v_mov_b32 v4, %d" % NONCE)
A("ds_read_b64 v[12:13], v4")
for i in range(4):
    A("v_mov_b32 %s, 0x3f803f80" % v(XR + 16 + i))
A("s_waitcnt lgkmcnt(0)")
for t in range(4):
    A("%s %s, %s, %s, %s" % (MFMA, v(DR, 4), v(XR + 4 * t, 4), v(WQ + 4 * t, 4), "0" if t == 0 else v(DR, 4)))
    A("%s %s, %s, %s, %s" % (MFMA, v(DR + 4, 4), v(XR + 16, 4), v(WQ + 4 * t, 4), "0" if t == 0 else v(DR + 4, 4)))
A("v_fma_f32 %s, -v6, %s, %s" % (v(DR), v(DR + 4), v(DR)))
A("v_mul_f32 %s, %s, v7" % (v(DR), v(DR)))
A("v_mov_b32 %s, %s" % (v(sCsP), v(DR + 4)))
if P.get("QB", 0):
    A("v_mov_b32_dpp %s, %s %s" % (v(DR + 2), v(DR), X1))
    A("v_mov_b32 %s, v12" % v(DR + 1))
    sexpr(sT0, [(sJ, 32768), (sHi, 2048), (sLo, 256), (sU, 64)], E1T)
    vexpr(4, [(2, 8192), (1, 4)], sT0)
    A("v_cvt_pk_bf16_f32 %s, %s, %s" % (v(DR), v(DR), v(DR + 2)))
    stamp("S", 1)
    set_exec(0x5555555555555555)
    A("global_store_dwordx2 v4, %s, %s sc1" % (v(DR, 2), pWS))
    set_exec(-1)
else:
    A("v_mov_b32 %s, v12" % v(DR + 1))
    sexpr(sT0, [(sJ, 65536), (sHi, 4096), (sLo, 512), (sU, 128)], E1T)
    vexpr(4, [(2, 16384), (1, 8)], sT0)
    stamp("S", 1)
    A("global_store_dwordx2 v4, %s, %s sc1" % (v(DR, 2), pWS))
A("v_readfirstlane_b32 s48, v12")
A("v_readfirstlane_b32 s49, v13")
A("s_cmp_lg_u32 %s, 1" % sU)
A("s_cbranch_scc1 S_NOREC")
RS = P.get("RS", 16)
sexpr(sT0, [(sJ, 32 * RS), (sS, RS)], REC)
A("v_mov_b32 v4, %s" % sT0)
A("v_mov_b32 v14, %s" % sXcc)
set_exec(1)
A("global_store_dwordx3 v4, v[12:14], %s sc1" % pWS)
set_exec(-1)
A.label("S_NOREC")


def PT1():
    padd(pT, pWJ, LSTR)
    A("global_load_dwordx4 v[140:143], %s, %s sc1" % (v(sClr), pT))
    A("s_mov_b32 exec_hi, 0")
    A("global_load_dwordx4 v[140:143], %s, %s offset:1024 sc1" % (v(sClr), pT))
    A("s_mov_b64 exec, -1")


def ptouch():
    A("global_load_dwordx4 v[140:143], %s, %s sc1" % (v(sClr), pWJ))
    set_exec(0xFFFFFFFF)
    A("global_load_dwordx4 v[140:143], %s, %s offset:1024 sc1" % (v(sClr), pWJ))
    set_exec(-1)
    if P.get("PTX", 0):
        sexpr(sT0, [("s2", 1280), (sK0, LSTR), (sK1, 640)], E3)
        A("v_add_u32 v7, %s, v3" % sT0)
        set_exec(0xFFFFFFFFFF)
        A("global_load_dwordx4 v[140:143], v7, %s sc1" % pWS)
        set_exec(-1)


def wt_slice(base):
    A("global_store_dwordx4 %s, %s, %s sc1" % (v(sClr), v(SN, 4), base))
    A("s_mov_b32 exec_hi, 0")
    A("global_store_dwordx4 %s, %s, %s offset:1024 sc1" % (v(sClr), v(SN, 4), base))
    A("s_mov_b64 exec, -1")


def half_treduce(r):
    A("v_permlane32_swap_b32 %s, %s" % (v(r), v(r + 2)))
    A("v_permlane32_swap_b32 %s, %s" % (v(r + 1), v(r + 3)))
    A("v_add_f32 %s, %s, %s" % (v(r), v(r), v(r + 2)))
    A("v_add_f32 %s, %s, %s" % (v(r + 1), v(r + 1), v(r + 3)))


AG = ["global_load_dwordx4 %s, %s, %s sc1" % (v(ga, 4), v(sAg), pWJ),
      "global_load_dwordx4 %s, %s, %s offset:2048 sc1" % (v(gb, 4), v(sAg), pWJ)]
AGC = [(ga + e, gb + e) for e in range(4)]
if P.get("QB", 0):
    sexpr(sT0, [(sJ, 32768)], E1T - E1)
    A("v_add_u32 v4, %s, %s" % (sT0, v(sAg)))
    sexpr(sT0, [(sU, 64 * RS)], REC)
    vexpr(6, [(0, RS)], sT0)
    A("s_mov_b32 s61, 0x00003f80")
    A("s_mov_b32 s58, 0x3f800000")
    A("s_mov_b64 s[70:71], -1")
    sleep(P.get("D_A0", 20))
    TQ = XR
    A.label("S_AG0")
    A("global_load_dwordx4 %s, v4, %s sc1" % (v(TQ, 4), pWS))
    A("global_load_dwordx4 %s, v4, %s offset:2048 sc1" % (v(TQ + 4, 4), pWS))
    A("s_sub_u32 %s, %s, 1" % (sBud, sBud))
    A("s_cbranch_scc1 S_AG0_X")
    A("s_waitcnt vmcnt(0)")
    for i in range(4):
        A("v_cmpx_eq_u32 vcc, s48, %s" % v(TQ + 2 * i + 1))
    A("s_andn2_b64 s[70:71], s[70:71], exec")
    A("s_mov_b64 exec, s[70:71]")
    A("s_cbranch_scc1 S_AG0")
    A.label("S_AG0_DONE")
    A("s_mov_b64 exec, -1")
    OOL.append(["S_AG0_X:", "s_mov_b32 %s, 0" % sBud, "s_waitcnt vmcnt(0)", "s_branch S_AG0_DONE"])
    A("global_load_dwordx3 v[12:14], v6, %s sc1" % pWS)
    stamp("S", 2)
    for e, (src, sel) in enumerate(((0, "s61"), (0, "s58"), (2, "s61"), (2, "s58"))):
        A("v_dot2_f32_bf16 %s, %s, %s, 0" % (v(ga + e), v(TQ + src), sel))
        A("v_dot2_f32_bf16 %s, %s, %s, %s" % (v(ga + e), v(TQ + 4 + src), sel, v(ga + e)))
    half_treduce(ga)
    A("v_cvt_pk_bf16_f32 %s, %s, %s" % (v(ga), v(ga), v(ga + 1)))
    A("ds_write_b32 %s, %s" % (v(sQw), v(ga)))
else:
    sexpr(sT0, [(sJ, 65536), (sHi, 16384), (sU, 1024)], E1T + 4096)
    A("v_add_u32 v4, %s, v3" % sT0)
    A("v_add_u32 v5, 8192, v4")
    sexpr(sT0, [(sU, 64 * RS)], REC)
    vexpr(6, [(0, RS)], sT0)
    if P.get("PTOUCH", 1) == 2:
        ptouch()
    sleep(P.get("D_A0", 20))
    A("s_mov_b64 s[70:71], -1")
    TQ = XR
    A.label("S_AG0")
    A("global_load_dwordx4 %s, v4, %s offset:-4096 sc1" % (v(TQ, 4), pWS))
    A("global_load_dwordx4 %s, v4, %s sc1" % (v(TQ + 4, 4), pWS))
    A("global_load_dwordx4 %s, v5, %s offset:-4096 sc1" % (v(TQ + 8, 4), pWS))
    A("global_load_dwordx4 %s, v5, %s sc1" % (v(TQ + 12, 4), pWS))
    A("s_sub_u32 %s, %s, 1" % (sBud, sBud))
    A("s_cbranch_scc1 S_AG0_X")
    A("s_waitcnt vmcnt(0)")
    for i in range(8):
        A("v_cmpx_eq_u32 vcc, s48, %s" % v(TQ + 2 * i + 1))
    A("s_andn2_b64 s[70:71], s[70:71], exec")
    A("s_mov_b64 exec, s[70:71]")
    A("s_cbranch_scc1 S_AG0")
    A.label("S_AG0_DONE")
    A("s_mov_b64 exec, -1")
    OOL.append(["S_AG0_X:", "s_mov_b32 %s, 0" % sBud, "s_waitcnt vmcnt(0)", "s_branch S_AG0_DONE"])
    A("global_load_dwordx3 v[12:14], v6, %s sc1" % pWS)
    stamp("S", 2)
    for c in range(2):
        A("v_add_f32 %s, %s, %s" % (v(TQ + 2 * c), v(TQ + 2 * c), v(TQ + 4 + 2 * c)))
        A("v_add_f32 %s, %s, %s" % (v(TQ + 8 + 2 * c), v(TQ + 8 + 2 * c), v(TQ + 12 + 2 * c)))
        A("v_add_f32 %s, %s, %s" % (v(TQ + 2 * c), v(TQ + 2 * c), v(TQ + 8 + 2 * c)))
    A("v_cvt_pk_bf16_f32 %s, %s, %s" % (v(ga), v(TQ), v(TQ + 2)))
    sexpr(sT0, [(sU, RS_)], QOP)
    vexpr(4, [(0, 4)], sT0)
    A("ds_write_b32 v4, %s" % v(ga))
A("s_waitcnt lgkmcnt(0)")
A("s_barrier")
if P.get("VSIG"):
    A("v_mov_b32 v4, %d" % (FLG + 12))
    A("s_mov_b32 %s, %d" % (sT1, P["VSIG"]))
    A.label("S_VW")
    A("ds_read_b32 v5, v4")
    A("s_waitcnt lgkmcnt(0)")
    A("v_readfirstlane_b32 %s, v5" % sT0)
    A("s_cmp_ge_u32 %s, 8" % sT0)
    A("s_cbranch_scc1 S_VW_D")
    A("s_sleep 1")
    A("s_sub_u32 %s, %s, 1" % (sT1, sT1))
    A("s_cbranch_scc0 S_VW")
    A.label("S_VW_D")
if not P.get("WF", 0):
    exec(WOBLK)
A("s_waitcnt vmcnt(6)")
A("s_branch S_RP_CHK")
A.label("S_RP")
A("global_load_dwordx3 v[12:14], v6, %s sc1" % pWS)
A("s_waitcnt vmcnt(0)")
A.label("S_RP_CHK")
A("v_cmp_ne_u64 vcc, %s, v[12:13]" % pN)
A("s_cbranch_vccz S_RP_DONE")
A("s_sleep %d" % P.get("PSL", 8))
budget_loop("S_RP")
A("v_mov_b32 v14, -1")
A.label("S_RP_DONE")
A("s_lshr_b32 %s, %s, 1" % (sT0, sJ))
A("s_cmp_lg_u32 %s, %s" % (sT0, sU))
A("s_cbranch_scc1 S_REC_SKIP")
A("v_cmp_ne_u32 vcc, %s, v14" % sXcc)
A("s_bitcmp1_b32 %s, 0" % sJ)
A("s_cselect_b32 %s, vcc_hi, vcc_lo" % sT0)
A("s_cmp_eq_u32 %s, 0" % sT0)
A("s_cselect_b32 %s, 1, 0" % sT0)
if P["FORCE_SAFE"]:
    A("s_mov_b32 %s, 0" % sT0)
A("v_mov_b32 v5, %d" % FLG)
A("v_mov_b32 v7, %s" % sT0)
A("ds_write_b32 v5, v7")
A.label("S_REC_SKIP")
stamp("S", 14)
if P.get("PTOUCH", 1) == 1:
    ptouch()
w2_dma(0)
if P.get("PREF2", 1):
    A("s_and_b32 %s, %s, 3" % (sT0, sS))
    A("s_min_u32 %s, %s, 2" % (sT0, sT0))
    sexpr(sT0, [(sT0, 4096), (sU, 1024)])
    A("v_add_u32 v7, %s, v3" % sT0)
    A("global_load_dwordx4 v[140:143], v7, %s offset:-4" % pPC)
A("s_waitcnt lgkmcnt(0)")

TRBLK = r'''lab = if_layer0()
for t in range(7):
    for hh in range(2):
        A("ds_read_b64_tr_b16 %s, %s offset:%d" % (v(W2R + 4 * t + 2 * hh, 2), v(sTr), LW_2 + (32 * t + 4 * hh) * 128))
A("s_waitcnt lgkmcnt(0)")
A.label(lab)
'''
A.label("S_LOOP")
A("s_barrier")
cycs(0)
stamp("S", 3)
cm = XR
ca = XR + 8
A("v_mov_b32 v5, %d" % FLG)
A("ds_read_b32 v6, v5")
A("ds_read_b128 %s, %s" % (v(cm, 4), v(sMlrd)))
A("ds_read_b128 %s, %s offset:16" % (v(cm + 4, 4), v(sMlrd)))
for k in range(4):
    A("ds_read_b128 %s, %s offset:%d" % (v(ca + 4 * k, 4), v(sCrd), 2 * APB * k))
cM, cL, cT, cAd = SS, SS + 1, SS + 2, SS + 3
A("v_mov_b32 %s, %s" % (v(cAd), sC))
A("s_waitcnt lgkmcnt(%d)" % (0 if STAMP == 5 else 4))
cycs(1)
A("v_readfirstlane_b32 %s, v6" % sFast)
A("v_max3_f32 %s, %s, %s, %s" % (v(cM), v(cm), v(cm + 2), v(cm + 4)))
A("v_max_f32 %s, %s, %s" % (v(cM), v(cM), v(cm + 6)))
A("v_mov_b32 %s, %s" % (v(cT), v(cM)))
A("v_permlane32_swap_b32 %s, %s" % (v(cM), v(cT)))
A("v_max_f32 %s, %s, %s" % (v(cM), v(cM), v(cT)))
for k in range(4):
    A("v_sub_f32 %s, %s, %s" % (v(cm + 2 * k), v(cm + 2 * k), v(cM)))
for k in range(4):
    A("v_exp_f32 %s, %s" % (v(cm + 2 * k), v(cm + 2 * k)))
A("s_waitcnt lgkmcnt(0)")
if P.get("PK", 1):
    for h in range(2):
        A("v_pk_mul_f32 %s, %s, %s op_sel_hi:[0,1]" % (v(DR + 2 * h, 2), v(cm, 2), v(ca + 2 * h, 2)))
    A("v_mul_f32 %s, %s, %s" % (v(cL), v(cm), v(cm + 1)))
    for k in range(1, 4):
        for h in range(2):
            A("v_pk_fma_f32 %s, %s, %s, %s op_sel_hi:[0,1,1]" % (v(DR + 2 * h, 2), v(cm + 2 * k, 2), v(ca + 4 * k + 2 * h, 2), v(DR + 2 * h, 2)))
        A("v_fmac_f32 %s, %s, %s" % (v(cL), v(cm + 2 * k), v(cm + 2 * k + 1)))
else:
    for e in range(4):
        A("v_mul_f32 %s, %s, %s" % (v(DR + e), v(cm), v(ca + e)))
    A("v_mul_f32 %s, %s, %s" % (v(cL), v(cm), v(cm + 1)))
    for k in range(1, 4):
        for e in range(4):
            A("v_fmac_f32 %s, %s, %s" % (v(DR + e), v(cm + 2 * k), v(ca + 4 * k + e)))
        A("v_fmac_f32 %s, %s, %s" % (v(cL), v(cm + 2 * k), v(cm + 2 * k + 1)))
A("v_mov_b32 %s, %s" % (v(cT), v(cL)))
A("v_permlane32_swap_b32 %s, %s" % (v(DR), v(DR + 2)))
A("v_permlane32_swap_b32 %s, %s" % (v(DR + 1), v(DR + 3)))
A("v_permlane32_swap_b32 %s, %s" % (v(cL), v(cT)))
A("v_add_f32 %s, %s, %s" % (v(DR), v(DR), v(DR + 2)))
A("v_add_f32 %s, %s, %s" % (v(DR + 1), v(DR + 1), v(DR + 3)))
A("v_add_f32 %s, %s, %s" % (v(cL), v(cL), v(cT)))
cycs(2)
store_intra(["global_store_dwordx2 %s, %s, %s" % (v(sE2w), v(DR, 2), pWJ),
             "s_mov_b64 exec, 1",
             "global_store_dwordx2 %s, %s, %s" % (v(cAd), v(cM, 2), pWJ),
             "s_mov_b64 exec, -1"])
if P.get("SIGI", 1):
    A("s_barrier")
cycs(3)
stamp("S", 4)
W2P = P.get("W2P", 1)
lab = if_layer0()
A("v_add_u32 %s, %d, %s" % (v(gc), 4 * 8192, v(sE1w)))
A("v_add_u32 %s, %d, %s" % (v(gc + 1), (E4C - E4) & 0xFFFFFFFF, v(sE4w)))
for i in range(4):
    A("v_mov_b32 %s, 0x3f803f80" % v(XR + i))
A("s_waitcnt vmcnt(%d)" % (2 + P.get("PREF2", 1) + W2S[0] + ((2 + P.get("PTX", 0)) if P.get("PTOUCH", 1) == 1 else 0)))
w2_dma(1)
ssync(1)
for tl in range(2):
    for hh in range(2):
        A("ds_read_b64_tr_b16 %s, %s offset:%d" % (v(W1R + 4 * tl + 2 * hh, 2), v(sTr1), LW_1 + 4 * hh * 224 + 32 * tl))
for t in range(4):
    for hh in range(2):
        A("ds_read_b64_tr_b16 %s, %s offset:%d" % (v(WO + 4 * t + 2 * hh, 2), v(sTr), LW_O + (32 * t + 4 * hh) * 128))
A("s_waitcnt lgkmcnt(8)")
A("%s %s, %s, %s, 0" % (MFMA, v(DR + 4, 4), v(XR, 4), v(W1R, 4)))
A("%s %s, %s, %s, 0" % (MFMA, v(XR + 4, 4), v(XR, 4), v(W1R + 4, 4)))
A("s_cmp_eq_u32 %s, 3" % sU)
A("s_cselect_b32 %s, 0, 0xffff" % sT0)
store_intra(exec_lines(0xFFFF) +
            ["global_store_dword %s, %s, %s" % (v(gc), v(sCsP), pWJ),
             "global_store_dword %s, %s, %s" % (v(gc + 1), v(DR + 4), pWJ),
             "s_mov_b32 exec_lo, %s" % sT0,
             "global_store_dword %s, %s, %s offset:64" % (v(gc + 1), v(XR + 4), pWJ),
             "s_mov_b64 exec, -1"])
A("s_waitcnt lgkmcnt(0)")
A.label(lab)
A("s_barrier")
cycs(4)
if STAMP == 5:
    A("s_waitcnt lgkmcnt(0)")
stamp("S", 5)
for t in range(4):
    A("ds_read_b128 %s, %s offset:%d" % (v(XR + 4 * t, 4), v(sOrd), 64 * t))
for t in range(4):
    A("s_waitcnt lgkmcnt(%d)" % (3 - t))
    A("%s %s, %s, %s, %s" % (MFMA, v(DR, 4), v(XR + 4 * t, 4), v(WO + 4 * t, 4), "0" if t == 0 else v(DR, 4)))
if P.get("E3B", 1):
    A("v_cvt_pk_bf16_f32 %s, %s, %s" % (v(DR), v(DR), v(DR)))
    A("global_store_short %s, %s, %s sc1" % (v(sE3w), v(DR), pWL))
else:
    A("global_store_dword %s, %s, %s sc1" % (v(sE3w), v(DR), pWL))
cycs(5)
A("s_barrier")
lab = if_layer0()
w2_dma(2)
A("s_sub_u32 %s, 4, %s" % (sT0, sHi))
A("s_lshl_b32 %s, %s, 13" % (sT0, sT0))
A("v_add_u32 %s, %s, %s" % (v(gc), sT0, v(sAg)))
poll(["global_load_dwordx4 %s, %s, %s sc1" % (v(ga, 4), v(gc), pWJ),
      "global_load_dwordx4 %s, %s, %s offset:2048 sc1" % (v(gb, 4), v(gc), pWJ)], AGC, nap=4)
for e in range(4):
    A("v_add_f32 %s, %s, %s" % (v(ga + e), v(ga + e), v(gb + e)))
half_treduce(ga)
A("v_mov_b32 %s, %s" % (v(sCq0), v(ga)))
A("v_mov_b32 %s, %s" % (v(sCq1), v(ga + 1)))
A.label(lab)
A("s_barrier")
cycs(6)
if STAMP == 5:
    A("s_waitcnt lgkmcnt(0)")
stamp("S", 6)
A("ds_read_b128 %s, %s" % (v(XR, 4), v(sX1a)))
A("s_cmp_eq_u32 %s, 3" % sU)
A("s_cbranch_scc1 S_W1_W3")
A("s_waitcnt lgkmcnt(0)")
A("%s %s, %s, %s, 0" % (MFMA, v(DR, 4), v(XR, 4), v(W1R, 4)))
A("%s %s, %s, %s, 0" % (MFMA, v(DR + 4, 4), v(XR, 4), v(W1R + 4, 4)))
store_intra(["global_store_dword %s, %s, %s" % (v(sE4w), v(DR), pWJ),
             "global_store_dword %s, %s, %s offset:64" % (v(sE4w), v(DR + 4), pWJ)])
A("s_branch S_W1_DONE")
A.label("S_W1_W3")
A("ds_read_b128 %s, %s" % (v(XR + 4, 4), v(sX1b)))
A("s_waitcnt lgkmcnt(1)")
A("%s %s, %s, %s, 0" % (MFMA, v(DR, 4), v(XR, 4), v(W1R, 4)))
A("s_waitcnt lgkmcnt(0)")
A("%s %s, %s, %s, 0" % (MFMA, v(DR + 4, 4), v(XR, 4), v(XR + 4, 4)))
store_intra(["global_store_dword %s, %s, %s" % (v(sE4w), v(DR), pWJ)] + exec_lines(STM) +
            ["global_store_dword %s, %s, %s" % (v(sE4sw), v(DR + 4), pWJ)] + exec_lines(0x000F000F000F000F) +
            ["global_store_dwordx4 %s, %s, %s" % (v(sE4rw), v(XR + 4, 4), pWJ), "s_mov_b64 exec, -1"])
A.label("S_W1_DONE")
cycs(7)
if P.get("SIGI", 1):
    A("s_barrier")
KEEP = 136
if P.get("CLEAN", 0) & 8:
    A("v_mov_b32 %s, %s" % (v(KEEP), v(DR)))
    A("v_mov_b32 %s, %s" % (v(KEEP + 1), v(DR + 4)))
if P.get("W2LATE", 0):
    A("s_waitcnt vmcnt(0)")
else:
    exec(TRBLK)
A("s_barrier")
cycs(8)
if STAMP == 5:
    A("s_waitcnt lgkmcnt(0)")
stamp("S", 7)
if P.get("W2LATE", 0):
    exec(TRBLK)
for t in range(7):
    A("ds_read_b128 %s, %s offset:%d" % (v(XR + 4 * t, 4), v(sHrd), 64 * t))
for t in range(7):
    A("s_waitcnt lgkmcnt(%d)" % (6 - t))
    ab = (v(W2R + 4 * t, 4), v(XR + 4 * t, 4)) if P.get("WIDE", 0) else (v(XR + 4 * t, 4), v(W2R + 4 * t, 4))
    A("%s %s, %s, %s, %s" % (MFMA, v(DR, 4), ab[0], ab[1], "0" if t == 0 else v(DR, 4)))
if P.get("WIDE", 0):
    set_exec(0x0001000100010001)
    A("global_store_dwordx4 %s, %s, %s sc1" % (v(sE5w), v(DR, 4), pWL))
else:
    set_exec(0xFFFF)
    A("global_store_dword %s, %s, %s sc1" % (v(sE5w), v(DR), pWL))
set_exec(-1)
if P.get("SIG", 1):
    A("s_barrier")
if P.get("SAFEDLY"):
    A("s_cmp_lg_u32 %s, 0" % sFast)
    A("s_cbranch_scc1 S_NODLY")
    sleep(400)
    A.label("S_NODLY")
cycs(9)
cycs_dump(10)
stamp("S", 8)
A("s_cmp_lg_u32 %s, 0" % sL)
A("s_cbranch_scc1 L_EXIT")
A("s_mov_b32 %s, 1" % sL)
padd(pWL, pWL, LSTR)
sexpr(sT0, [(sS, 2176), (sU, 544)], E2S)
A("v_add_u32 v4, %s, v3" % sT0)
store_intra(exec_lines((1 << 34) - 1) + ["global_store_dwordx4 v4, %s, %s" % (v(SN, 4), pWJ), "s_mov_b64 exec, -1"])
A("s_lshl_b32 %s, %s, 6" % (sT0, sU))
A("v_add_u32 %s, %s, %s" % (v(SS), sT0, v(sXa)))
A("v_mov_b32 %s, 0" % v(gc))
A("s_waitcnt vmcnt(0)")
A("s_barrier")
stamp("S", 0)
for t in range(4):
    A("ds_read_b128 %s, %s offset:%d" % (v(XR + 4 * t, 4), v(sXa), 64 * t))
A("ds_read_b128 %s, %s" % (v(XR + 16, 4), v(sXb)))
A("ds_read_b128 %s, %s" % (v(XR + 20, 4), v(SS)))
for t in range(4):
    A("s_waitcnt lgkmcnt(%d)" % (5 - t))
    A("%s %s, %s, %s, %s" % (MFMA, v(DR, 4), v(XR + 4 * t, 4), v(WQ + 4 * t, 4), "0" if t == 0 else v(DR, 4)))
A("s_waitcnt lgkmcnt(0)")
A("%s %s, %s, %s, 0" % (MFMA, v(DR + 4, 4), v(XR + 20, 4), v(XR + 16, 4)))
stamp("S", 1)
store_intra(["global_store_dword %s, %s, %s" % (v(sE1w), v(DR), pWJ)] + exec_lines(STM) +
            ["global_store_dword %s, %s, %s" % (v(sE1sw), v(DR + 4), pWJ), "s_mov_b64 exec, -1"])
sleep(P["D_A"])
SSETS = [SS, XR, XR + 12][:P.get("NSETS", 2)]
q0_, q1_, q2_, q3_ = 4, 5, 6, 7


def a_post():
    t = XR
    with Cap() as c1:
        stats_math(gc, XR + 4, 1.0, 1e-5)
        A("v_mul_f32 %s, %s, %s" % (v(q2_), v(XR + 5), v(sCq0)))
        A("v_mul_f32 %s, %s, %s" % (v(q3_), v(XR + 5), v(sCq1)))
    with Cap() as c2:
        for e in range(4):
            A("v_add_f32 %s, %s, %s" % (v(t + e), v(ga + e), v(gb + e)))
        half_treduce(t)
    for l in interleave(c1.lines, c2.lines):
        A(l)
    A("v_fma_f32 %s, %s, %s, -%s" % (v(q0_), v(t), v(XR + 4), v(q2_)))
    A("v_fma_f32 %s, %s, %s, -%s" % (v(q1_), v(t + 1), v(XR + 4), v(q3_)))


opt_poll("global_load_dword %s, %s, %s sc1" % (v(gc), v(sAst), pWJ), 0xFFFFFFFF, [gc], AG, range(ga, ga + 8), a_post, [q0_, q1_])
stamp("S", 2)
A("v_cvt_pk_bf16_f32 %s, %s, %s" % (v(q0_), v(q0_), v(q1_)))
A("ds_write_b32 %s, %s" % (v(sQw), v(q0_)))
A("s_waitcnt lgkmcnt(0)")
A("s_barrier")
sexpr(sT0, [(sS, 2048), (sU, 512)], E4)
A("v_add_u32 v4, %s, v3" % sT0)
store_intra(exec_lines(0xFFFFFFFF) + ["global_store_dwordx4 v4, %s, %s" % (v(SN, 4), pWJ), "s_mov_b64 exec, -1"])
A("s_waitcnt vmcnt(0)")
A("s_branch S_LOOP")
if P.get("CLEAN", 0) & 4:
    A.label("S_FIN")
    sexpr(sT0, [(sS, 4096), (sU, 1024)])
    A("v_add_u32 v4, %s, v3" % sT0)
    A("global_store_dwordx4 v4, %s, %s sc1" % (v(SN, 4), pWJ))
    if P.get("CLEAN", 0) & 8:
        A("global_store_dword %s, %s, %s sc1" % (v(sE4w), v(KEEP), pWJ))
        A("s_cmp_eq_u32 %s, 3" % sU)
        A("s_cbranch_scc1 L_EXIT")
        A("global_store_dword %s, %s, %s offset:64 sc1" % (v(sE4w), v(KEEP + 1), pWJ))
    A("s_branch L_EXIT")

KR, VR, VF, QR, SR = 16, 48, 80, 112, 128
GS = 48
(gOg, gOml, gOlds, gW1g, gW1x, gW1lds, gW2g, gW2s, gW2lds, gXg, gXr, gXlds, gB1, gB2, gCs1, gQrd, gApw, gMlw, gOut, gDma) = range(148, 168)
_gn = [1 if P["PREF"] else 0]


def gload(t):
    if P.get("NODMA") and "lds" in t:
        t = "global_load_dword v140, v3, %s" % pB1 if False else "s_nop 0"
        A(t)
        return
    if _gn[0] >= P["W"]:
        if P.get("ADAPT"):
            lab = newlabel("THR")
            A("ds_read_b32 v130, v129")
            A("s_waitcnt lgkmcnt(0)")
            A("v_readfirstlane_b32 %s, v130" % sT1)
            A("s_cmp_lg_u32 %s, 0" % sT1)
            A("s_cbranch_scc1 %s" % lab)
            A("s_waitcnt vmcnt(%d)" % (P["W"] - 1))
            A.label(lab)
        else:
            A("s_waitcnt vmcnt(%d)" % (P["W"] - 1))
    A(t)
    _gn[0] += 1


GADDR = r'''A("v_lshrrev_b32 v11, 3, v0")        # l>>3
A("v_and_b32 v12, 7, v0")            # l&7
vexpr(gDma, [(11, 1024), (12, 16)])
# bias elements
A("s_lshr_b32 %s, %s, 1" % (sK0, sWave))     # b = w>>1
A("s_and_b32 %s, %s, 1" % (sK1, sWave))      # w&1
A("s_min_u32 %s, %s, 6" % (sK2, sWave))      # w' for the W2 gather
vexpr(13, [(1, 4), (2, 1)])                  # X col local = 4 l16 + g
sexpr(sT0, [(sHi, 256), (sK1, 128)])
vexpr(14, [(13, 2)], sT0)                    # col*2 within a 512-col bf16 row
gload("global_load_ushort %s, v14, %s%s" % (v(gB2), pB2, NT))
vexpr(10, [(12, 4), (2, 1)])                 # 4 (l&7) + g
sexpr(sT0, [(sK2, 64)])
vexpr(10, [(10, 2)], sT0)                    # f*2 (local)
sexpr(sT0, [(sJ, 448)])
A("v_add_u32 v6, %s, v10" % sT0)
gload("global_load_ushort %s, v6, %s%s" % (v(gB1), pB1, NT))
N_AFTER_K, N_AFTER_V = 8, 0

for q in range(4):
    smov64(mQ[q], (0x000F000F000F000F << (4 * q)))
A("s_mov_b32 %s, 0x05040100" % sPermLo)
A("s_mov_b32 %s, 0x07060302" % sPermHi)
A("s_mov_b32 %s, %s" % (sC, f32(128 ** -0.5 * math.log2(math.e))))
A("s_mov_b32 s42, s40")
A("s_mov_b32 s43, s41")
A("s_mul_i32 %s, %s, %d" % (sT0, sJ, JSTR))
padd(pWJ, pWS, sT0)
A("v_add_u32 %s, %d, v10" % (v(gW2lds), HOP))
# O gather: E2 + ((ro*4+b)*8 + 2g)*512 + (16 (w&1) + l16)*16
sexpr(sT0, [(sHi, 16384), (sK0, 4096), (sK1, 256)], E2)
vexpr(gOg, [(2, 1024), (1, 16)], sT0)
sexpr(sT0, [(sHi, 256), (sK0, 64)], E2S)
vexpr(gOml, [(2, 16)], sT0)
# O lds: U = 16 h + l16 (h = w&1); lp = 2U + (g>>1); ups = lp&31 = (2 l16 + (g>>1)) ; e = 2 h + (g&1)
#   ups = 16 a + 4 g' + qq ; d = 32 g' + 8 e + 4 a + qq
A("v_lshrrev_b32 v4, 1, v2")
A("v_lshl_add_u32 v4, v1, 1, v4")            # ups
A("v_bfe_u32 v5, v4, 4, 1")                  # a
A("v_bfe_u32 v6, v4, 2, 2")                  # g'
A("v_and_b32 v7, 3, v4")                     # qq
A("v_and_b32 v4, 1, v2")                     # g&1
sexpr(sT0, [(sK0, RS_), (sK1, 32)], OOP)
vexpr(gOlds, [(6, 64), (4, 16), (5, 8), (7, 2)], sT0)
# W1 gather: E3 + r1*16384 + (2 pp)*512 + (4 w + (l&3))*16 ; pp = l>>2
A("v_lshrrev_b32 v4, 2, v0")
A("v_and_b32 v5, 3, v0")
if P.get("E3B", 1):
    sexpr(sT0, [(sR1, 8192), (sWave, 1024)], E3)
    A("v_add_u32 %s, %s, v3" % (v(gW1g), sT0))
elif P.get("E3L", 1):
    sexpr(sT0, [(sR1, 16384), (sWave, 2048)], E3)
    A("v_add_u32 %s, %s, v3" % (v(gW1g), sT0))
else:
    sexpr(sT0, [(sR1, 16384), (sWave, 64)], E3)
    vexpr(gW1g, [(4, 1024), (5, 16)], sT0)
# rho = 16 tile + 4 (l&3) + g ; tile = w>>2, b = w&3
A("s_lshr_b32 %s, %s, 2" % (sT1, sWave))
A("s_and_b32 %s, %s, 3" % (sT2, sWave))
if P.get("E3B", 1):
    # column = 8 (l&1) + 4 b5 + 2 b4 + b3
    A("v_and_b32 v4, 1, v0")
    A("v_bfe_u32 v5, v0, 5, 1")
    A("v_bfe_u32 v6, v0, 4, 1")
    A("v_bfe_u32 v7, v0, 3, 1")
    A("v_lshlrev_b32 v4, 4, v4")
    A("v_lshl_add_u32 v4, v5, 3, v4")
    A("v_lshl_add_u32 v4, v6, 2, v4")
    A("v_lshl_add_u32 v6, v7, 1, v4")
    A("s_mov_b32 s61, 0x00003f80")      # (1, 0)
    A("s_mov_b32 s46, 0x3f800000")      # (0, 1)
    A("s_mov_b32 s47, 0x3f803f80")      # (1, 1)
    smov64("s[48:49]", 0xFF00FF00FF00FF00)
else:
    vexpr(6, [(5, 8), (2, 2)])
sexpr(sT0, [(sT2, RS1), (sT1, 32)], X1OP)
A("v_add_u32 %s, %s, v6" % (v(gW1lds), sT0))
sexpr(sT0, [(sT2, RS_), (sT1, 32)], XOP)
A("s_and_b32 %s, %s, 3" % (sT1, sR1))
A("s_lshl_b32 %s, %s, 6" % (sT1, sT1))
A("s_add_u32 %s, %s, %s" % (sT0, sT0, sT1))
A("v_add_u32 %s, %s, v6" % (v(gW1x), sT0))
# W2 gather: E4 + (b*16 + 2 pp8)*896 + (8 w' + (l&7))*16 ; pp8 = l>>3
sexpr(sT0, [(sHi, 16 * 896), (sK2, 128)], E4)
vexpr(gW2g, [(11, 2 * 896), (12, 16)], sT0)
# W2 stats: E4S + (c1*4 + b)*128 + l16*8  (16 entries, row all-reduce)
sexpr(sT0, [(sHi, 128)], E4S)
vexpr(gW2s, [(1, 8), (2, 4)], sT0)
# X gather: E5 + ((b*8 + 2 rq + (w&1))*8 + 2g)*256 + l16*16
sexpr(sT0, [(sK0, 16384), (sHi, 4096), (sK1, 2048)], E5)
vexpr(gXg, [(2, 512), (1, 16)], sT0)
sexpr(sT0, [(sK0, 1024)], E4R)
A("v_add_u32 %s, %s, v14" % (v(gXr), sT0))
sexpr(sT0, [(sK0, 1024)])
A("v_add_u32 %s, %s, v14" % (v(gOut), sT0))
sexpr(sT0, [(sK0, RS_), (sK1, 128)], XOP)
vexpr(gXlds, [(13, 2)], sT0)
vexpr(gQrd, [(8, RS_), (2, 16)], None, QOP)
sexpr(sT0, [(sWave, 2 * APB)], AP)
vexpr(gApw, [(8, 288), (2, 64), (9, 16)], sT0)
sexpr(sT0, [(sWave, 8)], ML)
vexpr(gMlw, [(8, 64)], sT0)
'''
NV1 = 8
A.label("L_G")
ISTR, WSTR = ((65536, 8192) if P.get("KMODE", 5) == 5 else (8192, 65536))
SWZ = P.get("SWZ", 1)
sFa = "s66"
if SWZ:
    A("s_lshr_b32 %s, %s, 1" % (sFa, sJ))
    A("s_and_b32 %s, %s, 1" % (sT1, sHi))
    A("s_lshl_b32 %s, %s, 2" % (sT1, sT1))
    A("s_or_b32 %s, %s, %s" % (sFa, sFa, sT1))
    A("s_lshl_b32 %s, %s, 1" % (sT1, sHi))
    A("s_xor_b32 %s, %s, %s" % (sT1, sT1, sWave))
    sexpr(sT0, [(sHi, 8 << 21), (sJ, 1 << 21), (sLo, 1024), (sT1, WSTR)], 6144 * 256)
else:
    sexpr(sT0, [(sHi, 8 << 21), (sJ, 1 << 21), (sLo, 1024), (sWave, WSTR)], 6144 * 256)
A("v_and_b32 v8, 3, v1")
A("v_lshrrev_b32 v9, 2, v1")
if SWZ:
    A("s_and_b32 %s, %s, 3" % (sT1, sFa))
    A("v_xor_b32 v10, %s, v8" % sT1)
    vexpr(10, [(10, ISTR), (9, 256), (2, 16)])
    A("s_lshr_b32 %s, %s, 2" % (sT2, sFa))
    A("s_mul_i32 %s, %s, %d" % (sT2, sT2, 4 * ISTR))
else:
    vexpr(10, [(8, ISTR), (9, 256), (2, 16)])
A("v_mov_b32 v129, %d" % (FLG + 12))
A("s_waitcnt lgkmcnt(0)")
stamp_init()
stamp("G", 10)
padd(pT2, pV, sT0)
if SWZ:
    padd("s[26:27]", pK, sT0)
    padd(pT, "s[26:27]", sT2)
    A("s_xor_b32 s77, %s, %d" % (sT2, 4 * ISTR))
else:
    padd(pT, pK, sT0)
for tau in range(2):
    for t in range(4):
        if 4 * tau + t == P["B0POS"]:
            A("s_barrier")
        gload("global_load_dwordx4 %s, v10, %s offset:%d%s" % (v(KR + 4 * (4 * tau + t), 4), pT, 64 * t, NT))
    if tau == 0:
        if SWZ:
            padd(pT, "s[26:27]", "s77")
        else:
            padd(pT, pT, 4 * ISTR)
        A("v_mov_b32 %s, v10" % v(SR))
        exec(GADDR)
        A("v_mov_b32 v10, %s" % v(SR))
stamp("G", 11)
NV1 = 8
for jj in range(8):
    if SWZ:
        A("s_xor_b32 %s, %s, %d" % (sT0, sFa, jj))
        A("s_mul_i32 %s, %s, %d" % (sT0, sT0, ISTR))
        padd(pT, pT2, sT0)
        gload("global_load_dwordx4 %s, v3, %s%s" % (v(VR + 4 * jj, 4), pT, NT))
        continue
    gload("global_load_dwordx4 %s, v3, %s%s" % (v(VR + 4 * jj, 4), pT2, NT))
    if jj < 7:
        padd(pT2, pT2, ISTR)
for q in range(4):
    A("v_cndmask_b32 v%d, 0, -1, %s" % (144 + q, mQ[q]))
stamp("G", 9)
if P.get("KVWAIT"):
    A("s_waitcnt vmcnt(0)")
    stamp("G", 14)
if P.get("QLATE"):
    A("s_barrier")
if P.get("PRIO", 0):
    A("s_cmp_ge_u32 %s, 4" % sWave)
    A("s_cbranch_scc1 G_ENTRY")
    A("s_setprio %d" % P["PRIO"])
A.label("G_ENTRY")
A("s_barrier")
cyc(0)
stamp("G")
if NV1 < 8:
    lab = if_layer0()
    for jj in range(NV1, 8):
        A("global_load_dwordx4 %s, v3, %s offset:%d%s" % (v(VR + 4 * jj, 4), pT2, (jj - 4) * 1024, NT))
    A.label(lab)
for t in range(4):
    A("ds_read_b128 %s, %s offset:%d" % (v(QR + 4 * t, 4), v(gQrd), 64 * t))
A("s_waitcnt vmcnt(%d)" % N_AFTER_K)
stamp("G")
S0, S1 = SR, SR + 4
if STAMP == 4:
    A("s_waitcnt lgkmcnt(0)")
    cyc(1)
for t in range(4):
    A("s_waitcnt lgkmcnt(%d)" % ((3 - t) if STAMP != 4 else 15))
    for tau in range(2):
        d = v(SR + 4 * tau, 4)
        A("%s %s, %s, %s, %s" % (MFMA, d, v(KR + 4 * (4 * tau + t), 4), v(QR + 4 * t, 4), "0" if t == 0 else d))
aM, aT, aMc = 136, 137, 138
PR = 140
PM = QR
A("v_max3_f32 %s, %s, %s, %s" % (v(aM), v(S0), v(S0 + 1), v(S0 + 2)))
A("v_max3_f32 %s, %s, %s, %s" % (v(aT), v(S1), v(S1 + 1), v(S1 + 2)))
A("v_max3_f32 %s, %s, %s, %s" % (v(aM), v(aM), v(S0 + 3), v(S1 + 3)))
A("v_max_f32 %s, %s, %s" % (v(aM), v(aM), v(aT)))
cyc(2)
g_allreduce("v_max_f32", aM, aT)
A("v_mul_f32 %s, %s, %s" % (v(aMc), sC, v(aM)))
for q in range(4):
    A("s_mov_b64 exec, %s" % mQ[q])
    A("v_fma_f32 %s, %s, %s, -%s" % (v(PR), v(SR + 2 * q), sC, v(aMc)))
    A("v_fma_f32 %s, %s, %s, -%s" % (v(PR + 1), v(SR + 2 * q + 1), sC, v(aMc)))
A("s_mov_b64 exec, -1")
A("v_exp_f32 %s, %s" % (v(PR), v(PR)))
A("v_exp_f32 %s, %s" % (v(PR + 1), v(PR + 1)))
A("v_cvt_pk_bf16_f32 %s, %s, %s" % (v(PR), v(PR), v(PR + 1)))
cyc(3)
lab0, lab1 = newlabel("VT"), newlabel("VTD")
A("s_cmp_eq_u32 %s, 0" % sL)
A("s_cbranch_scc1 %s" % lab0)
D0 = 4
DL = 128
MK = 144
ONES = GS + 28


def pm(q, p):
    rot = (4 * (q - p)) % 16
    if rot == 0:
        A("v_and_b32 %s, %s, %s" % (v(PM + 4 * q + p), v(PR), v(MK + q)))
    else:
        A("v_and_b32_dpp %s, %s, %s row_ror:%d%s" % (v(PM + 4 * q + p), v(PR), v(MK + q), rot, DPP))


with Cap() as vt:
    for k in range(16):
        pm(k >> 2, k & 3)
    for i in range(4):
        A("v_mov_b32 %s, 0x3f803f80" % v(132 + i))
    A("%s %s, %s, %s, 0" % (MFMA, v(DL, 4), v(132, 4), v(PM, 4)))
    for p in range(4):
        A("s_waitcnt vmcnt(%d)" % (N_AFTER_V + 6 - 2 * p))
        if p == 3:
            stamp("G")
        if P.get("VSIG") and p == P.get("VSP", 1):
            A("v_mov_b32 v12, %d" % (FLG + 12))
            A("v_mov_b32 v13, 1")
            A("s_mov_b64 exec, 1")
            A("ds_add_u32 v12, v13")
            A("s_mov_b64 exec, -1")
        for i in (0, 4, 1, 5, 2, 6, 3, 7):
            A("v_perm_b32 %s, %s, %s, %s" % (v(VF + 4 * i + p), v(VR + 4 * (2 * p + 1) + (i >> 1)), v(VR + 4 * (2 * p) + (i >> 1)),
                                             sPermHi if (i & 1) else sPermLo))
    for q in range(4):
        for a in range(2):
            d = v(D0 + 4 * a, 4)
            A("%s %s, %s, %s, %s" % (MFMA, d, v(VF + 4 * (4 * a + q), 4), v(PM + 4 * q, 4), "0" if q == 0 else d))
    for i in range(4):
        A("v_mov_b32 %s, 0x3f803f80" % v(ONES + i))
OOL.append([lab0 + ":"] + vt.lines + ["s_branch %s" % lab1])
for p in range(4):
    pm(0, p)
pm(1, 0); pm(1, 1)
A("%s %s, %s, %s, 0" % (MFMA, v(DL, 4), v(ONES, 4), v(PM, 4)))
for q in range(4):
    for a in range(2):
        d = v(D0 + 4 * a, 4)
        A("%s %s, %s, %s, %s" % (MFMA, d, v(VF + 4 * (4 * a + q), 4), v(PM + 4 * q, 4), "0" if q == 0 else d))
        nxt = 4 * q + 2 * a + 6
        for k in (nxt, nxt + 1):
            if k < 16:
                pm(k >> 2, k & 3)
A.label(lab1)
A("v_mov_b32 %s, %s" % (v(aMc + 1), v(DL)))
cyc(4)
A("s_mov_b64 exec, %s" % mQ[0])
A("ds_write_b64 %s, %s" % (v(gMlw), v(aMc, 2)))
A("s_mov_b64 exec, -1")
A("ds_write_b128 %s, %s" % (v(gApw), v(D0, 4)))
A("ds_write_b128 %s, %s offset:%d" % (v(gApw), v(D0 + 4, 4), APB))
A("s_waitcnt lgkmcnt(0)")
cyc(5)
A("s_barrier")
cyc(6)
cyc_dump(7)

a0, b0, c0 = GS, GS + 4, GS + 8
r0, r1_, r2, r3 = GS + 12, GS + 13, GS + 14, GS + 15


def add_ab():
    for e in range(4):
        A("v_add_f32 %s, %s, %s" % (v(a0 + e), v(a0 + e), v(b0 + e)))


BC = "row_newbcast:0" + DPP
NS_ = P.get("NSETS", 2)
GSETS = [GS, GS + 16, 112][:NS_]
GAP = P.get("GAP", 3)


def add_ab2(a):
    for e in range(4):
        A("v_add_f32 %s, %s, %s" % (v(a + e), v(a + e), v(a + 4 + e)))


def g_treduce_to(a, out):
    A("v_permlane16_swap_b32 %s, %s" % (v(a), v(a + 1)))
    A("v_permlane16_swap_b32 %s, %s" % (v(a + 2), v(a + 3)))
    A("v_add_f32 %s, %s, %s" % (v(a), v(a), v(a + 1)))
    A("v_add_f32 %s, %s, %s" % (v(a + 2), v(a + 2), v(a + 3)))
    A("v_permlane32_swap_b32 %s, %s" % (v(a), v(a + 2)))
    A("v_add_f32 %s, %s, %s" % (v(out), v(a), v(a + 2)))


A("ds_read_u16 %s, %s" % (v(r3), v(gW1x)))
for e in range(4):
    A("v_mov_b32 %s, 0" % v(c0 + e))
A("s_barrier")
sleep(P.get("DI_O", 0))
stamp("G", 7)


T_ = GS + 16


def o_post():
    c, f0, f1, t = c0, T_ + 4, T_ + 5, T_
    A("v_max_f32 %s, %s, %s" % (v(r0), v(c), v(c + 2)))
    g_allreduce("v_max_f32", r0, r1_)
    A("v_sub_f32 %s, %s, %s" % (v(f0), v(c), v(r0)))
    A("v_sub_f32 %s, %s, %s" % (v(f1), v(c + 2), v(r0)))
    A("v_exp_f32 %s, %s" % (v(f0), v(f0)))
    A("v_exp_f32 %s, %s" % (v(f1), v(f1)))
    with Cap() as c1:
        A("v_mul_f32 %s, %s, %s" % (v(r1_), v(f0), v(c + 1)))
        A("v_fmac_f32 %s, %s, %s" % (v(r1_), v(f1), v(c + 3)))
        g_allreduce("v_add_f32", r1_, r2)
        A("v_rcp_f32 %s, %s" % (v(r1_), v(r1_)))
    with Cap() as c2:
        for e in range(4):
            A("v_mul_f32_dpp %s, %s, %s %s" % (v(t + e), v(f0), v(a0 + e), BC))
        for e in range(4):
            A("v_fmac_f32_dpp %s, %s, %s %s" % (v(t + e), v(f1), v(b0 + e), BC))
        g_treduce_to(t, r0)
    L1_, L2_ = c1.lines, c2.lines
    A(L1_[0]); A(L1_[1])
    for l in interleave(L2_, L1_[2:]):
        A(l)
    A("v_mul_f32_dpp %s, %s, %s %s" % (v(r0), v(r1_), v(r0), BC))


def o_pre():
    c, f0, f1 = c0, T_ + 4, T_ + 5
    A("v_max_f32 %s, %s, %s" % (v(r0), v(c), v(c + 2)))
    g_allreduce("v_max_f32", r0, r1_)
    A("v_sub_f32 %s, %s, %s" % (v(f0), v(c), v(r0)))
    A("v_sub_f32 %s, %s, %s" % (v(f1), v(c + 2), v(r0)))
    A("v_exp_f32 %s, %s" % (v(f0), v(f0)))
    A("v_exp_f32 %s, %s" % (v(f1), v(f1)))
    A("v_mul_f32 %s, %s, %s" % (v(r1_), v(f0), v(c + 1)))
    A("v_fmac_f32 %s, %s, %s" % (v(r1_), v(f1), v(c + 3)))
    g_allreduce("v_add_f32", r1_, r2)
    A("v_rcp_f32 %s, %s" % (v(r1_), v(r1_)))
    A("v_mul_f32 %s, %s, %s" % (v(f0), v(f0), v(r1_)))
    A("v_mul_f32 %s, %s, %s" % (v(f1), v(f1), v(r1_)))
    A("v_mov_b32_dpp %s, %s %s" % (v(f0), v(f0), BC))
    A("v_mov_b32_dpp %s, %s %s" % (v(f1 + 1), v(f1), BC))


def o_post2():
    f0, f1 = T_ + 4, T_ + 6
    for h in range(2):
        A("v_pk_mul_f32 %s, %s, %s op_sel_hi:[0,1]" % (v(a0 + 2 * h, 2), v(f0, 2), v(a0 + 2 * h, 2)))
    for h in range(2):
        A("v_pk_fma_f32 %s, %s, %s, %s op_sel_hi:[0,1,1]" % (v(a0 + 2 * h, 2), v(f1, 2), v(b0 + 2 * h, 2), v(a0 + 2 * h, 2)))
    g_treduce_to(a0, r0)


if P.get("SPLIT", 0):
    split_poll("global_load_dwordx4 %s, %s, %s sc1" % (v(c0, 4), v(gOml), pWJ), 0x0001000100010001, list(range(c0, c0 + 4)),
               ["global_load_dwordx4 %s, %s, %s sc1" % (v(a0, 4), v(gOg), pWJ),
                "global_load_dwordx4 %s, %s, %s offset:512 sc1" % (v(b0, 4), v(gOg), pWJ)], range(a0, a0 + 8), o_pre, o_post2, ck=0)
else:
    opt_poll("global_load_dwordx4 %s, %s, %s sc1" % (v(c0, 4), v(gOml), pWJ), 0x0001000100010001, range(c0, c0 + 4),
             ["global_load_dwordx4 %s, %s, %s sc1" % (v(a0, 4), v(gOg), pWJ),
              "global_load_dwordx4 %s, %s, %s offset:512 sc1" % (v(b0, 4), v(gOg), pWJ)], range(a0, a0 + 8), o_post, [r0], ck=0)
stamp("G")
A("v_cvt_pk_bf16_f32 %s, %s, %s" % (v(r0), v(r0), v(r0)))
A("ds_write_b16 %s, %s" % (v(gOlds), v(r0)))
A("s_waitcnt lgkmcnt(0)")
cycg(3)
A("s_barrier")
cycg(4)

A("v_lshlrev_b32 %s, 16, %s" % (v(r3), v(r3)))
A("s_barrier")
CA, CB, CAD = GS + 16, GS + 20, GS + 24
CSL = ["global_load_dwordx4 %s, %s, %s sc1" % (v(CA, 4), v(CAD), pWJ),
       "global_load_dwordx4 %s, %s, %s offset:896 sc1" % (v(CB, 4), v(CAD), pWJ)]
A("s_cmp_eq_u32 %s, 0" % sL)
A("s_cbranch_scc1 G_CS1")
sleep(P["D_W1"])
A.label("G_CS1_DONE")
OOL.append(["G_CS1:", "s_mul_i32 %s, %s, %d" % (sT0, sHi, 16 * 896), "s_add_u32 %s, %s, %d" % (sT0, sT0, E4 - E4C),
            "v_subrev_u32 %s, %s, %s" % (v(CAD), sT0, v(gW2g)), "s_sleep %d" % (P["D_W1"] - 2)] + CSL + ["s_branch G_CS1_DONE"])
stamp("G", 8)


def w1_issue(a):
    A("global_load_dwordx4 %s, %s, %s sc1" % (v(a, 4), v(gW1g), pWL))
    A("global_load_dwordx4 %s, %s, %s offset:%d sc1" % (v(a + 4, 4), v(gW1g), pWL, 1024 if P.get("E3L", 1) else 512))


def w1_post(a):
    add_ab2(a)
    g_treduce_to(a, r0)
    A("v_add_f32_dpp %s, %s, %s row_ror:4%s" % (v(r0), v(r0), v(r0), DPP))
    A("v_add_f32_dpp %s, %s, %s row_ror:8%s" % (v(r0), v(r0), v(r0), DPP))


if P.get("E3B", 1):
    pk, t_ = GS, GS + 4
    ld = "global_load_dwordx4 %s, %s, %s sc1" % (v(pk, 4), v(gW1g), pWL)
    A(ld)
    A.label("W1B_CHK")
    A("s_waitcnt vmcnt(0)")
    A("v_dot2_f32_bf16 %s, %s, s47, 0" % (v(t_), v(pk)))
    for e in range(1, 4):
        A("v_dot2_f32_bf16 %s, %s, s47, %s" % (v(t_), v(pk + e), v(t_)))
    A("v_cmp_u_f32 vcc, %s, %s" % (v(t_), v(t_)))
    A("s_cbranch_vccnz W1B_RETRY")
    A.label("W1B_OK")
    OOL.append(["W1B_RETRY:", "s_mov_b64 exec, vcc", ld, "s_mov_b64 exec, -1", "s_sub_u32 %s, %s, 1" % (sBud, sBud),
                "s_cbranch_scc0 W1B_CHK", "s_mov_b32 %s, 0" % sBud, "s_waitcnt vmcnt(0)", "s_branch W1B_OK"])
    A("v_permlane32_swap_b32 %s, %s" % (v(pk), v(pk + 2)))
    A("v_permlane32_swap_b32 %s, %s" % (v(pk + 1), v(pk + 3)))
    for e, (src, sel) in enumerate(((0, "s61"), (0, "s46"), (1, "s61"), (1, "s46"))):
        A("v_dot2_f32_bf16 %s, %s, %s, 0" % (v(t_ + e), v(pk + src), sel))
        A("v_dot2_f32_bf16 %s, %s, %s, %s" % (v(t_ + e), v(pk + 2 + src), sel, v(t_ + e)))
    A("v_permlane16_swap_b32 %s, %s" % (v(t_), v(t_ + 2)))
    A("v_permlane16_swap_b32 %s, %s" % (v(t_ + 1), v(t_ + 3)))
    A("v_add_f32 %s, %s, %s" % (v(t_), v(t_), v(t_ + 2)))
    A("v_add_f32 %s, %s, %s" % (v(t_ + 1), v(t_ + 1), v(t_ + 3)))
    A("v_cndmask_b32 %s, %s, %s, s[48:49]" % (v(t_ + 2), v(t_ + 1), v(t_)))
    A("v_cndmask_b32 %s, %s, %s, s[48:49]" % (v(r0), v(t_), v(t_ + 1)))
    A("v_add_f32_dpp %s, %s, %s row_ror:8%s" % (v(r0), v(t_ + 2), v(r0), DPP))
    A("v_add_f32_dpp %s, %s, %s %s" % (v(r0), v(r0), v(r0), X2))
    A("v_add_f32_dpp %s, %s, %s row_shr:4 row_mask:0xf bank_mask:0xa" % (v(r0), v(r0), v(r0)))
else:
    fast_poll(w1_issue, None, w1_post, None, [r0], GS)
stamp("G")
A("v_add_f32 %s, %s, %s" % (v(r0), v(r0), v(r3)))
A("v_cvt_pk_bf16_f32 %s, %s, %s" % (v(r0), v(r0), v(r0)))
if P.get("E3B", 1):
    set_exec(0xF0F0F0F0F0F0F0F0)
A("ds_write_b16 %s, %s" % (v(gW1lds), v(r0)))
if P.get("E3B", 1):
    set_exec(-1)
A("s_waitcnt lgkmcnt(0)")
A("s_barrier")

A("s_cmp_eq_u32 %s, 0" % sL)
A("s_cbranch_scc1 G_CS2")
A.label("G_CS2_DONE")
with Cap() as cs2:
    A.label("G_CS2_CHK")
    for e in range(4):
        A("v_add_f32 %s, %s, %s" % (v(a0 + e), v(CA + e), v(CB + e)))
    g_treduce(a0)
    A("v_add_f32_dpp %s, %s, %s row_ror:8%s" % (v(gCs1), v(a0), v(a0), DPP))
    A("v_cmp_u_f32 vcc, %s, %s" % (v(gCs1), v(gCs1)))
    A("s_cbranch_vccz G_CS2_OK")
    for l in CSL:
        A(l)
    A("s_waitcnt vmcnt(0)")
    budget_loop("G_CS2_CHK")
    A.label("G_CS2_OK")
    A("v_lshlrev_b32 %s, 16, %s" % (v(gB1), v(gB1)))
    A("v_lshlrev_b32 %s, 16, %s" % (v(gB2), v(gB2)))
OOL.append(["G_CS2:"] + cs2.lines + ["s_branch G_CS2_DONE"])
k0 = -2 * math.log2(math.e) * math.sqrt(2 / math.pi)
A("v_mov_b32 %s, %s" % (v(r2), f32(k0)))
A("s_barrier")
A("s_cmp_eq_u32 %s, 7" % sWave)
A("s_cbranch_scc1 G_W7")
OOL.append(["G_W7:", "s_cmp_lg_u32 s2, 0", "s_cbranch_scc1 G_W2_SKIP", "s_cmp_eq_u32 %s, 0" % sL, "s_cbranch_scc1 G_W2_SKIP",
            "v_mov_b32 v12, 0", "v_mov_b32 v4, 0", "v_mov_b32 v5, 0",
            "s_mov_b64 exec, 1", "global_store_dwordx2 v12, v[4:5], %s sc1" % pDBG, "s_mov_b64 exec, -1", "s_branch G_W2_SKIP"])
sleep(P.get("DI_W2", 0))
stamp("G", 12)


def add_to(t):
    for e in range(4):
        A("v_add_f32 %s, %s, %s" % (v(t + e), v(a0 + e), v(b0 + e)))


def w2_post():
    with Cap() as c1:
        stats_math(c0, T_ + 4, 1.0 + 1e-5, 1e-10)
        A("v_fma_f32 %s, -%s, %s, %s" % (v(r3), v(T_ + 5), v(gCs1), v(gB1)))
    with Cap() as c2:
        add_to(T_)
        g_treduce_to(T_, r0)
        A("v_add_f32_dpp %s, %s, %s row_ror:8%s" % (v(r0), v(r0), v(r0), DPP))
    for l in interleave(c1.lines, c2.lines):
        A(l)
    A("v_fma_f32 %s, %s, %s, %s" % (v(r0), v(r0), v(T_ + 4), v(r3)))


def pk_add(a):
    for h in range(2):
        A("v_pk_add_f32 %s, %s, %s" % (v(a + 2 * h, 2), v(a + 2 * h, 2), v(a + 4 + 2 * h, 2)))


def w2_pre():
    stats_math(c0, T_ + 4, 1.0 + 1e-5, 1e-10)
    A("v_fma_f32 %s, -%s, %s, %s" % (v(r3), v(T_ + 5), v(gCs1), v(gB1)))


def w2_post2():
    pk_add(a0)
    g_treduce_to(a0, r0)
    A("v_add_f32_dpp %s, %s, %s row_ror:8%s" % (v(r0), v(r0), v(r0), DPP))
    A("v_fma_f32 %s, %s, %s, %s" % (v(r0), v(r0), v(T_ + 4), v(r3)))


if P.get("SPLIT", 0):
    split_poll("global_load_dword %s, %s, %s sc1" % (v(c0), v(gW2s), pWJ), 0xFFFFFFFF, [c0],
               ["global_load_dwordx4 %s, %s, %s sc1" % (v(a0, 4), v(gW2g), pWJ),
                "global_load_dwordx4 %s, %s, %s offset:896 sc1" % (v(b0, 4), v(gW2g), pWJ)], range(a0, a0 + 8), w2_pre, w2_post2, ck=5)
else:
    opt_poll("global_load_dword %s, %s, %s sc1" % (v(c0), v(gW2s), pWJ), 0xFFFFFFFF, [c0],
             ["global_load_dwordx4 %s, %s, %s sc1" % (v(a0, 4), v(gW2g), pWJ),
              "global_load_dwordx4 %s, %s, %s offset:896 sc1" % (v(b0, 4), v(gW2g), pWJ)], range(a0, a0 + 8), w2_post, [r0], ck=5)
stamp("G")
RX = GS + 27
A("v_mul_f32 %s, %s, %s" % (v(r1_), v(r0), v(r0)))
A("v_fmac_f32 %s, %s, %s" % (v(r2), f32(k0 * 0.044715), v(r1_)))
A("v_mul_f32 %s, %s, %s" % (v(r2), v(r2), v(r0)))
A("v_exp_f32 %s, %s" % (v(r2), v(r2)))
A("v_add_f32 %s, 1.0, %s" % (v(r2), v(r2)))
A("v_rcp_f32 %s, %s" % (v(r2), v(r2)))
A("v_mul_f32 %s, %s, %s" % (v(r0), v(r0), v(r2)))
A("v_cvt_pk_bf16_f32 %s, %s, %s" % (v(r0), v(r0), v(r0)))
A("ds_write_b16 %s, %s" % (v(gW2lds), v(r0)))
A("s_waitcnt lgkmcnt(0)")
cycg(8)
A.label("G_W2_SKIP")
A("s_barrier")
cycg(9)
if STAMP == 6:
    A("s_waitcnt lgkmcnt(0)")
    for k in range(10):
        A("v_writelane_b32 v15, s%d, %d" % (80 + 2 * k, 32 + k))

A("s_cmp_eq_u32 %s, 0" % sL)
A("s_cbranch_scc1 G_X_GO")
A("s_cmp_lg_u32 %s, 0" % sLo)
A("s_cbranch_scc1 L_EXIT")
A("s_cmp_lg_u32 %s, %s" % (sWave, sJ))
A("s_cbranch_scc1 L_EXIT")
A.label("G_X_GO")


def xpre():
    A("v_lshlrev_b32 %s, 16, %s" % (v(r3), v(r3)))


A("global_load_ushort %s, %s, %s sc1" % (v(RX), v(gXr), pWJ))
A.label("G_RX_CHK")
A("s_waitcnt vmcnt(0)")
A("v_lshlrev_b32 %s, 16, %s" % (v(r3), v(RX)))
A("v_cmp_u_f32 vcc, %s, %s" % (v(r3), v(r3)))
A("s_cbranch_vccnz G_RX_RETRY")
A.label("G_RX_OK")
OOL.append(["G_RX_RETRY:", "global_load_ushort %s, %s, %s sc1" % (v(RX), v(gXr), pWJ),
            "s_sub_u32 %s, %s, 1" % (sBud, sBud), "s_cbranch_scc0 G_RX_CHK", "s_mov_b32 %s, 0" % sBud, "s_branch G_RX_OK"])
A("v_add_f32 %s, %s, %s" % (v(r3), v(r3), v(gB2)))
A("s_barrier")
if "D_XF" in P:
    sleep(P["D_XF"])
    A("s_cmp_lg_u32 %s, 0" % sL)
    A("s_cbranch_scc1 G_XS")
    sleep(P["D_X"] - P["D_XF"])
    A.label("G_XS")
else:
    sleep(P["D_X"])
stamp("G", 13)


def x_post():
    pk_add(a0)
    g_treduce_to(a0, r0)


opt_poll(None, 0, [], ["global_load_dwordx4 %s, %s, %s sc1" % (v(a0, 4), v(gXg), pWL),
                       "global_load_dwordx4 %s, %s, %s offset:256 sc1" % (v(b0, 4), v(gXg), pWL)], range(a0, a0 + 8), x_post, [r0])
stamp("G")
A("v_add_f32 %s, %s, %s" % (v(r0), v(r0), v(r3)))
A("v_cvt_pk_bf16_f32 %s, %s, %s" % (v(r0), v(r0), v(r0)))
A("s_cmp_lg_u32 %s, 0" % sL)
A("s_cbranch_scc1 G_FINAL")
A("ds_write_b16 %s, %s" % (v(gXlds), v(r0)))
A("s_mov_b32 %s, 1" % sL)
padd(pWL, pWL, LSTR)
A("s_waitcnt lgkmcnt(0)")
A("s_barrier")
A("s_waitcnt vmcnt(0)")
A("s_branch G_ENTRY")
A.label("G_FINAL")
sleep(P.get("ENDSLEEP", 0))
if "ECHO" in P:
    A("s_memrealtime s[82:83]")
    A("s_sub_u32 s80, s80, s78")
    A("s_waitcnt lgkmcnt(0)")
    A("s_add_u32 s80, s80, s82")
    A.label("ECHO_SPIN")
    A("s_memrealtime s[82:83]")
    A("s_waitcnt lgkmcnt(0)")
    A("s_cmp_lt_u32 s82, s80")
    A("s_cbranch_scc1 ECHO_SPIN")
A("global_store_short %s, %s, %s" % (v(gOut), v(r0), pOUT))
A.label("L_EXIT")
stamp_dump()
A.label("L_END")
A("s_endpgm")
for blk in OOL:
    for l in blk:
        A(l)
A("s_endpgm")

A.fix_hazards()

hdr = open("cdna_kernels/%s.s.ref" % NAME).read().split("; Override launch")[0]
out = hdr + """; @launch grid=(256,1,1) block=(768,1,1) lds=%d
;
; One persistent launch, one workgroup per CU (12 waves: 4 "service" + 8 "attention/gather" waves).
; K/V window and all weight tiles are loaded once and stay on chip for both layers. Stages hand data to
; each other through d_ws: buffers are cleared to a signalling-NaN sentinel inside the launch (guarded by
; per-workgroup records tagged with a launch nonce published in d_debug) and polled with sc1 loads.
; Workgroups with equal (id & 7) form a group; a group whose members report the same XCC id uses plain
; stores for its private exchanges, any other placement falls back to write-through (sc1) stores.
; Generated by dev/gen.py (hand-written generator, wait states inserted by dev/asmlib.py).
.amdgcn_target "amdgcn-amd-amdhsa--gfx950"
.text
.globl %s_kernel
.p2align 8
.type %s_kernel,@function
%s_kernel:
%s
    ; pad the code section so that the 12 KB code prefetch stays inside it
    .fill ((12288 + 256 - (. - %s_kernel)) / 4), 4, 0xbf810000
.section .rodata,"a"
.p2align 6
.amdhsa_kernel %s_kernel
  .amdhsa_next_free_vgpr 168
  .amdhsa_next_free_sgpr 102
  .amdhsa_accum_offset 168
  .amdhsa_group_segment_fixed_size 0
  .amdhsa_kernarg_size 104
  .amdhsa_user_sgpr_count 2
  .amdhsa_user_sgpr_kernarg_segment_ptr 1
  .amdhsa_system_sgpr_workgroup_id_x 1
.end_amdhsa_kernel
""" % (LDS_TOTAL, NAME, NAME, NAME, A.text(), NAME, NAME)
open(sys.argv[1], "w").write(out)
print("wrote", sys.argv[1], "instructions:", sum(1 for x in A.ins if not x.label), "LDS", LDS_TOTAL)
```
